```python
import torch

def _softmax(x, axis=-1):
    return torch.softmax(x, dim=axis)
def _gelu(x):
    return torch.nn.functional.gelu(x, approximate="tanh")
def _silu(x):
    return torch.nn.functional.silu(x)
def _sigmoid(x):
    return torch.sigmoid(x)
def _layernorm(x, axis=-1, eps=1e-5):
    m = x.mean(dim=axis, keepdim=True)
    v = x.var(dim=axis, keepdim=True, unbiased=False)
    return (x - m) / torch.sqrt(v + eps)
def _scatter_add(tgt, idx, src, axis=0):
    return tgt.clone().index_add_(axis, idx, src)
def _segment_sum(src, seg, n):
    out = torch.zeros((n,) + src.shape[1:], dtype=src.dtype)
    return out.index_add_(0, seg, src)
def _pad(x, pw):
    flat = tuple(v for pair in reversed(pw) for v in pair)
    return torch.nn.functional.pad(x, flat)

kernel_name = 'standalone__paged_block_table_kv_pagedattention__prompt'

def setup_inputs():

    _w = (lambda a: (lambda t: t.to(torch.bfloat16) if t.is_floating_point() else t)(torch.as_tensor(a)))
    B, Hq, Hkv, Sq, Skv, D = 1, 32, 16, 2048, 2048, 128
    bs = 16
    nbps = max(1, Skv // bs)
    num_phys = B * nbps + 4
    bt = torch.randperm(num_phys)[: B * nbps].reshape(B, nbps).to(torch.int64)
    cl = (nbps * bs - (torch.arange(1, B + 1, dtype=torch.int64) * 2654435761) % max(1, nbps * bs // 2)).to(torch.int64)
    return {
        "q": _w((lambda *s: torch.randn(*s, dtype=torch.bfloat16) * 0.8)(B, Hq, Sq, D)),
        "k_cache": _w((lambda *s: torch.randn(*s, dtype=torch.bfloat16) * 0.8)(num_phys, bs, Hkv, D)),
        "v_cache": _w((lambda *s: torch.randn(*s, dtype=torch.bfloat16) * 0.05)(num_phys, bs, Hkv, D)),
        "block_table": _w(bt),
        "context_lens": _w(cl),
    }

def reference(q, k_cache, v_cache, block_table, context_lens):
    B, Hq, Sq, D = q.shape
    bs = k_cache.shape[1]
    Hkv = k_cache.shape[2]
    nbps = block_table.shape[1]
    Skv = nbps * bs
    bt = block_table.reshape(-1)
    k = (lambda x, *d: x.permute(*d))(k_cache[bt].reshape(B, Skv, Hkv, D), 0, 2, 1, 3)
    v = (lambda x, *d: x.permute(*d))(v_cache[bt].reshape(B, Skv, Hkv, D), 0, 2, 1, 3)
    g = Hq // Hkv
    qg = q.reshape(B, Hkv, g, Sq, D)
    scores = torch.einsum("bhgqd,bhkd->bhgqk", qg, k) * (D ** -0.5)
    pos = torch.arange(Skv)
    msk = pos[None, :] < context_lens[:, None]
    scores = torch.where(msk[:, None, None, None, :], scores, -1e9)
    p = _softmax(scores, axis=-1)
    out = torch.einsum("bhgqk,bhkd->bhgqd", p, v)
    return out.reshape(B, Hq, Sq, D)
```

```python
import re

REG = re.compile(r'^(-?)(v|a|s)(?:\[(\d+):(\d+)\]|(\d+))$')

def regs(tok):
    tok = tok.strip()
    m = REG.match(tok)
    if m:
        k = m.group(2)
        if m.group(3) is not None:
            return [(k, i) for i in range(int(m.group(3)), int(m.group(4)) + 1)]
        return [(k, int(m.group(5)))]
    if tok in ('vcc',): return [('s', 'vcc')]
    if tok in ('m0',): return [('s', 'm0')]
    if tok in ('exec',): return [('s', 'exec')]
    return []

TRANS = ('v_exp_f32', 'v_rcp_f32', 'v_log_f32', 'v_rsq_f32', 'v_sqrt_f32')

class Ins:
    def __init__(self, text):
        self.text = text
        code = text.split(';')[0].strip()
        self.tag = text.split(';', 1)[1].strip() if ';' in text else ''
        self.label = None
        self.mn = ''
        self.r = set(); self.w = set()
        self.srcC = set(); self.srcAB = set()
        self.cls = 'none'
        self.states = 0
        if not code: return
        if code.endswith(':'):
            self.label = code[:-1]; return
        if code.startswith('.'):
            return
        parts = code.split(None, 1)
        mn = parts[0]; self.mn = mn
        ops = []
        if len(parts) > 1:
            ops = [o.strip() for o in parts[1].split(',')]
            last = ops[-1].split()
            self.mods = last[1:]
            ops[-1] = last[0] if last else ''
        else:
            self.mods = []
        self.ops = ops
        self.states = 1
        R = lambda i: set(regs(ops[i])) if i < len(ops) else set()
        if mn.startswith('v_mfma'):
            self.cls = 'mfma'; self.w = R(0); self.srcAB = R(1) | R(2); self.srcC = R(3); self.r = self.srcAB | self.srcC
        elif mn.startswith('v_smfmac'):
            self.cls = 'mfma'; self.w = R(0); self.srcAB = R(1) | R(2) | R(3); self.srcC = R(0); self.r = self.srcAB | self.srcC
        elif mn.startswith('ds_read'):
            self.cls = 'ds'; self.w = R(0); self.r = R(1)
        elif mn.startswith('ds_write'):
            self.cls = 'ds'; self.r = R(0) | R(1)
        elif mn.startswith('buffer_load'):
            self.cls = 'vmem'
            if 'lds' in self.mods:
                self.r = R(0) | R(1) | R(2) | {('s', 'm0')}; self.lds = True
            else:
                self.w = R(0); self.r = R(1) | R(2) | R(3)
        elif mn.startswith('global_load'):
            self.cls = 'vmem'; self.w = R(0); self.r = R(1)
        elif mn.startswith('buffer_store'):
            self.cls = 'vmem'; self.r = R(0) | R(1) | R(2) | R(3); self.store_data = R(0)
        elif mn.startswith('s_load') or mn.startswith('s_memtime') or mn.startswith('s_memrealtime'):
            self.cls = 'smem'; self.w = R(0); self.r = R(1)
        elif mn == 's_nop':
            self.cls = 'nop'; self.states = int(ops[0], 0) + 1
        elif mn == 's_waitcnt':
            self.cls = 'wait'
            s = parts[1]
            m = re.search(r'vmcnt\((\d+)\)', s); self.vm = int(m.group(1)) if m else None
            m = re.search(r'lgkmcnt\((\d+)\)', s); self.lgkm = int(m.group(1)) if m else None
        elif mn == 's_barrier': self.cls = 'bar'
        elif mn == 's_endpgm': self.cls = 'end'
        elif mn.startswith('s_cbranch') or mn == 's_branch':
            self.cls = 'br'; self.target = ops[0]
        elif mn.startswith(('s_cmp', 's_bitcmp')):
            self.cls = 'salu'; self.r = R(0) | R(1); self.w = {('s', 'scc')}
        elif mn.startswith('s_setprio'):
            self.cls = 'salu'
        elif mn.startswith('s_'):
            self.cls = 'salu'; self.w = R(0)
            for i in range(1, len(ops)): self.r |= R(i)
            if not mn.startswith(('s_mov', 's_mul', 's_cselect', 's_movk')): self.w = self.w | {('s', 'scc')}
            if mn.startswith(('s_cselect', 's_addc')): self.r = self.r | {('s', 'scc')}
            if 'saveexec' in mn: self.w = self.w | {('s', 'exec')}
        elif mn.startswith('v_'):
            self.cls = 'trans' if mn.replace('_e32', '').replace('_e64', '') in TRANS else 'valu'
            self.w = R(0)
            for i in range(1, len(ops)): self.r |= R(i)
            if mn.startswith(('v_permlane16_swap', 'v_permlane32_swap')):
                self.w = R(0) | R(1); self.r = R(0) | R(1)
            if mn.startswith(('v_fmac', 'v_writelane')): self.r |= R(0)
            if mn.startswith(('v_add_co', 'v_sub_co', 'v_addc_co')): self.w = R(0) | R(1)
        else:
            raise ValueError('unknown instr ' + text)

    def isvalu(self): return self.cls in ('valu', 'trans')

def parse(lines):
    return [Ins(l) for l in lines]

def vreg(s): return {x for x in s if x[0] in 'va'}
def sreg(s): return {x for x in s if x[0] == 's'}

def need(p, c):
    n = 0
    if p.cls == 'mfma':
        passes = 8 if '32x32' in p.mn else 4
        raw = {4: 8, 8: 12}[passes]
        if c.cls == 'mfma':
            if p.w & c.srcAB: n = max(n, raw)
            if p.w & c.srcC and p.w != c.srcC: n = max(n, {4: 6, 8: 10}[passes])
            if (p.w & c.w) and p.w != c.srcC: n = max(n, {4: 6, 8: 10}[passes])
        elif c.isvalu() or c.cls in ('ds', 'vmem'):
            if p.w & (c.r | c.w): n = max(n, raw)
        if c.isvalu() and (p.srcC & c.w): n = max(n, {4: 3, 8: 7}[passes])
    if p.isvalu():
        if c.cls == 'mfma' and (vreg(p.w) & c.r): n = max(n, 2)
        if p.cls == 'trans' and c.cls == 'valu' and (p.w & c.r): n = max(n, 1)
        if c.mn.startswith('v_permlane') and (vreg(p.w) & c.r): n = max(n, 2)
        if c.mn.startswith(('v_readlane', 'v_readfirstlane')) and (vreg(p.w) & c.r): n = max(n, 1)
        if c.cls == 'vmem' and (sreg(p.w) & c.r): n = max(n, 5)
        if c.isvalu() and (sreg(p.w) & c.r):
            n = max(n, 4 if c.mn.startswith(('v_readlane', 'v_writelane')) else 2)
        if c.cls in ('salu', 'br') and sreg(p.w) and (sreg(p.w) & c.r): n = max(n, 1)
        if ('s', 'exec') in p.w and c.cls == 'mfma': n = max(n, 4)
    if p.cls == 'salu' and ('s', 'm0') in p.w and c.cls == 'vmem' and ('s', 'm0') in c.r: n = max(n, 1)
    if p.mn.startswith('buffer_store_dwordx4') or p.mn.startswith('buffer_store_dwordx3'):
        if p.store_data & c.w: n = max(n, 2 if c.isvalu() else 1)
    return n

MAXW = 12
def succ(ins, labels, i):
    x = ins[i]
    if x.cls == 'end': return []
    if x.cls == 'br':
        t = labels[x.target]
        if x.target.startswith('L_pad') or (x.target == 'L_ret' and x.mn != 's_branch'): return [i + 1]
        return [t] if x.mn == 's_branch' else [i + 1, t]
    return [i + 1] if i + 1 < len(ins) else []

def hazards(ins):
    labels = {x.label: i for i, x in enumerate(ins) if x.label}
    out = []
    for i, p in enumerate(ins):
        if p.cls in ('none', 'nop', 'wait', 'bar', 'end', 'br', 'ds', 'smem'): continue
        seen = set()
        stack = [(j, 0) for j in succ(ins, labels, i)]
        while stack:
            j, d = stack.pop()
            if d >= MAXW or (j, d) in seen: continue
            seen.add((j, d))
            c = ins[j]
            if c.states:
                n = need(p, c)
                if n > d: out.append((i, j, n, d))
            for k in succ(ins, labels, j): stack.append((k, d + c.states))
    return out

def fix_hazards(lines, verbose=True, name=''):
    lines = list(lines); total = 0
    while True:
        ins = parse(lines)
        hz = hazards(ins)
        if not hz: return lines, total
        i, j, n, d = min(hz, key=lambda h: h[1])
        k = max(h[2] - h[3] for h in hz if h[1] == j)
        if verbose: print(f'[hazard {name}] +{k} before "{lines[j].strip()}" (producer "{lines[i].strip()}")')
        lines.insert(j, f's_nop {k-1}')
        total += k
```

```python
import sys
from asmcheck import parse, hazards, fix_hazards

NAME = 'standalone__paged_block_table_kv_pagedattention__prompt_kernel'
OPT = dict(delta=9, stamp=0, lat=8, forceslow=0, skipdma=1)
for a in sys.argv[2:]:
    k, v = a.split('='); OPT[k] = int(v, 0)

S0, P0, KA, VA, BT, DK, DV, IDX, OV, MK, T0, O0 = 0, 64, 96, 100, 108, 112, 113, 114, 115, 116, 120, 128
aQ, aK, aV, aL, aONE = 0, 64, 128, 192, 208
sW, sCL, sN, sIT, sLN = 3, 36, 37, 38, 39
SETS = (56, 60)
sMK, sMV, sC, sC2, sNKB, sVOFF, sFORCE, sKB, sVB, sCLT = 64, 65, 66, 67, 68, 69, 70, 71, 72, 73
sQ1, sQ2, sQ3 = 74, 75, 76
sT = 77
sST = 84
KBYTES = 132 * 65536
LAT = OPT['lat']
NEG = 0xf149f2ca

def v(b, n=1): return f'v{b}' if n == 1 else f'v[{b}:{b+n-1}]'
def a(b, n=1): return f'a{b}' if n == 1 else f'a[{b}:{b+n-1}]'
def s(b, n=1): return f's{b}' if n == 1 else f's[{b}:{b+n-1}]'

def qk(q, kb, ks, mask=False):
    D = v(S0 + 16*q + 4*kb, 4)
    C = D if ks else (v(MK, 4) if mask else '0')
    return f'v_mfma_f32_16x16x32_bf16 {D}, {a(aK+16*kb+4*ks,4)}, {a(aQ+16*q+4*ks,4)}, {C}'
def pv(q, db, ks, vbase=None):
    D = v(O0 + 32*q + 4*db, 4)
    A = a(aV + (2*db+ks)*4, 4) if vbase is None else a(vbase + 4*db, 4)
    return f'v_mfma_f32_16x16x32_bf16 {D}, {A}, {v(P0+8*q+4*ks,4)}, {D}'
def sm(q):
    return f'v_smfmac_f32_16x16x64_bf16 {a(aL+4*q,4)}, {a(aONE,4)}, {v(P0+8*q,8)}, {v(IDX)}'
def qkg(q, nkb=4, mask=False): return [qk(q, kb, ks, mask and kb == nkb-1) for kb in range(nkb) for ks in range(4)]
def pvg(q, nks=2, vbase=None): return [pv(q, db, ks, vbase) for db in range(8) for ks in range(nks)] + [sm(q)]

def i_exp(q, n): return f'v_exp_f32 {v(S0+16*q+n)}, {v(S0+16*q+n)}'
def i_cvt(q, i): return f'v_cvt_pk_bf16_f32 {v(P0+8*q+i)}, {v(S0+16*q+2*i)}, {v(S0+16*q+2*i+1)}'
def i_kread(kb, ks, slot, tile): return f'ds_read_b128 {a(aK+16*kb+4*ks,4)}, {v(KA+ks)} offset:{slot*16384+kb*1024}'
def i_vread(db, ks, t, slot, tile, vbase=None):
    d = (aV + (2*db+ks)*4 if vbase is None else vbase + 4*db) + 2*t
    return f'ds_read_b64_tr_b16 {a(d,2)}, {v(VA+db)} offset:{slot*16384+(2*ks+t)*1024}'
def i_dma(isv, i, soff, tile):
    return f'buffer_load_dwordx4 {v(DV if isv else DK)}, {s(12 if isv else 8,4)}, {s(soff+i)} offen offset:{i*1024} lds'
def i_m0(isv, slot): return f's_add_u32 m0, {s(sMV if isv else sMK)}, {slot*16384}'

class Op:
    def __init__(self, key, cls, rel, dl, text, deps=(), fifo=None):
        self.key, self.cls, self.rel, self.dl, self.text, self.deps, self.fifo = key, cls, rel, dl, text, list(deps), fifo
        self.gap = None
class Gap:
    def __init__(self): self.sc, self.mem, self.valu, self.post = [], [], [], []; self.block = None

def schedule(ngaps, ops, gaps=None, overflow=False, g0=0):
    gaps = gaps or [Gap() for _ in range(ngaps)]
    byk = {o.key: o for o in ops}
    todo = list(ops)
    def ready(o, g):
        if o.rel > g: return False
        for d in o.deps:
            p = byk.get(d)
            if p is not None and (p.gap is None or p.gap >= g): return False
        if o.fifo is not None:
            p = byk[o.fifo]
            if p.gap is None: return False
            if o.cls == 'D' and p.gap >= g: return False
        return True
    def put(o, g):
        o.gap = g; todo.remove(o)
        (gaps[g].mem if o.cls in 'DRT' else gaps[g].valu).append(o)
    for g in range(g0, ngaps):
        if gaps[g].block != 'all':
            cand = sorted((o for o in todo if ready(o, g)), key=lambda o: o.dl)
            if gaps[g].block == 'half': cand = [o for o in cand if o.cls == 'H'][:1]
            if cand:
                top = cand[0]
                halves = [o for o in cand if o.cls in 'RTH']
                full = [o for o in cand if o.cls in 'ED']
                if top.cls in 'RTH' and len(halves) == 1 and full and top.dl - g > 6 and top.fifo is None: top = full[0]
                put(top, g)
                if top.cls in 'RTH' and gaps[g].block != 'half':
                    cand2 = sorted((o for o in todo if o.cls in 'RTH' and ready(o, g)), key=lambda o: o.dl)
                    cand2 = [o for o in cand2 if not (o.cls == 'R' and top.cls == 'R')]
                    if cand2:
                        pick = cand2[0]
                        if top.cls in 'RT' and pick.cls in 'RT' and pick.dl - g > 8:
                            h = [o for o in cand2 if o.cls == 'H']
                            if h: pick = h[0]
                        put(pick, g)
        late = [o for o in todo if o.dl <= g]
        if late:
            if not overflow: raise RuntimeError(f'deadline miss at gap {g}: {[o.key for o in late]}')
            def force(o):
                if o.gap is not None: return
                for d in o.deps + ([o.fifo] if o.fifo else []):
                    if d in byk: force(byk[d])
                assert o.rel <= g, (o.key, o.rel, g)
                o.gap = g; todo.remove(o); gaps[g].post.append(o.text)
            for o in sorted(late, key=lambda o: ({'R': 0, 'T': 0, 'D': 0, 'E': 1, 'H': 2}[o.cls], o.dl)): force(o)
    return gaps, todo

def emit(mf, gaps, off=0):
    out = []
    for i, m in enumerate(mf):
        g = gaps[off + i]
        out.append(m)
        out += g.sc
        out += [o.text for o in g.mem] + [o.text for o in g.valu] + g.post
    return out

def softmax_ops(tile, q, qkstart, pvstart, nkb=4, prel=0, fixed=None):
    ops = []
    n = 4 * nkb
    for e in range(n):
        kb = e // 4
        if fixed is not None: ops.append(Op(('e', tile, q, e), 'E', qkstart + fixed + 2*e, qkstart + fixed + 2*e, i_exp(q, e)))
        else: ops.append(Op(('e', tile, q, e), 'E', qkstart + 4*kb + 3 + 5, pvstart - 4 - 2*(n - 1 - e), i_exp(q, e)))
    for i in range(2 * nkb):
        ops.append(Op(('c', tile, q, i), 'H', prel, pvstart - 3 - (2*nkb - 1 - i), i_cvt(q, i),
                      deps=[('e', tile, q, 2*i), ('e', tile, q, 2*i+1)]))
    for i in range(2 * nkb, 8):
        ops.append(Op(('z', tile, q, i), 'H', prel, pvstart - 3, f'v_mov_b32 {v(P0+8*q+i)}, 0'))
    return ops

NG = 132
LOOP_MF = qkg(0) + pvg(2) + qkg(1) + pvg(3) + qkg(2) + pvg(0) + qkg(3) + pvg(1)
assert len(LOOP_MF) == NG
BARG = 47
DMAG = [10, 14, 18, 22, 26, 30, 34, 38]

def steady():
    NT = 6
    ops = []
    gaps = [Gap() for _ in range(NG * (NT + 1))]
    for j in range(NT):
        b = NG * j
        for q in range(4):
            pvs = b + 82 + 33*q
            ops += softmax_ops(j, q, b + 33*q, pvs, prel=pvs - NG + 17, fixed=OPT['delta'])
        for db in range(8):
            for ks in range(2):
                for t in range(2):
                    f = 2*db + ks
                    ops.append(Op(('v', j, db, ks, t), 'T', max(b + 49 + f + 1, b + BARG + 1), b + 82 + f - LAT - (1 - t), ('v', db, ks, t)))
        for kb in range(4):
            for ks in range(4):
                f = 4*kb + ks
                ops.append(Op(('k', j, kb, ks), 'R', b + 99 + f + 1, min(b + NG - 2 - (15 - f), b + NG + f - LAT), ('k', kb, ks),
                              deps=[('k', j, (f-1)//4, (f-1)%4)] if f else []))
        for i in range(4):
            ops.append(Op(('rl', j, i), 'H', b, b + 20 + i, ('rl', i)))
        for i in range(8):
            ops.append(Op(('d', j, i), 'D', b + DMAG[i], b + DMAG[i], ('d', i),
                          deps=[('rl', j, x) for x in range(4)] if i >= 4 else []))
        gaps[b + BARG].block = 'all'
        gaps[b + NG - 1].block = 'half'
    schedule(NG * NT, ops, gaps, overflow=False) if False else None
    schedule(NG * (NT + 1), ops, gaps)
    def pattern(j):
        return [[(o.key[0], o.key[1] - j) + o.key[2:] for o in gaps[NG*j + g].mem + gaps[NG*j + g].valu] for g in range(NG)]
    p3, p4 = pattern(3), pattern(4)
    assert p3 == p4, 'no steady state'
    return p3
PAT = steady()
LEFT = {k for g in PAT for k in g if k[1] == -1}
assert all(k[0] in 'ec' for k in LEFT), LEFT

def key_text(k, j4, tile):
    kind = k[0]
    if kind == 'e': return i_exp(k[2], k[3])
    if kind == 'c': return i_cvt(k[2], k[3])
    if kind == 'v': return i_vread(k[2], k[3], k[4], j4, tile)
    if kind == 'k': return i_kread(k[2], k[3], (j4 + 1) % 4, tile + 1)
    if kind == 'rl': return f'v_readlane_b32 {s(SETS[(j4+3)%2] + k[2])}, {v(BT+k[2])}, {s(sLN)}'
    if kind == 'd':
        i = k[2]
        if i < 4: return i_dma(1, i, SETS[j4 % 2], tile + 2)
        return i_dma(0, i - 4, SETS[(j4 + 3) % 2], tile + 3)
    raise KeyError(k)

class Txt:
    def __init__(self, t): self.text = t

def add_lgkm_waits(lines, pre_ds=(), lead=None):
    ins = parse(lines)
    q = [(set(r), -age) for r, age in pre_ds]
    out = []; gap = -1
    lastm = None
    q_at_lastm = None
    for x in ins:
        if x.cls == 'mfma':
            needed = [i for i, (r, g) in enumerate(q) if r & x.r]
            if needed:
                k = max(needed)
                if lastm is not None and k < q_at_lastm:
                    visible = q_at_lastm
                    while k + 1 < visible and q[k + 1][1] <= gap - LAT: k += 1
                    n = min(15, visible - 1 - k)
                    out.insert(lastm, f's_waitcnt lgkmcnt({n})')
                    k = visible - 1 - n
                else:
                    n = min(15, len(q) - 1 - k)
                    out.append(f's_waitcnt lgkmcnt({n})')
                    k = len(q) - 1 - n
                q = q[k + 1:]
            gap += 1
            out.append(x.text); lastm = len(out); q_at_lastm = len(q)
        else:
            if x.cls == 'ds': q.append((set(x.w), gap))
            if x.cls == 'wait' and x.lgkm is not None:
                q = q[max(0, len(q) - x.lgkm):] if x.lgkm else []
                if q_at_lastm is not None: q_at_lastm = min(q_at_lastm, len(q))
            out.append(x.text)
    return out, [(r, gap - g) for r, g in q]

def body(j4, tile, exit_label, last):
    gaps = [Gap() for _ in range(NG)]
    for g in range(NG):
        for k in PAT[g]:
            t = Txt(key_text(k, j4, tile))
            (gaps[g].mem if k[0] in 'vkd' else gaps[g].valu).append(t)
    gd = {k[2]: g for g in range(NG) for k in PAT[g] if k[0] == 'd'}
    grl = max(g for g in range(NG) for k in PAT[g] if k[0] == 'rl')
    gaps[gd[0] - 2].sc.append(i_m0(1, (j4 + 2) % 4))
    gaps[gd[4] - 2].sc.append(i_m0(0, (j4 + 3) % 4))
    if OPT['skipdma']:
        gaps[1].sc.append(f's_cmp_le_u32 {s(sLN)}, {s(sN)}')
        gaps[2].sc.append(f's_cselect_b32 s14, {s(sVB)}, 0')
        gaps[3].sc.append(f's_cmp_lt_u32 {s(sLN)}, {s(sN)}')
        gaps[4].sc.append(f's_cselect_b32 s10, {s(sKB)}, 0')
    gaps[max(grl + 1, 50)].sc.append(f's_add_u32 {s(sLN)}, {s(sLN)}, 1')
    gaps[BARG - 1].sc.append('s_waitcnt vmcnt(16)')
    gaps[BARG].sc.append('s_barrier')
    gaps[NG - 2].sc.append(f's_sub_u32 {s(sIT)}, {s(sIT)}, 1')
    lines = emit(LOOP_MF, gaps)
    return lines

def loop_code():
    l0 = body(1, 1, None, False)
    _, pend = add_lgkm_waits(l0)
    out = ['.p2align 6', 'L_loop:']
    for u in range(4):
        j4 = (u + 1) % 4
        l, pend2 = add_lgkm_waits(body(j4, u + 1, None, False), pend)
        assert [x[0] for x in pend2] == [x[0] for x in pend]
        out += [f'; ---- body tile%4 == {j4}'] + l
        if u < 3: out.append('s_cbranch_scc1 L_tail')
        else: out += ['s_cbranch_scc0 L_loop']
    return out, pend

def epi_list(q, first, pk=False):
    t = T0 + 2 * (q & 1)
    o = O0 + 32*q
    L = [('H', f'v_accvgpr_read_b32 {v(t)}, {a(aL+4*q)}'),
         ('H', f'v_accvgpr_read_b32 {v(t+1)}, {a(aL+4*q+1)}'),
         ('H', f'v_add_f32 {v(t)}, {v(t)}, {v(t+1)}'),
         ('H', f'v_rcp_f32 {v(t+1)}, {v(t)}'),
         ('H', f'v_subrev_u32 {v(t)}, 0x2b800000, {v(t)}')]
    L.append(('H', f'v_mov_b32 {v(T0+4)}, {v(t)}' if first else f'v_max_u32 {v(T0+4)}, {v(T0+4)}, {v(t)}'))
    def muls(u): return [('M', (o + 8*u + i, t + 1)) for i in range(8)]
    def cvts(u): return [('H', f'v_cvt_pk_bf16_f32 {v(o+8*u+i)}, {v(o+8*u+2*i)}, {v(o+8*u+2*i+1)}') for i in range(4)]
    def swaps(u): return [('H', f'v_permlane16_swap_b32 {v(o+8*u+i)}, {v(o+8*u+2+i)}') for i in range(2)]
    def store(u):
        so = '0' if q == 0 else s(sQ1 + q - 1)
        return [('D', f'buffer_store_dwordx4 {v(o+8*u,4)}, {v(OV)}, s[16:19], {so} offen offset:{64*u}')]
    L += muls(0) + cvts(0) + muls(1) + swaps(0) + cvts(1) + store(0) + muls(2) + swaps(1) + cvts(2) + store(1) \
       + muls(3) + swaps(2) + cvts(3) + store(2) + [('H', 's_nop 0')] + swaps(3) + store(3)
    return L
def mul_text(x): return f'v_mul_f32 {v(x[0])}, {v(x[1])}, {v(x[0])}'

def tail(nkb, pend):
    nks = 1 if nkb <= 2 else 2
    vbase = aK + 32 if nkb <= 2 else None
    G = {}
    if nkb <= 2:
        order = [('qk', 0), ('qk', 1), ('pvp', 2), ('qk', 2), ('pv', 0), ('pvp', 3), ('pv', 1), ('qk', 3), ('pv', 2), ('pv', 3)]
    else:
        order = [('qk', 0), ('pvp', 2), ('qk', 1), ('pvp', 3), ('qk', 2), ('pv', 0), ('qk', 3), ('pv', 1), ('pv', 2), ('pv', 3)]
    mf = []
    for kind, q in order:
        G[(kind, q)] = len(mf)
        mf += qkg(q, nkb, True) if kind == 'qk' else (pvg(q) if kind == 'pvp' else pvg(q, nks, vbase))
    n = len(mf)
    ops = []
    for q in (2, 3):
        pvs = G[('pvp', q)]
        for o in softmax_ops(-1, q, -100, pvs, prel=0):
            if (o.key[0], -1) + o.key[2:] in LEFT:
                o.rel = 0
                o.dl = max(o.dl, 0)
                o.dl = min(o.dl, G[('qk', q)] - 1) if G[('qk', q)] > 0 else o.dl
                ops.append(o)
    for q in range(4):
        prel = G[('pvp', q)] + 17 if q >= 2 else 0
        so = softmax_ops(0, q, G[('qk', q)], G[('pv', q)], nkb, prel)
        for o in so: o.dl = max(o.dl, o.rel, min(G[('pv', q)] - 1, o.rel + 1) if o.cls == 'E' else min(G[('pv', q)] - 1, G[('qk', q)] + 4*nkb + 4))
        ops += so
    for db in range(8):
        ops.append(Op(('va', db), 'H', 0, 3 + db // 2, f'v_add_u32 {v(VA+db)}, {s(sVOFF)}, {v(VA+db)}'))
    for db in range(8):
        for ks in range(nks):
            for t in range(2):
                f = nks*db + ks
                rel = 2 if vbase else G[('pvp', 3)] + 2*db + ks + 1
                ops.append(Op(('v', db, ks, t), 'T', rel, G[('pv', 0)] + f - LAT - (1 - t), i_vread(db, ks, t, 0, 'T', vbase), deps=[('va', db)]))
    prev = None; epi = []
    for q in range(4):
        rel = G[('pv', q)] + 8*nks + 5
        for i, (c, t) in enumerate(epi_list(q, q == 0)):
            o = Op(('ep', q, i), 'D' if c == 'D' else 'H', rel, 10000 + 100*q + i, mul_text(t) if c == 'M' else t, fifo=prev)
            o.raw = (c, t); prev = o.key; epi.append(o)
    ops += epi
    gaps = [Gap() for _ in range(n)]
    gaps[0].sc.append('s_waitcnt vmcnt(8)')
    gaps[1].sc.append('s_barrier'); gaps[1].block = 'all'
    gaps, todo = schedule(n, ops, gaps, overflow=True)
    lines = emit(mf, gaps)
    assert all(o.key[0] == 'ep' for o in todo), [o.key for o in todo]
    i = 0
    while i < len(todo):
        c, t = todo[i].raw
        if c == 'M' and i + 1 < len(todo) and todo[i+1].raw[0] == 'M' and t[0] % 2 == 0 and todo[i+1].raw[1][0] == t[0] + 1:
            r = t[1]
            lines.append(f'v_pk_mul_f32 {v(t[0],2)}, {v(t[0],2)}, {v(r-1,2)} op_sel:[0,1] op_sel_hi:[1,1]'); i += 2
        else:
            lines.append(todo[i].text); i += 1
    lines, _ = add_lgkm_waits(lines, pend)
    return lines

def scale_q(q):
    out = []
    for h in range(0, 16, 4):
        for i in range(4):
            x = S0 + 16*q + h + i; t = T0 + 2*i
            out += [f'v_lshlrev_b32 {v(t)}, 16, {v(x)}', f'v_and_b32 {v(t+1)}, 0xffff0000, {v(x)}']
        for i in range(4):
            t = T0 + 2*i
            out.append(f'v_pk_mul_f32 {v(t,2)}, {v(t,2)}, {s(sC,2)}')
        for i in range(4):
            x = S0 + 16*q + h + i; t = T0 + 2*i
            out.append(f'v_cvt_pk_bf16_f32 {v(x)}, {v(t)}, {v(t+1)}')
        for i in range(4):
            x = S0 + 16*q + h + i
            out.append(f'v_accvgpr_write_b32 {a(aQ+16*q+h+i)}, {v(x)}')
    return out
def qload(q): return [f'buffer_load_dwordx4 {v(S0+16*q+4*ks,4)}, {v(T0+7)}, s[4:7], {"0" if q == 0 else s(sQ1+q-1)} offen offset:{64*ks} ; ld Q{q}' for ks in range(4)]
def dma4(isv, tile):
    soff = 40 + 4*tile if tile < 3 else SETS[1]
    return [i_m0(isv, tile), 's_nop 0'] + [i_dma(isv, i, soff, tile) for i in range(4)]
def btprep(tile):
    out = []
    for i in range(4):
        src = 40 + 4*tile + i; dst = src if tile < 3 else SETS[1] + i
        out.append(f's_lshl_b32 {s(dst)}, {s(src)}, 16')
        if i < 3: out.append(f's_or_b32 {s(dst)}, {s(dst)}, {(3-i)*1024}')
    return out
def stamp(i): return [f's_memtime {s(sST+2*i,2)}'] if OPT['stamp'] else []

def resolve_waitvm(lines):
    out = []; vm = []
    for l in lines:
        if l.startswith('WAITVM'):
            tags = l.split(None, 1)[1].split('|')
            last = max(i for i, t in enumerate(vm) if t in tags)
            out.append(f's_waitcnt vmcnt({len(vm) - 1 - last}) ; {tags}')
        else:
            if l.startswith('buffer_'): vm.append(l.split(';')[1].strip() if ';' in l else '')
            out.append(l)
    return out

def prologue():
    L = []
    A = L.append
    L += ['s_cmp_ge_u32 s2, 256', 's_cbranch_scc1 L_end',
          's_load_dwordx8 s[24:31], s[0:1], 0', 's_load_dwordx4 s[32:35], s[0:1], 32']
    L += stamp(0)
    t = T0
    L += [f'v_lshrrev_b32 {v(t)}, 6, v0',
          f'v_and_b32 {v(t+1)}, 63, v0',
          f'v_readfirstlane_b32 {s(sW)}, {v(t)}',
          f'v_and_b32 {v(t+2)}, 15, v0',
          f'v_bfe_u32 {v(t+3)}, v0, 4, 2',
          f's_and_b32 {s(sT)}, s2, 7', f's_lshr_b32 {s(sT+1)}, s2, 3', f's_lshr_b32 {s(sT+2)}, {s(sT+1)}, 4',
          f's_lshl_b32 {s(sT)}, {s(sT)}, 1', f's_add_u32 {s(sT)}, {s(sT)}, {s(sT+2)}',
          f's_and_b32 {s(sT+1)}, {s(sT+1)}, 15', f's_lshl_b32 {s(sT+2)}, {s(sT)}, 4',
          f's_add_u32 {s(sT+1)}, {s(sT+1)}, {s(sT+2)}', f's_lshl_b32 {s(sT+1)}, {s(sT+1)}, 16',
          f's_lshl_b32 {s(sT)}, {s(sT)}, 8',
          f's_movk_i32 {s(sQ1)}, 0x1000', f's_movk_i32 {s(sQ2)}, 0x2000', f's_movk_i32 {s(sQ3)}, 0x3000',
          f'v_lshlrev_b32 {v(t+4)}, 14, {v(t)}', f'v_lshl_add_u32 {v(t+4)}, {v(t+2)}, 8, {v(t+4)}',
          f'v_lshl_add_u32 {v(t+7)}, {v(t+3)}, 4, {v(t+4)}',
          f'v_and_b32 {v(t+5)}, 1, {v(t+3)}', f'v_lshl_add_u32 {v(t+4)}, {v(t+5)}, 5, {v(t+4)}',
          f'v_lshrrev_b32 {v(t+5)}, 1, {v(t+3)}', f'v_lshl_add_u32 {v(OV)}, {v(t+5)}, 4, {v(t+4)}',
          f'v_lshl_add_u32 {v(t+4)}, {v(t)}, 2, {v(t+3)}',
          f'v_xor_b32 {v(t+5)}, {v(t+2)}, {v(t+4)}', f'v_lshlrev_b32 {v(t+5)}, 4, {v(t+5)}',
          f'v_lshl_add_u32 {v(DK)}, {v(t+4)}, 12, {v(t+5)}',
          f'v_and_b32 {v(t+5)}, 7, {v(t+4)}', f'v_lshlrev_b32 {v(t+5)}, 1, {v(t+5)}',
          f'v_xor_b32 {v(t+5)}, {v(t+2)}, {v(t+5)}', f'v_lshlrev_b32 {v(t+5)}, 4, {v(t+5)}',
          f'v_lshl_add_u32 {v(DV)}, {v(t+4)}, 12, {v(t+5)}',
          f'v_lshlrev_b32 {v(t+6)}, 4, {v(t+1)}',
          f's_lshl_b32 {s(sMK)}, {s(sW)}, 12', f's_add_u32 {s(sMV)}, {s(sMK)}, 0x10000',
          's_mov_b32 s6, 0x10000', 's_mov_b32 s7, 0x20000', 's_mov_b32 s11, 0x20000', 's_mov_b32 s15, 0x20000',
          's_mov_b32 s18, 0x10000', 's_mov_b32 s19, 0x20000', 's_movk_i32 s22, 0x200', 's_mov_b32 s23, 0x20000',
          f's_sub_u32 {s(sKB)}, {KBYTES+3072}, {s(sT)}', f's_mov_b32 {s(sVB)}, {s(sKB)}',
          f's_mov_b32 s10, {s(sKB)}', f's_mov_b32 s14, {s(sKB)}',
          's_waitcnt lgkmcnt(0)',
          f's_load_dword {s(sCL)}, s[32:33], 0', 's_load_dwordx16 s[40:55], s[30:31], 0',
          f's_add_u32 s4, s24, {s(sT+1)}', 's_addc_u32 s5, s25, 0',
          's_mov_b32 s20, s30', 's_mov_b32 s21, s31']
    L += qload(0)
    L += [f'buffer_load_dwordx4 {v(BT,4)}, {v(t+6)}, s[20:23], 0 offen',
          f's_add_u32 s8, s26, {s(sT)}', 's_addc_u32 s9, s27, 0', 's_sub_u32 s8, s8, 3072', 's_subb_u32 s9, s9, 0',
          f's_add_u32 s12, s28, {s(sT)}', 's_addc_u32 s13, s29, 0', 's_sub_u32 s12, s12, 3072', 's_subb_u32 s13, s13, 0',
          f's_add_u32 s16, s34, {s(sT+1)}', 's_addc_u32 s17, s35, 0']
    L += [f'v_lshrrev_b32 {v(t+4)}, 2, {v(t+2)}', f'v_lshlrev_b32 {v(t+4)}, 4, {v(t+4)}',
          f'v_and_b32 {v(t+5)}, 3, {v(t+2)}', f'v_add_u32 {v(t+4)}, {v(t+4)}, {v(t+5)}',
          f'v_lshlrev_b32 {v(t+4)}, 8, {v(t+4)}',
          f'v_xor_b32 {v(t+5)}, {v(t+3)}, {v(t+2)}']
    for ks in range(4):
        L += [f'v_xor_b32 {v(KA+ks)}, {4*ks}, {v(t+5)}', f'v_lshl_add_u32 {v(KA+ks)}, {v(KA+ks)}, 4, {v(t+4)}']
    L += [f'v_bfe_u32 {v(t+5)}, {v(t+1)}, 2, 2',
          f'v_lshl_add_u32 {v(t+4)}, {v(t+3)}, 4, {v(t+5)}',
          f'v_lshlrev_b32 {v(t+4)}, 8, {v(t+4)}',
          f'v_and_b32 {v(MK)}, 3, {v(t+1)}', f'v_lshl_add_u32 {v(t+4)}, {v(MK)}, 3, {v(t+4)}',
          f'v_add_u32 {v(t+4)}, 0x10000, {v(t+4)}',
          f'v_lshl_add_u32 {v(t+5)}, {v(t+3)}, 2, {v(t+5)}', f'v_and_b32 {v(t+5)}, 7, {v(t+5)}']
    for db in range(8):
        L += [f'v_xor_b32 {v(VA+db)}, {db}, {v(t+5)}', f'v_lshl_add_u32 {v(VA+db)}, {v(VA+db)}, 5, {v(t+4)}']
    L += [f'v_and_b32 {v(t+4)}, 1, {v(t+1)}', f'v_mov_b32 {v(t+5)}, 0xaaaaaaaa',
          f'v_mul_lo_u32 {v(t+4)}, {v(t+4)}, {v(t+5)}', f'v_or_b32 {v(IDX)}, 0x44444444, {v(t+4)}',
          f'v_mov_b32 {v(t+5)}, 0x3f803f80']
    L += [f'v_accvgpr_write_b32 {a(aONE+i)}, {v(t+5)}' for i in range(4)]
    L += ['s_waitcnt lgkmcnt(0)'] + stamp(1)
    L += btprep(0) + dma4(0, 0) + qload(1) + qload(2)
    L += [f's_mov_b32 {s(sC)}, 0x3e0293ee',
          f's_cmp_lt_i32 {s(sCL)}, 1', f's_cselect_b32 {s(sC)}, 0, {s(sC)}', f's_cselect_b32 {s(sCL)}, 0x800, {s(sCL)}',
          f's_mov_b32 {s(sC2)}, {s(sC)}',
          f's_min_u32 {s(sCLT)}, {s(sCL)}, 0x800',
          f's_cmp_lt_u32 {s(sCLT)}, {4096 if OPT["forceslow"] else 129}', f's_cselect_b32 {s(sFORCE)}, 1, 0',
          f's_max_u32 {s(sCL)}, {s(sCLT)}, 129',
          f's_add_u32 {s(sN)}, {s(sCL)}, 63', f's_lshr_b32 {s(sN)}, {s(sN)}, 6',
          f's_sub_u32 {s(sIT)}, {s(sN)}, 3',
          f's_sub_u32 {s(sT)}, {s(sN)}, 1', f's_and_b32 {s(sVOFF)}, {s(sT)}, 3', f's_lshl_b32 {s(sVOFF)}, {s(sVOFF)}, 14',
          f's_lshl_b32 {s(sT)}, {s(sT)}, 6', f's_sub_u32 {s(sT)}, {s(sCL)}, {s(sT)}',
          f's_add_u32 {s(sNKB)}, {s(sT)}, 15', f's_lshr_b32 {s(sNKB)}, {s(sNKB)}, 4',
          f's_sub_u32 {s(sT)}, {s(sT)}, 1', f's_and_b32 {s(sT)}, {s(sT)}, 15',
          f's_mov_b32 {s(sLN)}, 4']
    L += [f'v_lshlrev_b32 {v(t+4)}, 2, {v(t+3)}', f'v_mov_b32 {v(t+5)}, {NEG:#x}']
    for r in range(4):
        L += [f'v_add_u32 {v(t+6)}, {r}, {v(t+4)}', f'v_cmp_lt_u32 vcc, {s(sT)}, {v(t+6)}', 's_nop 1',
              f'v_cndmask_b32 {v(MK+r)}, 0, {v(t+5)}, vcc']
    L += btprep(1) + btprep(2) + btprep(3)
    L += [f'v_mov_b32 {v(O0+i)}, 0' for i in range(128)]
    L += [f'v_accvgpr_write_b32 {a(aL+i)}, 0' for i in range(16)]
    L += [f'v_mov_b32 {v(MK-0+0)}, {v(MK)}'][:0]
    L += [f'v_mov_b32 {v(P0+31)}, {v(T0+7)}']
    L += ['WAITVM ld Q0'] + stamp(2) + scale_q(0)
    L += [f'v_mov_b32 {v(T0+7)}, {v(P0+31)}']
    L += dma4(1, 0) + dma4(0, 1) + qload(3)
    L += ['WAITVM ld BT']
    for i in range(4):
        L.append(f'v_lshlrev_b32 {v(BT+i)}, 16, {v(BT+i)}')
        if i < 3: L.append(f'v_or_b32 {v(BT+i)}, {(3-i)*1024}, {v(BT+i)}')
    L += ['WAITVM dma K 0', 's_barrier'] + stamp(3)
    L += [i_kread(kb, ks, 0, 0) for kb in range(4) for ks in range(4)]
    order = [('qk', 0), ('qk', 1), ('qk', 2), ('pv', 0), ('qk', 3), ('pv', 1)]
    G = {}; mf = []
    for kind, q in order:
        G[(kind, q)] = len(mf); mf += qkg(q) if kind == 'qk' else pvg(q)
    n = len(mf)
    ops = []
    for q in range(4):
        if q < 2: pvs = G[('qk', q)] + 23
        elif q == 2: pvs = G[('qk', 3)] + 2
        else: pvs = n + 2
        for o in softmax_ops(0, q, G[('qk', q)], pvs):
            if (o.key[0], -1) + o.key[2:] in LEFT: continue
            o.dl = max(o.dl, o.rel if o.cls == 'E' else G[('qk', q)] + 4*(o.key[3]//2) + 8)
            o.dl = min(o.dl, n - 1)
            ops.append(o)
    for db in range(8):
        for ks in range(2):
            for tt in range(2):
                f = 2*db + ks
                ops.append(Op(('v', db, ks, tt), 'T', G[('qk', 2)] - 1 + 1, G[('pv', 0)] + f - LAT - (1 - tt), i_vread(db, ks, tt, 0, 0)))
    for kb in range(4):
        for ks in range(4):
            f = 4*kb + ks
            ops.append(Op(('k', kb, ks), 'R', G[('qk', 3)] + f + 1, min(n - 2 - (15 - f), n + f - LAT), i_kread(kb, ks, 1, 1),
                          deps=[('k', (f-1)//4, (f-1)%4)] if f else []))
    gaps = [Gap() for _ in range(n)]
    gaps, todo = schedule(n, ops, gaps, overflow=True)
    assert not todo
    gaps[G[('qk', 1)] - 1].post += dma4(1, 1) + dma4(0, 2) + ['WAITVM ld Q1'] + scale_q(1) + ['s_nop 0']
    gaps[G[('qk', 2)] - 1].post += dma4(1, 2) + dma4(0, 3) + ['WAITVM ld Q2'] + scale_q(2) + ['WAITVM dma V 0|dma K 1', 's_barrier']
    gaps[G[('qk', 3)] - 1].post += ['WAITVM ld Q3'] + stamp(4) + scale_q(3) + ['s_nop 0']
    L += emit(mf, gaps)
    L = resolve_waitvm(L)
    L, pend = add_lgkm_waits(L)
    return L, pend

def slow():
    t = T0
    L = ['L_slow:', 's_waitcnt vmcnt(0) lgkmcnt(0)']
    M, LS, KV, VD0, VD1 = KA, BT, DK, DV, IDX
    L += [f's_mov_b32 s10, {s(sKB)}', f's_mov_b32 s14, {s(sVB)}',
          f'v_mbcnt_lo_u32_b32 {v(t+1)}, -1, 0', f'v_mbcnt_hi_u32_b32 {v(t+1)}, -1, {v(t+1)}',
          f'v_and_b32 {v(t+2)}, 15, {v(t+1)}', f'v_lshrrev_b32 {v(t+3)}, 4, {v(t+1)}',
          f'v_lshlrev_b32 {v(t+4)}, 12, {v(t+2)}', f'v_lshl_add_u32 {v(KV)}, {v(t+3)}, 4, {v(t+4)}',
          f'v_add_u32 {v(KV)}, 3072, {v(KV)}',
          f'v_lshlrev_b32 {v(t+4)}, 1, {v(t+3)}', f'v_xor_b32 {v(t+4)}, {v(t+2)}, {v(t+4)}',
          f'v_lshlrev_b32 {v(t+4)}, 4, {v(t+4)}', f'v_lshl_add_u32 {v(VD0)}, {v(t+3)}, 12, {v(t+4)}',
          f'v_add_u32 {v(VD0)}, 3072, {v(VD0)}',
          f'v_xor_b32 {v(t+4)}, 0x80, {v(t+4)}', f'v_lshl_add_u32 {v(VD1)}, {v(t+3)}, 12, {v(t+4)}',
          f'v_add_u32 {v(VD1)}, {3072 + 16384}, {v(VD1)}',
          f's_lshl_b32 {s(sMV)}, {s(sW)}, 13', f's_add_u32 {s(sMV)}, {s(sMV)}, 0x20000',
          f'v_bfe_u32 {v(t+5)}, {v(t+1)}, 2, 2', f'v_lshl_add_u32 {v(t+5)}, {v(t+3)}, 2, {v(t+5)}',
          f'v_lshlrev_b32 {v(t+4)}, 8, {v(t+5)}', f'v_and_b32 {v(t+6)}, 3, {v(t+1)}',
          f'v_lshl_add_u32 {v(t+4)}, {v(t+6)}, 3, {v(t+4)}', f'v_add_u32 {v(t+4)}, {s(sMV)}, {v(t+4)}',
          f'v_and_b32 {v(t+5)}, 7, {v(t+5)}']
    for db in range(8):
        L += [f'v_xor_b32 {v(VA+db)}, {db}, {v(t+5)}', f'v_lshl_add_u32 {v(VA+db)}, {v(VA+db)}, 5, {v(t+4)}']
    L += [f'v_lshlrev_b32 {v(MK)}, 2, {v(t+3)}']
    L += [f'v_mov_b32 {v(MK+1)}, {NEG:#x}']
    L += [f'v_mov_b32 {v(O0+i)}, 0' for i in range(128)]
    L += [f'v_mov_b32 {v(M+q)}, 0xff7fffff' for q in range(4)] + [f'v_mov_b32 {v(LS+q)}, 0' for q in range(4)]
    L += [f's_mov_b32 {s(sIT)}, 0', 'L_slow_loop:',
          f's_lshr_b32 {s(sT)}, {s(sIT)}, 2',
          f's_load_dwordx2 s[40:41], s[30:31], {s(sT)}', 's_waitcnt lgkmcnt(0)',
          's_lshl_b32 s40, s40, 16', 's_lshl_b32 s41, s41, 16']
    for kb in range(2):
        for ks in range(4):
            L.append(f'buffer_load_dwordx4 {a(aK+16*kb+4*ks,4)}, {v(KV)}, s[8:11], s{40+kb} offen offset:{64*ks}')
    for b in range(2):
        for p in range(4):
            L += [f's_add_u32 m0, {s(sMV)}, {b*4096 + p*1024}', f's_add_u32 s42, s{40+b}, {(p//2)*32768}',
                  f'buffer_load_dwordx4 {v(VD1 if p & 1 else VD0)}, s[12:15], s42 offen lds']
    L += ['s_waitcnt vmcnt(0)']
    for db in range(8):
        for tt in range(2):
            L.append(f'ds_read_b64_tr_b16 {a(aV+8*db+2*tt,2)}, {v(VA+db)} offset:{tt*4096}')
    L += [f's_sub_u32 {s(sT)}, {s(sCLT)}, {s(sIT)}', 's_waitcnt lgkmcnt(0)']
    for q in range(4):
        S = S0 + 16*q
        L += qkg(q, 2) + ['s_nop 7']
        for e in range(8):
            L += [f'v_add_u32 {v(t)}, {16*(e//4) + e%4}, {v(MK)}', f'v_cmp_gt_u32 vcc, {s(sT)}, {v(t)}', 's_nop 1',
                  f'v_cndmask_b32 {v(S+e)}, {v(MK+1)}, {v(S+e)}, vcc']
        L += [f'v_max3_f32 {v(t)}, {v(S)}, {v(S+1)}, {v(S+2)}', f'v_max3_f32 {v(t)}, {v(t)}, {v(S+3)}, {v(S+4)}',
              f'v_max3_f32 {v(t)}, {v(t)}, {v(S+5)}, {v(S+6)}', f'v_max3_f32 {v(t)}, {v(t)}, {v(S+7)}, {v(M+q)}',
              f'v_mov_b32 {v(t+1)}, {v(t)}', 's_nop 1', f'v_permlane16_swap_b32 {v(t)}, {v(t+1)}', f'v_max_f32 {v(t)}, {v(t)}, {v(t+1)}',
              f'v_mov_b32 {v(t+1)}, {v(t)}', 's_nop 1', f'v_permlane32_swap_b32 {v(t)}, {v(t+1)}', f'v_max_f32 {v(t)}, {v(t)}, {v(t+1)}',
              f'v_sub_f32 {v(t+1)}, {v(M+q)}, {v(t)}', f'v_exp_f32 {v(t+1)}, {v(t+1)}', f'v_mov_b32 {v(M+q)}, {v(t)}']
        L += [f'v_sub_f32 {v(S+e)}, {v(S+e)}, {v(t)}' for e in range(8)]
        L += [f'v_exp_f32 {v(S+e)}, {v(S+e)}' for e in range(8)]
        L += [f'v_mul_f32 {v(LS+q)}, {v(LS+q)}, {v(t+1)}']
        L += [f'v_mul_f32 {v(O0+32*q+i)}, {v(O0+32*q+i)}, {v(t+1)}' for i in range(32)]
        L += [i_cvt(q, i) for i in range(4)]
        for i in range(4):
            L += [f'v_lshlrev_b32 {v(t)}, 16, {v(P0+8*q+i)}', f'v_and_b32 {v(t+1)}, 0xffff0000, {v(P0+8*q+i)}',
                  f'v_add_f32 {v(LS+q)}, {v(LS+q)}, {v(t)}', f'v_add_f32 {v(LS+q)}, {v(LS+q)}, {v(t+1)}']
        L += [pv(q, db, 0) for db in range(8)]
    L += [f's_add_u32 {s(sIT)}, {s(sIT)}, 32', f's_cmp_lt_u32 {s(sIT)}, {s(sCLT)}', 's_cbranch_scc1 L_slow_loop', 's_nop 7']
    for q in range(4):
        o = O0 + 32*q
        L += [f'v_mov_b32 {v(t)}, {v(LS+q)}', f'v_mov_b32 {v(t+1)}, {v(LS+q)}', 's_nop 1',
              f'v_permlane16_swap_b32 {v(t)}, {v(t+1)}', f'v_add_f32 {v(t)}, {v(t)}, {v(t+1)}',
              f'v_mov_b32 {v(t+1)}, {v(t)}', 's_nop 1', f'v_permlane32_swap_b32 {v(t)}, {v(t+1)}', f'v_add_f32 {v(t)}, {v(t)}, {v(t+1)}',
              f'v_rcp_f32 {v(t)}, {v(t)}', 's_nop 0']
        L += [f'v_mul_f32 {v(o+i)}, {v(o+i)}, {v(t)}' for i in range(32)]
        for u in range(4):
            L += [f'v_cvt_pk_bf16_f32 {v(o+8*u+i)}, {v(o+8*u+2*i)}, {v(o+8*u+2*i+1)}' for i in range(4)]
        for u in range(4):
            L += [f'v_permlane16_swap_b32 {v(o+8*u+i)}, {v(o+8*u+2+i)}' for i in range(2)]
        for u in range(4):
            L.append(f'buffer_store_dwordx4 {v(o+8*u,4)}, {v(OV)}, s[16:19], {"0" if q == 0 else s(sQ1+q-1)} offen offset:{64*u}')
    L += ['s_endpgm']
    return L

def finish():
    L = [f'v_cmp_lt_u32 vcc, 0x28000000, {v(T0+4)}',
         f's_cmp_lg_u32 {s(sFORCE)}, 0', 's_cbranch_scc1 L_slow', 's_nop 3', 's_cbranch_vccnz L_slow']
    if OPT['stamp']:
        L += [f's_memtime {s(sST+14,2)}', 's_waitcnt vmcnt(0)', f's_memtime {s(sT,2)}', f's_memrealtime {s(sT+2,2)}',
              's_load_dwordx2 s[24:25], s[0:1], 56', 's_waitcnt lgkmcnt(0)',
              's_mov_b32 s26, 0x100000', 's_mov_b32 s27, 0x20000']
        for i in range(8): L.append(f'v_mov_b32 v{i}, {s(sST+2*i)}')
        L += [f'v_mov_b32 v8, {s(sT)}', f'v_mov_b32 v9, {s(sT+2)}', 'v_mov_b32 v10, 0', 'v_mov_b32 v11, 0',
              f's_lshl_b32 {s(sT)}, s2, 2', f's_add_u32 {s(sT)}, {s(sT)}, {s(sW)}', f's_lshl_b32 {s(sT)}, {s(sT)}, 6',
              'v_mov_b32 v12, 0', 's_mov_b64 exec, 1',
              f'buffer_store_dwordx4 v[0:3], v12, s[24:27], {s(sT)} offen',
              f'buffer_store_dwordx4 v[4:7], v12, s[24:27], {s(sT)} offen offset:16',
              f'buffer_store_dwordx4 v[8:11], v12, s[24:27], {s(sT)} offen offset:32']
    L += ['s_endpgm']
    return L

def main():
    pro, pend0 = prologue()
    loop, pend = loop_code()
    assert [x[0] for x in pend0] == [x[0] for x in pend][-len(pend0):] or not pend0, (pend0, pend)
    L = [f'{NAME}:'] + pro + stamp(5) + loop
    L += ['L_tail:'] + stamp(6) + [f's_cmp_gt_u32 {s(sNKB)}, 1', 's_cbranch_scc1 L_tail234']
    L += ['; ---- tail nkb=1'] + tail(1, pend) + finish()
    L += ['L_tail234:', f's_cmp_eq_u32 {s(sNKB)}, 3', 's_cbranch_scc1 L_tail3', f's_cmp_eq_u32 {s(sNKB)}, 4', 's_cbranch_scc1 L_tail4']
    L += tail(2, pend) + finish() + ['L_tail3:'] + tail(3, pend) + finish() + ['L_tail4:'] + tail(4, pend) + finish()
    L += slow() + ['L_end:', 's_endpgm']
    L, nn = fix_hazards(L)
    print('nops inserted:', nn, ' leftovers:', sorted(LEFT))
    hdr = open('standalone__paged_block_table_kv_pagedattention__prompt.s.ref').read().split('; Override')[0]
    txt = hdr + '; Generated by gen/gen.py (hand-written generator).\n'
    txt += '; @launch grid=(256,1,1) block=(256,1,1) lds=163840\n'
    txt += f'.amdgcn_target "amdgcn-amd-amdhsa--gfx950"\n.text\n.globl {NAME}\n.p2align 8\n.type {NAME},@function\n'
    for l in L:
        txt += (l if l.endswith(':') or l.startswith(('.', ';')) else '    ' + l) + '\n'
    txt += f'''.section .rodata,"a"
.p2align 6
.amdhsa_kernel {NAME}
  .amdhsa_next_free_vgpr 472
  .amdhsa_next_free_sgpr 102
  .amdhsa_accum_offset 256
  .amdhsa_group_segment_fixed_size 0
  .amdhsa_kernarg_size 64
  .amdhsa_user_sgpr_count 2
  .amdhsa_user_sgpr_kernarg_segment_ptr 1
  .amdhsa_system_sgpr_workgroup_id_x 1
.end_amdhsa_kernel
'''
    open(sys.argv[1], 'w').write(txt)
    if OPT.get('show'):
        for g in range(NG): print(g, PAT[g])
main()
```

```python
import sys
from asmcheck import parse, hazards, fix_hazards

NAME = 'standalone__paged_block_table_kv_pagedattention__prompt_kernel'
FL = {0: '', 1: ' nt', 2: ' sc1', 3: ' sc0 sc1', 4: ' sc1 nt', 5: ' sc0 sc1 nt', 6: ' sc0', 7: ' sc0 nt'}
OPT = dict(qf=1, kf=0, of=0, delta=9, stamp=0, lat=8, forceslow=0, skipdma=1)
for a in sys.argv[2:]:
    k, v = a.split('='); OPT[k] = int(v, 0)

S0, P0, KA, VA, BT, DK, DV, IDX, OV, MK, T0, O0 = 0, 64, 96, 100, 108, 112, 113, 114, 115, 116, 120, 128
aQ, aK, aV, aL, aONE = 0, 64, 128, 192, 208
sW, sCL, sN, sIT, sLN = 3, 36, 37, 38, 39
SETS = (56, 60)
sMK, sMV, sC, sC2, sNKB, sVOFF, sFORCE, sKB, sVB, sCLT = 64, 65, 66, 67, 68, 69, 70, 71, 72, 73
sQ1, sQ2, sQ3 = 74, 75, 76
sT = 78
sST = 84
KBYTES = 132 * 65536
LAT = OPT['lat']
NEG = 0xf149f2ca

def v(b, n=1): return f'v{b}' if n == 1 else f'v[{b}:{b+n-1}]'
def a(b, n=1): return f'a{b}' if n == 1 else f'a[{b}:{b+n-1}]'
def s(b, n=1): return f's{b}' if n == 1 else f's[{b}:{b+n-1}]'

def qk(q, kb, ks, mask=False):
    D = v(S0 + 16*q + 4*kb, 4)
    C = D if ks else (v(MK, 4) if mask else '0')
    return f'v_mfma_f32_16x16x32_bf16 {D}, {a(aK+16*kb+4*ks,4)}, {a(aQ+16*q+4*ks,4)}, {C}'
def pv(q, db, ks, vbase=None):
    D = v(O0 + 32*q + 4*db, 4)
    A = a(aV + (2*db+ks)*4, 4) if vbase is None else a(vbase + 4*db, 4)
    return f'v_mfma_f32_16x16x32_bf16 {D}, {A}, {v(P0+8*q+4*ks,4)}, {D}'
def sm(q):
    return f'v_smfmac_f32_16x16x64_bf16 {a(aL+4*q,4)}, {a(aONE,4)}, {v(P0+8*q,8)}, {v(IDX)}'
def qkg(q, nkb=4, mask=False): return [qk(q, kb, ks, mask and kb == nkb-1) for kb in range(nkb) for ks in range(4)]
def pvg(q, nks=2, vbase=None): return [pv(q, db, ks, vbase) for db in range(8) for ks in range(nks)] + [sm(q)]

def i_exp(q, n): return f'v_exp_f32 {v(S0+16*q+n)}, {v(S0+16*q+n)}'
def i_cvt(q, i): return f'v_cvt_pk_bf16_f32 {v(P0+8*q+i)}, {v(S0+16*q+2*i)}, {v(S0+16*q+2*i+1)}'
def i_kread(kb, ks, slot, tile): return f'ds_read_b128 {a(aK+16*kb+4*ks,4)}, {v(KA+ks)} offset:{slot*16384+kb*1024}'
def i_vread(db, ks, t, slot, tile, vbase=None):
    d = (aV + (2*db+ks)*4 if vbase is None else vbase + 4*db) + 2*t
    return f'ds_read_b64_tr_b16 {a(d,2)}, {v(VA+db)} offset:{slot*16384+(2*ks+t)*1024}'
def i_dma(isv, i, soff, tile):
    return f'buffer_load_dwordx4 {v(DV if isv else DK)}, {s(12 if isv else 8,4)}, {s(soff+i)} offen offset:{i*1024}{FL[OPT["kf"]]} lds'
def i_m0(isv, slot): return f's_add_u32 m0, {s(sMV if isv else sMK)}, {slot*16384}'

class Op:
    def __init__(self, key, cls, rel, dl, text, deps=(), fifo=None):
        self.key, self.cls, self.rel, self.dl, self.text, self.deps, self.fifo = key, cls, rel, dl, text, list(deps), fifo
        self.gap = None
class Gap:
    def __init__(self): self.sc, self.mem, self.valu, self.post = [], [], [], []; self.block = None

def schedule(ngaps, ops, gaps=None, overflow=False, g0=0):
    gaps = gaps or [Gap() for _ in range(ngaps)]
    byk = {o.key: o for o in ops}
    todo = list(ops)
    def ready(o, g):
        if o.rel > g: return False
        for d in o.deps:
            p = byk.get(d)
            if p is not None and (p.gap is None or p.gap >= g): return False
        if o.fifo is not None:
            p = byk[o.fifo]
            if p.gap is None: return False
            if o.cls == 'D' and p.gap >= g: return False
        return True
    def put(o, g):
        o.gap = g; todo.remove(o)
        (gaps[g].mem if o.cls in 'DRT' else gaps[g].valu).append(o)
    for g in range(g0, ngaps):
        if gaps[g].block != 'all':
            cand = sorted((o for o in todo if ready(o, g)), key=lambda o: o.dl)
            if gaps[g].block == 'half': cand = [o for o in cand if o.cls == 'H'][:1]
            if cand:
                top = cand[0]
                halves = [o for o in cand if o.cls in 'RTH']
                full = [o for o in cand if o.cls in 'ED']
                if top.cls in 'RTH' and len(halves) == 1 and full and top.dl - g > 6 and top.fifo is None: top = full[0]
                put(top, g)
                if top.cls in 'RTH' and gaps[g].block != 'half':
                    cand2 = sorted((o for o in todo if o.cls in 'RTH' and ready(o, g)), key=lambda o: o.dl)
                    cand2 = [o for o in cand2 if not (o.cls == 'R' and top.cls == 'R')]
                    if cand2:
                        pick = cand2[0]
                        if top.cls in 'RT' and pick.cls in 'RT' and pick.dl - g > 8:
                            h = [o for o in cand2 if o.cls == 'H']
                            if h: pick = h[0]
                        put(pick, g)
        late = [o for o in todo if o.dl <= g]
        if late:
            if not overflow: raise RuntimeError(f'deadline miss at gap {g}: {[o.key for o in late]}')
            def force(o):
                if o.gap is not None: return
                for d in o.deps + ([o.fifo] if o.fifo else []):
                    if d in byk: force(byk[d])
                assert o.rel <= g, (o.key, o.rel, g)
                o.gap = g; todo.remove(o); gaps[g].post.append(o.text)
            for o in sorted(late, key=lambda o: ({'R': 0, 'T': 0, 'D': 0, 'E': 1, 'H': 2}[o.cls], o.dl)): force(o)
    return gaps, todo

def emit(mf, gaps, off=0):
    out = []
    for i, m in enumerate(mf):
        g = gaps[off + i]
        out.append(m)
        out += g.sc
        out += [o.text for o in g.mem] + [o.text for o in g.valu] + g.post
    return out

def softmax_ops(tile, q, qkstart, pvstart, nkb=4, prel=0, fixed=None):
    ops = []
    n = 4 * nkb
    for e in range(n):
        kb = e // 4
        if fixed is not None: ops.append(Op(('e', tile, q, e), 'E', qkstart + fixed + 2*e, qkstart + fixed + 2*e, i_exp(q, e)))
        else: ops.append(Op(('e', tile, q, e), 'E', qkstart + 4*kb + 3 + 5, pvstart - 4 - 2*(n - 1 - e), i_exp(q, e)))
    for i in range(2 * nkb):
        ops.append(Op(('c', tile, q, i), 'H', prel, pvstart - 3 - (2*nkb - 1 - i), i_cvt(q, i),
                      deps=[('e', tile, q, 2*i), ('e', tile, q, 2*i+1)]))
    for i in range(2 * nkb, 8):
        ops.append(Op(('z', tile, q, i), 'H', prel, pvstart - 3, f'v_mov_b32 {v(P0+8*q+i)}, 0'))
    return ops

NG = 132
LOOP_MF = qkg(0) + pvg(2) + qkg(1) + pvg(3) + qkg(2) + pvg(0) + qkg(3) + pvg(1)
assert len(LOOP_MF) == NG
BARG = 47
DMAG = [10, 14, 18, 22, 26, 30, 34, 38]

def steady():
    NT = 6
    ops = []
    gaps = [Gap() for _ in range(NG * (NT + 1))]
    for j in range(NT):
        b = NG * j
        for q in range(4):
            pvs = b + 82 + 33*q
            ops += softmax_ops(j, q, b + 33*q, pvs, prel=pvs - NG + 17, fixed=OPT['delta'])
        for db in range(8):
            for ks in range(2):
                for t in range(2):
                    f = 2*db + ks
                    ops.append(Op(('v', j, db, ks, t), 'T', max(b + 49 + f + 1, b + BARG + 1), b + 82 + f - LAT - (1 - t), ('v', db, ks, t)))
        for kb in range(4):
            for ks in range(4):
                f = 4*kb + ks
                ops.append(Op(('k', j, kb, ks), 'R', b + 99 + f + 1, min(b + NG - 2 - (15 - f), b + NG + f - LAT), ('k', kb, ks),
                              deps=[('k', j, (f-1)//4, (f-1)%4)] if f else []))
        for i in range(4):
            ops.append(Op(('rl', j, i), 'H', b, b + 20 + i, ('rl', i)))
        for i in range(8):
            ops.append(Op(('d', j, i), 'D', b + DMAG[i], b + DMAG[i], ('d', i),
                          deps=[('rl', j, x) for x in range(4)] if i >= 4 else []))
        gaps[b + BARG].block = 'all'
        gaps[b + NG - 1].block = 'half'
    schedule(NG * NT, ops, gaps, overflow=False) if False else None
    schedule(NG * (NT + 1), ops, gaps)
    def pattern(j):
        return [[(o.key[0], o.key[1] - j) + o.key[2:] for o in gaps[NG*j + g].mem + gaps[NG*j + g].valu] for g in range(NG)]
    p3, p4 = pattern(3), pattern(4)
    assert p3 == p4, 'no steady state'
    return p3
PAT = steady()
LEFT = {k for g in PAT for k in g if k[1] == -1}
assert all(k[0] in 'ec' for k in LEFT), LEFT

def key_text(k, j4, tile):
    kind = k[0]
    if kind == 'e': return i_exp(k[2], k[3])
    if kind == 'c': return i_cvt(k[2], k[3])
    if kind == 'v': return i_vread(k[2], k[3], k[4], j4, tile)
    if kind == 'k': return i_kread(k[2], k[3], (j4 + 1) % 4, tile + 1)
    if kind == 'rl': return f'v_readlane_b32 {s(SETS[(j4+3)%2] + k[2])}, {v(BT+k[2])}, {s(sLN)}'
    if kind == 'd':
        i = k[2]
        if i < 4: return i_dma(1, i, SETS[j4 % 2], tile + 2)
        return i_dma(0, i - 4, SETS[(j4 + 3) % 2], tile + 3)
    raise KeyError(k)

class Txt:
    def __init__(self, t): self.text = t

def add_lgkm_waits(lines, pre_ds=(), lead=None):
    ins = parse(lines)
    q = [(set(r), -age) for r, age in pre_ds]
    out = []; gap = -1
    lastm = None
    q_at_lastm = None
    for x in ins:
        if x.cls == 'mfma':
            needed = [i for i, (r, g) in enumerate(q) if r & x.r]
            if needed:
                k = max(needed)
                if lastm is not None and k < q_at_lastm:
                    visible = q_at_lastm
                    while k + 1 < visible and q[k + 1][1] <= gap - LAT: k += 1
                    n = min(15, visible - 1 - k)
                    out.insert(lastm, f's_waitcnt lgkmcnt({n})')
                    k = visible - 1 - n
                else:
                    n = min(15, len(q) - 1 - k)
                    out.append(f's_waitcnt lgkmcnt({n})')
                    k = len(q) - 1 - n
                q = q[k + 1:]
            gap += 1
            out.append(x.text); lastm = len(out); q_at_lastm = len(q)
        else:
            if x.cls == 'ds': q.append((set(x.w), gap))
            if x.cls == 'wait' and x.lgkm is not None:
                q = q[max(0, len(q) - x.lgkm):] if x.lgkm else []
                if q_at_lastm is not None: q_at_lastm = min(q_at_lastm, len(q))
            out.append(x.text)
    return out, [(r, gap - g) for r, g in q]

def body(j4, tile, exit_label, last):
    gaps = [Gap() for _ in range(NG)]
    for g in range(NG):
        for k in PAT[g]:
            t = Txt(key_text(k, j4, tile))
            (gaps[g].mem if k[0] in 'vkd' else gaps[g].valu).append(t)
    gd = {k[2]: g for g in range(NG) for k in PAT[g] if k[0] == 'd'}
    grl = max(g for g in range(NG) for k in PAT[g] if k[0] == 'rl')
    gaps[gd[0] - 2].sc.append(i_m0(1, (j4 + 2) % 4))
    gaps[gd[4] - 2].sc.append(i_m0(0, (j4 + 3) % 4))
    if OPT['skipdma']:
        gaps[1].sc.append(f's_cmp_le_u32 {s(sLN)}, {s(sN)}')
        gaps[2].sc.append(f's_cselect_b32 s14, {s(sVB)}, 0')
        gaps[3].sc.append(f's_cmp_lt_u32 {s(sLN)}, {s(sN)}')
        gaps[4].sc.append(f's_cselect_b32 s10, {s(sKB)}, 0')
    gaps[max(grl + 1, 50)].sc.append(f's_add_u32 {s(sLN)}, {s(sLN)}, 1')
    gaps[BARG - 1].sc.append('s_waitcnt vmcnt(16)')
    gaps[BARG].sc.append('s_barrier')
    gaps[NG - 2].sc.append(f's_sub_u32 {s(sIT)}, {s(sIT)}, 1')
    lines = emit(LOOP_MF, gaps)
    return lines

def loop_code():
    l0 = body(1, 1, None, False)
    _, pend = add_lgkm_waits(l0)
    out = ['.p2align 6', 'L_loop:']
    for u in range(4):
        j4 = (u + 1) % 4
        l, pend2 = add_lgkm_waits(body(j4, u + 1, None, False), pend)
        assert [x[0] for x in pend2] == [x[0] for x in pend]
        out += [f'; ---- body tile%4 == {j4}'] + l
        if u < 3: out.append('s_cbranch_scc1 L_tail')
        else: out += ['s_cbranch_scc0 L_loop']
    return out, pend

def epi_list(q, first, pk=False):
    t = T0 + 2 * (q & 1)
    o = O0 + 32*q
    L = [('H', f'v_accvgpr_read_b32 {v(t)}, {a(aL+4*q)}'),
         ('H', f'v_accvgpr_read_b32 {v(t+1)}, {a(aL+4*q+1)}'),
         ('H', f'v_add_f32 {v(t)}, {v(t)}, {v(t+1)}'),
         ('H', f'v_rcp_f32 {v(t+1)}, {v(t)}'),
         ('H', f'v_subrev_u32 {v(t)}, 0x2b800000, {v(t)}')]
    L.append(('H', f'v_mov_b32 {v(T0+4)}, {v(t)}' if first else f'v_max_u32 {v(T0+4)}, {v(T0+4)}, {v(t)}'))
    def muls(u): return [('M', (o + 8*u + i, t + 1)) for i in range(8)]
    def cvts(u): return [('H', f'v_cvt_pk_bf16_f32 {v(o+8*u+i)}, {v(o+8*u+2*i)}, {v(o+8*u+2*i+1)}') for i in range(4)]
    def swaps(u): return [('H', f'v_permlane16_swap_b32 {v(o+8*u+i)}, {v(o+8*u+2+i)}') for i in range(2)]
    def store(u):
        so = '0' if q == 0 else s(sQ1 + q - 1)
        return [('D', f'buffer_store_dwordx4 {v(o+8*u,4)}, {v(OV)}, s[16:19], {so} offen offset:{64*u}{FL[OPT["of"]]}')]
    L += muls(0) + cvts(0) + muls(1) + swaps(0) + cvts(1) + store(0) + muls(2) + swaps(1) + cvts(2) + store(1) \
       + muls(3) + swaps(2) + cvts(3) + store(2) + [('H', 's_nop 0')] + swaps(3) + store(3)
    return L
def mul_text(x): return f'v_mul_f32 {v(x[0])}, {v(x[1])}, {v(x[0])}'

def tail(nkb, pend):
    nks = 1 if nkb <= 2 else 2
    vbase = aK + 32 if nkb <= 2 else None
    G = {}
    if nkb <= 2:
        order = [('qk', 0), ('qk', 1), ('pvp', 2), ('qk', 2), ('pv', 0), ('pvp', 3), ('pv', 1), ('qk', 3), ('pv', 2), ('pv', 3)]
    else:
        order = [('qk', 0), ('pvp', 2), ('qk', 1), ('pvp', 3), ('qk', 2), ('pv', 0), ('qk', 3), ('pv', 1), ('pv', 2), ('pv', 3)]
    mf = []
    for kind, q in order:
        G[(kind, q)] = len(mf)
        mf += qkg(q, nkb, True) if kind == 'qk' else (pvg(q) if kind == 'pvp' else pvg(q, nks, vbase))
    n = len(mf)
    ops = []
    for q in (2, 3):
        pvs = G[('pvp', q)]
        for o in softmax_ops(-1, q, -100, pvs, prel=0):
            if (o.key[0], -1) + o.key[2:] in LEFT:
                o.rel = 0
                o.dl = max(o.dl, 0)
                o.dl = min(o.dl, G[('qk', q)] - 1) if G[('qk', q)] > 0 else o.dl
                ops.append(o)
    for q in range(4):
        prel = G[('pvp', q)] + 17 if q >= 2 else 0
        so = softmax_ops(0, q, G[('qk', q)], G[('pv', q)], nkb, prel)
        for o in so: o.dl = max(o.dl, o.rel, min(G[('pv', q)] - 1, o.rel + 1) if o.cls == 'E' else min(G[('pv', q)] - 1, G[('qk', q)] + 4*nkb + 4))
        ops += so
    for db in range(8):
        ops.append(Op(('va', db), 'H', 0, 3 + db // 2, f'v_add_u32 {v(VA+db)}, {s(sVOFF)}, {v(VA+db)}'))
    for db in range(8):
        for ks in range(nks):
            for t in range(2):
                f = nks*db + ks
                rel = 2 if vbase else G[('pvp', 3)] + 2*db + ks + 1
                ops.append(Op(('v', db, ks, t), 'T', rel, G[('pv', 0)] + f - LAT - (1 - t), i_vread(db, ks, t, 0, 'T', vbase), deps=[('va', db)]))
    prev = None; epi = []
    for q in range(4):
        rel = G[('pv', q)] + 8*nks + 5
        for i, (c, t) in enumerate(epi_list(q, q == 0)):
            o = Op(('ep', q, i), 'D' if c == 'D' else 'H', rel, 10000 + 100*q + i, mul_text(t) if c == 'M' else t, fifo=prev)
            o.raw = (c, t); prev = o.key; epi.append(o)
    ops += epi
    gaps = [Gap() for _ in range(n)]
    gaps[0].sc.append('s_waitcnt vmcnt(8)')
    gaps[1].sc.append('s_barrier'); gaps[1].block = 'all'
    gaps, todo = schedule(n, ops, gaps, overflow=True)
    lines = emit(mf, gaps)
    assert all(o.key[0] == 'ep' for o in todo), [o.key for o in todo]
    i = 0
    while i < len(todo):
        c, t = todo[i].raw
        if c == 'M' and i + 1 < len(todo) and todo[i+1].raw[0] == 'M' and t[0] % 2 == 0 and todo[i+1].raw[1][0] == t[0] + 1:
            r = t[1]
            lines.append(f'v_pk_mul_f32 {v(t[0],2)}, {v(t[0],2)}, {v(r-1,2)} op_sel:[0,1] op_sel_hi:[1,1]'); i += 2
        else:
            lines.append(todo[i].text); i += 1
    lines, _ = add_lgkm_waits(lines, pend)
    return lines

def scale_q(q):
    out = []
    for h in range(0, 16, 4):
        for i in range(4):
            x = S0 + 16*q + h + i; t = T0 + 2*i
            out += [f'v_lshlrev_b32 {v(t)}, 16, {v(x)}', f'v_and_b32 {v(t+1)}, 0xffff0000, {v(x)}']
        for i in range(4):
            t = T0 + 2*i
            out.append(f'v_pk_mul_f32 {v(t,2)}, {v(t,2)}, {s(sC,2)}')
        for i in range(4):
            x = S0 + 16*q + h + i; t = T0 + 2*i
            out.append(f'v_cvt_pk_bf16_f32 {v(x)}, {v(t)}, {v(t+1)}')
        for i in range(4):
            x = S0 + 16*q + h + i
            out.append(f'v_accvgpr_write_b32 {a(aQ+16*q+h+i)}, {v(x)}')
    return out
def qload(q): return [f'buffer_load_dwordx4 {v(S0+16*q+4*ks,4)}, {v(T0+7)}, s[4:7], {"0" if q == 0 else s(sQ1+q-1)} offen offset:{64*ks}{FL[OPT["qf"]]} ; ld Q{q}' for ks in range(4)]
def dma4(isv, tile):
    soff = 40 + 4*tile if tile < 3 else SETS[1]
    return [i_m0(isv, tile), 's_nop 0'] + [i_dma(isv, i, soff, tile) for i in range(4)]
def btprep(tile):
    out = []
    for i in range(4):
        src = 40 + 4*tile + i; dst = src if tile < 3 else SETS[1] + i
        out.append(f's_lshl_b32 {s(dst)}, {s(src)}, 16')
        if i < 3: out.append(f's_or_b32 {s(dst)}, {s(dst)}, {(3-i)*1024}')
    return out
def stamp(i): return [f's_memtime {s(sST+2*i,2)}'] if OPT['stamp'] else []

def resolve_waitvm(lines):
    out = []; vm = []
    for l in lines:
        if l.startswith('WAITVM'):
            tags = l.split(None, 1)[1].split('|')
            last = max(i for i, t in enumerate(vm) if t in tags)
            out.append(f's_waitcnt vmcnt({len(vm) - 1 - last}) ; {tags}')
        else:
            if l.startswith('buffer_'): vm.append(l.split(';')[1].strip() if ';' in l else '')
            out.append(l)
    return out

def memtest(L):
    t = T0; mt = OPT['memtest']
    srd = [f's_add_u32 s8, s26, {s(sT)}', 's_addc_u32 s9, s27, 0', 's_sub_u32 s8, s8, 3072', 's_subb_u32 s9, s9, 0',
          f's_add_u32 s12, s28, {s(sT)}', 's_addc_u32 s13, s29, 0', 's_sub_u32 s12, s12, 3072', 's_subb_u32 s13, s13, 0',
          f's_add_u32 s16, s34, {s(sT+1)}', 's_addc_u32 s17, s35, 0']
    nt = FL[OPT['qf']]
    ql = qload
    def qdma(q):
        o = [f's_add_u32 m0, {s(sMK)}, {0x8000 + q*16384}', 's_nop 0']
        return o + [f'buffer_load_dwordx4 {v(t+5)}, s[4:7], {"0" if q == 0 else s(sQ1+q-1)} offen offset:{1024*i}{nt} lds ; ld Q{q}' for i in range(4)]
    L += stamp(1)
    L += [f'v_lshlrev_b32 {v(t+5)}, 14, {v(t)}', f'v_lshl_add_u32 {v(t+5)}, {v(t+1)}, 4, {v(t+5)}']
    bt = ['s_waitcnt lgkmcnt(0)'] + stamp(2) + btprep(0) + btprep(1) + btprep(2) + btprep(3)
    W = lambda tag, i: [f'WAITVM {tag}'] + stamp(i)
    if mt == 1: L += ql(0) + ql(1) + ql(2) + ql(3) + srd + bt + W('ld Q0', 3) + W('ld Q1', 4) + W('ld Q2', 5) + W('ld Q3', 6)
    if mt == 2: L += qdma(0) + qdma(1) + qdma(2) + qdma(3) + srd + bt + W('ld Q0', 3) + W('ld Q1', 4) + W('ld Q2', 5) + W('ld Q3', 6)
    if mt == 3: L += srd + bt + dma4(0, 0) + W('dma K 0', 3) + dma4(1, 0) + W('dma V 0', 4) + dma4(0, 1) + W('dma K 1', 5) + ql(0) + W('ld Q0', 6)
    if mt == 4: L += ql(0) + srd + bt + dma4(0, 0) + W('ld Q0', 3) + W('dma K 0', 4) + ql(1) + ql(2) + ql(3) + W('ld Q1', 5) + W('ld Q3', 6)
    if mt == 5: L += ql(0) + srd + bt + dma4(0, 0) + ql(1) + ql(2) + ql(3) + W('ld Q0', 3) + W('dma K 0', 4) + W('ld Q1', 5) + W('ld Q3', 6)
    if mt == 6: L += ql(0) + ql(1) + srd + bt + dma4(0, 0) + ql(2) + ql(3) + W('ld Q0', 3) + W('dma K 0', 4) + W('ld Q2', 5) + W('ld Q3', 6)
    if mt == 7: L += srd + bt + dma4(0, 0) + dma4(1, 0) + dma4(0, 1) + dma4(1, 1) + dma4(0, 2) + dma4(1, 2) + dma4(0, 3) + W('dma K 0', 3) + W('dma K 1', 4) + W('dma K 2', 5) + W('dma K 3', 6)
    if mt == 8: L += ql(0) + srd + bt + dma4(0, 0) + ql(1) + ql(2) + dma4(1, 0) + dma4(0, 1) + ql(3) + W('ld Q0', 3) + W('dma K 0', 4) + W('dma K 1', 5) + W('ld Q3', 6)
    allkv = lambda: dma4(0, 0) + dma4(1, 0) + dma4(0, 1) + dma4(1, 1) + dma4(0, 2) + dma4(1, 2) + dma4(0, 3)
    if mt == 9: L += srd + bt + allkv() + W('dma K 3', 3) + allkv() + W('dma K 3', 4) + allkv() + W('dma K 3', 5) + ql(0) + ql(1) + ql(2) + ql(3) + W('ld Q3', 6)
    if mt == 10:
        L += ql(0) + ql(1) + ql(2) + ql(3) + srd + bt + W('ld Q3', 3) + ql(0) + ql(1) + ql(2) + ql(3) + W('ld Q3', 4) + allkv() + W('dma K 3', 5) + ql(0) + ql(1) + ql(2) + ql(3) + W('ld Q3', 6)
    if mt in (11, 12, 13):
        L += [f's_lshl_b32 s56, {s(sW)}, 14', 's_add_u32 s56, s4, s56', 's_addc_u32 s57, s5, 0']
        pf = lambda lo, hi, step: [f's_load_dword s58, s[56:57], {o}' for o in range(lo, hi, step)]
        if mt == 11: L += ql(0) + ql(1) + pf(8192, 16384, 128) + stamp(2) + ql(2) + ql(3) + W('ld Q0', 3) + W('ld Q1', 4) + W('ld Q2', 5) + W('ld Q3', 6)
        if mt == 12: L += stamp(2) + pf(0, 16384, 128) + stamp(3) + ['s_waitcnt lgkmcnt(0)'] + stamp(4) + ql(0) + ql(1) + ql(2) + ql(3) + W('ld Q0', 5) + W('ld Q3', 6)
        if mt == 13: L += stamp(2) + pf(0, 16384, 64) + stamp(3) + ['s_waitcnt lgkmcnt(0)'] + stamp(4) + ql(0) + ql(1) + ql(2) + ql(3) + W('ld Q0', 5) + W('ld Q3', 6)
    if mt >= 20:
        L += srd + bt
        of = FL[OPT['of']]
        if mt == 20:
            for q in range(4):
                for u in range(4): L.append(f'buffer_store_dwordx4 v[{16*q+4*u}:{16*q+4*u+3}], {v(OV)}, s[16:19], {"0" if q == 0 else s(sQ1+q-1)} offen offset:{64*u}{of} ; st{q}')
        if mt == 21:
            for q in range(4):
                for u in range(4): L.append(f'buffer_store_dwordx4 v[{16*q+4*u}:{16*q+4*u+3}], {v(t+5)}, s[16:19], {"0" if q == 0 else s(sQ1+q-1)} offen offset:{1024*u}{of} ; st{q}')
        if mt == 22:
            L += [f'v_lshrrev_b32 {v(t+4)}, 3, {v(t+1)}', f'v_lshlrev_b32 {v(t+4)}, 8, {v(t+4)}', f'v_and_b32 {v(t+6)}, 7, {v(t+1)}',
                  f'v_lshl_add_u32 {v(t+4)}, {v(t+6)}, 4, {v(t+4)}', f'v_lshl_add_u32 {v(t+4)}, {v(t)}, 14, {v(t+4)}']
            for q in range(4):
                for u in range(4): L.append(f'buffer_store_dwordx4 v[{16*q+4*u}:{16*q+4*u+3}], {v(t+4)}, s[16:19], {"0" if q == 0 else s(sQ1+q-1)} offen offset:{128*(u&1)+2048*(u>>1)}{of} ; st{q}')
        L += stamp(3) + W('st0', 4) + W('st1', 5) + W('st3', 6)
    L += [f'v_mov_b32 {v(T0+4)}, 0', f's_mov_b32 {s(sFORCE)}, 0', 's_nop 3']
    return resolve_waitvm(L), None

def prologue():
    L = []
    A = L.append
    if OPT.get('xmask') is not None:
        L += [f's_and_b32 s3, s2, {OPT["xmask"]}', 's_cmp_lg_u32 s3, 0', 's_cbranch_scc1 L_end']
    if OPT.get('twice'): L += [f's_mov_b32 s101, {OPT["twice"]}', 'L_again:']
    L += ['s_cmp_ge_u32 s2, 256', 's_cbranch_scc1 L_end',
          's_load_dwordx8 s[24:31], s[0:1], 0', 's_load_dwordx4 s[32:35], s[0:1], 32']
    L += stamp(0) + ([f's_memrealtime s[100:101]'] if OPT['stamp'] else [])
    t = T0
    L += [f'v_lshrrev_b32 {v(t)}, 6, v0',
          f'v_and_b32 {v(t+1)}, 63, v0',
          f'v_readfirstlane_b32 {s(sW)}, {v(t)}',
          f'v_and_b32 {v(t+2)}, 15, v0',
          f'v_bfe_u32 {v(t+3)}, v0, 4, 2',
          f's_and_b32 {s(sT)}, s2, 7', f's_lshr_b32 {s(sT+1)}, s2, 3', f's_lshr_b32 {s(sT+2)}, {s(sT+1)}, 4',
          f's_lshl_b32 {s(sT)}, {s(sT)}, 1', f's_add_u32 {s(sT)}, {s(sT)}, {s(sT+2)}',
          f's_and_b32 {s(sT+1)}, {s(sT+1)}, 15', f's_lshl_b32 {s(sT+2)}, {s(sT)}, 4',
          f's_add_u32 {s(sT+1)}, {s(sT+1)}, {s(sT+2)}', f's_lshl_b32 {s(sT+1)}, {s(sT+1)}, 16',
          f's_lshl_b32 {s(sT)}, {s(sT)}, 8',
          f's_movk_i32 {s(sQ1)}, 0x1000', f's_movk_i32 {s(sQ2)}, 0x2000', f's_movk_i32 {s(sQ3)}, 0x3000',
          f'v_lshlrev_b32 {v(t+4)}, 14, {v(t)}', f'v_lshl_add_u32 {v(t+4)}, {v(t+2)}, 8, {v(t+4)}',
          f'v_lshl_add_u32 {v(t+7)}, {v(t+3)}, 4, {v(t+4)}',
          f'v_and_b32 {v(t+5)}, 1, {v(t+3)}', f'v_lshl_add_u32 {v(t+4)}, {v(t+5)}, 5, {v(t+4)}',
          f'v_lshrrev_b32 {v(t+5)}, 1, {v(t+3)}', f'v_lshl_add_u32 {v(OV)}, {v(t+5)}, 4, {v(t+4)}',
          f'v_lshl_add_u32 {v(t+4)}, {v(t)}, 2, {v(t+3)}',
          f'v_xor_b32 {v(t+5)}, {v(t+2)}, {v(t+4)}', f'v_lshlrev_b32 {v(t+5)}, 4, {v(t+5)}',
          f'v_lshl_add_u32 {v(DK)}, {v(t+4)}, 12, {v(t+5)}',
          f'v_and_b32 {v(t+5)}, 7, {v(t+4)}', f'v_lshlrev_b32 {v(t+5)}, 1, {v(t+5)}',
          f'v_xor_b32 {v(t+5)}, {v(t+2)}, {v(t+5)}', f'v_lshlrev_b32 {v(t+5)}, 4, {v(t+5)}',
          f'v_lshl_add_u32 {v(DV)}, {v(t+4)}, 12, {v(t+5)}',
          f'v_lshlrev_b32 {v(t+6)}, 4, {v(t+1)}',
          f's_lshl_b32 {s(sMK)}, {s(sW)}, 12', f's_add_u32 {s(sMV)}, {s(sMK)}, 0x10000',
          's_mov_b32 s6, 0x10000', 's_mov_b32 s7, 0x20000', 's_mov_b32 s11, 0x20000', 's_mov_b32 s15, 0x20000',
          's_mov_b32 s18, 0x10000', 's_mov_b32 s19, 0x20000', 's_movk_i32 s22, 0x200', 's_mov_b32 s23, 0x20000',
          f's_sub_u32 {s(sKB)}, {KBYTES+3072}, {s(sT)}', f's_mov_b32 {s(sVB)}, {s(sKB)}',
          f's_mov_b32 s10, {s(sKB)}', f's_mov_b32 s14, {s(sKB)}',
          's_waitcnt lgkmcnt(0)',
          f's_load_dword {s(sCL)}, s[32:33], 0', 's_load_dwordx16 s[40:55], s[30:31], 0',
          f's_add_u32 s4, s24, {s(sT+1)}', 's_addc_u32 s5, s25, 0',
          's_mov_b32 s20, s30', 's_mov_b32 s21, s31']
    if OPT.get('memtest'): return memtest(L)
    L += qload(0)
    L += [f'buffer_load_dwordx4 {v(BT,4)}, {v(t+6)}, s[20:23], 0 offen',
          f's_add_u32 s8, s26, {s(sT)}', 's_addc_u32 s9, s27, 0', 's_sub_u32 s8, s8, 3072', 's_subb_u32 s9, s9, 0',
          f's_add_u32 s12, s28, {s(sT)}', 's_addc_u32 s13, s29, 0', 's_sub_u32 s12, s12, 3072', 's_subb_u32 s13, s13, 0',
          f's_add_u32 s16, s34, {s(sT+1)}', 's_addc_u32 s17, s35, 0']
    L += [f'v_lshrrev_b32 {v(t+4)}, 2, {v(t+2)}', f'v_lshlrev_b32 {v(t+4)}, 4, {v(t+4)}',
          f'v_and_b32 {v(t+5)}, 3, {v(t+2)}', f'v_add_u32 {v(t+4)}, {v(t+4)}, {v(t+5)}',
          f'v_lshlrev_b32 {v(t+4)}, 8, {v(t+4)}',
          f'v_xor_b32 {v(t+5)}, {v(t+3)}, {v(t+2)}']
    for ks in range(4):
        L += [f'v_xor_b32 {v(KA+ks)}, {4*ks}, {v(t+5)}', f'v_lshl_add_u32 {v(KA+ks)}, {v(KA+ks)}, 4, {v(t+4)}']
    L += [f'v_bfe_u32 {v(t+5)}, {v(t+1)}, 2, 2',
          f'v_lshl_add_u32 {v(t+4)}, {v(t+3)}, 4, {v(t+5)}',
          f'v_lshlrev_b32 {v(t+4)}, 8, {v(t+4)}',
          f'v_and_b32 {v(MK)}, 3, {v(t+1)}', f'v_lshl_add_u32 {v(t+4)}, {v(MK)}, 3, {v(t+4)}',
          f'v_add_u32 {v(t+4)}, 0x10000, {v(t+4)}',
          f'v_lshl_add_u32 {v(t+5)}, {v(t+3)}, 2, {v(t+5)}', f'v_and_b32 {v(t+5)}, 7, {v(t+5)}']
    for db in range(8):
        L += [f'v_xor_b32 {v(VA+db)}, {db}, {v(t+5)}', f'v_lshl_add_u32 {v(VA+db)}, {v(VA+db)}, 5, {v(t+4)}']
    L += [f'v_and_b32 {v(t+4)}, 1, {v(t+1)}', f'v_mov_b32 {v(t+5)}, 0xaaaaaaaa',
          f'v_mul_lo_u32 {v(t+4)}, {v(t+4)}, {v(t+5)}', f'v_or_b32 {v(IDX)}, 0x44444444, {v(t+4)}',
          f'v_mov_b32 {v(t+5)}, 0x3f803f80']
    L += [f'v_accvgpr_write_b32 {a(aONE+i)}, {v(t+5)}' for i in range(4)]
    L += ['s_waitcnt lgkmcnt(0)'] + stamp(1)
    L += btprep(0) + dma4(0, 0) + qload(1) + qload(2)
    L += [f's_mov_b32 {s(sC)}, 0x3e0293ee',
          f's_cmp_lt_i32 {s(sCL)}, 1', f's_cselect_b32 {s(sC)}, 0, {s(sC)}', f's_cselect_b32 {s(sCL)}, 0x800, {s(sCL)}',
          f's_mov_b32 {s(sC2)}, {s(sC)}',
          f's_min_u32 {s(sCLT)}, {s(sCL)}, 0x800',
          f's_cmp_lt_u32 {s(sCLT)}, {4096 if OPT["forceslow"] else 129}', f's_cselect_b32 {s(sFORCE)}, 1, 0',
          f's_max_u32 {s(sCL)}, {s(sCLT)}, 129',
          f's_add_u32 {s(sN)}, {s(sCL)}, 63', f's_lshr_b32 {s(sN)}, {s(sN)}, 6',
          f's_sub_u32 {s(sIT)}, {s(sN)}, 3',
          f's_sub_u32 {s(sT)}, {s(sN)}, 1', f's_and_b32 {s(sVOFF)}, {s(sT)}, 3', f's_lshl_b32 {s(sVOFF)}, {s(sVOFF)}, 14',
          f's_lshl_b32 {s(sT)}, {s(sT)}, 6', f's_sub_u32 {s(sT)}, {s(sCL)}, {s(sT)}',
          f's_add_u32 {s(sNKB)}, {s(sT)}, 15', f's_lshr_b32 {s(sNKB)}, {s(sNKB)}, 4',
          f's_sub_u32 {s(sT)}, {s(sT)}, 1', f's_and_b32 {s(sT)}, {s(sT)}, 15',
          f's_mov_b32 {s(sLN)}, 4']
    L += [f'v_lshlrev_b32 {v(t+4)}, 2, {v(t+3)}', f'v_mov_b32 {v(t+5)}, {NEG:#x}']
    for r in range(4):
        L += [f'v_add_u32 {v(t+6)}, {r}, {v(t+4)}', f'v_cmp_lt_u32 vcc, {s(sT)}, {v(t+6)}', 's_nop 1',
              f'v_cndmask_b32 {v(MK+r)}, 0, {v(t+5)}, vcc']
    L += btprep(1) + btprep(2) + btprep(3)
    L += [f'v_mov_b32 {v(O0+i)}, 0' for i in range(128)]
    L += [f'v_accvgpr_write_b32 {a(aL+i)}, 0' for i in range(16)]
    L += [f'v_mov_b32 {v(MK-0+0)}, {v(MK)}'][:0]
    L += [f'v_mov_b32 {v(P0+31)}, {v(T0+7)}']
    L += ['WAITVM ld Q0'] + stamp(2) + scale_q(0)
    L += [f'v_mov_b32 {v(T0+7)}, {v(P0+31)}']
    L += dma4(1, 0) + dma4(0, 1) + qload(3)
    L += ['WAITVM ld BT']
    for i in range(4):
        L.append(f'v_lshlrev_b32 {v(BT+i)}, 16, {v(BT+i)}')
        if i < 3: L.append(f'v_or_b32 {v(BT+i)}, {(3-i)*1024}, {v(BT+i)}')
    L += ['WAITVM dma K 0', 's_barrier'] + stamp(3)
    L += [i_kread(kb, ks, 0, 0) for kb in range(4) for ks in range(4)]
    order = [('qk', 0), ('qk', 1), ('qk', 2), ('pv', 0), ('qk', 3), ('pv', 1)]
    G = {}; mf = []
    for kind, q in order:
        G[(kind, q)] = len(mf); mf += qkg(q) if kind == 'qk' else pvg(q)
    n = len(mf)
    ops = []
    for q in range(4):
        if q < 2: pvs = G[('qk', q)] + 23
        elif q == 2: pvs = G[('qk', 3)] + 2
        else: pvs = n + 2
        for o in softmax_ops(0, q, G[('qk', q)], pvs):
            if (o.key[0], -1) + o.key[2:] in LEFT: continue
            o.dl = max(o.dl, o.rel if o.cls == 'E' else G[('qk', q)] + 4*(o.key[3]//2) + 8)
            o.dl = min(o.dl, n - 1)
            ops.append(o)
    for db in range(8):
        for ks in range(2):
            for tt in range(2):
                f = 2*db + ks
                ops.append(Op(('v', db, ks, tt), 'T', G[('qk', 2)] - 1 + 1, G[('pv', 0)] + f - LAT - (1 - tt), i_vread(db, ks, tt, 0, 0)))
    for kb in range(4):
        for ks in range(4):
            f = 4*kb + ks
            ops.append(Op(('k', kb, ks), 'R', G[('qk', 3)] + f + 1, min(n - 2 - (15 - f), n + f - LAT), i_kread(kb, ks, 1, 1),
                          deps=[('k', (f-1)//4, (f-1)%4)] if f else []))
    gaps = [Gap() for _ in range(n)]
    gaps, todo = schedule(n, ops, gaps, overflow=True)
    assert not todo
    gaps[G[('qk', 1)] - 1].post += dma4(1, 1) + dma4(0, 2) + ['WAITVM ld Q1'] + scale_q(1) + ['s_nop 0']
    gaps[G[('qk', 2)] - 1].post += dma4(1, 2) + dma4(0, 3) + ['WAITVM ld Q2'] + scale_q(2) + ['WAITVM dma V 0|dma K 1', 's_barrier']
    gaps[G[('qk', 3)] - 1].post += ['WAITVM ld Q3'] + stamp(4) + scale_q(3) + ['s_nop 0']
    L += emit(mf, gaps)
    L = resolve_waitvm(L)
    L, pend = add_lgkm_waits(L)
    return L, pend

def slow():
    t = T0
    L = ['L_slow:', 's_waitcnt vmcnt(0) lgkmcnt(0)']
    M, LS, KV, VD0, VD1 = KA, BT, DK, DV, IDX
    L += [f's_mov_b32 s10, {s(sKB)}', f's_mov_b32 s14, {s(sVB)}',
          f'v_mbcnt_lo_u32_b32 {v(t+1)}, -1, 0', f'v_mbcnt_hi_u32_b32 {v(t+1)}, -1, {v(t+1)}',
          f'v_and_b32 {v(t+2)}, 15, {v(t+1)}', f'v_lshrrev_b32 {v(t+3)}, 4, {v(t+1)}',
          f'v_lshlrev_b32 {v(t+4)}, 12, {v(t+2)}', f'v_lshl_add_u32 {v(KV)}, {v(t+3)}, 4, {v(t+4)}',
          f'v_add_u32 {v(KV)}, 3072, {v(KV)}',
          f'v_lshlrev_b32 {v(t+4)}, 1, {v(t+3)}', f'v_xor_b32 {v(t+4)}, {v(t+2)}, {v(t+4)}',
          f'v_lshlrev_b32 {v(t+4)}, 4, {v(t+4)}', f'v_lshl_add_u32 {v(VD0)}, {v(t+3)}, 12, {v(t+4)}',
          f'v_add_u32 {v(VD0)}, 3072, {v(VD0)}',
          f'v_xor_b32 {v(t+4)}, 0x80, {v(t+4)}', f'v_lshl_add_u32 {v(VD1)}, {v(t+3)}, 12, {v(t+4)}',
          f'v_add_u32 {v(VD1)}, {3072 + 16384}, {v(VD1)}',
          f's_lshl_b32 {s(sMV)}, {s(sW)}, 13', f's_add_u32 {s(sMV)}, {s(sMV)}, 0x20000',
          f'v_bfe_u32 {v(t+5)}, {v(t+1)}, 2, 2', f'v_lshl_add_u32 {v(t+5)}, {v(t+3)}, 2, {v(t+5)}',
          f'v_lshlrev_b32 {v(t+4)}, 8, {v(t+5)}', f'v_and_b32 {v(t+6)}, 3, {v(t+1)}',
          f'v_lshl_add_u32 {v(t+4)}, {v(t+6)}, 3, {v(t+4)}', f'v_add_u32 {v(t+4)}, {s(sMV)}, {v(t+4)}',
          f'v_and_b32 {v(t+5)}, 7, {v(t+5)}']
    for db in range(8):
        L += [f'v_xor_b32 {v(VA+db)}, {db}, {v(t+5)}', f'v_lshl_add_u32 {v(VA+db)}, {v(VA+db)}, 5, {v(t+4)}']
    L += [f'v_lshlrev_b32 {v(MK)}, 2, {v(t+3)}']
    L += [f'v_mov_b32 {v(MK+1)}, {NEG:#x}']
    L += [f'v_mov_b32 {v(O0+i)}, 0' for i in range(128)]
    L += [f'v_mov_b32 {v(M+q)}, 0xff7fffff' for q in range(4)] + [f'v_mov_b32 {v(LS+q)}, 0' for q in range(4)]
    L += [f's_mov_b32 {s(sIT)}, 0', 'L_slow_loop:',
          f's_lshr_b32 {s(sT)}, {s(sIT)}, 2',
          f's_load_dwordx2 s[40:41], s[30:31], {s(sT)}', 's_waitcnt lgkmcnt(0)',
          's_lshl_b32 s40, s40, 16', 's_lshl_b32 s41, s41, 16']
    for kb in range(2):
        for ks in range(4):
            L.append(f'buffer_load_dwordx4 {a(aK+16*kb+4*ks,4)}, {v(KV)}, s[8:11], s{40+kb} offen offset:{64*ks}')
    for b in range(2):
        for p in range(4):
            L += [f's_add_u32 m0, {s(sMV)}, {b*4096 + p*1024}', f's_add_u32 s42, s{40+b}, {(p//2)*32768}',
                  f'buffer_load_dwordx4 {v(VD1 if p & 1 else VD0)}, s[12:15], s42 offen lds']
    L += ['s_waitcnt vmcnt(0)']
    for db in range(8):
        for tt in range(2):
            L.append(f'ds_read_b64_tr_b16 {a(aV+8*db+2*tt,2)}, {v(VA+db)} offset:{tt*4096}')
    L += [f's_sub_u32 {s(sT)}, {s(sCLT)}, {s(sIT)}', 's_waitcnt lgkmcnt(0)']
    for q in range(4):
        S = S0 + 16*q
        L += qkg(q, 2) + ['s_nop 7']
        for e in range(8):
            L += [f'v_add_u32 {v(t)}, {16*(e//4) + e%4}, {v(MK)}', f'v_cmp_gt_u32 vcc, {s(sT)}, {v(t)}', 's_nop 1',
                  f'v_cndmask_b32 {v(S+e)}, {v(MK+1)}, {v(S+e)}, vcc']
        L += [f'v_max3_f32 {v(t)}, {v(S)}, {v(S+1)}, {v(S+2)}', f'v_max3_f32 {v(t)}, {v(t)}, {v(S+3)}, {v(S+4)}',
              f'v_max3_f32 {v(t)}, {v(t)}, {v(S+5)}, {v(S+6)}', f'v_max3_f32 {v(t)}, {v(t)}, {v(S+7)}, {v(M+q)}',
              f'v_mov_b32 {v(t+1)}, {v(t)}', 's_nop 1', f'v_permlane16_swap_b32 {v(t)}, {v(t+1)}', f'v_max_f32 {v(t)}, {v(t)}, {v(t+1)}',
              f'v_mov_b32 {v(t+1)}, {v(t)}', 's_nop 1', f'v_permlane32_swap_b32 {v(t)}, {v(t+1)}', f'v_max_f32 {v(t)}, {v(t)}, {v(t+1)}',
              f'v_sub_f32 {v(t+1)}, {v(M+q)}, {v(t)}', f'v_exp_f32 {v(t+1)}, {v(t+1)}', f'v_mov_b32 {v(M+q)}, {v(t)}']
        L += [f'v_sub_f32 {v(S+e)}, {v(S+e)}, {v(t)}' for e in range(8)]
        L += [f'v_exp_f32 {v(S+e)}, {v(S+e)}' for e in range(8)]
        L += [f'v_mul_f32 {v(LS+q)}, {v(LS+q)}, {v(t+1)}']
        L += [f'v_mul_f32 {v(O0+32*q+i)}, {v(O0+32*q+i)}, {v(t+1)}' for i in range(32)]
        L += [i_cvt(q, i) for i in range(4)]
        for i in range(4):
            L += [f'v_lshlrev_b32 {v(t)}, 16, {v(P0+8*q+i)}', f'v_and_b32 {v(t+1)}, 0xffff0000, {v(P0+8*q+i)}',
                  f'v_add_f32 {v(LS+q)}, {v(LS+q)}, {v(t)}', f'v_add_f32 {v(LS+q)}, {v(LS+q)}, {v(t+1)}']
        L += [pv(q, db, 0) for db in range(8)]
    L += [f's_add_u32 {s(sIT)}, {s(sIT)}, 32', f's_cmp_lt_u32 {s(sIT)}, {s(sCLT)}', 's_cbranch_scc1 L_slow_loop', 's_nop 7']
    for q in range(4):
        o = O0 + 32*q
        L += [f'v_mov_b32 {v(t)}, {v(LS+q)}', f'v_mov_b32 {v(t+1)}, {v(LS+q)}', 's_nop 1',
              f'v_permlane16_swap_b32 {v(t)}, {v(t+1)}', f'v_add_f32 {v(t)}, {v(t)}, {v(t+1)}',
              f'v_mov_b32 {v(t+1)}, {v(t)}', 's_nop 1', f'v_permlane32_swap_b32 {v(t)}, {v(t+1)}', f'v_add_f32 {v(t)}, {v(t)}, {v(t+1)}',
              f'v_rcp_f32 {v(t)}, {v(t)}', 's_nop 0']
        L += [f'v_mul_f32 {v(o+i)}, {v(o+i)}, {v(t)}' for i in range(32)]
        for u in range(4):
            L += [f'v_cvt_pk_bf16_f32 {v(o+8*u+i)}, {v(o+8*u+2*i)}, {v(o+8*u+2*i+1)}' for i in range(4)]
        for u in range(4):
            L += [f'v_permlane16_swap_b32 {v(o+8*u+i)}, {v(o+8*u+2+i)}' for i in range(2)]
        for u in range(4):
            L.append(f'buffer_store_dwordx4 {v(o+8*u,4)}, {v(OV)}, s[16:19], {"0" if q == 0 else s(sQ1+q-1)} offen offset:{64*u}')
    L += ['s_endpgm']
    return L

def finish():
    L = [f'v_cmp_lt_u32 vcc, 0x28000000, {v(T0+4)}',
         f's_cmp_lg_u32 {s(sFORCE)}, 0', 's_cbranch_scc1 L_slow', 's_nop 3', 's_cbranch_vccnz L_slow']
    if OPT.get('twice'):
        L += ['s_cmp_eq_u32 s101, 0', 's_cbranch_scc1 L_end', 's_sub_u32 s101, s101, 1', 's_waitcnt vmcnt(0) lgkmcnt(0)', 's_barrier',
              'v_mbcnt_lo_u32_b32 v0, -1, 0', 'v_mbcnt_hi_u32_b32 v0, -1, v0', f's_lshl_b32 {s(sT)}, {s(sW)}, 6', f'v_add_u32 v0, {s(sT)}, v0', 's_branch L_again']
    if OPT['stamp']:
        L += [f's_memtime {s(sST+14,2)}', 's_waitcnt vmcnt(0)', f's_memtime {s(sT,2)}', f's_memrealtime {s(sT+2,2)}',
              f's_load_dwordx2 s[24:25], s[0:1], {56 if OPT["stamp"] == 1 else 48}', 's_waitcnt lgkmcnt(0)',
              f's_mov_b32 s26, {0x100000 if OPT["stamp"] == 1 else 64}', 's_mov_b32 s27, 0x20000']
        if OPT['stamp'] == 2:
            for i in range(1, 8): L.append(f's_sub_u32 {s(sST+2*i)}, {s(sST+2*i)}, {s(sST)}')
            L += [f's_sub_u32 {s(sT)}, {s(sT)}, {s(sST)}', f's_sub_u32 {s(sT+2)}, {s(sT+2)}, s100']
        for i in range(8): L.append(f'v_mov_b32 v{i}, {s(sST+2*i)}')
        L += [f'v_mov_b32 v8, {s(sT)}', f'v_mov_b32 v9, {s(sT+2)}', 'v_mov_b32 v10, s100', 'v_mov_b32 v11, 0',
              f's_lshl_b32 {s(sT)}, s2, 2', f's_add_u32 {s(sT)}, {s(sT)}, {s(sW)}', f's_lshl_b32 {s(sT)}, {s(sT)}, 6',
              'v_mov_b32 v12, 0', 's_mov_b64 exec, 1',
              f'buffer_store_dwordx4 v[0:3], v12, s[24:27], {s(sT)} offen',
              f'buffer_store_dwordx4 v[4:7], v12, s[24:27], {s(sT)} offen offset:16',
              f'buffer_store_dwordx4 v[8:11], v12, s[24:27], {s(sT)} offen offset:32']
    L += ['s_endpgm']
    return L

def main():
    pro, pend0 = prologue()
    if OPT.get('memtest'):
        L = [f'{NAME}:'] + pro + finish() + ['L_slow:', 'L_end:', 's_endpgm']
        return write(L)
    loop, pend = loop_code()
    assert [x[0] for x in pend0] == [x[0] for x in pend][-len(pend0):] or not pend0, (pend0, pend)
    L = [f'{NAME}:'] + pro + stamp(5) + loop
    L += ['L_tail:'] + stamp(6) + [f's_cmp_gt_u32 {s(sNKB)}, 1', 's_cbranch_scc1 L_tail234']
    L += ['; ---- tail nkb=1'] + tail(1, pend) + finish()
    L += ['L_tail234:', f's_cmp_eq_u32 {s(sNKB)}, 3', 's_cbranch_scc1 L_tail3', f's_cmp_eq_u32 {s(sNKB)}, 4', 's_cbranch_scc1 L_tail4']
    L += tail(2, pend) + finish() + ['L_tail3:'] + tail(3, pend) + finish() + ['L_tail4:'] + tail(4, pend) + finish()
    L += slow() + ['L_end:', 's_endpgm']
    write(L)

def write(L):
    L, nn = fix_hazards(L)
    print('nops inserted:', nn, ' leftovers:', sorted(LEFT))
    hdr = open('standalone__paged_block_table_kv_pagedattention__prompt.s.ref').read().split('; Override')[0]
    txt = hdr + '; Generated by gen/gen.py (hand-written generator).\n'
    txt += '; @launch grid=(256,1,1) block=(256,1,1) lds=163840\n'
    txt += f'.amdgcn_target "amdgcn-amd-amdhsa--gfx950"\n.text\n.globl {NAME}\n.p2align 8\n.type {NAME},@function\n'
    for l in L:
        txt += (l if l.endswith(':') or l.startswith(('.', ';')) else '    ' + l) + '\n'
    txt += f'''.section .rodata,"a"
.p2align 6
.amdhsa_kernel {NAME}
  .amdhsa_next_free_vgpr 472
  .amdhsa_next_free_sgpr 102
  .amdhsa_accum_offset 256
  .amdhsa_group_segment_fixed_size 0
  .amdhsa_kernarg_size 64
  .amdhsa_user_sgpr_count 2
  .amdhsa_user_sgpr_kernarg_segment_ptr 1
  .amdhsa_system_sgpr_workgroup_id_x 1
.end_amdhsa_kernel
'''
    open(sys.argv[1], 'w').write(txt)
    if OPT.get('show'):
        for g in range(NG): print(g, PAT[g])
main()
```

```python
import sys
from asmcheck import parse, hazards, fix_hazards

NAME = 'standalone__paged_block_table_kv_pagedattention__prompt_kernel'
FL = {0: '', 1: ' nt', 2: ' sc1', 3: ' sc0 sc1', 4: ' sc1 nt', 5: ' sc0 sc1 nt', 6: ' sc0', 7: ' sc0 nt'}
OPT = dict(qf=1, kf=0, of=0, delta=9, stamp=0, lat=8, forceslow=0, skipdma=1)
for a in sys.argv[2:]:
    k, v = a.split('='); OPT[k] = int(v, 0)

S0, P0, KA, VA, BT, DK, DV, IDX, OV, MK, T0, O0 = 0, 64, 96, 100, 108, 112, 113, 114, 115, 116, 120, 128
aQ, aK, aV, aL, aONE = 0, 64, 128, 192, 208
sW, sCL, sN, sIT, sLN = 3, 36, 37, 38, 39
SETS = (56, 60)
sMK, sMV, sC, sC2, sNKB, sVOFF, sFORCE, sKB, sVB, sCLT = 64, 65, 66, 67, 68, 69, 70, 71, 72, 73
sQ1, sQ2, sQ3 = 74, 75, 76
sT = 78
sST = 84
KBYTES = 132 * 65536
LAT = OPT['lat']
NEG = 0xf149f2ca

def v(b, n=1): return f'v{b}' if n == 1 else f'v[{b}:{b+n-1}]'
def a(b, n=1): return f'a{b}' if n == 1 else f'a[{b}:{b+n-1}]'
def s(b, n=1): return f's{b}' if n == 1 else f's[{b}:{b+n-1}]'

def qk(q, kb, ks, mask=False):
    D = v(S0 + 16*q + 4*kb, 4)
    C = D if ks else (v(MK, 4) if mask else '0')
    return f'v_mfma_f32_16x16x32_bf16 {D}, {a(aK+16*kb+4*ks,4)}, {a(aQ+16*q+4*ks,4)}, {C}'
def pv(q, db, ks, vbase=None):
    D = v(O0 + 32*q + 4*db, 4)
    A = a(aV + (2*db+ks)*4, 4) if vbase is None else a(vbase + 4*db, 4)
    return f'v_mfma_f32_16x16x32_bf16 {D}, {A}, {v(P0+8*q+4*ks,4)}, {D}'
def sm(q):
    return f'v_smfmac_f32_16x16x64_bf16 {a(aL+4*q,4)}, {a(aONE,4)}, {v(P0+8*q,8)}, {v(IDX)}'
def qkg(q, nkb=4, mask=False): return [qk(q, kb, ks, mask and kb == nkb-1) for kb in range(nkb) for ks in range(4)]
def pvg(q, nks=2, vbase=None): return [pv(q, db, ks, vbase) for db in range(8) for ks in range(nks)] + [sm(q)]

def i_exp(q, n): return f'v_exp_f32 {v(S0+16*q+n)}, {v(S0+16*q+n)}'
def i_cvt(q, i): return f'v_cvt_pk_bf16_f32 {v(P0+8*q+i)}, {v(S0+16*q+2*i)}, {v(S0+16*q+2*i+1)}'
def i_kread(kb, ks, slot, tile): return f'ds_read_b128 {a(aK+16*kb+4*ks,4)}, {v(KA+ks)} offset:{slot*16384+kb*1024}'
def i_vread(db, ks, t, slot, tile, vbase=None):
    d = (aV + (2*db+ks)*4 if vbase is None else vbase + 4*db) + 2*t
    return f'ds_read_b64_tr_b16 {a(d,2)}, {v(VA+db)} offset:{slot*16384+(2*ks+t)*1024}'
def i_dma(isv, i, soff, tile):
    return f'buffer_load_dwordx4 {v(DV if isv else DK)}, {s(12 if isv else 8,4)}, {s(soff+i)} offen offset:{i*1024}{FL[OPT["kf"]]} lds'
def i_m0(isv, slot): return f's_add_u32 m0, {s(sMV if isv else sMK)}, {slot*16384}'

class Op:
    def __init__(self, key, cls, rel, dl, text, deps=(), fifo=None):
        self.key, self.cls, self.rel, self.dl, self.text, self.deps, self.fifo = key, cls, rel, dl, text, list(deps), fifo
        self.gap = None
class Gap:
    def __init__(self): self.sc, self.mem, self.valu, self.post = [], [], [], []; self.block = None

def schedule(ngaps, ops, gaps=None, overflow=False, g0=0):
    gaps = gaps or [Gap() for _ in range(ngaps)]
    byk = {o.key: o for o in ops}
    todo = list(ops)
    def ready(o, g):
        if o.rel > g: return False
        for d in o.deps:
            p = byk.get(d)
            if p is not None and (p.gap is None or p.gap >= g): return False
        if o.fifo is not None:
            p = byk[o.fifo]
            if p.gap is None: return False
            if o.cls == 'D' and p.gap >= g: return False
        return True
    def put(o, g):
        o.gap = g; todo.remove(o)
        (gaps[g].mem if o.cls in 'DRT' else gaps[g].valu).append(o)
    for g in range(g0, ngaps):
        if gaps[g].block != 'all':
            cand = sorted((o for o in todo if ready(o, g)), key=lambda o: o.dl)
            if gaps[g].block == 'half': cand = [o for o in cand if o.cls == 'H'][:1]
            if cand:
                top = cand[0]
                halves = [o for o in cand if o.cls in 'RTH']
                full = [o for o in cand if o.cls in 'ED']
                if top.cls in 'RTH' and len(halves) == 1 and full and top.dl - g > 6 and top.fifo is None: top = full[0]
                put(top, g)
                if top.cls in 'RTH' and gaps[g].block != 'half':
                    cand2 = sorted((o for o in todo if o.cls in 'RTH' and ready(o, g)), key=lambda o: o.dl)
                    cand2 = [o for o in cand2 if not (o.cls == 'R' and top.cls == 'R')]
                    if cand2:
                        pick = cand2[0]
                        if top.cls in 'RT' and pick.cls in 'RT' and pick.dl - g > 8:
                            h = [o for o in cand2 if o.cls == 'H']
                            if h: pick = h[0]
                        put(pick, g)
        late = [o for o in todo if o.dl <= g]
        if late:
            if not overflow: raise RuntimeError(f'deadline miss at gap {g}: {[o.key for o in late]}')
            def force(o):
                if o.gap is not None: return
                for d in o.deps + ([o.fifo] if o.fifo else []):
                    if d in byk: force(byk[d])
                assert o.rel <= g, (o.key, o.rel, g)
                o.gap = g; todo.remove(o); gaps[g].post.append(o.text)
            for o in sorted(late, key=lambda o: ({'R': 0, 'T': 0, 'D': 0, 'E': 1, 'H': 2}[o.cls], o.dl)): force(o)
    return gaps, todo

def emit(mf, gaps, off=0):
    out = []
    for i, m in enumerate(mf):
        g = gaps[off + i]
        out.append(m)
        out += g.sc
        out += [o.text for o in g.mem] + [o.text for o in g.valu] + g.post
    return out

def softmax_ops(tile, q, qkstart, pvstart, nkb=4, prel=0, fixed=None):
    ops = []
    n = 4 * nkb
    for e in range(n):
        kb = e // 4
        if fixed is not None: ops.append(Op(('e', tile, q, e), 'E', qkstart + fixed + 2*e, qkstart + fixed + 2*e, i_exp(q, e)))
        else: ops.append(Op(('e', tile, q, e), 'E', qkstart + 4*kb + 3 + 5, pvstart - 4 - 2*(n - 1 - e), i_exp(q, e)))
    for i in range(2 * nkb):
        ops.append(Op(('c', tile, q, i), 'H', prel, pvstart - 3 - (2*nkb - 1 - i), i_cvt(q, i),
                      deps=[('e', tile, q, 2*i), ('e', tile, q, 2*i+1)]))
    for i in range(2 * nkb, 8):
        ops.append(Op(('z', tile, q, i), 'H', prel, pvstart - 3, f'v_mov_b32 {v(P0+8*q+i)}, 0'))
    return ops

NG = 132
LOOP_MF = qkg(0) + pvg(2) + qkg(1) + pvg(3) + qkg(2) + pvg(0) + qkg(3) + pvg(1)
assert len(LOOP_MF) == NG
BARG = 47
DMAG = [10, 14, 18, 22, 26, 30, 34, 38]

def steady():
    NT = 6
    ops = []
    gaps = [Gap() for _ in range(NG * (NT + 1))]
    for j in range(NT):
        b = NG * j
        for q in range(4):
            pvs = b + 82 + 33*q
            ops += softmax_ops(j, q, b + 33*q, pvs, prel=pvs - NG + 17, fixed=OPT['delta'])
        for db in range(8):
            for ks in range(2):
                for t in range(2):
                    f = 2*db + ks
                    ops.append(Op(('v', j, db, ks, t), 'T', max(b + 49 + f + 1, b + BARG + 1), b + 82 + f - LAT - (1 - t), ('v', db, ks, t)))
        for kb in range(4):
            for ks in range(4):
                f = 4*kb + ks
                ops.append(Op(('k', j, kb, ks), 'R', b + 99 + f + 1, min(b + NG - 2 - (15 - f), b + NG + f - LAT), ('k', kb, ks),
                              deps=[('k', j, (f-1)//4, (f-1)%4)] if f else []))
        for i in range(4):
            ops.append(Op(('rl', j, i), 'H', b, b + 20 + i, ('rl', i)))
        for i in range(8):
            ops.append(Op(('d', j, i), 'D', b + DMAG[i], b + DMAG[i], ('d', i),
                          deps=[('rl', j, x) for x in range(4)] if i >= 4 else []))
        gaps[b + BARG].block = 'all'
        gaps[b + NG - 1].block = 'half'
    schedule(NG * NT, ops, gaps, overflow=False) if False else None
    schedule(NG * (NT + 1), ops, gaps)
    def pattern(j):
        return [[(o.key[0], o.key[1] - j) + o.key[2:] for o in gaps[NG*j + g].mem + gaps[NG*j + g].valu] for g in range(NG)]
    p3, p4 = pattern(3), pattern(4)
    assert p3 == p4, 'no steady state'
    return p3
PAT = steady()
LEFT = {k for g in PAT for k in g if k[1] == -1}
assert all(k[0] in 'ec' for k in LEFT), LEFT

def key_text(k, j4, tile):
    kind = k[0]
    if kind == 'e': return i_exp(k[2], k[3])
    if kind == 'c': return i_cvt(k[2], k[3])
    if kind == 'v': return i_vread(k[2], k[3], k[4], j4, tile)
    if kind == 'k': return i_kread(k[2], k[3], (j4 + 1) % 4, tile + 1)
    if kind == 'rl': return f'v_readlane_b32 {s(SETS[(j4+3)%2] + k[2])}, {v(BT+k[2])}, {s(sLN)}'
    if kind == 'd':
        i = k[2]
        if i < 4: return i_dma(1, i, SETS[j4 % 2], tile + 2)
        return i_dma(0, i - 4, SETS[(j4 + 3) % 2], tile + 3)
    raise KeyError(k)

class Txt:
    def __init__(self, t): self.text = t

def add_lgkm_waits(lines, pre_ds=(), lead=None):
    ins = parse(lines)
    q = [(set(r), -age) for r, age in pre_ds]
    out = []; gap = -1
    lastm = None
    q_at_lastm = None
    for x in ins:
        if x.cls == 'mfma':
            needed = [i for i, (r, g) in enumerate(q) if r & x.r]
            if needed:
                k = max(needed)
                if lastm is not None and k < q_at_lastm:
                    visible = q_at_lastm
                    while k + 1 < visible and q[k + 1][1] <= gap - LAT: k += 1
                    n = min(15, visible - 1 - k)
                    out.insert(lastm, f's_waitcnt lgkmcnt({n})')
                    k = visible - 1 - n
                else:
                    n = min(15, len(q) - 1 - k)
                    out.append(f's_waitcnt lgkmcnt({n})')
                    k = len(q) - 1 - n
                q = q[k + 1:]
            gap += 1
            out.append(x.text); lastm = len(out); q_at_lastm = len(q)
        else:
            if x.cls == 'ds': q.append((set(x.w), gap))
            if x.cls == 'wait' and x.lgkm is not None:
                q = q[max(0, len(q) - x.lgkm):] if x.lgkm else []
                if q_at_lastm is not None: q_at_lastm = min(q_at_lastm, len(q))
            out.append(x.text)
    return out, [(r, gap - g) for r, g in q]

def body(j4, tile, exit_label, last):
    gaps = [Gap() for _ in range(NG)]
    for g in range(NG):
        for k in PAT[g]:
            t = Txt(key_text(k, j4, tile))
            (gaps[g].mem if k[0] in 'vkd' else gaps[g].valu).append(t)
    gd = {k[2]: g for g in range(NG) for k in PAT[g] if k[0] == 'd'}
    grl = max(g for g in range(NG) for k in PAT[g] if k[0] == 'rl')
    gaps[gd[0] - 2].sc.append(i_m0(1, (j4 + 2) % 4))
    gaps[gd[4] - 2].sc.append(i_m0(0, (j4 + 3) % 4))
    if OPT['skipdma']:
        gaps[1].sc.append(f's_cmp_le_u32 {s(sLN)}, {s(sN)}')
        gaps[2].sc.append(f's_cselect_b32 s14, {s(sVB)}, 0')
        gaps[3].sc.append(f's_cmp_lt_u32 {s(sLN)}, {s(sN)}')
        gaps[4].sc.append(f's_cselect_b32 s10, {s(sKB)}, 0')
    gaps[max(grl + 1, 50)].sc.append(f's_add_u32 {s(sLN)}, {s(sLN)}, 1')
    gaps[BARG - 1].sc.append('s_waitcnt vmcnt(16)')
    gaps[BARG].sc.append('s_barrier')
    gaps[NG - 2].sc.append(f's_sub_u32 {s(sIT)}, {s(sIT)}, 1')
    lines = emit(LOOP_MF, gaps)
    return lines

def loop_code():
    l0 = body(1, 1, None, False)
    _, pend = add_lgkm_waits(l0)
    out = ['.p2align 6', 'L_loop:']
    for u in range(4):
        j4 = (u + 1) % 4
        l, pend2 = add_lgkm_waits(body(j4, u + 1, None, False), pend)
        assert [x[0] for x in pend2] == [x[0] for x in pend]
        out += [f'; ---- body tile%4 == {j4}'] + l
        if u < 3: out.append('s_cbranch_scc1 L_tail')
        else: out += ['s_cbranch_scc0 L_loop']
    return out, pend

def epi_list(q, first, pk=False):
    t = T0 + 2 * (q & 1)
    o = O0 + 32*q
    L = [('H', f'v_accvgpr_read_b32 {v(t)}, {a(aL+4*q)}'),
         ('H', f'v_accvgpr_read_b32 {v(t+1)}, {a(aL+4*q+1)}'),
         ('H', f'v_add_f32 {v(t)}, {v(t)}, {v(t+1)}'),
         ('H', f'v_rcp_f32 {v(t+1)}, {v(t)}'),
         ('H', f'v_subrev_u32 {v(t)}, 0x2b800000, {v(t)}')]
    L.append(('H', f'v_mov_b32 {v(T0+4)}, {v(t)}' if first else f'v_max_u32 {v(T0+4)}, {v(T0+4)}, {v(t)}'))
    def muls(u): return [('M', (o + 8*u + i, t + 1)) for i in range(8)]
    def cvts(u): return [('H', f'v_cvt_pk_bf16_f32 {v(o+8*u+i)}, {v(o+8*u+2*i)}, {v(o+8*u+2*i+1)}') for i in range(4)]
    def swaps(u): return [('H', f'v_permlane16_swap_b32 {v(o+8*u+i)}, {v(o+8*u+2+i)}') for i in range(2)]
    def store(u):
        so = '0' if q == 0 else s(sQ1 + q - 1)
        return [('D', f'buffer_store_dwordx4 {v(o+8*u,4)}, {v(OV)}, s[16:19], {so} offen offset:{64*u}{FL[OPT["of"]]}')]
    L += muls(0) + cvts(0) + muls(1) + swaps(0) + cvts(1) + store(0) + muls(2) + swaps(1) + cvts(2) + store(1) \
       + muls(3) + swaps(2) + cvts(3) + store(2) + [('H', 's_nop 0')] + swaps(3) + store(3)
    return L
def mul_text(x): return f'v_mul_f32 {v(x[0])}, {v(x[1])}, {v(x[0])}'

def tail(nkb, pend):
    nks = 1 if nkb <= 2 else 2
    vbase = aK + 32 if nkb <= 2 else None
    G = {}
    if nkb <= 2:
        order = [('qk', 0), ('qk', 1), ('pvp', 2), ('qk', 2), ('pv', 0), ('pvp', 3), ('pv', 1), ('qk', 3), ('pv', 2), ('pv', 3)]
    else:
        order = [('qk', 0), ('pvp', 2), ('qk', 1), ('pvp', 3), ('qk', 2), ('pv', 0), ('qk', 3), ('pv', 1), ('pv', 2), ('pv', 3)]
    mf = []
    for kind, q in order:
        G[(kind, q)] = len(mf)
        mf += qkg(q, nkb, True) if kind == 'qk' else (pvg(q) if kind == 'pvp' else pvg(q, nks, vbase))
    n = len(mf)
    ops = []
    for q in (2, 3):
        pvs = G[('pvp', q)]
        for o in softmax_ops(-1, q, -100, pvs, prel=0):
            if (o.key[0], -1) + o.key[2:] in LEFT:
                o.rel = 0
                o.dl = max(o.dl, 0)
                o.dl = min(o.dl, G[('qk', q)] - 1) if G[('qk', q)] > 0 else o.dl
                ops.append(o)
    for q in range(4):
        prel = G[('pvp', q)] + 17 if q >= 2 else 0
        so = softmax_ops(0, q, G[('qk', q)], G[('pv', q)], nkb, prel)
        for o in so: o.dl = max(o.dl, o.rel, min(G[('pv', q)] - 1, o.rel + 1) if o.cls == 'E' else min(G[('pv', q)] - 1, G[('qk', q)] + 4*nkb + 4))
        ops += so
    for db in range(8):
        ops.append(Op(('va', db), 'H', 0, 3 + db // 2, f'v_add_u32 {v(VA+db)}, {s(sVOFF)}, {v(VA+db)}'))
    for db in range(8):
        for ks in range(nks):
            for t in range(2):
                f = nks*db + ks
                rel = 2 if vbase else G[('pvp', 3)] + 2*db + ks + 1
                ops.append(Op(('v', db, ks, t), 'T', rel, G[('pv', 0)] + f - LAT - (1 - t), i_vread(db, ks, t, 0, 'T', vbase), deps=[('va', db)]))
    prev = None; epi = []
    for q in range(4):
        rel = G[('pv', q)] + 8*nks + 5
        for i, (c, t) in enumerate(epi_list(q, q == 0)):
            o = Op(('ep', q, i), 'D' if c == 'D' else 'H', rel, 10000 + 100*q + i, mul_text(t) if c == 'M' else t, fifo=prev)
            o.raw = (c, t); prev = o.key; epi.append(o)
    ops += epi
    gaps = [Gap() for _ in range(n)]
    gaps[0].sc.append('s_waitcnt vmcnt(8)')
    gaps[1].sc.append('s_barrier'); gaps[1].block = 'all'
    gaps, todo = schedule(n, ops, gaps, overflow=True)
    lines = emit(mf, gaps)
    assert all(o.key[0] == 'ep' for o in todo), [o.key for o in todo]
    i = 0
    while i < len(todo):
        c, t = todo[i].raw
        if c == 'M' and i + 1 < len(todo) and todo[i+1].raw[0] == 'M' and t[0] % 2 == 0 and todo[i+1].raw[1][0] == t[0] + 1:
            r = t[1]
            lines.append(f'v_pk_mul_f32 {v(t[0],2)}, {v(t[0],2)}, {v(r-1,2)} op_sel:[0,1] op_sel_hi:[1,1]'); i += 2
        else:
            lines.append(todo[i].text); i += 1
    lines, _ = add_lgkm_waits(lines, pend)
    return lines

def scale_q(q):
    out = []
    for h in range(0, 16, 4):
        for i in range(4):
            x = S0 + 16*q + h + i; t = T0 + 2*i
            out += [f'v_lshlrev_b32 {v(t)}, 16, {v(x)}', f'v_and_b32 {v(t+1)}, 0xffff0000, {v(x)}']
        for i in range(4):
            t = T0 + 2*i
            out.append(f'v_pk_mul_f32 {v(t,2)}, {v(t,2)}, {s(sC,2)}')
        for i in range(4):
            x = S0 + 16*q + h + i; t = T0 + 2*i
            out.append(f'v_cvt_pk_bf16_f32 {v(x)}, {v(t)}, {v(t+1)}')
        for i in range(4):
            x = S0 + 16*q + h + i
            out.append(f'v_accvgpr_write_b32 {a(aQ+16*q+h+i)}, {v(x)}')
    return out
def qload(q): return [f'buffer_load_dwordx4 {v(S0+16*q+4*ks,4)}, {v(T0+7)}, s[4:7], {"0" if q == 0 else s(sQ1+q-1)} offen offset:{64*ks}{FL[OPT["qf"]]} ; ld Q{q}' for ks in range(4)]
def dma4(isv, tile):
    soff = 40 + 4*tile if tile < 3 else SETS[1]
    return [i_m0(isv, tile), 's_nop 0'] + [i_dma(isv, i, soff, tile) for i in range(4)]
def btprep(tile):
    out = []
    for i in range(4):
        src = 40 + 4*tile + i; dst = src if tile < 3 else SETS[1] + i
        out.append(f's_lshl_b32 {s(dst)}, {s(src)}, 16')
        if i < 3: out.append(f's_or_b32 {s(dst)}, {s(dst)}, {(3-i)*1024}')
    return out
def stamp(i): return [f's_memtime {s(sST+2*i,2)}'] if OPT['stamp'] else []

def resolve_waitvm(lines):
    out = []; vm = []
    for l in lines:
        if l.startswith('WAITVM'):
            tags = l.split(None, 1)[1].split('|')
            last = max(i for i, t in enumerate(vm) if t in tags)
            out.append(f's_waitcnt vmcnt({len(vm) - 1 - last}) ; {tags}')
        else:
            if l.startswith('buffer_'): vm.append(l.split(';')[1].strip() if ';' in l else '')
            out.append(l)
    return out

def memtest(L):
    t = T0; mt = OPT['memtest']
    srd = [f's_add_u32 s8, s26, {s(sT)}', 's_addc_u32 s9, s27, 0', 's_sub_u32 s8, s8, 3072', 's_subb_u32 s9, s9, 0',
          f's_add_u32 s12, s28, {s(sT)}', 's_addc_u32 s13, s29, 0', 's_sub_u32 s12, s12, 3072', 's_subb_u32 s13, s13, 0',
          f's_add_u32 s16, s34, {s(sT+1)}', 's_addc_u32 s17, s35, 0']
    nt = FL[OPT['qf']]
    ql = qload
    def qdma(q):
        o = [f's_add_u32 m0, {s(sMK)}, {0x8000 + q*16384}', 's_nop 0']
        return o + [f'buffer_load_dwordx4 {v(t+5)}, s[4:7], {"0" if q == 0 else s(sQ1+q-1)} offen offset:{1024*i}{nt} lds ; ld Q{q}' for i in range(4)]
    L += stamp(1)
    L += [f'v_lshlrev_b32 {v(t+5)}, 14, {v(t)}', f'v_lshl_add_u32 {v(t+5)}, {v(t+1)}, 4, {v(t+5)}']
    bt = ['s_waitcnt lgkmcnt(0)'] + stamp(2) + btprep(0) + btprep(1) + btprep(2) + btprep(3)
    W = lambda tag, i: [f'WAITVM {tag}'] + stamp(i)
    if mt == 1: L += ql(0) + ql(1) + ql(2) + ql(3) + srd + bt + W('ld Q0', 3) + W('ld Q1', 4) + W('ld Q2', 5) + W('ld Q3', 6)
    if mt == 2: L += qdma(0) + qdma(1) + qdma(2) + qdma(3) + srd + bt + W('ld Q0', 3) + W('ld Q1', 4) + W('ld Q2', 5) + W('ld Q3', 6)
    if mt == 3: L += srd + bt + dma4(0, 0) + W('dma K 0', 3) + dma4(1, 0) + W('dma V 0', 4) + dma4(0, 1) + W('dma K 1', 5) + ql(0) + W('ld Q0', 6)
    if mt == 4: L += ql(0) + srd + bt + dma4(0, 0) + W('ld Q0', 3) + W('dma K 0', 4) + ql(1) + ql(2) + ql(3) + W('ld Q1', 5) + W('ld Q3', 6)
    if mt == 5: L += ql(0) + srd + bt + dma4(0, 0) + ql(1) + ql(2) + ql(3) + W('ld Q0', 3) + W('dma K 0', 4) + W('ld Q1', 5) + W('ld Q3', 6)
    if mt == 6: L += ql(0) + ql(1) + srd + bt + dma4(0, 0) + ql(2) + ql(3) + W('ld Q0', 3) + W('dma K 0', 4) + W('ld Q2', 5) + W('ld Q3', 6)
    if mt == 7: L += srd + bt + dma4(0, 0) + dma4(1, 0) + dma4(0, 1) + dma4(1, 1) + dma4(0, 2) + dma4(1, 2) + dma4(0, 3) + W('dma K 0', 3) + W('dma K 1', 4) + W('dma K 2', 5) + W('dma K 3', 6)
    if mt == 8: L += ql(0) + srd + bt + dma4(0, 0) + ql(1) + ql(2) + dma4(1, 0) + dma4(0, 1) + ql(3) + W('ld Q0', 3) + W('dma K 0', 4) + W('dma K 1', 5) + W('ld Q3', 6)
    allkv = lambda: dma4(0, 0) + dma4(1, 0) + dma4(0, 1) + dma4(1, 1) + dma4(0, 2) + dma4(1, 2) + dma4(0, 3)
    if mt == 9: L += srd + bt + allkv() + W('dma K 3', 3) + allkv() + W('dma K 3', 4) + allkv() + W('dma K 3', 5) + ql(0) + ql(1) + ql(2) + ql(3) + W('ld Q3', 6)
    if mt == 10:
        L += ql(0) + ql(1) + ql(2) + ql(3) + srd + bt + W('ld Q3', 3) + ql(0) + ql(1) + ql(2) + ql(3) + W('ld Q3', 4) + allkv() + W('dma K 3', 5) + ql(0) + ql(1) + ql(2) + ql(3) + W('ld Q3', 6)
    if mt in (11, 12, 13):
        L += [f's_lshl_b32 s56, {s(sW)}, 14', 's_add_u32 s56, s4, s56', 's_addc_u32 s57, s5, 0']
        pf = lambda lo, hi, step: [f's_load_dword s58, s[56:57], {o}' for o in range(lo, hi, step)]
        if mt == 11: L += ql(0) + ql(1) + pf(8192, 16384, 128) + stamp(2) + ql(2) + ql(3) + W('ld Q0', 3) + W('ld Q1', 4) + W('ld Q2', 5) + W('ld Q3', 6)
        if mt == 12: L += stamp(2) + pf(0, 16384, 128) + stamp(3) + ['s_waitcnt lgkmcnt(0)'] + stamp(4) + ql(0) + ql(1) + ql(2) + ql(3) + W('ld Q0', 5) + W('ld Q3', 6)
        if mt == 13: L += stamp(2) + pf(0, 16384, 64) + stamp(3) + ['s_waitcnt lgkmcnt(0)'] + stamp(4) + ql(0) + ql(1) + ql(2) + ql(3) + W('ld Q0', 5) + W('ld Q3', 6)
    if mt >= 20:
        L += srd + bt
        of = FL[OPT['of']]
        if mt == 20:
            for q in range(4):
                for u in range(4): L.append(f'buffer_store_dwordx4 v[{16*q+4*u}:{16*q+4*u+3}], {v(OV)}, s[16:19], {"0" if q == 0 else s(sQ1+q-1)} offen offset:{64*u}{of} ; st{q}')
        if mt == 21:
            for q in range(4):
                for u in range(4): L.append(f'buffer_store_dwordx4 v[{16*q+4*u}:{16*q+4*u+3}], {v(t+5)}, s[16:19], {"0" if q == 0 else s(sQ1+q-1)} offen offset:{1024*u}{of} ; st{q}')
        if mt == 22:
            L += [f'v_lshrrev_b32 {v(t+4)}, 3, {v(t+1)}', f'v_lshlrev_b32 {v(t+4)}, 8, {v(t+4)}', f'v_and_b32 {v(t+6)}, 7, {v(t+1)}',
                  f'v_lshl_add_u32 {v(t+4)}, {v(t+6)}, 4, {v(t+4)}', f'v_lshl_add_u32 {v(t+4)}, {v(t)}, 14, {v(t+4)}']
            for q in range(4):
                for u in range(4): L.append(f'buffer_store_dwordx4 v[{16*q+4*u}:{16*q+4*u+3}], {v(t+4)}, s[16:19], {"0" if q == 0 else s(sQ1+q-1)} offen offset:{128*(u&1)+2048*(u>>1)}{of} ; st{q}')
        L += stamp(3) + W('st0', 4) + W('st1', 5) + W('st3', 6)
    L += [f'v_mov_b32 {v(T0+4)}, 0', f's_mov_b32 {s(sFORCE)}, 0', 's_nop 3']
    return resolve_waitvm(L), None

def prologue():
    L = []
    A = L.append
    if OPT.get('xmask') is not None:
        L += [f's_and_b32 s3, s2, {OPT["xmask"]}', 's_cmp_lg_u32 s3, 0', 's_cbranch_scc1 L_end']
    if OPT.get('twice'): L += [f's_mov_b32 s101, {OPT["twice"]}', 'L_again:']
    L += ['s_cmp_ge_u32 s2, 256', 's_cbranch_scc1 L_end',
          's_load_dwordx8 s[24:31], s[0:1], 0', 's_load_dwordx4 s[32:35], s[0:1], 32']
    L += stamp(0) + ([f's_memrealtime s[100:101]'] if OPT['stamp'] else [])
    t = T0
    L += [f'v_lshrrev_b32 {v(t)}, 6, v0',
          f'v_and_b32 {v(t+1)}, 63, v0',
          f'v_readfirstlane_b32 {s(sW)}, {v(t)}',
          f'v_and_b32 {v(t+2)}, 15, v0',
          f'v_bfe_u32 {v(t+3)}, v0, 4, 2',
          f's_and_b32 {s(sT)}, s2, 7', f's_lshr_b32 {s(sT+1)}, s2, 3', f's_lshr_b32 {s(sT+2)}, {s(sT+1)}, 4',
          f's_lshl_b32 {s(sT)}, {s(sT)}, 1', f's_add_u32 {s(sT)}, {s(sT)}, {s(sT+2)}',
          f's_and_b32 {s(sT+1)}, {s(sT+1)}, 15', f's_lshl_b32 {s(sT+2)}, {s(sT)}, 4',
          f's_add_u32 {s(sT+1)}, {s(sT+1)}, {s(sT+2)}', f's_lshl_b32 {s(sT+1)}, {s(sT+1)}, 16',
          f's_lshl_b32 {s(sT)}, {s(sT)}, 8',
          f's_movk_i32 {s(sQ1)}, 0x1000', f's_movk_i32 {s(sQ2)}, 0x2000', f's_movk_i32 {s(sQ3)}, 0x3000',
          f'v_lshlrev_b32 {v(t+4)}, 14, {v(t)}', f'v_lshl_add_u32 {v(t+4)}, {v(t+2)}, 8, {v(t+4)}',
          f'v_lshl_add_u32 {v(t+7)}, {v(t+3)}, 4, {v(t+4)}',
          f'v_and_b32 {v(t+5)}, 1, {v(t+3)}', f'v_lshl_add_u32 {v(t+4)}, {v(t+5)}, 5, {v(t+4)}',
          f'v_lshrrev_b32 {v(t+5)}, 1, {v(t+3)}', f'v_lshl_add_u32 {v(OV)}, {v(t+5)}, 4, {v(t+4)}',
          f'v_lshl_add_u32 {v(t+4)}, {v(t)}, 2, {v(t+3)}',
          f'v_xor_b32 {v(t+5)}, {v(t+2)}, {v(t+4)}', f'v_lshlrev_b32 {v(t+5)}, 4, {v(t+5)}',
          f'v_lshl_add_u32 {v(DK)}, {v(t+4)}, 12, {v(t+5)}',
          f'v_and_b32 {v(t+5)}, 7, {v(t+4)}', f'v_lshlrev_b32 {v(t+5)}, 1, {v(t+5)}',
          f'v_xor_b32 {v(t+5)}, {v(t+2)}, {v(t+5)}', f'v_lshlrev_b32 {v(t+5)}, 4, {v(t+5)}',
          f'v_lshl_add_u32 {v(DV)}, {v(t+4)}, 12, {v(t+5)}',
          f'v_lshlrev_b32 {v(t+6)}, 4, {v(t+1)}',
          f's_lshl_b32 {s(sMK)}, {s(sW)}, 12', f's_add_u32 {s(sMV)}, {s(sMK)}, 0x10000',
          's_mov_b32 s6, 0x10000', 's_mov_b32 s7, 0x20000', 's_mov_b32 s11, 0x20000', 's_mov_b32 s15, 0x20000',
          's_mov_b32 s18, 0x10000', 's_mov_b32 s19, 0x20000', 's_movk_i32 s22, 0x200', 's_mov_b32 s23, 0x20000',
          f's_sub_u32 {s(sKB)}, {KBYTES+3072}, {s(sT)}', f's_mov_b32 {s(sVB)}, {s(sKB)}',
          f's_mov_b32 s10, {s(sKB)}', f's_mov_b32 s14, {s(sKB)}',
          's_waitcnt lgkmcnt(0)',
          f's_load_dword {s(sCL)}, s[32:33], 0', 's_load_dwordx16 s[40:55], s[30:31], 0',
          f's_add_u32 s4, s24, {s(sT+1)}', 's_addc_u32 s5, s25, 0',
          's_mov_b32 s20, s30', 's_mov_b32 s21, s31']
    if OPT.get('memtest'): return memtest(L)
    L += qload(0)
    L += [f'buffer_load_dwordx4 {v(BT,4)}, {v(t+6)}, s[20:23], 0 offen',
          f's_add_u32 s8, s26, {s(sT)}', 's_addc_u32 s9, s27, 0', 's_sub_u32 s8, s8, 3072', 's_subb_u32 s9, s9, 0',
          f's_add_u32 s12, s28, {s(sT)}', 's_addc_u32 s13, s29, 0', 's_sub_u32 s12, s12, 3072', 's_subb_u32 s13, s13, 0',
          f's_add_u32 s16, s34, {s(sT+1)}', 's_addc_u32 s17, s35, 0']
    L += [f'v_lshrrev_b32 {v(t+4)}, 2, {v(t+2)}', f'v_lshlrev_b32 {v(t+4)}, 4, {v(t+4)}',
          f'v_and_b32 {v(t+5)}, 3, {v(t+2)}', f'v_add_u32 {v(t+4)}, {v(t+4)}, {v(t+5)}',
          f'v_lshlrev_b32 {v(t+4)}, 8, {v(t+4)}',
          f'v_xor_b32 {v(t+5)}, {v(t+3)}, {v(t+2)}']
    for ks in range(4):
        L += [f'v_xor_b32 {v(KA+ks)}, {4*ks}, {v(t+5)}', f'v_lshl_add_u32 {v(KA+ks)}, {v(KA+ks)}, 4, {v(t+4)}']
    L += [f'v_bfe_u32 {v(t+5)}, {v(t+1)}, 2, 2',
          f'v_lshl_add_u32 {v(t+4)}, {v(t+3)}, 4, {v(t+5)}',
          f'v_lshlrev_b32 {v(t+4)}, 8, {v(t+4)}',
          f'v_and_b32 {v(MK)}, 3, {v(t+1)}', f'v_lshl_add_u32 {v(t+4)}, {v(MK)}, 3, {v(t+4)}',
          f'v_add_u32 {v(t+4)}, 0x10000, {v(t+4)}',
          f'v_lshl_add_u32 {v(t+5)}, {v(t+3)}, 2, {v(t+5)}', f'v_and_b32 {v(t+5)}, 7, {v(t+5)}']
    for db in range(8):
        L += [f'v_xor_b32 {v(VA+db)}, {db}, {v(t+5)}', f'v_lshl_add_u32 {v(VA+db)}, {v(VA+db)}, 5, {v(t+4)}']
    L += [f'v_and_b32 {v(t+4)}, 1, {v(t+1)}', f'v_mov_b32 {v(t+5)}, 0xaaaaaaaa',
          f'v_mul_lo_u32 {v(t+4)}, {v(t+4)}, {v(t+5)}', f'v_or_b32 {v(IDX)}, 0x44444444, {v(t+4)}',
          f'v_mov_b32 {v(t+5)}, 0x3f803f80']
    L += [f'v_accvgpr_write_b32 {a(aONE+i)}, {v(t+5)}' for i in range(4)]
    L += ['s_waitcnt lgkmcnt(0)'] + stamp(1)
    L += btprep(0) + dma4(0, 0) + qload(1) + qload(2)
    L += [f's_mov_b32 {s(sC)}, 0x3e0293ee',
          f's_cmp_lt_i32 {s(sCL)}, 1', f's_cselect_b32 {s(sC)}, 0, {s(sC)}', f's_cselect_b32 {s(sCL)}, 0x800, {s(sCL)}',
          f's_mov_b32 {s(sC2)}, {s(sC)}',
          f's_min_u32 {s(sCLT)}, {s(sCL)}, 0x800',
          f's_cmp_lt_u32 {s(sCLT)}, {4096 if OPT["forceslow"] else 129}', f's_cselect_b32 {s(sFORCE)}, 1, 0',
          f's_max_u32 {s(sCL)}, {s(sCLT)}, 129',
          f's_add_u32 {s(sN)}, {s(sCL)}, 63', f's_lshr_b32 {s(sN)}, {s(sN)}, 6',
          f's_sub_u32 {s(sIT)}, {s(sN)}, 3',
          f's_sub_u32 {s(sT)}, {s(sN)}, 1', f's_and_b32 {s(sVOFF)}, {s(sT)}, 3', f's_lshl_b32 {s(sVOFF)}, {s(sVOFF)}, 14',
          f's_lshl_b32 {s(sT)}, {s(sT)}, 6', f's_sub_u32 {s(sT)}, {s(sCL)}, {s(sT)}',
          f's_add_u32 {s(sNKB)}, {s(sT)}, 15', f's_lshr_b32 {s(sNKB)}, {s(sNKB)}, 4',
          f's_sub_u32 {s(sT)}, {s(sT)}, 1', f's_and_b32 {s(sT)}, {s(sT)}, 15',
          f's_mov_b32 {s(sLN)}, 4']
    L += [f'v_lshlrev_b32 {v(t+4)}, 2, {v(t+3)}', f'v_mov_b32 {v(t+5)}, {NEG:#x}']
    for r in range(4):
        L += [f'v_add_u32 {v(t+6)}, {r}, {v(t+4)}', f'v_cmp_lt_u32 vcc, {s(sT)}, {v(t+6)}', 's_nop 1',
              f'v_cndmask_b32 {v(MK+r)}, 0, {v(t+5)}, vcc']
    L += btprep(1) + btprep(2) + btprep(3)
    L += [f'v_mov_b32 {v(O0+i)}, 0' for i in range(128)]
    L += [f'v_accvgpr_write_b32 {a(aL+i)}, 0' for i in range(16)]
    L += [f'v_mov_b32 {v(MK-0+0)}, {v(MK)}'][:0]
    L += [f'v_mov_b32 {v(P0+31)}, {v(T0+7)}']
    L += ['WAITVM ld Q0'] + stamp(2) + scale_q(0)
    L += [f'v_mov_b32 {v(T0+7)}, {v(P0+31)}']
    L += dma4(1, 0) + dma4(0, 1) + qload(3)
    L += ['WAITVM ld BT']
    for i in range(4):
        L.append(f'v_lshlrev_b32 {v(BT+i)}, 16, {v(BT+i)}')
        if i < 3: L.append(f'v_or_b32 {v(BT+i)}, {(3-i)*1024}, {v(BT+i)}')
    L += ['WAITVM dma K 0', 's_barrier'] + stamp(3)
    L += [i_kread(kb, ks, 0, 0) for kb in range(4) for ks in range(4)]
    order = [('qk', 0), ('qk', 1), ('qk', 2), ('pv', 0), ('qk', 3), ('pv', 1)]
    G = {}; mf = []
    for kind, q in order:
        G[(kind, q)] = len(mf); mf += qkg(q) if kind == 'qk' else pvg(q)
    n = len(mf)
    ops = []
    for q in range(4):
        if q < 2: pvs = G[('qk', q)] + 23
        elif q == 2: pvs = G[('qk', 3)] + 2
        else: pvs = n + 2
        for o in softmax_ops(0, q, G[('qk', q)], pvs):
            if (o.key[0], -1) + o.key[2:] in LEFT: continue
            o.dl = max(o.dl, o.rel if o.cls == 'E' else G[('qk', q)] + 4*(o.key[3]//2) + 8)
            o.dl = min(o.dl, n - 1)
            ops.append(o)
    for db in range(8):
        for ks in range(2):
            for tt in range(2):
                f = 2*db + ks
                ops.append(Op(('v', db, ks, tt), 'T', G[('qk', 2)] - 1 + 1, G[('pv', 0)] + f - LAT - (1 - tt), i_vread(db, ks, tt, 0, 0)))
    for kb in range(4):
        for ks in range(4):
            f = 4*kb + ks
            ops.append(Op(('k', kb, ks), 'R', G[('qk', 3)] + f + 1, min(n - 2 - (15 - f), n + f - LAT), i_kread(kb, ks, 1, 1),
                          deps=[('k', (f-1)//4, (f-1)%4)] if f else []))
    gaps = [Gap() for _ in range(n)]
    gaps, todo = schedule(n, ops, gaps, overflow=True)
    assert not todo
    gaps[G[('qk', 1)] - 1].post += dma4(1, 1) + dma4(0, 2) + ['WAITVM ld Q1'] + scale_q(1) + ['s_nop 0']
    gaps[G[('qk', 2)] - 1].post += dma4(1, 2) + dma4(0, 3) + ['WAITVM ld Q2'] + scale_q(2) + ['WAITVM dma V 0|dma K 1', 's_barrier']
    gaps[G[('qk', 3)] - 1].post += ['WAITVM ld Q3'] + stamp(4) + scale_q(3) + ['s_nop 0']
    L += emit(mf, gaps)
    L = resolve_waitvm(L)
    L, pend = add_lgkm_waits(L)
    return L, pend

def slow():
    t = T0
    L = ['L_slow:', 's_waitcnt vmcnt(0) lgkmcnt(0)']
    M, LS, KV, VD0, VD1 = KA, BT, DK, DV, IDX
    L += [f's_mov_b32 s10, {s(sKB)}', f's_mov_b32 s14, {s(sVB)}',
          f'v_mbcnt_lo_u32_b32 {v(t+1)}, -1, 0', f'v_mbcnt_hi_u32_b32 {v(t+1)}, -1, {v(t+1)}',
          f'v_and_b32 {v(t+2)}, 15, {v(t+1)}', f'v_lshrrev_b32 {v(t+3)}, 4, {v(t+1)}',
          f'v_lshlrev_b32 {v(t+4)}, 12, {v(t+2)}', f'v_lshl_add_u32 {v(KV)}, {v(t+3)}, 4, {v(t+4)}',
          f'v_add_u32 {v(KV)}, 3072, {v(KV)}',
          f'v_lshlrev_b32 {v(t+4)}, 1, {v(t+3)}', f'v_xor_b32 {v(t+4)}, {v(t+2)}, {v(t+4)}',
          f'v_lshlrev_b32 {v(t+4)}, 4, {v(t+4)}', f'v_lshl_add_u32 {v(VD0)}, {v(t+3)}, 12, {v(t+4)}',
          f'v_add_u32 {v(VD0)}, 3072, {v(VD0)}',
          f'v_xor_b32 {v(t+4)}, 0x80, {v(t+4)}', f'v_lshl_add_u32 {v(VD1)}, {v(t+3)}, 12, {v(t+4)}',
          f'v_add_u32 {v(VD1)}, {3072 + 16384}, {v(VD1)}',
          f's_lshl_b32 {s(sMV)}, {s(sW)}, 13', f's_add_u32 {s(sMV)}, {s(sMV)}, 0x20000',
          f'v_bfe_u32 {v(t+5)}, {v(t+1)}, 2, 2', f'v_lshl_add_u32 {v(t+5)}, {v(t+3)}, 2, {v(t+5)}',
          f'v_lshlrev_b32 {v(t+4)}, 8, {v(t+5)}', f'v_and_b32 {v(t+6)}, 3, {v(t+1)}',
          f'v_lshl_add_u32 {v(t+4)}, {v(t+6)}, 3, {v(t+4)}', f'v_add_u32 {v(t+4)}, {s(sMV)}, {v(t+4)}',
          f'v_and_b32 {v(t+5)}, 7, {v(t+5)}']
    for db in range(8):
        L += [f'v_xor_b32 {v(VA+db)}, {db}, {v(t+5)}', f'v_lshl_add_u32 {v(VA+db)}, {v(VA+db)}, 5, {v(t+4)}']
    L += [f'v_lshlrev_b32 {v(MK)}, 2, {v(t+3)}']
    L += [f'v_mov_b32 {v(MK+1)}, {NEG:#x}']
    L += [f'v_mov_b32 {v(O0+i)}, 0' for i in range(128)]
    L += [f'v_mov_b32 {v(M+q)}, 0xff7fffff' for q in range(4)] + [f'v_mov_b32 {v(LS+q)}, 0' for q in range(4)]
    L += [f's_mov_b32 {s(sIT)}, 0', 'L_slow_loop:',
          f's_lshr_b32 {s(sT)}, {s(sIT)}, 2',
          f's_load_dwordx2 s[40:41], s[30:31], {s(sT)}', 's_waitcnt lgkmcnt(0)',
          's_lshl_b32 s40, s40, 16', 's_lshl_b32 s41, s41, 16']
    for kb in range(2):
        for ks in range(4):
            L.append(f'buffer_load_dwordx4 {a(aK+16*kb+4*ks,4)}, {v(KV)}, s[8:11], s{40+kb} offen offset:{64*ks}')
    for b in range(2):
        for p in range(4):
            L += [f's_add_u32 m0, {s(sMV)}, {b*4096 + p*1024}', f's_add_u32 s42, s{40+b}, {(p//2)*32768}',
                  f'buffer_load_dwordx4 {v(VD1 if p & 1 else VD0)}, s[12:15], s42 offen lds']
    L += ['s_waitcnt vmcnt(0)']
    for db in range(8):
        for tt in range(2):
            L.append(f'ds_read_b64_tr_b16 {a(aV+8*db+2*tt,2)}, {v(VA+db)} offset:{tt*4096}')
    L += [f's_sub_u32 {s(sT)}, {s(sCLT)}, {s(sIT)}', 's_waitcnt lgkmcnt(0)']
    for q in range(4):
        S = S0 + 16*q
        L += qkg(q, 2) + ['s_nop 7']
        for e in range(8):
            L += [f'v_add_u32 {v(t)}, {16*(e//4) + e%4}, {v(MK)}', f'v_cmp_gt_u32 vcc, {s(sT)}, {v(t)}', 's_nop 1',
                  f'v_cndmask_b32 {v(S+e)}, {v(MK+1)}, {v(S+e)}, vcc']
        L += [f'v_max3_f32 {v(t)}, {v(S)}, {v(S+1)}, {v(S+2)}', f'v_max3_f32 {v(t)}, {v(t)}, {v(S+3)}, {v(S+4)}',
              f'v_max3_f32 {v(t)}, {v(t)}, {v(S+5)}, {v(S+6)}', f'v_max3_f32 {v(t)}, {v(t)}, {v(S+7)}, {v(M+q)}',
              f'v_mov_b32 {v(t+1)}, {v(t)}', 's_nop 1', f'v_permlane16_swap_b32 {v(t)}, {v(t+1)}', f'v_max_f32 {v(t)}, {v(t)}, {v(t+1)}',
              f'v_mov_b32 {v(t+1)}, {v(t)}', 's_nop 1', f'v_permlane32_swap_b32 {v(t)}, {v(t+1)}', f'v_max_f32 {v(t)}, {v(t)}, {v(t+1)}',
              f'v_sub_f32 {v(t+1)}, {v(M+q)}, {v(t)}', f'v_exp_f32 {v(t+1)}, {v(t+1)}', f'v_mov_b32 {v(M+q)}, {v(t)}']
        L += [f'v_sub_f32 {v(S+e)}, {v(S+e)}, {v(t)}' for e in range(8)]
        L += [f'v_exp_f32 {v(S+e)}, {v(S+e)}' for e in range(8)]
        L += [f'v_mul_f32 {v(LS+q)}, {v(LS+q)}, {v(t+1)}']
        L += [f'v_mul_f32 {v(O0+32*q+i)}, {v(O0+32*q+i)}, {v(t+1)}' for i in range(32)]
        L += [i_cvt(q, i) for i in range(4)]
        for i in range(4):
            L += [f'v_lshlrev_b32 {v(t)}, 16, {v(P0+8*q+i)}', f'v_and_b32 {v(t+1)}, 0xffff0000, {v(P0+8*q+i)}',
                  f'v_add_f32 {v(LS+q)}, {v(LS+q)}, {v(t)}', f'v_add_f32 {v(LS+q)}, {v(LS+q)}, {v(t+1)}']
        L += [pv(q, db, 0) for db in range(8)]
    L += [f's_add_u32 {s(sIT)}, {s(sIT)}, 32', f's_cmp_lt_u32 {s(sIT)}, {s(sCLT)}', 's_cbranch_scc1 L_slow_loop', 's_nop 7']
    for q in range(4):
        o = O0 + 32*q
        L += [f'v_mov_b32 {v(t)}, {v(LS+q)}', f'v_mov_b32 {v(t+1)}, {v(LS+q)}', 's_nop 1',
              f'v_permlane16_swap_b32 {v(t)}, {v(t+1)}', f'v_add_f32 {v(t)}, {v(t)}, {v(t+1)}',
              f'v_mov_b32 {v(t+1)}, {v(t)}', 's_nop 1', f'v_permlane32_swap_b32 {v(t)}, {v(t+1)}', f'v_add_f32 {v(t)}, {v(t)}, {v(t+1)}',
              f'v_rcp_f32 {v(t)}, {v(t)}', 's_nop 0']
        L += [f'v_mul_f32 {v(o+i)}, {v(o+i)}, {v(t)}' for i in range(32)]
        for u in range(4):
            L += [f'v_cvt_pk_bf16_f32 {v(o+8*u+i)}, {v(o+8*u+2*i)}, {v(o+8*u+2*i+1)}' for i in range(4)]
        for u in range(4):
            L += [f'v_permlane16_swap_b32 {v(o+8*u+i)}, {v(o+8*u+2+i)}' for i in range(2)]
        for u in range(4):
            L.append(f'buffer_store_dwordx4 {v(o+8*u,4)}, {v(OV)}, s[16:19], {"0" if q == 0 else s(sQ1+q-1)} offen offset:{64*u}')
    L += ['s_endpgm']
    return L

def finish():
    L = [f'v_cmp_lt_u32 vcc, 0x28000000, {v(T0+4)}',
         f's_cmp_lg_u32 {s(sFORCE)}, 0', 's_cbranch_scc1 L_slow', 's_nop 3', 's_cbranch_vccnz L_slow']
    if OPT.get('fixed'):
        global NFIX
        NFIX = globals().get('NFIX', 0) + 1
        ph = OPT.get('phase')
        L += ['s_waitcnt vmcnt(0) lgkmcnt(0)', f's_mov_b32 {s(sT+4)}, {OPT["fixed"]}']
        if ph:
            L += [f's_sub_u32 {s(sT+5)}, {s(sST+2*ph)}, {s(sST+2*OPT.get("phase0",0))}', f's_lshr_b32 {s(sT+5)}, {s(sT+5)}, 3', f's_add_u32 {s(sT+4)}, {s(sT+4)}, {s(sT+5)}']
        L += [f'L_spin{NFIX}:', f's_memrealtime {s(sT,2)}', 's_waitcnt lgkmcnt(0)', f's_sub_u32 {s(sT)}, {s(sT)}, s100',
              f's_cmp_lt_u32 {s(sT)}, {s(sT+4)}', f's_cbranch_scc1 L_spin{NFIX}', 's_endpgm']
        return L
    if OPT.get('twice'):
        L += ['s_cmp_eq_u32 s101, 0', 's_cbranch_scc1 L_end', 's_sub_u32 s101, s101, 1', 's_waitcnt vmcnt(0) lgkmcnt(0)', 's_barrier',
              'v_mbcnt_lo_u32_b32 v0, -1, 0', 'v_mbcnt_hi_u32_b32 v0, -1, v0', f's_lshl_b32 {s(sT)}, {s(sW)}, 6', f'v_add_u32 v0, {s(sT)}, v0', 's_branch L_again']
    if OPT['stamp']:
        L += [f's_memtime {s(sST+14,2)}', 's_waitcnt vmcnt(0)', f's_memtime {s(sT,2)}', f's_memrealtime {s(sT+2,2)}',
              f's_load_dwordx2 s[24:25], s[0:1], {56 if OPT["stamp"] == 1 else 48}', 's_waitcnt lgkmcnt(0)',
              f's_mov_b32 s26, {0x100000 if OPT["stamp"] == 1 else 64}', 's_mov_b32 s27, 0x20000']
        if OPT['stamp'] == 2:
            for i in range(1, 8): L.append(f's_sub_u32 {s(sST+2*i)}, {s(sST+2*i)}, {s(sST)}')
            L += [f's_sub_u32 {s(sT)}, {s(sT)}, {s(sST)}', f's_sub_u32 {s(sT+2)}, {s(sT+2)}, s100']
        for i in range(8): L.append(f'v_mov_b32 v{i}, {s(sST+2*i)}')
        L += [f'v_mov_b32 v8, {s(sT)}', f'v_mov_b32 v9, {s(sT+2)}', 'v_mov_b32 v10, s100', 'v_mov_b32 v11, 0',
              f's_lshl_b32 {s(sT)}, s2, 2', f's_add_u32 {s(sT)}, {s(sT)}, {s(sW)}', f's_lshl_b32 {s(sT)}, {s(sT)}, 6',
              'v_mov_b32 v12, 0', 's_mov_b64 exec, 1',
              f'buffer_store_dwordx4 v[0:3], v12, s[24:27], {s(sT)} offen',
              f'buffer_store_dwordx4 v[4:7], v12, s[24:27], {s(sT)} offen offset:16',
              f'buffer_store_dwordx4 v[8:11], v12, s[24:27], {s(sT)} offen offset:32']
    L += ['s_endpgm']
    return L

def main():
    pro, pend0 = prologue()
    if OPT.get('memtest'):
        L = [f'{NAME}:'] + pro + finish() + ['L_slow:', 'L_end:', 's_endpgm']
        return write(L)
    loop, pend = loop_code()
    assert [x[0] for x in pend0] == [x[0] for x in pend][-len(pend0):] or not pend0, (pend0, pend)
    L = [f'{NAME}:'] + pro + stamp(5) + loop
    L += ['L_tail:'] + stamp(6) + [f's_cmp_gt_u32 {s(sNKB)}, 1', 's_cbranch_scc1 L_tail234']
    L += ['; ---- tail nkb=1'] + tail(1, pend) + finish()
    L += ['L_tail234:', f's_cmp_eq_u32 {s(sNKB)}, 3', 's_cbranch_scc1 L_tail3', f's_cmp_eq_u32 {s(sNKB)}, 4', 's_cbranch_scc1 L_tail4']
    L += tail(2, pend) + finish() + ['L_tail3:'] + tail(3, pend) + finish() + ['L_tail4:'] + tail(4, pend) + finish()
    L += slow() + ['L_end:', 's_endpgm']
    write(L)

def write(L):
    L, nn = fix_hazards(L)
    print('nops inserted:', nn, ' leftovers:', sorted(LEFT))
    hdr = open('standalone__paged_block_table_kv_pagedattention__prompt.s.ref').read().split('; Override')[0]
    txt = hdr + '; Generated by gen/gen.py (hand-written generator).\n'
    txt += '; @launch grid=(256,1,1) block=(256,1,1) lds=163840\n'
    txt += f'.amdgcn_target "amdgcn-amd-amdhsa--gfx950"\n.text\n.globl {NAME}\n.p2align 8\n.type {NAME},@function\n'
    for l in L:
        txt += (l if l.endswith(':') or l.startswith(('.', ';')) else '    ' + l) + '\n'
    txt += f'''.section .rodata,"a"
.p2align 6
.amdhsa_kernel {NAME}
  .amdhsa_next_free_vgpr 472
  .amdhsa_next_free_sgpr 102
  .amdhsa_accum_offset 256
  .amdhsa_group_segment_fixed_size 0
  .amdhsa_kernarg_size 64
  .amdhsa_user_sgpr_count 2
  .amdhsa_user_sgpr_kernarg_segment_ptr 1
  .amdhsa_system_sgpr_workgroup_id_x 1
.end_amdhsa_kernel
'''
    open(sys.argv[1], 'w').write(txt)
    if OPT.get('show'):
        for g in range(NG): print(g, PAT[g])
main()
```

```python
import sys
from asmcheck import parse, hazards, fix_hazards

NAME = 'standalone__paged_block_table_kv_pagedattention__prompt_kernel'
FL = {0: '', 1: ' nt', 2: ' sc1', 3: ' sc0 sc1', 4: ' sc1 nt', 5: ' sc0 sc1 nt', 6: ' sc0', 7: ' sc0 nt'}
OPT = dict(qf=1, kf=0, of=0, delta=9, stamp=0, lat=8, forceslow=0, skipdma=1)
for a in sys.argv[2:]:
    k, v = a.split('='); OPT[k] = int(v, 0)

S0, P0, KA, VA, BT, DK, DV, IDX, OV, MK, T0, O0 = 0, 64, 96, 100, 108, 112, 113, 114, 115, 116, 120, 128
aQ, aK, aV, aL, aONE = 0, 64, 128, 192, 208
sW, sCL, sN, sIT, sLN = 3, 36, 37, 38, 39
SETS = (56, 60)
sMK, sMV, sC, sC2, sNKB, sVOFF, sFORCE, sKB, sVB, sCLT = 64, 65, 66, 67, 68, 69, 70, 71, 72, 73
sQ1, sQ2, sQ3 = 74, 75, 76
sT = 78
sST = 84
KBYTES = 132 * 65536
LAT = OPT['lat']
NEG = 0xf149f2ca

def v(b, n=1): return f'v{b}' if n == 1 else f'v[{b}:{b+n-1}]'
def a(b, n=1): return f'a{b}' if n == 1 else f'a[{b}:{b+n-1}]'
def s(b, n=1): return f's{b}' if n == 1 else f's[{b}:{b+n-1}]'

def qk(q, kb, ks, mask=False):
    D = v(S0 + 16*q + 4*kb, 4)
    C = D if ks else (v(MK, 4) if mask else '0')
    return f'v_mfma_f32_16x16x32_bf16 {D}, {a(aK+16*kb+4*ks,4)}, {a(aQ+16*q+4*ks,4)}, {C}'
def pv(q, db, ks, vbase=None):
    D = v(O0 + 32*q + 4*db, 4)
    A = a(aV + (2*db+ks)*4, 4) if vbase is None else a(vbase + 4*db, 4)
    return f'v_mfma_f32_16x16x32_bf16 {D}, {A}, {v(P0+8*q+4*ks,4)}, {D}'
def sm(q):
    return f'v_smfmac_f32_16x16x64_bf16 {a(aL+4*q,4)}, {a(aONE,4)}, {v(P0+8*q,8)}, {v(IDX)}'
def qkg(q, nkb=4, mask=False): return [qk(q, kb, ks, mask and kb == nkb-1) for kb in range(nkb) for ks in range(4)]
def pvg(q, nks=2, vbase=None): return [pv(q, db, ks, vbase) for db in range(8) for ks in range(nks)] + [sm(q)]

def i_exp(q, n): return f'v_exp_f32 {v(S0+16*q+n)}, {v(S0+16*q+n)}'
def i_cvt(q, i): return f'v_cvt_pk_bf16_f32 {v(P0+8*q+i)}, {v(S0+16*q+2*i)}, {v(S0+16*q+2*i+1)}'
def i_kread(kb, ks, slot, tile): return f'ds_read_b128 {a(aK+16*kb+4*ks,4)}, {v(KA+ks)} offset:{slot*16384+kb*1024}'
def i_vread(db, ks, t, slot, tile, vbase=None):
    d = (aV + (2*db+ks)*4 if vbase is None else vbase + 4*db) + 2*t
    return f'ds_read_b64_tr_b16 {a(d,2)}, {v(VA+db)} offset:{slot*16384+(2*ks+t)*1024}'
def i_dma(isv, i, soff, tile):
    return f'buffer_load_dwordx4 {v(DV if isv else DK)}, {s(12 if isv else 8,4)}, {s(soff+i)} offen offset:{i*1024}{FL[OPT["kf"]]} lds'
def i_m0(isv, slot): return f's_add_u32 m0, {s(sMV if isv else sMK)}, {slot*16384}'

class Op:
    def __init__(self, key, cls, rel, dl, text, deps=(), fifo=None):
        self.key, self.cls, self.rel, self.dl, self.text, self.deps, self.fifo = key, cls, rel, dl, text, list(deps), fifo
        self.gap = None
class Gap:
    def __init__(self): self.sc, self.mem, self.valu, self.post = [], [], [], []; self.block = None

def schedule(ngaps, ops, gaps=None, overflow=False, g0=0):
    gaps = gaps or [Gap() for _ in range(ngaps)]
    byk = {o.key: o for o in ops}
    todo = list(ops)
    def ready(o, g):
        if o.rel > g: return False
        for d in o.deps:
            p = byk.get(d)
            if p is not None and (p.gap is None or p.gap >= g): return False
        if o.fifo is not None:
            p = byk[o.fifo]
            if p.gap is None: return False
            if o.cls == 'D' and p.gap >= g: return False
        return True
    def put(o, g):
        o.gap = g; todo.remove(o)
        (gaps[g].mem if o.cls in 'DRT' else gaps[g].valu).append(o)
    for g in range(g0, ngaps):
        if gaps[g].block != 'all':
            cand = sorted((o for o in todo if ready(o, g)), key=lambda o: o.dl)
            if gaps[g].block == 'half': cand = [o for o in cand if o.cls == 'H'][:1]
            if cand:
                top = cand[0]
                halves = [o for o in cand if o.cls in 'RTH']
                full = [o for o in cand if o.cls in 'ED']
                if top.cls in 'RTH' and len(halves) == 1 and full and top.dl - g > 6 and top.fifo is None: top = full[0]
                put(top, g)
                if top.cls in 'RTH' and gaps[g].block != 'half':
                    cand2 = sorted((o for o in todo if o.cls in 'RTH' and ready(o, g)), key=lambda o: o.dl)
                    cand2 = [o for o in cand2 if not (o.cls == 'R' and top.cls == 'R')]
                    if cand2:
                        pick = cand2[0]
                        if top.cls in 'RT' and pick.cls in 'RT' and pick.dl - g > 8:
                            h = [o for o in cand2 if o.cls == 'H']
                            if h: pick = h[0]
                        put(pick, g)
        late = [o for o in todo if o.dl <= g]
        if late:
            if not overflow: raise RuntimeError(f'deadline miss at gap {g}: {[o.key for o in late]}')
            def force(o):
                if o.gap is not None: return
                for d in o.deps + ([o.fifo] if o.fifo else []):
                    if d in byk: force(byk[d])
                assert o.rel <= g, (o.key, o.rel, g)
                o.gap = g; todo.remove(o); gaps[g].post.append(o.text)
            for o in sorted(late, key=lambda o: ({'R': 0, 'T': 0, 'D': 0, 'E': 1, 'H': 2}[o.cls], o.dl)): force(o)
    return gaps, todo

def emit(mf, gaps, off=0):
    out = []
    for i, m in enumerate(mf):
        g = gaps[off + i]
        out.append(m)
        out += g.sc
        out += [o.text for o in g.mem] + [o.text for o in g.valu] + g.post
    return out

def softmax_ops(tile, q, qkstart, pvstart, nkb=4, prel=0, fixed=None):
    ops = []
    n = 4 * nkb
    for e in range(n):
        kb = e // 4
        if fixed is not None: ops.append(Op(('e', tile, q, e), 'E', qkstart + fixed + 2*e, qkstart + fixed + 2*e, i_exp(q, e)))
        else: ops.append(Op(('e', tile, q, e), 'E', qkstart + 4*kb + 3 + 5, pvstart - 4 - 2*(n - 1 - e), i_exp(q, e)))
    for i in range(2 * nkb):
        ops.append(Op(('c', tile, q, i), 'H', prel, pvstart - 3 - (2*nkb - 1 - i), i_cvt(q, i),
                      deps=[('e', tile, q, 2*i), ('e', tile, q, 2*i+1)]))
    for i in range(2 * nkb, 8):
        ops.append(Op(('z', tile, q, i), 'H', prel, pvstart - 3, f'v_mov_b32 {v(P0+8*q+i)}, 0'))
    return ops

NG = 132
LOOP_MF = qkg(0) + pvg(2) + qkg(1) + pvg(3) + qkg(2) + pvg(0) + qkg(3) + pvg(1)
assert len(LOOP_MF) == NG
BARG = 47
DMAG = [10, 14, 18, 22, 26, 30, 34, 38]

def steady():
    NT = 6
    ops = []
    gaps = [Gap() for _ in range(NG * (NT + 1))]
    for j in range(NT):
        b = NG * j
        for q in range(4):
            pvs = b + 82 + 33*q
            ops += softmax_ops(j, q, b + 33*q, pvs, prel=pvs - NG + 17, fixed=OPT['delta'])
        for db in range(8):
            for ks in range(2):
                for t in range(2):
                    f = 2*db + ks
                    ops.append(Op(('v', j, db, ks, t), 'T', max(b + 49 + f + 1, b + BARG + 1), b + 82 + f - LAT - (1 - t), ('v', db, ks, t)))
        for kb in range(4):
            for ks in range(4):
                f = 4*kb + ks
                ops.append(Op(('k', j, kb, ks), 'R', b + 99 + f + 1, min(b + NG - 2 - (15 - f), b + NG + f - LAT), ('k', kb, ks),
                              deps=[('k', j, (f-1)//4, (f-1)%4)] if f else []))
        for i in range(4):
            ops.append(Op(('rl', j, i), 'H', b, b + 20 + i, ('rl', i)))
        for i in range(8):
            ops.append(Op(('d', j, i), 'D', b + DMAG[i], b + DMAG[i], ('d', i),
                          deps=[('rl', j, x) for x in range(4)] if i >= 4 else []))
        gaps[b + BARG].block = 'all'
        gaps[b + NG - 1].block = 'half'
    schedule(NG * NT, ops, gaps, overflow=False) if False else None
    schedule(NG * (NT + 1), ops, gaps)
    def pattern(j):
        return [[(o.key[0], o.key[1] - j) + o.key[2:] for o in gaps[NG*j + g].mem + gaps[NG*j + g].valu] for g in range(NG)]
    p3, p4 = pattern(3), pattern(4)
    assert p3 == p4, 'no steady state'
    return p3
PAT = steady()
LEFT = {k for g in PAT for k in g if k[1] == -1}
assert all(k[0] in 'ec' for k in LEFT), LEFT

def key_text(k, j4, tile):
    kind = k[0]
    if kind == 'e': return i_exp(k[2], k[3])
    if kind == 'c': return i_cvt(k[2], k[3])
    if kind == 'v': return i_vread(k[2], k[3], k[4], j4, tile)
    if kind == 'k': return i_kread(k[2], k[3], (j4 + 1) % 4, tile + 1)
    if kind == 'rl': return f'v_readlane_b32 {s(SETS[(j4+3)%2] + k[2])}, {v(BT+k[2])}, {s(sLN)}'
    if kind == 'd':
        i = k[2]
        if i < 4: return i_dma(1, i, SETS[j4 % 2], tile + 2)
        return i_dma(0, i - 4, SETS[(j4 + 3) % 2], tile + 3)
    raise KeyError(k)

class Txt:
    def __init__(self, t): self.text = t

def add_lgkm_waits(lines, pre_ds=(), lead=None):
    ins = parse(lines)
    q = [(set(r), -age) for r, age in pre_ds]
    out = []; gap = -1
    lastm = None
    q_at_lastm = None
    for x in ins:
        if x.cls == 'mfma':
            needed = [i for i, (r, g) in enumerate(q) if r & x.r]
            if needed:
                k = max(needed)
                if lastm is not None and k < q_at_lastm:
                    visible = q_at_lastm
                    while k + 1 < visible and q[k + 1][1] <= gap - LAT: k += 1
                    n = min(15, visible - 1 - k)
                    out.insert(lastm, f's_waitcnt lgkmcnt({n})')
                    k = visible - 1 - n
                else:
                    n = min(15, len(q) - 1 - k)
                    out.append(f's_waitcnt lgkmcnt({n})')
                    k = len(q) - 1 - n
                q = q[k + 1:]
            gap += 1
            out.append(x.text); lastm = len(out); q_at_lastm = len(q)
        else:
            if x.cls == 'ds': q.append((set(x.w), gap))
            if x.cls == 'wait' and x.lgkm is not None:
                q = q[max(0, len(q) - x.lgkm):] if x.lgkm else []
                if q_at_lastm is not None: q_at_lastm = min(q_at_lastm, len(q))
            out.append(x.text)
    return out, [(r, gap - g) for r, g in q]

def body(j4, tile, exit_label, last):
    gaps = [Gap() for _ in range(NG)]
    for g in range(NG):
        for k in PAT[g]:
            t = Txt(key_text(k, j4, tile))
            (gaps[g].mem if k[0] in 'vkd' else gaps[g].valu).append(t)
    gd = {k[2]: g for g in range(NG) for k in PAT[g] if k[0] == 'd'}
    grl = max(g for g in range(NG) for k in PAT[g] if k[0] == 'rl')
    gaps[gd[0] - 2].sc.append(i_m0(1, (j4 + 2) % 4))
    gaps[gd[4] - 2].sc.append(i_m0(0, (j4 + 3) % 4))
    if OPT['skipdma']:
        gaps[1].sc.append(f's_cmp_le_u32 {s(sLN)}, {s(sN)}')
        gaps[2].sc.append(f's_cselect_b32 s14, {s(sVB)}, 0')
        gaps[3].sc.append(f's_cmp_lt_u32 {s(sLN)}, {s(sN)}')
        gaps[4].sc.append(f's_cselect_b32 s10, {s(sKB)}, 0')
    gaps[max(grl + 1, 50)].sc.append(f's_add_u32 {s(sLN)}, {s(sLN)}, 1')
    gaps[BARG - 1].sc.append('s_waitcnt vmcnt(16)')
    gaps[BARG].sc.append('s_barrier')
    gaps[NG - 2].sc.append(f's_sub_u32 {s(sIT)}, {s(sIT)}, 1')
    lines = emit(LOOP_MF, gaps)
    return lines

def loop_code():
    l0 = body(1, 1, None, False)
    _, pend = add_lgkm_waits(l0)
    out = ['.p2align 6', 'L_loop:']
    for u in range(4):
        j4 = (u + 1) % 4
        l, pend2 = add_lgkm_waits(body(j4, u + 1, None, False), pend)
        assert [x[0] for x in pend2] == [x[0] for x in pend]
        out += [f'; ---- body tile%4 == {j4}'] + l
        if u < 3: out.append('s_cbranch_scc1 L_tail')
        else: out += ['s_cbranch_scc0 L_loop']
    return out, pend

def epi_list(q, first, pk=False):
    t = T0 + 2 * (q & 1)
    o = O0 + 32*q
    L = [('H', f'v_accvgpr_read_b32 {v(t)}, {a(aL+4*q)}'),
         ('H', f'v_accvgpr_read_b32 {v(t+1)}, {a(aL+4*q+1)}'),
         ('H', f'v_add_f32 {v(t)}, {v(t)}, {v(t+1)}'),
         ('H', f'v_rcp_f32 {v(t+1)}, {v(t)}'),
         ('H', f'v_subrev_u32 {v(t)}, 0x2b800000, {v(t)}')]
    L.append(('H', f'v_mov_b32 {v(T0+4)}, {v(t)}' if first else f'v_max_u32 {v(T0+4)}, {v(T0+4)}, {v(t)}'))
    def muls(u): return [('M', (o + 8*u + i, t + 1)) for i in range(8)]
    def cvts(u): return [('H', f'v_cvt_pk_bf16_f32 {v(o+8*u+i)}, {v(o+8*u+2*i)}, {v(o+8*u+2*i+1)}') for i in range(4)]
    def swaps(u): return [('H', f'v_permlane16_swap_b32 {v(o+8*u+i)}, {v(o+8*u+2+i)}') for i in range(2)]
    def store(u):
        so = '0' if q == 0 else s(sQ1 + q - 1)
        return [('D', f'buffer_store_dwordx4 {v(o+8*u,4)}, {v(OV)}, s[16:19], {so} offen offset:{64*u}{FL[OPT["of"]]}')]
    L += muls(0) + cvts(0) + muls(1) + swaps(0) + cvts(1) + store(0) + muls(2) + swaps(1) + cvts(2) + store(1) \
       + muls(3) + swaps(2) + cvts(3) + store(2) + [('H', 's_nop 0')] + swaps(3) + store(3)
    return L
def mul_text(x): return f'v_mul_f32 {v(x[0])}, {v(x[1])}, {v(x[0])}'

def tail(nkb, pend):
    nks = 1 if nkb <= 2 else 2
    vbase = aK + 32 if nkb <= 2 else None
    G = {}
    if nkb <= 2:
        order = [('qk', 0), ('qk', 1), ('pvp', 2), ('qk', 2), ('pv', 0), ('pvp', 3), ('pv', 1), ('qk', 3), ('pv', 2), ('pv', 3)]
    else:
        order = [('qk', 0), ('pvp', 2), ('qk', 1), ('pvp', 3), ('qk', 2), ('pv', 0), ('qk', 3), ('pv', 1), ('pv', 2), ('pv', 3)]
    mf = []
    for kind, q in order:
        G[(kind, q)] = len(mf)
        mf += qkg(q, nkb, True) if kind == 'qk' else (pvg(q) if kind == 'pvp' else pvg(q, nks, vbase))
    n = len(mf)
    ops = []
    for q in (2, 3):
        pvs = G[('pvp', q)]
        for o in softmax_ops(-1, q, -100, pvs, prel=0):
            if (o.key[0], -1) + o.key[2:] in LEFT:
                o.rel = 0
                o.dl = max(o.dl, 0)
                o.dl = min(o.dl, G[('qk', q)] - 1) if G[('qk', q)] > 0 else o.dl
                ops.append(o)
    for q in range(4):
        prel = G[('pvp', q)] + 17 if q >= 2 else 0
        so = softmax_ops(0, q, G[('qk', q)], G[('pv', q)], nkb, prel)
        for o in so: o.dl = max(o.dl, o.rel, min(G[('pv', q)] - 1, o.rel + 1) if o.cls == 'E' else min(G[('pv', q)] - 1, G[('qk', q)] + 4*nkb + 4))
        ops += so
    for db in range(8):
        ops.append(Op(('va', db), 'H', 0, 3 + db // 2, f'v_add_u32 {v(VA+db)}, {s(sVOFF)}, {v(VA+db)}'))
    for db in range(8):
        for ks in range(nks):
            for t in range(2):
                f = nks*db + ks
                rel = 2 if vbase else G[('pvp', 3)] + 2*db + ks + 1
                ops.append(Op(('v', db, ks, t), 'T', rel, G[('pv', 0)] + f - LAT - (1 - t), i_vread(db, ks, t, 0, 'T', vbase), deps=[('va', db)]))
    prev = None; epi = []
    for q in range(4):
        rel = G[('pv', q)] + 8*nks + 5
        for i, (c, t) in enumerate(epi_list(q, q == 0)):
            o = Op(('ep', q, i), 'D' if c == 'D' else 'H', rel, 10000 + 100*q + i, mul_text(t) if c == 'M' else t, fifo=prev)
            o.raw = (c, t); prev = o.key; epi.append(o)
    ops += epi
    gaps = [Gap() for _ in range(n)]
    gaps[0].sc.append('s_waitcnt vmcnt(8)')
    gaps[1].sc.append('s_barrier'); gaps[1].block = 'all'
    gaps, todo = schedule(n, ops, gaps, overflow=True)
    lines = emit(mf, gaps)
    assert all(o.key[0] == 'ep' for o in todo), [o.key for o in todo]
    i = 0
    while i < len(todo):
        c, t = todo[i].raw
        if c == 'M' and i + 1 < len(todo) and todo[i+1].raw[0] == 'M' and t[0] % 2 == 0 and todo[i+1].raw[1][0] == t[0] + 1:
            r = t[1]
            lines.append(f'v_pk_mul_f32 {v(t[0],2)}, {v(t[0],2)}, {v(r-1,2)} op_sel:[0,1] op_sel_hi:[1,1]'); i += 2
        else:
            lines.append(todo[i].text); i += 1
    lines, _ = add_lgkm_waits(lines, pend)
    return lines

def scale_q(q):
    out = []
    for h in range(0, 16, 4):
        for i in range(4):
            x = S0 + 16*q + h + i; t = T0 + 2*i
            out += [f'v_lshlrev_b32 {v(t)}, 16, {v(x)}', f'v_and_b32 {v(t+1)}, 0xffff0000, {v(x)}']
        for i in range(4):
            t = T0 + 2*i
            out.append(f'v_pk_mul_f32 {v(t,2)}, {v(t,2)}, {s(sC,2)}')
        for i in range(4):
            x = S0 + 16*q + h + i; t = T0 + 2*i
            out.append(f'v_cvt_pk_bf16_f32 {v(x)}, {v(t)}, {v(t+1)}')
        for i in range(4):
            x = S0 + 16*q + h + i
            out.append(f'v_accvgpr_write_b32 {a(aQ+16*q+h+i)}, {v(x)}')
    return out
def qload(q): return [f'buffer_load_dwordx4 {v(S0+16*q+4*ks,4)}, {v(T0+7)}, s[4:7], {"0" if q == 0 else s(sQ1+q-1)} offen offset:{64*ks}{FL[OPT["qf"]]} ; ld Q{q}' for ks in range(4)]
def dma4(isv, tile):
    soff = 40 + 4*tile if tile < 3 else SETS[1]
    return [i_m0(isv, tile), 's_nop 0'] + [i_dma(isv, i, soff, tile) for i in range(4)]
def btprep(tile):
    out = []
    for i in range(4):
        src = 40 + 4*tile + i; dst = src if tile < 3 else SETS[1] + i
        out.append(f's_lshl_b32 {s(dst)}, {s(src)}, 16')
        if i < 3: out.append(f's_or_b32 {s(dst)}, {s(dst)}, {(3-i)*1024}')
    return out
def stamp(i): return [f's_memtime {s(sST+2*i,2)}'] if OPT['stamp'] else []

def resolve_waitvm(lines):
    out = []; vm = []
    for l in lines:
        if l.startswith('WAITVM'):
            tags = l.split(None, 1)[1].split('|')
            last = max(i for i, t in enumerate(vm) if t in tags)
            out.append(f's_waitcnt vmcnt({len(vm) - 1 - last}) ; {tags}')
        else:
            if l.startswith('buffer_'): vm.append(l.split(';')[1].strip() if ';' in l else '')
            out.append(l)
    return out

def memtest(L):
    t = T0; mt = OPT['memtest']
    srd = [f's_add_u32 s8, s26, {s(sT)}', 's_addc_u32 s9, s27, 0', 's_sub_u32 s8, s8, 3072', 's_subb_u32 s9, s9, 0',
          f's_add_u32 s12, s28, {s(sT)}', 's_addc_u32 s13, s29, 0', 's_sub_u32 s12, s12, 3072', 's_subb_u32 s13, s13, 0',
          f's_add_u32 s16, s34, {s(sT+1)}', 's_addc_u32 s17, s35, 0']
    nt = FL[OPT['qf']]
    ql = qload
    def qdma(q):
        o = [f's_add_u32 m0, {s(sMK)}, {0x8000 + q*16384}', 's_nop 0']
        return o + [f'buffer_load_dwordx4 {v(t+5)}, s[4:7], {"0" if q == 0 else s(sQ1+q-1)} offen offset:{1024*i}{nt} lds ; ld Q{q}' for i in range(4)]
    L += stamp(1)
    L += [f'v_lshlrev_b32 {v(t+5)}, 14, {v(t)}', f'v_lshl_add_u32 {v(t+5)}, {v(t+1)}, 4, {v(t+5)}']
    bt = ['s_waitcnt lgkmcnt(0)'] + stamp(2) + btprep(0) + btprep(1) + btprep(2) + btprep(3)
    W = lambda tag, i: [f'WAITVM {tag}'] + stamp(i)
    if mt == 1: L += ql(0) + ql(1) + ql(2) + ql(3) + srd + bt + W('ld Q0', 3) + W('ld Q1', 4) + W('ld Q2', 5) + W('ld Q3', 6)
    if mt == 2: L += qdma(0) + qdma(1) + qdma(2) + qdma(3) + srd + bt + W('ld Q0', 3) + W('ld Q1', 4) + W('ld Q2', 5) + W('ld Q3', 6)
    if mt == 3: L += srd + bt + dma4(0, 0) + W('dma K 0', 3) + dma4(1, 0) + W('dma V 0', 4) + dma4(0, 1) + W('dma K 1', 5) + ql(0) + W('ld Q0', 6)
    if mt == 4: L += ql(0) + srd + bt + dma4(0, 0) + W('ld Q0', 3) + W('dma K 0', 4) + ql(1) + ql(2) + ql(3) + W('ld Q1', 5) + W('ld Q3', 6)
    if mt == 5: L += ql(0) + srd + bt + dma4(0, 0) + ql(1) + ql(2) + ql(3) + W('ld Q0', 3) + W('dma K 0', 4) + W('ld Q1', 5) + W('ld Q3', 6)
    if mt == 6: L += ql(0) + ql(1) + srd + bt + dma4(0, 0) + ql(2) + ql(3) + W('ld Q0', 3) + W('dma K 0', 4) + W('ld Q2', 5) + W('ld Q3', 6)
    if mt == 7: L += srd + bt + dma4(0, 0) + dma4(1, 0) + dma4(0, 1) + dma4(1, 1) + dma4(0, 2) + dma4(1, 2) + dma4(0, 3) + W('dma K 0', 3) + W('dma K 1', 4) + W('dma K 2', 5) + W('dma K 3', 6)
    if mt == 8: L += ql(0) + srd + bt + dma4(0, 0) + ql(1) + ql(2) + dma4(1, 0) + dma4(0, 1) + ql(3) + W('ld Q0', 3) + W('dma K 0', 4) + W('dma K 1', 5) + W('ld Q3', 6)
    allkv = lambda: dma4(0, 0) + dma4(1, 0) + dma4(0, 1) + dma4(1, 1) + dma4(0, 2) + dma4(1, 2) + dma4(0, 3)
    if mt == 9: L += srd + bt + allkv() + W('dma K 3', 3) + allkv() + W('dma K 3', 4) + allkv() + W('dma K 3', 5) + ql(0) + ql(1) + ql(2) + ql(3) + W('ld Q3', 6)
    if mt == 10:
        L += ql(0) + ql(1) + ql(2) + ql(3) + srd + bt + W('ld Q3', 3) + ql(0) + ql(1) + ql(2) + ql(3) + W('ld Q3', 4) + allkv() + W('dma K 3', 5) + ql(0) + ql(1) + ql(2) + ql(3) + W('ld Q3', 6)
    if mt in (11, 12, 13):
        L += [f's_lshl_b32 s56, {s(sW)}, 14', 's_add_u32 s56, s4, s56', 's_addc_u32 s57, s5, 0']
        pf = lambda lo, hi, step: [f's_load_dword s58, s[56:57], {o}' for o in range(lo, hi, step)]
        if mt == 11: L += ql(0) + ql(1) + pf(8192, 16384, 128) + stamp(2) + ql(2) + ql(3) + W('ld Q0', 3) + W('ld Q1', 4) + W('ld Q2', 5) + W('ld Q3', 6)
        if mt == 12: L += stamp(2) + pf(0, 16384, 128) + stamp(3) + ['s_waitcnt lgkmcnt(0)'] + stamp(4) + ql(0) + ql(1) + ql(2) + ql(3) + W('ld Q0', 5) + W('ld Q3', 6)
        if mt == 13: L += stamp(2) + pf(0, 16384, 64) + stamp(3) + ['s_waitcnt lgkmcnt(0)'] + stamp(4) + ql(0) + ql(1) + ql(2) + ql(3) + W('ld Q0', 5) + W('ld Q3', 6)
    if mt >= 20:
        L += srd + bt
        of = FL[OPT['of']]
        if mt == 20:
            for q in range(4):
                for u in range(4): L.append(f'buffer_store_dwordx4 v[{16*q+4*u}:{16*q+4*u+3}], {v(OV)}, s[16:19], {"0" if q == 0 else s(sQ1+q-1)} offen offset:{64*u}{of} ; st{q}')
        if mt == 21:
            for q in range(4):
                for u in range(4): L.append(f'buffer_store_dwordx4 v[{16*q+4*u}:{16*q+4*u+3}], {v(t+5)}, s[16:19], {"0" if q == 0 else s(sQ1+q-1)} offen offset:{1024*u}{of} ; st{q}')
        if mt == 22:
            L += [f'v_lshrrev_b32 {v(t+4)}, 3, {v(t+1)}', f'v_lshlrev_b32 {v(t+4)}, 8, {v(t+4)}', f'v_and_b32 {v(t+6)}, 7, {v(t+1)}',
                  f'v_lshl_add_u32 {v(t+4)}, {v(t+6)}, 4, {v(t+4)}', f'v_lshl_add_u32 {v(t+4)}, {v(t)}, 14, {v(t+4)}']
            for q in range(4):
                for u in range(4): L.append(f'buffer_store_dwordx4 v[{16*q+4*u}:{16*q+4*u+3}], {v(t+4)}, s[16:19], {"0" if q == 0 else s(sQ1+q-1)} offen offset:{128*(u&1)+2048*(u>>1)}{of} ; st{q}')
        L += stamp(3) + W('st0', 4) + W('st1', 5) + W('st3', 6)
    L += [f'v_mov_b32 {v(T0+4)}, 0', f's_mov_b32 {s(sFORCE)}, 0', 's_nop 3']
    return resolve_waitvm(L), None

def prologue():
    L = []
    A = L.append
    if OPT.get('xmask') is not None:
        L += [f's_and_b32 s3, s2, {OPT["xmask"]}', 's_cmp_lg_u32 s3, 0', 's_cbranch_scc1 L_end']
    if OPT.get('twice'): L += [f's_mov_b32 s77, {OPT["twice"]}'] + (['s_memrealtime s[100:101]'] if OPT['stamp'] else []) + ['L_again:']
    L += ['s_cmp_ge_u32 s2, 256', 's_cbranch_scc1 L_end',
          's_load_dwordx8 s[24:31], s[0:1], 0', 's_load_dwordx4 s[32:35], s[0:1], 32']
    L += stamp(0) + ([f's_memrealtime s[100:101]'] if OPT['stamp'] and not OPT.get('twice') else [])
    t = T0
    L += [f'v_lshrrev_b32 {v(t)}, 6, v0',
          f'v_and_b32 {v(t+1)}, 63, v0',
          f'v_readfirstlane_b32 {s(sW)}, {v(t)}',
          f'v_and_b32 {v(t+2)}, 15, v0',
          f'v_bfe_u32 {v(t+3)}, v0, 4, 2',
          f's_and_b32 {s(sT)}, s2, 7', f's_lshr_b32 {s(sT+1)}, s2, 3', f's_lshr_b32 {s(sT+2)}, {s(sT+1)}, 4',
          f's_lshl_b32 {s(sT)}, {s(sT)}, 1', f's_add_u32 {s(sT)}, {s(sT)}, {s(sT+2)}',
          f's_and_b32 {s(sT+1)}, {s(sT+1)}, 15', f's_lshl_b32 {s(sT+2)}, {s(sT)}, 4',
          f's_add_u32 {s(sT+1)}, {s(sT+1)}, {s(sT+2)}', f's_lshl_b32 {s(sT+1)}, {s(sT+1)}, 16',
          f's_lshl_b32 {s(sT)}, {s(sT)}, 8',
          f's_movk_i32 {s(sQ1)}, 0x1000', f's_movk_i32 {s(sQ2)}, 0x2000', f's_movk_i32 {s(sQ3)}, 0x3000',
          f'v_lshlrev_b32 {v(t+4)}, 14, {v(t)}', f'v_lshl_add_u32 {v(t+4)}, {v(t+2)}, 8, {v(t+4)}',
          f'v_lshl_add_u32 {v(t+7)}, {v(t+3)}, 4, {v(t+4)}',
          f'v_and_b32 {v(t+5)}, 1, {v(t+3)}', f'v_lshl_add_u32 {v(t+4)}, {v(t+5)}, 5, {v(t+4)}',
          f'v_lshrrev_b32 {v(t+5)}, 1, {v(t+3)}', f'v_lshl_add_u32 {v(OV)}, {v(t+5)}, 4, {v(t+4)}',
          f'v_lshl_add_u32 {v(t+4)}, {v(t)}, 2, {v(t+3)}',
          f'v_xor_b32 {v(t+5)}, {v(t+2)}, {v(t+4)}', f'v_lshlrev_b32 {v(t+5)}, 4, {v(t+5)}',
          f'v_lshl_add_u32 {v(DK)}, {v(t+4)}, 12, {v(t+5)}',
          f'v_and_b32 {v(t+5)}, 7, {v(t+4)}', f'v_lshlrev_b32 {v(t+5)}, 1, {v(t+5)}',
          f'v_xor_b32 {v(t+5)}, {v(t+2)}, {v(t+5)}', f'v_lshlrev_b32 {v(t+5)}, 4, {v(t+5)}',
          f'v_lshl_add_u32 {v(DV)}, {v(t+4)}, 12, {v(t+5)}',
          f'v_lshlrev_b32 {v(t+6)}, 4, {v(t+1)}',
          f's_lshl_b32 {s(sMK)}, {s(sW)}, 12', f's_add_u32 {s(sMV)}, {s(sMK)}, 0x10000',
          's_mov_b32 s6, 0x10000', 's_mov_b32 s7, 0x20000', 's_mov_b32 s11, 0x20000', 's_mov_b32 s15, 0x20000',
          's_mov_b32 s18, 0x10000', 's_mov_b32 s19, 0x20000', 's_movk_i32 s22, 0x200', 's_mov_b32 s23, 0x20000',
          f's_sub_u32 {s(sKB)}, {KBYTES+3072}, {s(sT)}', f's_mov_b32 {s(sVB)}, {s(sKB)}',
          f's_mov_b32 s10, {s(sKB)}', f's_mov_b32 s14, {s(sKB)}',
          's_waitcnt lgkmcnt(0)',
          f's_load_dword {s(sCL)}, s[32:33], 0', 's_load_dwordx16 s[40:55], s[30:31], 0',
          f's_add_u32 s4, s24, {s(sT+1)}', 's_addc_u32 s5, s25, 0',
          's_mov_b32 s20, s30', 's_mov_b32 s21, s31']
    if OPT.get('memtest'): return memtest(L)
    L += qload(0)
    L += [f'buffer_load_dwordx4 {v(BT,4)}, {v(t+6)}, s[20:23], 0 offen',
          f's_add_u32 s8, s26, {s(sT)}', 's_addc_u32 s9, s27, 0', 's_sub_u32 s8, s8, 3072', 's_subb_u32 s9, s9, 0',
          f's_add_u32 s12, s28, {s(sT)}', 's_addc_u32 s13, s29, 0', 's_sub_u32 s12, s12, 3072', 's_subb_u32 s13, s13, 0',
          f's_add_u32 s16, s34, {s(sT+1)}', 's_addc_u32 s17, s35, 0']
    L += [f'v_lshrrev_b32 {v(t+4)}, 2, {v(t+2)}', f'v_lshlrev_b32 {v(t+4)}, 4, {v(t+4)}',
          f'v_and_b32 {v(t+5)}, 3, {v(t+2)}', f'v_add_u32 {v(t+4)}, {v(t+4)}, {v(t+5)}',
          f'v_lshlrev_b32 {v(t+4)}, 8, {v(t+4)}',
          f'v_xor_b32 {v(t+5)}, {v(t+3)}, {v(t+2)}']
    for ks in range(4):
        L += [f'v_xor_b32 {v(KA+ks)}, {4*ks}, {v(t+5)}', f'v_lshl_add_u32 {v(KA+ks)}, {v(KA+ks)}, 4, {v(t+4)}']
    L += [f'v_bfe_u32 {v(t+5)}, {v(t+1)}, 2, 2',
          f'v_lshl_add_u32 {v(t+4)}, {v(t+3)}, 4, {v(t+5)}',
          f'v_lshlrev_b32 {v(t+4)}, 8, {v(t+4)}',
          f'v_and_b32 {v(MK)}, 3, {v(t+1)}', f'v_lshl_add_u32 {v(t+4)}, {v(MK)}, 3, {v(t+4)}',
          f'v_add_u32 {v(t+4)}, 0x10000, {v(t+4)}',
          f'v_lshl_add_u32 {v(t+5)}, {v(t+3)}, 2, {v(t+5)}', f'v_and_b32 {v(t+5)}, 7, {v(t+5)}']
    for db in range(8):
        L += [f'v_xor_b32 {v(VA+db)}, {db}, {v(t+5)}', f'v_lshl_add_u32 {v(VA+db)}, {v(VA+db)}, 5, {v(t+4)}']
    L += [f'v_and_b32 {v(t+4)}, 1, {v(t+1)}', f'v_mov_b32 {v(t+5)}, 0xaaaaaaaa',
          f'v_mul_lo_u32 {v(t+4)}, {v(t+4)}, {v(t+5)}', f'v_or_b32 {v(IDX)}, 0x44444444, {v(t+4)}',
          f'v_mov_b32 {v(t+5)}, 0x3f803f80']
    L += [f'v_accvgpr_write_b32 {a(aONE+i)}, {v(t+5)}' for i in range(4)]
    L += ['s_waitcnt lgkmcnt(0)'] + stamp(1)
    L += btprep(0) + dma4(0, 0) + qload(1) + qload(2)
    L += [f's_mov_b32 {s(sC)}, 0x3e0293ee',
          f's_cmp_lt_i32 {s(sCL)}, 1', f's_cselect_b32 {s(sC)}, 0, {s(sC)}', f's_cselect_b32 {s(sCL)}, 0x800, {s(sCL)}',
          f's_mov_b32 {s(sC2)}, {s(sC)}',
          f's_min_u32 {s(sCLT)}, {s(sCL)}, 0x800',
          f's_cmp_lt_u32 {s(sCLT)}, {4096 if OPT["forceslow"] else 129}', f's_cselect_b32 {s(sFORCE)}, 1, 0',
          f's_max_u32 {s(sCL)}, {s(sCLT)}, 129',
          f's_add_u32 {s(sN)}, {s(sCL)}, 63', f's_lshr_b32 {s(sN)}, {s(sN)}, 6',
          f's_sub_u32 {s(sIT)}, {s(sN)}, 3',
          f's_sub_u32 {s(sT)}, {s(sN)}, 1', f's_and_b32 {s(sVOFF)}, {s(sT)}, 3', f's_lshl_b32 {s(sVOFF)}, {s(sVOFF)}, 14',
          f's_lshl_b32 {s(sT)}, {s(sT)}, 6', f's_sub_u32 {s(sT)}, {s(sCL)}, {s(sT)}',
          f's_add_u32 {s(sNKB)}, {s(sT)}, 15', f's_lshr_b32 {s(sNKB)}, {s(sNKB)}, 4',
          f's_sub_u32 {s(sT)}, {s(sT)}, 1', f's_and_b32 {s(sT)}, {s(sT)}, 15',
          f's_mov_b32 {s(sLN)}, 4']
    L += [f'v_lshlrev_b32 {v(t+4)}, 2, {v(t+3)}', f'v_mov_b32 {v(t+5)}, {NEG:#x}']
    for r in range(4):
        L += [f'v_add_u32 {v(t+6)}, {r}, {v(t+4)}', f'v_cmp_lt_u32 vcc, {s(sT)}, {v(t+6)}', 's_nop 1',
              f'v_cndmask_b32 {v(MK+r)}, 0, {v(t+5)}, vcc']
    L += btprep(1) + btprep(2) + btprep(3)
    L += [f'v_mov_b32 {v(O0+i)}, 0' for i in range(128)]
    L += [f'v_accvgpr_write_b32 {a(aL+i)}, 0' for i in range(16)]
    L += [f'v_mov_b32 {v(MK-0+0)}, {v(MK)}'][:0]
    L += [f'v_mov_b32 {v(P0+31)}, {v(T0+7)}']
    L += ['WAITVM ld Q0'] + stamp(2) + scale_q(0)
    L += [f'v_mov_b32 {v(T0+7)}, {v(P0+31)}']
    L += dma4(1, 0) + dma4(0, 1) + qload(3)
    L += ['WAITVM ld BT']
    for i in range(4):
        L.append(f'v_lshlrev_b32 {v(BT+i)}, 16, {v(BT+i)}')
        if i < 3: L.append(f'v_or_b32 {v(BT+i)}, {(3-i)*1024}, {v(BT+i)}')
    L += ['WAITVM dma K 0', 's_barrier'] + stamp(3)
    L += [i_kread(kb, ks, 0, 0) for kb in range(4) for ks in range(4)]
    order = [('qk', 0), ('qk', 1), ('qk', 2), ('pv', 0), ('qk', 3), ('pv', 1)]
    G = {}; mf = []
    for kind, q in order:
        G[(kind, q)] = len(mf); mf += qkg(q) if kind == 'qk' else pvg(q)
    n = len(mf)
    ops = []
    for q in range(4):
        if q < 2: pvs = G[('qk', q)] + 23
        elif q == 2: pvs = G[('qk', 3)] + 2
        else: pvs = n + 2
        for o in softmax_ops(0, q, G[('qk', q)], pvs):
            if (o.key[0], -1) + o.key[2:] in LEFT: continue
            o.dl = max(o.dl, o.rel if o.cls == 'E' else G[('qk', q)] + 4*(o.key[3]//2) + 8)
            o.dl = min(o.dl, n - 1)
            ops.append(o)
    for db in range(8):
        for ks in range(2):
            for tt in range(2):
                f = 2*db + ks
                ops.append(Op(('v', db, ks, tt), 'T', G[('qk', 2)] - 1 + 1, G[('pv', 0)] + f - LAT - (1 - tt), i_vread(db, ks, tt, 0, 0)))
    for kb in range(4):
        for ks in range(4):
            f = 4*kb + ks
            ops.append(Op(('k', kb, ks), 'R', G[('qk', 3)] + f + 1, min(n - 2 - (15 - f), n + f - LAT), i_kread(kb, ks, 1, 1),
                          deps=[('k', (f-1)//4, (f-1)%4)] if f else []))
    gaps = [Gap() for _ in range(n)]
    gaps, todo = schedule(n, ops, gaps, overflow=True)
    assert not todo
    gaps[G[('qk', 1)] - 1].post += dma4(1, 1) + dma4(0, 2) + ['WAITVM ld Q1'] + scale_q(1) + ['s_nop 0']
    gaps[G[('qk', 2)] - 1].post += dma4(1, 2) + dma4(0, 3) + ['WAITVM ld Q2'] + scale_q(2) + ['WAITVM dma V 0|dma K 1', 's_barrier']
    gaps[G[('qk', 3)] - 1].post += ['WAITVM ld Q3'] + stamp(4) + scale_q(3) + ['s_nop 0']
    L += emit(mf, gaps)
    L = resolve_waitvm(L)
    L, pend = add_lgkm_waits(L)
    return L, pend

def slow():
    t = T0
    L = ['L_slow:', 's_waitcnt vmcnt(0) lgkmcnt(0)']
    M, LS, KV, VD0, VD1 = KA, BT, DK, DV, IDX
    L += [f's_mov_b32 s10, {s(sKB)}', f's_mov_b32 s14, {s(sVB)}',
          f'v_mbcnt_lo_u32_b32 {v(t+1)}, -1, 0', f'v_mbcnt_hi_u32_b32 {v(t+1)}, -1, {v(t+1)}',
          f'v_and_b32 {v(t+2)}, 15, {v(t+1)}', f'v_lshrrev_b32 {v(t+3)}, 4, {v(t+1)}',
          f'v_lshlrev_b32 {v(t+4)}, 12, {v(t+2)}', f'v_lshl_add_u32 {v(KV)}, {v(t+3)}, 4, {v(t+4)}',
          f'v_add_u32 {v(KV)}, 3072, {v(KV)}',
          f'v_lshlrev_b32 {v(t+4)}, 1, {v(t+3)}', f'v_xor_b32 {v(t+4)}, {v(t+2)}, {v(t+4)}',
          f'v_lshlrev_b32 {v(t+4)}, 4, {v(t+4)}', f'v_lshl_add_u32 {v(VD0)}, {v(t+3)}, 12, {v(t+4)}',
          f'v_add_u32 {v(VD0)}, 3072, {v(VD0)}',
          f'v_xor_b32 {v(t+4)}, 0x80, {v(t+4)}', f'v_lshl_add_u32 {v(VD1)}, {v(t+3)}, 12, {v(t+4)}',
          f'v_add_u32 {v(VD1)}, {3072 + 16384}, {v(VD1)}',
          f's_lshl_b32 {s(sMV)}, {s(sW)}, 13', f's_add_u32 {s(sMV)}, {s(sMV)}, 0x20000',
          f'v_bfe_u32 {v(t+5)}, {v(t+1)}, 2, 2', f'v_lshl_add_u32 {v(t+5)}, {v(t+3)}, 2, {v(t+5)}',
          f'v_lshlrev_b32 {v(t+4)}, 8, {v(t+5)}', f'v_and_b32 {v(t+6)}, 3, {v(t+1)}',
          f'v_lshl_add_u32 {v(t+4)}, {v(t+6)}, 3, {v(t+4)}', f'v_add_u32 {v(t+4)}, {s(sMV)}, {v(t+4)}',
          f'v_and_b32 {v(t+5)}, 7, {v(t+5)}']
    for db in range(8):
        L += [f'v_xor_b32 {v(VA+db)}, {db}, {v(t+5)}', f'v_lshl_add_u32 {v(VA+db)}, {v(VA+db)}, 5, {v(t+4)}']
    L += [f'v_lshlrev_b32 {v(MK)}, 2, {v(t+3)}']
    L += [f'v_mov_b32 {v(MK+1)}, {NEG:#x}']
    L += [f'v_mov_b32 {v(O0+i)}, 0' for i in range(128)]
    L += [f'v_mov_b32 {v(M+q)}, 0xff7fffff' for q in range(4)] + [f'v_mov_b32 {v(LS+q)}, 0' for q in range(4)]
    L += [f's_mov_b32 {s(sIT)}, 0', 'L_slow_loop:',
          f's_lshr_b32 {s(sT)}, {s(sIT)}, 2',
          f's_load_dwordx2 s[40:41], s[30:31], {s(sT)}', 's_waitcnt lgkmcnt(0)',
          's_lshl_b32 s40, s40, 16', 's_lshl_b32 s41, s41, 16']
    for kb in range(2):
        for ks in range(4):
            L.append(f'buffer_load_dwordx4 {a(aK+16*kb+4*ks,4)}, {v(KV)}, s[8:11], s{40+kb} offen offset:{64*ks}')
    for b in range(2):
        for p in range(4):
            L += [f's_add_u32 m0, {s(sMV)}, {b*4096 + p*1024}', f's_add_u32 s42, s{40+b}, {(p//2)*32768}',
                  f'buffer_load_dwordx4 {v(VD1 if p & 1 else VD0)}, s[12:15], s42 offen lds']
    L += ['s_waitcnt vmcnt(0)']
    for db in range(8):
        for tt in range(2):
            L.append(f'ds_read_b64_tr_b16 {a(aV+8*db+2*tt,2)}, {v(VA+db)} offset:{tt*4096}')
    L += [f's_sub_u32 {s(sT)}, {s(sCLT)}, {s(sIT)}', 's_waitcnt lgkmcnt(0)']
    for q in range(4):
        S = S0 + 16*q
        L += qkg(q, 2) + ['s_nop 7']
        for e in range(8):
            L += [f'v_add_u32 {v(t)}, {16*(e//4) + e%4}, {v(MK)}', f'v_cmp_gt_u32 vcc, {s(sT)}, {v(t)}', 's_nop 1',
                  f'v_cndmask_b32 {v(S+e)}, {v(MK+1)}, {v(S+e)}, vcc']
        L += [f'v_max3_f32 {v(t)}, {v(S)}, {v(S+1)}, {v(S+2)}', f'v_max3_f32 {v(t)}, {v(t)}, {v(S+3)}, {v(S+4)}',
              f'v_max3_f32 {v(t)}, {v(t)}, {v(S+5)}, {v(S+6)}', f'v_max3_f32 {v(t)}, {v(t)}, {v(S+7)}, {v(M+q)}',
              f'v_mov_b32 {v(t+1)}, {v(t)}', 's_nop 1', f'v_permlane16_swap_b32 {v(t)}, {v(t+1)}', f'v_max_f32 {v(t)}, {v(t)}, {v(t+1)}',
              f'v_mov_b32 {v(t+1)}, {v(t)}', 's_nop 1', f'v_permlane32_swap_b32 {v(t)}, {v(t+1)}', f'v_max_f32 {v(t)}, {v(t)}, {v(t+1)}',
              f'v_sub_f32 {v(t+1)}, {v(M+q)}, {v(t)}', f'v_exp_f32 {v(t+1)}, {v(t+1)}', f'v_mov_b32 {v(M+q)}, {v(t)}']
        L += [f'v_sub_f32 {v(S+e)}, {v(S+e)}, {v(t)}' for e in range(8)]
        L += [f'v_exp_f32 {v(S+e)}, {v(S+e)}' for e in range(8)]
        L += [f'v_mul_f32 {v(LS+q)}, {v(LS+q)}, {v(t+1)}']
        L += [f'v_mul_f32 {v(O0+32*q+i)}, {v(O0+32*q+i)}, {v(t+1)}' for i in range(32)]
        L += [i_cvt(q, i) for i in range(4)]
        for i in range(4):
            L += [f'v_lshlrev_b32 {v(t)}, 16, {v(P0+8*q+i)}', f'v_and_b32 {v(t+1)}, 0xffff0000, {v(P0+8*q+i)}',
                  f'v_add_f32 {v(LS+q)}, {v(LS+q)}, {v(t)}', f'v_add_f32 {v(LS+q)}, {v(LS+q)}, {v(t+1)}']
        L += [pv(q, db, 0) for db in range(8)]
    L += [f's_add_u32 {s(sIT)}, {s(sIT)}, 32', f's_cmp_lt_u32 {s(sIT)}, {s(sCLT)}', 's_cbranch_scc1 L_slow_loop', 's_nop 7']
    for q in range(4):
        o = O0 + 32*q
        L += [f'v_mov_b32 {v(t)}, {v(LS+q)}', f'v_mov_b32 {v(t+1)}, {v(LS+q)}', 's_nop 1',
              f'v_permlane16_swap_b32 {v(t)}, {v(t+1)}', f'v_add_f32 {v(t)}, {v(t)}, {v(t+1)}',
              f'v_mov_b32 {v(t+1)}, {v(t)}', 's_nop 1', f'v_permlane32_swap_b32 {v(t)}, {v(t+1)}', f'v_add_f32 {v(t)}, {v(t)}, {v(t+1)}',
              f'v_rcp_f32 {v(t)}, {v(t)}', 's_nop 0']
        L += [f'v_mul_f32 {v(o+i)}, {v(o+i)}, {v(t)}' for i in range(32)]
        for u in range(4):
            L += [f'v_cvt_pk_bf16_f32 {v(o+8*u+i)}, {v(o+8*u+2*i)}, {v(o+8*u+2*i+1)}' for i in range(4)]
        for u in range(4):
            L += [f'v_permlane16_swap_b32 {v(o+8*u+i)}, {v(o+8*u+2+i)}' for i in range(2)]
        for u in range(4):
            L.append(f'buffer_store_dwordx4 {v(o+8*u,4)}, {v(OV)}, s[16:19], {"0" if q == 0 else s(sQ1+q-1)} offen offset:{64*u}')
    L += ['s_endpgm']
    return L

def finish():
    L = [f'v_cmp_lt_u32 vcc, 0x28000000, {v(T0+4)}',
         f's_cmp_lg_u32 {s(sFORCE)}, 0', 's_cbranch_scc1 L_slow', 's_nop 3', 's_cbranch_vccnz L_slow']
    if OPT.get('twice'):
        global NF2
        NF2 = globals().get('NF2', 0) + 1
        L += ['s_cmp_eq_u32 s77, 0', f's_cbranch_scc1 L_fin{NF2}', 's_sub_u32 s77, s77, 1', 's_waitcnt vmcnt(0) lgkmcnt(0)', 's_barrier',
              'v_mbcnt_lo_u32_b32 v0, -1, 0', 'v_mbcnt_hi_u32_b32 v0, -1, v0', f's_lshl_b32 {s(sT)}, {s(sW)}, 6', f'v_add_u32 v0, {s(sT)}, v0', 's_branch L_again', f'L_fin{NF2}:']
    if OPT.get('fixed'):
        global NFIX
        NFIX = globals().get('NFIX', 0) + 1
        ph = OPT.get('phase')
        L += ['s_waitcnt vmcnt(0) lgkmcnt(0)', f's_mov_b32 {s(sT+4)}, {OPT["fixed"]}']
        if ph:
            L += [f's_sub_u32 {s(sT+5)}, {s(sST+2*ph)}, {s(sST+2*OPT.get("phase0",0))}', f's_lshr_b32 {s(sT+5)}, {s(sT+5)}, 3', f's_add_u32 {s(sT+4)}, {s(sT+4)}, {s(sT+5)}']
        L += [f'L_spin{NFIX}:', f's_memrealtime {s(sT,2)}', 's_waitcnt lgkmcnt(0)', f's_sub_u32 {s(sT)}, {s(sT)}, s100',
              f's_cmp_lt_u32 {s(sT)}, {s(sT+4)}', f's_cbranch_scc1 L_spin{NFIX}', 's_endpgm']
        return L
    if OPT['stamp']:
        L += [f's_memtime {s(sST+14,2)}', 's_waitcnt vmcnt(0)', f's_memtime {s(sT,2)}', f's_memrealtime {s(sT+2,2)}',
              f's_load_dwordx2 s[24:25], s[0:1], {56 if OPT["stamp"] == 1 else 48}', 's_waitcnt lgkmcnt(0)',
              f's_mov_b32 s26, {0x100000 if OPT["stamp"] == 1 else 64}', 's_mov_b32 s27, 0x20000']
        if OPT['stamp'] == 2:
            for i in range(1, 8): L.append(f's_sub_u32 {s(sST+2*i)}, {s(sST+2*i)}, {s(sST)}')
            L += [f's_sub_u32 {s(sT)}, {s(sT)}, {s(sST)}', f's_sub_u32 {s(sT+2)}, {s(sT+2)}, s100']
        for i in range(8): L.append(f'v_mov_b32 v{i}, {s(sST+2*i)}')
        L += [f'v_mov_b32 v8, {s(sT)}', f'v_mov_b32 v9, {s(sT+2)}', 'v_mov_b32 v10, s100', 'v_mov_b32 v11, 0',
              f's_lshl_b32 {s(sT)}, s2, 2', f's_add_u32 {s(sT)}, {s(sT)}, {s(sW)}', f's_lshl_b32 {s(sT)}, {s(sT)}, 6',
              'v_mov_b32 v12, 0', 's_mov_b64 exec, 1',
              f'buffer_store_dwordx4 v[0:3], v12, s[24:27], {s(sT)} offen',
              f'buffer_store_dwordx4 v[4:7], v12, s[24:27], {s(sT)} offen offset:16',
              f'buffer_store_dwordx4 v[8:11], v12, s[24:27], {s(sT)} offen offset:32']
    L += ['s_endpgm']
    return L

def main():
    pro, pend0 = prologue()
    if OPT.get('memtest'):
        L = [f'{NAME}:'] + pro + finish() + ['L_slow:', 'L_end:', 's_endpgm']
        return write(L)
    loop, pend = loop_code()
    assert [x[0] for x in pend0] == [x[0] for x in pend][-len(pend0):] or not pend0, (pend0, pend)
    L = [f'{NAME}:'] + pro + stamp(5) + loop
    L += ['L_tail:'] + stamp(6) + [f's_cmp_gt_u32 {s(sNKB)}, 1', 's_cbranch_scc1 L_tail234']
    L += ['; ---- tail nkb=1'] + tail(1, pend) + finish()
    L += ['L_tail234:', f's_cmp_eq_u32 {s(sNKB)}, 3', 's_cbranch_scc1 L_tail3', f's_cmp_eq_u32 {s(sNKB)}, 4', 's_cbranch_scc1 L_tail4']
    L += tail(2, pend) + finish() + ['L_tail3:'] + tail(3, pend) + finish() + ['L_tail4:'] + tail(4, pend) + finish()
    L += slow() + ['L_end:', 's_endpgm']
    write(L)

def write(L):
    L, nn = fix_hazards(L)
    print('nops inserted:', nn, ' leftovers:', sorted(LEFT))
    hdr = open('standalone__paged_block_table_kv_pagedattention__prompt.s.ref').read().split('; Override')[0]
    txt = hdr + '; Generated by gen/gen.py (hand-written generator).\n'
    txt += '; @launch grid=(256,1,1) block=(256,1,1) lds=163840\n'
    txt += f'.amdgcn_target "amdgcn-amd-amdhsa--gfx950"\n.text\n.globl {NAME}\n.p2align 8\n.type {NAME},@function\n'
    for l in L:
        txt += (l if l.endswith(':') or l.startswith(('.', ';')) else '    ' + l) + '\n'
    txt += f'''.section .rodata,"a"
.p2align 6
.amdhsa_kernel {NAME}
  .amdhsa_next_free_vgpr 472
  .amdhsa_next_free_sgpr 102
  .amdhsa_accum_offset 256
  .amdhsa_group_segment_fixed_size 0
  .amdhsa_kernarg_size 64
  .amdhsa_user_sgpr_count 2
  .amdhsa_user_sgpr_kernarg_segment_ptr 1
  .amdhsa_system_sgpr_workgroup_id_x 1
.end_amdhsa_kernel
'''
    open(sys.argv[1], 'w').write(txt)
    if OPT.get('show'):
        for g in range(NG): print(g, PAT[g])
main()
```

```python
import sys
from asmcheck import parse, hazards, fix_hazards

NAME = 'standalone__paged_block_table_kv_pagedattention__prompt_kernel'
FL = {0: '', 1: ' nt', 2: ' sc1', 3: ' sc0 sc1', 4: ' sc1 nt', 5: ' sc0 sc1 nt', 6: ' sc0', 7: ' sc0 nt'}
OPT = dict(po=0, cpf=0, qf=1, kf=0, of=0, delta=9, stamp=0, lat=8, forceslow=0, skipdma=1)
for a in sys.argv[2:]:
    k, v = a.split('='); OPT[k] = int(v, 0)

S0, P0, KA, VA, BT, DK, DV, IDX, OV, MK, T0, O0 = 0, 64, 96, 100, 108, 112, 113, 114, 115, 116, 120, 128
QV = P0 + 31
aQ, aK, aV, aL, aONE = 0, 64, 128, 192, 208
sW, sCL, sN, sIT, sLN = 3, 36, 37, 38, 39
SETS = (56, 60)
sMK, sMV, sC, sC2, sNKB, sVOFF, sFORCE, sKB, sVB, sCLT = 64, 65, 66, 67, 68, 69, 70, 71, 72, 73
sQ1, sQ2, sQ3 = 74, 75, 76
sT = 78
sST = 84
KBYTES = 132 * 65536
LAT = OPT['lat']
NEG = 0xf149f2ca

def v(b, n=1): return f'v{b}' if n == 1 else f'v[{b}:{b+n-1}]'
def a(b, n=1): return f'a{b}' if n == 1 else f'a[{b}:{b+n-1}]'
def s(b, n=1): return f's{b}' if n == 1 else f's[{b}:{b+n-1}]'

def qk(q, kb, ks, mask=False):
    D = v(S0 + 16*q + 4*kb, 4)
    C = D if ks else (v(MK, 4) if mask else '0')
    return f'v_mfma_f32_16x16x32_bf16 {D}, {a(aK+16*kb+4*ks,4)}, {a(aQ+16*q+4*ks,4)}, {C}'
def pv(q, db, ks, vbase=None, first=False):
    D = v(O0 + 32*q + 4*db, 4)
    A = a(aV + (2*db+ks)*4, 4) if vbase is None else a(vbase + 4*db, 4)
    return f'v_mfma_f32_16x16x32_bf16 {D}, {A}, {v(P0+8*q+4*ks,4)}, {"0" if first and ks == 0 else D}'
def sm(q):
    return f'v_smfmac_f32_16x16x64_bf16 {a(aL+4*q,4)}, {a(aONE,4)}, {v(P0+8*q,8)}, {v(IDX)}'
def qkg(q, nkb=4, mask=False): return [qk(q, kb, ks, mask and kb == nkb-1) for kb in range(nkb) for ks in range(4)]
def pvg(q, nks=2, vbase=None, first=False): return [pv(q, db, ks, vbase, first) for db in range(8) for ks in range(nks)] + [sm(q)]

def i_exp(q, n): return f'v_exp_f32 {v(S0+16*q+n)}, {v(S0+16*q+n)}'
def i_cvt(q, i): return f'v_cvt_pk_bf16_f32 {v(P0+8*q+i)}, {v(S0+16*q+2*i)}, {v(S0+16*q+2*i+1)}'
def i_kread(kb, ks, slot, tile): return f'ds_read_b128 {a(aK+16*kb+4*ks,4)}, {v(KA+ks)} offset:{slot*16384+kb*1024}'
def i_vread(db, ks, t, slot, tile, vbase=None):
    d = (aV + (2*db+ks)*4 if vbase is None else vbase + 4*db) + 2*t
    return f'ds_read_b64_tr_b16 {a(d,2)}, {v(VA+db)} offset:{slot*16384+(2*ks+t)*1024}'
def i_dma(isv, i, soff, tile):
    return f'buffer_load_dwordx4 {v(DV if isv else DK)}, {s(12 if isv else 8,4)}, {s(soff+i)} offen offset:{i*1024}{FL[OPT["kf"]]} lds'
def i_m0(isv, slot): return f's_add_u32 m0, {s(sMV if isv else sMK)}, {slot*16384}'

class Op:
    def __init__(self, key, cls, rel, dl, text, deps=(), fifo=None):
        self.key, self.cls, self.rel, self.dl, self.text, self.deps, self.fifo = key, cls, rel, dl, text, list(deps), fifo
        self.gap = None
class Gap:
    def __init__(self): self.sc, self.mem, self.valu, self.post = [], [], [], []; self.block = None

def schedule(ngaps, ops, gaps=None, overflow=False, g0=0):
    gaps = gaps or [Gap() for _ in range(ngaps)]
    byk = {o.key: o for o in ops}
    todo = list(ops)
    def ready(o, g):
        if o.rel > g: return False
        for d in o.deps:
            p = byk.get(d)
            if p is not None and (p.gap is None or p.gap >= g): return False
        if o.fifo is not None:
            p = byk[o.fifo]
            if p.gap is None: return False
            if o.cls == 'D' and p.gap >= g: return False
        return True
    def put(o, g):
        o.gap = g; todo.remove(o)
        (gaps[g].mem if o.cls in 'DRT' else gaps[g].valu).append(o)
    for g in range(g0, ngaps):
        if gaps[g].block != 'all':
            cand = sorted((o for o in todo if ready(o, g)), key=lambda o: o.dl)
            if gaps[g].block == 'half': cand = [o for o in cand if o.cls == 'H'][:1]
            if cand:
                top = cand[0]
                halves = [o for o in cand if o.cls in 'RTH']
                full = [o for o in cand if o.cls in 'ED']
                if top.cls in 'RTH' and len(halves) == 1 and full and top.dl - g > 6 and top.fifo is None: top = full[0]
                put(top, g)
                if top.cls in 'RTH' and gaps[g].block != 'half':
                    cand2 = sorted((o for o in todo if o.cls in 'RTH' and ready(o, g)), key=lambda o: o.dl)
                    cand2 = [o for o in cand2 if not (o.cls == 'R' and top.cls == 'R')]
                    if cand2:
                        pick = cand2[0]
                        if top.cls in 'RT' and pick.cls in 'RT' and pick.dl - g > 8:
                            h = [o for o in cand2 if o.cls == 'H']
                            if h: pick = h[0]
                        put(pick, g)
        late = [o for o in todo if o.dl <= g]
        if late:
            if not overflow: raise RuntimeError(f'deadline miss at gap {g}: {[o.key for o in late]}')
            def force(o):
                if o.gap is not None: return
                for d in o.deps + ([o.fifo] if o.fifo else []):
                    if d in byk: force(byk[d])
                assert o.rel <= g, (o.key, o.rel, g)
                o.gap = g; todo.remove(o); gaps[g].post.append(o.text)
            for o in sorted(late, key=lambda o: ({'R': 0, 'T': 0, 'D': 0, 'E': 1, 'H': 2}[o.cls], o.dl)): force(o)
    return gaps, todo

def emit(mf, gaps, off=0):
    out = []
    for i, m in enumerate(mf):
        g = gaps[off + i]
        out.append(m)
        out += g.sc
        out += [o.text for o in g.mem] + [o.text for o in g.valu] + g.post
    return out

def softmax_ops(tile, q, qkstart, pvstart, nkb=4, prel=0, fixed=None):
    ops = []
    n = 4 * nkb
    for e in range(n):
        kb = e // 4
        if fixed is not None: ops.append(Op(('e', tile, q, e), 'E', qkstart + fixed + 2*e, qkstart + fixed + 2*e, i_exp(q, e)))
        else: ops.append(Op(('e', tile, q, e), 'E', qkstart + 4*kb + 3 + 5, pvstart - 4 - 2*(n - 1 - e), i_exp(q, e)))
    for i in range(2 * nkb):
        ops.append(Op(('c', tile, q, i), 'H', prel, pvstart - 3 - (2*nkb - 1 - i), i_cvt(q, i),
                      deps=[('e', tile, q, 2*i), ('e', tile, q, 2*i+1)]))
    for i in range(2 * nkb, 8):
        ops.append(Op(('z', tile, q, i), 'H', prel, pvstart - 3, f'v_mov_b32 {v(P0+8*q+i)}, 0'))
    return ops

NG = 132
LOOP_MF = qkg(0) + pvg(2) + qkg(1) + pvg(3) + qkg(2) + pvg(0) + qkg(3) + pvg(1)
assert len(LOOP_MF) == NG
BARG = 47
DMAG = [10, 14, 18, 22, 26, 30, 34, 38]

def steady():
    NT = 6
    ops = []
    gaps = [Gap() for _ in range(NG * (NT + 1))]
    for j in range(NT):
        b = NG * j
        for q in range(4):
            pvs = b + 82 + 33*q
            ops += softmax_ops(j, q, b + 33*q, pvs, prel=pvs - NG + 17, fixed=OPT['delta'])
        for db in range(8):
            for ks in range(2):
                for t in range(2):
                    f = 2*db + ks
                    ops.append(Op(('v', j, db, ks, t), 'T', max(b + 49 + f + 1, b + BARG + 1), b + 82 + f - LAT - (1 - t), ('v', db, ks, t)))
        for kb in range(4):
            for ks in range(4):
                f = 4*kb + ks
                ops.append(Op(('k', j, kb, ks), 'R', b + 99 + f + 1, min(b + NG - 2 - (15 - f), b + NG + f - LAT), ('k', kb, ks),
                              deps=[('k', j, (f-1)//4, (f-1)%4)] if f else []))
        for i in range(4):
            ops.append(Op(('rl', j, i), 'H', b, b + 20 + i, ('rl', i)))
        for i in range(8):
            ops.append(Op(('d', j, i), 'D', b + DMAG[i], b + DMAG[i], ('d', i),
                          deps=[('rl', j, x) for x in range(4)] if i >= 4 else []))
        gaps[b + BARG].block = 'all'
        gaps[b + NG - 1].block = 'half'
    schedule(NG * NT, ops, gaps, overflow=False) if False else None
    schedule(NG * (NT + 1), ops, gaps)
    def pattern(j):
        return [[(o.key[0], o.key[1] - j) + o.key[2:] for o in gaps[NG*j + g].mem + gaps[NG*j + g].valu] for g in range(NG)]
    p3, p4 = pattern(3), pattern(4)
    assert p3 == p4, 'no steady state'
    return p3
PAT = steady()
LEFT = {k for g in PAT for k in g if k[1] == -1}
assert all(k[0] in 'ec' for k in LEFT), LEFT

def key_text(k, j4, tile):
    kind = k[0]
    if kind == 'e': return i_exp(k[2], k[3])
    if kind == 'c': return i_cvt(k[2], k[3])
    if kind == 'v': return i_vread(k[2], k[3], k[4], j4, tile)
    if kind == 'k': return i_kread(k[2], k[3], (j4 + 1) % 4, tile + 1)
    if kind == 'rl': return f'v_readlane_b32 {s(SETS[(j4+3)%2] + k[2])}, {v(BT+k[2])}, {s(sLN)}'
    if kind == 'd':
        i = k[2]
        if i < 4: return i_dma(1, i, SETS[j4 % 2], tile + 2)
        return i_dma(0, i - 4, SETS[(j4 + 3) % 2], tile + 3)
    raise KeyError(k)

class Txt:
    def __init__(self, t): self.text = t

def add_lgkm_waits(lines, pre_ds=(), lead=None):
    ins = parse(lines)
    q = [(set(r), -age) for r, age in pre_ds]
    out = []; gap = -1
    lastm = None
    q_at_lastm = None
    for x in ins:
        if x.cls == 'mfma':
            needed = [i for i, (r, g) in enumerate(q) if r & x.r]
            if needed:
                k = max(needed)
                if lastm is not None and k < q_at_lastm:
                    visible = q_at_lastm
                    while k + 1 < visible and q[k + 1][1] <= gap - LAT: k += 1
                    n = min(15, visible - 1 - k)
                    out.insert(lastm, f's_waitcnt lgkmcnt({n})')
                    k = visible - 1 - n
                else:
                    n = min(15, len(q) - 1 - k)
                    out.append(f's_waitcnt lgkmcnt({n})')
                    k = len(q) - 1 - n
                q = q[k + 1:]
            gap += 1
            out.append(x.text); lastm = len(out); q_at_lastm = len(q)
        else:
            if x.cls == 'ds': q.append((set(x.w), gap))
            if x.cls == 'wait' and x.lgkm is not None:
                q = q[max(0, len(q) - x.lgkm):] if x.lgkm else []
                if q_at_lastm is not None: q_at_lastm = min(q_at_lastm, len(q))
            out.append(x.text)
    return out, [(r, gap - g) for r, g in q]

def body(j4, tile, exit_label, last):
    gaps = [Gap() for _ in range(NG)]
    for g in range(NG):
        for k in PAT[g]:
            t = Txt(key_text(k, j4, tile))
            (gaps[g].mem if k[0] in 'vkd' else gaps[g].valu).append(t)
    gd = {k[2]: g for g in range(NG) for k in PAT[g] if k[0] == 'd'}
    grl = max(g for g in range(NG) for k in PAT[g] if k[0] == 'rl')
    gaps[gd[0] - 2].sc.append(i_m0(1, (j4 + 2) % 4))
    gaps[gd[4] - 2].sc.append(i_m0(0, (j4 + 3) % 4))
    if OPT['skipdma']:
        gaps[1].sc.append(f's_cmp_le_u32 {s(sLN)}, {s(sN)}')
        gaps[2].sc.append(f's_cselect_b32 s14, {s(sVB)}, 0')
        gaps[3].sc.append(f's_cmp_lt_u32 {s(sLN)}, {s(sN)}')
        gaps[4].sc.append(f's_cselect_b32 s10, {s(sKB)}, 0')
    gaps[max(grl + 1, 50)].sc.append(f's_add_u32 {s(sLN)}, {s(sLN)}, 1')
    gaps[BARG - 1].sc.append('s_waitcnt vmcnt(16)')
    gaps[BARG].sc.append('s_barrier')
    gaps[NG - 2].sc.append(f's_sub_u32 {s(sIT)}, {s(sIT)}, 1')
    lines = emit(LOOP_MF, gaps)
    return lines

def loop_code():
    l0 = body(1, 1, None, False)
    _, pend = add_lgkm_waits(l0)
    out = ['.p2align 6', 'L_loop:']
    for u in range(4):
        j4 = (u + 1) % 4
        l, pend2 = add_lgkm_waits(body(j4, u + 1, None, False), pend)
        assert [x[0] for x in pend2] == [x[0] for x in pend]
        out += [f'; ---- body tile%4 == {j4}'] + l
        if u < 3: out.append('s_cbranch_scc1 L_tail')
        else: out += ['s_cbranch_scc0 L_loop']
    return out, pend

def epi_list(q, first, pk=False):
    t = T0 + 2 * (q & 1)
    o = O0 + 32*q
    L = [('H', f'v_accvgpr_read_b32 {v(t)}, {a(aL+4*q)}'),
         ('H', f'v_accvgpr_read_b32 {v(t+1)}, {a(aL+4*q+1)}'),
         ('H', f'v_add_f32 {v(t)}, {v(t)}, {v(t+1)}'),
         ('H', f'v_rcp_f32 {v(t+1)}, {v(t)}'),
         ('H', f'v_subrev_u32 {v(t)}, 0x2b800000, {v(t)}')]
    L.append(('H', f'v_mov_b32 {v(T0+4)}, {v(t)}' if first else f'v_max_u32 {v(T0+4)}, {v(T0+4)}, {v(t)}'))
    def muls(u): return [('M', (o + 8*u + i, t + 1)) for i in range(8)]
    def cvts(u): return [('H', f'v_cvt_pk_bf16_f32 {v(o+8*u+i)}, {v(o+8*u+2*i)}, {v(o+8*u+2*i+1)}') for i in range(4)]
    def swaps(u): return [('H', f'v_permlane16_swap_b32 {v(o+8*u+i)}, {v(o+8*u+2+i)}') for i in range(2)]
    def store(u):
        so = '0' if q == 0 else s(sQ1 + q - 1)
        return [('D', f'buffer_store_dwordx4 {v(o+8*u,4)}, {v(OV)}, s[16:19], {so} offen offset:{64*u}{FL[OPT["of"]]}')]
    L += muls(0) + cvts(0) + muls(1) + swaps(0) + cvts(1) + store(0) + muls(2) + swaps(1) + cvts(2) + store(1) \
       + muls(3) + swaps(2) + cvts(3) + store(2) + [('H', 's_nop 0')] + swaps(3) + store(3)
    return L
def mul_text(x): return f'v_mul_f32 {v(x[0])}, {v(x[1])}, {v(x[0])}'

def tail(nkb, pend):
    nks = 1 if nkb <= 2 else 2
    vbase = aK + 32 if nkb <= 2 else None
    G = {}
    if nkb <= 2:
        order = [('qk', 0), ('qk', 1), ('pvp', 2), ('qk', 2), ('pv', 0), ('pvp', 3), ('pv', 1), ('qk', 3), ('pv', 2), ('pv', 3)]
    else:
        order = [('qk', 0), ('pvp', 2), ('qk', 1), ('pvp', 3), ('qk', 2), ('pv', 0), ('qk', 3), ('pv', 1), ('pv', 2), ('pv', 3)]
    mf = []
    for kind, q in order:
        G[(kind, q)] = len(mf)
        mf += qkg(q, nkb, True) if kind == 'qk' else (pvg(q) if kind == 'pvp' else pvg(q, nks, vbase))
    n = len(mf)
    ops = []
    for q in (2, 3):
        pvs = G[('pvp', q)]
        for o in softmax_ops(-1, q, -100, pvs, prel=0):
            if (o.key[0], -1) + o.key[2:] in LEFT:
                o.rel = 0
                o.dl = max(o.dl, 0)
                o.dl = min(o.dl, G[('qk', q)] - 1) if G[('qk', q)] > 0 else o.dl
                ops.append(o)
    for q in range(4):
        prel = G[('pvp', q)] + 17 if q >= 2 else 0
        so = softmax_ops(0, q, G[('qk', q)], G[('pv', q)], nkb, prel)
        for o in so: o.dl = max(o.dl, o.rel, min(G[('pv', q)] - 1, o.rel + 1) if o.cls == 'E' else min(G[('pv', q)] - 1, G[('qk', q)] + 4*nkb + 4))
        ops += so
    for db in range(8):
        ops.append(Op(('va', db), 'H', 0, 3 + db // 2, f'v_add_u32 {v(VA+db)}, {s(sVOFF)}, {v(VA+db)}'))
    for db in range(8):
        for ks in range(nks):
            for t in range(2):
                f = nks*db + ks
                rel = 2 if vbase else G[('pvp', 3)] + 2*db + ks + 1
                ops.append(Op(('v', db, ks, t), 'T', rel, G[('pv', 0)] + f - LAT - (1 - t), i_vread(db, ks, t, 0, 'T', vbase), deps=[('va', db)]))
    prev = None; epi = []
    for q in range(4):
        rel = G[('pv', q)] + 8*nks + 5
        for i, (c, t) in enumerate(epi_list(q, q == 0)):
            o = Op(('ep', q, i), 'D' if c == 'D' else 'H', rel, 10000 + 100*q + i, mul_text(t) if c == 'M' else t, fifo=prev)
            o.raw = (c, t); prev = o.key; epi.append(o)
    ops += epi
    gaps = [Gap() for _ in range(n)]
    gaps[0].sc.append('s_waitcnt vmcnt(8)')
    gaps[1].sc.append('s_barrier'); gaps[1].block = 'all'
    gaps, todo = schedule(n, ops, gaps, overflow=True)
    lines = emit(mf, gaps)
    assert all(o.key[0] == 'ep' for o in todo), [o.key for o in todo]
    i = 0
    while i < len(todo):
        c, t = todo[i].raw
        if c == 'M' and i + 1 < len(todo) and todo[i+1].raw[0] == 'M' and t[0] % 2 == 0 and todo[i+1].raw[1][0] == t[0] + 1:
            r = t[1]
            lines.append(f'v_pk_mul_f32 {v(t[0],2)}, {v(t[0],2)}, {v(r-1,2)} op_sel:[0,1] op_sel_hi:[1,1]'); i += 2
        else:
            lines.append(todo[i].text); i += 1
    lines, _ = add_lgkm_waits(lines, pend)
    return lines

def scale_q(q):
    out = []
    for h in range(0, 16, 4):
        for i in range(4):
            x = S0 + 16*q + h + i; t = T0 + 2*i
            out += [f'v_lshlrev_b32 {v(t)}, 16, {v(x)}', f'v_and_b32 {v(t+1)}, 0xffff0000, {v(x)}']
        for i in range(4):
            t = T0 + 2*i
            out.append(f'v_pk_mul_f32 {v(t,2)}, {v(t,2)}, {s(sC,2)}')
        for i in range(4):
            x = S0 + 16*q + h + i; t = T0 + 2*i
            out.append(f'v_cvt_pk_bf16_f32 {v(x)}, {v(t)}, {v(t+1)}')
        for i in range(4):
            x = S0 + 16*q + h + i
            out.append(f'v_accvgpr_write_b32 {a(aQ+16*q+h+i)}, {v(x)}')
    return out
def qload(q): return [f'buffer_load_dwordx4 {v(S0+16*q+4*ks,4)}, {v(QV)}, s[4:7], {"0" if q == 0 else s(sQ1+q-1)} offen offset:{64*ks}{FL[OPT["qf"]]} ; ld Q{q}' for ks in range(4)]
def dma4(isv, tile):
    soff = 40 + 4*tile if tile < 3 else SETS[1]
    return [i_m0(isv, tile), 's_nop 0'] + [i_dma(isv, i, soff, tile) for i in range(4)]
def btprep(tile):
    out = []
    for i in range(4):
        src = 40 + 4*tile + i; dst = src if tile < 3 else SETS[1] + i
        out.append(f's_lshl_b32 {s(dst)}, {s(src)}, 16')
        if i < 3: out.append(f's_or_b32 {s(dst)}, {s(dst)}, {(3-i)*1024}')
    return out
def stamp(i): return [f's_memtime {s(sST+2*i,2)}'] if OPT['stamp'] else []

def resolve_waitvm(lines):
    out = []; vm = []
    for l in lines:
        if l.startswith('WAITVM'):
            tags = l.split(None, 1)[1].split('|')
            last = max(i for i, t in enumerate(vm) if t in tags)
            out.append(f's_waitcnt vmcnt({len(vm) - 1 - last}) ; {tags}')
        else:
            if l.startswith(('buffer_', 'global_')): vm.append(l.split(';')[1].strip() if ';' in l else '')
            out.append(l)
    return out

def memtest(L):
    t = T0; mt = OPT['memtest']
    srd = [f's_add_u32 s8, s26, {s(sT)}', 's_addc_u32 s9, s27, 0', 's_sub_u32 s8, s8, 3072', 's_subb_u32 s9, s9, 0',
          f's_add_u32 s12, s28, {s(sT)}', 's_addc_u32 s13, s29, 0', 's_sub_u32 s12, s12, 3072', 's_subb_u32 s13, s13, 0',
          f's_add_u32 s16, s34, {s(sT+1)}', 's_addc_u32 s17, s35, 0']
    nt = FL[OPT['qf']]
    ql = qload
    def qdma(q):
        o = [f's_add_u32 m0, {s(sMK)}, {0x8000 + q*16384}', 's_nop 0']
        return o + [f'buffer_load_dwordx4 {v(t+5)}, s[4:7], {"0" if q == 0 else s(sQ1+q-1)} offen offset:{1024*i}{nt} lds ; ld Q{q}' for i in range(4)]
    L += stamp(1)
    L += [f'v_lshlrev_b32 {v(t+5)}, 14, {v(t)}', f'v_lshl_add_u32 {v(t+5)}, {v(t+1)}, 4, {v(t+5)}']
    bt = ['s_waitcnt lgkmcnt(0)'] + stamp(2) + btprep(0) + btprep(1) + btprep(2) + btprep(3)
    W = lambda tag, i: [f'WAITVM {tag}'] + stamp(i)
    if mt == 1: L += ql(0) + ql(1) + ql(2) + ql(3) + srd + bt + W('ld Q0', 3) + W('ld Q1', 4) + W('ld Q2', 5) + W('ld Q3', 6)
    if mt == 2: L += qdma(0) + qdma(1) + qdma(2) + qdma(3) + srd + bt + W('ld Q0', 3) + W('ld Q1', 4) + W('ld Q2', 5) + W('ld Q3', 6)
    if mt == 3: L += srd + bt + dma4(0, 0) + W('dma K 0', 3) + dma4(1, 0) + W('dma V 0', 4) + dma4(0, 1) + W('dma K 1', 5) + ql(0) + W('ld Q0', 6)
    if mt == 4: L += ql(0) + srd + bt + dma4(0, 0) + W('ld Q0', 3) + W('dma K 0', 4) + ql(1) + ql(2) + ql(3) + W('ld Q1', 5) + W('ld Q3', 6)
    if mt == 5: L += ql(0) + srd + bt + dma4(0, 0) + ql(1) + ql(2) + ql(3) + W('ld Q0', 3) + W('dma K 0', 4) + W('ld Q1', 5) + W('ld Q3', 6)
    if mt == 6: L += ql(0) + ql(1) + srd + bt + dma4(0, 0) + ql(2) + ql(3) + W('ld Q0', 3) + W('dma K 0', 4) + W('ld Q2', 5) + W('ld Q3', 6)
    if mt == 7: L += srd + bt + dma4(0, 0) + dma4(1, 0) + dma4(0, 1) + dma4(1, 1) + dma4(0, 2) + dma4(1, 2) + dma4(0, 3) + W('dma K 0', 3) + W('dma K 1', 4) + W('dma K 2', 5) + W('dma K 3', 6)
    if mt == 8: L += ql(0) + srd + bt + dma4(0, 0) + ql(1) + ql(2) + dma4(1, 0) + dma4(0, 1) + ql(3) + W('ld Q0', 3) + W('dma K 0', 4) + W('dma K 1', 5) + W('ld Q3', 6)
    allkv = lambda: dma4(0, 0) + dma4(1, 0) + dma4(0, 1) + dma4(1, 1) + dma4(0, 2) + dma4(1, 2) + dma4(0, 3)
    if mt == 9: L += srd + bt + allkv() + W('dma K 3', 3) + allkv() + W('dma K 3', 4) + allkv() + W('dma K 3', 5) + ql(0) + ql(1) + ql(2) + ql(3) + W('ld Q3', 6)
    if mt == 10:
        L += ql(0) + ql(1) + ql(2) + ql(3) + srd + bt + W('ld Q3', 3) + ql(0) + ql(1) + ql(2) + ql(3) + W('ld Q3', 4) + allkv() + W('dma K 3', 5) + ql(0) + ql(1) + ql(2) + ql(3) + W('ld Q3', 6)
    if mt in (11, 12, 13):
        L += [f's_lshl_b32 s56, {s(sW)}, 14', 's_add_u32 s56, s4, s56', 's_addc_u32 s57, s5, 0']
        pf = lambda lo, hi, step: [f's_load_dword s58, s[56:57], {o}' for o in range(lo, hi, step)]
        if mt == 11: L += ql(0) + ql(1) + pf(8192, 16384, 128) + stamp(2) + ql(2) + ql(3) + W('ld Q0', 3) + W('ld Q1', 4) + W('ld Q2', 5) + W('ld Q3', 6)
        if mt == 12: L += stamp(2) + pf(0, 16384, 128) + stamp(3) + ['s_waitcnt lgkmcnt(0)'] + stamp(4) + ql(0) + ql(1) + ql(2) + ql(3) + W('ld Q0', 5) + W('ld Q3', 6)
        if mt == 13: L += stamp(2) + pf(0, 16384, 64) + stamp(3) + ['s_waitcnt lgkmcnt(0)'] + stamp(4) + ql(0) + ql(1) + ql(2) + ql(3) + W('ld Q0', 5) + W('ld Q3', 6)
    if mt >= 20:
        L += srd + bt
        of = FL[OPT['of']]
        if mt == 20:
            for q in range(4):
                for u in range(4): L.append(f'buffer_store_dwordx4 v[{16*q+4*u}:{16*q+4*u+3}], {v(OV)}, s[16:19], {"0" if q == 0 else s(sQ1+q-1)} offen offset:{64*u}{of} ; st{q}')
        if mt == 21:
            for q in range(4):
                for u in range(4): L.append(f'buffer_store_dwordx4 v[{16*q+4*u}:{16*q+4*u+3}], {v(t+5)}, s[16:19], {"0" if q == 0 else s(sQ1+q-1)} offen offset:{1024*u}{of} ; st{q}')
        if mt == 22:
            L += [f'v_lshrrev_b32 {v(t+4)}, 3, {v(t+1)}', f'v_lshlrev_b32 {v(t+4)}, 8, {v(t+4)}', f'v_and_b32 {v(t+6)}, 7, {v(t+1)}',
                  f'v_lshl_add_u32 {v(t+4)}, {v(t+6)}, 4, {v(t+4)}', f'v_lshl_add_u32 {v(t+4)}, {v(t)}, 14, {v(t+4)}']
            for q in range(4):
                for u in range(4): L.append(f'buffer_store_dwordx4 v[{16*q+4*u}:{16*q+4*u+3}], {v(t+4)}, s[16:19], {"0" if q == 0 else s(sQ1+q-1)} offen offset:{128*(u&1)+2048*(u>>1)}{of} ; st{q}')
        L += stamp(3) + W('st0', 4) + W('st1', 5) + W('st3', 6)
    L += [f'v_mov_b32 {v(T0+4)}, 0', f's_mov_b32 {s(sFORCE)}, 0', 's_nop 3']
    return resolve_waitvm(L), None

def prologue():
    L = []
    A = L.append
    if OPT.get('xmask') is not None:
        L += [f's_and_b32 s3, s2, {OPT["xmask"]}', 's_cmp_lg_u32 s3, 0', 's_cbranch_scc1 L_end']
    if OPT.get('twice'): L += [f's_mov_b32 s77, {OPT["twice"]}'] + (['s_memrealtime s[100:101]'] if OPT['stamp'] else []) + ['L_again:']
    L += ['s_cmp_ge_u32 s2, 256', 's_cbranch_scc1 L_end',
          's_load_dwordx8 s[24:31], s[0:1], 0', 's_load_dwordx4 s[32:35], s[0:1], 32']
    if OPT['cpf']:
        L += ['s_getpc_b64 s[4:5]', 'L_pc:', 's_lshr_b32 s6, s2, 3', 's_lshl_b32 s6, s6, 10',
              f'v_lshl_add_u32 v2, v0, 2, s6', f'v_min_u32 v2, L_codeend-L_pc-4, v2', 'v_mov_b32 v3, s5',
              'v_add_co_u32 v2, vcc, s4, v2', 's_nop 1', 'v_addc_co_u32 v3, vcc, 0, v3, vcc', f'global_load_dword {v(T0+7)}, v[2:3], off']
    L += stamp(0) + ([f's_memrealtime s[100:101]'] if OPT['stamp'] and not OPT.get('twice') else [])
    t = T0
    L += [f'v_lshrrev_b32 {v(t)}, 6, v0',
          f'v_and_b32 {v(t+1)}, 63, v0',
          f'v_readfirstlane_b32 {s(sW)}, {v(t)}',
          f'v_and_b32 {v(t+2)}, 15, v0',
          f'v_bfe_u32 {v(t+3)}, v0, 4, 2',
          f's_and_b32 {s(sT)}, s2, 7', f's_lshr_b32 {s(sT+1)}, s2, 3', f's_lshr_b32 {s(sT+2)}, {s(sT+1)}, 4',
          f's_lshl_b32 {s(sT)}, {s(sT)}, 1', f's_add_u32 {s(sT)}, {s(sT)}, {s(sT+2)}',
          f's_and_b32 {s(sT+1)}, {s(sT+1)}, 15', f's_lshl_b32 {s(sT+2)}, {s(sT)}, 4',
          f's_add_u32 {s(sT+1)}, {s(sT+1)}, {s(sT+2)}', f's_lshl_b32 {s(sT+1)}, {s(sT+1)}, 16',
          f's_lshl_b32 {s(sT)}, {s(sT)}, 8',
          f's_movk_i32 {s(sQ1)}, 0x1000', f's_movk_i32 {s(sQ2)}, 0x2000', f's_movk_i32 {s(sQ3)}, 0x3000',
          f'v_lshlrev_b32 {v(t+4)}, 14, {v(t)}', f'v_lshl_add_u32 {v(t+4)}, {v(t+2)}, 8, {v(t+4)}',
          f'v_lshl_add_u32 {v(QV)}, {v(t+3)}, 4, {v(t+4)}',
          f'v_and_b32 {v(t+5)}, 1, {v(t+3)}', f'v_lshl_add_u32 {v(t+4)}, {v(t+5)}, 5, {v(t+4)}',
          f'v_lshrrev_b32 {v(t+5)}, 1, {v(t+3)}', f'v_lshl_add_u32 {v(OV)}, {v(t+5)}, 4, {v(t+4)}',
          f'v_lshl_add_u32 {v(t+4)}, {v(t)}, 2, {v(t+3)}',
          f'v_xor_b32 {v(t+5)}, {v(t+2)}, {v(t+4)}', f'v_lshlrev_b32 {v(t+5)}, 4, {v(t+5)}',
          f'v_lshl_add_u32 {v(DK)}, {v(t+4)}, 12, {v(t+5)}',
          f'v_and_b32 {v(t+5)}, 7, {v(t+4)}', f'v_lshlrev_b32 {v(t+5)}, 1, {v(t+5)}',
          f'v_xor_b32 {v(t+5)}, {v(t+2)}, {v(t+5)}', f'v_lshlrev_b32 {v(t+5)}, 4, {v(t+5)}',
          f'v_lshl_add_u32 {v(DV)}, {v(t+4)}, 12, {v(t+5)}',
          f'v_lshlrev_b32 {v(t+6)}, 4, {v(t+1)}',
          f's_lshl_b32 {s(sMK)}, {s(sW)}, 12', f's_add_u32 {s(sMV)}, {s(sMK)}, 0x10000',
          's_mov_b32 s6, 0x10000', 's_mov_b32 s7, 0x20000', 's_mov_b32 s11, 0x20000', 's_mov_b32 s15, 0x20000',
          's_mov_b32 s18, 0x10000', 's_mov_b32 s19, 0x20000', 's_movk_i32 s22, 0x200', 's_mov_b32 s23, 0x20000',
          f's_sub_u32 {s(sKB)}, {KBYTES+3072}, {s(sT)}', f's_mov_b32 {s(sVB)}, {s(sKB)}',
          f's_mov_b32 s10, {s(sKB)}', f's_mov_b32 s14, {s(sKB)}',
          's_waitcnt lgkmcnt(0)',
          f's_load_dword {s(sCL)}, s[32:33], 0', 's_load_dwordx16 s[40:55], s[30:31], 0',
          f's_add_u32 s4, s24, {s(sT+1)}', 's_addc_u32 s5, s25, 0',
          's_mov_b32 s20, s30', 's_mov_b32 s21, s31']
    if OPT.get('memtest'): return memtest(L)
    L += qload(0)
    L += [f'buffer_load_dwordx4 {v(BT,4)}, {v(t+6)}, s[20:23], 0 offen',
          f's_add_u32 s8, s26, {s(sT)}', 's_addc_u32 s9, s27, 0', 's_sub_u32 s8, s8, 3072', 's_subb_u32 s9, s9, 0',
          f's_add_u32 s12, s28, {s(sT)}', 's_addc_u32 s13, s29, 0', 's_sub_u32 s12, s12, 3072', 's_subb_u32 s13, s13, 0',
          f's_add_u32 s16, s34, {s(sT+1)}', 's_addc_u32 s17, s35, 0']
    L += [f'v_lshrrev_b32 {v(t+4)}, 2, {v(t+2)}', f'v_lshlrev_b32 {v(t+4)}, 4, {v(t+4)}',
          f'v_and_b32 {v(t+5)}, 3, {v(t+2)}', f'v_add_u32 {v(t+4)}, {v(t+4)}, {v(t+5)}',
          f'v_lshlrev_b32 {v(t+4)}, 8, {v(t+4)}',
          f'v_xor_b32 {v(t+5)}, {v(t+3)}, {v(t+2)}']
    for ks in range(4):
        L += [f'v_xor_b32 {v(KA+ks)}, {4*ks}, {v(t+5)}', f'v_lshl_add_u32 {v(KA+ks)}, {v(KA+ks)}, 4, {v(t+4)}']
    L += [f'v_bfe_u32 {v(t+5)}, {v(t+1)}, 2, 2',
          f'v_lshl_add_u32 {v(t+4)}, {v(t+3)}, 4, {v(t+5)}',
          f'v_lshlrev_b32 {v(t+4)}, 8, {v(t+4)}',
          f'v_and_b32 {v(MK)}, 3, {v(t+1)}', f'v_lshl_add_u32 {v(t+4)}, {v(MK)}, 3, {v(t+4)}',
          f'v_add_u32 {v(t+4)}, 0x10000, {v(t+4)}',
          f'v_lshl_add_u32 {v(t+5)}, {v(t+3)}, 2, {v(t+5)}', f'v_and_b32 {v(t+5)}, 7, {v(t+5)}']
    for db in range(8):
        L += [f'v_xor_b32 {v(VA+db)}, {db}, {v(t+5)}', f'v_lshl_add_u32 {v(VA+db)}, {v(VA+db)}, 5, {v(t+4)}']
    L += [f'v_and_b32 {v(t+4)}, 1, {v(t+1)}', f'v_mov_b32 {v(t+5)}, 0xaaaaaaaa',
          f'v_mul_lo_u32 {v(t+4)}, {v(t+4)}, {v(t+5)}', f'v_or_b32 {v(IDX)}, 0x44444444, {v(t+4)}',
          f'v_mov_b32 {v(t+5)}, 0x3f803f80']
    L += [f'v_accvgpr_write_b32 {a(aONE+i)}, {v(t+5)}' for i in range(4)]
    L += ['s_waitcnt lgkmcnt(0)'] + stamp(1)
    L += btprep(0) + dma4(0, 0) + qload(1)
    L += [f's_mov_b32 {s(sC)}, 0x3e0293ee',
          f's_cmp_lt_i32 {s(sCL)}, 1', f's_cselect_b32 {s(sC)}, 0, {s(sC)}', f's_cselect_b32 {s(sCL)}, 0x800, {s(sCL)}',
          f's_mov_b32 {s(sC2)}, {s(sC)}',
          f's_min_u32 {s(sCLT)}, {s(sCL)}, 0x800',
          f's_cmp_lt_u32 {s(sCLT)}, {4096 if OPT["forceslow"] else 129}', f's_cselect_b32 {s(sFORCE)}, 1, 0',
          f's_max_u32 {s(sCL)}, {s(sCLT)}, 129',
          f's_add_u32 {s(sN)}, {s(sCL)}, 63', f's_lshr_b32 {s(sN)}, {s(sN)}, 6',
          f's_sub_u32 {s(sIT)}, {s(sN)}, 3',
          f's_sub_u32 {s(sT)}, {s(sN)}, 1', f's_and_b32 {s(sVOFF)}, {s(sT)}, 3', f's_lshl_b32 {s(sVOFF)}, {s(sVOFF)}, 14',
          f's_lshl_b32 {s(sT)}, {s(sT)}, 6', f's_sub_u32 {s(sT)}, {s(sCL)}, {s(sT)}',
          f's_add_u32 {s(sNKB)}, {s(sT)}, 15', f's_lshr_b32 {s(sNKB)}, {s(sNKB)}, 4',
          f's_sub_u32 {s(sT)}, {s(sT)}, 1', f's_and_b32 {s(sT)}, {s(sT)}, 15',
          f's_mov_b32 {s(sLN)}, 4']
    L += [f'v_lshlrev_b32 {v(t+4)}, 2, {v(t+3)}', f'v_mov_b32 {v(t+5)}, {NEG:#x}']
    for r in range(4):
        L += [f'v_add_u32 {v(t+6)}, {r}, {v(t+4)}', f'v_cmp_lt_u32 vcc, {s(sT)}, {v(t+6)}', 's_nop 1',
              f'v_cndmask_b32 {v(MK+r)}, 0, {v(t+5)}, vcc']
    L += btprep(1) + btprep(2) + btprep(3)
    L += [f'v_mov_b32 {v(O0+i)}, 0' for i in range(64, 128)]
    L += [f'v_accvgpr_write_b32 {a(aL+i)}, 0' for i in range(16)]
    po = OPT['po']
    groups = {'q2': qload(2), 'q3': qload(3), 'v0': dma4(1, 0), 'k1': dma4(0, 1), 'v1': dma4(1, 1), 'k2': dma4(0, 2), 'v2': dma4(1, 2), 'k3': dma4(0, 3)}
    plan = {0: dict(A=[], B=['q2'], C=['v0', 'q3'], D=['k1', 'v1'], E=['k2'], F=['v2', 'k3']),
            1: dict(A=['q2'], B=['v0'], C=['q3'], D=['k1', 'v1'], E=['k2'], F=['v2', 'k3']),
            2: dict(A=['q2'], B=['v0', 'q3'], C=['k1'], D=['v1', 'k2'], E=['v2', 'k3'], F=[]),
            3: dict(A=[], B=['q2', 'v0'], C=['q3', 'k1'], D=['v1', 'k2'], E=[], F=['v2', 'k3']),
            4: dict(A=[], B=['q2'], C=['v0', 'q3'], D=['k1'], E=['v1', 'k2'], F=['v2', 'k3'])}[po]
    at = lambda p: [x for g in plan[p] for x in groups[g]]
    L += at('A') + ['WAITVM ld Q0'] + stamp(2) + scale_q(0)
    L += ['WAITVM ld BT']
    for i in range(4):
        L.append(f'v_lshlrev_b32 {v(BT+i)}, 16, {v(BT+i)}')
        if i < 3: L.append(f'v_or_b32 {v(BT+i)}, {(3-i)*1024}, {v(BT+i)}')
    L += ['WAITVM dma K 0', 's_barrier'] + stamp(3)
    L += [i_kread(kb, ks, 0, 0) for kb in range(4) for ks in range(4)] + at('B')
    order = [('qk', 0), ('qk', 1), ('qk', 2), ('pv', 0), ('qk', 3), ('pv', 1)]
    G = {}; mf = []
    for kind, q in order:
        G[(kind, q)] = len(mf); mf += qkg(q) if kind == 'qk' else pvg(q, first=True)
    n = len(mf)
    ops = []
    for q in range(4):
        if q < 2: pvs = G[('qk', q)] + 23
        elif q == 2: pvs = G[('qk', 3)] + 2
        else: pvs = n + 2
        for o in softmax_ops(0, q, G[('qk', q)], pvs):
            if (o.key[0], -1) + o.key[2:] in LEFT: continue
            o.dl = max(o.dl, o.rel if o.cls == 'E' else G[('qk', q)] + 4*(o.key[3]//2) + 9)
            o.dl = min(o.dl, n - 1)
            ops.append(o)
    for db in range(8):
        for ks in range(2):
            for tt in range(2):
                f = 2*db + ks
                ops.append(Op(('v', db, ks, tt), 'T', G[('qk', 2)] - 1 + 1, G[('pv', 0)] + f - LAT - (1 - tt), i_vread(db, ks, tt, 0, 0)))
    kb0 = G[('pv', 1)] - 1
    for kb in range(4):
        for ks in range(4):
            f = 4*kb + ks
            ops.append(Op(('k', kb, ks), 'R', kb0 + 1, min(n - 1 - (15 - f), n + f - LAT), i_kread(kb, ks, 1, 1),
                          deps=[('k', (f-1)//4, (f-1)%4)] if f else []))
    gaps = [Gap() for _ in range(n)]
    gaps, todo = schedule(n, ops, gaps, overflow=True)
    assert not todo
    gaps[G[('qk', 1)] - 1].post += ['WAITVM ld Q1'] + at('C') + scale_q(1) + ['s_nop 0']
    gaps[G[('qk', 2)] - 1].post += ['WAITVM ld Q2'] + at('D') + scale_q(2) + ['WAITVM dma V 0', 's_barrier']
    gaps[G[('qk', 3)] - 1].post += ['WAITVM ld Q3'] + stamp(4) + at('E') + scale_q(3) + ['s_nop 0']
    gaps[kb0].post += at('F') + ['WAITVM dma K 1', 's_barrier']
    L += emit(mf, gaps)
    L = resolve_waitvm(L)
    L, pend = add_lgkm_waits(L)
    return L, pend

def slow():
    t = T0
    L = ['L_slow:', 's_waitcnt vmcnt(0) lgkmcnt(0)']
    M, LS, KV, VD0, VD1 = KA, BT, DK, DV, IDX
    L += [f's_mov_b32 s10, {s(sKB)}', f's_mov_b32 s14, {s(sVB)}',
          f'v_mbcnt_lo_u32_b32 {v(t+1)}, -1, 0', f'v_mbcnt_hi_u32_b32 {v(t+1)}, -1, {v(t+1)}',
          f'v_and_b32 {v(t+2)}, 15, {v(t+1)}', f'v_lshrrev_b32 {v(t+3)}, 4, {v(t+1)}',
          f'v_lshlrev_b32 {v(t+4)}, 12, {v(t+2)}', f'v_lshl_add_u32 {v(KV)}, {v(t+3)}, 4, {v(t+4)}',
          f'v_add_u32 {v(KV)}, 3072, {v(KV)}',
          f'v_lshlrev_b32 {v(t+4)}, 1, {v(t+3)}', f'v_xor_b32 {v(t+4)}, {v(t+2)}, {v(t+4)}',
          f'v_lshlrev_b32 {v(t+4)}, 4, {v(t+4)}', f'v_lshl_add_u32 {v(VD0)}, {v(t+3)}, 12, {v(t+4)}',
          f'v_add_u32 {v(VD0)}, 3072, {v(VD0)}',
          f'v_xor_b32 {v(t+4)}, 0x80, {v(t+4)}', f'v_lshl_add_u32 {v(VD1)}, {v(t+3)}, 12, {v(t+4)}',
          f'v_add_u32 {v(VD1)}, {3072 + 16384}, {v(VD1)}',
          f's_lshl_b32 {s(sMV)}, {s(sW)}, 13', f's_add_u32 {s(sMV)}, {s(sMV)}, 0x20000',
          f'v_bfe_u32 {v(t+5)}, {v(t+1)}, 2, 2', f'v_lshl_add_u32 {v(t+5)}, {v(t+3)}, 2, {v(t+5)}',
          f'v_lshlrev_b32 {v(t+4)}, 8, {v(t+5)}', f'v_and_b32 {v(t+6)}, 3, {v(t+1)}',
          f'v_lshl_add_u32 {v(t+4)}, {v(t+6)}, 3, {v(t+4)}', f'v_add_u32 {v(t+4)}, {s(sMV)}, {v(t+4)}',
          f'v_and_b32 {v(t+5)}, 7, {v(t+5)}']
    for db in range(8):
        L += [f'v_xor_b32 {v(VA+db)}, {db}, {v(t+5)}', f'v_lshl_add_u32 {v(VA+db)}, {v(VA+db)}, 5, {v(t+4)}']
    L += [f'v_lshlrev_b32 {v(MK)}, 2, {v(t+3)}']
    L += [f'v_mov_b32 {v(MK+1)}, {NEG:#x}']
    L += [f'v_mov_b32 {v(O0+i)}, 0' for i in range(128)]
    L += [f'v_mov_b32 {v(M+q)}, 0xff7fffff' for q in range(4)] + [f'v_mov_b32 {v(LS+q)}, 0' for q in range(4)]
    L += [f's_mov_b32 {s(sIT)}, 0', 'L_slow_loop:',
          f's_lshr_b32 {s(sT)}, {s(sIT)}, 2',
          f's_load_dwordx2 s[40:41], s[30:31], {s(sT)}', 's_waitcnt lgkmcnt(0)',
          's_lshl_b32 s40, s40, 16', 's_lshl_b32 s41, s41, 16']
    for kb in range(2):
        for ks in range(4):
            L.append(f'buffer_load_dwordx4 {a(aK+16*kb+4*ks,4)}, {v(KV)}, s[8:11], s{40+kb} offen offset:{64*ks}')
    for b in range(2):
        for p in range(4):
            L += [f's_add_u32 m0, {s(sMV)}, {b*4096 + p*1024}', f's_add_u32 s42, s{40+b}, {(p//2)*32768}',
                  f'buffer_load_dwordx4 {v(VD1 if p & 1 else VD0)}, s[12:15], s42 offen lds']
    L += ['s_waitcnt vmcnt(0)']
    for db in range(8):
        for tt in range(2):
            L.append(f'ds_read_b64_tr_b16 {a(aV+8*db+2*tt,2)}, {v(VA+db)} offset:{tt*4096}')
    L += [f's_sub_u32 {s(sT)}, {s(sCLT)}, {s(sIT)}', 's_waitcnt lgkmcnt(0)']
    for q in range(4):
        S = S0 + 16*q
        L += qkg(q, 2) + ['s_nop 7']
        for e in range(8):
            L += [f'v_add_u32 {v(t)}, {16*(e//4) + e%4}, {v(MK)}', f'v_cmp_gt_u32 vcc, {s(sT)}, {v(t)}', 's_nop 1',
                  f'v_cndmask_b32 {v(S+e)}, {v(MK+1)}, {v(S+e)}, vcc']
        L += [f'v_max3_f32 {v(t)}, {v(S)}, {v(S+1)}, {v(S+2)}', f'v_max3_f32 {v(t)}, {v(t)}, {v(S+3)}, {v(S+4)}',
              f'v_max3_f32 {v(t)}, {v(t)}, {v(S+5)}, {v(S+6)}', f'v_max3_f32 {v(t)}, {v(t)}, {v(S+7)}, {v(M+q)}',
              f'v_mov_b32 {v(t+1)}, {v(t)}', 's_nop 1', f'v_permlane16_swap_b32 {v(t)}, {v(t+1)}', f'v_max_f32 {v(t)}, {v(t)}, {v(t+1)}',
              f'v_mov_b32 {v(t+1)}, {v(t)}', 's_nop 1', f'v_permlane32_swap_b32 {v(t)}, {v(t+1)}', f'v_max_f32 {v(t)}, {v(t)}, {v(t+1)}',
              f'v_sub_f32 {v(t+1)}, {v(M+q)}, {v(t)}', f'v_exp_f32 {v(t+1)}, {v(t+1)}', f'v_mov_b32 {v(M+q)}, {v(t)}']
        L += [f'v_sub_f32 {v(S+e)}, {v(S+e)}, {v(t)}' for e in range(8)]
        L += [f'v_exp_f32 {v(S+e)}, {v(S+e)}' for e in range(8)]
        L += [f'v_mul_f32 {v(LS+q)}, {v(LS+q)}, {v(t+1)}']
        L += [f'v_mul_f32 {v(O0+32*q+i)}, {v(O0+32*q+i)}, {v(t+1)}' for i in range(32)]
        L += [i_cvt(q, i) for i in range(4)]
        for i in range(4):
            L += [f'v_lshlrev_b32 {v(t)}, 16, {v(P0+8*q+i)}', f'v_and_b32 {v(t+1)}, 0xffff0000, {v(P0+8*q+i)}',
                  f'v_add_f32 {v(LS+q)}, {v(LS+q)}, {v(t)}', f'v_add_f32 {v(LS+q)}, {v(LS+q)}, {v(t+1)}']
        L += [pv(q, db, 0) for db in range(8)]
    L += [f's_add_u32 {s(sIT)}, {s(sIT)}, 32', f's_cmp_lt_u32 {s(sIT)}, {s(sCLT)}', 's_cbranch_scc1 L_slow_loop', 's_nop 7']
    for q in range(4):
        o = O0 + 32*q
        L += [f'v_mov_b32 {v(t)}, {v(LS+q)}', f'v_mov_b32 {v(t+1)}, {v(LS+q)}', 's_nop 1',
              f'v_permlane16_swap_b32 {v(t)}, {v(t+1)}', f'v_add_f32 {v(t)}, {v(t)}, {v(t+1)}',
              f'v_mov_b32 {v(t+1)}, {v(t)}', 's_nop 1', f'v_permlane32_swap_b32 {v(t)}, {v(t+1)}', f'v_add_f32 {v(t)}, {v(t)}, {v(t+1)}',
              f'v_rcp_f32 {v(t)}, {v(t)}', 's_nop 0']
        L += [f'v_mul_f32 {v(o+i)}, {v(o+i)}, {v(t)}' for i in range(32)]
        for u in range(4):
            L += [f'v_cvt_pk_bf16_f32 {v(o+8*u+i)}, {v(o+8*u+2*i)}, {v(o+8*u+2*i+1)}' for i in range(4)]
        for u in range(4):
            L += [f'v_permlane16_swap_b32 {v(o+8*u+i)}, {v(o+8*u+2+i)}' for i in range(2)]
        for u in range(4):
            L.append(f'buffer_store_dwordx4 {v(o+8*u,4)}, {v(OV)}, s[16:19], {"0" if q == 0 else s(sQ1+q-1)} offen offset:{64*u}')
    L += ['s_endpgm']
    return L

def finish():
    L = [f'v_cmp_lt_u32 vcc, 0x28000000, {v(T0+4)}',
         f's_cmp_lg_u32 {s(sFORCE)}, 0', 's_cbranch_scc1 L_slow', 's_nop 3', 's_cbranch_vccnz L_slow']
    if OPT.get('twice'):
        global NF2
        NF2 = globals().get('NF2', 0) + 1
        L += ['s_cmp_eq_u32 s77, 0', f's_cbranch_scc1 L_fin{NF2}', 's_sub_u32 s77, s77, 1', 's_waitcnt vmcnt(0) lgkmcnt(0)', 's_barrier',
              'v_mbcnt_lo_u32_b32 v0, -1, 0', 'v_mbcnt_hi_u32_b32 v0, -1, v0', f's_lshl_b32 {s(sT)}, {s(sW)}, 6', f'v_add_u32 v0, {s(sT)}, v0', 's_branch L_again', f'L_fin{NF2}:']
    if OPT.get('fixed'):
        global NFIX
        NFIX = globals().get('NFIX', 0) + 1
        ph = OPT.get('phase')
        L += ['s_waitcnt vmcnt(0) lgkmcnt(0)', f's_mov_b32 {s(sT+4)}, {OPT["fixed"]}']
        if ph:
            L += [f's_sub_u32 {s(sT+5)}, {s(sST+2*ph)}, {s(sST+2*OPT.get("phase0",0))}', f's_lshr_b32 {s(sT+5)}, {s(sT+5)}, 3', f's_add_u32 {s(sT+4)}, {s(sT+4)}, {s(sT+5)}']
        L += [f'L_spin{NFIX}:', f's_memrealtime {s(sT,2)}', 's_waitcnt lgkmcnt(0)', f's_sub_u32 {s(sT)}, {s(sT)}, s100',
              f's_cmp_lt_u32 {s(sT)}, {s(sT+4)}', f's_cbranch_scc1 L_spin{NFIX}', 's_endpgm']
        return L
    if OPT['stamp']:
        L += [f's_memtime {s(sST+14,2)}', 's_waitcnt vmcnt(0)', f's_memtime {s(sT,2)}', f's_memrealtime {s(sT+2,2)}',
              f's_load_dwordx2 s[24:25], s[0:1], {56 if OPT["stamp"] == 1 else 48}', 's_waitcnt lgkmcnt(0)',
              f's_mov_b32 s26, {0x100000 if OPT["stamp"] == 1 else 64}', 's_mov_b32 s27, 0x20000']
        if OPT['stamp'] == 2:
            for i in range(1, 8): L.append(f's_sub_u32 {s(sST+2*i)}, {s(sST+2*i)}, {s(sST)}')
            L += [f's_sub_u32 {s(sT)}, {s(sT)}, {s(sST)}', f's_sub_u32 {s(sT+2)}, {s(sT+2)}, s100']
        for i in range(8): L.append(f'v_mov_b32 v{i}, {s(sST+2*i)}')
        L += [f'v_mov_b32 v8, {s(sT)}', f'v_mov_b32 v9, {s(sT+2)}', 'v_mov_b32 v10, s100', 'v_mov_b32 v11, 0',
              f's_lshl_b32 {s(sT)}, s2, 2', f's_add_u32 {s(sT)}, {s(sT)}, {s(sW)}', f's_lshl_b32 {s(sT)}, {s(sT)}, 6',
              'v_mov_b32 v12, 0', 's_mov_b64 exec, 1',
              f'buffer_store_dwordx4 v[0:3], v12, s[24:27], {s(sT)} offen',
              f'buffer_store_dwordx4 v[4:7], v12, s[24:27], {s(sT)} offen offset:16',
              f'buffer_store_dwordx4 v[8:11], v12, s[24:27], {s(sT)} offen offset:32']
    L += ['s_endpgm']
    return L

def main():
    pro, pend0 = prologue()
    if OPT.get('memtest'):
        L = [f'{NAME}:'] + pro + finish() + ['L_slow:', 'L_end:', 's_endpgm']
        return write(L)
    loop, pend = loop_code()
    assert [x[0] for x in pend0] == [x[0] for x in pend][-len(pend0):] or not pend0, (pend0, pend)
    L = [f'{NAME}:'] + pro + stamp(5) + loop
    L += ['L_tail:'] + stamp(6) + [f's_cmp_gt_u32 {s(sNKB)}, 1', 's_cbranch_scc1 L_tail234']
    L += ['; ---- tail nkb=1'] + tail(1, pend) + finish()
    L += ['L_tail234:', f's_cmp_eq_u32 {s(sNKB)}, 3', 's_cbranch_scc1 L_tail3', f's_cmp_eq_u32 {s(sNKB)}, 4', 's_cbranch_scc1 L_tail4']
    L += tail(2, pend) + finish() + ['L_tail3:'] + tail(3, pend) + finish() + ['L_tail4:'] + tail(4, pend) + finish()
    L += slow() + ['L_end:', 's_endpgm', 'L_codeend:']
    write(L)

def write(L):
    L, nn = fix_hazards(L)
    print('nops inserted:', nn, ' leftovers:', sorted(LEFT))
    hdr = open('standalone__paged_block_table_kv_pagedattention__prompt.s.ref').read().split('; Override')[0]
    txt = hdr + '; Generated by gen/gen.py (hand-written generator).\n'
    txt += '; @launch grid=(256,1,1) block=(256,1,1) lds=163840\n'
    txt += f'.amdgcn_target "amdgcn-amd-amdhsa--gfx950"\n.text\n.globl {NAME}\n.p2align 8\n.type {NAME},@function\n'
    for l in L:
        txt += (l if l.endswith(':') or l.startswith(('.', ';')) else '    ' + l) + '\n'
    txt += f'''.section .rodata,"a"
.p2align 6
.amdhsa_kernel {NAME}
  .amdhsa_next_free_vgpr 472
  .amdhsa_next_free_sgpr 102
  .amdhsa_accum_offset 256
  .amdhsa_group_segment_fixed_size 0
  .amdhsa_kernarg_size 64
  .amdhsa_user_sgpr_count 2
  .amdhsa_user_sgpr_kernarg_segment_ptr 1
  .amdhsa_system_sgpr_workgroup_id_x 1
.end_amdhsa_kernel
'''
    open(sys.argv[1], 'w').write(txt)
    if OPT.get('show'):
        for g in range(NG): print(g, PAT[g])
main()
```

```python
import sys
from asmcheck import parse, hazards, fix_hazards

NAME = 'standalone__paged_block_table_kv_pagedattention__prompt_kernel'
FL = {0: '', 1: ' nt', 2: ' sc1', 3: ' sc0 sc1', 4: ' sc1 nt', 5: ' sc0 sc1 nt', 6: ' sc0', 7: ' sc0 nt'}
OPT = dict(po=0, cpf=0, qf=1, kf=0, of=0, delta=9, stamp=0, lat=8, forceslow=0, skipdma=1)
for a in sys.argv[2:]:
    k, v = a.split('='); OPT[k] = int(v, 0)

S0, P0, KA, VA, BT, DK, DV, IDX, OV, MK, T0, O0 = 0, 64, 96, 100, 108, 112, 113, 114, 115, 116, 120, 128
QV = P0 + 31
aQ, aK, aV, aL, aONE = 0, 64, 128, 192, 208
sW, sCL, sN, sIT, sLN = 3, 36, 37, 38, 39
SETS = (56, 60)
sMK, sMV, sC, sC2, sNKB, sVOFF, sFORCE, sKB, sVB, sCLT = 64, 65, 66, 67, 68, 69, 70, 71, 72, 73
sQ1, sQ2, sQ3 = 74, 75, 76
sT = 78
sST = 84
KBYTES = 132 * 65536
LAT = OPT['lat']
NEG = 0xf149f2ca

def v(b, n=1): return f'v{b}' if n == 1 else f'v[{b}:{b+n-1}]'
def a(b, n=1): return f'a{b}' if n == 1 else f'a[{b}:{b+n-1}]'
def s(b, n=1): return f's{b}' if n == 1 else f's[{b}:{b+n-1}]'

def qk(q, kb, ks, mask=False):
    D = v(S0 + 16*q + 4*kb, 4)
    C = D if ks else (v(MK, 4) if mask else '0')
    return f'v_mfma_f32_16x16x32_bf16 {D}, {a(aK+16*kb+4*ks,4)}, {a(aQ+16*q+4*ks,4)}, {C}'
def pv(q, db, ks, vbase=None, first=False):
    D = v(O0 + 32*q + 4*db, 4)
    A = a(aV + (2*db+ks)*4, 4) if vbase is None else a(vbase + 4*db, 4)
    return f'v_mfma_f32_16x16x32_bf16 {D}, {A}, {v(P0+8*q+4*ks,4)}, {"0" if first and ks == 0 else D}'
def sm(q):
    return f'v_smfmac_f32_16x16x64_bf16 {a(aL+4*q,4)}, {a(aONE,4)}, {v(P0+8*q,8)}, {v(IDX)}'
def qkg(q, nkb=4, mask=False): return [qk(q, kb, ks, mask and kb == nkb-1) for kb in range(nkb) for ks in range(4)]
def pvg(q, nks=2, vbase=None, first=False): return [pv(q, db, ks, vbase, first) for db in range(8) for ks in range(nks)] + [sm(q)]

def i_exp(q, n): return f'v_exp_f32 {v(S0+16*q+n)}, {v(S0+16*q+n)}'
def i_cvt(q, i): return f'v_cvt_pk_bf16_f32 {v(P0+8*q+i)}, {v(S0+16*q+2*i)}, {v(S0+16*q+2*i+1)}'
def i_kread(kb, ks, slot, tile): return f'ds_read_b128 {a(aK+16*kb+4*ks,4)}, {v(KA+ks)} offset:{slot*16384+kb*1024}'
def i_vread(db, ks, t, slot, tile, vbase=None):
    d = (aV + (2*db+ks)*4 if vbase is None else vbase + 4*db) + 2*t
    return f'ds_read_b64_tr_b16 {a(d,2)}, {v(VA+db)} offset:{slot*16384+(2*ks+t)*1024}'
def i_dma(isv, i, soff, tile):
    return f'buffer_load_dwordx4 {v(DV if isv else DK)}, {s(12 if isv else 8,4)}, {s(soff+i)} offen offset:{i*1024}{FL[OPT["kf"]]} lds'
def i_m0(isv, slot): return f's_add_u32 m0, {s(sMV if isv else sMK)}, {slot*16384}'

class Op:
    def __init__(self, key, cls, rel, dl, text, deps=(), fifo=None):
        self.key, self.cls, self.rel, self.dl, self.text, self.deps, self.fifo = key, cls, rel, dl, text, list(deps), fifo
        self.gap = None
class Gap:
    def __init__(self): self.sc, self.mem, self.valu, self.post = [], [], [], []; self.block = None

def schedule(ngaps, ops, gaps=None, overflow=False, g0=0):
    gaps = gaps or [Gap() for _ in range(ngaps)]
    byk = {o.key: o for o in ops}
    todo = list(ops)
    def ready(o, g):
        if o.rel > g: return False
        for d in o.deps:
            p = byk.get(d)
            if p is not None and (p.gap is None or p.gap >= g): return False
        if o.fifo is not None:
            p = byk[o.fifo]
            if p.gap is None: return False
            if o.cls == 'D' and p.gap >= g: return False
        return True
    def put(o, g):
        o.gap = g; todo.remove(o)
        (gaps[g].mem if o.cls in 'DRT' else gaps[g].valu).append(o)
    for g in range(g0, ngaps):
        if gaps[g].block != 'all':
            cand = sorted((o for o in todo if ready(o, g)), key=lambda o: o.dl)
            if gaps[g].block == 'half': cand = [o for o in cand if o.cls == 'H'][:1]
            if cand:
                top = cand[0]
                halves = [o for o in cand if o.cls in 'RTH']
                full = [o for o in cand if o.cls in 'ED']
                if top.cls in 'RTH' and len(halves) == 1 and full and top.dl - g > 6 and top.fifo is None: top = full[0]
                put(top, g)
                if top.cls in 'RTH' and gaps[g].block != 'half':
                    cand2 = sorted((o for o in todo if o.cls in 'RTH' and ready(o, g)), key=lambda o: o.dl)
                    cand2 = [o for o in cand2 if not (o.cls == 'R' and top.cls == 'R')]
                    if cand2:
                        pick = cand2[0]
                        if top.cls in 'RT' and pick.cls in 'RT' and pick.dl - g > 8:
                            h = [o for o in cand2 if o.cls == 'H']
                            if h: pick = h[0]
                        put(pick, g)
        late = [o for o in todo if o.dl <= g]
        if late:
            if not overflow: raise RuntimeError(f'deadline miss at gap {g}: {[o.key for o in late]}')
            def force(o):
                if o.gap is not None: return
                for d in o.deps + ([o.fifo] if o.fifo else []):
                    if d in byk: force(byk[d])
                assert o.rel <= g, (o.key, o.rel, g)
                o.gap = g; todo.remove(o); gaps[g].post.append(o.text)
            for o in sorted(late, key=lambda o: ({'R': 0, 'T': 0, 'D': 0, 'E': 1, 'H': 2}[o.cls], o.dl)): force(o)
    return gaps, todo

def emit(mf, gaps, off=0):
    out = []
    for i, m in enumerate(mf):
        g = gaps[off + i]
        out.append(m)
        out += g.sc
        out += [o.text for o in g.mem] + [o.text for o in g.valu] + g.post
    return out

def softmax_ops(tile, q, qkstart, pvstart, nkb=4, prel=0, fixed=None):
    ops = []
    n = 4 * nkb
    for e in range(n):
        kb = e // 4
        if fixed is not None: ops.append(Op(('e', tile, q, e), 'E', qkstart + fixed + 2*e, qkstart + fixed + 2*e, i_exp(q, e)))
        else: ops.append(Op(('e', tile, q, e), 'E', qkstart + 4*kb + 3 + 5, pvstart - 4 - 2*(n - 1 - e), i_exp(q, e)))
    for i in range(2 * nkb):
        ops.append(Op(('c', tile, q, i), 'H', prel, pvstart - 3 - (2*nkb - 1 - i), i_cvt(q, i),
                      deps=[('e', tile, q, 2*i), ('e', tile, q, 2*i+1)]))
    for i in range(2 * nkb, 8):
        ops.append(Op(('z', tile, q, i), 'H', prel, pvstart - 3, f'v_mov_b32 {v(P0+8*q+i)}, 0'))
    return ops

NG = 132
LOOP_MF = qkg(0) + pvg(2) + qkg(1) + pvg(3) + qkg(2) + pvg(0) + qkg(3) + pvg(1)
assert len(LOOP_MF) == NG
BARG = 47
DMAG = [10, 14, 18, 22, 26, 30, 34, 38]

def steady():
    NT = 6
    ops = []
    gaps = [Gap() for _ in range(NG * (NT + 1))]
    for j in range(NT):
        b = NG * j
        for q in range(4):
            pvs = b + 82 + 33*q
            ops += softmax_ops(j, q, b + 33*q, pvs, prel=pvs - NG + 17, fixed=OPT['delta'])
        for db in range(8):
            for ks in range(2):
                for t in range(2):
                    f = 2*db + ks
                    ops.append(Op(('v', j, db, ks, t), 'T', max(b + 49 + f + 1, b + BARG + 1), b + 82 + f - LAT - (1 - t), ('v', db, ks, t)))
        for kb in range(4):
            for ks in range(4):
                f = 4*kb + ks
                ops.append(Op(('k', j, kb, ks), 'R', b + 99 + f + 1, min(b + NG - 2 - (15 - f), b + NG + f - LAT), ('k', kb, ks),
                              deps=[('k', j, (f-1)//4, (f-1)%4)] if f else []))
        for i in range(4):
            ops.append(Op(('rl', j, i), 'H', b, b + 20 + i, ('rl', i)))
        for i in range(8):
            ops.append(Op(('d', j, i), 'D', b + DMAG[i], b + DMAG[i], ('d', i),
                          deps=[('rl', j, x) for x in range(4)] if i >= 4 else []))
        gaps[b + BARG].block = 'all'
        gaps[b + NG - 1].block = 'half'
    schedule(NG * NT, ops, gaps, overflow=False) if False else None
    schedule(NG * (NT + 1), ops, gaps)
    def pattern(j):
        return [[(o.key[0], o.key[1] - j) + o.key[2:] for o in gaps[NG*j + g].mem + gaps[NG*j + g].valu] for g in range(NG)]
    p3, p4 = pattern(3), pattern(4)
    assert p3 == p4, 'no steady state'
    return p3
PAT = steady()
LEFT = {k for g in PAT for k in g if k[1] == -1}
assert all(k[0] in 'ec' for k in LEFT), LEFT

def key_text(k, j4, tile):
    kind = k[0]
    if kind == 'e': return i_exp(k[2], k[3])
    if kind == 'c': return i_cvt(k[2], k[3])
    if kind == 'v': return i_vread(k[2], k[3], k[4], j4, tile)
    if kind == 'k': return i_kread(k[2], k[3], (j4 + 1) % 4, tile + 1)
    if kind == 'rl': return f'v_readlane_b32 {s(SETS[(j4+3)%2] + k[2])}, {v(BT+k[2])}, {s(sLN)}'
    if kind == 'd':
        i = k[2]
        if i < 4: return i_dma(1, i, SETS[j4 % 2], tile + 2)
        return i_dma(0, i - 4, SETS[(j4 + 3) % 2], tile + 3)
    raise KeyError(k)

class Txt:
    def __init__(self, t): self.text = t

def add_lgkm_waits(lines, pre_ds=(), lead=None):
    ins = parse(lines)
    q = [(set(r), -age) for r, age in pre_ds]
    out = []; gap = -1
    lastm = None
    q_at_lastm = None
    for x in ins:
        if x.cls == 'mfma':
            needed = [i for i, (r, g) in enumerate(q) if r & x.r]
            if needed:
                k = max(needed)
                if lastm is not None and k < q_at_lastm:
                    visible = q_at_lastm
                    while k + 1 < visible and q[k + 1][1] <= gap - LAT: k += 1
                    n = min(15, visible - 1 - k)
                    out.insert(lastm, f's_waitcnt lgkmcnt({n})')
                    k = visible - 1 - n
                else:
                    n = min(15, len(q) - 1 - k)
                    out.append(f's_waitcnt lgkmcnt({n})')
                    k = len(q) - 1 - n
                q = q[k + 1:]
            gap += 1
            out.append(x.text); lastm = len(out); q_at_lastm = len(q)
        else:
            if x.cls == 'ds': q.append((set(x.w), gap))
            if x.cls == 'wait' and x.lgkm is not None:
                q = q[max(0, len(q) - x.lgkm):] if x.lgkm else []
                if q_at_lastm is not None: q_at_lastm = min(q_at_lastm, len(q))
            out.append(x.text)
    return out, [(r, gap - g) for r, g in q]

def body(j4, tile, exit_label, last):
    gaps = [Gap() for _ in range(NG)]
    for g in range(NG):
        for k in PAT[g]:
            t = Txt(key_text(k, j4, tile))
            (gaps[g].mem if k[0] in 'vkd' else gaps[g].valu).append(t)
    gd = {k[2]: g for g in range(NG) for k in PAT[g] if k[0] == 'd'}
    grl = max(g for g in range(NG) for k in PAT[g] if k[0] == 'rl')
    gaps[gd[0] - 2].sc.append(i_m0(1, (j4 + 2) % 4))
    gaps[gd[4] - 2].sc.append(i_m0(0, (j4 + 3) % 4))
    if OPT['skipdma']:
        gaps[1].sc.append(f's_cmp_le_u32 {s(sLN)}, {s(sN)}')
        gaps[2].sc.append(f's_cselect_b32 s14, {s(sVB)}, 0')
        gaps[3].sc.append(f's_cmp_lt_u32 {s(sLN)}, {s(sN)}')
        gaps[4].sc.append(f's_cselect_b32 s10, {s(sKB)}, 0')
    gaps[max(grl + 1, 50)].sc.append(f's_add_u32 {s(sLN)}, {s(sLN)}, 1')
    gaps[BARG - 1].sc.append('s_waitcnt vmcnt(16)')
    gaps[BARG].sc.append('s_barrier')
    gaps[NG - 2].sc.append(f's_sub_u32 {s(sIT)}, {s(sIT)}, 1')
    lines = emit(LOOP_MF, gaps)
    return lines

def loop_code():
    l0 = body(1, 1, None, False)
    _, pend = add_lgkm_waits(l0)
    out = ['.p2align 6', 'L_loop:']
    for u in range(4):
        j4 = (u + 1) % 4
        l, pend2 = add_lgkm_waits(body(j4, u + 1, None, False), pend)
        assert [x[0] for x in pend2] == [x[0] for x in pend]
        out += [f'; ---- body tile%4 == {j4}'] + l
        if u < 3: out.append('s_cbranch_scc1 L_tail')
        else: out += ['s_cbranch_scc0 L_loop']
    return out, pend

def epi_list(q, first, pk=False):
    t = T0 + 2 * (q & 1)
    o = O0 + 32*q
    L = [('H', f'v_accvgpr_read_b32 {v(t)}, {a(aL+4*q)}'),
         ('H', f'v_accvgpr_read_b32 {v(t+1)}, {a(aL+4*q+1)}'),
         ('H', f'v_add_f32 {v(t)}, {v(t)}, {v(t+1)}'),
         ('H', f'v_rcp_f32 {v(t+1)}, {v(t)}'),
         ('H', f'v_subrev_u32 {v(t)}, 0x2b800000, {v(t)}')]
    L.append(('H', f'v_mov_b32 {v(T0+4)}, {v(t)}' if first else f'v_max_u32 {v(T0+4)}, {v(T0+4)}, {v(t)}'))
    def muls(u): return [('M', (o + 8*u + i, t + 1)) for i in range(8)]
    def cvts(u): return [('H', f'v_cvt_pk_bf16_f32 {v(o+8*u+i)}, {v(o+8*u+2*i)}, {v(o+8*u+2*i+1)}') for i in range(4)]
    def swaps(u): return [('H', f'v_permlane16_swap_b32 {v(o+8*u+i)}, {v(o+8*u+2+i)}') for i in range(2)]
    def store(u):
        so = '0' if q == 0 else s(sQ1 + q - 1)
        return [('D', f'buffer_store_dwordx4 {v(o+8*u,4)}, {v(OV)}, s[16:19], {so} offen offset:{64*u}{FL[OPT["of"]]}')]
    L += muls(0) + cvts(0) + muls(1) + swaps(0) + cvts(1) + store(0) + muls(2) + swaps(1) + cvts(2) + store(1) \
       + muls(3) + swaps(2) + cvts(3) + store(2) + [('H', 's_nop 0')] + swaps(3) + store(3)
    return L
def mul_text(x): return f'v_mul_f32 {v(x[0])}, {v(x[1])}, {v(x[0])}'

def tail(nkb, pend):
    nks = 1 if nkb <= 2 else 2
    vbase = aK + 32 if nkb <= 2 else None
    G = {}
    if nkb <= 2:
        order = [('qk', 0), ('qk', 1), ('pvp', 2), ('qk', 2), ('pv', 0), ('pvp', 3), ('pv', 1), ('qk', 3), ('pv', 2), ('pv', 3)]
    else:
        order = [('qk', 0), ('pvp', 2), ('qk', 1), ('pvp', 3), ('qk', 2), ('pv', 0), ('qk', 3), ('pv', 1), ('pv', 2), ('pv', 3)]
    mf = []
    for kind, q in order:
        G[(kind, q)] = len(mf)
        mf += qkg(q, nkb, True) if kind == 'qk' else (pvg(q) if kind == 'pvp' else pvg(q, nks, vbase))
    n = len(mf)
    ops = []
    for q in (2, 3):
        pvs = G[('pvp', q)]
        for o in softmax_ops(-1, q, -100, pvs, prel=0):
            if (o.key[0], -1) + o.key[2:] in LEFT:
                o.rel = 0
                o.dl = max(o.dl, 0)
                o.dl = min(o.dl, G[('qk', q)] - 1) if G[('qk', q)] > 0 else o.dl
                ops.append(o)
    for q in range(4):
        prel = G[('pvp', q)] + 17 if q >= 2 else 0
        so = softmax_ops(0, q, G[('qk', q)], G[('pv', q)], nkb, prel)
        for o in so: o.dl = max(o.dl, o.rel, min(G[('pv', q)] - 1, o.rel + 1) if o.cls == 'E' else min(G[('pv', q)] - 1, G[('qk', q)] + 4*nkb + 4))
        ops += so
    for db in range(8):
        ops.append(Op(('va', db), 'H', 0, 3 + db // 2, f'v_add_u32 {v(VA+db)}, {s(sVOFF)}, {v(VA+db)}'))
    for db in range(8):
        for ks in range(nks):
            for t in range(2):
                f = nks*db + ks
                rel = 2 if vbase else G[('pvp', 3)] + 2*db + ks + 1
                ops.append(Op(('v', db, ks, t), 'T', rel, G[('pv', 0)] + f - LAT - (1 - t), i_vread(db, ks, t, 0, 'T', vbase), deps=[('va', db)]))
    prev = None; epi = []
    for q in range(4):
        rel = G[('pv', q)] + 8*nks + 5
        for i, (c, t) in enumerate(epi_list(q, q == 0)):
            o = Op(('ep', q, i), 'D' if c == 'D' else 'H', rel, 10000 + 100*q + i, mul_text(t) if c == 'M' else t, fifo=prev)
            o.raw = (c, t); prev = o.key; epi.append(o)
    ops += epi
    gaps = [Gap() for _ in range(n)]
    gaps[0].sc.append('s_waitcnt vmcnt(8)')
    gaps[1].sc.append('s_barrier'); gaps[1].block = 'all'
    gaps, todo = schedule(n, ops, gaps, overflow=True)
    lines = emit(mf, gaps)
    assert all(o.key[0] == 'ep' for o in todo), [o.key for o in todo]
    i = 0
    while i < len(todo):
        c, t = todo[i].raw
        if c == 'M' and i + 1 < len(todo) and todo[i+1].raw[0] == 'M' and t[0] % 2 == 0 and todo[i+1].raw[1][0] == t[0] + 1:
            r = t[1]
            lines.append(f'v_pk_mul_f32 {v(t[0],2)}, {v(t[0],2)}, {v(r-1,2)} op_sel:[0,1] op_sel_hi:[1,1]'); i += 2
        else:
            lines.append(todo[i].text); i += 1
    lines, _ = add_lgkm_waits(lines, pend)
    return lines

def scale_q(q):
    out = []
    for h in range(0, 16, 4):
        for i in range(4):
            x = S0 + 16*q + h + i; t = T0 + 2*i
            out += [f'v_lshlrev_b32 {v(t)}, 16, {v(x)}', f'v_and_b32 {v(t+1)}, 0xffff0000, {v(x)}']
        for i in range(4):
            t = T0 + 2*i
            out.append(f'v_pk_mul_f32 {v(t,2)}, {v(t,2)}, {s(sC,2)}')
        for i in range(4):
            x = S0 + 16*q + h + i; t = T0 + 2*i
            out.append(f'v_cvt_pk_bf16_f32 {v(x)}, {v(t)}, {v(t+1)}')
        for i in range(4):
            x = S0 + 16*q + h + i
            out.append(f'v_accvgpr_write_b32 {a(aQ+16*q+h+i)}, {v(x)}')
    return out
def qload(q): return [f'buffer_load_dwordx4 {v(S0+16*q+4*ks,4)}, {v(QV)}, s[4:7], {"0" if q == 0 else s(sQ1+q-1)} offen offset:{64*ks}{FL[OPT["qf"]]} ; ld Q{q}' for ks in range(4)]
def dma4(isv, tile):
    soff = 40 + 4*tile if tile < 3 else SETS[1]
    return [i_m0(isv, tile), 's_nop 0'] + [i_dma(isv, i, soff, tile) for i in range(4)]
def btprep(tile):
    out = []
    for i in range(4):
        src = 40 + 4*tile + i; dst = src if tile < 3 else SETS[1] + i
        out.append(f's_lshl_b32 {s(dst)}, {s(src)}, 16')
        if i < 3: out.append(f's_or_b32 {s(dst)}, {s(dst)}, {(3-i)*1024}')
    return out
def stamp(i): return [f's_memtime {s(sST+2*i,2)}'] if OPT['stamp'] and (i == 0 or not OPT.get('xs')) else []
def xstamp(i): return [f's_memtime {s(sST+2*i,2)}'] if OPT.get('xs') else []

def resolve_waitvm(lines):
    out = []; vm = []
    for l in lines:
        if l.startswith('WAITVM'):
            tags = l.split(None, 1)[1].split('|')
            last = max(i for i, t in enumerate(vm) if t in tags)
            out.append(f's_waitcnt vmcnt({len(vm) - 1 - last}) ; {tags}')
        else:
            if l.startswith(('buffer_', 'global_')): vm.append(l.split(';')[1].strip() if ';' in l else '')
            out.append(l)
    return out

def memtest(L):
    t = T0; mt = OPT['memtest']
    srd = [f's_add_u32 s8, s26, {s(sT)}', 's_addc_u32 s9, s27, 0', 's_sub_u32 s8, s8, 3072', 's_subb_u32 s9, s9, 0',
          f's_add_u32 s12, s28, {s(sT)}', 's_addc_u32 s13, s29, 0', 's_sub_u32 s12, s12, 3072', 's_subb_u32 s13, s13, 0',
          f's_add_u32 s16, s34, {s(sT+1)}', 's_addc_u32 s17, s35, 0']
    nt = FL[OPT['qf']]
    ql = qload
    def qdma(q):
        o = [f's_add_u32 m0, {s(sMK)}, {0x8000 + q*16384}', 's_nop 0']
        return o + [f'buffer_load_dwordx4 {v(t+5)}, s[4:7], {"0" if q == 0 else s(sQ1+q-1)} offen offset:{1024*i}{nt} lds ; ld Q{q}' for i in range(4)]
    L += stamp(1)
    L += [f'v_lshlrev_b32 {v(t+5)}, 14, {v(t)}', f'v_lshl_add_u32 {v(t+5)}, {v(t+1)}, 4, {v(t+5)}']
    bt = ['s_waitcnt lgkmcnt(0)'] + stamp(2) + btprep(0) + btprep(1) + btprep(2) + btprep(3)
    W = lambda tag, i: [f'WAITVM {tag}'] + stamp(i)
    if mt == 1: L += ql(0) + ql(1) + ql(2) + ql(3) + srd + bt + W('ld Q0', 3) + W('ld Q1', 4) + W('ld Q2', 5) + W('ld Q3', 6)
    if mt == 2: L += qdma(0) + qdma(1) + qdma(2) + qdma(3) + srd + bt + W('ld Q0', 3) + W('ld Q1', 4) + W('ld Q2', 5) + W('ld Q3', 6)
    if mt == 3: L += srd + bt + dma4(0, 0) + W('dma K 0', 3) + dma4(1, 0) + W('dma V 0', 4) + dma4(0, 1) + W('dma K 1', 5) + ql(0) + W('ld Q0', 6)
    if mt == 4: L += ql(0) + srd + bt + dma4(0, 0) + W('ld Q0', 3) + W('dma K 0', 4) + ql(1) + ql(2) + ql(3) + W('ld Q1', 5) + W('ld Q3', 6)
    if mt == 5: L += ql(0) + srd + bt + dma4(0, 0) + ql(1) + ql(2) + ql(3) + W('ld Q0', 3) + W('dma K 0', 4) + W('ld Q1', 5) + W('ld Q3', 6)
    if mt == 6: L += ql(0) + ql(1) + srd + bt + dma4(0, 0) + ql(2) + ql(3) + W('ld Q0', 3) + W('dma K 0', 4) + W('ld Q2', 5) + W('ld Q3', 6)
    if mt == 7: L += srd + bt + dma4(0, 0) + dma4(1, 0) + dma4(0, 1) + dma4(1, 1) + dma4(0, 2) + dma4(1, 2) + dma4(0, 3) + W('dma K 0', 3) + W('dma K 1', 4) + W('dma K 2', 5) + W('dma K 3', 6)
    if mt == 8: L += ql(0) + srd + bt + dma4(0, 0) + ql(1) + ql(2) + dma4(1, 0) + dma4(0, 1) + ql(3) + W('ld Q0', 3) + W('dma K 0', 4) + W('dma K 1', 5) + W('ld Q3', 6)
    allkv = lambda: dma4(0, 0) + dma4(1, 0) + dma4(0, 1) + dma4(1, 1) + dma4(0, 2) + dma4(1, 2) + dma4(0, 3)
    if mt == 9: L += srd + bt + allkv() + W('dma K 3', 3) + allkv() + W('dma K 3', 4) + allkv() + W('dma K 3', 5) + ql(0) + ql(1) + ql(2) + ql(3) + W('ld Q3', 6)
    if mt == 10:
        L += ql(0) + ql(1) + ql(2) + ql(3) + srd + bt + W('ld Q3', 3) + ql(0) + ql(1) + ql(2) + ql(3) + W('ld Q3', 4) + allkv() + W('dma K 3', 5) + ql(0) + ql(1) + ql(2) + ql(3) + W('ld Q3', 6)
    if mt in (11, 12, 13):
        L += [f's_lshl_b32 s56, {s(sW)}, 14', 's_add_u32 s56, s4, s56', 's_addc_u32 s57, s5, 0']
        pf = lambda lo, hi, step: [f's_load_dword s58, s[56:57], {o}' for o in range(lo, hi, step)]
        if mt == 11: L += ql(0) + ql(1) + pf(8192, 16384, 128) + stamp(2) + ql(2) + ql(3) + W('ld Q0', 3) + W('ld Q1', 4) + W('ld Q2', 5) + W('ld Q3', 6)
        if mt == 12: L += stamp(2) + pf(0, 16384, 128) + stamp(3) + ['s_waitcnt lgkmcnt(0)'] + stamp(4) + ql(0) + ql(1) + ql(2) + ql(3) + W('ld Q0', 5) + W('ld Q3', 6)
        if mt == 13: L += stamp(2) + pf(0, 16384, 64) + stamp(3) + ['s_waitcnt lgkmcnt(0)'] + stamp(4) + ql(0) + ql(1) + ql(2) + ql(3) + W('ld Q0', 5) + W('ld Q3', 6)
    if mt >= 20:
        L += srd + bt
        of = FL[OPT['of']]
        if mt == 20:
            for q in range(4):
                for u in range(4): L.append(f'buffer_store_dwordx4 v[{16*q+4*u}:{16*q+4*u+3}], {v(OV)}, s[16:19], {"0" if q == 0 else s(sQ1+q-1)} offen offset:{64*u}{of} ; st{q}')
        if mt == 21:
            for q in range(4):
                for u in range(4): L.append(f'buffer_store_dwordx4 v[{16*q+4*u}:{16*q+4*u+3}], {v(t+5)}, s[16:19], {"0" if q == 0 else s(sQ1+q-1)} offen offset:{1024*u}{of} ; st{q}')
        if mt == 22:
            L += [f'v_lshrrev_b32 {v(t+4)}, 3, {v(t+1)}', f'v_lshlrev_b32 {v(t+4)}, 8, {v(t+4)}', f'v_and_b32 {v(t+6)}, 7, {v(t+1)}',
                  f'v_lshl_add_u32 {v(t+4)}, {v(t+6)}, 4, {v(t+4)}', f'v_lshl_add_u32 {v(t+4)}, {v(t)}, 14, {v(t+4)}']
            for q in range(4):
                for u in range(4): L.append(f'buffer_store_dwordx4 v[{16*q+4*u}:{16*q+4*u+3}], {v(t+4)}, s[16:19], {"0" if q == 0 else s(sQ1+q-1)} offen offset:{128*(u&1)+2048*(u>>1)}{of} ; st{q}')
        L += stamp(3) + W('st0', 4) + W('st1', 5) + W('st3', 6)
    L += [f'v_mov_b32 {v(T0+4)}, 0', f's_mov_b32 {s(sFORCE)}, 0', 's_nop 3']
    return resolve_waitvm(L), None

def prologue():
    L = []
    A = L.append
    if OPT.get('xmask') is not None:
        L += [f's_and_b32 s3, s2, {OPT["xmask"]}', 's_cmp_lg_u32 s3, 0', 's_cbranch_scc1 L_end']
    if OPT.get('twice'): L += [f's_mov_b32 s77, {OPT["twice"]}'] + (['s_memrealtime s[100:101]'] if OPT['stamp'] else []) + ['L_again:']
    L += ['s_cmp_ge_u32 s2, 256', 's_cbranch_scc1 L_end',
          's_load_dwordx8 s[24:31], s[0:1], 0', 's_load_dwordx4 s[32:35], s[0:1], 32']
    if OPT['cpf']:
        L += ['s_getpc_b64 s[4:5]', 'L_pc:', 's_lshr_b32 s6, s2, 3', 's_lshl_b32 s6, s6, 10',
              f'v_lshl_add_u32 v2, v0, 2, s6', f'v_min_u32 v2, L_codeend-L_pc-4, v2', 'v_mov_b32 v3, s5',
              'v_add_co_u32 v2, vcc, s4, v2', 's_nop 1', 'v_addc_co_u32 v3, vcc, 0, v3, vcc', f'global_load_dword {v(T0+7)}, v[2:3], off']
    L += stamp(0) + ([f's_memrealtime s[100:101]'] if OPT['stamp'] and not OPT.get('twice') else [])
    t = T0
    L += [f'v_lshrrev_b32 {v(t)}, 6, v0',
          f'v_and_b32 {v(t+1)}, 63, v0',
          f'v_readfirstlane_b32 {s(sW)}, {v(t)}',
          f'v_and_b32 {v(t+2)}, 15, v0',
          f'v_bfe_u32 {v(t+3)}, v0, 4, 2',
          f's_and_b32 {s(sT)}, s2, 7', f's_lshr_b32 {s(sT+1)}, s2, 3', f's_lshr_b32 {s(sT+2)}, {s(sT+1)}, 4',
          f's_lshl_b32 {s(sT)}, {s(sT)}, 1', f's_add_u32 {s(sT)}, {s(sT)}, {s(sT+2)}',
          f's_and_b32 {s(sT+1)}, {s(sT+1)}, 15', f's_lshl_b32 {s(sT+2)}, {s(sT)}, 4',
          f's_add_u32 {s(sT+1)}, {s(sT+1)}, {s(sT+2)}', f's_lshl_b32 {s(sT+1)}, {s(sT+1)}, 16',
          f's_lshl_b32 {s(sT)}, {s(sT)}, 8',
          f's_movk_i32 {s(sQ1)}, 0x1000', f's_movk_i32 {s(sQ2)}, 0x2000', f's_movk_i32 {s(sQ3)}, 0x3000',
          f'v_lshlrev_b32 {v(t+4)}, 14, {v(t)}', f'v_lshl_add_u32 {v(t+4)}, {v(t+2)}, 8, {v(t+4)}',
          f'v_lshl_add_u32 {v(QV)}, {v(t+3)}, 4, {v(t+4)}',
          f'v_and_b32 {v(t+5)}, 1, {v(t+3)}', f'v_lshl_add_u32 {v(t+4)}, {v(t+5)}, 5, {v(t+4)}',
          f'v_lshrrev_b32 {v(t+5)}, 1, {v(t+3)}', f'v_lshl_add_u32 {v(OV)}, {v(t+5)}, 4, {v(t+4)}',
          f'v_lshl_add_u32 {v(t+4)}, {v(t)}, 2, {v(t+3)}',
          f'v_xor_b32 {v(t+5)}, {v(t+2)}, {v(t+4)}', f'v_lshlrev_b32 {v(t+5)}, 4, {v(t+5)}',
          f'v_lshl_add_u32 {v(DK)}, {v(t+4)}, 12, {v(t+5)}',
          f'v_and_b32 {v(t+5)}, 7, {v(t+4)}', f'v_lshlrev_b32 {v(t+5)}, 1, {v(t+5)}',
          f'v_xor_b32 {v(t+5)}, {v(t+2)}, {v(t+5)}', f'v_lshlrev_b32 {v(t+5)}, 4, {v(t+5)}',
          f'v_lshl_add_u32 {v(DV)}, {v(t+4)}, 12, {v(t+5)}',
          f'v_lshlrev_b32 {v(t+6)}, 4, {v(t+1)}',
          f's_lshl_b32 {s(sMK)}, {s(sW)}, 12', f's_add_u32 {s(sMV)}, {s(sMK)}, 0x10000',
          's_mov_b32 s6, 0x10000', 's_mov_b32 s7, 0x20000', 's_mov_b32 s11, 0x20000', 's_mov_b32 s15, 0x20000',
          's_mov_b32 s18, 0x10000', 's_mov_b32 s19, 0x20000', 's_movk_i32 s22, 0x200', 's_mov_b32 s23, 0x20000',
          f's_sub_u32 {s(sKB)}, {KBYTES+3072}, {s(sT)}', f's_mov_b32 {s(sVB)}, {s(sKB)}',
          f's_mov_b32 s10, {s(sKB)}', f's_mov_b32 s14, {s(sKB)}'] + xstamp(1) + [
          's_waitcnt lgkmcnt(0)'] + xstamp(2) + [
          f's_load_dword {s(sCL)}, s[32:33], 0', 's_load_dwordx16 s[40:55], s[30:31], 0',
          f's_add_u32 s4, s24, {s(sT+1)}', 's_addc_u32 s5, s25, 0',
          's_mov_b32 s20, s30', 's_mov_b32 s21, s31']
    if OPT.get('memtest'): return memtest(L)
    L += qload(0)
    L += [f'buffer_load_dwordx4 {v(BT,4)}, {v(t+6)}, s[20:23], 0 offen',
          f's_add_u32 s8, s26, {s(sT)}', 's_addc_u32 s9, s27, 0', 's_sub_u32 s8, s8, 3072', 's_subb_u32 s9, s9, 0',
          f's_add_u32 s12, s28, {s(sT)}', 's_addc_u32 s13, s29, 0', 's_sub_u32 s12, s12, 3072', 's_subb_u32 s13, s13, 0',
          f's_add_u32 s16, s34, {s(sT+1)}', 's_addc_u32 s17, s35, 0']
    L += [f'v_lshrrev_b32 {v(t+4)}, 2, {v(t+2)}', f'v_lshlrev_b32 {v(t+4)}, 4, {v(t+4)}',
          f'v_and_b32 {v(t+5)}, 3, {v(t+2)}', f'v_add_u32 {v(t+4)}, {v(t+4)}, {v(t+5)}',
          f'v_lshlrev_b32 {v(t+4)}, 8, {v(t+4)}',
          f'v_xor_b32 {v(t+5)}, {v(t+3)}, {v(t+2)}']
    for ks in range(4):
        L += [f'v_xor_b32 {v(KA+ks)}, {4*ks}, {v(t+5)}', f'v_lshl_add_u32 {v(KA+ks)}, {v(KA+ks)}, 4, {v(t+4)}']
    L += [f'v_bfe_u32 {v(t+5)}, {v(t+1)}, 2, 2',
          f'v_lshl_add_u32 {v(t+4)}, {v(t+3)}, 4, {v(t+5)}',
          f'v_lshlrev_b32 {v(t+4)}, 8, {v(t+4)}',
          f'v_and_b32 {v(MK)}, 3, {v(t+1)}', f'v_lshl_add_u32 {v(t+4)}, {v(MK)}, 3, {v(t+4)}',
          f'v_add_u32 {v(t+4)}, 0x10000, {v(t+4)}',
          f'v_lshl_add_u32 {v(t+5)}, {v(t+3)}, 2, {v(t+5)}', f'v_and_b32 {v(t+5)}, 7, {v(t+5)}']
    for db in range(8):
        L += [f'v_xor_b32 {v(VA+db)}, {db}, {v(t+5)}', f'v_lshl_add_u32 {v(VA+db)}, {v(VA+db)}, 5, {v(t+4)}']
    L += [f'v_and_b32 {v(t+4)}, 1, {v(t+1)}', f'v_mov_b32 {v(t+5)}, 0xaaaaaaaa',
          f'v_mul_lo_u32 {v(t+4)}, {v(t+4)}, {v(t+5)}', f'v_or_b32 {v(IDX)}, 0x44444444, {v(t+4)}',
          f'v_mov_b32 {v(t+5)}, 0x3f803f80']
    L += [f'v_accvgpr_write_b32 {a(aONE+i)}, {v(t+5)}' for i in range(4)]
    L += xstamp(3) + ['s_waitcnt lgkmcnt(0)'] + stamp(1) + xstamp(4)
    L += btprep(0) + dma4(0, 0) + qload(1) + xstamp(5)
    L += [f's_mov_b32 {s(sC)}, 0x3e0293ee',
          f's_cmp_lt_i32 {s(sCL)}, 1', f's_cselect_b32 {s(sC)}, 0, {s(sC)}', f's_cselect_b32 {s(sCL)}, 0x800, {s(sCL)}',
          f's_mov_b32 {s(sC2)}, {s(sC)}',
          f's_min_u32 {s(sCLT)}, {s(sCL)}, 0x800',
          f's_cmp_lt_u32 {s(sCLT)}, {4096 if OPT["forceslow"] else 129}', f's_cselect_b32 {s(sFORCE)}, 1, 0',
          f's_max_u32 {s(sCL)}, {s(sCLT)}, 129',
          f's_add_u32 {s(sN)}, {s(sCL)}, 63', f's_lshr_b32 {s(sN)}, {s(sN)}, 6',
          f's_sub_u32 {s(sIT)}, {s(sN)}, 3',
          f's_sub_u32 {s(sT)}, {s(sN)}, 1', f's_and_b32 {s(sVOFF)}, {s(sT)}, 3', f's_lshl_b32 {s(sVOFF)}, {s(sVOFF)}, 14',
          f's_lshl_b32 {s(sT)}, {s(sT)}, 6', f's_sub_u32 {s(sT)}, {s(sCL)}, {s(sT)}',
          f's_add_u32 {s(sNKB)}, {s(sT)}, 15', f's_lshr_b32 {s(sNKB)}, {s(sNKB)}, 4',
          f's_sub_u32 {s(sT)}, {s(sT)}, 1', f's_and_b32 {s(sT)}, {s(sT)}, 15',
          f's_mov_b32 {s(sLN)}, 4']
    L += [f'v_lshlrev_b32 {v(t+4)}, 2, {v(t+3)}', f'v_mov_b32 {v(t+5)}, {NEG:#x}']
    for r in range(4):
        L += [f'v_add_u32 {v(t+6)}, {r}, {v(t+4)}', f'v_cmp_lt_u32 vcc, {s(sT)}, {v(t+6)}', 's_nop 1',
              f'v_cndmask_b32 {v(MK+r)}, 0, {v(t+5)}, vcc']
    L += btprep(1) + btprep(2) + btprep(3)
    L += [f'v_mov_b32 {v(O0+i)}, 0' for i in range(64, 128)]
    L += [f'v_accvgpr_write_b32 {a(aL+i)}, 0' for i in range(16)]
    L += xstamp(6)
    po = OPT['po']
    groups = {'q2': qload(2), 'q3': qload(3), 'v0': dma4(1, 0), 'k1': dma4(0, 1), 'v1': dma4(1, 1), 'k2': dma4(0, 2), 'v2': dma4(1, 2), 'k3': dma4(0, 3)}
    plan = {0: dict(A=[], B=['q2'], C=['v0', 'q3'], D=['k1', 'v1'], E=['k2'], F=['v2', 'k3']),
            1: dict(A=['q2'], B=['v0'], C=['q3'], D=['k1', 'v1'], E=['k2'], F=['v2', 'k3']),
            2: dict(A=['q2'], B=['v0', 'q3'], C=['k1'], D=['v1', 'k2'], E=['v2', 'k3'], F=[]),
            3: dict(A=[], B=['q2', 'v0'], C=['q3', 'k1'], D=['v1', 'k2'], E=[], F=['v2', 'k3']),
            4: dict(A=[], B=['q2'], C=['v0', 'q3'], D=['k1'], E=['v1', 'k2'], F=['v2', 'k3'])}[po]
    at = lambda p: [x for g in plan[p] for x in groups[g]]
    L += at('A') + ['WAITVM ld Q0'] + stamp(2) + scale_q(0)
    L += ['WAITVM ld BT']
    for i in range(4):
        L.append(f'v_lshlrev_b32 {v(BT+i)}, 16, {v(BT+i)}')
        if i < 3: L.append(f'v_or_b32 {v(BT+i)}, {(3-i)*1024}, {v(BT+i)}')
    L += ['WAITVM dma K 0', 's_barrier'] + stamp(3)
    L += [i_kread(kb, ks, 0, 0) for kb in range(4) for ks in range(4)] + at('B')
    order = [('qk', 0), ('qk', 1), ('qk', 2), ('pv', 0), ('qk', 3), ('pv', 1)]
    G = {}; mf = []
    for kind, q in order:
        G[(kind, q)] = len(mf); mf += qkg(q) if kind == 'qk' else pvg(q, first=True)
    n = len(mf)
    ops = []
    for q in range(4):
        if q < 2: pvs = G[('qk', q)] + 23
        elif q == 2: pvs = G[('qk', 3)] + 2
        else: pvs = n + 2
        for o in softmax_ops(0, q, G[('qk', q)], pvs):
            if (o.key[0], -1) + o.key[2:] in LEFT: continue
            o.dl = max(o.dl, o.rel if o.cls == 'E' else G[('qk', q)] + 4*(o.key[3]//2) + 9)
            o.dl = min(o.dl, n - 1)
            ops.append(o)
    for db in range(8):
        for ks in range(2):
            for tt in range(2):
                f = 2*db + ks
                ops.append(Op(('v', db, ks, tt), 'T', G[('qk', 2)] - 1 + 1, G[('pv', 0)] + f - LAT - (1 - tt), i_vread(db, ks, tt, 0, 0)))
    kb0 = G[('pv', 1)] - 1
    for kb in range(4):
        for ks in range(4):
            f = 4*kb + ks
            ops.append(Op(('k', kb, ks), 'R', kb0 + 1, min(n - 1 - (15 - f), n + f - LAT), i_kread(kb, ks, 1, 1),
                          deps=[('k', (f-1)//4, (f-1)%4)] if f else []))
    gaps = [Gap() for _ in range(n)]
    gaps, todo = schedule(n, ops, gaps, overflow=True)
    assert not todo
    gaps[G[('qk', 1)] - 1].post += ['WAITVM ld Q1'] + at('C') + scale_q(1) + ['s_nop 0']
    gaps[G[('qk', 2)] - 1].post += ['WAITVM ld Q2'] + at('D') + scale_q(2) + ['WAITVM dma V 0', 's_barrier']
    gaps[G[('qk', 3)] - 1].post += ['WAITVM ld Q3'] + stamp(4) + at('E') + scale_q(3) + ['s_nop 0']
    gaps[kb0].post += at('F') + ['WAITVM dma K 1', 's_barrier']
    L += emit(mf, gaps)
    L = resolve_waitvm(L)
    L, pend = add_lgkm_waits(L)
    return L, pend

def slow():
    t = T0
    L = ['L_slow:', 's_waitcnt vmcnt(0) lgkmcnt(0)']
    M, LS, KV, VD0, VD1 = KA, BT, DK, DV, IDX
    L += [f's_mov_b32 s10, {s(sKB)}', f's_mov_b32 s14, {s(sVB)}',
          f'v_mbcnt_lo_u32_b32 {v(t+1)}, -1, 0', f'v_mbcnt_hi_u32_b32 {v(t+1)}, -1, {v(t+1)}',
          f'v_and_b32 {v(t+2)}, 15, {v(t+1)}', f'v_lshrrev_b32 {v(t+3)}, 4, {v(t+1)}',
          f'v_lshlrev_b32 {v(t+4)}, 12, {v(t+2)}', f'v_lshl_add_u32 {v(KV)}, {v(t+3)}, 4, {v(t+4)}',
          f'v_add_u32 {v(KV)}, 3072, {v(KV)}',
          f'v_lshlrev_b32 {v(t+4)}, 1, {v(t+3)}', f'v_xor_b32 {v(t+4)}, {v(t+2)}, {v(t+4)}',
          f'v_lshlrev_b32 {v(t+4)}, 4, {v(t+4)}', f'v_lshl_add_u32 {v(VD0)}, {v(t+3)}, 12, {v(t+4)}',
          f'v_add_u32 {v(VD0)}, 3072, {v(VD0)}',
          f'v_xor_b32 {v(t+4)}, 0x80, {v(t+4)}', f'v_lshl_add_u32 {v(VD1)}, {v(t+3)}, 12, {v(t+4)}',
          f'v_add_u32 {v(VD1)}, {3072 + 16384}, {v(VD1)}',
          f's_lshl_b32 {s(sMV)}, {s(sW)}, 13', f's_add_u32 {s(sMV)}, {s(sMV)}, 0x20000',
          f'v_bfe_u32 {v(t+5)}, {v(t+1)}, 2, 2', f'v_lshl_add_u32 {v(t+5)}, {v(t+3)}, 2, {v(t+5)}',
          f'v_lshlrev_b32 {v(t+4)}, 8, {v(t+5)}', f'v_and_b32 {v(t+6)}, 3, {v(t+1)}',
          f'v_lshl_add_u32 {v(t+4)}, {v(t+6)}, 3, {v(t+4)}', f'v_add_u32 {v(t+4)}, {s(sMV)}, {v(t+4)}',
          f'v_and_b32 {v(t+5)}, 7, {v(t+5)}']
    for db in range(8):
        L += [f'v_xor_b32 {v(VA+db)}, {db}, {v(t+5)}', f'v_lshl_add_u32 {v(VA+db)}, {v(VA+db)}, 5, {v(t+4)}']
    L += [f'v_lshlrev_b32 {v(MK)}, 2, {v(t+3)}']
    L += [f'v_mov_b32 {v(MK+1)}, {NEG:#x}']
    L += [f'v_mov_b32 {v(O0+i)}, 0' for i in range(128)]
    L += [f'v_mov_b32 {v(M+q)}, 0xff7fffff' for q in range(4)] + [f'v_mov_b32 {v(LS+q)}, 0' for q in range(4)]
    L += [f's_mov_b32 {s(sIT)}, 0', 'L_slow_loop:',
          f's_lshr_b32 {s(sT)}, {s(sIT)}, 2',
          f's_load_dwordx2 s[40:41], s[30:31], {s(sT)}', 's_waitcnt lgkmcnt(0)',
          's_lshl_b32 s40, s40, 16', 's_lshl_b32 s41, s41, 16']
    for kb in range(2):
        for ks in range(4):
            L.append(f'buffer_load_dwordx4 {a(aK+16*kb+4*ks,4)}, {v(KV)}, s[8:11], s{40+kb} offen offset:{64*ks}')
    for b in range(2):
        for p in range(4):
            L += [f's_add_u32 m0, {s(sMV)}, {b*4096 + p*1024}', f's_add_u32 s42, s{40+b}, {(p//2)*32768}',
                  f'buffer_load_dwordx4 {v(VD1 if p & 1 else VD0)}, s[12:15], s42 offen lds']
    L += ['s_waitcnt vmcnt(0)']
    for db in range(8):
        for tt in range(2):
            L.append(f'ds_read_b64_tr_b16 {a(aV+8*db+2*tt,2)}, {v(VA+db)} offset:{tt*4096}')
    L += [f's_sub_u32 {s(sT)}, {s(sCLT)}, {s(sIT)}', 's_waitcnt lgkmcnt(0)']
    for q in range(4):
        S = S0 + 16*q
        L += qkg(q, 2) + ['s_nop 7']
        for e in range(8):
            L += [f'v_add_u32 {v(t)}, {16*(e//4) + e%4}, {v(MK)}', f'v_cmp_gt_u32 vcc, {s(sT)}, {v(t)}', 's_nop 1',
                  f'v_cndmask_b32 {v(S+e)}, {v(MK+1)}, {v(S+e)}, vcc']
        L += [f'v_max3_f32 {v(t)}, {v(S)}, {v(S+1)}, {v(S+2)}', f'v_max3_f32 {v(t)}, {v(t)}, {v(S+3)}, {v(S+4)}',
              f'v_max3_f32 {v(t)}, {v(t)}, {v(S+5)}, {v(S+6)}', f'v_max3_f32 {v(t)}, {v(t)}, {v(S+7)}, {v(M+q)}',
              f'v_mov_b32 {v(t+1)}, {v(t)}', 's_nop 1', f'v_permlane16_swap_b32 {v(t)}, {v(t+1)}', f'v_max_f32 {v(t)}, {v(t)}, {v(t+1)}',
              f'v_mov_b32 {v(t+1)}, {v(t)}', 's_nop 1', f'v_permlane32_swap_b32 {v(t)}, {v(t+1)}', f'v_max_f32 {v(t)}, {v(t)}, {v(t+1)}',
              f'v_sub_f32 {v(t+1)}, {v(M+q)}, {v(t)}', f'v_exp_f32 {v(t+1)}, {v(t+1)}', f'v_mov_b32 {v(M+q)}, {v(t)}']
        L += [f'v_sub_f32 {v(S+e)}, {v(S+e)}, {v(t)}' for e in range(8)]
        L += [f'v_exp_f32 {v(S+e)}, {v(S+e)}' for e in range(8)]
        L += [f'v_mul_f32 {v(LS+q)}, {v(LS+q)}, {v(t+1)}']
        L += [f'v_mul_f32 {v(O0+32*q+i)}, {v(O0+32*q+i)}, {v(t+1)}' for i in range(32)]
        L += [i_cvt(q, i) for i in range(4)]
        for i in range(4):
            L += [f'v_lshlrev_b32 {v(t)}, 16, {v(P0+8*q+i)}', f'v_and_b32 {v(t+1)}, 0xffff0000, {v(P0+8*q+i)}',
                  f'v_add_f32 {v(LS+q)}, {v(LS+q)}, {v(t)}', f'v_add_f32 {v(LS+q)}, {v(LS+q)}, {v(t+1)}']
        L += [pv(q, db, 0) for db in range(8)]
    L += [f's_add_u32 {s(sIT)}, {s(sIT)}, 32', f's_cmp_lt_u32 {s(sIT)}, {s(sCLT)}', 's_cbranch_scc1 L_slow_loop', 's_nop 7']
    for q in range(4):
        o = O0 + 32*q
        L += [f'v_mov_b32 {v(t)}, {v(LS+q)}', f'v_mov_b32 {v(t+1)}, {v(LS+q)}', 's_nop 1',
              f'v_permlane16_swap_b32 {v(t)}, {v(t+1)}', f'v_add_f32 {v(t)}, {v(t)}, {v(t+1)}',
              f'v_mov_b32 {v(t+1)}, {v(t)}', 's_nop 1', f'v_permlane32_swap_b32 {v(t)}, {v(t+1)}', f'v_add_f32 {v(t)}, {v(t)}, {v(t+1)}',
              f'v_rcp_f32 {v(t)}, {v(t)}', 's_nop 0']
        L += [f'v_mul_f32 {v(o+i)}, {v(o+i)}, {v(t)}' for i in range(32)]
        for u in range(4):
            L += [f'v_cvt_pk_bf16_f32 {v(o+8*u+i)}, {v(o+8*u+2*i)}, {v(o+8*u+2*i+1)}' for i in range(4)]
        for u in range(4):
            L += [f'v_permlane16_swap_b32 {v(o+8*u+i)}, {v(o+8*u+2+i)}' for i in range(2)]
        for u in range(4):
            L.append(f'buffer_store_dwordx4 {v(o+8*u,4)}, {v(OV)}, s[16:19], {"0" if q == 0 else s(sQ1+q-1)} offen offset:{64*u}')
    L += ['s_endpgm']
    return L

def finish():
    L = [f'v_cmp_lt_u32 vcc, 0x28000000, {v(T0+4)}',
         f's_cmp_lg_u32 {s(sFORCE)}, 0', 's_cbranch_scc1 L_slow', 's_nop 3', 's_cbranch_vccnz L_slow']
    if OPT.get('twice'):
        global NF2
        NF2 = globals().get('NF2', 0) + 1
        L += ['s_cmp_eq_u32 s77, 0', f's_cbranch_scc1 L_fin{NF2}', 's_sub_u32 s77, s77, 1', 's_waitcnt vmcnt(0) lgkmcnt(0)', 's_barrier',
              'v_mbcnt_lo_u32_b32 v0, -1, 0', 'v_mbcnt_hi_u32_b32 v0, -1, v0', f's_lshl_b32 {s(sT)}, {s(sW)}, 6', f'v_add_u32 v0, {s(sT)}, v0', 's_branch L_again', f'L_fin{NF2}:']
    if OPT.get('fixed'):
        global NFIX
        NFIX = globals().get('NFIX', 0) + 1
        ph = OPT.get('phase')
        L += ['s_waitcnt vmcnt(0) lgkmcnt(0)', f's_mov_b32 {s(sT+4)}, {OPT["fixed"]}']
        if ph:
            L += [f's_sub_u32 {s(sT+5)}, {s(sST+2*ph)}, {s(sST+2*OPT.get("phase0",0))}', f's_lshr_b32 {s(sT+5)}, {s(sT+5)}, {OPT.get("sh",3)}', f's_add_u32 {s(sT+4)}, {s(sT+4)}, {s(sT+5)}']
        L += [f'L_spin{NFIX}:', f's_memrealtime {s(sT,2)}', 's_waitcnt lgkmcnt(0)', f's_sub_u32 {s(sT)}, {s(sT)}, s100',
              f's_cmp_lt_u32 {s(sT)}, {s(sT+4)}', f's_cbranch_scc1 L_spin{NFIX}', 's_endpgm']
        return L
    if OPT['stamp']:
        L += [f's_memtime {s(sST+14,2)}', 's_waitcnt vmcnt(0)', f's_memtime {s(sT,2)}', f's_memrealtime {s(sT+2,2)}',
              f's_load_dwordx2 s[24:25], s[0:1], {56 if OPT["stamp"] == 1 else 48}', 's_waitcnt lgkmcnt(0)',
              f's_mov_b32 s26, {0x100000 if OPT["stamp"] == 1 else 64}', 's_mov_b32 s27, 0x20000']
        if OPT['stamp'] == 2:
            for i in range(1, 8): L.append(f's_sub_u32 {s(sST+2*i)}, {s(sST+2*i)}, {s(sST)}')
            L += [f's_sub_u32 {s(sT)}, {s(sT)}, {s(sST)}', f's_sub_u32 {s(sT+2)}, {s(sT+2)}, s100']
        for i in range(8): L.append(f'v_mov_b32 v{i}, {s(sST+2*i)}')
        L += [f'v_mov_b32 v8, {s(sT)}', f'v_mov_b32 v9, {s(sT+2)}', 'v_mov_b32 v10, s100', 'v_mov_b32 v11, 0',
              f's_lshl_b32 {s(sT)}, s2, 2', f's_add_u32 {s(sT)}, {s(sT)}, {s(sW)}', f's_lshl_b32 {s(sT)}, {s(sT)}, 6',
              'v_mov_b32 v12, 0', 's_mov_b64 exec, 1',
              f'buffer_store_dwordx4 v[0:3], v12, s[24:27], {s(sT)} offen',
              f'buffer_store_dwordx4 v[4:7], v12, s[24:27], {s(sT)} offen offset:16',
              f'buffer_store_dwordx4 v[8:11], v12, s[24:27], {s(sT)} offen offset:32']
    L += ['s_endpgm']
    return L

def main():
    pro, pend0 = prologue()
    if OPT.get('memtest'):
        L = [f'{NAME}:'] + pro + finish() + ['L_slow:', 'L_end:', 's_endpgm']
        return write(L)
    loop, pend = loop_code()
    assert [x[0] for x in pend0] == [x[0] for x in pend][-len(pend0):] or not pend0, (pend0, pend)
    L = [f'{NAME}:'] + pro + stamp(5) + loop
    L += ['L_tail:'] + stamp(6) + [f's_cmp_gt_u32 {s(sNKB)}, 1', 's_cbranch_scc1 L_tail234']
    L += ['; ---- tail nkb=1'] + tail(1, pend) + finish()
    L += ['L_tail234:', f's_cmp_eq_u32 {s(sNKB)}, 3', 's_cbranch_scc1 L_tail3', f's_cmp_eq_u32 {s(sNKB)}, 4', 's_cbranch_scc1 L_tail4']
    L += tail(2, pend) + finish() + ['L_tail3:'] + tail(3, pend) + finish() + ['L_tail4:'] + tail(4, pend) + finish()
    L += slow() + ['L_end:', 's_endpgm', 'L_codeend:']
    write(L)

def write(L):
    L, nn = fix_hazards(L)
    print('nops inserted:', nn, ' leftovers:', sorted(LEFT))
    hdr = open('standalone__paged_block_table_kv_pagedattention__prompt.s.ref').read().split('; Override')[0]
    txt = hdr + '; Generated by gen/gen.py (hand-written generator).\n'
    txt += '; @launch grid=(256,1,1) block=(256,1,1) lds=163840\n'
    txt += f'.amdgcn_target "amdgcn-amd-amdhsa--gfx950"\n.text\n.globl {NAME}\n.p2align 8\n.type {NAME},@function\n'
    for l in L:
        txt += (l if l.endswith(':') or l.startswith(('.', ';')) else '    ' + l) + '\n'
    txt += f'''.section .rodata,"a"
.p2align 6
.amdhsa_kernel {NAME}
  .amdhsa_next_free_vgpr 472
  .amdhsa_next_free_sgpr 102
  .amdhsa_accum_offset 256
  .amdhsa_group_segment_fixed_size 0
  .amdhsa_kernarg_size 64
  .amdhsa_user_sgpr_count 2
  .amdhsa_user_sgpr_kernarg_segment_ptr 1
  .amdhsa_system_sgpr_workgroup_id_x 1
.end_amdhsa_kernel
'''
    open(sys.argv[1], 'w').write(txt)
    if OPT.get('show'):
        for g in range(NG): print(g, PAT[g])
main()
```

```python
import sys
from asmcheck import parse, hazards, fix_hazards

NAME = 'standalone__paged_block_table_kv_pagedattention__prompt_kernel'
FL = {0: '', 1: ' nt', 2: ' sc1', 3: ' sc0 sc1', 4: ' sc1 nt', 5: ' sc0 sc1 nt', 6: ' sc0', 7: ' sc0 nt'}
OPT = dict(qlds=0, po=0, cpf=0, qf=1, kf=0, of=0, delta=9, stamp=0, lat=8, forceslow=0, skipdma=1)
for a in sys.argv[2:]:
    k, v = a.split('='); OPT[k] = int(v, 0)

S0, P0, KA, VA, BT, DK, DV, IDX, OV, MK, T0, O0 = 0, 64, 96, 100, 108, 112, 113, 114, 115, 116, 120, 128
QV = P0 + 31
aQ, aK, aV, aL, aONE = 0, 64, 128, 192, 208
sW, sCL, sN, sIT, sLN = 3, 36, 37, 38, 39
SETS = (56, 60)
sMK, sMV, sC, sC2, sNKB, sVOFF, sFORCE, sKB, sVB, sCLT = 64, 65, 66, 67, 68, 69, 70, 71, 72, 73
sQ1, sQ2, sQ3 = 74, 75, 76
sT = 78
sST = 84
KBYTES = 132 * 65536
LAT = OPT['lat']
NEG = 0xf149f2ca

def v(b, n=1): return f'v{b}' if n == 1 else f'v[{b}:{b+n-1}]'
def a(b, n=1): return f'a{b}' if n == 1 else f'a[{b}:{b+n-1}]'
def s(b, n=1): return f's{b}' if n == 1 else f's[{b}:{b+n-1}]'

def qk(q, kb, ks, mask=False):
    D = v(S0 + 16*q + 4*kb, 4)
    C = D if ks else (v(MK, 4) if mask else '0')
    return f'v_mfma_f32_16x16x32_bf16 {D}, {a(aK+16*kb+4*ks,4)}, {a(aQ+16*q+4*ks,4)}, {C}'
def pv(q, db, ks, vbase=None, first=False):
    D = v(O0 + 32*q + 4*db, 4)
    A = a(aV + (2*db+ks)*4, 4) if vbase is None else a(vbase + 4*db, 4)
    return f'v_mfma_f32_16x16x32_bf16 {D}, {A}, {v(P0+8*q+4*ks,4)}, {"0" if first and ks == 0 else D}'
def sm(q):
    return f'v_smfmac_f32_16x16x64_bf16 {a(aL+4*q,4)}, {a(aONE,4)}, {v(P0+8*q,8)}, {v(IDX)}'
def qkg(q, nkb=4, mask=False): return [qk(q, kb, ks, mask and kb == nkb-1) for kb in range(nkb) for ks in range(4)]
def pvg(q, nks=2, vbase=None, first=False): return [pv(q, db, ks, vbase, first) for db in range(8) for ks in range(nks)] + [sm(q)]

def i_exp(q, n): return f'v_exp_f32 {v(S0+16*q+n)}, {v(S0+16*q+n)}'
def i_cvt(q, i): return f'v_cvt_pk_bf16_f32 {v(P0+8*q+i)}, {v(S0+16*q+2*i)}, {v(S0+16*q+2*i+1)}'
def i_kread(kb, ks, slot, tile): return f'ds_read_b128 {a(aK+16*kb+4*ks,4)}, {v(KA+ks)} offset:{slot*16384+kb*1024}'
def i_vread(db, ks, t, slot, tile, vbase=None):
    d = (aV + (2*db+ks)*4 if vbase is None else vbase + 4*db) + 2*t
    return f'ds_read_b64_tr_b16 {a(d,2)}, {v(VA+db)} offset:{slot*16384+(2*ks+t)*1024}'
def i_dma(isv, i, soff, tile):
    return f'buffer_load_dwordx4 {v(DV if isv else DK)}, {s(12 if isv else 8,4)}, {s(soff+i)} offen offset:{i*1024}{FL[OPT["kf"]]} lds'
def i_m0(isv, slot): return f's_add_u32 m0, {s(sMV if isv else sMK)}, {slot*16384}'

class Op:
    def __init__(self, key, cls, rel, dl, text, deps=(), fifo=None):
        self.key, self.cls, self.rel, self.dl, self.text, self.deps, self.fifo = key, cls, rel, dl, text, list(deps), fifo
        self.gap = None
class Gap:
    def __init__(self): self.sc, self.mem, self.valu, self.post = [], [], [], []; self.block = None

def schedule(ngaps, ops, gaps=None, overflow=False, g0=0):
    gaps = gaps or [Gap() for _ in range(ngaps)]
    byk = {o.key: o for o in ops}
    todo = list(ops)
    def ready(o, g):
        if o.rel > g: return False
        for d in o.deps:
            p = byk.get(d)
            if p is not None and (p.gap is None or p.gap >= g): return False
        if o.fifo is not None:
            p = byk[o.fifo]
            if p.gap is None: return False
            if o.cls == 'D' and p.gap >= g: return False
        return True
    def put(o, g):
        o.gap = g; todo.remove(o)
        (gaps[g].mem if o.cls in 'DRT' else gaps[g].valu).append(o)
    for g in range(g0, ngaps):
        if gaps[g].block != 'all':
            cand = sorted((o for o in todo if ready(o, g)), key=lambda o: o.dl)
            if gaps[g].block == 'half': cand = [o for o in cand if o.cls == 'H'][:1]
            if cand:
                top = cand[0]
                halves = [o for o in cand if o.cls in 'RTH']
                full = [o for o in cand if o.cls in 'ED']
                if top.cls in 'RTH' and len(halves) == 1 and full and top.dl - g > 6 and top.fifo is None: top = full[0]
                put(top, g)
                if top.cls in 'RTH' and gaps[g].block != 'half':
                    cand2 = sorted((o for o in todo if o.cls in 'RTH' and ready(o, g)), key=lambda o: o.dl)
                    cand2 = [o for o in cand2 if not (o.cls == 'R' and top.cls == 'R')]
                    if cand2:
                        pick = cand2[0]
                        if top.cls in 'RT' and pick.cls in 'RT' and pick.dl - g > 8:
                            h = [o for o in cand2 if o.cls == 'H']
                            if h: pick = h[0]
                        put(pick, g)
        late = [o for o in todo if o.dl <= g]
        if late:
            if not overflow: raise RuntimeError(f'deadline miss at gap {g}: {[o.key for o in late]}')
            def force(o):
                if o.gap is not None: return
                for d in o.deps + ([o.fifo] if o.fifo else []):
                    if d in byk: force(byk[d])
                assert o.rel <= g, (o.key, o.rel, g)
                o.gap = g; todo.remove(o); gaps[g].post.append(o.text)
            for o in sorted(late, key=lambda o: ({'R': 0, 'T': 0, 'D': 0, 'E': 1, 'H': 2}[o.cls], o.dl)): force(o)
    return gaps, todo

def emit(mf, gaps, off=0):
    out = []
    for i, m in enumerate(mf):
        g = gaps[off + i]
        out.append(m)
        out += g.sc
        out += [o.text for o in g.mem] + [o.text for o in g.valu] + g.post
    return out

def softmax_ops(tile, q, qkstart, pvstart, nkb=4, prel=0, fixed=None):
    ops = []
    n = 4 * nkb
    for e in range(n):
        kb = e // 4
        if fixed is not None: ops.append(Op(('e', tile, q, e), 'E', qkstart + fixed + 2*e, qkstart + fixed + 2*e, i_exp(q, e)))
        else: ops.append(Op(('e', tile, q, e), 'E', qkstart + 4*kb + 3 + 5, pvstart - 4 - 2*(n - 1 - e), i_exp(q, e)))
    for i in range(2 * nkb):
        ops.append(Op(('c', tile, q, i), 'H', prel, pvstart - 3 - (2*nkb - 1 - i), i_cvt(q, i),
                      deps=[('e', tile, q, 2*i), ('e', tile, q, 2*i+1)]))
    for i in range(2 * nkb, 8):
        ops.append(Op(('z', tile, q, i), 'H', prel, pvstart - 3, f'v_mov_b32 {v(P0+8*q+i)}, 0'))
    return ops

NG = 132
LOOP_MF = qkg(0) + pvg(2) + qkg(1) + pvg(3) + qkg(2) + pvg(0) + qkg(3) + pvg(1)
assert len(LOOP_MF) == NG
BARG = 47
DMAG = [10, 14, 18, 22, 26, 30, 34, 38]

def steady():
    NT = 6
    ops = []
    gaps = [Gap() for _ in range(NG * (NT + 1))]
    for j in range(NT):
        b = NG * j
        for q in range(4):
            pvs = b + 82 + 33*q
            ops += softmax_ops(j, q, b + 33*q, pvs, prel=pvs - NG + 17, fixed=OPT['delta'])
        for db in range(8):
            for ks in range(2):
                for t in range(2):
                    f = 2*db + ks
                    ops.append(Op(('v', j, db, ks, t), 'T', max(b + 49 + f + 1, b + BARG + 1), b + 82 + f - LAT - (1 - t), ('v', db, ks, t)))
        for kb in range(4):
            for ks in range(4):
                f = 4*kb + ks
                ops.append(Op(('k', j, kb, ks), 'R', b + 99 + f + 1, min(b + NG - 2 - (15 - f), b + NG + f - LAT), ('k', kb, ks),
                              deps=[('k', j, (f-1)//4, (f-1)%4)] if f else []))
        for i in range(4):
            ops.append(Op(('rl', j, i), 'H', b, b + 20 + i, ('rl', i)))
        for i in range(8):
            ops.append(Op(('d', j, i), 'D', b + DMAG[i], b + DMAG[i], ('d', i),
                          deps=[('rl', j, x) for x in range(4)] if i >= 4 else []))
        gaps[b + BARG].block = 'all'
        gaps[b + NG - 1].block = 'half'
    schedule(NG * NT, ops, gaps, overflow=False) if False else None
    schedule(NG * (NT + 1), ops, gaps)
    def pattern(j):
        return [[(o.key[0], o.key[1] - j) + o.key[2:] for o in gaps[NG*j + g].mem + gaps[NG*j + g].valu] for g in range(NG)]
    p3, p4 = pattern(3), pattern(4)
    assert p3 == p4, 'no steady state'
    return p3
PAT = steady()
LEFT = {k for g in PAT for k in g if k[1] == -1}
assert all(k[0] in 'ec' for k in LEFT), LEFT

def key_text(k, j4, tile):
    kind = k[0]
    if kind == 'e': return i_exp(k[2], k[3])
    if kind == 'c': return i_cvt(k[2], k[3])
    if kind == 'v': return i_vread(k[2], k[3], k[4], j4, tile)
    if kind == 'k': return i_kread(k[2], k[3], (j4 + 1) % 4, tile + 1)
    if kind == 'rl': return f'v_readlane_b32 {s(SETS[(j4+3)%2] + k[2])}, {v(BT+k[2])}, {s(sLN)}'
    if kind == 'd':
        i = k[2]
        if i < 4: return i_dma(1, i, SETS[j4 % 2], tile + 2)
        return i_dma(0, i - 4, SETS[(j4 + 3) % 2], tile + 3)
    raise KeyError(k)

class Txt:
    def __init__(self, t): self.text = t

def add_lgkm_waits(lines, pre_ds=(), lead=None):
    ins = parse(lines)
    q = [(set(r), -age) for r, age in pre_ds]
    out = []; gap = -1
    lastm = None
    q_at_lastm = None
    for x in ins:
        if x.cls == 'mfma':
            needed = [i for i, (r, g) in enumerate(q) if r & x.r]
            if needed:
                k = max(needed)
                if lastm is not None and k < q_at_lastm:
                    visible = q_at_lastm
                    while k + 1 < visible and q[k + 1][1] <= gap - LAT: k += 1
                    n = min(15, visible - 1 - k)
                    out.insert(lastm, f's_waitcnt lgkmcnt({n})')
                    k = visible - 1 - n
                else:
                    n = min(15, len(q) - 1 - k)
                    out.append(f's_waitcnt lgkmcnt({n})')
                    k = len(q) - 1 - n
                q = q[k + 1:]
            gap += 1
            out.append(x.text); lastm = len(out); q_at_lastm = len(q)
        else:
            if x.cls == 'ds': q.append((set(x.w), gap))
            if x.cls == 'wait' and x.lgkm is not None:
                q = q[max(0, len(q) - x.lgkm):] if x.lgkm else []
                if q_at_lastm is not None: q_at_lastm = min(q_at_lastm, len(q))
            out.append(x.text)
    return out, [(r, gap - g) for r, g in q]

def body(j4, tile, exit_label, last):
    gaps = [Gap() for _ in range(NG)]
    for g in range(NG):
        for k in PAT[g]:
            t = Txt(key_text(k, j4, tile))
            (gaps[g].mem if k[0] in 'vkd' else gaps[g].valu).append(t)
    gd = {k[2]: g for g in range(NG) for k in PAT[g] if k[0] == 'd'}
    grl = max(g for g in range(NG) for k in PAT[g] if k[0] == 'rl')
    gaps[gd[0] - 2].sc.append(i_m0(1, (j4 + 2) % 4))
    gaps[gd[4] - 2].sc.append(i_m0(0, (j4 + 3) % 4))
    if OPT['skipdma']:
        gaps[1].sc.append(f's_cmp_le_u32 {s(sLN)}, {s(sN)}')
        gaps[2].sc.append(f's_cselect_b32 s14, {s(sVB)}, 0')
        gaps[3].sc.append(f's_cmp_lt_u32 {s(sLN)}, {s(sN)}')
        gaps[4].sc.append(f's_cselect_b32 s10, {s(sKB)}, 0')
    gaps[max(grl + 1, 50)].sc.append(f's_add_u32 {s(sLN)}, {s(sLN)}, 1')
    gaps[BARG - 1].sc.append('s_waitcnt vmcnt(16)')
    gaps[BARG].sc.append('s_barrier')
    gaps[NG - 2].sc.append(f's_sub_u32 {s(sIT)}, {s(sIT)}, 1')
    lines = emit(LOOP_MF, gaps)
    return lines

def loop_code():
    l0 = body(1, 1, None, False)
    _, pend = add_lgkm_waits(l0)
    out = ['.p2align 6', 'L_loop:']
    for u in range(4):
        j4 = (u + 1) % 4
        l, pend2 = add_lgkm_waits(body(j4, u + 1, None, False), pend)
        assert [x[0] for x in pend2] == [x[0] for x in pend]
        out += [f'; ---- body tile%4 == {j4}'] + l
        if u < 3: out.append('s_cbranch_scc1 L_tail')
        else: out += ['s_cbranch_scc0 L_loop']
    return out, pend

def epi_list(q, first, pk=False):
    t = T0 + 2 * (q & 1)
    o = O0 + 32*q
    L = [('H', f'v_accvgpr_read_b32 {v(t)}, {a(aL+4*q)}'),
         ('H', f'v_accvgpr_read_b32 {v(t+1)}, {a(aL+4*q+1)}'),
         ('H', f'v_add_f32 {v(t)}, {v(t)}, {v(t+1)}'),
         ('H', f'v_rcp_f32 {v(t+1)}, {v(t)}'),
         ('H', f'v_subrev_u32 {v(t)}, 0x2b800000, {v(t)}')]
    L.append(('H', f'v_mov_b32 {v(T0+4)}, {v(t)}' if first else f'v_max_u32 {v(T0+4)}, {v(T0+4)}, {v(t)}'))
    def muls(u): return [('M', (o + 8*u + i, t + 1)) for i in range(8)]
    def cvts(u): return [('H', f'v_cvt_pk_bf16_f32 {v(o+8*u+i)}, {v(o+8*u+2*i)}, {v(o+8*u+2*i+1)}') for i in range(4)]
    def swaps(u): return [('H', f'v_permlane16_swap_b32 {v(o+8*u+i)}, {v(o+8*u+2+i)}') for i in range(2)]
    def store(u):
        so = '0' if q == 0 else s(sQ1 + q - 1)
        return [('D', f'buffer_store_dwordx4 {v(o+8*u,4)}, {v(OV)}, s[16:19], {so} offen offset:{64*u}{FL[OPT["of"]]}')]
    L += muls(0) + cvts(0) + muls(1) + swaps(0) + cvts(1) + store(0) + muls(2) + swaps(1) + cvts(2) + store(1) \
       + muls(3) + swaps(2) + cvts(3) + store(2) + [('H', 's_nop 0')] + swaps(3) + store(3)
    return L
def mul_text(x): return f'v_mul_f32 {v(x[0])}, {v(x[1])}, {v(x[0])}'

def tail(nkb, pend):
    nks = 1 if nkb <= 2 else 2
    vbase = aK + 32 if nkb <= 2 else None
    G = {}
    if nkb <= 2:
        order = [('qk', 0), ('qk', 1), ('pvp', 2), ('qk', 2), ('pv', 0), ('pvp', 3), ('pv', 1), ('qk', 3), ('pv', 2), ('pv', 3)]
    else:
        order = [('qk', 0), ('pvp', 2), ('qk', 1), ('pvp', 3), ('qk', 2), ('pv', 0), ('qk', 3), ('pv', 1), ('pv', 2), ('pv', 3)]
    mf = []
    for kind, q in order:
        G[(kind, q)] = len(mf)
        mf += qkg(q, nkb, True) if kind == 'qk' else (pvg(q) if kind == 'pvp' else pvg(q, nks, vbase))
    n = len(mf)
    ops = []
    for q in (2, 3):
        pvs = G[('pvp', q)]
        for o in softmax_ops(-1, q, -100, pvs, prel=0):
            if (o.key[0], -1) + o.key[2:] in LEFT:
                o.rel = 0
                o.dl = max(o.dl, 0)
                o.dl = min(o.dl, G[('qk', q)] - 1) if G[('qk', q)] > 0 else o.dl
                ops.append(o)
    for q in range(4):
        prel = G[('pvp', q)] + 17 if q >= 2 else 0
        so = softmax_ops(0, q, G[('qk', q)], G[('pv', q)], nkb, prel)
        for o in so: o.dl = max(o.dl, o.rel, min(G[('pv', q)] - 1, o.rel + 1) if o.cls == 'E' else min(G[('pv', q)] - 1, G[('qk', q)] + 4*nkb + 4))
        ops += so
    for db in range(8):
        ops.append(Op(('va', db), 'H', 0, 3 + db // 2, f'v_add_u32 {v(VA+db)}, {s(sVOFF)}, {v(VA+db)}'))
    for db in range(8):
        for ks in range(nks):
            for t in range(2):
                f = nks*db + ks
                rel = 2 if vbase else G[('pvp', 3)] + 2*db + ks + 1
                ops.append(Op(('v', db, ks, t), 'T', rel, G[('pv', 0)] + f - LAT - (1 - t), i_vread(db, ks, t, 0, 'T', vbase), deps=[('va', db)]))
    prev = None; epi = []
    for q in range(4):
        rel = G[('pv', q)] + 8*nks + 5
        for i, (c, t) in enumerate(epi_list(q, q == 0)):
            o = Op(('ep', q, i), 'D' if c == 'D' else 'H', rel, 10000 + 100*q + i, mul_text(t) if c == 'M' else t, fifo=prev)
            o.raw = (c, t); prev = o.key; epi.append(o)
    ops += epi
    gaps = [Gap() for _ in range(n)]
    gaps[0].sc.append('s_waitcnt vmcnt(8)')
    gaps[1].sc.append('s_barrier'); gaps[1].block = 'all'
    gaps, todo = schedule(n, ops, gaps, overflow=True)
    lines = emit(mf, gaps)
    assert all(o.key[0] == 'ep' for o in todo), [o.key for o in todo]
    i = 0
    while i < len(todo):
        c, t = todo[i].raw
        if c == 'M' and i + 1 < len(todo) and todo[i+1].raw[0] == 'M' and t[0] % 2 == 0 and todo[i+1].raw[1][0] == t[0] + 1:
            r = t[1]
            lines.append(f'v_pk_mul_f32 {v(t[0],2)}, {v(t[0],2)}, {v(r-1,2)} op_sel:[0,1] op_sel_hi:[1,1]'); i += 2
        else:
            lines.append(todo[i].text); i += 1
    lines, _ = add_lgkm_waits(lines, pend)
    return lines

def scale_q(q):
    out = []
    for h in range(0, 16, 4):
        for i in range(4):
            x = S0 + 16*q + h + i; t = T0 + 2*i
            out += [f'v_lshlrev_b32 {v(t)}, 16, {v(x)}', f'v_and_b32 {v(t+1)}, 0xffff0000, {v(x)}']
        for i in range(4):
            t = T0 + 2*i
            out.append(f'v_pk_mul_f32 {v(t,2)}, {v(t,2)}, {s(sC,2)}')
        for i in range(4):
            x = S0 + 16*q + h + i; t = T0 + 2*i
            out.append(f'v_cvt_pk_bf16_f32 {v(x)}, {v(t)}, {v(t+1)}')
        for i in range(4):
            x = S0 + 16*q + h + i
            out.append(f'v_accvgpr_write_b32 {a(aQ+16*q+h+i)}, {v(x)}')
    return out
QD, QA = P0 + 24, P0 + 28
QREG = (0x4000, 0, 0x8000, 0xc000)
def qread(q):
    if not OPT['qlds']: return []
    return [f'ds_read_b128 {v(S0+16*q+4*ks,4)}, {v(QA+ks)} offset:{QREG[q]}' for ks in range(4)] + ['s_waitcnt lgkmcnt(0)']
def qload(q):
    if OPT['qlds']:
        return [f's_add_u32 m0, {s(sMK)}, {0x18000 + QREG[q]}', 's_nop 0'] + \
               [f'buffer_load_dwordx4 {v(QD+p)}, s[4:7], {"0" if q == 0 else s(sQ1+q-1)} offen offset:{1024*p}{FL[OPT["qf"]]} lds ; ld Q{q}' for p in range(4)]
    return qload_direct(q)
def qload_direct(q): return [f'buffer_load_dwordx4 {v(S0+16*q+4*ks,4)}, {v(QV)}, s[4:7], {"0" if q == 0 else s(sQ1+q-1)} offen offset:{64*ks}{FL[OPT["qf"]]} ; ld Q{q}' for ks in range(4)]
def dma4(isv, tile):
    soff = 40 + 4*tile if tile < 3 else SETS[1]
    return [i_m0(isv, tile), 's_nop 0'] + [i_dma(isv, i, soff, tile) for i in range(4)]
def btprep(tile):
    out = []
    for i in range(4):
        src = 40 + 4*tile + i; dst = src if tile < 3 else SETS[1] + i
        out.append(f's_lshl_b32 {s(dst)}, {s(src)}, 16')
        if i < 3: out.append(f's_or_b32 {s(dst)}, {s(dst)}, {(3-i)*1024}')
    return out
def stamp(i): return [f's_memtime {s(sST+2*i,2)}'] if OPT['stamp'] and (i == 0 or not OPT.get('xs')) else []
def xstamp(i): return [f's_memtime {s(sST+2*i,2)}'] if OPT.get('xs') else []

def resolve_waitvm(lines):
    out = []; vm = []
    for l in lines:
        if l.startswith('WAITVM'):
            tags = l.split(None, 1)[1].split('|')
            last = max(i for i, t in enumerate(vm) if t in tags)
            out.append(f's_waitcnt vmcnt({len(vm) - 1 - last}) ; {tags}')
        else:
            if l.startswith(('buffer_', 'global_')): vm.append(l.split(';')[1].strip() if ';' in l else '')
            out.append(l)
    return out

def memtest(L):
    t = T0; mt = OPT['memtest']
    srd = [f's_add_u32 s8, s26, {s(sT)}', 's_addc_u32 s9, s27, 0', 's_sub_u32 s8, s8, 3072', 's_subb_u32 s9, s9, 0',
          f's_add_u32 s12, s28, {s(sT)}', 's_addc_u32 s13, s29, 0', 's_sub_u32 s12, s12, 3072', 's_subb_u32 s13, s13, 0',
          f's_add_u32 s16, s34, {s(sT+1)}', 's_addc_u32 s17, s35, 0']
    nt = FL[OPT['qf']]
    ql = qload
    def qdma(q):
        o = [f's_add_u32 m0, {s(sMK)}, {0x8000 + q*16384}', 's_nop 0']
        return o + [f'buffer_load_dwordx4 {v(t+5)}, s[4:7], {"0" if q == 0 else s(sQ1+q-1)} offen offset:{1024*i}{nt} lds ; ld Q{q}' for i in range(4)]
    L += stamp(1)
    L += [f'v_lshlrev_b32 {v(t+5)}, 14, {v(t)}', f'v_lshl_add_u32 {v(t+5)}, {v(t+1)}, 4, {v(t+5)}']
    bt = ['s_waitcnt lgkmcnt(0)'] + stamp(2) + btprep(0) + btprep(1) + btprep(2) + btprep(3)
    W = lambda tag, i: [f'WAITVM {tag}'] + stamp(i)
    if mt == 1: L += ql(0) + ql(1) + ql(2) + ql(3) + srd + bt + W('ld Q0', 3) + W('ld Q1', 4) + W('ld Q2', 5) + W('ld Q3', 6)
    if mt == 2: L += qdma(0) + qdma(1) + qdma(2) + qdma(3) + srd + bt + W('ld Q0', 3) + W('ld Q1', 4) + W('ld Q2', 5) + W('ld Q3', 6)
    if mt == 3: L += srd + bt + dma4(0, 0) + W('dma K 0', 3) + dma4(1, 0) + W('dma V 0', 4) + dma4(0, 1) + W('dma K 1', 5) + ql(0) + W('ld Q0', 6)
    if mt == 4: L += ql(0) + srd + bt + dma4(0, 0) + W('ld Q0', 3) + W('dma K 0', 4) + ql(1) + ql(2) + ql(3) + W('ld Q1', 5) + W('ld Q3', 6)
    if mt == 5: L += ql(0) + srd + bt + dma4(0, 0) + ql(1) + ql(2) + ql(3) + W('ld Q0', 3) + W('dma K 0', 4) + W('ld Q1', 5) + W('ld Q3', 6)
    if mt == 6: L += ql(0) + ql(1) + srd + bt + dma4(0, 0) + ql(2) + ql(3) + W('ld Q0', 3) + W('dma K 0', 4) + W('ld Q2', 5) + W('ld Q3', 6)
    if mt == 7: L += srd + bt + dma4(0, 0) + dma4(1, 0) + dma4(0, 1) + dma4(1, 1) + dma4(0, 2) + dma4(1, 2) + dma4(0, 3) + W('dma K 0', 3) + W('dma K 1', 4) + W('dma K 2', 5) + W('dma K 3', 6)
    if mt == 8: L += ql(0) + srd + bt + dma4(0, 0) + ql(1) + ql(2) + dma4(1, 0) + dma4(0, 1) + ql(3) + W('ld Q0', 3) + W('dma K 0', 4) + W('dma K 1', 5) + W('ld Q3', 6)
    allkv = lambda: dma4(0, 0) + dma4(1, 0) + dma4(0, 1) + dma4(1, 1) + dma4(0, 2) + dma4(1, 2) + dma4(0, 3)
    if mt == 9: L += srd + bt + allkv() + W('dma K 3', 3) + allkv() + W('dma K 3', 4) + allkv() + W('dma K 3', 5) + ql(0) + ql(1) + ql(2) + ql(3) + W('ld Q3', 6)
    if mt == 10:
        L += ql(0) + ql(1) + ql(2) + ql(3) + srd + bt + W('ld Q3', 3) + ql(0) + ql(1) + ql(2) + ql(3) + W('ld Q3', 4) + allkv() + W('dma K 3', 5) + ql(0) + ql(1) + ql(2) + ql(3) + W('ld Q3', 6)
    if mt in (11, 12, 13):
        L += [f's_lshl_b32 s56, {s(sW)}, 14', 's_add_u32 s56, s4, s56', 's_addc_u32 s57, s5, 0']
        pf = lambda lo, hi, step: [f's_load_dword s58, s[56:57], {o}' for o in range(lo, hi, step)]
        if mt == 11: L += ql(0) + ql(1) + pf(8192, 16384, 128) + stamp(2) + ql(2) + ql(3) + W('ld Q0', 3) + W('ld Q1', 4) + W('ld Q2', 5) + W('ld Q3', 6)
        if mt == 12: L += stamp(2) + pf(0, 16384, 128) + stamp(3) + ['s_waitcnt lgkmcnt(0)'] + stamp(4) + ql(0) + ql(1) + ql(2) + ql(3) + W('ld Q0', 5) + W('ld Q3', 6)
        if mt == 13: L += stamp(2) + pf(0, 16384, 64) + stamp(3) + ['s_waitcnt lgkmcnt(0)'] + stamp(4) + ql(0) + ql(1) + ql(2) + ql(3) + W('ld Q0', 5) + W('ld Q3', 6)
    if mt >= 20:
        L += srd + bt
        of = FL[OPT['of']]
        if mt == 20:
            for q in range(4):
                for u in range(4): L.append(f'buffer_store_dwordx4 v[{16*q+4*u}:{16*q+4*u+3}], {v(OV)}, s[16:19], {"0" if q == 0 else s(sQ1+q-1)} offen offset:{64*u}{of} ; st{q}')
        if mt == 21:
            for q in range(4):
                for u in range(4): L.append(f'buffer_store_dwordx4 v[{16*q+4*u}:{16*q+4*u+3}], {v(t+5)}, s[16:19], {"0" if q == 0 else s(sQ1+q-1)} offen offset:{1024*u}{of} ; st{q}')
        if mt == 22:
            L += [f'v_lshrrev_b32 {v(t+4)}, 3, {v(t+1)}', f'v_lshlrev_b32 {v(t+4)}, 8, {v(t+4)}', f'v_and_b32 {v(t+6)}, 7, {v(t+1)}',
                  f'v_lshl_add_u32 {v(t+4)}, {v(t+6)}, 4, {v(t+4)}', f'v_lshl_add_u32 {v(t+4)}, {v(t)}, 14, {v(t+4)}']
            for q in range(4):
                for u in range(4): L.append(f'buffer_store_dwordx4 v[{16*q+4*u}:{16*q+4*u+3}], {v(t+4)}, s[16:19], {"0" if q == 0 else s(sQ1+q-1)} offen offset:{128*(u&1)+2048*(u>>1)}{of} ; st{q}')
        L += stamp(3) + W('st0', 4) + W('st1', 5) + W('st3', 6)
    L += [f'v_mov_b32 {v(T0+4)}, 0', f's_mov_b32 {s(sFORCE)}, 0', 's_nop 3']
    return resolve_waitvm(L), None

def prologue():
    L = []
    A = L.append
    if OPT.get('xmask') is not None:
        L += [f's_and_b32 s3, s2, {OPT["xmask"]}', 's_cmp_lg_u32 s3, 0', 's_cbranch_scc1 L_end']
    if OPT.get('twice'): L += [f's_mov_b32 s77, {OPT["twice"]}'] + (['s_memrealtime s[100:101]'] if OPT['stamp'] else []) + ['L_again:']
    L += ['s_cmp_ge_u32 s2, 256', 's_cbranch_scc1 L_end',
          's_load_dwordx8 s[24:31], s[0:1], 0', 's_load_dwordx4 s[32:35], s[0:1], 32']
    if OPT['cpf']:
        L += ['s_getpc_b64 s[4:5]', 'L_pc:', 's_lshr_b32 s6, s2, 3', 's_lshl_b32 s6, s6, 10',
              f'v_lshl_add_u32 v2, v0, 2, s6', f'v_min_u32 v2, L_codeend-L_pc-4, v2', 'v_mov_b32 v3, s5',
              'v_add_co_u32 v2, vcc, s4, v2', 's_nop 1', 'v_addc_co_u32 v3, vcc, 0, v3, vcc', f'global_load_dword {v(T0+7)}, v[2:3], off']
    L += stamp(0) + ([f's_memrealtime s[100:101]'] if OPT['stamp'] and not OPT.get('twice') else [])
    t = T0
    L += [f'v_lshrrev_b32 {v(t)}, 6, v0',
          f'v_and_b32 {v(t+1)}, 63, v0',
          f'v_readfirstlane_b32 {s(sW)}, {v(t)}',
          f'v_and_b32 {v(t+2)}, 15, v0',
          f'v_bfe_u32 {v(t+3)}, v0, 4, 2',
          f's_and_b32 {s(sT)}, s2, 7', f's_lshr_b32 {s(sT+1)}, s2, 3', f's_lshr_b32 {s(sT+2)}, {s(sT+1)}, 4',
          f's_lshl_b32 {s(sT)}, {s(sT)}, 1', f's_add_u32 {s(sT)}, {s(sT)}, {s(sT+2)}',
          f's_and_b32 {s(sT+1)}, {s(sT+1)}, 15', f's_lshl_b32 {s(sT+2)}, {s(sT)}, 4',
          f's_add_u32 {s(sT+1)}, {s(sT+1)}, {s(sT+2)}', f's_lshl_b32 {s(sT+1)}, {s(sT+1)}, 16',
          f's_lshl_b32 {s(sT)}, {s(sT)}, 8',
          f's_movk_i32 {s(sQ1)}, 0x1000', f's_movk_i32 {s(sQ2)}, 0x2000', f's_movk_i32 {s(sQ3)}, 0x3000',
          f'v_lshlrev_b32 {v(t+4)}, 14, {v(t)}', f'v_lshl_add_u32 {v(t+4)}, {v(t+2)}, 8, {v(t+4)}',
          f'v_lshl_add_u32 {v(QV)}, {v(t+3)}, 4, {v(t+4)}',
          f'v_and_b32 {v(t+5)}, 1, {v(t+3)}', f'v_lshl_add_u32 {v(t+4)}, {v(t+5)}, 5, {v(t+4)}',
          f'v_lshrrev_b32 {v(t+5)}, 1, {v(t+3)}', f'v_lshl_add_u32 {v(OV)}, {v(t+5)}, 4, {v(t+4)}',
          f'v_lshl_add_u32 {v(t+4)}, {v(t)}, 2, {v(t+3)}',
          f'v_xor_b32 {v(t+5)}, {v(t+2)}, {v(t+4)}', f'v_lshlrev_b32 {v(t+5)}, 4, {v(t+5)}',
          f'v_lshl_add_u32 {v(DK)}, {v(t+4)}, 12, {v(t+5)}',
          f'v_and_b32 {v(t+5)}, 7, {v(t+4)}', f'v_lshlrev_b32 {v(t+5)}, 1, {v(t+5)}',
          f'v_xor_b32 {v(t+5)}, {v(t+2)}, {v(t+5)}', f'v_lshlrev_b32 {v(t+5)}, 4, {v(t+5)}',
          f'v_lshl_add_u32 {v(DV)}, {v(t+4)}, 12, {v(t+5)}',
          f'v_lshlrev_b32 {v(t+6)}, 4, {v(t+1)}',
          f's_lshl_b32 {s(sMK)}, {s(sW)}, 12', f's_add_u32 {s(sMV)}, {s(sMK)}, 0x10000']
    if OPT['qlds']:
        L += [f'v_lshlrev_b32 {v(t+4)}, 14, {v(t)}', f'v_lshl_add_u32 {v(t+4)}, {v(t+3)}, 8, {v(t+4)}', f'v_xor_b32 {v(t+5)}, {v(t+2)}, {v(t+3)}']
        for p in range(4):
            L += [f'v_xor_b32 {v(QD+p)}, {4*p}, {v(t+5)}', f'v_lshl_add_u32 {v(QD+p)}, {v(QD+p)}, 4, {v(t+4)}']
    L += [
          's_mov_b32 s6, 0x10000', 's_mov_b32 s7, 0x20000', 's_mov_b32 s11, 0x20000', 's_mov_b32 s15, 0x20000',
          's_mov_b32 s18, 0x10000', 's_mov_b32 s19, 0x20000', 's_movk_i32 s22, 0x200', 's_mov_b32 s23, 0x20000',
          f's_sub_u32 {s(sKB)}, {KBYTES+3072}, {s(sT)}', f's_mov_b32 {s(sVB)}, {s(sKB)}',
          f's_mov_b32 s10, {s(sKB)}', f's_mov_b32 s14, {s(sKB)}'] + xstamp(1) + [
          's_waitcnt lgkmcnt(0)'] + xstamp(2) + [
          f's_load_dword {s(sCL)}, s[32:33], 0', 's_load_dwordx16 s[40:55], s[30:31], 0',
          f's_add_u32 s4, s24, {s(sT+1)}', 's_addc_u32 s5, s25, 0',
          's_mov_b32 s20, s30', 's_mov_b32 s21, s31']
    if OPT.get('memtest'): return memtest(L)
    L += qload(0)
    L += [f'buffer_load_dwordx4 {v(BT,4)}, {v(t+6)}, s[20:23], 0 offen',
          f's_add_u32 s8, s26, {s(sT)}', 's_addc_u32 s9, s27, 0', 's_sub_u32 s8, s8, 3072', 's_subb_u32 s9, s9, 0',
          f's_add_u32 s12, s28, {s(sT)}', 's_addc_u32 s13, s29, 0', 's_sub_u32 s12, s12, 3072', 's_subb_u32 s13, s13, 0',
          f's_add_u32 s16, s34, {s(sT+1)}', 's_addc_u32 s17, s35, 0']
    L += [f'v_lshrrev_b32 {v(t+4)}, 2, {v(t+2)}', f'v_lshlrev_b32 {v(t+4)}, 4, {v(t+4)}',
          f'v_and_b32 {v(t+5)}, 3, {v(t+2)}', f'v_add_u32 {v(t+4)}, {v(t+4)}, {v(t+5)}',
          f'v_lshlrev_b32 {v(t+4)}, 8, {v(t+4)}',
          f'v_xor_b32 {v(t+5)}, {v(t+3)}, {v(t+2)}']
    for ks in range(4):
        L += [f'v_xor_b32 {v(KA+ks)}, {4*ks}, {v(t+5)}', f'v_lshl_add_u32 {v(KA+ks)}, {v(KA+ks)}, 4, {v(t+4)}']
    if OPT['qlds']:
        L += [f'v_lshlrev_b32 {v(t+4)}, 12, {v(t)}', f'v_lshl_add_u32 {v(t+4)}, {v(t+2)}, 8, {v(t+4)}', f'v_add_u32 {v(t+4)}, 0x18000, {v(t+4)}']
        for ks in range(4):
            L += [f'v_xor_b32 {v(QA+ks)}, {4*ks}, {v(t+5)}', f'v_lshl_add_u32 {v(QA+ks)}, {v(QA+ks)}, 4, {v(t+4)}']
    L += [f'v_bfe_u32 {v(t+5)}, {v(t+1)}, 2, 2',
          f'v_lshl_add_u32 {v(t+4)}, {v(t+3)}, 4, {v(t+5)}',
          f'v_lshlrev_b32 {v(t+4)}, 8, {v(t+4)}',
          f'v_and_b32 {v(MK)}, 3, {v(t+1)}', f'v_lshl_add_u32 {v(t+4)}, {v(MK)}, 3, {v(t+4)}',
          f'v_add_u32 {v(t+4)}, 0x10000, {v(t+4)}',
          f'v_lshl_add_u32 {v(t+5)}, {v(t+3)}, 2, {v(t+5)}', f'v_and_b32 {v(t+5)}, 7, {v(t+5)}']
    for db in range(8):
        L += [f'v_xor_b32 {v(VA+db)}, {db}, {v(t+5)}', f'v_lshl_add_u32 {v(VA+db)}, {v(VA+db)}, 5, {v(t+4)}']
    L += [f'v_and_b32 {v(t+4)}, 1, {v(t+1)}', f'v_mov_b32 {v(t+5)}, 0xaaaaaaaa',
          f'v_mul_lo_u32 {v(t+4)}, {v(t+4)}, {v(t+5)}', f'v_or_b32 {v(IDX)}, 0x44444444, {v(t+4)}',
          f'v_mov_b32 {v(t+5)}, 0x3f803f80']
    L += [f'v_accvgpr_write_b32 {a(aONE+i)}, {v(t+5)}' for i in range(4)]
    L += xstamp(3) + ['s_waitcnt lgkmcnt(0)'] + stamp(1) + xstamp(4)
    L += btprep(0) + dma4(0, 0) + qload(1) + xstamp(5)
    L += [f's_mov_b32 {s(sC)}, 0x3e0293ee',
          f's_cmp_lt_i32 {s(sCL)}, 1', f's_cselect_b32 {s(sC)}, 0, {s(sC)}', f's_cselect_b32 {s(sCL)}, 0x800, {s(sCL)}',
          f's_mov_b32 {s(sC2)}, {s(sC)}',
          f's_min_u32 {s(sCLT)}, {s(sCL)}, 0x800',
          f's_cmp_lt_u32 {s(sCLT)}, {4096 if OPT["forceslow"] else 129}', f's_cselect_b32 {s(sFORCE)}, 1, 0',
          f's_max_u32 {s(sCL)}, {s(sCLT)}, 129',
          f's_add_u32 {s(sN)}, {s(sCL)}, 63', f's_lshr_b32 {s(sN)}, {s(sN)}, 6',
          f's_sub_u32 {s(sIT)}, {s(sN)}, 3',
          f's_sub_u32 {s(sT)}, {s(sN)}, 1', f's_and_b32 {s(sVOFF)}, {s(sT)}, 3', f's_lshl_b32 {s(sVOFF)}, {s(sVOFF)}, 14',
          f's_lshl_b32 {s(sT)}, {s(sT)}, 6', f's_sub_u32 {s(sT)}, {s(sCL)}, {s(sT)}',
          f's_add_u32 {s(sNKB)}, {s(sT)}, 15', f's_lshr_b32 {s(sNKB)}, {s(sNKB)}, 4',
          f's_sub_u32 {s(sT)}, {s(sT)}, 1', f's_and_b32 {s(sT)}, {s(sT)}, 15',
          f's_mov_b32 {s(sLN)}, 4']
    L += [f'v_lshlrev_b32 {v(t+4)}, 2, {v(t+3)}', f'v_mov_b32 {v(t+5)}, {NEG:#x}']
    for r in range(4):
        L += [f'v_add_u32 {v(t+6)}, {r}, {v(t+4)}', f'v_cmp_lt_u32 vcc, {s(sT)}, {v(t+6)}', 's_nop 1',
              f'v_cndmask_b32 {v(MK+r)}, 0, {v(t+5)}, vcc']
    L += btprep(1) + btprep(2) + btprep(3)
    L += [f'v_mov_b32 {v(O0+i)}, 0' for i in range(64, 128)]
    L += [f'v_accvgpr_write_b32 {a(aL+i)}, 0' for i in range(16)]
    L += xstamp(6)
    po = OPT['po']
    groups = {'q2': qload(2), 'q3': qload(3), 'v0': dma4(1, 0), 'k1': dma4(0, 1), 'v1': dma4(1, 1), 'k2': dma4(0, 2), 'v2': dma4(1, 2), 'k3': dma4(0, 3)}
    plan = {0: dict(A=[], B=['q2'], C=['v0', 'q3'], D=['k1', 'v1'], E=['k2'], F=['v2', 'k3']),
            1: dict(A=['q2'], B=['v0'], C=['q3'], D=['k1', 'v1'], E=['k2'], F=['v2', 'k3']),
            2: dict(A=['q2'], B=['v0', 'q3'], C=['k1'], D=['v1', 'k2'], E=['v2', 'k3'], F=[]),
            3: dict(A=[], B=['q2', 'v0'], C=['q3', 'k1'], D=['v1', 'k2'], E=[], F=['v2', 'k3']),
            4: dict(A=[], B=['q2'], C=['v0', 'q3'], D=['k1'], E=['v1', 'k2'], F=['v2', 'k3'])}[po]
    at = lambda p: [x for g in plan[p] for x in groups[g]]
    L += at('A') + ['WAITVM ld Q0'] + stamp(2) + qread(0) + scale_q(0)
    L += ['WAITVM ld BT']
    for i in range(4):
        L.append(f'v_lshlrev_b32 {v(BT+i)}, 16, {v(BT+i)}')
        if i < 3: L.append(f'v_or_b32 {v(BT+i)}, {(3-i)*1024}, {v(BT+i)}')
    L += ['WAITVM dma K 0', 's_barrier'] + stamp(3)
    L += [i_kread(kb, ks, 0, 0) for kb in range(4) for ks in range(4)] + at('B')
    order = [('qk', 0), ('qk', 1), ('qk', 2), ('pv', 0), ('qk', 3), ('pv', 1)]
    G = {}; mf = []
    for kind, q in order:
        G[(kind, q)] = len(mf); mf += qkg(q) if kind == 'qk' else pvg(q, first=True)
    n = len(mf)
    ops = []
    for q in range(4):
        if q < 2: pvs = G[('qk', q)] + 23
        elif q == 2: pvs = G[('qk', 3)] + 2
        else: pvs = n + 2
        for o in softmax_ops(0, q, G[('qk', q)], pvs):
            if (o.key[0], -1) + o.key[2:] in LEFT: continue
            o.dl = max(o.dl, o.rel if o.cls == 'E' else G[('qk', q)] + 4*(o.key[3]//2) + 9)
            o.dl = min(o.dl, n - 1)
            ops.append(o)
    for db in range(8):
        for ks in range(2):
            for tt in range(2):
                f = 2*db + ks
                ops.append(Op(('v', db, ks, tt), 'T', G[('qk', 2)] - 1 + 1, G[('pv', 0)] + f - LAT - (1 - tt), i_vread(db, ks, tt, 0, 0)))
    kb0 = G[('pv', 1)] - 1
    for kb in range(4):
        for ks in range(4):
            f = 4*kb + ks
            ops.append(Op(('k', kb, ks), 'R', kb0 + 1, min(n - 1 - (15 - f), n + f - LAT), i_kread(kb, ks, 1, 1),
                          deps=[('k', (f-1)//4, (f-1)%4)] if f else []))
    gaps = [Gap() for _ in range(n)]
    gaps, todo = schedule(n, ops, gaps, overflow=True)
    assert not todo
    gaps[G[('qk', 1)] - 1].post += ['WAITVM ld Q1'] + at('C') + qread(1) + scale_q(1) + ['s_nop 0']
    gaps[G[('qk', 2)] - 1].post += ['WAITVM ld Q2'] + at('D') + qread(2) + scale_q(2) + ['WAITVM dma V 0', 's_barrier']
    gaps[G[('qk', 3)] - 1].post += ['WAITVM ld Q3'] + stamp(4) + at('E') + qread(3) + scale_q(3) + ['s_nop 0']
    gaps[kb0].post += at('F') + ['WAITVM dma K 1', 's_barrier']
    L += emit(mf, gaps)
    L = resolve_waitvm(L)
    L, pend = add_lgkm_waits(L)
    return L, pend

def slow():
    t = T0
    L = ['L_slow:', 's_waitcnt vmcnt(0) lgkmcnt(0)']
    M, LS, KV, VD0, VD1 = KA, BT, DK, DV, IDX
    L += [f's_mov_b32 s10, {s(sKB)}', f's_mov_b32 s14, {s(sVB)}',
          f'v_mbcnt_lo_u32_b32 {v(t+1)}, -1, 0', f'v_mbcnt_hi_u32_b32 {v(t+1)}, -1, {v(t+1)}',
          f'v_and_b32 {v(t+2)}, 15, {v(t+1)}', f'v_lshrrev_b32 {v(t+3)}, 4, {v(t+1)}',
          f'v_lshlrev_b32 {v(t+4)}, 12, {v(t+2)}', f'v_lshl_add_u32 {v(KV)}, {v(t+3)}, 4, {v(t+4)}',
          f'v_add_u32 {v(KV)}, 3072, {v(KV)}',
          f'v_lshlrev_b32 {v(t+4)}, 1, {v(t+3)}', f'v_xor_b32 {v(t+4)}, {v(t+2)}, {v(t+4)}',
          f'v_lshlrev_b32 {v(t+4)}, 4, {v(t+4)}', f'v_lshl_add_u32 {v(VD0)}, {v(t+3)}, 12, {v(t+4)}',
          f'v_add_u32 {v(VD0)}, 3072, {v(VD0)}',
          f'v_xor_b32 {v(t+4)}, 0x80, {v(t+4)}', f'v_lshl_add_u32 {v(VD1)}, {v(t+3)}, 12, {v(t+4)}',
          f'v_add_u32 {v(VD1)}, {3072 + 16384}, {v(VD1)}',
          f's_lshl_b32 {s(sMV)}, {s(sW)}, 13', f's_add_u32 {s(sMV)}, {s(sMV)}, 0x20000',
          f'v_bfe_u32 {v(t+5)}, {v(t+1)}, 2, 2', f'v_lshl_add_u32 {v(t+5)}, {v(t+3)}, 2, {v(t+5)}',
          f'v_lshlrev_b32 {v(t+4)}, 8, {v(t+5)}', f'v_and_b32 {v(t+6)}, 3, {v(t+1)}',
          f'v_lshl_add_u32 {v(t+4)}, {v(t+6)}, 3, {v(t+4)}', f'v_add_u32 {v(t+4)}, {s(sMV)}, {v(t+4)}',
          f'v_and_b32 {v(t+5)}, 7, {v(t+5)}']
    for db in range(8):
        L += [f'v_xor_b32 {v(VA+db)}, {db}, {v(t+5)}', f'v_lshl_add_u32 {v(VA+db)}, {v(VA+db)}, 5, {v(t+4)}']
    L += [f'v_lshlrev_b32 {v(MK)}, 2, {v(t+3)}']
    L += [f'v_mov_b32 {v(MK+1)}, {NEG:#x}']
    L += [f'v_mov_b32 {v(O0+i)}, 0' for i in range(128)]
    L += [f'v_mov_b32 {v(M+q)}, 0xff7fffff' for q in range(4)] + [f'v_mov_b32 {v(LS+q)}, 0' for q in range(4)]
    L += [f's_mov_b32 {s(sIT)}, 0', 'L_slow_loop:',
          f's_lshr_b32 {s(sT)}, {s(sIT)}, 2',
          f's_load_dwordx2 s[40:41], s[30:31], {s(sT)}', 's_waitcnt lgkmcnt(0)',
          's_lshl_b32 s40, s40, 16', 's_lshl_b32 s41, s41, 16']
    for kb in range(2):
        for ks in range(4):
            L.append(f'buffer_load_dwordx4 {a(aK+16*kb+4*ks,4)}, {v(KV)}, s[8:11], s{40+kb} offen offset:{64*ks}')
    for b in range(2):
        for p in range(4):
            L += [f's_add_u32 m0, {s(sMV)}, {b*4096 + p*1024}', f's_add_u32 s42, s{40+b}, {(p//2)*32768}',
                  f'buffer_load_dwordx4 {v(VD1 if p & 1 else VD0)}, s[12:15], s42 offen lds']
    L += ['s_waitcnt vmcnt(0)']
    for db in range(8):
        for tt in range(2):
            L.append(f'ds_read_b64_tr_b16 {a(aV+8*db+2*tt,2)}, {v(VA+db)} offset:{tt*4096}')
    L += [f's_sub_u32 {s(sT)}, {s(sCLT)}, {s(sIT)}', 's_waitcnt lgkmcnt(0)']
    for q in range(4):
        S = S0 + 16*q
        L += qkg(q, 2) + ['s_nop 7']
        for e in range(8):
            L += [f'v_add_u32 {v(t)}, {16*(e//4) + e%4}, {v(MK)}', f'v_cmp_gt_u32 vcc, {s(sT)}, {v(t)}', 's_nop 1',
                  f'v_cndmask_b32 {v(S+e)}, {v(MK+1)}, {v(S+e)}, vcc']
        L += [f'v_max3_f32 {v(t)}, {v(S)}, {v(S+1)}, {v(S+2)}', f'v_max3_f32 {v(t)}, {v(t)}, {v(S+3)}, {v(S+4)}',
              f'v_max3_f32 {v(t)}, {v(t)}, {v(S+5)}, {v(S+6)}', f'v_max3_f32 {v(t)}, {v(t)}, {v(S+7)}, {v(M+q)}',
              f'v_mov_b32 {v(t+1)}, {v(t)}', 's_nop 1', f'v_permlane16_swap_b32 {v(t)}, {v(t+1)}', f'v_max_f32 {v(t)}, {v(t)}, {v(t+1)}',
              f'v_mov_b32 {v(t+1)}, {v(t)}', 's_nop 1', f'v_permlane32_swap_b32 {v(t)}, {v(t+1)}', f'v_max_f32 {v(t)}, {v(t)}, {v(t+1)}',
              f'v_sub_f32 {v(t+1)}, {v(M+q)}, {v(t)}', f'v_exp_f32 {v(t+1)}, {v(t+1)}', f'v_mov_b32 {v(M+q)}, {v(t)}']
        L += [f'v_sub_f32 {v(S+e)}, {v(S+e)}, {v(t)}' for e in range(8)]
        L += [f'v_exp_f32 {v(S+e)}, {v(S+e)}' for e in range(8)]
        L += [f'v_mul_f32 {v(LS+q)}, {v(LS+q)}, {v(t+1)}']
        L += [f'v_mul_f32 {v(O0+32*q+i)}, {v(O0+32*q+i)}, {v(t+1)}' for i in range(32)]
        L += [i_cvt(q, i) for i in range(4)]
        for i in range(4):
            L += [f'v_lshlrev_b32 {v(t)}, 16, {v(P0+8*q+i)}', f'v_and_b32 {v(t+1)}, 0xffff0000, {v(P0+8*q+i)}',
                  f'v_add_f32 {v(LS+q)}, {v(LS+q)}, {v(t)}', f'v_add_f32 {v(LS+q)}, {v(LS+q)}, {v(t+1)}']
        L += [pv(q, db, 0) for db in range(8)]
    L += [f's_add_u32 {s(sIT)}, {s(sIT)}, 32', f's_cmp_lt_u32 {s(sIT)}, {s(sCLT)}', 's_cbranch_scc1 L_slow_loop', 's_nop 7']
    for q in range(4):
        o = O0 + 32*q
        L += [f'v_mov_b32 {v(t)}, {v(LS+q)}', f'v_mov_b32 {v(t+1)}, {v(LS+q)}', 's_nop 1',
              f'v_permlane16_swap_b32 {v(t)}, {v(t+1)}', f'v_add_f32 {v(t)}, {v(t)}, {v(t+1)}',
              f'v_mov_b32 {v(t+1)}, {v(t)}', 's_nop 1', f'v_permlane32_swap_b32 {v(t)}, {v(t+1)}', f'v_add_f32 {v(t)}, {v(t)}, {v(t+1)}',
              f'v_rcp_f32 {v(t)}, {v(t)}', 's_nop 0']
        L += [f'v_mul_f32 {v(o+i)}, {v(o+i)}, {v(t)}' for i in range(32)]
        for u in range(4):
            L += [f'v_cvt_pk_bf16_f32 {v(o+8*u+i)}, {v(o+8*u+2*i)}, {v(o+8*u+2*i+1)}' for i in range(4)]
        for u in range(4):
            L += [f'v_permlane16_swap_b32 {v(o+8*u+i)}, {v(o+8*u+2+i)}' for i in range(2)]
        for u in range(4):
            L.append(f'buffer_store_dwordx4 {v(o+8*u,4)}, {v(OV)}, s[16:19], {"0" if q == 0 else s(sQ1+q-1)} offen offset:{64*u}')
    L += ['s_endpgm']
    return L

def finish():
    L = [f'v_cmp_lt_u32 vcc, 0x28000000, {v(T0+4)}',
         f's_cmp_lg_u32 {s(sFORCE)}, 0', 's_cbranch_scc1 L_slow', 's_nop 3', 's_cbranch_vccnz L_slow']
    if OPT.get('twice'):
        global NF2
        NF2 = globals().get('NF2', 0) + 1
        L += ['s_cmp_eq_u32 s77, 0', f's_cbranch_scc1 L_fin{NF2}', 's_sub_u32 s77, s77, 1', 's_waitcnt vmcnt(0) lgkmcnt(0)', 's_barrier',
              'v_mbcnt_lo_u32_b32 v0, -1, 0', 'v_mbcnt_hi_u32_b32 v0, -1, v0', f's_lshl_b32 {s(sT)}, {s(sW)}, 6', f'v_add_u32 v0, {s(sT)}, v0', 's_branch L_again', f'L_fin{NF2}:']
    if OPT.get('fixed'):
        global NFIX
        NFIX = globals().get('NFIX', 0) + 1
        ph = OPT.get('phase')
        L += ['s_waitcnt vmcnt(0) lgkmcnt(0)', f's_mov_b32 {s(sT+4)}, {OPT["fixed"]}']
        if ph:
            L += [f's_sub_u32 {s(sT+5)}, {s(sST+2*ph)}, {s(sST+2*OPT.get("phase0",0))}', f's_lshr_b32 {s(sT+5)}, {s(sT+5)}, {OPT.get("sh",3)}', f's_add_u32 {s(sT+4)}, {s(sT+4)}, {s(sT+5)}']
        L += [f'L_spin{NFIX}:', f's_memrealtime {s(sT,2)}', 's_waitcnt lgkmcnt(0)', f's_sub_u32 {s(sT)}, {s(sT)}, s100',
              f's_cmp_lt_u32 {s(sT)}, {s(sT+4)}', f's_cbranch_scc1 L_spin{NFIX}', 's_endpgm']
        return L
    if OPT['stamp']:
        L += [f's_memtime {s(sST+14,2)}', 's_waitcnt vmcnt(0)', f's_memtime {s(sT,2)}', f's_memrealtime {s(sT+2,2)}',
              f's_load_dwordx2 s[24:25], s[0:1], {56 if OPT["stamp"] == 1 else 48}', 's_waitcnt lgkmcnt(0)',
              f's_mov_b32 s26, {0x100000 if OPT["stamp"] == 1 else 64}', 's_mov_b32 s27, 0x20000']
        if OPT['stamp'] == 2:
            for i in range(1, 8): L.append(f's_sub_u32 {s(sST+2*i)}, {s(sST+2*i)}, {s(sST)}')
            L += [f's_sub_u32 {s(sT)}, {s(sT)}, {s(sST)}', f's_sub_u32 {s(sT+2)}, {s(sT+2)}, s100']
        for i in range(8): L.append(f'v_mov_b32 v{i}, {s(sST+2*i)}')
        L += [f'v_mov_b32 v8, {s(sT)}', f'v_mov_b32 v9, {s(sT+2)}', 'v_mov_b32 v10, s100', 'v_mov_b32 v11, 0',
              f's_lshl_b32 {s(sT)}, s2, 2', f's_add_u32 {s(sT)}, {s(sT)}, {s(sW)}', f's_lshl_b32 {s(sT)}, {s(sT)}, 6',
              'v_mov_b32 v12, 0', 's_mov_b64 exec, 1',
              f'buffer_store_dwordx4 v[0:3], v12, s[24:27], {s(sT)} offen',
              f'buffer_store_dwordx4 v[4:7], v12, s[24:27], {s(sT)} offen offset:16',
              f'buffer_store_dwordx4 v[8:11], v12, s[24:27], {s(sT)} offen offset:32']
    L += ['s_endpgm']
    return L

def main():
    pro, pend0 = prologue()
    if OPT.get('memtest'):
        L = [f'{NAME}:'] + pro + finish() + ['L_slow:', 'L_end:', 's_endpgm']
        return write(L)
    loop, pend = loop_code()
    assert [x[0] for x in pend0] == [x[0] for x in pend][-len(pend0):] or not pend0, (pend0, pend)
    L = [f'{NAME}:'] + pro + stamp(5) + loop
    L += ['L_tail:'] + stamp(6) + [f's_cmp_gt_u32 {s(sNKB)}, 1', 's_cbranch_scc1 L_tail234']
    L += ['; ---- tail nkb=1'] + tail(1, pend) + finish()
    L += ['L_tail234:', f's_cmp_eq_u32 {s(sNKB)}, 3', 's_cbranch_scc1 L_tail3', f's_cmp_eq_u32 {s(sNKB)}, 4', 's_cbranch_scc1 L_tail4']
    L += tail(2, pend) + finish() + ['L_tail3:'] + tail(3, pend) + finish() + ['L_tail4:'] + tail(4, pend) + finish()
    L += slow() + ['L_end:', 's_endpgm', 'L_codeend:']
    write(L)

def write(L):
    L, nn = fix_hazards(L)
    print('nops inserted:', nn, ' leftovers:', sorted(LEFT))
    hdr = open('standalone__paged_block_table_kv_pagedattention__prompt.s.ref').read().split('; Override')[0]
    txt = hdr + '; Generated by gen/gen.py (hand-written generator).\n'
    txt += '; @launch grid=(256,1,1) block=(256,1,1) lds=163840\n'
    txt += f'.amdgcn_target "amdgcn-amd-amdhsa--gfx950"\n.text\n.globl {NAME}\n.p2align 8\n.type {NAME},@function\n'
    for l in L:
        txt += (l if l.endswith(':') or l.startswith(('.', ';')) else '    ' + l) + '\n'
    txt += f'''.section .rodata,"a"
.p2align 6
.amdhsa_kernel {NAME}
  .amdhsa_next_free_vgpr 472
  .amdhsa_next_free_sgpr 102
  .amdhsa_accum_offset 256
  .amdhsa_group_segment_fixed_size 0
  .amdhsa_kernarg_size 64
  .amdhsa_user_sgpr_count 2
  .amdhsa_user_sgpr_kernarg_segment_ptr 1
  .amdhsa_system_sgpr_workgroup_id_x 1
.end_amdhsa_kernel
'''
    open(sys.argv[1], 'w').write(txt)
    if OPT.get('show'):
        for g in range(NG): print(g, PAT[g])
main()
```

```python
import sys
from asmcheck import parse, hazards, fix_hazards

NAME = 'standalone__paged_block_table_kv_pagedattention__prompt_kernel'
FL = {0: '', 1: ' nt', 2: ' sc1', 3: ' sc0 sc1', 4: ' sc1 nt', 5: ' sc0 sc1 nt', 6: ' sc0', 7: ' sc0 nt'}
OPT = dict(qlds=0, po=0, cpf=0, qf=1, kf=0, of=0, delta=9, stamp=0, lat=8, forceslow=0, skipdma=1)
for a in sys.argv[2:]:
    k, v = a.split('='); OPT[k] = int(v, 0)

S0, P0, KA, VA, BT, DK, DV, IDX, OV, MK, T0, O0 = 0, 64, 96, 100, 108, 112, 113, 114, 115, 116, 120, 128
QV = P0 + 31
aQ, aK, aV, aL, aONE = 0, 64, 128, 192, 208
sW, sCL, sN, sIT, sLN = 3, 36, 37, 38, 39
SETS = (56, 60)
sMK, sMV, sC, sC2, sNKB, sVOFF, sFORCE, sKB, sVB, sCLT = 64, 65, 66, 67, 68, 69, 70, 71, 72, 73
sQ1, sQ2, sQ3 = 74, 75, 76
sT = 78
sST = 84
KBYTES = 132 * 65536
LAT = OPT['lat']
NEG = 0xf149f2ca

def v(b, n=1): return f'v{b}' if n == 1 else f'v[{b}:{b+n-1}]'
def a(b, n=1): return f'a{b}' if n == 1 else f'a[{b}:{b+n-1}]'
def s(b, n=1): return f's{b}' if n == 1 else f's[{b}:{b+n-1}]'

def qk(q, kb, ks, mask=False):
    D = v(S0 + 16*q + 4*kb, 4)
    C = D if ks else (v(MK, 4) if mask else '0')
    return f'v_mfma_f32_16x16x32_bf16 {D}, {a(aK+16*kb+4*ks,4)}, {a(aQ+16*q+4*ks,4)}, {C}'
def pv(q, db, ks, vbase=None, first=False):
    D = v(O0 + 32*q + 4*db, 4)
    A = a(aV + (2*db+ks)*4, 4) if vbase is None else a(vbase + 4*db, 4)
    return f'v_mfma_f32_16x16x32_bf16 {D}, {A}, {v(P0+8*q+4*ks,4)}, {"0" if first and ks == 0 else D}'
def sm(q):
    return f'v_smfmac_f32_16x16x64_bf16 {a(aL+4*q,4)}, {a(aONE,4)}, {v(P0+8*q,8)}, {v(IDX)}'
def qkg(q, nkb=4, mask=False): return [qk(q, kb, ks, mask and kb == nkb-1) for kb in range(nkb) for ks in range(4)]
def pvg(q, nks=2, vbase=None, first=False): return [pv(q, db, ks, vbase, first) for db in range(8) for ks in range(nks)] + [sm(q)]

def i_exp(q, n): return f'v_exp_f32 {v(S0+16*q+n)}, {v(S0+16*q+n)}'
def i_cvt(q, i): return f'v_cvt_pk_bf16_f32 {v(P0+8*q+i)}, {v(S0+16*q+2*i)}, {v(S0+16*q+2*i+1)}'
def i_kread(kb, ks, slot, tile): return f'ds_read_b128 {a(aK+16*kb+4*ks,4)}, {v(KA+ks)} offset:{slot*16384+kb*1024}'
def i_vread(db, ks, t, slot, tile, vbase=None):
    d = (aV + (2*db+ks)*4 if vbase is None else vbase + 4*db) + 2*t
    return f'ds_read_b64_tr_b16 {a(d,2)}, {v(VA+db)} offset:{slot*16384+(2*ks+t)*1024}'
def i_dma(isv, i, soff, tile):
    return f'buffer_load_dwordx4 {v(DV if isv else DK)}, {s(12 if isv else 8,4)}, {s(soff+i)} offen offset:{i*1024}{FL[OPT["kf"]]} lds'
def i_m0(isv, slot): return f's_add_u32 m0, {s(sMV if isv else sMK)}, {slot*16384}'

class Op:
    def __init__(self, key, cls, rel, dl, text, deps=(), fifo=None):
        self.key, self.cls, self.rel, self.dl, self.text, self.deps, self.fifo = key, cls, rel, dl, text, list(deps), fifo
        self.gap = None
class Gap:
    def __init__(self): self.sc, self.mem, self.valu, self.post = [], [], [], []; self.block = None

def schedule(ngaps, ops, gaps=None, overflow=False, g0=0):
    gaps = gaps or [Gap() for _ in range(ngaps)]
    byk = {o.key: o for o in ops}
    todo = list(ops)
    def ready(o, g):
        if o.rel > g: return False
        for d in o.deps:
            p = byk.get(d)
            if p is not None and (p.gap is None or p.gap >= g): return False
        if o.fifo is not None:
            p = byk[o.fifo]
            if p.gap is None: return False
            if o.cls == 'D' and p.gap >= g: return False
        return True
    def put(o, g):
        o.gap = g; todo.remove(o)
        (gaps[g].mem if o.cls in 'DRT' else gaps[g].valu).append(o)
    for g in range(g0, ngaps):
        if gaps[g].block != 'all':
            cand = sorted((o for o in todo if ready(o, g)), key=lambda o: o.dl)
            if gaps[g].block == 'half': cand = [o for o in cand if o.cls == 'H'][:1]
            if cand:
                top = cand[0]
                halves = [o for o in cand if o.cls in 'RTH']
                full = [o for o in cand if o.cls in 'ED']
                if top.cls in 'RTH' and len(halves) == 1 and full and top.dl - g > 6 and top.fifo is None: top = full[0]
                put(top, g)
                if top.cls in 'RTH' and gaps[g].block != 'half':
                    cand2 = sorted((o for o in todo if o.cls in 'RTH' and ready(o, g)), key=lambda o: o.dl)
                    cand2 = [o for o in cand2 if not (o.cls == 'R' and top.cls == 'R')]
                    if cand2:
                        pick = cand2[0]
                        if top.cls in 'RT' and pick.cls in 'RT' and pick.dl - g > 8:
                            h = [o for o in cand2 if o.cls == 'H']
                            if h: pick = h[0]
                        put(pick, g)
        late = [o for o in todo if o.dl <= g]
        if late:
            if not overflow: raise RuntimeError(f'deadline miss at gap {g}: {[o.key for o in late]}')
            def force(o):
                if o.gap is not None: return
                for d in o.deps + ([o.fifo] if o.fifo else []):
                    if d in byk: force(byk[d])
                assert o.rel <= g, (o.key, o.rel, g)
                o.gap = g; todo.remove(o); gaps[g].post.append(o.text)
            for o in sorted(late, key=lambda o: ({'R': 0, 'T': 0, 'D': 0, 'E': 1, 'H': 2}[o.cls], o.dl)): force(o)
    return gaps, todo

def emit(mf, gaps, off=0):
    out = []
    for i, m in enumerate(mf):
        g = gaps[off + i]
        out.append(m)
        out += g.sc
        out += [o.text for o in g.mem] + [o.text for o in g.valu] + g.post
    return out

def softmax_ops(tile, q, qkstart, pvstart, nkb=4, prel=0, fixed=None):
    ops = []
    n = 4 * nkb
    for e in range(n):
        kb = e // 4
        if fixed is not None: ops.append(Op(('e', tile, q, e), 'E', qkstart + fixed + 2*e, qkstart + fixed + 2*e, i_exp(q, e)))
        else: ops.append(Op(('e', tile, q, e), 'E', qkstart + 4*kb + 3 + 5, pvstart - 4 - 2*(n - 1 - e), i_exp(q, e)))
    for i in range(2 * nkb):
        ops.append(Op(('c', tile, q, i), 'H', prel, pvstart - 3 - (2*nkb - 1 - i), i_cvt(q, i),
                      deps=[('e', tile, q, 2*i), ('e', tile, q, 2*i+1)]))
    for i in range(2 * nkb, 8):
        ops.append(Op(('z', tile, q, i), 'H', prel, pvstart - 3, f'v_mov_b32 {v(P0+8*q+i)}, 0'))
    return ops

NG = 132
LOOP_MF = qkg(0) + pvg(2) + qkg(1) + pvg(3) + qkg(2) + pvg(0) + qkg(3) + pvg(1)
assert len(LOOP_MF) == NG
BARG = 47
DMAG = [10, 14, 18, 22, 26, 30, 34, 38]

def steady():
    NT = 6
    ops = []
    gaps = [Gap() for _ in range(NG * (NT + 1))]
    for j in range(NT):
        b = NG * j
        for q in range(4):
            pvs = b + 82 + 33*q
            ops += softmax_ops(j, q, b + 33*q, pvs, prel=pvs - NG + 17, fixed=OPT['delta'])
        for db in range(8):
            for ks in range(2):
                for t in range(2):
                    f = 2*db + ks
                    ops.append(Op(('v', j, db, ks, t), 'T', max(b + 49 + f + 1, b + BARG + 1), b + 82 + f - LAT - (1 - t), ('v', db, ks, t)))
        for kb in range(4):
            for ks in range(4):
                f = 4*kb + ks
                ops.append(Op(('k', j, kb, ks), 'R', b + 99 + f + 1, min(b + NG - 2 - (15 - f), b + NG + f - LAT), ('k', kb, ks),
                              deps=[('k', j, (f-1)//4, (f-1)%4)] if f else []))
        for i in range(4):
            ops.append(Op(('rl', j, i), 'H', b, b + 20 + i, ('rl', i)))
        for i in range(8):
            ops.append(Op(('d', j, i), 'D', b + DMAG[i], b + DMAG[i], ('d', i),
                          deps=[('rl', j, x) for x in range(4)] if i >= 4 else []))
        gaps[b + BARG].block = 'all'
        gaps[b + NG - 1].block = 'half'
    schedule(NG * NT, ops, gaps, overflow=False) if False else None
    schedule(NG * (NT + 1), ops, gaps)
    def pattern(j):
        return [[(o.key[0], o.key[1] - j) + o.key[2:] for o in gaps[NG*j + g].mem + gaps[NG*j + g].valu] for g in range(NG)]
    p3, p4 = pattern(3), pattern(4)
    assert p3 == p4, 'no steady state'
    return p3
PAT = steady()
LEFT = {k for g in PAT for k in g if k[1] == -1}
assert all(k[0] in 'ec' for k in LEFT), LEFT

def key_text(k, j4, tile):
    kind = k[0]
    if kind == 'e': return i_exp(k[2], k[3])
    if kind == 'c': return i_cvt(k[2], k[3])
    if kind == 'v': return i_vread(k[2], k[3], k[4], j4, tile)
    if kind == 'k': return i_kread(k[2], k[3], (j4 + 1) % 4, tile + 1)
    if kind == 'rl': return f'v_readlane_b32 {s(SETS[(j4+3)%2] + k[2])}, {v(BT+k[2])}, {s(sLN)}'
    if kind == 'd':
        i = k[2]
        if i < 4: return i_dma(1, i, SETS[j4 % 2], tile + 2)
        return i_dma(0, i - 4, SETS[(j4 + 3) % 2], tile + 3)
    raise KeyError(k)

class Txt:
    def __init__(self, t): self.text = t

def add_lgkm_waits(lines, pre_ds=(), lead=None):
    ins = parse(lines)
    q = [(set(r), -age) for r, age in pre_ds]
    out = []; gap = -1
    lastm = None
    q_at_lastm = None
    for x in ins:
        if x.cls == 'mfma':
            needed = [i for i, (r, g) in enumerate(q) if r & x.r]
            if needed:
                k = max(needed)
                if lastm is not None and k < q_at_lastm:
                    visible = q_at_lastm
                    while k + 1 < visible and q[k + 1][1] <= gap - LAT: k += 1
                    n = min(15, visible - 1 - k)
                    out.insert(lastm, f's_waitcnt lgkmcnt({n})')
                    k = visible - 1 - n
                else:
                    n = min(15, len(q) - 1 - k)
                    out.append(f's_waitcnt lgkmcnt({n})')
                    k = len(q) - 1 - n
                q = q[k + 1:]
            gap += 1
            out.append(x.text); lastm = len(out); q_at_lastm = len(q)
        else:
            if x.cls == 'ds': q.append((set(x.w), gap))
            if x.cls == 'wait' and x.lgkm is not None:
                q = q[max(0, len(q) - x.lgkm):] if x.lgkm else []
                if q_at_lastm is not None: q_at_lastm = min(q_at_lastm, len(q))
            out.append(x.text)
    return out, [(r, gap - g) for r, g in q]

def body(j4, tile, exit_label, last):
    gaps = [Gap() for _ in range(NG)]
    for g in range(NG):
        for k in PAT[g]:
            t = Txt(key_text(k, j4, tile))
            (gaps[g].mem if k[0] in 'vkd' else gaps[g].valu).append(t)
    gd = {k[2]: g for g in range(NG) for k in PAT[g] if k[0] == 'd'}
    grl = max(g for g in range(NG) for k in PAT[g] if k[0] == 'rl')
    gaps[gd[0] - 2].sc.append(i_m0(1, (j4 + 2) % 4))
    gaps[gd[4] - 2].sc.append(i_m0(0, (j4 + 3) % 4))
    if OPT['skipdma']:
        gaps[1].sc.append(f's_cmp_le_u32 {s(sLN)}, {s(sN)}')
        gaps[2].sc.append(f's_cselect_b32 s14, {s(sVB)}, 0')
        gaps[3].sc.append(f's_cmp_lt_u32 {s(sLN)}, {s(sN)}')
        gaps[4].sc.append(f's_cselect_b32 s10, {s(sKB)}, 0')
    gaps[max(grl + 1, 50)].sc.append(f's_add_u32 {s(sLN)}, {s(sLN)}, 1')
    gaps[BARG - 1].sc.append('s_waitcnt vmcnt(16)')
    gaps[BARG].sc.append('s_barrier')
    gaps[NG - 2].sc.append(f's_sub_u32 {s(sIT)}, {s(sIT)}, 1')
    lines = emit(LOOP_MF, gaps)
    return lines

def loop_code():
    l0 = body(1, 1, None, False)
    _, pend = add_lgkm_waits(l0)
    out = ['.p2align 6', 'L_loop:']
    for u in range(4):
        j4 = (u + 1) % 4
        l, pend2 = add_lgkm_waits(body(j4, u + 1, None, False), pend)
        assert [x[0] for x in pend2] == [x[0] for x in pend]
        out += [f'; ---- body tile%4 == {j4}'] + l
        if u < 3: out.append('s_cbranch_scc1 L_tail')
        else: out += ['s_cbranch_scc0 L_loop']
    return out, pend

def epi_list(q, first, pk=False):
    t = T0 + 2 * (q & 1)
    o = O0 + 32*q
    L = [('H', f'v_accvgpr_read_b32 {v(t)}, {a(aL+4*q)}'),
         ('H', f'v_accvgpr_read_b32 {v(t+1)}, {a(aL+4*q+1)}'),
         ('H', f'v_add_f32 {v(t)}, {v(t)}, {v(t+1)}'),
         ('H', f'v_rcp_f32 {v(t+1)}, {v(t)}'),
         ('H', f'v_subrev_u32 {v(t)}, 0x2b800000, {v(t)}')]
    L.append(('H', f'v_mov_b32 {v(T0+4)}, {v(t)}' if first else f'v_max_u32 {v(T0+4)}, {v(T0+4)}, {v(t)}'))
    def muls(u): return [('M', (o + 8*u + i, t + 1)) for i in range(8)]
    def cvts(u): return [('H', f'v_cvt_pk_bf16_f32 {v(o+8*u+i)}, {v(o+8*u+2*i)}, {v(o+8*u+2*i+1)}') for i in range(4)]
    def swaps(u): return [('H', f'v_permlane16_swap_b32 {v(o+8*u+i)}, {v(o+8*u+2+i)}') for i in range(2)]
    def store(u):
        so = '0' if q == 0 else s(sQ1 + q - 1)
        return [('D', f'buffer_store_dwordx4 {v(o+8*u,4)}, {v(OV)}, s[16:19], {so} offen offset:{64*u}{FL[OPT["of"]]}')]
    L += muls(0) + cvts(0) + muls(1) + swaps(0) + cvts(1) + store(0) + muls(2) + swaps(1) + cvts(2) + store(1) \
       + muls(3) + swaps(2) + cvts(3) + store(2) + [('H', 's_nop 0')] + swaps(3) + store(3)
    return L
def mul_text(x): return f'v_mul_f32 {v(x[0])}, {v(x[1])}, {v(x[0])}'

def tail(nkb, pend):
    nks = 1 if nkb <= 2 else 2
    vbase = aK + 32 if nkb <= 2 else None
    G = {}
    if nkb <= 2:
        order = [('qk', 0), ('qk', 1), ('pvp', 2), ('qk', 2), ('pv', 0), ('pvp', 3), ('pv', 1), ('qk', 3), ('pv', 2), ('pv', 3)]
    else:
        order = [('qk', 0), ('pvp', 2), ('qk', 1), ('pvp', 3), ('qk', 2), ('pv', 0), ('qk', 3), ('pv', 1), ('pv', 2), ('pv', 3)]
    mf = []
    for kind, q in order:
        G[(kind, q)] = len(mf)
        mf += qkg(q, nkb, True) if kind == 'qk' else (pvg(q) if kind == 'pvp' else pvg(q, nks, vbase))
    n = len(mf)
    ops = []
    for q in (2, 3):
        pvs = G[('pvp', q)]
        for o in softmax_ops(-1, q, -100, pvs, prel=0):
            if (o.key[0], -1) + o.key[2:] in LEFT:
                o.rel = 0
                o.dl = max(o.dl, 0)
                o.dl = min(o.dl, G[('qk', q)] - 1) if G[('qk', q)] > 0 else o.dl
                ops.append(o)
    for q in range(4):
        prel = G[('pvp', q)] + 17 if q >= 2 else 0
        so = softmax_ops(0, q, G[('qk', q)], G[('pv', q)], nkb, prel)
        for o in so: o.dl = max(o.dl, o.rel, min(G[('pv', q)] - 1, o.rel + 1) if o.cls == 'E' else min(G[('pv', q)] - 1, G[('qk', q)] + 4*nkb + 4))
        ops += so
    for db in range(8):
        ops.append(Op(('va', db), 'H', 0, 3 + db // 2, f'v_add_u32 {v(VA+db)}, {s(sVOFF)}, {v(VA+db)}'))
    for db in range(8):
        for ks in range(nks):
            for t in range(2):
                f = nks*db + ks
                rel = 2 if vbase else G[('pvp', 3)] + 2*db + ks + 1
                ops.append(Op(('v', db, ks, t), 'T', rel, G[('pv', 0)] + f - LAT - (1 - t), i_vread(db, ks, t, 0, 'T', vbase), deps=[('va', db)]))
    prev = None; epi = []
    for q in range(4):
        rel = G[('pv', q)] + 8*nks + 5
        for i, (c, t) in enumerate(epi_list(q, q == 0)):
            o = Op(('ep', q, i), 'D' if c == 'D' else 'H', rel, 10000 + 100*q + i, mul_text(t) if c == 'M' else t, fifo=prev)
            o.raw = (c, t); prev = o.key; epi.append(o)
    ops += epi
    gaps = [Gap() for _ in range(n)]
    gaps[0].sc.append('s_waitcnt vmcnt(8)')
    gaps[1].sc.append('s_barrier'); gaps[1].block = 'all'
    gaps, todo = schedule(n, ops, gaps, overflow=True)
    lines = emit(mf, gaps)
    assert all(o.key[0] == 'ep' for o in todo), [o.key for o in todo]
    i = 0
    while i < len(todo):
        c, t = todo[i].raw
        if c == 'M' and i + 1 < len(todo) and todo[i+1].raw[0] == 'M' and t[0] % 2 == 0 and todo[i+1].raw[1][0] == t[0] + 1:
            r = t[1]
            lines.append(f'v_pk_mul_f32 {v(t[0],2)}, {v(t[0],2)}, {v(r-1,2)} op_sel:[0,1] op_sel_hi:[1,1]'); i += 2
        else:
            lines.append(todo[i].text); i += 1
    lines, _ = add_lgkm_waits(lines, pend)
    return lines

def scale_q(q):
    out = []
    for h in range(0, 16, 4):
        for i in range(4):
            x = S0 + 16*q + h + i; t = T0 + 2*i
            out += [f'v_lshlrev_b32 {v(t)}, 16, {v(x)}', f'v_and_b32 {v(t+1)}, 0xffff0000, {v(x)}']
        for i in range(4):
            t = T0 + 2*i
            out.append(f'v_pk_mul_f32 {v(t,2)}, {v(t,2)}, {s(sC,2)}')
        for i in range(4):
            x = S0 + 16*q + h + i; t = T0 + 2*i
            out.append(f'v_cvt_pk_bf16_f32 {v(x)}, {v(t)}, {v(t+1)}')
        for i in range(4):
            x = S0 + 16*q + h + i
            out.append(f'v_accvgpr_write_b32 {a(aQ+16*q+h+i)}, {v(x)}')
    return out
QD, QA = P0 + 24, P0 + 28
QREG = (0x4000, 0, 0x8000, 0xc000)
def qread(q):
    if not OPT['qlds']: return []
    return [f'ds_read_b128 {v(S0+16*q+4*ks,4)}, {v(QA+ks)} offset:{QREG[q]}' for ks in range(4)] + ['s_waitcnt lgkmcnt(0)']
def qload(q):
    if OPT['qlds']:
        return [f's_add_u32 m0, {s(sMK)}, {0x18000 + QREG[q]}', 's_nop 0'] + \
               [f'buffer_load_dwordx4 {v(QD+p)}, s[4:7], {"0" if q == 0 else s(sQ1+q-1)} offen offset:{1024*p}{FL[OPT["qf"]]} lds ; ld Q{q}' for p in range(4)]
    return qload_direct(q)
def qload_direct(q): return [f'buffer_load_dwordx4 {v(S0+16*q+4*ks,4)}, {v(QV)}, s[4:7], {"0" if q == 0 else s(sQ1+q-1)} offen offset:{64*ks}{FL[OPT["qf"]]} ; ld Q{q}' for ks in range(4)]
def dma4(isv, tile):
    soff = 40 + 4*tile if tile < 3 else SETS[1]
    return [i_m0(isv, tile), 's_nop 0'] + [i_dma(isv, i, soff, tile) for i in range(4)]
def btprep(tile):
    out = []
    for i in range(4):
        src = 40 + 4*tile + i; dst = src if tile < 3 else SETS[1] + i
        out.append(f's_lshl_b32 {s(dst)}, {s(src)}, 16')
        if i < 3: out.append(f's_or_b32 {s(dst)}, {s(dst)}, {(3-i)*1024}')
    return out
def stamp(i): return [f's_memtime {s(sST+2*i,2)}'] if OPT['stamp'] and (i == 0 or not OPT.get('xs')) else []
def xstamp(i): return [f's_memtime {s(sST+2*i,2)}'] if OPT.get('xs') else []

def resolve_waitvm(lines):
    out = []; vm = []
    for l in lines:
        if l.startswith('WAITVM'):
            tags = l.split(None, 1)[1].split('|')
            last = max(i for i, t in enumerate(vm) if t in tags)
            out.append(f's_waitcnt vmcnt({len(vm) - 1 - last}) ; {tags}')
        else:
            if l.startswith(('buffer_', 'global_')): vm.append(l.split(';')[1].strip() if ';' in l else '')
            out.append(l)
    return out

def memtest(L):
    t = T0; mt = OPT['memtest']
    srd = [f's_add_u32 s8, s26, {s(sT)}', 's_addc_u32 s9, s27, 0', 's_sub_u32 s8, s8, 3072', 's_subb_u32 s9, s9, 0',
          f's_add_u32 s12, s28, {s(sT)}', 's_addc_u32 s13, s29, 0', 's_sub_u32 s12, s12, 3072', 's_subb_u32 s13, s13, 0',
          f's_add_u32 s16, s34, {s(sT+1)}', 's_addc_u32 s17, s35, 0']
    nt = FL[OPT['qf']]
    ql = qload
    def qdma(q):
        o = [f's_add_u32 m0, {s(sMK)}, {0x8000 + q*16384}', 's_nop 0']
        return o + [f'buffer_load_dwordx4 {v(t+5)}, s[4:7], {"0" if q == 0 else s(sQ1+q-1)} offen offset:{1024*i}{nt} lds ; ld Q{q}' for i in range(4)]
    L += stamp(1)
    L += [f'v_lshlrev_b32 {v(t+5)}, 14, {v(t)}', f'v_lshl_add_u32 {v(t+5)}, {v(t+1)}, 4, {v(t+5)}']
    bt = ['s_waitcnt lgkmcnt(0)'] + stamp(2) + btprep(0) + btprep(1) + btprep(2) + btprep(3)
    W = lambda tag, i: [f'WAITVM {tag}'] + stamp(i)
    if mt == 1: L += ql(0) + ql(1) + ql(2) + ql(3) + srd + bt + W('ld Q0', 3) + W('ld Q1', 4) + W('ld Q2', 5) + W('ld Q3', 6)
    if mt == 2: L += qdma(0) + qdma(1) + qdma(2) + qdma(3) + srd + bt + W('ld Q0', 3) + W('ld Q1', 4) + W('ld Q2', 5) + W('ld Q3', 6)
    if mt == 3: L += srd + bt + dma4(0, 0) + W('dma K 0', 3) + dma4(1, 0) + W('dma V 0', 4) + dma4(0, 1) + W('dma K 1', 5) + ql(0) + W('ld Q0', 6)
    if mt == 4: L += ql(0) + srd + bt + dma4(0, 0) + W('ld Q0', 3) + W('dma K 0', 4) + ql(1) + ql(2) + ql(3) + W('ld Q1', 5) + W('ld Q3', 6)
    if mt == 5: L += ql(0) + srd + bt + dma4(0, 0) + ql(1) + ql(2) + ql(3) + W('ld Q0', 3) + W('dma K 0', 4) + W('ld Q1', 5) + W('ld Q3', 6)
    if mt == 6: L += ql(0) + ql(1) + srd + bt + dma4(0, 0) + ql(2) + ql(3) + W('ld Q0', 3) + W('dma K 0', 4) + W('ld Q2', 5) + W('ld Q3', 6)
    if mt == 7: L += srd + bt + dma4(0, 0) + dma4(1, 0) + dma4(0, 1) + dma4(1, 1) + dma4(0, 2) + dma4(1, 2) + dma4(0, 3) + W('dma K 0', 3) + W('dma K 1', 4) + W('dma K 2', 5) + W('dma K 3', 6)
    if mt == 8: L += ql(0) + srd + bt + dma4(0, 0) + ql(1) + ql(2) + dma4(1, 0) + dma4(0, 1) + ql(3) + W('ld Q0', 3) + W('dma K 0', 4) + W('dma K 1', 5) + W('ld Q3', 6)
    allkv = lambda: dma4(0, 0) + dma4(1, 0) + dma4(0, 1) + dma4(1, 1) + dma4(0, 2) + dma4(1, 2) + dma4(0, 3)
    if mt == 9: L += srd + bt + allkv() + W('dma K 3', 3) + allkv() + W('dma K 3', 4) + allkv() + W('dma K 3', 5) + ql(0) + ql(1) + ql(2) + ql(3) + W('ld Q3', 6)
    if mt == 10:
        L += ql(0) + ql(1) + ql(2) + ql(3) + srd + bt + W('ld Q3', 3) + ql(0) + ql(1) + ql(2) + ql(3) + W('ld Q3', 4) + allkv() + W('dma K 3', 5) + ql(0) + ql(1) + ql(2) + ql(3) + W('ld Q3', 6)
    if mt in (11, 12, 13):
        L += [f's_lshl_b32 s56, {s(sW)}, 14', 's_add_u32 s56, s4, s56', 's_addc_u32 s57, s5, 0']
        pf = lambda lo, hi, step: [f's_load_dword s58, s[56:57], {o}' for o in range(lo, hi, step)]
        if mt == 11: L += ql(0) + ql(1) + pf(8192, 16384, 128) + stamp(2) + ql(2) + ql(3) + W('ld Q0', 3) + W('ld Q1', 4) + W('ld Q2', 5) + W('ld Q3', 6)
        if mt == 12: L += stamp(2) + pf(0, 16384, 128) + stamp(3) + ['s_waitcnt lgkmcnt(0)'] + stamp(4) + ql(0) + ql(1) + ql(2) + ql(3) + W('ld Q0', 5) + W('ld Q3', 6)
        if mt == 13: L += stamp(2) + pf(0, 16384, 64) + stamp(3) + ['s_waitcnt lgkmcnt(0)'] + stamp(4) + ql(0) + ql(1) + ql(2) + ql(3) + W('ld Q0', 5) + W('ld Q3', 6)
    if mt >= 20:
        L += srd + bt
        of = FL[OPT['of']]
        if mt == 20:
            for q in range(4):
                for u in range(4): L.append(f'buffer_store_dwordx4 v[{16*q+4*u}:{16*q+4*u+3}], {v(OV)}, s[16:19], {"0" if q == 0 else s(sQ1+q-1)} offen offset:{64*u}{of} ; st{q}')
        if mt == 21:
            for q in range(4):
                for u in range(4): L.append(f'buffer_store_dwordx4 v[{16*q+4*u}:{16*q+4*u+3}], {v(t+5)}, s[16:19], {"0" if q == 0 else s(sQ1+q-1)} offen offset:{1024*u}{of} ; st{q}')
        if mt == 22:
            L += [f'v_lshrrev_b32 {v(t+4)}, 3, {v(t+1)}', f'v_lshlrev_b32 {v(t+4)}, 8, {v(t+4)}', f'v_and_b32 {v(t+6)}, 7, {v(t+1)}',
                  f'v_lshl_add_u32 {v(t+4)}, {v(t+6)}, 4, {v(t+4)}', f'v_lshl_add_u32 {v(t+4)}, {v(t)}, 14, {v(t+4)}']
            for q in range(4):
                for u in range(4): L.append(f'buffer_store_dwordx4 v[{16*q+4*u}:{16*q+4*u+3}], {v(t+4)}, s[16:19], {"0" if q == 0 else s(sQ1+q-1)} offen offset:{128*(u&1)+2048*(u>>1)}{of} ; st{q}')
        L += stamp(3) + W('st0', 4) + W('st1', 5) + W('st3', 6)
    L += [f'v_mov_b32 {v(T0+4)}, 0', f's_mov_b32 {s(sFORCE)}, 0', 's_nop 3']
    return resolve_waitvm(L), None

def prologue():
    L = []
    A = L.append
    if OPT.get('xmask') is not None:
        L += [f's_and_b32 s3, s2, {OPT["xmask"]}', 's_cmp_lg_u32 s3, 0', 's_cbranch_scc1 L_end']
    if OPT.get('twice'): L += [f's_mov_b32 s77, {OPT["twice"]}'] + (['s_memrealtime s[100:101]'] if OPT['stamp'] else []) + ['L_again:']
    L += ['s_cmp_ge_u32 s2, 256', 's_cbranch_scc1 L_end',
          's_load_dwordx8 s[24:31], s[0:1], 0', 's_load_dwordx4 s[32:35], s[0:1], 32']
    if OPT['cpf']:
        L += ['s_getpc_b64 s[4:5]', 'L_pc:', 's_lshr_b32 s6, s2, 3', 's_lshl_b32 s6, s6, 10',
              f'v_lshl_add_u32 v2, v0, 2, s6', f'v_min_u32 v2, L_codeend-L_pc-4, v2', 'v_mov_b32 v3, s5',
              'v_add_co_u32 v2, vcc, s4, v2', 's_nop 1', 'v_addc_co_u32 v3, vcc, 0, v3, vcc', f'global_load_dword {v(T0+7)}, v[2:3], off']
    L += stamp(0) + ([f's_memrealtime s[100:101]'] if OPT['stamp'] and not OPT.get('twice') else [])
    t = T0
    L += [f'v_lshrrev_b32 {v(t)}, 6, v0',
          f'v_and_b32 {v(t+1)}, 63, v0',
          f'v_readfirstlane_b32 {s(sW)}, {v(t)}',
          f'v_and_b32 {v(t+2)}, 15, v0',
          f'v_bfe_u32 {v(t+3)}, v0, 4, 2',
          f's_and_b32 {s(sT)}, s2, 7', f's_lshr_b32 {s(sT+1)}, s2, 3', f's_lshr_b32 {s(sT+2)}, {s(sT+1)}, 4',
          f's_lshl_b32 {s(sT)}, {s(sT)}, 1', f's_add_u32 {s(sT)}, {s(sT)}, {s(sT+2)}',
          f's_and_b32 {s(sT+1)}, {s(sT+1)}, 15', f's_lshl_b32 {s(sT+2)}, {s(sT)}, 4',
          f's_add_u32 {s(sT+1)}, {s(sT+1)}, {s(sT+2)}', f's_lshl_b32 {s(sT+1)}, {s(sT+1)}, 16',
          f's_lshl_b32 {s(sT)}, {s(sT)}, 8',
          f's_movk_i32 {s(sQ1)}, 0x1000', f's_movk_i32 {s(sQ2)}, 0x2000', f's_movk_i32 {s(sQ3)}, 0x3000',
          f'v_lshlrev_b32 {v(t+4)}, 14, {v(t)}', f'v_lshl_add_u32 {v(t+4)}, {v(t+2)}, 8, {v(t+4)}',
          f'v_lshl_add_u32 {v(QV)}, {v(t+3)}, 4, {v(t+4)}',
          f'v_and_b32 {v(t+5)}, 1, {v(t+3)}', f'v_lshl_add_u32 {v(t+4)}, {v(t+5)}, 5, {v(t+4)}',
          f'v_lshrrev_b32 {v(t+5)}, 1, {v(t+3)}', f'v_lshl_add_u32 {v(OV)}, {v(t+5)}, 4, {v(t+4)}',
          f'v_lshl_add_u32 {v(t+4)}, {v(t)}, 2, {v(t+3)}',
          f'v_xor_b32 {v(t+5)}, {v(t+2)}, {v(t+4)}', f'v_lshlrev_b32 {v(t+5)}, 4, {v(t+5)}',
          f'v_lshl_add_u32 {v(DK)}, {v(t+4)}, 12, {v(t+5)}',
          f'v_and_b32 {v(t+5)}, 7, {v(t+4)}', f'v_lshlrev_b32 {v(t+5)}, 1, {v(t+5)}',
          f'v_xor_b32 {v(t+5)}, {v(t+2)}, {v(t+5)}', f'v_lshlrev_b32 {v(t+5)}, 4, {v(t+5)}',
          f'v_lshl_add_u32 {v(DV)}, {v(t+4)}, 12, {v(t+5)}',
          f'v_lshlrev_b32 {v(t+6)}, 4, {v(t+1)}',
          f's_lshl_b32 {s(sMK)}, {s(sW)}, 12', f's_add_u32 {s(sMV)}, {s(sMK)}, 0x10000']
    if OPT['qlds']:
        L += [f'v_lshlrev_b32 {v(t+4)}, 14, {v(t)}', f'v_lshl_add_u32 {v(t+4)}, {v(t+3)}, 8, {v(t+4)}', f'v_xor_b32 {v(t+5)}, {v(t+2)}, {v(t+3)}']
        for p in range(4):
            L += [f'v_xor_b32 {v(QD+p)}, {4*p}, {v(t+5)}', f'v_lshl_add_u32 {v(QD+p)}, {v(QD+p)}, 4, {v(t+4)}']
    L += [
          's_mov_b32 s6, 0x10000', 's_mov_b32 s7, 0x20000', 's_mov_b32 s11, 0x20000', 's_mov_b32 s15, 0x20000',
          's_mov_b32 s18, 0x10000', 's_mov_b32 s19, 0x20000', 's_movk_i32 s22, 0x200', 's_mov_b32 s23, 0x20000',
          f's_sub_u32 {s(sKB)}, {KBYTES+3072}, {s(sT)}', f's_mov_b32 {s(sVB)}, {s(sKB)}',
          f's_mov_b32 s10, {s(sKB)}', f's_mov_b32 s14, {s(sKB)}'] + xstamp(1) + [
          's_waitcnt lgkmcnt(0)'] + xstamp(2) + [
          f's_load_dword {s(sCL)}, s[32:33], 0', 's_load_dwordx16 s[40:55], s[30:31], 0',
          f's_add_u32 s4, s24, {s(sT+1)}', 's_addc_u32 s5, s25, 0',
          's_mov_b32 s20, s30', 's_mov_b32 s21, s31']
    if OPT.get('memtest'): return memtest(L)
    L += qload(0)
    L += [f'buffer_load_dwordx4 {v(BT,4)}, {v(t+6)}, s[20:23], 0 offen',
          f's_add_u32 s8, s26, {s(sT)}', 's_addc_u32 s9, s27, 0', 's_sub_u32 s8, s8, 3072', 's_subb_u32 s9, s9, 0',
          f's_add_u32 s12, s28, {s(sT)}', 's_addc_u32 s13, s29, 0', 's_sub_u32 s12, s12, 3072', 's_subb_u32 s13, s13, 0',
          f's_add_u32 s16, s34, {s(sT+1)}', 's_addc_u32 s17, s35, 0']
    L += [f'v_lshrrev_b32 {v(t+4)}, 2, {v(t+2)}', f'v_lshlrev_b32 {v(t+4)}, 4, {v(t+4)}',
          f'v_and_b32 {v(t+5)}, 3, {v(t+2)}', f'v_add_u32 {v(t+4)}, {v(t+4)}, {v(t+5)}',
          f'v_lshlrev_b32 {v(t+4)}, 8, {v(t+4)}',
          f'v_xor_b32 {v(t+5)}, {v(t+3)}, {v(t+2)}']
    for ks in range(4):
        L += [f'v_xor_b32 {v(KA+ks)}, {4*ks}, {v(t+5)}', f'v_lshl_add_u32 {v(KA+ks)}, {v(KA+ks)}, 4, {v(t+4)}']
    if OPT['qlds']:
        L += [f'v_lshlrev_b32 {v(t+4)}, 12, {v(t)}', f'v_lshl_add_u32 {v(t+4)}, {v(t+2)}, 8, {v(t+4)}', f'v_add_u32 {v(t+4)}, 0x18000, {v(t+4)}']
        for ks in range(4):
            L += [f'v_xor_b32 {v(QA+ks)}, {4*ks}, {v(t+5)}', f'v_lshl_add_u32 {v(QA+ks)}, {v(QA+ks)}, 4, {v(t+4)}']
    L += [f'v_bfe_u32 {v(t+5)}, {v(t+1)}, 2, 2',
          f'v_lshl_add_u32 {v(t+4)}, {v(t+3)}, 4, {v(t+5)}',
          f'v_lshlrev_b32 {v(t+4)}, 8, {v(t+4)}',
          f'v_and_b32 {v(MK)}, 3, {v(t+1)}', f'v_lshl_add_u32 {v(t+4)}, {v(MK)}, 3, {v(t+4)}',
          f'v_add_u32 {v(t+4)}, 0x10000, {v(t+4)}',
          f'v_lshl_add_u32 {v(t+5)}, {v(t+3)}, 2, {v(t+5)}', f'v_and_b32 {v(t+5)}, 7, {v(t+5)}']
    for db in range(8):
        L += [f'v_xor_b32 {v(VA+db)}, {db}, {v(t+5)}', f'v_lshl_add_u32 {v(VA+db)}, {v(VA+db)}, 5, {v(t+4)}']
    L += [f'v_and_b32 {v(t+4)}, 1, {v(t+1)}', f'v_mov_b32 {v(t+5)}, 0xaaaaaaaa',
          f'v_mul_lo_u32 {v(t+4)}, {v(t+4)}, {v(t+5)}', f'v_or_b32 {v(IDX)}, 0x44444444, {v(t+4)}',
          f'v_mov_b32 {v(t+5)}, 0x3f803f80']
    L += [f'v_accvgpr_write_b32 {a(aONE+i)}, {v(t+5)}' for i in range(4)]
    L += xstamp(3) + ['s_waitcnt lgkmcnt(0)'] + stamp(1) + xstamp(4)
    L += btprep(0) + dma4(0, 0) + qload(1) + xstamp(5)
    L += [f's_mov_b32 {s(sC)}, 0x3e0293ee',
          f's_cmp_lt_i32 {s(sCL)}, 1', f's_cselect_b32 {s(sC)}, 0, {s(sC)}', f's_cselect_b32 {s(sCL)}, 0x800, {s(sCL)}',
          f's_mov_b32 {s(sC2)}, {s(sC)}',
          f's_min_u32 {s(sCLT)}, {s(sCL)}, 0x800',
          f's_cmp_lt_u32 {s(sCLT)}, {4096 if OPT["forceslow"] else 129}', f's_cselect_b32 {s(sFORCE)}, 1, 0',
          f's_max_u32 {s(sCL)}, {s(sCLT)}, 129',
          f's_add_u32 {s(sN)}, {s(sCL)}, 63', f's_lshr_b32 {s(sN)}, {s(sN)}, 6',
          f's_sub_u32 {s(sIT)}, {s(sN)}, 3',
          f's_sub_u32 {s(sT)}, {s(sN)}, 1', f's_and_b32 {s(sVOFF)}, {s(sT)}, 3', f's_lshl_b32 {s(sVOFF)}, {s(sVOFF)}, 14',
          f's_lshl_b32 {s(sT)}, {s(sT)}, 6', f's_sub_u32 {s(sT)}, {s(sCL)}, {s(sT)}',
          f's_add_u32 {s(sNKB)}, {s(sT)}, 15', f's_lshr_b32 {s(sNKB)}, {s(sNKB)}, 4',
          f's_sub_u32 {s(sT)}, {s(sT)}, 1', f's_and_b32 {s(sT)}, {s(sT)}, 15',
          f's_mov_b32 {s(sLN)}, 4']
    L += [f'v_lshlrev_b32 {v(t+4)}, 2, {v(t+3)}', f'v_mov_b32 {v(t+5)}, {NEG:#x}']
    for r in range(4):
        L += [f'v_add_u32 {v(t+6)}, {r}, {v(t+4)}', f'v_cmp_lt_u32 vcc, {s(sT)}, {v(t+6)}', 's_nop 1',
              f'v_cndmask_b32 {v(MK+r)}, 0, {v(t+5)}, vcc']
    L += btprep(1) + btprep(2) + btprep(3)
    L += [f'v_mov_b32 {v(O0+i)}, 0' for i in range(64, 128)]
    L += [f'v_accvgpr_write_b32 {a(aL+i)}, 0' for i in range(16)]
    L += xstamp(6)
    po = OPT['po']
    groups = {'q2': qload(2), 'q3': qload(3), 'v0': dma4(1, 0), 'k1': dma4(0, 1), 'v1': dma4(1, 1), 'k2': dma4(0, 2), 'v2': dma4(1, 2), 'k3': dma4(0, 3)}
    plan = {0: dict(A=[], B=['q2'], C=['v0', 'q3'], D=['k1', 'v1'], E=['k2'], F=['v2', 'k3']),
            1: dict(A=['q2'], B=['v0'], C=['q3'], D=['k1', 'v1'], E=['k2'], F=['v2', 'k3']),
            2: dict(A=['q2'], B=['v0', 'q3'], C=['k1'], D=['v1', 'k2'], E=['v2', 'k3'], F=[]),
            3: dict(A=[], B=['q2', 'v0'], C=['q3', 'k1'], D=['v1', 'k2'], E=[], F=['v2', 'k3']),
            4: dict(A=[], B=['q2'], C=['v0', 'q3'], D=['k1'], E=['v1', 'k2'], F=['v2', 'k3'])}[po]
    at = lambda p: [x for g in plan[p] for x in groups[g]]
    L += at('A') + ['WAITVM ld Q0'] + stamp(2) + qread(0) + scale_q(0)
    L += ['WAITVM ld BT']
    for i in range(4):
        L.append(f'v_lshlrev_b32 {v(BT+i)}, 16, {v(BT+i)}')
        if i < 3: L.append(f'v_or_b32 {v(BT+i)}, {(3-i)*1024}, {v(BT+i)}')
    L += ['WAITVM dma K 0', 's_barrier'] + stamp(3)
    L += [i_kread(kb, ks, 0, 0) for kb in range(4) for ks in range(4)] + at('B')
    order = [('qk', 0), ('qk', 1), ('qk', 2), ('pv', 0), ('qk', 3), ('pv', 1)]
    G = {}; mf = []
    for kind, q in order:
        G[(kind, q)] = len(mf); mf += qkg(q) if kind == 'qk' else pvg(q, first=True)
    n = len(mf)
    ops = []
    for q in range(4):
        if q < 2: pvs = G[('qk', q)] + 23
        elif q == 2: pvs = G[('qk', 3)] + 2
        else: pvs = n + 2
        for o in softmax_ops(0, q, G[('qk', q)], pvs):
            if (o.key[0], -1) + o.key[2:] in LEFT: continue
            o.dl = max(o.dl, o.rel if o.cls == 'E' else G[('qk', q)] + 4*(o.key[3]//2) + 9)
            o.dl = min(o.dl, n - 1)
            ops.append(o)
    for db in range(8):
        for ks in range(2):
            for tt in range(2):
                f = 2*db + ks
                ops.append(Op(('v', db, ks, tt), 'T', G[('qk', 2)] - 1 + 1, G[('pv', 0)] + f - LAT - (1 - tt), i_vread(db, ks, tt, 0, 0)))
    kb0 = G[('pv', 1)] - 1
    for kb in range(4):
        for ks in range(4):
            f = 4*kb + ks
            ops.append(Op(('k', kb, ks), 'R', kb0 + 1, min(n - 1 - (15 - f), n + f - LAT), i_kread(kb, ks, 1, 1),
                          deps=[('k', (f-1)//4, (f-1)%4)] if f else []))
    gaps = [Gap() for _ in range(n)]
    gaps, todo = schedule(n, ops, gaps, overflow=True)
    assert not todo
    gaps[G[('qk', 1)] - 1].post += ['WAITVM ld Q1'] + at('C') + qread(1) + scale_q(1) + ['s_nop 0']
    gaps[G[('qk', 2)] - 1].post += ['WAITVM ld Q2'] + at('D') + qread(2) + scale_q(2) + ['WAITVM dma V 0', 's_barrier']
    gaps[G[('qk', 3)] - 1].post += ['WAITVM ld Q3'] + stamp(4) + at('E') + qread(3) + scale_q(3) + ['s_nop 0']
    gaps[kb0].post += at('F') + ['WAITVM dma K 1', 's_barrier']
    L += emit(mf, gaps)
    L = resolve_waitvm(L)
    L, pend = add_lgkm_waits(L)
    return L, pend

def slow():
    t = T0
    L = ['L_slow:', 's_waitcnt vmcnt(0) lgkmcnt(0)']
    M, LS, KV, VD0, VD1 = KA, BT, DK, DV, IDX
    L += [f's_mov_b32 s10, {s(sKB)}', f's_mov_b32 s14, {s(sVB)}',
          f'v_mbcnt_lo_u32_b32 {v(t+1)}, -1, 0', f'v_mbcnt_hi_u32_b32 {v(t+1)}, -1, {v(t+1)}',
          f'v_and_b32 {v(t+2)}, 15, {v(t+1)}', f'v_lshrrev_b32 {v(t+3)}, 4, {v(t+1)}',
          f'v_lshlrev_b32 {v(t+4)}, 12, {v(t+2)}', f'v_lshl_add_u32 {v(KV)}, {v(t+3)}, 4, {v(t+4)}',
          f'v_add_u32 {v(KV)}, 3072, {v(KV)}',
          f'v_lshlrev_b32 {v(t+4)}, 1, {v(t+3)}', f'v_xor_b32 {v(t+4)}, {v(t+2)}, {v(t+4)}',
          f'v_lshlrev_b32 {v(t+4)}, 4, {v(t+4)}', f'v_lshl_add_u32 {v(VD0)}, {v(t+3)}, 12, {v(t+4)}',
          f'v_add_u32 {v(VD0)}, 3072, {v(VD0)}',
          f'v_xor_b32 {v(t+4)}, 0x80, {v(t+4)}', f'v_lshl_add_u32 {v(VD1)}, {v(t+3)}, 12, {v(t+4)}',
          f'v_add_u32 {v(VD1)}, {3072 + 16384}, {v(VD1)}',
          f's_lshl_b32 {s(sMV)}, {s(sW)}, 13', f's_add_u32 {s(sMV)}, {s(sMV)}, 0x20000',
          f'v_bfe_u32 {v(t+5)}, {v(t+1)}, 2, 2', f'v_lshl_add_u32 {v(t+5)}, {v(t+3)}, 2, {v(t+5)}',
          f'v_lshlrev_b32 {v(t+4)}, 8, {v(t+5)}', f'v_and_b32 {v(t+6)}, 3, {v(t+1)}',
          f'v_lshl_add_u32 {v(t+4)}, {v(t+6)}, 3, {v(t+4)}', f'v_add_u32 {v(t+4)}, {s(sMV)}, {v(t+4)}',
          f'v_and_b32 {v(t+5)}, 7, {v(t+5)}']
    for db in range(8):
        L += [f'v_xor_b32 {v(VA+db)}, {db}, {v(t+5)}', f'v_lshl_add_u32 {v(VA+db)}, {v(VA+db)}, 5, {v(t+4)}']
    L += [f'v_lshlrev_b32 {v(MK)}, 2, {v(t+3)}']
    L += [f'v_mov_b32 {v(MK+1)}, {NEG:#x}']
    L += [f'v_mov_b32 {v(O0+i)}, 0' for i in range(128)]
    L += [f'v_mov_b32 {v(M+q)}, 0xff7fffff' for q in range(4)] + [f'v_mov_b32 {v(LS+q)}, 0' for q in range(4)]
    L += [f's_mov_b32 {s(sIT)}, 0', 'L_slow_loop:',
          f's_lshr_b32 {s(sT)}, {s(sIT)}, 2',
          f's_load_dwordx2 s[40:41], s[30:31], {s(sT)}', 's_waitcnt lgkmcnt(0)',
          's_lshl_b32 s40, s40, 16', 's_lshl_b32 s41, s41, 16']
    for kb in range(2):
        for ks in range(4):
            L.append(f'buffer_load_dwordx4 {a(aK+16*kb+4*ks,4)}, {v(KV)}, s[8:11], s{40+kb} offen offset:{64*ks}')
    for b in range(2):
        for p in range(4):
            L += [f's_add_u32 m0, {s(sMV)}, {b*4096 + p*1024}', f's_add_u32 s42, s{40+b}, {(p//2)*32768}',
                  f'buffer_load_dwordx4 {v(VD1 if p & 1 else VD0)}, s[12:15], s42 offen lds']
    L += ['s_waitcnt vmcnt(0)']
    for db in range(8):
        for tt in range(2):
            L.append(f'ds_read_b64_tr_b16 {a(aV+8*db+2*tt,2)}, {v(VA+db)} offset:{tt*4096}')
    L += [f's_sub_u32 {s(sT)}, {s(sCLT)}, {s(sIT)}', 's_waitcnt lgkmcnt(0)']
    for q in range(4):
        S = S0 + 16*q
        L += qkg(q, 2) + ['s_nop 7']
        for e in range(8):
            L += [f'v_add_u32 {v(t)}, {16*(e//4) + e%4}, {v(MK)}', f'v_cmp_gt_u32 vcc, {s(sT)}, {v(t)}', 's_nop 1',
                  f'v_cndmask_b32 {v(S+e)}, {v(MK+1)}, {v(S+e)}, vcc']
        L += [f'v_max3_f32 {v(t)}, {v(S)}, {v(S+1)}, {v(S+2)}', f'v_max3_f32 {v(t)}, {v(t)}, {v(S+3)}, {v(S+4)}',
              f'v_max3_f32 {v(t)}, {v(t)}, {v(S+5)}, {v(S+6)}', f'v_max3_f32 {v(t)}, {v(t)}, {v(S+7)}, {v(M+q)}',
              f'v_mov_b32 {v(t+1)}, {v(t)}', 's_nop 1', f'v_permlane16_swap_b32 {v(t)}, {v(t+1)}', f'v_max_f32 {v(t)}, {v(t)}, {v(t+1)}',
              f'v_mov_b32 {v(t+1)}, {v(t)}', 's_nop 1', f'v_permlane32_swap_b32 {v(t)}, {v(t+1)}', f'v_max_f32 {v(t)}, {v(t)}, {v(t+1)}',
              f'v_sub_f32 {v(t+1)}, {v(M+q)}, {v(t)}', f'v_exp_f32 {v(t+1)}, {v(t+1)}', f'v_mov_b32 {v(M+q)}, {v(t)}']
        L += [f'v_sub_f32 {v(S+e)}, {v(S+e)}, {v(t)}' for e in range(8)]
        L += [f'v_exp_f32 {v(S+e)}, {v(S+e)}' for e in range(8)]
        L += [f'v_mul_f32 {v(LS+q)}, {v(LS+q)}, {v(t+1)}']
        L += [f'v_mul_f32 {v(O0+32*q+i)}, {v(O0+32*q+i)}, {v(t+1)}' for i in range(32)]
        L += [i_cvt(q, i) for i in range(4)]
        for i in range(4):
            L += [f'v_lshlrev_b32 {v(t)}, 16, {v(P0+8*q+i)}', f'v_and_b32 {v(t+1)}, 0xffff0000, {v(P0+8*q+i)}',
                  f'v_add_f32 {v(LS+q)}, {v(LS+q)}, {v(t)}', f'v_add_f32 {v(LS+q)}, {v(LS+q)}, {v(t+1)}']
        L += [pv(q, db, 0) for db in range(8)]
    L += [f's_add_u32 {s(sIT)}, {s(sIT)}, 32', f's_cmp_lt_u32 {s(sIT)}, {s(sCLT)}', 's_cbranch_scc1 L_slow_loop', 's_nop 7']
    for q in range(4):
        o = O0 + 32*q
        L += [f'v_mov_b32 {v(t)}, {v(LS+q)}', f'v_mov_b32 {v(t+1)}, {v(LS+q)}', 's_nop 1',
              f'v_permlane16_swap_b32 {v(t)}, {v(t+1)}', f'v_add_f32 {v(t)}, {v(t)}, {v(t+1)}',
              f'v_mov_b32 {v(t+1)}, {v(t)}', 's_nop 1', f'v_permlane32_swap_b32 {v(t)}, {v(t+1)}', f'v_add_f32 {v(t)}, {v(t)}, {v(t+1)}',
              f'v_rcp_f32 {v(t)}, {v(t)}', 's_nop 0']
        L += [f'v_mul_f32 {v(o+i)}, {v(o+i)}, {v(t)}' for i in range(32)]
        for u in range(4):
            L += [f'v_cvt_pk_bf16_f32 {v(o+8*u+i)}, {v(o+8*u+2*i)}, {v(o+8*u+2*i+1)}' for i in range(4)]
        for u in range(4):
            L += [f'v_permlane16_swap_b32 {v(o+8*u+i)}, {v(o+8*u+2+i)}' for i in range(2)]
        for u in range(4):
            L.append(f'buffer_store_dwordx4 {v(o+8*u,4)}, {v(OV)}, s[16:19], {"0" if q == 0 else s(sQ1+q-1)} offen offset:{64*u}')
    L += ['s_endpgm']
    return L

def finish():
    L = [f'v_cmp_lt_u32 vcc, 0x28000000, {v(T0+4)}',
         f's_cmp_lg_u32 {s(sFORCE)}, 0', 's_cbranch_scc1 L_slow', 's_nop 3', 's_cbranch_vccnz L_slow']
    if OPT.get('twice'):
        global NF2
        NF2 = globals().get('NF2', 0) + 1
        L += ['s_cmp_eq_u32 s77, 0', f's_cbranch_scc1 L_fin{NF2}', 's_sub_u32 s77, s77, 1', 's_waitcnt vmcnt(0) lgkmcnt(0)', 's_barrier',
              'v_mbcnt_lo_u32_b32 v0, -1, 0', 'v_mbcnt_hi_u32_b32 v0, -1, v0', f's_lshl_b32 {s(sT)}, {s(sW)}, 6', f'v_add_u32 v0, {s(sT)}, v0', 's_branch L_again', f'L_fin{NF2}:']
    if OPT.get('fixed'):
        global NFIX
        NFIX = globals().get('NFIX', 0) + 1
        ph = OPT.get('phase')
        L += ['s_waitcnt vmcnt(0) lgkmcnt(0)', f's_mov_b32 {s(sT+4)}, {OPT["fixed"]}']
        if ph:
            L += [f's_sub_u32 {s(sT+5)}, {s(sST+2*ph)}, {s(sST+2*OPT.get("phase0",0))}']
            if OPT.get('neg'): L += [f's_sub_u32 {s(sT+5)}, {OPT["neg"]}, {s(sT+5)}']
            if OPT.get('only') is not None: L += [f's_cmp_eq_u32 s2, {OPT["only"]}', f's_cselect_b32 {s(sT+5)}, {s(sT+5)}, 0']
            L += [ f's_lshr_b32 {s(sT+5)}, {s(sT+5)}, {OPT.get("sh",3)}', f's_add_u32 {s(sT+4)}, {s(sT+4)}, {s(sT+5)}']
        L += [f'L_spin{NFIX}:', f's_memrealtime {s(sT,2)}', 's_waitcnt lgkmcnt(0)', f's_sub_u32 {s(sT)}, {s(sT)}, s100',
              f's_cmp_lt_u32 {s(sT)}, {s(sT+4)}', f's_cbranch_scc1 L_spin{NFIX}', 's_endpgm']
        return L
    if OPT['stamp']:
        L += [f's_memtime {s(sST+14,2)}', 's_waitcnt vmcnt(0)', f's_memtime {s(sT,2)}', f's_memrealtime {s(sT+2,2)}',
              f's_load_dwordx2 s[24:25], s[0:1], {56 if OPT["stamp"] == 1 else 48}', 's_waitcnt lgkmcnt(0)',
              f's_mov_b32 s26, {0x100000 if OPT["stamp"] == 1 else 64}', 's_mov_b32 s27, 0x20000']
        if OPT['stamp'] == 2:
            for i in range(1, 8): L.append(f's_sub_u32 {s(sST+2*i)}, {s(sST+2*i)}, {s(sST)}')
            L += [f's_sub_u32 {s(sT)}, {s(sT)}, {s(sST)}', f's_sub_u32 {s(sT+2)}, {s(sT+2)}, s100']
        for i in range(8): L.append(f'v_mov_b32 v{i}, {s(sST+2*i)}')
        L += [f'v_mov_b32 v8, {s(sT)}', f'v_mov_b32 v9, {s(sT+2)}', 'v_mov_b32 v10, s100', 'v_mov_b32 v11, 0',
              f's_lshl_b32 {s(sT)}, s2, 2', f's_add_u32 {s(sT)}, {s(sT)}, {s(sW)}', f's_lshl_b32 {s(sT)}, {s(sT)}, 6',
              'v_mov_b32 v12, 0', 's_mov_b64 exec, 1',
              f'buffer_store_dwordx4 v[0:3], v12, s[24:27], {s(sT)} offen',
              f'buffer_store_dwordx4 v[4:7], v12, s[24:27], {s(sT)} offen offset:16',
              f'buffer_store_dwordx4 v[8:11], v12, s[24:27], {s(sT)} offen offset:32']
    L += ['s_endpgm']
    return L

def main():
    pro, pend0 = prologue()
    if OPT.get('memtest'):
        L = [f'{NAME}:'] + pro + finish() + ['L_slow:', 'L_end:', 's_endpgm']
        return write(L)
    loop, pend = loop_code()
    assert [x[0] for x in pend0] == [x[0] for x in pend][-len(pend0):] or not pend0, (pend0, pend)
    L = [f'{NAME}:'] + pro + stamp(5) + loop
    L += ['L_tail:'] + stamp(6) + [f's_cmp_gt_u32 {s(sNKB)}, 1', 's_cbranch_scc1 L_tail234']
    L += ['; ---- tail nkb=1'] + tail(1, pend) + finish()
    L += ['L_tail234:', f's_cmp_eq_u32 {s(sNKB)}, 3', 's_cbranch_scc1 L_tail3', f's_cmp_eq_u32 {s(sNKB)}, 4', 's_cbranch_scc1 L_tail4']
    L += tail(2, pend) + finish() + ['L_tail3:'] + tail(3, pend) + finish() + ['L_tail4:'] + tail(4, pend) + finish()
    L += slow() + ['L_end:', 's_endpgm', 'L_codeend:']
    write(L)

def write(L):
    L, nn = fix_hazards(L)
    print('nops inserted:', nn, ' leftovers:', sorted(LEFT))
    hdr = open('standalone__paged_block_table_kv_pagedattention__prompt.s.ref').read().split('; Override')[0]
    txt = hdr + '; Generated by gen/gen.py (hand-written generator).\n'
    txt += '; @launch grid=(256,1,1) block=(256,1,1) lds=163840\n'
    txt += f'.amdgcn_target "amdgcn-amd-amdhsa--gfx950"\n.text\n.globl {NAME}\n.p2align 8\n.type {NAME},@function\n'
    for l in L:
        txt += (l if l.endswith(':') or l.startswith(('.', ';')) else '    ' + l) + '\n'
    txt += f'''.section .rodata,"a"
.p2align 6
.amdhsa_kernel {NAME}
  .amdhsa_next_free_vgpr 472
  .amdhsa_next_free_sgpr 102
  .amdhsa_accum_offset 256
  .amdhsa_group_segment_fixed_size 0
  .amdhsa_kernarg_size 64
  .amdhsa_user_sgpr_count 2
  .amdhsa_user_sgpr_kernarg_segment_ptr 1
  .amdhsa_system_sgpr_workgroup_id_x 1
.end_amdhsa_kernel
'''
    open(sys.argv[1], 'w').write(txt)
    if OPT.get('show'):
        for g in range(NG): print(g, PAT[g])
main()
```

```python
import sys
from asmcheck import parse, fix_hazards, Ins

NAME = 'standalone__paged_block_table_kv_pagedattention__prompt_kernel'
FL = {0: '', 1: ' nt', 2: ' sc1', 3: ' sc0 sc1', 4: ' sc1 nt', 5: ' sc0 sc1 nt', 6: ' sc0', 7: ' sc0 nt'}
OPT = dict(po=0, cpf=1, qf=0, kf=0, of=2, delta=9, stamp=0, lat=8, forceslow=0, tord=1, epri=12)
for a_ in sys.argv[2:]:
    k_, v_ = a_.split('='); OPT[k_] = int(v_, 0)

S0, P0, KA, VA, BT, DK, DV, IDX, OV, MK, T0, O0 = 0, 64, 96, 100, 108, 112, 113, 114, 115, 116, 120, 128
QD, QA = P0 + 24, P0 + 28
KA0, VA0 = O0, O0 + 32
aQ, aK, aV, aL, aONE, aX = 0, 64, 128, 192, 208, 212
sW, sCL, sN, sIT, sLN = 3, 36, 37, 38, 39
SETS = (56, 60)
sMK, sMV, sC, sC2, sNKB, sE, sFORCE, sCLT = 64, 65, 66, 67, 68, 69, 70, 71
sQ1 = 72
sSL = 96
sT = 78
sST = 84
KBYTES = 132 * 65536
LAT = OPT['lat']
NEG = 0xf149f2ca
INF = 10 ** 6
MINCL = 193

def v(b, n=1): return f'v{b}' if n == 1 else f'v[{b}:{b+n-1}]'
def a(b, n=1): return f'a{b}' if n == 1 else f'a[{b}:{b+n-1}]'
def s(b, n=1): return f's{b}' if n == 1 else f's[{b}:{b+n-1}]'
def VR(b, n=1): return {('v', i) for i in range(b, b + n)}
def AR(b, n=1): return {('a', i) for i in range(b, b + n)}

MF = 'v_mfma_f32_16x16x32_bf16'
def qk(q, kb, ks, sb=None, kbase=aK, mask=False):
    D = v(S0 + 16*(q if sb is None else sb) + 4*kb, 4)
    C = D if ks else (v(MK, 4) if mask else '0')
    return f'{MF} {D}, {a(kbase+16*kb+4*ks,4)}, {a(aQ+16*q+4*ks,4)}, {C}'
def vfrag(db, ks, vbase): return aV + (2*db+ks)*4 if vbase is None else vbase + 4*db
def pv(q, db, ks, pb=None, vbase=None, first=False):
    D = v(O0 + 32*q + 4*db, 4)
    return f'{MF} {D}, {a(vfrag(db, ks, vbase),4)}, {v(P0+8*(q if pb is None else pb)+4*ks,4)}, {"0" if first and ks == 0 else D}'
def sm(q, pb=None):
    return f'v_smfmac_f32_16x16x64_bf16 {a(aL+4*q,4)}, {a(aONE,4)}, {v(P0+8*(q if pb is None else pb),8)}, {v(IDX)}'
def qkg(q, nkb=4, sb=None, kbase=aK, mask=False):
    return [qk(q, kb, ks, sb, kbase, mask and kb == nkb-1) for kb in range(nkb) for ks in range(4)]
def pvg(q, pb=None, first=False): return [pv(q, db, ks, pb, None, first) for db in range(8) for ks in range(2)] + [sm(q, pb)]

def i_exp(sb, n): return f'v_exp_f32 {v(S0+16*sb+n)}, {v(S0+16*sb+n)}'
def i_cvt(sb, pb, i): return f'v_cvt_pk_bf16_f32 {v(P0+8*pb+i)}, {v(S0+16*sb+2*i)}, {v(S0+16*sb+2*i+1)}'
def i_kread(kb, ks, slot, tag, kbase=aK, addr=KA):
    return f'ds_read_b128 {a(kbase+16*kb+4*ks,4)}, {v(addr+ks)} offset:{slot*16384+kb*1024}'
def i_vread(db, ks, t, slot, tag, vbase=None, addr=VA):
    return f'ds_read_b64_tr_b16 {a(vfrag(db, ks, vbase)+2*t,2)}, {v(addr+db)} offset:{slot*16384+(2*ks+t)*1024}'
def i_dma(isv, i, soff, tag):
    return f'buffer_load_dwordx4 {v(DV if isv else DK)}, {s(12 if isv else 8,4)}, {s(soff+i)} offen offset:{i*1024}{FL[OPT["kf"]]} lds'
def i_m0(isv, slot): return f's_add_u32 m0, {s(sMV if isv else sMK)}, {slot*16384}'
def stamp(i): return [f's_memtime {s(sST+2*i,2)}'] if OPT['stamp'] else []

class Op:
    def __init__(self, key, cls, rel, dl, text, deps=(), fifo=None, pri=None):
        self.key, self.cls, self.rel, self.dl, self.text, self.deps, self.fifo = key, cls, rel, dl, text, list(deps), fifo
        self.pri = dl if pri is None else pri
        self.gap = None
class Gap:
    def __init__(self): self.sc, self.mem, self.valu, self.post = [], [], [], []; self.block = None

def schedule(ngaps, ops, gaps, overflow=False):
    byk = {o.key: o for o in ops}
    todo = list(ops)
    def ready(o, g):
        if o.rel > g: return False
        for d in o.deps:
            p = byk.get(d)
            if p is not None and (p.gap is None or p.gap >= g): return False
        if o.fifo is not None:
            p = byk[o.fifo]
            if p.gap is None or (o.cls == 'D' and p.gap >= g): return False
        return True
    def put(o, g):
        o.gap = g; todo.remove(o)
        (gaps[g].mem if o.cls in 'DRT' else gaps[g].valu).append(o)
    for g in range(ngaps):
        if gaps[g].block != 'all':
            cand = sorted((o for o in todo if ready(o, g)), key=lambda o: o.pri)
            if gaps[g].block == 'half': cand = [o for o in cand if o.cls == 'H'][:1]
            if cand:
                top = cand[0]
                halves = [o for o in cand if o.cls in 'RTH']
                full = [o for o in cand if o.cls in 'ED']
                if top.cls in 'RTH' and len(halves) == 1 and full and top.pri - g > 6 and top.fifo is None: top = full[0]
                put(top, g)
                if top.cls in 'RTH' and gaps[g].block != 'half':
                    c2 = sorted((o for o in todo if o.cls in 'RTH' and ready(o, g) and not (o.cls == 'R' and top.cls == 'R')), key=lambda o: o.pri)
                    if c2:
                        pick = c2[0]
                        if top.cls in 'RT' and pick.cls in 'RT' and pick.pri - g > 8:
                            h = [o for o in c2 if o.cls == 'H']
                            if h: pick = h[0]
                        put(pick, g)
        late = [o for o in todo if o.dl <= g]
        if late:
            if not overflow: raise RuntimeError(f'deadline miss at gap {g}: {[o.key for o in late]}')
            def force(o):
                if o.gap is not None: return
                for d in o.deps + ([o.fifo] if o.fifo else []):
                    if d in byk: force(byk[d])
                assert o.rel <= g, (o.key, o.rel, g)
                o.gap = g; todo.remove(o); gaps[g].post.append(o.text)
            for o in sorted(late, key=lambda o: ({'R': 0, 'T': 0, 'D': 0, 'E': 1, 'H': 2}[o.cls], o.dl)): force(o)
    return todo

def emit(mf, gaps):
    out = []
    for m, g in zip(mf, gaps):
        out.append(m)
        sc = list(g.sc)
        if any(o.text.startswith('buffer_load') for o in g.mem) and not sc: sc = ['s_nop 0']
        out += sc + [o.text for o in g.mem] + [o.text for o in g.valu] + g.post
    return out

def add_lgkm_waits(lines, pre_ds=()):
    q = [(set(r), -age) for r, age in pre_ds]
    out = []; gap = -1; lastm = None; nvis = None
    for x in parse(lines):
        if x.cls == 'mfma':
            needed = [i for i, (r, g) in enumerate(q) if r & x.r]
            if needed:
                k = max(needed)
                if lastm is not None and k < nvis:
                    while k + 1 < nvis and q[k + 1][1] <= gap - LAT: k += 1
                    n = min(15, nvis - 1 - k)
                    if out[lastm:lastm+1] == ['s_nop 0']: out[lastm] = f's_waitcnt lgkmcnt({n})'
                    else: out.insert(lastm, f's_waitcnt lgkmcnt({n})')
                    k = nvis - 1 - n
                else:
                    n = min(15, len(q) - 1 - k)
                    out.append(f's_waitcnt lgkmcnt({n})')
                    k = len(q) - 1 - n
                q = q[k + 1:]
            gap += 1
            out.append(x.text); lastm = len(out); nvis = len(q)
        else:
            if x.cls == 'ds': q.append((set(x.w), gap))
            if x.cls == 'wait' and x.lgkm is not None:
                drop = max(0, len(q) - x.lgkm); q = q[drop:]
                if nvis is not None: nvis = max(0, nvis - drop)
            out.append(x.text)
    return out, [(r, gap - g) for r, g in q]

class Prog:
    def __init__(self): self.mf = []; self.ops = []; self.pos = {}
    def group(self, name, mf): self.pos[name] = len(self.mf); self.mf += mf
    def done(self):
        self.ins = [Ins(m) for m in self.mf]; self.n = len(self.mf); self.gaps = [Gap() for _ in self.mf]
    def first_read(self, R, lo): return next((i for i in range(lo, self.n) if R & self.ins[i].srcAB), INF)
    def last_read(self, R, hi): return next((i for i in range(min(hi, self.n) - 1, -1, -1) if R & self.ins[i].srcAB), -1)
    def last_write(self, R, hi): return next((i for i in range(min(hi, self.n) - 1, -1, -1) if R & self.ins[i].w), -1)
    def next_write(self, R, lo): return next((i for i in range(lo, self.n) if R & self.ins[i].w), INF)
    def kload(self, key, use, slot, tag, nkb=4, kbase=aK, addr=KA, rel0=0, dlmax=None):
        for f in range(4 * nkb):
            R = AR(kbase + 4*f, 4)
            u = self.first_read(R, use) if use < self.n else self.n + f
            rel = max(rel0, self.last_read(R, u) + 1)
            dl = u - LAT if dlmax is None else min(u - LAT, dlmax - (4*nkb - 1 - f))
            self.ops.append(Op((key, f), 'R', rel, max(rel, dl), i_kread(f//4, f%4, slot, tag, kbase, addr), deps=[(key, f-1)] if f else []))
    def vload(self, key, use, slot, tag, nks=2, vbase=None, addr=VA, rel0=0):
        for db in range(8):
            for ks in range(nks):
                R = AR(vfrag(db, ks, vbase), 4)
                u = self.first_read(R, use)
                rel = max(rel0, self.last_read(R, u) + 1)
                for t in range(2):
                    self.ops.append(Op((key, db, ks, t), 'T', rel, max(rel, u - LAT - (1 - t)), i_vread(db, ks, t, slot, tag, vbase, addr)))
    def softmax(self, key, at, sb, pb, nkb=4, only=None, skip=(), dlcap=None, use=0):
        end = at + 4*nkb if at >= 0 else 0
        u = self.first_read(VR(P0 + 8*pb, 8), max(end, use))
        prel = self.last_read(VR(P0 + 8*pb, 8), u) + 1
        cap = min(u - 3, self.next_write(VR(S0 + 16*sb, 16), end) - 1, self.n - 1 if dlcap is None else dlcap)
        n = 4 * nkb
        for e in range(n):
            if (only is not None and ('e', e) not in only) or ('e', e) in skip: continue
            rel = at + 4*(e//4) + 3 + 5 if at >= 0 else 0
            self.ops.append(Op((key, 'e', e), 'E', rel, max(rel, min(cap, cap - 1 - 2*(n - 1 - e))), i_exp(sb, e)))
        for i in range(2 * nkb):
            if (only is not None and ('c', i) not in only) or ('c', i) in skip: continue
            rel = max(prel, at + 4*(i//2) + 3 + 6 if at >= 0 else 0)
            self.ops.append(Op((key, 'c', i), 'H', rel, max(rel, min(cap, cap - (2*nkb - 1 - i))), i_cvt(sb, pb, i),
                               deps=[(key, 'e', 2*i), (key, 'e', 2*i+1)]))
            assert rel <= u - 1, (key, i, rel, u)
        if only is None:
            for i in range(2 * nkb, 8):
                self.ops.append(Op((key, 'z', i), 'H', prel, max(prel, u - 3), f'v_mov_b32 {v(P0+8*pb+i)}, 0'))

NG = 132
LOOP_MF = qkg(0) + pvg(2) + qkg(1) + pvg(3) + qkg(2) + pvg(0) + qkg(3) + pvg(1)
assert len(LOOP_MF) == NG
BARG = 47
DMAG = [10, 14, 18, 22, 26, 30, 34, 38]
RLG = [41, 43, 92, 96]

def steady():
    NT = 6
    ops = []
    gaps = [Gap() for _ in range(NG * (NT + 1))]
    for j in range(NT):
        b = NG * j
        for q in range(4):
            pvs = b + 82 + 33*q; qs = b + 33*q
            for e in range(16):
                g = qs + OPT['delta'] + 2*e
                ops.append(Op(('e', j, q, e), 'E', g, g, None))
            for i in range(8):
                ops.append(Op(('c', j, q, i), 'H', pvs - NG + 17, pvs - 3 - (7 - i), None, deps=[('e', j, q, 2*i), ('e', j, q, 2*i+1)]))
        for f in range(16):
            for t in range(2):
                ops.append(Op(('v', j, f//2, f%2, t), 'T', max(b + 50 + f, b + BARG + 1), b + 82 + f - LAT - (1 - t), None))
            ops.append(Op(('k', j, f//4, f%4), 'R', b + 100 + f, min(b + NG - 2 - (15 - f), b + NG + f - LAT), None,
                          deps=[('k', j, (f-1)//4, (f-1)%4)] if f else []))
        for i in range(4): ops.append(Op(('rl', j, i), 'E', b + RLG[i], b + RLG[i], None))
        for i in range(8): ops.append(Op(('d', j, i), 'D', b + DMAG[i], b + DMAG[i], None))
        gaps[b + BARG].block = 'all'
        gaps[b + NG - 1].block = 'half'
    schedule(NG * (NT + 1), ops, gaps)
    def pattern(j):
        return [[(o.key[0], o.key[1] - j) + o.key[2:] for o in gaps[NG*j + g].mem + gaps[NG*j + g].valu] for g in range(NG)]
    assert pattern(3) == pattern(4), 'no steady state'
    return pattern(3)
PAT = steady()
LEFT = {k for g in PAT for k in g if k[1] == -1}
assert all(k[0] in 'ec' and k[2] == 3 for k in LEFT), LEFT
LEFT3 = {(k[0], k[3]) for k in LEFT}
HEADWAIT = 's_waitcnt lgkmcnt(4)'

class Txt:
    def __init__(self, t): self.text = t

def body(sl):
    def text(k):
        if k[0] == 'e': return i_exp(k[2], k[3])
        if k[0] == 'c': return i_cvt(k[2], k[2], k[3])
        if k[0] == 'v': return i_vread(k[2], k[3], k[4], sl, '+0')
        if k[0] == 'k': return i_kread(k[2], k[3], (sl + 1) % 4, '+1')
        if k[0] == 'rl': return f'v_readlane_b32 {s(SETS[sl%2] + k[2])}, {v(BT+k[2])}, {s(sLN)}'
        if k[0] == 'd': return i_dma(1, k[2], SETS[sl % 2], '+2') if k[2] < 4 else i_dma(0, k[2] - 4, SETS[(sl + 1) % 2], '+3')
    gaps = [Gap() for _ in range(NG)]
    for g in range(NG):
        for k in PAT[g]: (gaps[g].mem if k[0] in 'vkd' else gaps[g].valu).append(Txt(text(k)))
    gaps[DMAG[0] - 2].sc.append(i_m0(1, (sl + 2) % 4))
    gaps[DMAG[4] - 2].sc.append(i_m0(0, (sl + 3) % 4))
    gaps[RLG[-1] + 2].sc.append(f's_add_u32 {s(sLN)}, {s(sLN)}, 1')
    gaps[BARG - 1].sc.append('s_waitcnt vmcnt(16)')
    gaps[BARG].sc.append('s_barrier')
    if sl == 0: gaps[NG - 3].sc.append(f's_sub_u32 {s(sIT)}, {s(sIT)}, 1')
    gaps[NG - 2].sc.append(HEADWAIT)
    lines = emit(LOOP_MF, gaps)
    ab = OPT.get('abl', 0)
    if ab & 1: lines = [l for l in lines if not l.startswith('buffer_load')]
    if ab & 2: lines = [l for l in lines if not l.startswith(('s_barrier', 's_waitcnt vmcnt'))]
    if ab & 32: lines = [l for l in lines if not l.startswith('s_barrier')]
    return lines

def loop_code():
    _, pend = add_lgkm_waits(body(1))
    out = ['.p2align 6']
    for sl in (1, 2, 3, 0):
        l, pend2 = add_lgkm_waits(body(sl), pend)
        assert [x[0] for x in pend2] == [x[0] for x in pend]
        out += [f'L_b{sl}:'] + l
    return out + ['s_cbranch_scc0 L_b1'], pend

def epi_list(q, first):
    t = T0 + 2 * (q & 1)
    o = O0 + 32*q
    L = [('H', f'v_accvgpr_read_b32 {v(t)}, {a(aL+4*q)}', -1),
         ('H', f'v_accvgpr_read_b32 {v(t+1)}, {a(aL+4*q+1)}', -1),
         ('H', f'v_add_f32 {v(t)}, {v(t)}, {v(t+1)}', -1),
         ('E', f'v_rcp_f32 {v(t+1)}, {v(t)}', -1),
         ('H', f'v_subrev_u32 {v(t)}, 0x2b800000, {v(t)}', -1),
         ('H', f'v_mov_b32 {v(T0+4)}, {v(t)}' if first else f'v_max_u32 {v(T0+4)}, {v(T0+4)}, {v(t)}', -1)]
    def muls(u): return [('M', (o + 8*u + i, t + 1), u) for i in range(8)]
    def cvts(u): return [('H', f'v_cvt_pk_bf16_f32 {v(o+8*u+i)}, {v(o+8*u+2*i)}, {v(o+8*u+2*i+1)}', u) for i in range(4)]
    def swaps(u): return [('H', f'v_permlane16_swap_b32 {v(o+8*u+i)}, {v(o+8*u+2+i)}', u) for i in range(2)]
    def store(u):
        return [('D', f'buffer_store_dwordx4 {v(o+8*u,4)}, {v(OV)}, s[16:19], {"0" if q == 0 else s(sQ1+q-1)} offen offset:{64*u}{FL[OPT.get(f"of{q}", OPT["of"])]}', u)]
    h = lambda l, a_, b_: l[a_:b_]
    L += muls(0) + cvts(0) + h(muls(1), 0, 2) + swaps(0) + store(0) + h(muls(1), 2, 8) + cvts(1) + h(muls(2), 0, 2) + swaps(1) + store(1) \
       + h(muls(2), 2, 8) + cvts(2) + h(muls(3), 0, 2) + swaps(2) + store(2) + h(muls(3), 2, 8) + cvts(3) + [('H', 's_nop 1', 3)] + swaps(3) + store(3)
    return L

def tail(nkb, pend):
    nks = 1 if nkb <= 2 else 2
    small = nkb <= 2
    vx = aX if small else None
    P = Prog()
    def final(q, items):
        return [sm(q, pb) for pb, vb, nk in items] + [pv(q, db, ks, pb, vb) for db in range(8) for pb, vb, nk in items for ks in range(nk)]
    G = P.group
    G('A1', qkg(0, sb=0)); G('A2', pvg(2)); G('A3', qkg(1, sb=1)); G('A4', pvg(3))
    G('A5', qkg(0, sb=2)); G('A6', qkg(1, sb=3)); G('A7', pvg(0, pb=0))
    if not small: G('A8', pvg(1, pb=1))
    G('A9a', qkg(0, nkb, sb=0, mask=True)); G('A9b', qkg(1, nkb, sb=1, mask=True))
    if small:
        G('A8', pvg(1, pb=1))
        G('A10', final(0, [(2, None, 2), (0, vx, 1)])); G('B1', qkg(2, sb=2)); G('A11', final(1, [(3, None, 2), (1, vx, 1)]))
        G('B2', qkg(3, sb=3)); G('B3', qkg(2, sb=0)); G('B4', pvg(2, pb=2))
        G('B7a', qkg(2, nkb, sb=2, kbase=aQ, mask=True)); G('B7b', qkg(3, nkb, sb=3, kbase=aQ, mask=True)); G('B5', pvg(3, pb=3))
        if OPT['tord']:
            G('B8', final(2, [(0, None, 2), (2, vx, 1)])); G('B6', qkg(3, sb=1))
            G('B9a', final(3, [(3, vx, 1)])); G('B9', final(3, [(1, None, 2)]))
        else:
            G('B6', qkg(3, sb=1))
            G('B8', final(2, [(0, None, 2), (2, vx, 1)])); G('B9', final(3, [(1, None, 2), (3, vx, 1)]))
    else:
        G('A10p', pvg(0, pb=2)); G('A11p', pvg(1, pb=3)); G('B1', qkg(2, sb=2))
        G('A10', final(0, [(0, None, 2)])); G('A11', final(1, [(1, None, 2)]))
        G('B2', qkg(3, sb=3)); G('B3', qkg(2, sb=0)); G('B4', pvg(2, pb=2)); G('B5', pvg(3, pb=3)); G('B6', qkg(3, sb=1))
        G('B8p', pvg(2, pb=0)); G('B7a', qkg(2, nkb, sb=2, mask=True)); G('B9p', pvg(3, pb=1)); G('B7b', qkg(3, nkb, sb=3, mask=True))
        G('B8', final(2, [(2, None, 2)])); G('B9', final(3, [(3, None, 2)]))
    P.done(); p = P.pos
    bar2 = p['A6'] + 10
    P.softmax('left', -1, 3, 3, only=LEFT3)
    P.softmax('s10', p['A1'], 0, 0); P.softmax('s11', p['A3'], 1, 1); P.softmax('s20', p['A5'], 2, 2); P.softmax('s21', p['A6'], 3, 3)
    P.softmax('s30', p['A9a'], 0, 0, nkb); P.softmax('s31', p['A9b'], 1, 1, nkb, use=p['A10'])
    P.softmax('s12', p['B1'], 2, 2); P.softmax('s13', p['B2'], 3, 3); P.softmax('s22', p['B3'], 0, 0); P.softmax('s23', p['B6'], 1, 1)
    P.softmax('s32', p['B7a'], 2, 2, nkb); P.softmax('s33', p['B7b'], 3, 3, nkb, use=p['B8'])
    P.kload('k2', p['A5'], 2, 'T2', rel0=2); P.vload('v1', p['A7'], 1, 'T1', rel0=2)
    P.kload('k3', p['A9a'], 3, 'T3', nkb, rel0=bar2 + 1)
    P.kload('k1b', p['B1'], 1, 'T1'); P.kload('k2b', p['B3'], 2, 'T2'); P.vload('v1b', p['B4'], 1, 'T1')
    if small:
        P.vload('v2', p['A10'], 2, 'T2', rel0=bar2 + 1); P.vload('v3', p['A10'], 3, 'T3', 1, vx, rel0=bar2 + 1)
        P.kload('k3b', p['B7a'], 3, 'T3', nkb, kbase=aQ); P.vload('v2b', p['B8'], 2, 'T2')
    else:
        P.vload('v2', p['A10p'], 2, 'T2', rel0=bar2 + 1); P.vload('v3', p['A10'], 3, 'T3')
        P.kload('k3b', p['B7a'], 3, 'T3', nkb); P.vload('v2b', p['B8p'], 2, 'T2'); P.vload('v3b', p['B8'], 3, 'T3')
    for i in range(4):
        P.ops.append(Op(('d', i), 'D', 10 + 4*i, 11 + 4*i, i_dma(1, i, SETS[1], 'T3')))
    prev = None
    for q in range(4):
        lrel = P.last_write(AR(aL + 4*q, 4), INF) + 5
        for i, (c, t, u) in enumerate(epi_list(q, q == 0)):
            rel = lrel if u < 0 else max(lrel, P.last_write(VR(O0 + 32*q + 8*u, 8), INF) + 5)
            o = Op(('ep', q, i), {'M': 'H'}.get(c, c), rel, INF, f'v_mul_f32 {v(t[0])}, {v(t[1])}, {v(t[0])}' if c == 'M' else t,
                   fifo=prev, pri=rel + OPT['epri'] + i // 2)
            o.raw = (c, t); prev = o.key; P.ops.append(o)
    g = P.gaps
    g[0].sc.append('s_waitcnt vmcnt(8)'); g[1].sc.append('s_barrier'); g[1].block = 'all'
    g[8].sc.append(i_m0(1, 3))
    g[bar2 - 1].sc.append('s_waitcnt vmcnt(0)'); g[bar2].sc.append('s_barrier'); g[bar2].block = 'all'
    todo = schedule(P.n, P.ops, g, overflow=True)
    lines = emit(P.mf, g)
    assert all(o.key[0] == 'ep' for o in todo), [o.key for o in todo]
    i = 0
    while i < len(todo):
        c, t = todo[i].raw
        if c == 'M' and i + 1 < len(todo) and todo[i+1].raw[0] == 'M' and t[0] % 2 == 0 and todo[i+1].raw[1][0] == t[0] + 1:
            lines.append(f'v_pk_mul_f32 {v(t[0],2)}, {v(t[0],2)}, {v(t[1]-1,2)} op_sel:[0,1] op_sel_hi:[1,1]'); i += 2
        else:
            lines.append(todo[i].text); i += 1
    lines, _ = add_lgkm_waits(lines, pend)
    return lines

def scale_q(q):
    out = []
    for h in range(0, 16, 4):
        for i in range(4):
            x = S0 + 16*q + h + i; t = T0 + 2*i
            out += [f'v_lshlrev_b32 {v(t)}, 16, {v(x)}', f'v_and_b32 {v(t+1)}, 0xffff0000, {v(x)}']
        out += [f'v_pk_mul_f32 {v(T0+2*i,2)}, {v(T0+2*i,2)}, {s(sC,2)}' for i in range(4)]
        out += [f'v_cvt_pk_bf16_f32 {v(S0+16*q+h+i)}, {v(T0+2*i)}, {v(T0+2*i+1)}' for i in range(4)]
        out += [f'v_accvgpr_write_b32 {a(aQ+16*q+h+i)}, {v(S0+16*q+h+i)}' for i in range(4)]
    return out
def qread(q): return [f'ds_read_b128 {v(S0+16*q+4*ks,4)}, {v(QA+ks)} offset:{(q&1)*0x4000}' for ks in range(4)] + ['s_waitcnt lgkmcnt(0)']
def qload(q):
    return [f's_add_u32 m0, {s(sMK)}, {0x20000 + (q&1)*0x4000}', 's_nop 0'] + \
           [f'buffer_load_dwordx4 {v(QD+p)}, s[4:7], {"0" if q == 0 else s(sQ1+q-1)} offen offset:{1024*p}{FL[OPT["qf"]]} lds ; ld Q{q}' for p in range(4)]
def dma4(isv, tile):
    return [f's_add_u32 m0, {s(sMV if isv else sMK)}, {s(sSL+tile)}', 's_nop 0'] + [i_dma(isv, i, 40 + 4*tile, tile) for i in range(4)]
def btprep(tile):
    out = []
    for i in range(4):
        r = 40 + 4*tile + i
        out.append(f's_lshl_b32 {s(r)}, {s(r)}, 16')
        if i < 3: out.append(f's_or_b32 {s(r)}, {s(r)}, {(3-i)*1024}')
    return out

def resolve_waitvm(lines):
    out = []; vm = []
    for l in lines:
        if l.startswith('WAITVM'):
            tags = l.split(None, 1)[1].split('|')
            last = max(i for i, t in enumerate(vm) if t in tags)
            out.append(f's_waitcnt vmcnt({len(vm) - 1 - last}) ; {tags}')
        else:
            if l.startswith(('buffer_', 'global_')): vm.append(l.split(';')[1].strip() if ';' in l else '')
            out.append(l)
    return out

def prologue():
    t = T0
    L = ['s_cmp_ge_u32 s2, 256', 's_cbranch_scc1 L_end',
         's_load_dwordx8 s[24:31], s[0:1], 0', 's_load_dwordx4 s[32:35], s[0:1], 32']
    if OPT['cpf']:
        L += ['s_getpc_b64 s[4:5]', 'L_pc:', 's_lshr_b32 s6, s2, 3', 's_lshl_b32 s6, s6, 10',
              'v_lshl_add_u32 v2, v0, 2, s6', 'v_min_u32 v2, L_pfend-L_pc-4, v2', 'v_mov_b32 v3, s5',
              'v_add_co_u32 v2, vcc, s4, v2', 's_nop 1', 'v_addc_co_u32 v3, vcc, 0, v3, vcc', f'global_load_dword {v(T0+7)}, v[2:3], off']
    L += stamp(0) + (['s_memrealtime s[100:101]'] if OPT['stamp'] else [])
    L += [f'v_lshrrev_b32 {v(t)}, 6, v0',
          f'v_and_b32 {v(t+2)}, 15, v0',
          f'v_readfirstlane_b32 {s(sW)}, {v(t)}',
          f'v_bfe_u32 {v(t+3)}, v0, 4, 2',
          f's_and_b32 {s(sT)}, s2, 7', f's_lshr_b32 {s(sT+1)}, s2, 3', f's_lshl_b32 {s(sT)}, {s(sT)}, 5',
          f's_add_u32 {s(sT)}, {s(sT)}, {s(sT+1)}', f's_lshl_b32 {s(sT+1)}, {s(sT)}, 16',
          f'v_lshlrev_b32 {v(t+4)}, 14, {v(t)}', f'v_lshl_add_u32 {v(t+4)}, {v(t+3)}, 8, {v(t+4)}', f'v_xor_b32 {v(t+5)}, {v(t+2)}, {v(t+3)}']
    for p in range(4):
        L += [f'v_xor_b32 {v(QD+p)}, {4*p}, {v(t+5)}', f'v_lshl_add_u32 {v(QD+p)}, {v(QD+p)}, 4, {v(t+4)}']
    L += [f's_lshl_b32 {s(sMK)}, {s(sW)}, 12', 's_mov_b32 s6, 0x10000', 's_mov_b32 s7, 0x20000',
          's_waitcnt lgkmcnt(0)',
          f's_load_dword {s(sCL)}, s[32:33], 0', 's_load_dwordx16 s[40:55], s[30:31], 0',
          f's_add_u32 s4, s24, {s(sT+1)}', 's_addc_u32 s5, s25, 0']
    L += qload(0)
    L += [f'v_and_b32 {v(t+1)}, 63, v0', f'v_lshlrev_b32 {v(t+6)}, 4, {v(t+1)}',
          's_mov_b32 s20, s30', 's_mov_b32 s21, s31', 's_movk_i32 s22, 0x200', 's_mov_b32 s23, 0x20000',
          f'buffer_load_dwordx4 {v(BT,4)}, {v(t+6)}, s[20:23], 0 offen ; ld BT',
          f's_lshr_b32 {s(sT)}, {s(sT)}, 4', f's_lshl_b32 {s(sT)}, {s(sT)}, 8',
          f's_add_u32 s8, s26, {s(sT)}', 's_addc_u32 s9, s27, 0', 's_sub_u32 s8, s8, 3072', 's_subb_u32 s9, s9, 0',
          f's_sub_u32 s10, {KBYTES+3072}, {s(sT)}', 's_mov_b32 s11, 0x20000',
          f'v_lshl_add_u32 {v(t+4)}, {v(t)}, 2, {v(t+3)}',
          f'v_xor_b32 {v(t+6)}, {v(t+2)}, {v(t+4)}', f'v_lshlrev_b32 {v(t+6)}, 4, {v(t+6)}',
          f'v_lshl_add_u32 {v(DK)}, {v(t+4)}, 12, {v(t+6)}',
          f'v_and_b32 {v(t+6)}, 7, {v(t+4)}', f'v_lshlrev_b32 {v(t+6)}, 1, {v(t+6)}',
          f'v_xor_b32 {v(t+6)}, {v(t+2)}, {v(t+6)}', f'v_lshlrev_b32 {v(t+6)}, 4, {v(t+6)}',
          f'v_lshl_add_u32 {v(DV)}, {v(t+4)}, 12, {v(t+6)}',
          f's_movk_i32 {s(sQ1)}, 0x1000', f's_movk_i32 {s(sQ1+1)}, 0x2000', f's_movk_i32 {s(sQ1+2)}, 0x3000',
          f's_add_u32 s12, s28, {s(sT)}', 's_addc_u32 s13, s29, 0', 's_sub_u32 s12, s12, 3072', 's_subb_u32 s13, s13, 0',
          's_mov_b32 s14, s10', 's_mov_b32 s15, 0x20000',
          f's_add_u32 s16, s34, {s(sT+1)}', 's_addc_u32 s17, s35, 0', 's_mov_b32 s18, 0x10000', 's_mov_b32 s19, 0x20000',
          f's_add_u32 {s(sMV)}, {s(sMK)}, 0x10000', f's_mov_b32 {s(sC)}, 0x3e0293ee',
          's_waitcnt lgkmcnt(0)'] + stamp(1)
    L += [f's_cmp_lt_i32 {s(sCL)}, 1', f's_cselect_b32 {s(sC)}, 0, {s(sC)}', f's_cselect_b32 {s(sCL)}, 0x800, {s(sCL)}',
          f's_min_u32 {s(sCLT)}, {s(sCL)}, 0x800', f's_max_u32 {s(sCL)}, {s(sCLT)}, {MINCL}',
          f's_add_u32 {s(sN)}, {s(sCL)}, 63', f's_lshr_b32 {s(sN)}, {s(sN)}, 6',
          f's_sub_u32 {s(sE)}, 0, {s(sN)}', f's_and_b32 {s(sE)}, {s(sE)}, 3', f's_lshl_b32 {s(sSL)}, {s(sE)}, 14']
    L += btprep(0) + dma4(0, 0) + qload(1)
    L += [f's_mov_b32 {s(sC2)}, {s(sC)}',
          f's_cmp_lt_u32 {s(sCLT)}, {4096 if OPT["forceslow"] else MINCL}', f's_cselect_b32 {s(sFORCE)}, 1, 0',
          f's_add_u32 {s(sIT)}, {s(sN)}, {s(sE)}', f's_lshr_b32 {s(sIT)}, {s(sIT)}, 2', f's_sub_u32 {s(sIT)}, {s(sIT)}, 2']
    for i in range(1, 4):
        L += [f's_add_u32 {s(sSL+i)}, {s(sSL)}, {i*0x4000}', f's_and_b32 {s(sSL+i)}, {s(sSL+i)}, 0xc000']
    L += [f's_sub_u32 {s(sT)}, {s(sN)}, 1', f's_lshl_b32 {s(sT)}, {s(sT)}, 6', f's_sub_u32 {s(sT)}, {s(sCL)}, {s(sT)}',
          f's_add_u32 {s(sNKB)}, {s(sT)}, 15', f's_lshr_b32 {s(sNKB)}, {s(sNKB)}, 4',
          f's_sub_u32 {s(sT)}, {s(sT)}, 1', f's_and_b32 {s(sT)}, {s(sT)}, 15',
          f's_and_b32 {s(sT+1)}, {s(sE)}, 1', f's_sub_u32 {s(sT+1)}, 4, {s(sT+1)}', f's_sub_u32 {s(sT+2)}, 7, {s(sT+1)}',
          f's_mov_b32 {s(sLN)}, 5']
    L += [f'v_lshrrev_b32 {v(t+4)}, 2, {v(t+2)}', f'v_lshlrev_b32 {v(t+4)}, 4, {v(t+4)}',
          f'v_and_b32 {v(t+6)}, 3, {v(t+2)}', f'v_add_u32 {v(t+4)}, {v(t+4)}, {v(t+6)}', f'v_lshlrev_b32 {v(t+4)}, 8, {v(t+4)}',
          f'v_lshlrev_b32 {v(t+6)}, 12, {v(t)}', f'v_lshl_add_u32 {v(t+6)}, {v(t+2)}, 8, {v(t+6)}', f'v_add_u32 {v(t+6)}, 0x20000, {v(t+6)}']
    for ks in range(4):
        L += [f'v_xor_b32 {v(MK)}, {4*ks}, {v(t+5)}', f'v_lshl_add_u32 {v(KA+ks)}, {v(MK)}, 4, {v(t+4)}',
              f'v_lshl_add_u32 {v(QA+ks)}, {v(MK)}, 4, {v(t+6)}', f'v_add_u32 {v(KA0+ks)}, {s(sSL)}, {v(KA+ks)}']
    L += [f'v_bfe_u32 {v(t+5)}, {v(t+1)}, 2, 2',
          f'v_lshl_add_u32 {v(t+4)}, {v(t+3)}, 4, {v(t+5)}', f'v_lshlrev_b32 {v(t+4)}, 8, {v(t+4)}',
          f'v_and_b32 {v(MK)}, 3, {v(t+1)}', f'v_lshl_add_u32 {v(t+4)}, {v(MK)}, 3, {v(t+4)}', f'v_add_u32 {v(t+4)}, 0x10000, {v(t+4)}',
          f'v_lshl_add_u32 {v(t+5)}, {v(t+3)}, 2, {v(t+5)}', f'v_and_b32 {v(t+5)}, 7, {v(t+5)}']
    for db in range(8):
        L += [f'v_xor_b32 {v(VA+db)}, {db}, {v(t+5)}', f'v_lshl_add_u32 {v(VA+db)}, {v(VA+db)}, 5, {v(t+4)}',
              f'v_add_u32 {v(VA0+db)}, {s(sSL)}, {v(VA+db)}']
    L += [f'v_lshlrev_b32 {v(t+4)}, 14, {v(t)}', f'v_lshl_add_u32 {v(t+4)}, {v(t+2)}, 8, {v(t+4)}',
          f'v_and_b32 {v(t+5)}, 1, {v(t+3)}', f'v_lshl_add_u32 {v(t+4)}, {v(t+5)}, 5, {v(t+4)}',
          f'v_lshrrev_b32 {v(t+5)}, 1, {v(t+3)}', f'v_lshl_add_u32 {v(OV)}, {v(t+5)}, 4, {v(t+4)}',
          f'v_and_b32 {v(t+4)}, 1, {v(t+1)}', f'v_mov_b32 {v(t+5)}, 0xaaaaaaaa',
          f'v_mul_lo_u32 {v(t+4)}, {v(t+4)}, {v(t+5)}', f'v_or_b32 {v(IDX)}, 0x44444444, {v(t+4)}', f'v_mov_b32 {v(t+5)}, 0x3f803f80']
    L += [f'v_accvgpr_write_b32 {a(aONE+i)}, {v(t+5)}' for i in range(4)]
    L += [f'v_lshlrev_b32 {v(t+4)}, 2, {v(t+3)}', f'v_mov_b32 {v(t+5)}, {NEG:#x}']
    for r in range(4):
        L += [f'v_add_u32 {v(t+6)}, {r}, {v(t+4)}', f'v_cmp_lt_u32 vcc, {s(sT)}, {v(t+6)}', 's_nop 1',
              f'v_cndmask_b32 {v(MK+r)}, 0, {v(t+5)}, vcc']
    L += btprep(1) + btprep(2) + btprep(3)
    L += [f'v_mov_b32 {v(O0+i)}, 0' for i in range(64, 128)]
    L += [f'v_accvgpr_write_b32 {a(aL+i)}, 0' for i in range(16)]
    groups = {'q2': qload(2), 'q3': qload(3), 'v0': dma4(1, 0), 'k1': dma4(0, 1), 'v1': dma4(1, 1), 'k2': dma4(0, 2), 'v2': dma4(1, 2), 'k3': dma4(0, 3)}
    plan = {0: dict(A=['q2'], B=['v0'], C=['q3'], D=['k1', 'v1'], E=['k2'], F=['v2', 'k3']),
            1: dict(A=['q2'], B=['v0'], C=['q3'], D=['k1'], E2=['v1', 'k2'], G=['v2', 'k3']),
            2: dict(A=['q2', 'v0'], C=['q3', 'k1'], D=['v1'], E2=['k2'], G=['v2', 'k3']),
            3: dict(A0=['v0'], A=['q2'], C=['q3', 'k1'], D=['v1', 'k2'], G=['v2', 'k3'])}[OPT['po']]
    at = lambda p_: [x for g_ in plan.get(p_, []) for x in groups[g_]]
    L += at('A0') + ['WAITVM ld Q0'] + stamp(2) + qread(0) + at('A') + scale_q(0) + ['WAITVM ld BT']
    for i in range(4):
        L.append(f'v_lshlrev_b32 {v(BT+i)}, 16, {v(BT+i)}')
        if i < 3: L.append(f'v_or_b32 {v(BT+i)}, {(3-i)*1024}, {v(BT+i)}')
    L += ['s_nop 0'] + [f'v_readlane_b32 {s(SETS[k]+i)}, {v(BT+i)}, {s(sT+1+k)}' for k in range(2) for i in range(4)]
    L += ['WAITVM dma K 0', 's_barrier']
    L += [i_kread(kb, ks, 0, '0', addr=KA0) for kb in range(4) for ks in range(4)] + at('B')
    P = Prog()
    for name, mf in (('q0', qkg(0)), ('q1', qkg(1)), ('q2', qkg(2)), ('p0', pvg(0, first=True)), ('q3', qkg(3)), ('p1', pvg(1, first=True))): P.group(name, mf)
    P.done(); p = P.pos
    P.softmax('s0', p['q0'], 0, 0, dlcap=p['q1'] + 4); P.softmax('s1', p['q1'], 1, 1, dlcap=p['q2'] + 4)
    P.softmax('s2', p['q2'], 2, 2, dlcap=p['q3'] - 1); P.softmax('s3', p['q3'], 3, 3, skip=LEFT3)
    P.vload('v', p['p0'], 0, '0', addr=VA0, rel0=p['q2'])
    kb0 = p['p1'] - 1
    P.kload('k', P.n, 0, '1', addr=T0, rel0=kb0 + 1, dlmax=P.n - 2)
    g = P.gaps
    todo = schedule(P.n, P.ops, g, overflow=True)
    assert not todo
    g[p['q1'] - 1].post += ['WAITVM ld Q1'] + qread(1) + at('C') + scale_q(1) + ['s_nop 0']
    g[p['q2'] - 1].post += ['WAITVM ld Q2'] + qread(2) + at('D') + scale_q(2) + ['WAITVM dma V 0', 's_barrier']
    g[p['q3'] - 1].post += ['WAITVM ld Q3'] + stamp(3) + qread(3) + at('E') + scale_q(3) + at('E2') + \
                           [f'v_add_u32 {v(T0+ks)}, {s(sSL+1)}, {v(KA+ks)}' for ks in range(4)]
    g[kb0].post += at('F') + ['WAITVM dma K 1', 's_barrier']
    g[P.n - 1].post += at('G') + [HEADWAIT]
    L += emit(P.mf, g)
    L = resolve_waitvm(L)
    L, pend = add_lgkm_waits(L)
    L += stamp(4)
    L += [f's_cmp_eq_u32 {s(sE)}, 2', 's_cbranch_scc1 L_b3', f's_cmp_eq_u32 {s(sE)}, 1', 's_cbranch_scc1 L_b2',
          f's_cmp_eq_u32 {s(sE)}, 3', 's_cbranch_scc1 L_b0', f's_cmp_eq_u32 {s(sN)}, 4', 's_cbranch_scc1 L_tail']
    return L, pend

def slow():
    t = T0
    L = ['L_slow:', 's_waitcnt vmcnt(0) lgkmcnt(0)']
    M, LS, KV, VD0, VD1 = KA, BT, DK, DV, IDX
    L += [f'v_mbcnt_lo_u32_b32 {v(t+1)}, -1, 0', f'v_mbcnt_hi_u32_b32 {v(t+1)}, -1, {v(t+1)}',
          f'v_and_b32 {v(t+2)}, 15, {v(t+1)}', f'v_lshrrev_b32 {v(t+3)}, 4, {v(t+1)}']
    L += [f's_lshl_b32 {s(sT)}, {s(sW)}, 14', f'v_lshlrev_b32 {v(t+4)}, 8, {v(t+2)}', f'v_lshl_add_u32 {v(t+4)}, {v(t+3)}, 4, {v(t+4)}',
          f'v_add_u32 {v(t+4)}, {s(sT)}, {v(t+4)}']
    L += [f'buffer_load_dwordx4 {v(S0+16*q+4*ks,4)}, {v(t+4)}, s[4:7], {"0" if q == 0 else s(sQ1)} offen offset:{64*ks}' for q in range(2) for ks in range(4)]
    L += [f'v_lshlrev_b32 {v(t+4)}, 12, {v(t+2)}', f'v_lshl_add_u32 {v(KV)}, {v(t+3)}, 4, {v(t+4)}', f'v_add_u32 {v(KV)}, 3072, {v(KV)}',
          f'v_lshlrev_b32 {v(t+4)}, 1, {v(t+3)}', f'v_xor_b32 {v(t+4)}, {v(t+2)}, {v(t+4)}',
          f'v_lshlrev_b32 {v(t+4)}, 4, {v(t+4)}', f'v_lshl_add_u32 {v(VD0)}, {v(t+3)}, 12, {v(t+4)}', f'v_add_u32 {v(VD0)}, 3072, {v(VD0)}',
          f'v_xor_b32 {v(t+4)}, 0x80, {v(t+4)}', f'v_lshl_add_u32 {v(VD1)}, {v(t+3)}, 12, {v(t+4)}', f'v_add_u32 {v(VD1)}, {3072 + 16384}, {v(VD1)}',
          f's_lshl_b32 {s(sMV)}, {s(sW)}, 13', f's_add_u32 {s(sMV)}, {s(sMV)}, 0x20000',
          f'v_bfe_u32 {v(t+5)}, {v(t+1)}, 2, 2', f'v_lshl_add_u32 {v(t+5)}, {v(t+3)}, 2, {v(t+5)}',
          f'v_lshlrev_b32 {v(t+4)}, 8, {v(t+5)}', f'v_and_b32 {v(t+6)}, 3, {v(t+1)}',
          f'v_lshl_add_u32 {v(t+4)}, {v(t+6)}, 3, {v(t+4)}', f'v_add_u32 {v(t+4)}, {s(sMV)}, {v(t+4)}', f'v_and_b32 {v(t+5)}, 7, {v(t+5)}']
    for db in range(8):
        L += [f'v_xor_b32 {v(VA+db)}, {db}, {v(t+5)}', f'v_lshl_add_u32 {v(VA+db)}, {v(VA+db)}, 5, {v(t+4)}']
    L += [f'v_lshlrev_b32 {v(MK)}, 2, {v(t+3)}', f'v_mov_b32 {v(MK+1)}, {NEG:#x}']
    L += [f'v_mov_b32 {v(O0+i)}, 0' for i in range(128)]
    L += [f'v_mov_b32 {v(M+q)}, 0xff7fffff' for q in range(4)] + [f'v_mov_b32 {v(LS+q)}, 0' for q in range(4)]
    L += ['s_waitcnt vmcnt(0)'] + scale_q(0) + scale_q(1)
    L += [f's_mov_b32 {s(sIT)}, 0', 'L_slow_loop:',
          f's_lshr_b32 {s(sT)}, {s(sIT)}, 2',
          f's_load_dwordx2 s[40:41], s[30:31], {s(sT)}', 's_waitcnt lgkmcnt(0)',
          's_lshl_b32 s40, s40, 16', 's_lshl_b32 s41, s41, 16']
    for kb in range(2):
        for ks in range(4):
            L.append(f'buffer_load_dwordx4 {a(aK+16*kb+4*ks,4)}, {v(KV)}, s[8:11], s{40+kb} offen offset:{64*ks}')
    for b in range(2):
        for p in range(4):
            L += [f's_add_u32 m0, {s(sMV)}, {b*4096 + p*1024}', f's_add_u32 s42, s{40+b}, {(p//2)*32768}',
                  f'buffer_load_dwordx4 {v(VD1 if p & 1 else VD0)}, s[12:15], s42 offen lds']
    L += ['s_waitcnt vmcnt(0)']
    for db in range(8):
        for tt in range(2):
            L.append(f'ds_read_b64_tr_b16 {a(aV+8*db+2*tt,2)}, {v(VA+db)} offset:{tt*4096}')
    L += [f's_sub_u32 {s(sT)}, {s(sCLT)}, {s(sIT)}', 's_waitcnt lgkmcnt(0)']
    for q in range(4):
        S = S0 + 16*q
        L += qkg(q, 2) + ['s_nop 7']
        for e in range(8):
            L += [f'v_add_u32 {v(t)}, {16*(e//4) + e%4}, {v(MK)}', f'v_cmp_gt_u32 vcc, {s(sT)}, {v(t)}', 's_nop 1',
                  f'v_cndmask_b32 {v(S+e)}, {v(MK+1)}, {v(S+e)}, vcc']
        L += [f'v_max3_f32 {v(t)}, {v(S)}, {v(S+1)}, {v(S+2)}', f'v_max3_f32 {v(t)}, {v(t)}, {v(S+3)}, {v(S+4)}',
              f'v_max3_f32 {v(t)}, {v(t)}, {v(S+5)}, {v(S+6)}', f'v_max3_f32 {v(t)}, {v(t)}, {v(S+7)}, {v(M+q)}',
              f'v_mov_b32 {v(t+1)}, {v(t)}', 's_nop 1', f'v_permlane16_swap_b32 {v(t)}, {v(t+1)}', f'v_max_f32 {v(t)}, {v(t)}, {v(t+1)}',
              f'v_mov_b32 {v(t+1)}, {v(t)}', 's_nop 1', f'v_permlane32_swap_b32 {v(t)}, {v(t+1)}', f'v_max_f32 {v(t)}, {v(t)}, {v(t+1)}',
              f'v_sub_f32 {v(t+1)}, {v(M+q)}, {v(t)}', f'v_exp_f32 {v(t+1)}, {v(t+1)}', f'v_mov_b32 {v(M+q)}, {v(t)}']
        L += [f'v_sub_f32 {v(S+e)}, {v(S+e)}, {v(t)}' for e in range(8)]
        L += [f'v_exp_f32 {v(S+e)}, {v(S+e)}' for e in range(8)]
        L += [f'v_mul_f32 {v(LS+q)}, {v(LS+q)}, {v(t+1)}']
        L += [f'v_mul_f32 {v(O0+32*q+i)}, {v(O0+32*q+i)}, {v(t+1)}' for i in range(32)]
        L += [i_cvt(q, q, i) for i in range(4)]
        for i in range(4):
            L += [f'v_lshlrev_b32 {v(t)}, 16, {v(P0+8*q+i)}', f'v_and_b32 {v(t+1)}, 0xffff0000, {v(P0+8*q+i)}',
                  f'v_add_f32 {v(LS+q)}, {v(LS+q)}, {v(t)}', f'v_add_f32 {v(LS+q)}, {v(LS+q)}, {v(t+1)}']
        L += [pv(q, db, 0) for db in range(8)]
    L += [f's_add_u32 {s(sIT)}, {s(sIT)}, 32', f's_cmp_lt_u32 {s(sIT)}, {s(sCLT)}', 's_cbranch_scc1 L_slow_loop', 's_nop 7']
    for q in range(4):
        o = O0 + 32*q
        L += [f'v_mov_b32 {v(t)}, {v(LS+q)}', f'v_mov_b32 {v(t+1)}, {v(LS+q)}', 's_nop 1',
              f'v_permlane16_swap_b32 {v(t)}, {v(t+1)}', f'v_add_f32 {v(t)}, {v(t)}, {v(t+1)}',
              f'v_mov_b32 {v(t+1)}, {v(t)}', 's_nop 1', f'v_permlane32_swap_b32 {v(t)}, {v(t+1)}', f'v_add_f32 {v(t)}, {v(t)}, {v(t+1)}',
              f'v_rcp_f32 {v(t)}, {v(t)}', 's_nop 0']
        L += [f'v_mul_f32 {v(o+i)}, {v(o+i)}, {v(t)}' for i in range(32)]
        for u in range(4):
            L += [f'v_cvt_pk_bf16_f32 {v(o+8*u+i)}, {v(o+8*u+2*i)}, {v(o+8*u+2*i+1)}' for i in range(4)]
        for u in range(4):
            L += [f'v_permlane16_swap_b32 {v(o+8*u+i)}, {v(o+8*u+2+i)}' for i in range(2)]
        for u in range(4):
            L.append(f'buffer_store_dwordx4 {v(o+8*u,4)}, {v(OV)}, s[16:19], {"0" if q == 0 else s(sQ1+q-1)} offen offset:{64*u}')
    return L + ['s_endpgm']

NFIN = 0
def finish():
    global NFIN
    NFIN += 1
    L = [f'v_cmp_lt_u32 vcc, 0x28000000, {v(T0+4)}' if not OPT.get('abl') else 's_mov_b64 vcc, 0',
         f's_cmp_lg_u32 {s(sFORCE)}, 0', 's_cbranch_scc1 L_slow', 's_nop 3', 's_cbranch_vccnz L_slow']
    if OPT['stamp']:
        L += [f's_memtime s[40:41]', 's_waitcnt vmcnt(0)', 's_memtime s[42:43]', f's_memrealtime s[44:45]', 's_waitcnt lgkmcnt(0)']
        st = lambda i: sST + 2*i if i < 6 else 40 + 2*(i - 6)
        if OPT.get('fixed'):
            L += [f's_mov_b32 {s(sT+4)}, {OPT["fixed"]}']
            if OPT.get('phase'):
                L += [f's_sub_u32 {s(sT+5)}, {s(st(OPT["phase"]))}, {s(st(OPT.get("phase0", 0)))}']
                if OPT.get('neg'): L += [f's_sub_u32 {s(sT+5)}, {OPT["neg"]}, {s(sT+5)}']
                L += [f's_lshr_b32 {s(sT+5)}, {s(sT+5)}, {OPT.get("sh", 3)}', f's_add_u32 {s(sT+4)}, {s(sT+4)}, {s(sT+5)}']
            return L + [f'L_spin{NFIN}:', f's_memrealtime {s(sT,2)}', 's_waitcnt lgkmcnt(0)', f's_sub_u32 {s(sT)}, {s(sT)}, s100',
                        f's_cmp_lt_u32 {s(sT)}, {s(sT+4)}', f's_cbranch_scc1 L_spin{NFIN}', 's_endpgm']
        L += ['s_load_dwordx2 s[24:25], s[0:1], 56', 's_waitcnt lgkmcnt(0)', 's_mov_b32 s26, 0x100000', 's_mov_b32 s27, 0x20000']
        L += [f'v_mov_b32 v{i}, {s(st(i))}' for i in range(8)]
        L += ['v_mov_b32 v8, s42', 'v_mov_b32 v9, s44', 'v_mov_b32 v10, s100', 'v_mov_b32 v11, 0',
              f's_lshl_b32 {s(sT)}, s2, 2', f's_add_u32 {s(sT)}, {s(sT)}, {s(sW)}', f's_lshl_b32 {s(sT)}, {s(sT)}, 6',
              'v_mov_b32 v12, 0', 's_mov_b64 exec, 1',
              f'buffer_store_dwordx4 v[0:3], v12, s[24:27], {s(sT)} offen',
              f'buffer_store_dwordx4 v[4:7], v12, s[24:27], {s(sT)} offen offset:16',
              f'buffer_store_dwordx4 v[8:11], v12, s[24:27], {s(sT)} offen offset:32']
    return L + ['s_endpgm']

def main():
    pro, pend0 = prologue()
    loop, pend = loop_code()
    assert [x[0] for x in pend0] == [x[0] for x in pend], (pend0, pend)
    L = [f'{NAME}:'] + pro + loop
    L += ['L_tail:'] + stamp(5) + [f's_cmp_gt_u32 {s(sNKB)}, 1', 's_cbranch_scc1 L_tail234']
    L += tail(1, pend) + finish() + ['L_pfend:']
    L += ['L_tail234:', f's_cmp_eq_u32 {s(sNKB)}, 3', 's_cbranch_scc1 L_tail3', f's_cmp_eq_u32 {s(sNKB)}, 4', 's_cbranch_scc1 L_tail4']
    L += tail(2, pend) + finish() + ['L_tail3:'] + tail(3, pend) + finish() + ['L_tail4:'] + tail(4, pend) + finish()
    L += slow() + ['L_end:', 's_endpgm']
    L, nn = fix_hazards(L, verbose=OPT.get('verbose', 0))
    print('nop states inserted:', nn, ' leftovers:', sorted(LEFT3))
    hdr = open('standalone__paged_block_table_kv_pagedattention__prompt.s.ref').read().split('; Override')[0]
    txt = hdr + '; Generated by gen/gen2.py (hand-written generator).\n'
    txt += '; @launch grid=(256,1,1) block=(256,1,1) lds=163840\n'
    txt += f'.amdgcn_target "amdgcn-amd-amdhsa--gfx950"\n.text\n.globl {NAME}\n.p2align 8\n.type {NAME},@function\n'
    for l in L: txt += (l if l.endswith(':') or l.startswith(('.', ';')) else '    ' + l) + '\n'
    txt += f'''.section .rodata,"a"
.p2align 6
.amdhsa_kernel {NAME}
  .amdhsa_next_free_vgpr 504
  .amdhsa_next_free_sgpr 102
  .amdhsa_accum_offset 256
  .amdhsa_group_segment_fixed_size 0
  .amdhsa_kernarg_size 64
  .amdhsa_user_sgpr_count 2
  .amdhsa_user_sgpr_kernarg_segment_ptr 1
  .amdhsa_system_sgpr_workgroup_id_x 1
.end_amdhsa_kernel
'''
    open(sys.argv[1], 'w').write(txt)
    if OPT.get('show'):
        for g in range(NG): print(g, PAT[g])
main()
```

```python
import sys
from asmcheck import parse, fix_hazards, Ins

NAME = 'standalone__paged_block_table_kv_pagedattention__prompt_kernel'
FL = {0: '', 1: ' nt', 2: ' sc1', 3: ' sc0 sc1', 4: ' sc1 nt', 5: ' sc0 sc1 nt', 6: ' sc0', 7: ' sc0 nt'}
OPT = dict(po=0, cpf=1, qf=0, kf=0, of=2, delta=9, stamp=0, lat=8, forceslow=0, tord=1, epri=12)
for a_ in sys.argv[2:]:
    k_, v_ = a_.split('='); OPT[k_] = int(v_, 0)

S0, P0, KA, VA, BT, DK, DV, IDX, OV, MK, T0, O0 = 0, 64, 96, 100, 108, 112, 113, 114, 115, 116, 120, 128
QD, QA = P0 + 24, P0 + 28
KA0, VA0 = O0, O0 + 32
aQ, aK, aV, aL, aONE, aX = 0, 64, 128, 192, 208, 212
sW, sCL, sN, sIT, sLN = 3, 36, 37, 38, 39
SETS = (56, 60)
sMK, sMV, sC, sC2, sNKB, sE, sFORCE, sCLT = 64, 65, 66, 67, 68, 69, 70, 71
sQ1 = 72
sSL = 96
sT = 78
sST = 84
KBYTES = 132 * 65536
LAT = OPT['lat']
NEG = 0xf149f2ca
INF = 10 ** 6
MINCL = 193

def v(b, n=1): return f'v{b}' if n == 1 else f'v[{b}:{b+n-1}]'
def a(b, n=1): return f'a{b}' if n == 1 else f'a[{b}:{b+n-1}]'
def s(b, n=1): return f's{b}' if n == 1 else f's[{b}:{b+n-1}]'
def VR(b, n=1): return {('v', i) for i in range(b, b + n)}
def AR(b, n=1): return {('a', i) for i in range(b, b + n)}

MF = 'v_mfma_f32_16x16x32_bf16'
def qk(q, kb, ks, sb=None, kbase=aK, mask=False):
    D = v(S0 + 16*(q if sb is None else sb) + 4*kb, 4)
    C = D if ks else (v(MK, 4) if mask else '0')
    return f'{MF} {D}, {a(kbase+16*kb+4*ks,4)}, {a(aQ+16*q+4*ks,4)}, {C}'
def vfrag(db, ks, vbase): return aV + (2*db+ks)*4 if vbase is None else vbase + 4*db
def pv(q, db, ks, pb=None, vbase=None, first=False):
    D = v(O0 + 32*q + 4*db, 4)
    return f'{MF} {D}, {a(vfrag(db, ks, vbase),4)}, {v(P0+8*(q if pb is None else pb)+4*ks,4)}, {"0" if first and ks == 0 else D}'
def sm(q, pb=None):
    return f'v_smfmac_f32_16x16x64_bf16 {a(aL+4*q,4)}, {a(aONE,4)}, {v(P0+8*(q if pb is None else pb),8)}, {v(IDX)}'
def qkg(q, nkb=4, sb=None, kbase=aK, mask=False):
    return [qk(q, kb, ks, sb, kbase, mask and kb == nkb-1) for kb in range(nkb) for ks in range(4)]
def pvg(q, pb=None, first=False): return [pv(q, db, ks, pb, None, first) for db in range(8) for ks in range(2)] + [sm(q, pb)]

def i_exp(sb, n): return f'v_exp_f32 {v(S0+16*sb+n)}, {v(S0+16*sb+n)}'
def i_cvt(sb, pb, i): return f'v_cvt_pk_bf16_f32 {v(P0+8*pb+i)}, {v(S0+16*sb+2*i)}, {v(S0+16*sb+2*i+1)}'
def i_kread(kb, ks, slot, tag, kbase=aK, addr=KA):
    return f'ds_read_b128 {a(kbase+16*kb+4*ks,4)}, {v(addr+ks)} offset:{slot*16384+kb*1024}'
def i_vread(db, ks, t, slot, tag, vbase=None, addr=VA):
    return f'ds_read_b64_tr_b16 {a(vfrag(db, ks, vbase)+2*t,2)}, {v(addr+db)} offset:{slot*16384+(2*ks+t)*1024}'
def i_dma(isv, i, soff, tag):
    return f'buffer_load_dwordx4 {v(DV if isv else DK)}, {s(12 if isv else 8,4)}, {s(soff+i)} offen offset:{i*1024}{FL[OPT["kf"]]} lds'
def i_m0(isv, slot): return f's_add_u32 m0, {s(sMV if isv else sMK)}, {slot*16384}'
def stamp(i): return [f's_memtime {s(sST+2*i,2)}'] if OPT['stamp'] else []

class Op:
    def __init__(self, key, cls, rel, dl, text, deps=(), fifo=None, pri=None):
        self.key, self.cls, self.rel, self.dl, self.text, self.deps, self.fifo = key, cls, rel, dl, text, list(deps), fifo
        self.pri = dl if pri is None else pri
        self.gap = None
class Gap:
    def __init__(self): self.sc, self.mem, self.valu, self.post = [], [], [], []; self.block = None

def schedule(ngaps, ops, gaps, overflow=False):
    byk = {o.key: o for o in ops}
    todo = list(ops)
    def ready(o, g):
        if o.rel > g: return False
        for d in o.deps:
            p = byk.get(d)
            if p is not None and (p.gap is None or p.gap >= g): return False
        if o.fifo is not None:
            p = byk[o.fifo]
            if p.gap is None or (o.cls == 'D' and p.gap >= g): return False
        return True
    def put(o, g):
        o.gap = g; todo.remove(o)
        (gaps[g].mem if o.cls in 'DRT' else gaps[g].valu).append(o)
    for g in range(ngaps):
        if gaps[g].block != 'all':
            cand = sorted((o for o in todo if ready(o, g)), key=lambda o: o.pri)
            if gaps[g].block == 'half': cand = [o for o in cand if o.cls == 'H'][:1]
            if cand:
                top = cand[0]
                halves = [o for o in cand if o.cls in 'RTH']
                full = [o for o in cand if o.cls in 'ED']
                if top.cls in 'RTH' and len(halves) == 1 and full and top.pri - g > 6 and top.fifo is None: top = full[0]
                put(top, g)
                if top.cls in 'RTH' and gaps[g].block != 'half':
                    c2 = sorted((o for o in todo if o.cls in 'RTH' and ready(o, g) and not (o.cls == 'R' and top.cls == 'R')), key=lambda o: o.pri)
                    if c2:
                        pick = c2[0]
                        if top.cls in 'RT' and pick.cls in 'RT' and pick.pri - g > 8:
                            h = [o for o in c2 if o.cls == 'H']
                            if h: pick = h[0]
                        put(pick, g)
        late = [o for o in todo if o.dl <= g]
        if late:
            if not overflow: raise RuntimeError(f'deadline miss at gap {g}: {[o.key for o in late]}')
            def force(o):
                if o.gap is not None: return
                for d in o.deps + ([o.fifo] if o.fifo else []):
                    if d in byk: force(byk[d])
                assert o.rel <= g, (o.key, o.rel, g)
                o.gap = g; todo.remove(o); gaps[g].post.append(o.text)
            for o in sorted(late, key=lambda o: ({'R': 0, 'T': 0, 'D': 0, 'E': 1, 'H': 2}[o.cls], o.dl)): force(o)
    return todo

def emit(mf, gaps):
    out = []
    for m, g in zip(mf, gaps):
        out.append(m)
        sc = list(g.sc)
        if any(o.text.startswith('buffer_load') for o in g.mem) and not sc: sc = ['s_nop 0']
        out += sc + [o.text for o in g.mem] + [o.text for o in g.valu] + g.post
    return out

def add_lgkm_waits(lines, pre_ds=()):
    q = [(set(r), -age) for r, age in pre_ds]
    out = []; gap = -1; lastm = None; nvis = None
    for x in parse(lines):
        if x.cls == 'mfma':
            needed = [i for i, (r, g) in enumerate(q) if r & x.r]
            if needed:
                k = max(needed)
                if lastm is not None and k < nvis:
                    while k + 1 < nvis and q[k + 1][1] <= gap - LAT: k += 1
                    n = min(15, nvis - 1 - k)
                    if out[lastm:lastm+1] == ['s_nop 0']: out[lastm] = f's_waitcnt lgkmcnt({n})'
                    else: out.insert(lastm, f's_waitcnt lgkmcnt({n})')
                    k = nvis - 1 - n
                else:
                    n = min(15, len(q) - 1 - k)
                    out.append(f's_waitcnt lgkmcnt({n})')
                    k = len(q) - 1 - n
                q = q[k + 1:]
            gap += 1
            out.append(x.text); lastm = len(out); nvis = len(q)
        else:
            if x.cls == 'ds': q.append((set(x.w), gap))
            if x.cls == 'wait' and x.lgkm is not None:
                drop = max(0, len(q) - x.lgkm); q = q[drop:]
                if nvis is not None: nvis = max(0, nvis - drop)
            out.append(x.text)
    return out, [(r, gap - g) for r, g in q]

class Prog:
    def __init__(self): self.mf = []; self.ops = []; self.pos = {}
    def group(self, name, mf): self.pos[name] = len(self.mf); self.mf += mf
    def done(self):
        self.ins = [Ins(m) for m in self.mf]; self.n = len(self.mf); self.gaps = [Gap() for _ in self.mf]
    def first_read(self, R, lo): return next((i for i in range(lo, self.n) if R & self.ins[i].srcAB), INF)
    def last_read(self, R, hi): return next((i for i in range(min(hi, self.n) - 1, -1, -1) if R & self.ins[i].srcAB), -1)
    def last_write(self, R, hi): return next((i for i in range(min(hi, self.n) - 1, -1, -1) if R & self.ins[i].w), -1)
    def next_write(self, R, lo): return next((i for i in range(lo, self.n) if R & self.ins[i].w), INF)
    def kload(self, key, use, slot, tag, nkb=4, kbase=aK, addr=KA, rel0=0, dlmax=None):
        for f in range(4 * nkb):
            R = AR(kbase + 4*f, 4)
            u = self.first_read(R, use) if use < self.n else self.n + f
            rel = max(rel0, self.last_read(R, u) + 1)
            dl = u - LAT if dlmax is None else min(u - LAT, dlmax - (4*nkb - 1 - f))
            self.ops.append(Op((key, f), 'R', rel, max(rel, dl), i_kread(f//4, f%4, slot, tag, kbase, addr), deps=[(key, f-1)] if f else []))
    def vload(self, key, use, slot, tag, nks=2, vbase=None, addr=VA, rel0=0):
        for db in range(8):
            for ks in range(nks):
                R = AR(vfrag(db, ks, vbase), 4)
                u = self.first_read(R, use)
                rel = max(rel0, self.last_read(R, u) + 1)
                for t in range(2):
                    self.ops.append(Op((key, db, ks, t), 'T', rel, max(rel, u - LAT - (1 - t)), i_vread(db, ks, t, slot, tag, vbase, addr)))
    def softmax(self, key, at, sb, pb, nkb=4, only=None, skip=(), dlcap=None, use=0):
        end = at + 4*nkb if at >= 0 else 0
        u = self.first_read(VR(P0 + 8*pb, 8), max(end, use))
        prel = self.last_read(VR(P0 + 8*pb, 8), u) + 1
        cap = min(u - 3, self.next_write(VR(S0 + 16*sb, 16), end) - 1, self.n - 1 if dlcap is None else dlcap)
        n = 4 * nkb
        for e in range(n):
            if (only is not None and ('e', e) not in only) or ('e', e) in skip: continue
            rel = at + 4*(e//4) + 3 + 5 if at >= 0 else 0
            self.ops.append(Op((key, 'e', e), 'E', rel, max(rel, min(cap, cap - 1 - 2*(n - 1 - e))), i_exp(sb, e)))
        for i in range(2 * nkb):
            if (only is not None and ('c', i) not in only) or ('c', i) in skip: continue
            rel = max(prel, at + 4*(i//2) + 3 + 6 if at >= 0 else 0)
            self.ops.append(Op((key, 'c', i), 'H', rel, max(rel, min(cap, cap - (2*nkb - 1 - i))), i_cvt(sb, pb, i),
                               deps=[(key, 'e', 2*i), (key, 'e', 2*i+1)]))
            assert rel <= u - 1, (key, i, rel, u)
        if only is None:
            for i in range(2 * nkb, 8):
                self.ops.append(Op((key, 'z', i), 'H', prel, max(prel, u - 3), f'v_mov_b32 {v(P0+8*pb+i)}, 0'))

NG = 132
LOOP_MF = qkg(0) + pvg(2) + qkg(1) + pvg(3) + qkg(2) + pvg(0) + qkg(3) + pvg(1)
assert len(LOOP_MF) == NG
BARG = 47
DMAG = [10, 14, 18, 22, 26, 30, 34, 38]
RLG = [41, 43, 92, 96]

def steady():
    NT = 6
    ops = []
    gaps = [Gap() for _ in range(NG * (NT + 1))]
    for j in range(NT):
        b = NG * j
        for q in range(4):
            pvs = b + 82 + 33*q; qs = b + 33*q
            for e in range(16):
                g = qs + OPT['delta'] + 2*e
                ops.append(Op(('e', j, q, e), 'E', g, g, None))
            for i in range(8):
                ops.append(Op(('c', j, q, i), 'H', pvs - NG + 17, pvs - 3 - (7 - i), None, deps=[('e', j, q, 2*i), ('e', j, q, 2*i+1)]))
        for f in range(16):
            for t in range(2):
                ops.append(Op(('v', j, f//2, f%2, t), 'T', max(b + 50 + f, b + BARG + 1), b + 82 + f - LAT - (1 - t), None))
            ops.append(Op(('k', j, f//4, f%4), 'R', b + 100 + f, min(b + NG - 2 - (15 - f), b + NG + f - LAT), None,
                          deps=[('k', j, (f-1)//4, (f-1)%4)] if f else []))
        for i in range(4): ops.append(Op(('rl', j, i), 'E', b + RLG[i], b + RLG[i], None))
        for i in range(8): ops.append(Op(('d', j, i), 'D', b + DMAG[i], b + DMAG[i], None))
        gaps[b + BARG].block = 'all'
        gaps[b + NG - 1].block = 'half'
    schedule(NG * (NT + 1), ops, gaps)
    def pattern(j):
        return [[(o.key[0], o.key[1] - j) + o.key[2:] for o in gaps[NG*j + g].mem + gaps[NG*j + g].valu] for g in range(NG)]
    assert pattern(3) == pattern(4), 'no steady state'
    return pattern(3)
PAT = steady()
LEFT = {k for g in PAT for k in g if k[1] == -1}
assert all(k[0] in 'ec' and k[2] == 3 for k in LEFT), LEFT
LEFT3 = {(k[0], k[3]) for k in LEFT}
HEADWAIT = 's_waitcnt lgkmcnt(4)'

class Txt:
    def __init__(self, t): self.text = t

def body(sl):
    def text(k):
        if k[0] == 'e': return i_exp(k[2], k[3])
        if k[0] == 'c': return i_cvt(k[2], k[2], k[3])
        if k[0] == 'v': return i_vread(k[2], k[3], k[4], sl, '+0')
        if k[0] == 'k': return i_kread(k[2], k[3], (sl + 1) % 4, '+1')
        if k[0] == 'rl': return f'v_readlane_b32 {s(SETS[sl%2] + k[2])}, {v(BT+k[2])}, {s(sLN)}'
        if k[0] == 'd': return i_dma(1, k[2], SETS[sl % 2], '+2') if k[2] < 4 else i_dma(0, k[2] - 4, SETS[(sl + 1) % 2], '+3')
    gaps = [Gap() for _ in range(NG)]
    for g in range(NG):
        for k in PAT[g]: (gaps[g].mem if k[0] in 'vkd' else gaps[g].valu).append(Txt(text(k)))
    gaps[DMAG[0] - 2].sc.append(i_m0(1, (sl + 2) % 4))
    gaps[DMAG[4] - 2].sc.append(i_m0(0, (sl + 3) % 4))
    gaps[RLG[-1] + 2].sc.append(f's_add_u32 {s(sLN)}, {s(sLN)}, 1')
    gaps[BARG - 1].sc.append('s_waitcnt vmcnt(16)')
    gaps[BARG].sc.append('s_barrier')
    if sl == 0: gaps[NG - 3].sc.append(f's_sub_u32 {s(sIT)}, {s(sIT)}, 1')
    gaps[NG - 2].sc.append(HEADWAIT)
    lines = emit(LOOP_MF, gaps)
    ab = OPT.get('abl', 0)
    if ab & 1: lines = [l for l in lines if not l.startswith('buffer_load')]
    if ab & 2: lines = [l for l in lines if not l.startswith(('s_barrier', 's_waitcnt vmcnt'))]
    if ab & 32: lines = [l for l in lines if not l.startswith('s_barrier')]
    return lines

def loop_code():
    _, pend = add_lgkm_waits(body(1))
    out = ['.p2align 6']
    for sl in (1, 2, 3, 0):
        l, pend2 = add_lgkm_waits(body(sl), pend)
        assert [x[0] for x in pend2] == [x[0] for x in pend]
        out += [f'L_b{sl}:'] + l
    return out + ['s_cbranch_scc0 L_b1'], pend

def epi_list(q, first):
    t = T0 + 2 * (q & 1)
    o = O0 + 32*q
    L = [('H', f'v_accvgpr_read_b32 {v(t)}, {a(aL+4*q)}', -1),
         ('H', f'v_accvgpr_read_b32 {v(t+1)}, {a(aL+4*q+1)}', -1),
         ('H', f'v_add_f32 {v(t)}, {v(t)}, {v(t+1)}', -1),
         ('E', f'v_rcp_f32 {v(t+1)}, {v(t)}', -1),
         ('H', f'v_subrev_u32 {v(t)}, 0x2b800000, {v(t)}', -1),
         ('H', f'v_mov_b32 {v(T0+4)}, {v(t)}' if first else f'v_max_u32 {v(T0+4)}, {v(T0+4)}, {v(t)}', -1)]
    def muls(u): return [('M', (o + 8*u + i, t + 1), u) for i in range(8)]
    def cvts(u): return [('H', f'v_cvt_pk_bf16_f32 {v(o+8*u+i)}, {v(o+8*u+2*i)}, {v(o+8*u+2*i+1)}', u) for i in range(4)]
    def swaps(u): return [('H', f'v_permlane16_swap_b32 {v(o+8*u+i)}, {v(o+8*u+2+i)}', u) for i in range(2)]
    def store(u):
        return [('D', f'buffer_store_dwordx4 {v(o+8*u,4)}, {v(OV)}, s[16:19], {"0" if q == 0 else s(sQ1+q-1)} offen offset:{64*u}{FL[OPT.get(f"of{q}", OPT["of"])]}', u)]
    h = lambda l, a_, b_: l[a_:b_]
    L += muls(0) + cvts(0) + h(muls(1), 0, 2) + swaps(0) + store(0) + h(muls(1), 2, 8) + cvts(1) + h(muls(2), 0, 2) + swaps(1) + store(1) \
       + h(muls(2), 2, 8) + cvts(2) + h(muls(3), 0, 2) + swaps(2) + store(2) + h(muls(3), 2, 8) + cvts(3) + [('H', 's_nop 1', 3)] + swaps(3) + store(3)
    return L

def tail(nkb, pend):
    nks = 1 if nkb <= 2 else 2
    small = nkb <= 2
    vx = aX if small else None
    P = Prog()
    def final(q, items):
        return [sm(q, pb) for pb, vb, nk in items] + [pv(q, db, ks, pb, vb) for db in range(8) for pb, vb, nk in items for ks in range(nk)]
    G = P.group
    G('A1', qkg(0, sb=0)); G('A2', pvg(2)); G('A3', qkg(1, sb=1)); G('A4', pvg(3))
    G('A5', qkg(0, sb=2)); G('A6', qkg(1, sb=3)); G('A7', pvg(0, pb=0))
    if not small: G('A8', pvg(1, pb=1))
    G('A9a', qkg(0, nkb, sb=0, mask=True)); G('A9b', qkg(1, nkb, sb=1, mask=True))
    if small:
        G('A8', pvg(1, pb=1))
        G('A10', final(0, [(2, None, 2), (0, vx, 1)])); G('B1', qkg(2, sb=2)); G('A11', final(1, [(3, None, 2), (1, vx, 1)]))
        G('B2', qkg(3, sb=3)); G('B3', qkg(2, sb=0)); G('B4', pvg(2, pb=2))
        G('B7a', qkg(2, nkb, sb=2, kbase=aQ, mask=True)); G('B7b', qkg(3, nkb, sb=3, kbase=aQ, mask=True)); G('B5', pvg(3, pb=3))
        if OPT['tord']:
            G('B8', final(2, [(0, None, 2), (2, vx, 1)])); G('B6', qkg(3, sb=1))
            G('B9a', final(3, [(3, vx, 1)])); G('B9', final(3, [(1, None, 2)]))
        else:
            G('B6', qkg(3, sb=1))
            G('B8', final(2, [(0, None, 2), (2, vx, 1)])); G('B9', final(3, [(1, None, 2), (3, vx, 1)]))
    else:
        G('A10p', pvg(0, pb=2)); G('A11p', pvg(1, pb=3)); G('B1', qkg(2, sb=2))
        G('A10', final(0, [(0, None, 2)])); G('A11', final(1, [(1, None, 2)]))
        G('B2', qkg(3, sb=3)); G('B3', qkg(2, sb=0)); G('B4', pvg(2, pb=2)); G('B5', pvg(3, pb=3)); G('B6', qkg(3, sb=1))
        G('B8p', pvg(2, pb=0)); G('B7a', qkg(2, nkb, sb=2, mask=True)); G('B9p', pvg(3, pb=1)); G('B7b', qkg(3, nkb, sb=3, mask=True))
        G('B8', final(2, [(2, None, 2)])); G('B9', final(3, [(3, None, 2)]))
    P.done(); p = P.pos
    bar2 = p['A6'] + 10
    P.softmax('left', -1, 3, 3, only=LEFT3)
    P.softmax('s10', p['A1'], 0, 0); P.softmax('s11', p['A3'], 1, 1); P.softmax('s20', p['A5'], 2, 2); P.softmax('s21', p['A6'], 3, 3)
    P.softmax('s30', p['A9a'], 0, 0, nkb); P.softmax('s31', p['A9b'], 1, 1, nkb, use=p['A10'])
    P.softmax('s12', p['B1'], 2, 2); P.softmax('s13', p['B2'], 3, 3); P.softmax('s22', p['B3'], 0, 0); P.softmax('s23', p['B6'], 1, 1)
    P.softmax('s32', p['B7a'], 2, 2, nkb); P.softmax('s33', p['B7b'], 3, 3, nkb, use=p['B8'])
    P.kload('k2', p['A5'], 2, 'T2', rel0=2); P.vload('v1', p['A7'], 1, 'T1', rel0=2)
    P.kload('k3', p['A9a'], 3, 'T3', nkb, rel0=bar2 + 1)
    P.kload('k1b', p['B1'], 1, 'T1'); P.kload('k2b', p['B3'], 2, 'T2'); P.vload('v1b', p['B4'], 1, 'T1')
    if small:
        P.vload('v2', p['A10'], 2, 'T2', rel0=bar2 + 1); P.vload('v3', p['A10'], 3, 'T3', 1, vx, rel0=bar2 + 1)
        P.kload('k3b', p['B7a'], 3, 'T3', nkb, kbase=aQ); P.vload('v2b', p['B8'], 2, 'T2')
    else:
        P.vload('v2', p['A10p'], 2, 'T2', rel0=bar2 + 1); P.vload('v3', p['A10'], 3, 'T3')
        P.kload('k3b', p['B7a'], 3, 'T3', nkb); P.vload('v2b', p['B8p'], 2, 'T2'); P.vload('v3b', p['B8'], 3, 'T3')
    for i in range(4):
        P.ops.append(Op(('d', i), 'D', 10 + 4*i, 11 + 4*i, i_dma(1, i, SETS[1], 'T3')))
    prev = None
    for q in range(4):
        lrel = P.last_write(AR(aL + 4*q, 4), INF) + 5
        for i, (c, t, u) in enumerate(epi_list(q, q == 0)):
            rel = lrel if u < 0 else max(lrel, P.last_write(VR(O0 + 32*q + 8*u, 8), INF) + 5)
            o = Op(('ep', q, i), {'M': 'H'}.get(c, c), rel, INF, f'v_mul_f32 {v(t[0])}, {v(t[1])}, {v(t[0])}' if c == 'M' else t,
                   fifo=prev, pri=rel + OPT['epri'] + i // 2)
            o.raw = (c, t); prev = o.key; P.ops.append(o)
    g = P.gaps
    g[0].sc.append('s_waitcnt vmcnt(8)'); g[1].sc.append('s_barrier'); g[1].block = 'all'
    g[8].sc.append(i_m0(1, 3))
    g[bar2 - 1].sc.append('s_waitcnt vmcnt(0)'); g[bar2].sc.append('s_barrier'); g[bar2].block = 'all'
    todo = schedule(P.n, P.ops, g, overflow=True)
    lines = emit(P.mf, g)
    assert all(o.key[0] == 'ep' for o in todo), [o.key for o in todo]
    i = 0
    while i < len(todo):
        c, t = todo[i].raw
        if c == 'M' and i + 1 < len(todo) and todo[i+1].raw[0] == 'M' and t[0] % 2 == 0 and todo[i+1].raw[1][0] == t[0] + 1:
            lines.append(f'v_pk_mul_f32 {v(t[0],2)}, {v(t[0],2)}, {v(t[1]-1,2)} op_sel:[0,1] op_sel_hi:[1,1]'); i += 2
        else:
            lines.append(todo[i].text); i += 1
    lines, _ = add_lgkm_waits(lines, pend)
    return lines

def scale_q(q):
    out = []
    for h in range(0, 16, 4):
        for i in range(4):
            x = S0 + 16*q + h + i; t = T0 + 2*i
            out += [f'v_lshlrev_b32 {v(t)}, 16, {v(x)}', f'v_and_b32 {v(t+1)}, 0xffff0000, {v(x)}']
        out += [f'v_pk_mul_f32 {v(T0+2*i,2)}, {v(T0+2*i,2)}, {s(sC,2)}' for i in range(4)]
        out += [f'v_cvt_pk_bf16_f32 {v(S0+16*q+h+i)}, {v(T0+2*i)}, {v(T0+2*i+1)}' for i in range(4)]
        out += [f'v_accvgpr_write_b32 {a(aQ+16*q+h+i)}, {v(S0+16*q+h+i)}' for i in range(4)]
    return out
def qread(q): return [f'ds_read_b128 {v(S0+16*q+4*ks,4)}, {v(QA+ks)} offset:{(q&1)*0x4000}' for ks in range(4)] + ['s_waitcnt lgkmcnt(0)']
def qload(q):
    return [f's_add_u32 m0, {s(sMK)}, {0x20000 + (q&1)*0x4000}', 's_nop 0'] + \
           [f'buffer_load_dwordx4 {v(QD+p)}, s[4:7], {"0" if q == 0 else s(sQ1+q-1)} offen offset:{1024*p}{FL[OPT["qf"]]} lds ; ld Q{q}' for p in range(4)]
def dma4(isv, tile):
    return [f's_add_u32 m0, {s(sMV if isv else sMK)}, {s(sSL+tile)}', 's_nop 0'] + [i_dma(isv, i, 40 + 4*tile, tile) for i in range(4)]
def btprep(tile):
    out = []
    for i in range(4):
        r = 40 + 4*tile + i
        out.append(f's_lshl_b32 {s(r)}, {s(r)}, 16')
        if i < 3: out.append(f's_or_b32 {s(r)}, {s(r)}, {(3-i)*1024}')
    return out

def resolve_waitvm(lines):
    out = []; vm = []
    for l in lines:
        if l.startswith('WAITVM'):
            tags = l.split(None, 1)[1].split('|')
            last = max(i for i, t in enumerate(vm) if t in tags)
            out.append(f's_waitcnt vmcnt({len(vm) - 1 - last}) ; {tags}')
        else:
            if l.startswith(('buffer_', 'global_')): vm.append(l.split(';')[1].strip() if ';' in l else '')
            out.append(l)
    return out

def prologue():
    t = T0
    L = ['s_cmp_ge_u32 s2, 256', 's_cbranch_scc1 L_end',
         's_load_dwordx8 s[24:31], s[0:1], 0', 's_load_dwordx4 s[32:35], s[0:1], 32']
    if OPT['cpf']:
        L += ['s_getpc_b64 s[4:5]', 'L_pc:', 's_lshr_b32 s6, s2, 3', 's_lshl_b32 s6, s6, 10',
              'v_lshl_add_u32 v2, v0, 2, s6', 'v_min_u32 v2, L_pfend-L_pc-4, v2', 'v_mov_b32 v3, s5',
              'v_add_co_u32 v2, vcc, s4, v2', 's_nop 1', 'v_addc_co_u32 v3, vcc, 0, v3, vcc', f'global_load_dword {v(T0+7)}, v[2:3], off']
    L += stamp(0) + (['s_memrealtime s[100:101]'] if OPT['stamp'] else [])
    L += [f'v_lshrrev_b32 {v(t)}, 6, v0',
          f'v_and_b32 {v(t+2)}, 15, v0',
          f'v_readfirstlane_b32 {s(sW)}, {v(t)}',
          f'v_bfe_u32 {v(t+3)}, v0, 4, 2',
          f's_and_b32 {s(sT)}, s2, 7', f's_lshr_b32 {s(sT+1)}, s2, 3', f's_lshl_b32 {s(sT)}, {s(sT)}, 5',
          f's_add_u32 {s(sT)}, {s(sT)}, {s(sT+1)}', f's_lshl_b32 {s(sT+1)}, {s(sT)}, 16',
          f'v_lshlrev_b32 {v(t+4)}, 14, {v(t)}', f'v_lshl_add_u32 {v(t+4)}, {v(t+3)}, 8, {v(t+4)}', f'v_xor_b32 {v(t+5)}, {v(t+2)}, {v(t+3)}']
    for p in range(4):
        L += [f'v_xor_b32 {v(QD+p)}, {4*p}, {v(t+5)}', f'v_lshl_add_u32 {v(QD+p)}, {v(QD+p)}, 4, {v(t+4)}']
    L += [f's_lshl_b32 {s(sMK)}, {s(sW)}, 12', 's_mov_b32 s6, 0x10000', 's_mov_b32 s7, 0x20000',
          's_waitcnt lgkmcnt(0)',
          f's_load_dword {s(sCL)}, s[32:33], 0', 's_load_dwordx16 s[40:55], s[30:31], 0',
          f's_add_u32 s4, s24, {s(sT+1)}', 's_addc_u32 s5, s25, 0']
    L += qload(0)
    L += [f'v_and_b32 {v(t+1)}, 63, v0', f'v_lshlrev_b32 {v(t+6)}, 4, {v(t+1)}',
          's_mov_b32 s20, s30', 's_mov_b32 s21, s31', 's_movk_i32 s22, 0x200', 's_mov_b32 s23, 0x20000',
          f'buffer_load_dwordx4 {v(BT,4)}, {v(t+6)}, s[20:23], 0 offen ; ld BT',
          f's_lshr_b32 {s(sT)}, {s(sT)}, 4', f's_lshl_b32 {s(sT)}, {s(sT)}, 8',
          f's_add_u32 s8, s26, {s(sT)}', 's_addc_u32 s9, s27, 0', 's_sub_u32 s8, s8, 3072', 's_subb_u32 s9, s9, 0',
          f's_sub_u32 s10, {KBYTES+3072}, {s(sT)}', 's_mov_b32 s11, 0x20000',
          f'v_lshl_add_u32 {v(t+4)}, {v(t)}, 2, {v(t+3)}',
          f'v_xor_b32 {v(t+6)}, {v(t+2)}, {v(t+4)}', f'v_lshlrev_b32 {v(t+6)}, 4, {v(t+6)}',
          f'v_lshl_add_u32 {v(DK)}, {v(t+4)}, 12, {v(t+6)}',
          f'v_and_b32 {v(t+6)}, 7, {v(t+4)}', f'v_lshlrev_b32 {v(t+6)}, 1, {v(t+6)}',
          f'v_xor_b32 {v(t+6)}, {v(t+2)}, {v(t+6)}', f'v_lshlrev_b32 {v(t+6)}, 4, {v(t+6)}',
          f'v_lshl_add_u32 {v(DV)}, {v(t+4)}, 12, {v(t+6)}',
          f's_movk_i32 {s(sQ1)}, 0x1000', f's_movk_i32 {s(sQ1+1)}, 0x2000', f's_movk_i32 {s(sQ1+2)}, 0x3000',
          f's_add_u32 s12, s28, {s(sT)}', 's_addc_u32 s13, s29, 0', 's_sub_u32 s12, s12, 3072', 's_subb_u32 s13, s13, 0',
          's_mov_b32 s14, s10', 's_mov_b32 s15, 0x20000',
          f's_add_u32 s16, s34, {s(sT+1)}', 's_addc_u32 s17, s35, 0', 's_mov_b32 s18, 0x10000', 's_mov_b32 s19, 0x20000',
          f's_add_u32 {s(sMV)}, {s(sMK)}, 0x10000', f's_mov_b32 {s(sC)}, 0x3e0293ee',
          's_waitcnt lgkmcnt(0)'] + stamp(1)
    L += [f's_cmp_lt_i32 {s(sCL)}, 1', f's_cselect_b32 {s(sC)}, 0, {s(sC)}', f's_cselect_b32 {s(sCL)}, 0x800, {s(sCL)}',
          f's_min_u32 {s(sCLT)}, {s(sCL)}, 0x800', f's_max_u32 {s(sCL)}, {s(sCLT)}, {MINCL}',
          f's_add_u32 {s(sN)}, {s(sCL)}, 63', f's_lshr_b32 {s(sN)}, {s(sN)}, 6',
          f's_sub_u32 {s(sE)}, 0, {s(sN)}', f's_and_b32 {s(sE)}, {s(sE)}, 3', f's_lshl_b32 {s(sSL)}, {s(sE)}, 14']
    L += btprep(0) + dma4(0, 0) + qload(1)
    L += [f's_mov_b32 {s(sC2)}, {s(sC)}',
          f's_cmp_lt_u32 {s(sCLT)}, {4096 if OPT["forceslow"] else MINCL}', f's_cselect_b32 {s(sFORCE)}, 1, 0',
          f's_add_u32 {s(sIT)}, {s(sN)}, {s(sE)}', f's_lshr_b32 {s(sIT)}, {s(sIT)}, 2', f's_sub_u32 {s(sIT)}, {s(sIT)}, 2']
    for i in range(1, 4):
        L += [f's_add_u32 {s(sSL+i)}, {s(sSL)}, {i*0x4000}', f's_and_b32 {s(sSL+i)}, {s(sSL+i)}, 0xc000']
    L += [f's_sub_u32 {s(sT)}, {s(sN)}, 1', f's_lshl_b32 {s(sT)}, {s(sT)}, 6', f's_sub_u32 {s(sT)}, {s(sCL)}, {s(sT)}',
          f's_add_u32 {s(sNKB)}, {s(sT)}, 15', f's_lshr_b32 {s(sNKB)}, {s(sNKB)}, 4',
          f's_sub_u32 {s(sT)}, {s(sT)}, 1', f's_and_b32 {s(sT)}, {s(sT)}, 15',
          f's_and_b32 {s(sT+1)}, {s(sE)}, 1', f's_sub_u32 {s(sT+1)}, 4, {s(sT+1)}', f's_sub_u32 {s(sT+2)}, 7, {s(sT+1)}',
          f's_mov_b32 {s(sLN)}, 5']
    L += [f'v_lshrrev_b32 {v(t+4)}, 2, {v(t+2)}', f'v_lshlrev_b32 {v(t+4)}, 4, {v(t+4)}',
          f'v_and_b32 {v(t+6)}, 3, {v(t+2)}', f'v_add_u32 {v(t+4)}, {v(t+4)}, {v(t+6)}', f'v_lshlrev_b32 {v(t+4)}, 8, {v(t+4)}',
          f'v_lshlrev_b32 {v(t+6)}, 12, {v(t)}', f'v_lshl_add_u32 {v(t+6)}, {v(t+2)}, 8, {v(t+6)}', f'v_add_u32 {v(t+6)}, 0x20000, {v(t+6)}']
    for ks in range(4):
        L += [f'v_xor_b32 {v(MK)}, {4*ks}, {v(t+5)}', f'v_lshl_add_u32 {v(KA+ks)}, {v(MK)}, 4, {v(t+4)}',
              f'v_lshl_add_u32 {v(QA+ks)}, {v(MK)}, 4, {v(t+6)}', f'v_add_u32 {v(KA0+ks)}, {s(sSL)}, {v(KA+ks)}']
    L += [f'v_bfe_u32 {v(t+5)}, {v(t+1)}, 2, 2',
          f'v_lshl_add_u32 {v(t+4)}, {v(t+3)}, 4, {v(t+5)}', f'v_lshlrev_b32 {v(t+4)}, 8, {v(t+4)}',
          f'v_and_b32 {v(MK)}, 3, {v(t+1)}', f'v_lshl_add_u32 {v(t+4)}, {v(MK)}, 3, {v(t+4)}', f'v_add_u32 {v(t+4)}, 0x10000, {v(t+4)}',
          f'v_lshl_add_u32 {v(t+5)}, {v(t+3)}, 2, {v(t+5)}', f'v_and_b32 {v(t+5)}, 7, {v(t+5)}']
    for db in range(8):
        L += [f'v_xor_b32 {v(VA+db)}, {db}, {v(t+5)}', f'v_lshl_add_u32 {v(VA+db)}, {v(VA+db)}, 5, {v(t+4)}',
              f'v_add_u32 {v(VA0+db)}, {s(sSL)}, {v(VA+db)}']
    L += [f'v_lshlrev_b32 {v(t+4)}, 14, {v(t)}', f'v_lshl_add_u32 {v(t+4)}, {v(t+2)}, 8, {v(t+4)}',
          f'v_and_b32 {v(t+5)}, 1, {v(t+3)}', f'v_lshl_add_u32 {v(t+4)}, {v(t+5)}, 5, {v(t+4)}',
          f'v_lshrrev_b32 {v(t+5)}, 1, {v(t+3)}', f'v_lshl_add_u32 {v(OV)}, {v(t+5)}, 4, {v(t+4)}',
          f'v_and_b32 {v(t+4)}, 1, {v(t+1)}', f'v_mov_b32 {v(t+5)}, 0xaaaaaaaa',
          f'v_mul_lo_u32 {v(t+4)}, {v(t+4)}, {v(t+5)}', f'v_or_b32 {v(IDX)}, 0x44444444, {v(t+4)}', f'v_mov_b32 {v(t+5)}, 0x3f803f80']
    L += [f'v_accvgpr_write_b32 {a(aONE+i)}, {v(t+5)}' for i in range(4)]
    L += [f'v_lshlrev_b32 {v(t+4)}, 2, {v(t+3)}', f'v_mov_b32 {v(t+5)}, {NEG:#x}']
    for r in range(4):
        L += [f'v_add_u32 {v(t+6)}, {r}, {v(t+4)}', f'v_cmp_lt_u32 vcc, {s(sT)}, {v(t+6)}', 's_nop 1',
              f'v_cndmask_b32 {v(MK+r)}, 0, {v(t+5)}, vcc']
    L += btprep(1) + btprep(2) + btprep(3)
    L += [f'v_mov_b32 {v(O0+i)}, 0' for i in range(64, 128)]
    L += [f'v_accvgpr_write_b32 {a(aL+i)}, 0' for i in range(16)]
    groups = {'q2': qload(2), 'q3': qload(3), 'v0': dma4(1, 0), 'k1': dma4(0, 1), 'v1': dma4(1, 1), 'k2': dma4(0, 2), 'v2': dma4(1, 2), 'k3': dma4(0, 3)}
    plan = {0: dict(A=['q2'], B=['v0'], C=['q3'], D=['k1', 'v1'], E=['k2'], F=['v2', 'k3']),
            1: dict(A=['q2'], B=['v0'], C=['q3'], D=['k1'], E2=['v1', 'k2'], G=['v2', 'k3']),
            2: dict(A=['q2', 'v0'], C=['q3', 'k1'], D=['v1'], E2=['k2'], G=['v2', 'k3']),
            3: dict(A0=['v0'], A=['q2'], C=['q3', 'k1'], D=['v1', 'k2'], G=['v2', 'k3'])}[OPT['po']]
    at = lambda p_: [x for g_ in plan.get(p_, []) for x in groups[g_]]
    L += at('A0') + ['WAITVM ld Q0'] + stamp(2) + qread(0) + at('A') + scale_q(0) + ['WAITVM ld BT']
    for i in range(4):
        L.append(f'v_lshlrev_b32 {v(BT+i)}, 16, {v(BT+i)}')
        if i < 3: L.append(f'v_or_b32 {v(BT+i)}, {(3-i)*1024}, {v(BT+i)}')
    L += ['s_nop 0'] + [f'v_readlane_b32 {s(SETS[k]+i)}, {v(BT+i)}, {s(sT+1+k)}' for k in range(2) for i in range(4)]
    L += ['WAITVM dma K 0', 's_barrier']
    L += [i_kread(kb, ks, 0, '0', addr=KA0) for kb in range(4) for ks in range(4)] + at('B')
    P = Prog()
    for name, mf in (('q0', qkg(0)), ('q1', qkg(1)), ('q2', qkg(2)), ('p0', pvg(0, first=True)), ('q3', qkg(3)), ('p1', pvg(1, first=True))): P.group(name, mf)
    P.done(); p = P.pos
    P.softmax('s0', p['q0'], 0, 0, dlcap=p['q1'] + 4); P.softmax('s1', p['q1'], 1, 1, dlcap=p['q2'] + 4)
    P.softmax('s2', p['q2'], 2, 2, dlcap=p['q3'] - 1); P.softmax('s3', p['q3'], 3, 3, skip=LEFT3)
    P.vload('v', p['p0'], 0, '0', addr=VA0, rel0=p['q2'])
    kb0 = p['p1'] - 1
    P.kload('k', P.n, 0, '1', addr=T0, rel0=kb0 + 1, dlmax=P.n - 2)
    g = P.gaps
    todo = schedule(P.n, P.ops, g, overflow=True)
    assert not todo
    g[p['q1'] - 1].post += ['WAITVM ld Q1'] + qread(1) + at('C') + scale_q(1) + ['s_nop 0']
    g[p['q2'] - 1].post += ['WAITVM ld Q2'] + qread(2) + at('D') + scale_q(2) + ['WAITVM dma V 0', 's_barrier']
    g[p['q3'] - 1].post += ['WAITVM ld Q3'] + stamp(3) + qread(3) + at('E') + scale_q(3) + at('E2') + \
                           [f'v_add_u32 {v(T0+ks)}, {s(sSL+1)}, {v(KA+ks)}' for ks in range(4)]
    g[kb0].post += at('F') + ['WAITVM dma K 1', 's_barrier']
    g[P.n - 1].post += at('G') + [HEADWAIT]
    L += emit(P.mf, g)
    L = resolve_waitvm(L)
    L, pend = add_lgkm_waits(L)
    L += stamp(4)
    L += [f's_cmp_eq_u32 {s(sE)}, 2', 's_cbranch_scc1 L_b3', f's_cmp_eq_u32 {s(sE)}, 1', 's_cbranch_scc1 L_b2',
          f's_cmp_eq_u32 {s(sE)}, 3', 's_cbranch_scc1 L_b0', f's_cmp_eq_u32 {s(sN)}, 4', 's_cbranch_scc1 L_tail']
    return L, pend

def slow():
    t = T0
    L = ['L_slow:', 's_waitcnt vmcnt(0) lgkmcnt(0)']
    M, LS, KV, VD0, VD1 = KA, BT, DK, DV, IDX
    L += [f'v_mbcnt_lo_u32_b32 {v(t+1)}, -1, 0', f'v_mbcnt_hi_u32_b32 {v(t+1)}, -1, {v(t+1)}',
          f'v_and_b32 {v(t+2)}, 15, {v(t+1)}', f'v_lshrrev_b32 {v(t+3)}, 4, {v(t+1)}']
    L += [f's_lshl_b32 {s(sT)}, {s(sW)}, 14', f'v_lshlrev_b32 {v(t+4)}, 8, {v(t+2)}', f'v_lshl_add_u32 {v(t+4)}, {v(t+3)}, 4, {v(t+4)}',
          f'v_add_u32 {v(t+4)}, {s(sT)}, {v(t+4)}']
    L += [f'buffer_load_dwordx4 {v(S0+16*q+4*ks,4)}, {v(t+4)}, s[4:7], {"0" if q == 0 else s(sQ1)} offen offset:{64*ks}' for q in range(2) for ks in range(4)]
    L += [f'v_lshlrev_b32 {v(t+4)}, 12, {v(t+2)}', f'v_lshl_add_u32 {v(KV)}, {v(t+3)}, 4, {v(t+4)}', f'v_add_u32 {v(KV)}, 3072, {v(KV)}',
          f'v_lshlrev_b32 {v(t+4)}, 1, {v(t+3)}', f'v_xor_b32 {v(t+4)}, {v(t+2)}, {v(t+4)}',
          f'v_lshlrev_b32 {v(t+4)}, 4, {v(t+4)}', f'v_lshl_add_u32 {v(VD0)}, {v(t+3)}, 12, {v(t+4)}', f'v_add_u32 {v(VD0)}, 3072, {v(VD0)}',
          f'v_xor_b32 {v(t+4)}, 0x80, {v(t+4)}', f'v_lshl_add_u32 {v(VD1)}, {v(t+3)}, 12, {v(t+4)}', f'v_add_u32 {v(VD1)}, {3072 + 16384}, {v(VD1)}',
          f's_lshl_b32 {s(sMV)}, {s(sW)}, 13', f's_add_u32 {s(sMV)}, {s(sMV)}, 0x20000',
          f'v_bfe_u32 {v(t+5)}, {v(t+1)}, 2, 2', f'v_lshl_add_u32 {v(t+5)}, {v(t+3)}, 2, {v(t+5)}',
          f'v_lshlrev_b32 {v(t+4)}, 8, {v(t+5)}', f'v_and_b32 {v(t+6)}, 3, {v(t+1)}',
          f'v_lshl_add_u32 {v(t+4)}, {v(t+6)}, 3, {v(t+4)}', f'v_add_u32 {v(t+4)}, {s(sMV)}, {v(t+4)}', f'v_and_b32 {v(t+5)}, 7, {v(t+5)}']
    for db in range(8):
        L += [f'v_xor_b32 {v(VA+db)}, {db}, {v(t+5)}', f'v_lshl_add_u32 {v(VA+db)}, {v(VA+db)}, 5, {v(t+4)}']
    L += [f'v_lshlrev_b32 {v(MK)}, 2, {v(t+3)}', f'v_mov_b32 {v(MK+1)}, {NEG:#x}']
    L += [f'v_mov_b32 {v(O0+i)}, 0' for i in range(128)]
    L += [f'v_mov_b32 {v(M+q)}, 0xff7fffff' for q in range(4)] + [f'v_mov_b32 {v(LS+q)}, 0' for q in range(4)]
    L += ['s_waitcnt vmcnt(0)'] + scale_q(0) + scale_q(1)
    L += [f's_mov_b32 {s(sIT)}, 0', 'L_slow_loop:',
          f's_lshr_b32 {s(sT)}, {s(sIT)}, 2',
          f's_load_dwordx2 s[40:41], s[30:31], {s(sT)}', 's_waitcnt lgkmcnt(0)',
          's_lshl_b32 s40, s40, 16', 's_lshl_b32 s41, s41, 16']
    for kb in range(2):
        for ks in range(4):
            L.append(f'buffer_load_dwordx4 {a(aK+16*kb+4*ks,4)}, {v(KV)}, s[8:11], s{40+kb} offen offset:{64*ks}')
    for b in range(2):
        for p in range(4):
            L += [f's_add_u32 m0, {s(sMV)}, {b*4096 + p*1024}', f's_add_u32 s42, s{40+b}, {(p//2)*32768}',
                  f'buffer_load_dwordx4 {v(VD1 if p & 1 else VD0)}, s[12:15], s42 offen lds']
    L += ['s_waitcnt vmcnt(0)']
    for db in range(8):
        for tt in range(2):
            L.append(f'ds_read_b64_tr_b16 {a(aV+8*db+2*tt,2)}, {v(VA+db)} offset:{tt*4096}')
    L += [f's_sub_u32 {s(sT)}, {s(sCLT)}, {s(sIT)}', 's_waitcnt lgkmcnt(0)']
    for q in range(4):
        S = S0 + 16*q
        L += qkg(q, 2) + ['s_nop 7']
        for e in range(8):
            L += [f'v_add_u32 {v(t)}, {16*(e//4) + e%4}, {v(MK)}', f'v_cmp_gt_u32 vcc, {s(sT)}, {v(t)}', 's_nop 1',
                  f'v_cndmask_b32 {v(S+e)}, {v(MK+1)}, {v(S+e)}, vcc']
        L += [f'v_max3_f32 {v(t)}, {v(S)}, {v(S+1)}, {v(S+2)}', f'v_max3_f32 {v(t)}, {v(t)}, {v(S+3)}, {v(S+4)}',
              f'v_max3_f32 {v(t)}, {v(t)}, {v(S+5)}, {v(S+6)}', f'v_max3_f32 {v(t)}, {v(t)}, {v(S+7)}, {v(M+q)}',
              f'v_mov_b32 {v(t+1)}, {v(t)}', 's_nop 1', f'v_permlane16_swap_b32 {v(t)}, {v(t+1)}', f'v_max_f32 {v(t)}, {v(t)}, {v(t+1)}',
              f'v_mov_b32 {v(t+1)}, {v(t)}', 's_nop 1', f'v_permlane32_swap_b32 {v(t)}, {v(t+1)}', f'v_max_f32 {v(t)}, {v(t)}, {v(t+1)}',
              f'v_sub_f32 {v(t+1)}, {v(M+q)}, {v(t)}', f'v_exp_f32 {v(t+1)}, {v(t+1)}', f'v_mov_b32 {v(M+q)}, {v(t)}']
        L += [f'v_sub_f32 {v(S+e)}, {v(S+e)}, {v(t)}' for e in range(8)]
        L += [f'v_exp_f32 {v(S+e)}, {v(S+e)}' for e in range(8)]
        L += [f'v_mul_f32 {v(LS+q)}, {v(LS+q)}, {v(t+1)}']
        L += [f'v_mul_f32 {v(O0+32*q+i)}, {v(O0+32*q+i)}, {v(t+1)}' for i in range(32)]
        L += [i_cvt(q, q, i) for i in range(4)]
        for i in range(4):
            L += [f'v_lshlrev_b32 {v(t)}, 16, {v(P0+8*q+i)}', f'v_and_b32 {v(t+1)}, 0xffff0000, {v(P0+8*q+i)}',
                  f'v_add_f32 {v(LS+q)}, {v(LS+q)}, {v(t)}', f'v_add_f32 {v(LS+q)}, {v(LS+q)}, {v(t+1)}']
        L += [pv(q, db, 0) for db in range(8)]
    L += [f's_add_u32 {s(sIT)}, {s(sIT)}, 32', f's_cmp_lt_u32 {s(sIT)}, {s(sCLT)}', 's_cbranch_scc1 L_slow_loop', 's_nop 7']
    for q in range(4):
        o = O0 + 32*q
        L += [f'v_mov_b32 {v(t)}, {v(LS+q)}', f'v_mov_b32 {v(t+1)}, {v(LS+q)}', 's_nop 1',
              f'v_permlane16_swap_b32 {v(t)}, {v(t+1)}', f'v_add_f32 {v(t)}, {v(t)}, {v(t+1)}',
              f'v_mov_b32 {v(t+1)}, {v(t)}', 's_nop 1', f'v_permlane32_swap_b32 {v(t)}, {v(t+1)}', f'v_add_f32 {v(t)}, {v(t)}, {v(t+1)}',
              f'v_rcp_f32 {v(t)}, {v(t)}', 's_nop 0']
        L += [f'v_mul_f32 {v(o+i)}, {v(o+i)}, {v(t)}' for i in range(32)]
        for u in range(4):
            L += [f'v_cvt_pk_bf16_f32 {v(o+8*u+i)}, {v(o+8*u+2*i)}, {v(o+8*u+2*i+1)}' for i in range(4)]
        for u in range(4):
            L += [f'v_permlane16_swap_b32 {v(o+8*u+i)}, {v(o+8*u+2+i)}' for i in range(2)]
        for u in range(4):
            L.append(f'buffer_store_dwordx4 {v(o+8*u,4)}, {v(OV)}, s[16:19], {"0" if q == 0 else s(sQ1+q-1)} offen offset:{64*u}')
    return L + ['s_endpgm']

NFIN = 0
def finish():
    global NFIN
    NFIN += 1
    L = [f'v_cmp_lt_u32 vcc, 0x28000000, {v(T0+4)}' if not OPT.get('abl') else 's_mov_b64 vcc, 0',
         f's_cmp_lg_u32 {s(sFORCE)}, 0', 's_cbranch_scc1 L_slow', 's_nop 3', 's_cbranch_vccnz L_slow']
    if OPT['stamp']:
        L += [f's_memtime s[40:41]', 's_waitcnt vmcnt(0)', 's_memtime s[42:43]', f's_memrealtime s[44:45]', 's_waitcnt lgkmcnt(0)']
        st = lambda i: sST + 2*i if i < 6 else 40 + 2*(i - 6)
        if OPT.get('fixed'):
            L += [f's_mov_b32 {s(sT+4)}, {OPT["fixed"]}']
            if OPT.get('xcc'):
                L += [f's_getreg_b32 {s(sT+5)}, hwreg(HW_REG_XCC_ID, 0, 4)', f's_sub_u32 {s(sT+5)}, {s(sT+5)}, s2', f's_and_b32 {s(sT+5)}, {s(sT+5)}, 7']
                if OPT['xcc'] == 2: L += [f's_sub_u32 {s(sT+5)}, 7, {s(sT+5)}']
                L += [f's_mul_i32 {s(sT+5)}, {s(sT+5)}, 500', f's_add_u32 {s(sT+4)}, {s(sT+4)}, {s(sT+5)}']
            if OPT.get('phase'):
                L += [f's_sub_u32 {s(sT+5)}, {s(st(OPT["phase"]))}, {s(st(OPT.get("phase0", 0)))}']
                if OPT.get('neg'): L += [f's_sub_u32 {s(sT+5)}, {OPT["neg"]}, {s(sT+5)}']
                L += [f's_lshr_b32 {s(sT+5)}, {s(sT+5)}, {OPT.get("sh", 3)}', f's_add_u32 {s(sT+4)}, {s(sT+4)}, {s(sT+5)}']
            return L + [f'L_spin{NFIN}:', f's_memrealtime {s(sT,2)}', 's_waitcnt lgkmcnt(0)', f's_sub_u32 {s(sT)}, {s(sT)}, s100',
                        f's_cmp_lt_u32 {s(sT)}, {s(sT+4)}', f's_cbranch_scc1 L_spin{NFIN}', 's_endpgm']
        L += ['s_load_dwordx2 s[24:25], s[0:1], 56', 's_waitcnt lgkmcnt(0)', 's_mov_b32 s26, 0x100000', 's_mov_b32 s27, 0x20000']
        L += [f'v_mov_b32 v{i}, {s(st(i))}' for i in range(8)]
        L += ['v_mov_b32 v8, s42', 'v_mov_b32 v9, s44', 'v_mov_b32 v10, s100', 'v_mov_b32 v11, 0',
              f's_lshl_b32 {s(sT)}, s2, 2', f's_add_u32 {s(sT)}, {s(sT)}, {s(sW)}', f's_lshl_b32 {s(sT)}, {s(sT)}, 6',
              'v_mov_b32 v12, 0', 's_mov_b64 exec, 1',
              f'buffer_store_dwordx4 v[0:3], v12, s[24:27], {s(sT)} offen',
              f'buffer_store_dwordx4 v[4:7], v12, s[24:27], {s(sT)} offen offset:16',
              f'buffer_store_dwordx4 v[8:11], v12, s[24:27], {s(sT)} offen offset:32']
    return L + ['s_endpgm']

def main():
    pro, pend0 = prologue()
    loop, pend = loop_code()
    assert [x[0] for x in pend0] == [x[0] for x in pend], (pend0, pend)
    L = [f'{NAME}:'] + pro + loop
    L += ['L_tail:'] + stamp(5) + [f's_cmp_gt_u32 {s(sNKB)}, 1', 's_cbranch_scc1 L_tail234']
    L += tail(1, pend) + finish() + ['L_pfend:']
    L += ['L_tail234:', f's_cmp_eq_u32 {s(sNKB)}, 3', 's_cbranch_scc1 L_tail3', f's_cmp_eq_u32 {s(sNKB)}, 4', 's_cbranch_scc1 L_tail4']
    L += tail(2, pend) + finish() + ['L_tail3:'] + tail(3, pend) + finish() + ['L_tail4:'] + tail(4, pend) + finish()
    L += slow() + ['L_end:', 's_endpgm']
    L, nn = fix_hazards(L, verbose=OPT.get('verbose', 0))
    print('nop states inserted:', nn, ' leftovers:', sorted(LEFT3))
    hdr = open('standalone__paged_block_table_kv_pagedattention__prompt.s.ref').read().split('; Override')[0]
    txt = hdr + '; Generated by gen/gen2.py (hand-written generator).\n'
    txt += '; @launch grid=(256,1,1) block=(256,1,1) lds=163840\n'
    txt += f'.amdgcn_target "amdgcn-amd-amdhsa--gfx950"\n.text\n.globl {NAME}\n.p2align 8\n.type {NAME},@function\n'
    for l in L: txt += (l if l.endswith(':') or l.startswith(('.', ';')) else '    ' + l) + '\n'
    txt += f'''.section .rodata,"a"
.p2align 6
.amdhsa_kernel {NAME}
  .amdhsa_next_free_vgpr 504
  .amdhsa_next_free_sgpr 102
  .amdhsa_accum_offset 256
  .amdhsa_group_segment_fixed_size 0
  .amdhsa_kernarg_size 64
  .amdhsa_user_sgpr_count 2
  .amdhsa_user_sgpr_kernarg_segment_ptr 1
  .amdhsa_system_sgpr_workgroup_id_x 1
.end_amdhsa_kernel
'''
    open(sys.argv[1], 'w').write(txt)
    if OPT.get('show'):
        for g in range(NG): print(g, PAT[g])
main()
```

```python
import sys
from asmcheck import parse, fix_hazards, Ins

NAME = 'standalone__paged_block_table_kv_pagedattention__prompt_kernel'
FL = {0: '', 1: ' nt', 2: ' sc1', 3: ' sc0 sc1', 4: ' sc1 nt', 5: ' sc0 sc1 nt', 6: ' sc0', 7: ' sc0 nt'}
OPT = dict(po=0, cpf=1, qf=0, kf=0, of=2, delta=9, stamp=0, lat=8, forceslow=0, tord=1, epri=12, ep=1, ssp=4)
for a_ in sys.argv[2:]:
    k_, v_ = a_.split('='); OPT[k_] = int(v_, 0)

S0, P0, KA, VA, BT, DK, DV, IDX, OV, MK, T0, O0 = 0, 64, 96, 100, 108, 112, 113, 114, 115, 116, 120, 128
QD, QA = P0 + 24, P0 + 28
KA0, VA0 = O0, O0 + 32
EW, ER, EG = T0 + 5, T0 + 6, T0 + 7
aQ, aK, aV, aL, aONE, aX = 0, 64, 128, 192, 208, 212
sW, sCL, sN, sIT, sLN = 3, 36, 37, 38, 39
SETS = (56, 60)
sMK, sMV, sC, sC2, sNKB, sE, sFORCE, sCLT = 64, 65, 66, 67, 68, 69, 70, 71
sQ1 = 72
sSL = 96
sT = 78
sST = 84
KBYTES = 132 * 65536
LAT = OPT['lat']
NEG = 0xf149f2ca
INF = 10 ** 6
MINCL = 193

def v(b, n=1): return f'v{b}' if n == 1 else f'v[{b}:{b+n-1}]'
def a(b, n=1): return f'a{b}' if n == 1 else f'a[{b}:{b+n-1}]'
def s(b, n=1): return f's{b}' if n == 1 else f's[{b}:{b+n-1}]'
def VR(b, n=1): return {('v', i) for i in range(b, b + n)}
def AR(b, n=1): return {('a', i) for i in range(b, b + n)}

MF = 'v_mfma_f32_16x16x32_bf16'
def qk(q, kb, ks, sb=None, kbase=aK, mask=False):
    D = v(S0 + 16*(q if sb is None else sb) + 4*kb, 4)
    C = D if ks else (v(MK, 4) if mask else '0')
    return f'{MF} {D}, {a(kbase+16*kb+4*ks,4)}, {a(aQ+16*q+4*ks,4)}, {C}'
def vfrag(db, ks, vbase): return aV + (2*db+ks)*4 if vbase is None else vbase + 4*db
def pv(q, db, ks, pb=None, vbase=None, first=False):
    D = v(O0 + 32*q + 4*db, 4)
    return f'{MF} {D}, {a(vfrag(db, ks, vbase),4)}, {v(P0+8*(q if pb is None else pb)+4*ks,4)}, {"0" if first and ks == 0 else D}'
def sm(q, pb=None):
    return f'v_smfmac_f32_16x16x64_bf16 {a(aL+4*q,4)}, {a(aONE,4)}, {v(P0+8*(q if pb is None else pb),8)}, {v(IDX)}'
def qkg(q, nkb=4, sb=None, kbase=aK, mask=False):
    return [qk(q, kb, ks, sb, kbase, mask and kb == nkb-1) for kb in range(nkb) for ks in range(4)]
def pvg(q, pb=None, first=False): return [pv(q, db, ks, pb, None, first) for db in range(8) for ks in range(2)] + [sm(q, pb)]

def i_exp(sb, n): return f'v_exp_f32 {v(S0+16*sb+n)}, {v(S0+16*sb+n)}'
def i_cvt(sb, pb, i): return f'v_cvt_pk_bf16_f32 {v(P0+8*pb+i)}, {v(S0+16*sb+2*i)}, {v(S0+16*sb+2*i+1)}'
def i_kread(kb, ks, slot, tag, kbase=aK, addr=KA):
    return f'ds_read_b128 {a(kbase+16*kb+4*ks,4)}, {v(addr+ks)} offset:{slot*16384+kb*1024}'
def i_vread(db, ks, t, slot, tag, vbase=None, addr=VA):
    return f'ds_read_b64_tr_b16 {a(vfrag(db, ks, vbase)+2*t,2)}, {v(addr+db)} offset:{slot*16384+(2*ks+t)*1024}'
def i_dma(isv, i, soff, tag):
    return f'buffer_load_dwordx4 {v(DV if isv else DK)}, {s(12 if isv else 8,4)}, {s(soff+i)} offen offset:{i*1024}{FL[OPT["kf"]]} lds'
def i_m0(isv, slot): return f's_add_u32 m0, {s(sMV if isv else sMK)}, {slot*16384}'
def stamp(i): return [f's_memtime {s(sST+2*i,2)}'] if OPT['stamp'] else []

class Op:
    def __init__(self, key, cls, rel, dl, text, deps=(), fifo=None, pri=None):
        self.key, self.cls, self.rel, self.dl, self.text, self.deps, self.fifo = key, cls, rel, dl, text, list(deps), fifo
        self.pri = dl if pri is None else pri
        self.gap = None
class Gap:
    def __init__(self): self.sc, self.mem, self.valu, self.post = [], [], [], []; self.block = None

def schedule(ngaps, ops, gaps, overflow=False):
    byk = {o.key: o for o in ops}
    todo = list(ops)
    def ready(o, g):
        if o.rel > g: return False
        for d in o.deps:
            p = byk.get(d)
            if p is not None and (p.gap is None or p.gap >= g): return False
        if o.fifo is not None:
            p = byk[o.fifo]
            if p.gap is None or (o.cls in 'DRT' and p.cls not in 'RT' and p.gap >= g): return False
            if o.cls == 'D' and p.cls == 'R' and p.gap + LAT > g: return False
            if o.cls == 'D' and p.cls == 'D' and p.gap + OPT['ssp'] > g: return False
        return True
    def put(o, g):
        o.gap = g; todo.remove(o)
        (gaps[g].mem if o.cls in 'DRT' else gaps[g].valu).append(o)
    for g in range(ngaps):
        if gaps[g].block != 'all':
            cand = sorted((o for o in todo if ready(o, g)), key=lambda o: o.pri)
            if gaps[g].block == 'half': cand = [o for o in cand if o.cls == 'H'][:1]
            if cand:
                top = cand[0]
                halves = [o for o in cand if o.cls in 'RTH']
                full = [o for o in cand if o.cls in 'ED']
                if top.cls in 'RTH' and len(halves) == 1 and full and top.pri - g > 6 and top.fifo is None: top = full[0]
                put(top, g)
                if top.cls in 'RTH' and gaps[g].block != 'half':
                    c2 = sorted((o for o in todo if o.cls in 'RTH' and ready(o, g) and not (o.cls == 'R' and top.cls == 'R')), key=lambda o: o.pri)
                    if c2:
                        pick = c2[0]
                        if top.cls in 'RT' and pick.cls in 'RT' and pick.pri - g > 8:
                            h = [o for o in c2 if o.cls == 'H']
                            if h: pick = h[0]
                        put(pick, g)
        late = [o for o in todo if o.dl <= g]
        if late:
            if not overflow: raise RuntimeError(f'deadline miss at gap {g}: {[o.key for o in late]}')
            def force(o):
                if o.gap is not None: return
                for d in o.deps + ([o.fifo] if o.fifo else []):
                    if d in byk: force(byk[d])
                assert o.rel <= g, (o.key, o.rel, g)
                o.gap = g; todo.remove(o); gaps[g].post.append(o.text)
            for o in sorted(late, key=lambda o: (o.fifo is not None, {'R': 0, 'T': 0, 'D': 0, 'E': 1, 'H': 2}[o.cls], o.dl)): force(o)
    return todo

def emit(mf, gaps):
    out = []
    for m, g in zip(mf, gaps):
        out.append(m)
        sc = list(g.sc)
        if any(o.text.startswith('buffer_load') for o in g.mem) and not sc: sc = ['s_nop 0']
        out += sc + [o.text for o in g.mem] + [o.text for o in g.valu] + g.post
    return out

def add_lgkm_waits(lines, pre_ds=()):
    q = [(set(r), -age) for r, age in pre_ds]
    out = []; gap = -1; lastm = None; nvis = None
    for x in parse(lines):
        if x.cls == 'mfma':
            needed = [i for i, (r, g) in enumerate(q) if r & x.r]
            if needed:
                k = max(needed)
                if lastm is not None and k < nvis:
                    while k + 1 < nvis and q[k + 1][1] <= gap - LAT: k += 1
                    n = min(15, nvis - 1 - k)
                    if out[lastm:lastm+1] == ['s_nop 0']: out[lastm] = f's_waitcnt lgkmcnt({n})'
                    else: out.insert(lastm, f's_waitcnt lgkmcnt({n})')
                    k = nvis - 1 - n
                else:
                    n = min(15, len(q) - 1 - k)
                    out.append(f's_waitcnt lgkmcnt({n})')
                    k = len(q) - 1 - n
                q = q[k + 1:]
            gap += 1
            out.append(x.text); lastm = len(out); nvis = len(q)
        else:
            if x.cls == 'vmem':
                needed = [i for i, (r, g) in enumerate(q) if r & x.r]
                if needed:
                    n = min(15, len(q) - 1 - max(needed)); drop = len(q) - n
                    out.append(f's_waitcnt lgkmcnt({n})'); q = q[drop:]
                    if nvis is not None: nvis = max(0, nvis - drop)
            if x.cls == 'ds': q.append((set(x.w), gap))
            if x.cls == 'wait' and x.lgkm is not None:
                drop = max(0, len(q) - x.lgkm); q = q[drop:]
                if nvis is not None: nvis = max(0, nvis - drop)
            out.append(x.text)
    return out, [(r, gap - g) for r, g in q]

class Prog:
    def __init__(self): self.mf = []; self.ops = []; self.pos = {}
    def group(self, name, mf): self.pos[name] = len(self.mf); self.mf += mf
    def done(self):
        self.ins = [Ins(m) for m in self.mf]; self.n = len(self.mf); self.gaps = [Gap() for _ in self.mf]
    def first_read(self, R, lo): return next((i for i in range(lo, self.n) if R & self.ins[i].srcAB), INF)
    def last_read(self, R, hi): return next((i for i in range(min(hi, self.n) - 1, -1, -1) if R & self.ins[i].srcAB), -1)
    def last_write(self, R, hi): return next((i for i in range(min(hi, self.n) - 1, -1, -1) if R & self.ins[i].w), -1)
    def next_write(self, R, lo): return next((i for i in range(lo, self.n) if R & self.ins[i].w), INF)
    def kload(self, key, use, slot, tag, nkb=4, kbase=aK, addr=KA, rel0=0, dlmax=None):
        for f in range(4 * nkb):
            R = AR(kbase + 4*f, 4)
            u = self.first_read(R, use) if use < self.n else self.n + f
            rel = max(rel0, self.last_read(R, u) + 1)
            dl = u - LAT if dlmax is None else min(u - LAT, dlmax - (4*nkb - 1 - f))
            self.ops.append(Op((key, f), 'R', rel, max(rel, dl), i_kread(f//4, f%4, slot, tag, kbase, addr), deps=[(key, f-1)] if f else []))
    def vload(self, key, use, slot, tag, nks=2, vbase=None, addr=VA, rel0=0):
        for db in range(8):
            for ks in range(nks):
                R = AR(vfrag(db, ks, vbase), 4)
                u = self.first_read(R, use)
                rel = max(rel0, self.last_read(R, u) + 1)
                for t in range(2):
                    self.ops.append(Op((key, db, ks, t), 'T', rel, max(rel, u - LAT - (1 - t)), i_vread(db, ks, t, slot, tag, vbase, addr)))
    def softmax(self, key, at, sb, pb, nkb=4, only=None, skip=(), dlcap=None, use=0):
        end = at + 4*nkb if at >= 0 else 0
        u = self.first_read(VR(P0 + 8*pb, 8), max(end, use))
        prel = self.last_read(VR(P0 + 8*pb, 8), u) + 1
        cap = min(u - 3, self.next_write(VR(S0 + 16*sb, 16), end) - 1, self.n - 1 if dlcap is None else dlcap)
        n = 4 * nkb; edl = {}
        for e in range(n):
            if (only is not None and ('e', e) not in only) or ('e', e) in skip: continue
            rel = at + 4*(e//4) + 3 + 5 if at >= 0 else 0
            edl[e] = max(rel, cap - 1 - 2*(n - 1 - e), min(cap - 1, rel + e % 4))
            self.ops.append(Op((key, 'e', e), 'E', rel, edl[e], i_exp(sb, e)))
        for i in range(2 * nkb):
            if (only is not None and ('c', i) not in only) or ('c', i) in skip: continue
            rel = max(prel, at + 4*(i//2) + 3 + 6 if at >= 0 else 0)
            self.ops.append(Op((key, 'c', i), 'H', rel, max(rel, cap - (2*nkb - 1 - i), min(cap, edl.get(2*i+1, 0) + 1)), i_cvt(sb, pb, i),
                               deps=[(key, 'e', 2*i), (key, 'e', 2*i+1)]))
            assert rel <= u - 1, (key, i, rel, u)
        if only is None:
            for i in range(2 * nkb, 8):
                self.ops.append(Op((key, 'z', i), 'H', prel, max(prel, u - 3), f'v_mov_b32 {v(P0+8*pb+i)}, 0'))

NG = 132
LOOP_MF = qkg(0) + pvg(2) + qkg(1) + pvg(3) + qkg(2) + pvg(0) + qkg(3) + pvg(1)
assert len(LOOP_MF) == NG
BARG = 47
DMAG = [10, 14, 18, 22, 26, 30, 34, 38]
RLG = [41, 43, 92, 96]

def steady():
    NT = 6
    ops = []
    gaps = [Gap() for _ in range(NG * (NT + 1))]
    for j in range(NT):
        b = NG * j
        for q in range(4):
            pvs = b + 82 + 33*q; qs = b + 33*q
            for e in range(16):
                g = qs + OPT['delta'] + 2*e
                ops.append(Op(('e', j, q, e), 'E', g, g, None))
            for i in range(8):
                ops.append(Op(('c', j, q, i), 'H', pvs - NG + 17, pvs - 3 - (7 - i), None, deps=[('e', j, q, 2*i), ('e', j, q, 2*i+1)]))
        for f in range(16):
            for t in range(2):
                ops.append(Op(('v', j, f//2, f%2, t), 'T', max(b + 50 + f, b + BARG + 1), b + 82 + f - LAT - (1 - t), None))
            ops.append(Op(('k', j, f//4, f%4), 'R', b + 100 + f, min(b + NG - 2 - (15 - f), b + NG + f - LAT), None,
                          deps=[('k', j, (f-1)//4, (f-1)%4)] if f else []))
        for i in range(4): ops.append(Op(('rl', j, i), 'E', b + RLG[i], b + RLG[i], None))
        for i in range(8): ops.append(Op(('d', j, i), 'D', b + DMAG[i], b + DMAG[i], None))
        gaps[b + BARG].block = 'all'
        gaps[b + NG - 1].block = 'half'
    schedule(NG * (NT + 1), ops, gaps)
    def pattern(j):
        return [[(o.key[0], o.key[1] - j) + o.key[2:] for o in gaps[NG*j + g].mem + gaps[NG*j + g].valu] for g in range(NG)]
    assert pattern(3) == pattern(4), 'no steady state'
    return pattern(3)
PAT = steady()
LEFT = {k for g in PAT for k in g if k[1] == -1}
assert all(k[0] in 'ec' and k[2] == 3 for k in LEFT), LEFT
LEFT3 = {(k[0], k[3]) for k in LEFT}
HEADWAIT = 's_waitcnt lgkmcnt(4)'

class Txt:
    def __init__(self, t): self.text = t

def body(sl):
    def text(k):
        if k[0] == 'e': return i_exp(k[2], k[3])
        if k[0] == 'c': return i_cvt(k[2], k[2], k[3])
        if k[0] == 'v': return i_vread(k[2], k[3], k[4], sl, '+0')
        if k[0] == 'k': return i_kread(k[2], k[3], (sl + 1) % 4, '+1')
        if k[0] == 'rl': return f'v_readlane_b32 {s(SETS[sl%2] + k[2])}, {v(BT+k[2])}, {s(sLN)}'
        if k[0] == 'd': return i_dma(1, k[2], SETS[sl % 2], '+2') if k[2] < 4 else i_dma(0, k[2] - 4, SETS[(sl + 1) % 2], '+3')
    gaps = [Gap() for _ in range(NG)]
    for g in range(NG):
        for k in PAT[g]: (gaps[g].mem if k[0] in 'vkd' else gaps[g].valu).append(Txt(text(k)))
    gaps[DMAG[0] - 2].sc.append(i_m0(1, (sl + 2) % 4))
    gaps[DMAG[4] - 2].sc.append(i_m0(0, (sl + 3) % 4))
    gaps[RLG[-1] + 2].sc.append(f's_add_u32 {s(sLN)}, {s(sLN)}, 1')
    gaps[BARG - 1].sc.append('s_waitcnt vmcnt(16)')
    gaps[BARG].sc.append('s_barrier')
    if sl == 0: gaps[NG - 3].sc.append(f's_sub_u32 {s(sIT)}, {s(sIT)}, 1')
    gaps[NG - 2].sc.append(HEADWAIT)
    lines = emit(LOOP_MF, gaps)
    ab = OPT.get('abl', 0)
    if ab & 1: lines = [l for l in lines if not l.startswith('buffer_load')]
    if ab & 2: lines = [l for l in lines if not l.startswith(('s_barrier', 's_waitcnt vmcnt'))]
    if ab & 32: lines = [l for l in lines if not l.startswith('s_barrier')]
    return lines

def loop_code():
    _, pend = add_lgkm_waits(body(1))
    out = ['.p2align 6']
    for sl in (1, 2, 3, 0):
        l, pend2 = add_lgkm_waits(body(sl), pend)
        assert [x[0] for x in pend2] == [x[0] for x in pend]
        out += [f'L_b{sl}:'] + l
    return out + ['s_cbranch_scc0 L_b1'], pend

def epi_list(q, first):
    t = T0 + 2 * (q & 1)
    o = O0 + 32*q
    L = [('H', f'v_accvgpr_read_b32 {v(t)}, {a(aL+4*q)}', -1),
         ('H', f'v_accvgpr_read_b32 {v(t+1)}, {a(aL+4*q+1)}', -1),
         ('H', f'v_add_f32 {v(t)}, {v(t)}, {v(t+1)}', -1),
         ('E', f'v_rcp_f32 {v(t+1)}, {v(t)}', -1),
         ('H', f'v_subrev_u32 {v(t)}, 0x2b800000, {v(t)}', -1),
         ('H', f'v_mov_b32 {v(T0+4)}, {v(t)}' if first else f'v_max_u32 {v(T0+4)}, {v(T0+4)}, {v(t)}', -1)]
    def muls(u): return [('M', (o + 8*u + i, t + 1), u) for i in range(8)]
    def cvts(u): return [('H', f'v_cvt_pk_bf16_f32 {v(o+8*u+i)}, {v(o+8*u+2*i)}, {v(o+8*u+2*i+1)}', u) for i in range(4)]
    def swaps(u): return [('H', f'v_permlane16_swap_b32 {v(o+8*u+i)}, {v(o+8*u+2+i)}', u) for i in range(2)]
    def store(u):
        return [('D', f'buffer_store_dwordx4 {v(o+8*u,4)}, {v(OV)}, s[16:19], {"0" if q == 0 else s(sQ1+q-1)} offen offset:{64*u}{FL[OPT.get(f"of{q}", OPT["of"])]}', u)]
    if OPT['ep']:
        def writes(u): return [('T', f'ds_write_b64 {v(EW)}, {v(o+8*u+2*i,2)} offset:{64*u+32*i}', u) for i in range(2)]
        for u in range(4): L += muls(u) + cvts(u) + writes(u)
        L += [('R', f'ds_read_b128 {v(o+8*p+4,4)}, {v(ER)} offset:{1088*p}', 3) for p in range(4)]
        L += [('D', f'buffer_store_dwordx4 {v(o+8*p+4,4)}, {v(EG)}, s[16:19], {"0" if q == 0 else s(sQ1+q-1)} offen offset:{1024*p}{FL[OPT.get(f"of{q}", OPT["of"])]}', 3) for p in range(4)]
        return L
    h = lambda l, a_, b_: l[a_:b_]
    L += muls(0) + cvts(0) + h(muls(1), 0, 2) + swaps(0) + store(0) + h(muls(1), 2, 8) + cvts(1) + h(muls(2), 0, 2) + swaps(1) + store(1) \
       + h(muls(2), 2, 8) + cvts(2) + h(muls(3), 0, 2) + swaps(2) + store(2) + h(muls(3), 2, 8) + cvts(3) + [('H', 's_nop 1', 3)] + swaps(3) + store(3)
    return L

def tail(nkb, pend):
    nks = 1 if nkb <= 2 else 2
    small = nkb <= 2
    vx = aX if small else None
    P = Prog()
    def final(q, items):
        return [sm(q, pb) for pb, vb, nk in items] + [pv(q, db, ks, pb, vb) for db in range(8) for pb, vb, nk in items for ks in range(nk)]
    G = P.group
    G('A1', qkg(0, sb=0)); G('A2', pvg(2)); G('A3', qkg(1, sb=1)); G('A4', pvg(3))
    G('A5', qkg(0, sb=2)); G('A6', qkg(1, sb=3)); G('A7', pvg(0, pb=0))
    if not small: G('A8', pvg(1, pb=1))
    G('A9a', qkg(0, nkb, sb=0, mask=True)); G('A9b', qkg(1, nkb, sb=1, mask=True))
    if small:
        G('A8', pvg(1, pb=1))
        G('A10', final(0, [(2, None, 2), (0, vx, 1)])); G('B1', qkg(2, sb=2)); G('A11', final(1, [(3, None, 2), (1, vx, 1)]))
        G('B2', qkg(3, sb=3)); G('B3', qkg(2, sb=0)); G('B4', pvg(2, pb=2))
        G('B7a', qkg(2, nkb, sb=2, kbase=aQ, mask=True)); G('B7b', qkg(3, nkb, sb=3, kbase=aQ, mask=True)); G('B5', pvg(3, pb=3))
        if OPT['tord']:
            G('B8', final(2, [(0, None, 2), (2, vx, 1)])); G('B6', qkg(3, sb=1))
            G('B9a', final(3, [(3, vx, 1)])); G('B9', final(3, [(1, None, 2)]))
        else:
            G('B6', qkg(3, sb=1))
            G('B8', final(2, [(0, None, 2), (2, vx, 1)])); G('B9', final(3, [(1, None, 2), (3, vx, 1)]))
    else:
        G('A10p', pvg(0, pb=2)); G('A11p', pvg(1, pb=3)); G('B1', qkg(2, sb=2))
        G('A10', final(0, [(0, None, 2)])); G('A11', final(1, [(1, None, 2)]))
        G('B2', qkg(3, sb=3)); G('B3', qkg(2, sb=0)); G('B4', pvg(2, pb=2)); G('B5', pvg(3, pb=3)); G('B6', qkg(3, sb=1))
        G('B8p', pvg(2, pb=0)); G('B7a', qkg(2, nkb, sb=2, mask=True)); G('B9p', pvg(3, pb=1)); G('B7b', qkg(3, nkb, sb=3, mask=True))
        G('B8', final(2, [(2, None, 2)])); G('B9', final(3, [(3, None, 2)]))
    P.done(); p = P.pos
    bar2 = p['A6'] + 10
    P.softmax('left', -1, 3, 3, only=LEFT3)
    P.softmax('s10', p['A1'], 0, 0); P.softmax('s11', p['A3'], 1, 1); P.softmax('s20', p['A5'], 2, 2); P.softmax('s21', p['A6'], 3, 3)
    P.softmax('s30', p['A9a'], 0, 0, nkb); P.softmax('s31', p['A9b'], 1, 1, nkb, use=p['A10'])
    P.softmax('s12', p['B1'], 2, 2); P.softmax('s13', p['B2'], 3, 3); P.softmax('s22', p['B3'], 0, 0); P.softmax('s23', p['B6'], 1, 1)
    P.softmax('s32', p['B7a'], 2, 2, nkb); P.softmax('s33', p['B7b'], 3, 3, nkb, use=p['B8'])
    P.kload('k2', p['A5'], 2, 'T2', rel0=2); P.vload('v1', p['A7'], 1, 'T1', rel0=2)
    P.kload('k3', p['A9a'], 3, 'T3', nkb, rel0=bar2 + 1)
    P.kload('k1b', p['B1'], 1, 'T1'); P.kload('k2b', p['B3'], 2, 'T2'); P.vload('v1b', p['B4'], 1, 'T1')
    if small:
        P.vload('v2', p['A10'], 2, 'T2', rel0=bar2 + 1); P.vload('v3', p['A10'], 3, 'T3', 1, vx, rel0=bar2 + 1)
        P.kload('k3b', p['B7a'], 3, 'T3', nkb, kbase=aQ); P.vload('v2b', p['B8'], 2, 'T2')
    else:
        P.vload('v2', p['A10p'], 2, 'T2', rel0=bar2 + 1); P.vload('v3', p['A10'], 3, 'T3')
        P.kload('k3b', p['B7a'], 3, 'T3', nkb); P.vload('v2b', p['B8p'], 2, 'T2'); P.vload('v3b', p['B8'], 3, 'T3')
    for i in range(4):
        P.ops.append(Op(('d', i), 'D', 10 + 4*i, 11 + 4*i, i_dma(1, i, SETS[1], 'T3')))
    prev = None
    if OPT['ep']:
        t = T0
        setup = [f'v_mbcnt_lo_u32_b32 {v(t)}, -1, 0', f'v_mbcnt_hi_u32_b32 {v(t)}, -1, {v(t)}',
                 f'v_and_b32 {v(t+1)}, 15, {v(t)}', f'v_lshrrev_b32 {v(t+2)}, 4, {v(t)}',
                 f'v_mul_u32_u24 {v(EW)}, 272, {v(t+1)}', f'v_lshl_add_u32 {v(EW)}, {v(t+2)}, 3, {v(EW)}',
                 f'v_mul_u32_u24 {v(ER)}, 272, {v(t+2)}', f'v_lshl_add_u32 {v(ER)}, {v(t+1)}, 4, {v(ER)}',
                 f'v_add_u32 {v(EW)}, {s(sT+3)}, {v(EW)}', f'v_add_u32 {v(ER)}, {s(sT+3)}, {v(ER)}',
                 f'v_lshlrev_b32 {v(EG)}, 4, {v(t)}', f'v_add_u32 {v(EG)}, {s(sT+4)}, {v(EG)}']
        for i, x in enumerate(setup):
            o = Op(('su', i), 'H', 24, INF, x, fifo=prev, pri=100 + i); prev = o.key; P.ops.append(o)
    for q in range(4):
        lrel = P.last_write(AR(aL + 4*q, 4), INF) + 5
        nst = 0
        for i, (c, t, u) in enumerate(epi_list(q, q == 0)):
            rel = lrel if u < 0 else max(lrel, P.last_write(VR(O0 + 32*q + 8*u, 8), INF) + 5)
            fin = P.last_write(VR(O0 + 32*q, 32), INF) + 5
            edl = OPT.get(f'edl{q}', OPT.get('edl', INF))
            nst += c == 'D'
            dl = INF if edl >= INF else fin + edl + (LAT + OPT['ssp'] * (nst - 1) if c == 'D' and OPT['ep'] else 0)
            o = Op(('ep', q, i), {'M': 'H'}.get(c, c), rel, dl if dl < P.n - 1 else INF, f'v_mul_f32 {v(t[0])}, {v(t[1])}, {v(t[0])}' if c == 'M' else t,
                   fifo=prev, pri=rel + OPT['epri'] + i // 2)
            o.raw = (c, t); prev = o.key; P.ops.append(o)
            if c != 'D': lastnd = o.key
        if OPT['ep']: prev = lastnd
    g = P.gaps
    g[0].sc.append('s_waitcnt vmcnt(8)'); g[1].sc.append('s_barrier'); g[1].block = 'all'
    g[8].sc.append(i_m0(1, 3))
    g[bar2 - 1].sc.append('s_waitcnt vmcnt(0)'); g[bar2].sc.append('s_barrier'); g[bar2].block = 'all'
    todo = schedule(P.n, P.ops, g, overflow=True)
    lines = emit(P.mf, g)
    assert all(o.key[0] == 'ep' for o in todo), [o.key for o in todo]
    i = 0
    while i < len(todo):
        c, t = todo[i].raw
        if c == 'M' and i + 1 < len(todo) and todo[i+1].raw[0] == 'M' and t[0] % 2 == 0 and todo[i+1].raw[1][0] == t[0] + 1:
            lines.append(f'v_pk_mul_f32 {v(t[0],2)}, {v(t[0],2)}, {v(t[1]-1,2)} op_sel:[0,1] op_sel_hi:[1,1]'); i += 2
        else:
            lines.append(todo[i].text); i += 1
    lines, _ = add_lgkm_waits(lines, pend)
    return lines

def scale_q(q):
    out = []
    for h in range(0, 16, 4):
        for i in range(4):
            x = S0 + 16*q + h + i; t = T0 + 2*i
            out += [f'v_lshlrev_b32 {v(t)}, 16, {v(x)}', f'v_and_b32 {v(t+1)}, 0xffff0000, {v(x)}']
        out += [f'v_pk_mul_f32 {v(T0+2*i,2)}, {v(T0+2*i,2)}, {s(sC,2)}' for i in range(4)]
        out += [f'v_cvt_pk_bf16_f32 {v(S0+16*q+h+i)}, {v(T0+2*i)}, {v(T0+2*i+1)}' for i in range(4)]
        out += [f'v_accvgpr_write_b32 {a(aQ+16*q+h+i)}, {v(S0+16*q+h+i)}' for i in range(4)]
    return out
def qread(q): return [f'ds_read_b128 {v(S0+16*q+4*ks,4)}, {v(QA+ks)} offset:{(q&1)*0x4000}' for ks in range(4)] + ['s_waitcnt lgkmcnt(0)']
def qload(q):
    return [f's_add_u32 m0, {s(sMK)}, {0x20000 + (q&1)*0x4000}', 's_nop 0'] + \
           [f'buffer_load_dwordx4 {v(QD+p)}, s[4:7], {"0" if q == 0 else s(sQ1+q-1)} offen offset:{1024*p}{FL[OPT["qf"]]} lds ; ld Q{q}' for p in range(4)]
def dma4(isv, tile):
    return [f's_add_u32 m0, {s(sMV if isv else sMK)}, {s(sSL+tile)}', 's_nop 0'] + [i_dma(isv, i, 40 + 4*tile, tile) for i in range(4)]
def btprep(tile):
    out = []
    for i in range(4):
        r = 40 + 4*tile + i
        out.append(f's_lshl_b32 {s(r)}, {s(r)}, 16')
        if i < 3: out.append(f's_or_b32 {s(r)}, {s(r)}, {(3-i)*1024}')
    return out

def resolve_waitvm(lines):
    out = []; vm = []
    for l in lines:
        if l.startswith('WAITVM'):
            tags = l.split(None, 1)[1].split('|')
            last = max(i for i, t in enumerate(vm) if t in tags)
            out.append(f's_waitcnt vmcnt({len(vm) - 1 - last}) ; {tags}')
        else:
            if l.startswith(('buffer_', 'global_')): vm.append(l.split(';')[1].strip() if ';' in l else '')
            out.append(l)
    return out

def prologue():
    t = T0
    L = ['s_cmp_ge_u32 s2, 256', 's_cbranch_scc1 L_end',
         's_load_dwordx8 s[24:31], s[0:1], 0', 's_load_dwordx4 s[32:35], s[0:1], 32']
    if OPT['cpf']:
        L += ['s_getpc_b64 s[4:5]', 'L_pc:', 's_lshr_b32 s6, s2, 3', 's_lshl_b32 s6, s6, 10',
              'v_lshl_add_u32 v2, v0, 2, s6', 'v_min_u32 v2, L_pfend-L_pc-4, v2', 'v_mov_b32 v3, s5',
              'v_add_co_u32 v2, vcc, s4, v2', 's_nop 1', 'v_addc_co_u32 v3, vcc, 0, v3, vcc', f'global_load_dword {v(T0+7)}, v[2:3], off']
    L += stamp(0) + (['s_memrealtime s[100:101]'] if OPT['stamp'] else [])
    L += [f'v_lshrrev_b32 {v(t)}, 6, v0',
          f'v_and_b32 {v(t+2)}, 15, v0',
          f'v_readfirstlane_b32 {s(sW)}, {v(t)}',
          f'v_bfe_u32 {v(t+3)}, v0, 4, 2',
          f's_and_b32 {s(sT)}, s2, 7', f's_lshr_b32 {s(sT+1)}, s2, 3', f's_lshl_b32 {s(sT)}, {s(sT)}, 5',
          f's_add_u32 {s(sT)}, {s(sT)}, {s(sT+1)}', f's_lshl_b32 {s(sT+1)}, {s(sT)}, 16',
          f'v_lshlrev_b32 {v(t+4)}, 14, {v(t)}', f'v_lshl_add_u32 {v(t+4)}, {v(t+3)}, 8, {v(t+4)}', f'v_xor_b32 {v(t+5)}, {v(t+2)}, {v(t+3)}']
    for p in range(4):
        L += [f'v_xor_b32 {v(QD+p)}, {4*p}, {v(t+5)}', f'v_lshl_add_u32 {v(QD+p)}, {v(QD+p)}, 4, {v(t+4)}']
    L += [f's_lshl_b32 {s(sMK)}, {s(sW)}, 12', 's_mov_b32 s6, 0x10000', 's_mov_b32 s7, 0x20000',
          's_waitcnt lgkmcnt(0)',
          f's_load_dword {s(sCL)}, s[32:33], 0', 's_load_dwordx16 s[40:55], s[30:31], 0',
          f's_add_u32 s4, s24, {s(sT+1)}', 's_addc_u32 s5, s25, 0']
    L += qload(0)
    L += [f'v_and_b32 {v(t+1)}, 63, v0', f'v_lshlrev_b32 {v(t+6)}, 4, {v(t+1)}',
          's_mov_b32 s20, s30', 's_mov_b32 s21, s31', 's_movk_i32 s22, 0x200', 's_mov_b32 s23, 0x20000',
          f'buffer_load_dwordx4 {v(BT,4)}, {v(t+6)}, s[20:23], 0 offen ; ld BT',
          f's_lshr_b32 {s(sT)}, {s(sT)}, 4', f's_lshl_b32 {s(sT)}, {s(sT)}, 8',
          f's_add_u32 s8, s26, {s(sT)}', 's_addc_u32 s9, s27, 0', 's_sub_u32 s8, s8, 3072', 's_subb_u32 s9, s9, 0',
          f's_sub_u32 s10, {KBYTES+3072}, {s(sT)}', 's_mov_b32 s11, 0x20000',
          f'v_lshl_add_u32 {v(t+4)}, {v(t)}, 2, {v(t+3)}',
          f'v_xor_b32 {v(t+6)}, {v(t+2)}, {v(t+4)}', f'v_lshlrev_b32 {v(t+6)}, 4, {v(t+6)}',
          f'v_lshl_add_u32 {v(DK)}, {v(t+4)}, 12, {v(t+6)}',
          f'v_and_b32 {v(t+6)}, 7, {v(t+4)}', f'v_lshlrev_b32 {v(t+6)}, 1, {v(t+6)}',
          f'v_xor_b32 {v(t+6)}, {v(t+2)}, {v(t+6)}', f'v_lshlrev_b32 {v(t+6)}, 4, {v(t+6)}',
          f'v_lshl_add_u32 {v(DV)}, {v(t+4)}, 12, {v(t+6)}',
          f's_movk_i32 {s(sQ1)}, 0x1000', f's_movk_i32 {s(sQ1+1)}, 0x2000', f's_movk_i32 {s(sQ1+2)}, 0x3000',
          f's_add_u32 s12, s28, {s(sT)}', 's_addc_u32 s13, s29, 0', 's_sub_u32 s12, s12, 3072', 's_subb_u32 s13, s13, 0',
          's_mov_b32 s14, s10', 's_mov_b32 s15, 0x20000',
          f's_add_u32 s16, s34, {s(sT+1)}', 's_addc_u32 s17, s35, 0', 's_mov_b32 s18, 0x10000', 's_mov_b32 s19, 0x20000',
          f's_add_u32 {s(sMV)}, {s(sMK)}, 0x10000', f's_mov_b32 {s(sC)}, 0x3e0293ee',
          's_waitcnt lgkmcnt(0)'] + stamp(1)
    L += [f's_cmp_lt_i32 {s(sCL)}, 1', f's_cselect_b32 {s(sC)}, 0, {s(sC)}', f's_cselect_b32 {s(sCL)}, 0x800, {s(sCL)}',
          f's_min_u32 {s(sCLT)}, {s(sCL)}, 0x800', f's_max_u32 {s(sCL)}, {s(sCLT)}, {MINCL}',
          f's_add_u32 {s(sN)}, {s(sCL)}, 63', f's_lshr_b32 {s(sN)}, {s(sN)}, 6',
          f's_sub_u32 {s(sE)}, 0, {s(sN)}', f's_and_b32 {s(sE)}, {s(sE)}, 3', f's_lshl_b32 {s(sSL)}, {s(sE)}, 14']
    L += btprep(0) + dma4(0, 0) + qload(1)
    L += [f's_mov_b32 {s(sC2)}, {s(sC)}',
          f's_cmp_lt_u32 {s(sCLT)}, {4096 if OPT["forceslow"] else MINCL}', f's_cselect_b32 {s(sFORCE)}, 1, 0',
          f's_add_u32 {s(sIT)}, {s(sN)}, {s(sE)}', f's_lshr_b32 {s(sIT)}, {s(sIT)}, 2', f's_sub_u32 {s(sIT)}, {s(sIT)}, 2']
    for i in range(1, 4):
        L += [f's_add_u32 {s(sSL+i)}, {s(sSL)}, {i*0x4000}', f's_and_b32 {s(sSL+i)}, {s(sSL+i)}, 0xc000']
    L += [f's_sub_u32 {s(sT)}, {s(sN)}, 1', f's_lshl_b32 {s(sT)}, {s(sT)}, 6', f's_sub_u32 {s(sT)}, {s(sCL)}, {s(sT)}',
          f's_add_u32 {s(sNKB)}, {s(sT)}, 15', f's_lshr_b32 {s(sNKB)}, {s(sNKB)}, 4',
          f's_sub_u32 {s(sT)}, {s(sT)}, 1', f's_and_b32 {s(sT)}, {s(sT)}, 15',
          f's_and_b32 {s(sT+1)}, {s(sE)}, 1', f's_sub_u32 {s(sT+1)}, 4, {s(sT+1)}', f's_sub_u32 {s(sT+2)}, 7, {s(sT+1)}',
          f's_mov_b32 {s(sLN)}, 5',
          f's_lshl_b32 {s(sT+3)}, {s(sW)}, 13', f's_add_u32 {s(sT+3)}, {s(sT+3)}, 0x20000', f's_lshl_b32 {s(sT+4)}, {s(sW)}, 14']
    L += [f'v_lshrrev_b32 {v(t+4)}, 2, {v(t+2)}', f'v_lshlrev_b32 {v(t+4)}, 4, {v(t+4)}',
          f'v_and_b32 {v(t+6)}, 3, {v(t+2)}', f'v_add_u32 {v(t+4)}, {v(t+4)}, {v(t+6)}', f'v_lshlrev_b32 {v(t+4)}, 8, {v(t+4)}',
          f'v_lshlrev_b32 {v(t+6)}, 12, {v(t)}', f'v_lshl_add_u32 {v(t+6)}, {v(t+2)}, 8, {v(t+6)}', f'v_add_u32 {v(t+6)}, 0x20000, {v(t+6)}']
    for ks in range(4):
        L += [f'v_xor_b32 {v(MK)}, {4*ks}, {v(t+5)}', f'v_lshl_add_u32 {v(KA+ks)}, {v(MK)}, 4, {v(t+4)}',
              f'v_lshl_add_u32 {v(QA+ks)}, {v(MK)}, 4, {v(t+6)}', f'v_add_u32 {v(KA0+ks)}, {s(sSL)}, {v(KA+ks)}']
    L += [f'v_bfe_u32 {v(t+5)}, {v(t+1)}, 2, 2',
          f'v_lshl_add_u32 {v(t+4)}, {v(t+3)}, 4, {v(t+5)}', f'v_lshlrev_b32 {v(t+4)}, 8, {v(t+4)}',
          f'v_and_b32 {v(MK)}, 3, {v(t+1)}', f'v_lshl_add_u32 {v(t+4)}, {v(MK)}, 3, {v(t+4)}', f'v_add_u32 {v(t+4)}, 0x10000, {v(t+4)}',
          f'v_lshl_add_u32 {v(t+5)}, {v(t+3)}, 2, {v(t+5)}', f'v_and_b32 {v(t+5)}, 7, {v(t+5)}']
    for db in range(8):
        L += [f'v_xor_b32 {v(VA+db)}, {db}, {v(t+5)}', f'v_lshl_add_u32 {v(VA+db)}, {v(VA+db)}, 5, {v(t+4)}',
              f'v_add_u32 {v(VA0+db)}, {s(sSL)}, {v(VA+db)}']
    L += [f'v_lshlrev_b32 {v(t+4)}, 14, {v(t)}', f'v_lshl_add_u32 {v(t+4)}, {v(t+2)}, 8, {v(t+4)}',
          f'v_and_b32 {v(t+5)}, 1, {v(t+3)}', f'v_lshl_add_u32 {v(t+4)}, {v(t+5)}, 5, {v(t+4)}',
          f'v_lshrrev_b32 {v(t+5)}, 1, {v(t+3)}', f'v_lshl_add_u32 {v(OV)}, {v(t+5)}, 4, {v(t+4)}',
          f'v_and_b32 {v(t+4)}, 1, {v(t+1)}', f'v_mov_b32 {v(t+5)}, 0xaaaaaaaa',
          f'v_mul_lo_u32 {v(t+4)}, {v(t+4)}, {v(t+5)}', f'v_or_b32 {v(IDX)}, 0x44444444, {v(t+4)}', f'v_mov_b32 {v(t+5)}, 0x3f803f80']
    L += [f'v_accvgpr_write_b32 {a(aONE+i)}, {v(t+5)}' for i in range(4)]
    L += [f'v_lshlrev_b32 {v(t+4)}, 2, {v(t+3)}', f'v_mov_b32 {v(t+5)}, {NEG:#x}']
    for r in range(4):
        L += [f'v_add_u32 {v(t+6)}, {r}, {v(t+4)}', f'v_cmp_lt_u32 vcc, {s(sT)}, {v(t+6)}', 's_nop 1',
              f'v_cndmask_b32 {v(MK+r)}, 0, {v(t+5)}, vcc']
    L += btprep(1) + btprep(2) + btprep(3)
    L += [f'v_mov_b32 {v(O0+i)}, 0' for i in range(64, 128)]
    L += [f'v_accvgpr_write_b32 {a(aL+i)}, 0' for i in range(16)]
    groups = {'q2': qload(2), 'q3': qload(3), 'v0': dma4(1, 0), 'k1': dma4(0, 1), 'v1': dma4(1, 1), 'k2': dma4(0, 2), 'v2': dma4(1, 2), 'k3': dma4(0, 3)}
    plan = {0: dict(A=['q2'], B=['v0'], C=['q3'], D=['k1', 'v1'], E=['k2'], F=['v2', 'k3']),
            1: dict(A=['q2'], B=['v0'], C=['q3'], D=['k1'], E2=['v1', 'k2'], G=['v2', 'k3']),
            2: dict(A=['q2', 'v0'], C=['q3', 'k1'], D=['v1'], E2=['k2'], G=['v2', 'k3']),
            3: dict(A0=['v0'], A=['q2'], C=['q3', 'k1'], D=['v1', 'k2'], G=['v2', 'k3'])}[OPT['po']]
    at = lambda p_: [x for g_ in plan.get(p_, []) for x in groups[g_]]
    L += at('A0') + ['WAITVM ld Q0'] + stamp(2) + qread(0) + at('A') + scale_q(0) + ['WAITVM ld BT']
    for i in range(4):
        L.append(f'v_lshlrev_b32 {v(BT+i)}, 16, {v(BT+i)}')
        if i < 3: L.append(f'v_or_b32 {v(BT+i)}, {(3-i)*1024}, {v(BT+i)}')
    L += ['s_nop 0'] + [f'v_readlane_b32 {s(SETS[k]+i)}, {v(BT+i)}, {s(sT+1+k)}' for k in range(2) for i in range(4)]
    L += ['WAITVM dma K 0', 's_barrier']
    L += [i_kread(kb, ks, 0, '0', addr=KA0) for kb in range(4) for ks in range(4)] + at('B')
    P = Prog()
    for name, mf in (('q0', qkg(0)), ('q1', qkg(1)), ('q2', qkg(2)), ('p0', pvg(0, first=True)), ('q3', qkg(3)), ('p1', pvg(1, first=True))): P.group(name, mf)
    P.done(); p = P.pos
    P.softmax('s0', p['q0'], 0, 0, dlcap=p['q1'] + 4); P.softmax('s1', p['q1'], 1, 1, dlcap=p['q2'] + 4)
    P.softmax('s2', p['q2'], 2, 2, dlcap=p['q3'] - 1); P.softmax('s3', p['q3'], 3, 3, skip=LEFT3)
    P.vload('v', p['p0'], 0, '0', addr=VA0, rel0=p['q2'])
    kb0 = p['p1'] - 1
    P.kload('k', P.n, 0, '1', addr=T0, rel0=kb0 + 1, dlmax=P.n - 2)
    g = P.gaps
    todo = schedule(P.n, P.ops, g, overflow=True)
    assert not todo
    g[p['q1'] - 1].post += ['WAITVM ld Q1'] + qread(1) + at('C') + scale_q(1) + ['s_nop 0']
    g[p['q2'] - 1].post += ['WAITVM ld Q2'] + qread(2) + at('D') + scale_q(2) + ['WAITVM dma V 0', 's_barrier']
    g[p['q3'] - 1].post += ['WAITVM ld Q3'] + stamp(3) + qread(3) + at('E') + scale_q(3) + at('E2') + \
                           [f'v_add_u32 {v(T0+ks)}, {s(sSL+1)}, {v(KA+ks)}' for ks in range(4)]
    g[kb0].post += at('F') + ['WAITVM dma K 1', 's_barrier']
    g[P.n - 1].post += at('G') + [HEADWAIT]
    L += emit(P.mf, g)
    L = resolve_waitvm(L)
    L, pend = add_lgkm_waits(L)
    L += stamp(4)
    L += [f's_cmp_eq_u32 {s(sE)}, 2', 's_cbranch_scc1 L_b3', f's_cmp_eq_u32 {s(sE)}, 1', 's_cbranch_scc1 L_b2',
          f's_cmp_eq_u32 {s(sE)}, 3', 's_cbranch_scc1 L_b0', f's_cmp_eq_u32 {s(sN)}, 4', 's_cbranch_scc1 L_tail']
    return L, pend

def slow():
    t = T0
    L = ['L_slow:', 's_waitcnt vmcnt(0) lgkmcnt(0)']
    M, LS, KV, VD0, VD1 = KA, BT, DK, DV, IDX
    L += [f'v_mbcnt_lo_u32_b32 {v(t+1)}, -1, 0', f'v_mbcnt_hi_u32_b32 {v(t+1)}, -1, {v(t+1)}',
          f'v_and_b32 {v(t+2)}, 15, {v(t+1)}', f'v_lshrrev_b32 {v(t+3)}, 4, {v(t+1)}']
    L += [f's_lshl_b32 {s(sT)}, {s(sW)}, 14', f'v_lshlrev_b32 {v(t+4)}, 8, {v(t+2)}', f'v_lshl_add_u32 {v(t+4)}, {v(t+3)}, 4, {v(t+4)}',
          f'v_add_u32 {v(t+4)}, {s(sT)}, {v(t+4)}']
    L += [f'buffer_load_dwordx4 {v(S0+16*q+4*ks,4)}, {v(t+4)}, s[4:7], {"0" if q == 0 else s(sQ1)} offen offset:{64*ks}' for q in range(2) for ks in range(4)]
    L += [f'v_lshlrev_b32 {v(t+4)}, 12, {v(t+2)}', f'v_lshl_add_u32 {v(KV)}, {v(t+3)}, 4, {v(t+4)}', f'v_add_u32 {v(KV)}, 3072, {v(KV)}',
          f'v_lshlrev_b32 {v(t+4)}, 1, {v(t+3)}', f'v_xor_b32 {v(t+4)}, {v(t+2)}, {v(t+4)}',
          f'v_lshlrev_b32 {v(t+4)}, 4, {v(t+4)}', f'v_lshl_add_u32 {v(VD0)}, {v(t+3)}, 12, {v(t+4)}', f'v_add_u32 {v(VD0)}, 3072, {v(VD0)}',
          f'v_xor_b32 {v(t+4)}, 0x80, {v(t+4)}', f'v_lshl_add_u32 {v(VD1)}, {v(t+3)}, 12, {v(t+4)}', f'v_add_u32 {v(VD1)}, {3072 + 16384}, {v(VD1)}',
          f's_lshl_b32 {s(sMV)}, {s(sW)}, 13', f's_add_u32 {s(sMV)}, {s(sMV)}, 0x20000',
          f'v_bfe_u32 {v(t+5)}, {v(t+1)}, 2, 2', f'v_lshl_add_u32 {v(t+5)}, {v(t+3)}, 2, {v(t+5)}',
          f'v_lshlrev_b32 {v(t+4)}, 8, {v(t+5)}', f'v_and_b32 {v(t+6)}, 3, {v(t+1)}',
          f'v_lshl_add_u32 {v(t+4)}, {v(t+6)}, 3, {v(t+4)}', f'v_add_u32 {v(t+4)}, {s(sMV)}, {v(t+4)}', f'v_and_b32 {v(t+5)}, 7, {v(t+5)}']
    for db in range(8):
        L += [f'v_xor_b32 {v(VA+db)}, {db}, {v(t+5)}', f'v_lshl_add_u32 {v(VA+db)}, {v(VA+db)}, 5, {v(t+4)}']
    L += [f'v_lshlrev_b32 {v(MK)}, 2, {v(t+3)}', f'v_mov_b32 {v(MK+1)}, {NEG:#x}']
    L += [f'v_mov_b32 {v(O0+i)}, 0' for i in range(128)]
    L += [f'v_mov_b32 {v(M+q)}, 0xff7fffff' for q in range(4)] + [f'v_mov_b32 {v(LS+q)}, 0' for q in range(4)]
    L += ['s_waitcnt vmcnt(0)'] + scale_q(0) + scale_q(1)
    L += [f's_mov_b32 {s(sIT)}, 0', 'L_slow_loop:',
          f's_lshr_b32 {s(sT)}, {s(sIT)}, 2',
          f's_load_dwordx2 s[40:41], s[30:31], {s(sT)}', 's_waitcnt lgkmcnt(0)',
          's_lshl_b32 s40, s40, 16', 's_lshl_b32 s41, s41, 16']
    for kb in range(2):
        for ks in range(4):
            L.append(f'buffer_load_dwordx4 {a(aK+16*kb+4*ks,4)}, {v(KV)}, s[8:11], s{40+kb} offen offset:{64*ks}')
    for b in range(2):
        for p in range(4):
            L += [f's_add_u32 m0, {s(sMV)}, {b*4096 + p*1024}', f's_add_u32 s42, s{40+b}, {(p//2)*32768}',
                  f'buffer_load_dwordx4 {v(VD1 if p & 1 else VD0)}, s[12:15], s42 offen lds']
    L += ['s_waitcnt vmcnt(0)']
    for db in range(8):
        for tt in range(2):
            L.append(f'ds_read_b64_tr_b16 {a(aV+8*db+2*tt,2)}, {v(VA+db)} offset:{tt*4096}')
    L += [f's_sub_u32 {s(sT)}, {s(sCLT)}, {s(sIT)}', 's_waitcnt lgkmcnt(0)']
    for q in range(4):
        S = S0 + 16*q
        L += qkg(q, 2) + ['s_nop 7']
        for e in range(8):
            L += [f'v_add_u32 {v(t)}, {16*(e//4) + e%4}, {v(MK)}', f'v_cmp_gt_u32 vcc, {s(sT)}, {v(t)}', 's_nop 1',
                  f'v_cndmask_b32 {v(S+e)}, {v(MK+1)}, {v(S+e)}, vcc']
        L += [f'v_max3_f32 {v(t)}, {v(S)}, {v(S+1)}, {v(S+2)}', f'v_max3_f32 {v(t)}, {v(t)}, {v(S+3)}, {v(S+4)}',
              f'v_max3_f32 {v(t)}, {v(t)}, {v(S+5)}, {v(S+6)}', f'v_max3_f32 {v(t)}, {v(t)}, {v(S+7)}, {v(M+q)}',
              f'v_mov_b32 {v(t+1)}, {v(t)}', 's_nop 1', f'v_permlane16_swap_b32 {v(t)}, {v(t+1)}', f'v_max_f32 {v(t)}, {v(t)}, {v(t+1)}',
              f'v_mov_b32 {v(t+1)}, {v(t)}', 's_nop 1', f'v_permlane32_swap_b32 {v(t)}, {v(t+1)}', f'v_max_f32 {v(t)}, {v(t)}, {v(t+1)}',
              f'v_sub_f32 {v(t+1)}, {v(M+q)}, {v(t)}', f'v_exp_f32 {v(t+1)}, {v(t+1)}', f'v_mov_b32 {v(M+q)}, {v(t)}']
        L += [f'v_sub_f32 {v(S+e)}, {v(S+e)}, {v(t)}' for e in range(8)]
        L += [f'v_exp_f32 {v(S+e)}, {v(S+e)}' for e in range(8)]
        L += [f'v_mul_f32 {v(LS+q)}, {v(LS+q)}, {v(t+1)}']
        L += [f'v_mul_f32 {v(O0+32*q+i)}, {v(O0+32*q+i)}, {v(t+1)}' for i in range(32)]
        L += [i_cvt(q, q, i) for i in range(4)]
        for i in range(4):
            L += [f'v_lshlrev_b32 {v(t)}, 16, {v(P0+8*q+i)}', f'v_and_b32 {v(t+1)}, 0xffff0000, {v(P0+8*q+i)}',
                  f'v_add_f32 {v(LS+q)}, {v(LS+q)}, {v(t)}', f'v_add_f32 {v(LS+q)}, {v(LS+q)}, {v(t+1)}']
        L += [pv(q, db, 0) for db in range(8)]
    L += [f's_add_u32 {s(sIT)}, {s(sIT)}, 32', f's_cmp_lt_u32 {s(sIT)}, {s(sCLT)}', 's_cbranch_scc1 L_slow_loop', 's_nop 7']
    for q in range(4):
        o = O0 + 32*q
        L += [f'v_mov_b32 {v(t)}, {v(LS+q)}', f'v_mov_b32 {v(t+1)}, {v(LS+q)}', 's_nop 1',
              f'v_permlane16_swap_b32 {v(t)}, {v(t+1)}', f'v_add_f32 {v(t)}, {v(t)}, {v(t+1)}',
              f'v_mov_b32 {v(t+1)}, {v(t)}', 's_nop 1', f'v_permlane32_swap_b32 {v(t)}, {v(t+1)}', f'v_add_f32 {v(t)}, {v(t)}, {v(t+1)}',
              f'v_rcp_f32 {v(t)}, {v(t)}', 's_nop 0']
        L += [f'v_mul_f32 {v(o+i)}, {v(o+i)}, {v(t)}' for i in range(32)]
        for u in range(4):
            L += [f'v_cvt_pk_bf16_f32 {v(o+8*u+i)}, {v(o+8*u+2*i)}, {v(o+8*u+2*i+1)}' for i in range(4)]
        for u in range(4):
            L += [f'v_permlane16_swap_b32 {v(o+8*u+i)}, {v(o+8*u+2+i)}' for i in range(2)]
        for u in range(4):
            L.append(f'buffer_store_dwordx4 {v(o+8*u,4)}, {v(OV)}, s[16:19], {"0" if q == 0 else s(sQ1+q-1)} offen offset:{64*u}')
    return L + ['s_endpgm']

NFIN = 0
def finish():
    global NFIN
    NFIN += 1
    L = [f'v_cmp_lt_u32 vcc, 0x28000000, {v(T0+4)}' if not OPT.get('abl') else 's_mov_b64 vcc, 0',
         f's_cmp_lg_u32 {s(sFORCE)}, 0', 's_cbranch_scc1 L_slow', 's_nop 3', 's_cbranch_vccnz L_slow']
    if OPT['stamp']:
        L += [f's_memtime s[40:41]', 's_waitcnt vmcnt(0)', 's_memtime s[42:43]', f's_memrealtime s[44:45]', 's_waitcnt lgkmcnt(0)']
        st = lambda i: sST + 2*i if i < 6 else 40 + 2*(i - 6)
        if OPT.get('fixed'):
            L += [f's_mov_b32 {s(sT+4)}, {OPT["fixed"]}']
            if OPT.get('xcc'):
                L += [f's_getreg_b32 {s(sT+5)}, hwreg(HW_REG_XCC_ID, 0, 4)', f's_sub_u32 {s(sT+5)}, {s(sT+5)}, s2', f's_and_b32 {s(sT+5)}, {s(sT+5)}, 7']
                if OPT['xcc'] == 2: L += [f's_sub_u32 {s(sT+5)}, 7, {s(sT+5)}']
                L += [f's_mul_i32 {s(sT+5)}, {s(sT+5)}, 500', f's_add_u32 {s(sT+4)}, {s(sT+4)}, {s(sT+5)}']
            if OPT.get('phase'):
                L += [f's_sub_u32 {s(sT+5)}, {s(st(OPT["phase"]))}, {s(st(OPT.get("phase0", 0)))}']
                if OPT.get('neg'): L += [f's_sub_u32 {s(sT+5)}, {OPT["neg"]}, {s(sT+5)}']
                L += [f's_lshr_b32 {s(sT+5)}, {s(sT+5)}, {OPT.get("sh", 3)}', f's_add_u32 {s(sT+4)}, {s(sT+4)}, {s(sT+5)}']
            return L + [f'L_spin{NFIN}:', f's_memrealtime {s(sT,2)}', 's_waitcnt lgkmcnt(0)', f's_sub_u32 {s(sT)}, {s(sT)}, s100',
                        f's_cmp_lt_u32 {s(sT)}, {s(sT+4)}', f's_cbranch_scc1 L_spin{NFIN}', 's_endpgm']
        L += ['s_load_dwordx2 s[24:25], s[0:1], 56', 's_waitcnt lgkmcnt(0)', 's_mov_b32 s26, 0x100000', 's_mov_b32 s27, 0x20000']
        L += [f'v_mov_b32 v{i}, {s(st(i))}' for i in range(8)]
        L += ['v_mov_b32 v8, s42', 'v_mov_b32 v9, s44', 'v_mov_b32 v10, s100', 'v_mov_b32 v11, 0',
              f's_lshl_b32 {s(sT)}, s2, 2', f's_add_u32 {s(sT)}, {s(sT)}, {s(sW)}', f's_lshl_b32 {s(sT)}, {s(sT)}, 6',
              'v_mov_b32 v12, 0', 's_mov_b64 exec, 1',
              f'buffer_store_dwordx4 v[0:3], v12, s[24:27], {s(sT)} offen',
              f'buffer_store_dwordx4 v[4:7], v12, s[24:27], {s(sT)} offen offset:16',
              f'buffer_store_dwordx4 v[8:11], v12, s[24:27], {s(sT)} offen offset:32']
    return L + ['s_endpgm']

def main():
    pro, pend0 = prologue()
    loop, pend = loop_code()
    assert [x[0] for x in pend0] == [x[0] for x in pend], (pend0, pend)
    L = [f'{NAME}:'] + pro + loop
    L += ['L_tail:'] + stamp(5) + [f's_cmp_gt_u32 {s(sNKB)}, 1', 's_cbranch_scc1 L_tail234']
    L += tail(1, pend) + finish() + ['L_pfend:']
    L += ['L_tail234:', f's_cmp_eq_u32 {s(sNKB)}, 3', 's_cbranch_scc1 L_tail3', f's_cmp_eq_u32 {s(sNKB)}, 4', 's_cbranch_scc1 L_tail4']
    L += tail(2, pend) + finish() + ['L_tail3:'] + tail(3, pend) + finish() + ['L_tail4:'] + tail(4, pend) + finish()
    L += slow() + ['L_end:', 's_endpgm']
    L, nn = fix_hazards(L, verbose=OPT.get('verbose', 0))
    print('nop states inserted:', nn, ' leftovers:', sorted(LEFT3))
    hdr = open('standalone__paged_block_table_kv_pagedattention__prompt.s.ref').read().split('; Override')[0]
    txt = hdr + '; Generated by gen/gen2.py (hand-written generator).\n'
    txt += '; @launch grid=(256,1,1) block=(256,1,1) lds=163840\n'
    txt += f'.amdgcn_target "amdgcn-amd-amdhsa--gfx950"\n.text\n.globl {NAME}\n.p2align 8\n.type {NAME},@function\n'
    for l in L: txt += (l if l.endswith(':') or l.startswith(('.', ';')) else '    ' + l) + '\n'
    txt += f'''.section .rodata,"a"
.p2align 6
.amdhsa_kernel {NAME}
  .amdhsa_next_free_vgpr 504
  .amdhsa_next_free_sgpr 102
  .amdhsa_accum_offset 256
  .amdhsa_group_segment_fixed_size 0
  .amdhsa_kernarg_size 64
  .amdhsa_user_sgpr_count 2
  .amdhsa_user_sgpr_kernarg_segment_ptr 1
  .amdhsa_system_sgpr_workgroup_id_x 1
.end_amdhsa_kernel
'''
    open(sys.argv[1], 'w').write(txt)
    if OPT.get('show'):
        for g in range(NG): print(g, PAT[g])
main()
```

```python
import sys
from asmcheck import parse, fix_hazards, Ins

NAME = 'standalone__paged_block_table_kv_pagedattention__prompt_kernel'
FL = {0: '', 1: ' nt', 2: ' sc1', 3: ' sc0 sc1', 4: ' sc1 nt', 5: ' sc0 sc1 nt', 6: ' sc0', 7: ' sc0 nt'}
OPT = dict(po=0, cpf=1, qf=0, kf=0, of=2, delta=9, stamp=0, lat=8, forceslow=0, tord=1, epri=12, ep=1, ssp=4, tv=3)
for a_ in sys.argv[2:]:
    k_, v_ = a_.split('='); OPT[k_] = int(v_, 0)

S0, P0, KA, VA, BT, DK, DV, IDX, OV, MK, T0, O0 = 0, 64, 96, 100, 108, 112, 113, 114, 115, 116, 120, 128
QD, QA = P0 + 24, P0 + 28
KA0, VA0 = O0, O0 + 32
EW, ER, EG = T0 + 5, T0 + 6, T0 + 7
aQ, aK, aV, aL, aONE, aX = 0, 64, 128, 192, 208, 212
sW, sCL, sN, sIT, sLN = 3, 36, 37, 38, 39
SETS = (56, 60)
sMK, sMV, sC, sC2, sNKB, sE, sFORCE, sCLT = 64, 65, 66, 67, 68, 69, 70, 71
sNP = 75
sQ1 = 72
sSL = 96
sT = 78
sST = 84
KBYTES = 132 * 65536
LAT = OPT['lat']
NEG = 0xf149f2ca
INF = 10 ** 6
MINCL = 193

def v(b, n=1): return f'v{b}' if n == 1 else f'v[{b}:{b+n-1}]'
def a(b, n=1): return f'a{b}' if n == 1 else f'a[{b}:{b+n-1}]'
def s(b, n=1): return f's{b}' if n == 1 else f's[{b}:{b+n-1}]'
def VR(b, n=1): return {('v', i) for i in range(b, b + n)}
def AR(b, n=1): return {('a', i) for i in range(b, b + n)}

MF = 'v_mfma_f32_16x16x32_bf16'
def qk(q, kb, ks, sb=None, kbase=aK, mask=False):
    D = v(S0 + 16*(q if sb is None else sb) + 4*kb, 4)
    C = D if ks else (v(MK, 4) if mask else '0')
    return f'{MF} {D}, {a(kbase+16*kb+4*ks,4)}, {a(aQ+16*q+4*ks,4)}, {C}'
def vfrag(db, ks, vbase):
    if vbase == 'ov': return aX + 16 + 2*db
    return aV + (2*db+ks)*4 if vbase is None else vbase + 4*db
def pv(q, db, ks, pb=None, vbase=None, first=False):
    D = v(O0 + 32*q + 4*db, 4)
    return f'{MF} {D}, {a(vfrag(db, ks, vbase),4)}, {v(P0+8*(q if pb is None else pb)+4*ks,4)}, {"0" if first and ks == 0 else D}'
def sm(q, pb=None):
    return f'v_smfmac_f32_16x16x64_bf16 {a(aL+4*q,4)}, {a(aONE,4)}, {v(P0+8*(q if pb is None else pb),8)}, {v(IDX)}'
def qkg(q, nkb=4, sb=None, kbase=aK, mask=False):
    return [qk(q, kb, ks, sb, kbase, mask and kb == nkb-1) for kb in range(nkb) for ks in range(4)]
def pvg(q, pb=None, first=False): return [pv(q, db, ks, pb, None, first) for db in range(8) for ks in range(2)] + [sm(q, pb)]

def i_exp(sb, n): return f'v_exp_f32 {v(S0+16*sb+n)}, {v(S0+16*sb+n)}'
def i_cvt(sb, pb, i): return f'v_cvt_pk_bf16_f32 {v(P0+8*pb+i)}, {v(S0+16*sb+2*i)}, {v(S0+16*sb+2*i+1)}'
def i_kread(kb, ks, slot, tag, kbase=aK, addr=KA):
    return f'ds_read_b128 {a(kbase+16*kb+4*ks,4)}, {v(addr+ks)} offset:{slot*16384+kb*1024}'
def i_vread(db, ks, t, slot, tag, vbase=None, addr=VA):
    return f'ds_read_b64_tr_b16 {a(vfrag(db, ks, vbase)+2*t,2)}, {v(addr+db)} offset:{slot*16384+(2*ks+t)*1024}'
def i_dma(isv, i, soff, tag):
    return f'buffer_load_dwordx4 {v(DV if isv else DK)}, {s(12 if isv else 8,4)}, {s(soff+i)} offen offset:{i*1024}{FL[OPT["kf"]]} lds'
def i_m0(isv, slot): return f's_add_u32 m0, {s(sMV if isv else sMK)}, {slot*16384}'
def stamp(i): return [f's_memtime {s(sST+2*i,2)}'] if OPT['stamp'] else []

class Op:
    def __init__(self, key, cls, rel, dl, text, deps=(), fifo=None, pri=None):
        self.key, self.cls, self.rel, self.dl, self.text, self.deps, self.fifo = key, cls, rel, dl, text, list(deps), fifo
        self.pri = dl if pri is None else pri
        self.gap = None
class Gap:
    def __init__(self): self.sc, self.mem, self.valu, self.post = [], [], [], []; self.block = None

def schedule(ngaps, ops, gaps, overflow=False):
    byk = {o.key: o for o in ops}
    todo = list(ops)
    def ready(o, g):
        if o.rel > g: return False
        for d in o.deps:
            p = byk.get(d)
            if p is not None and (p.gap is None or p.gap >= g): return False
        if o.fifo is not None:
            p = byk[o.fifo]
            if p.gap is None or (o.cls in 'DRT' and p.cls not in 'RT' and p.gap >= g): return False
            if o.cls == 'D' and p.cls == 'R' and p.gap + LAT > g: return False
            if o.cls == 'D' and p.cls == 'D' and p.gap + OPT['ssp'] > g: return False
        return True
    def put(o, g):
        o.gap = g; todo.remove(o)
        (gaps[g].mem if o.cls in 'DRT' else gaps[g].valu).append(o)
    for g in range(ngaps):
        if gaps[g].block != 'all':
            cand = sorted((o for o in todo if ready(o, g)), key=lambda o: o.pri)
            if gaps[g].block == 'half': cand = [o for o in cand if o.cls == 'H'][:1]
            if cand:
                top = cand[0]
                halves = [o for o in cand if o.cls in 'RTH']
                full = [o for o in cand if o.cls in 'ED']
                if top.cls in 'RTH' and len(halves) == 1 and full and top.pri - g > 6 and top.fifo is None: top = full[0]
                put(top, g)
                if top.cls in 'RTH' and gaps[g].block != 'half':
                    c2 = sorted((o for o in todo if o.cls in 'RTH' and ready(o, g) and not (o.cls == 'R' and top.cls == 'R')), key=lambda o: o.pri)
                    if c2:
                        pick = c2[0]
                        if top.cls in 'RT' and pick.cls in 'RT' and pick.pri - g > 8:
                            h = [o for o in c2 if o.cls == 'H']
                            if h: pick = h[0]
                        put(pick, g)
        late = [o for o in todo if o.dl <= g]
        if late:
            if not overflow: raise RuntimeError(f'deadline miss at gap {g}: {[o.key for o in late]}')
            def force(o):
                if o.gap is not None: return
                for d in o.deps + ([o.fifo] if o.fifo else []):
                    if d in byk: force(byk[d])
                assert o.rel <= g, (o.key, o.rel, g)
                o.gap = g; todo.remove(o); gaps[g].post.append(o.text)
            for o in sorted(late, key=lambda o: (o.fifo is not None, {'R': 0, 'T': 0, 'D': 0, 'E': 1, 'H': 2}[o.cls], o.dl)): force(o)
    return todo

def emit(mf, gaps):
    out = []
    for m, g in zip(mf, gaps):
        out.append(m)
        sc = list(g.sc)
        if any(o.text.startswith('buffer_load') for o in g.mem) and not sc: sc = ['s_nop 0']
        out += sc + [o.text for o in g.mem] + [o.text for o in g.valu] + g.post
    return out

def add_lgkm_waits(lines, pre_ds=()):
    q = [(set(r), -age) for r, age in pre_ds]
    out = []; gap = -1; lastm = None; nvis = None
    for x in parse(lines):
        if x.cls == 'mfma':
            needed = [i for i, (r, g) in enumerate(q) if r & x.r]
            if needed:
                k = max(needed)
                if lastm is not None and k < nvis:
                    while k + 1 < nvis and q[k + 1][1] <= gap - LAT: k += 1
                    n = min(15, nvis - 1 - k)
                    if out[lastm:lastm+1] == ['s_nop 0']: out[lastm] = f's_waitcnt lgkmcnt({n})'
                    else: out.insert(lastm, f's_waitcnt lgkmcnt({n})')
                    k = nvis - 1 - n
                else:
                    n = min(15, len(q) - 1 - k)
                    out.append(f's_waitcnt lgkmcnt({n})')
                    k = len(q) - 1 - n
                q = q[k + 1:]
            gap += 1
            out.append(x.text); lastm = len(out); nvis = len(q)
        else:
            if x.cls == 'vmem':
                needed = [i for i, (r, g) in enumerate(q) if r & x.r]
                if needed:
                    n = min(15, len(q) - 1 - max(needed)); drop = len(q) - n
                    out.append(f's_waitcnt lgkmcnt({n})'); q = q[drop:]
                    if nvis is not None: nvis = max(0, nvis - drop)
            if x.cls == 'ds': q.append((set(x.w), gap))
            if x.cls == 'wait' and x.lgkm is not None:
                drop = max(0, len(q) - x.lgkm); q = q[drop:]
                if nvis is not None: nvis = max(0, nvis - drop)
            out.append(x.text)
    return out, [(r, gap - g) for r, g in q]

class Prog:
    def __init__(self): self.mf = []; self.ops = []; self.pos = {}
    def group(self, name, mf): self.pos[name] = len(self.mf); self.mf += mf
    def done(self):
        self.ins = [Ins(m) for m in self.mf]; self.n = len(self.mf); self.gaps = [Gap() for _ in self.mf]
    def first_read(self, R, lo): return next((i for i in range(lo, self.n) if R & self.ins[i].srcAB), INF)
    def last_read(self, R, hi): return next((i for i in range(min(hi, self.n) - 1, -1, -1) if R & self.ins[i].srcAB), -1)
    def last_write(self, R, hi): return next((i for i in range(min(hi, self.n) - 1, -1, -1) if R & self.ins[i].w), -1)
    def next_write(self, R, lo): return next((i for i in range(lo, self.n) if R & self.ins[i].w), INF)
    def kload(self, key, use, slot, tag, nkb=4, kbase=aK, addr=KA, rel0=0, dlmax=None):
        for f in range(4 * nkb):
            R = AR(kbase + 4*f, 4)
            u = self.first_read(R, use) if use < self.n else self.n + f
            rel = max(rel0, self.last_read(R, u) + 1)
            dl = u - LAT if dlmax is None else min(u - LAT, dlmax - (4*nkb - 1 - f))
            self.ops.append(Op((key, f), 'R', rel, max(rel, dl), i_kread(f//4, f%4, slot, tag, kbase, addr), deps=[(key, f-1)] if f else []))
    def vload(self, key, use, slot, tag, nks=2, vbase=None, addr=VA, rel0=0):
        for db in range(8):
            for ks in range(nks):
                R = AR(vfrag(db, ks, vbase), 4)
                u = self.first_read(R, use)
                rel = max(rel0, self.last_read(R, u) + 1)
                for t in range(2):
                    if vbase == 'ov' and t == 1 and db < 7: continue
                    self.ops.append(Op((key, db, ks, t), 'T', rel, max(rel, u - LAT - (1 - t)), i_vread(db, ks, t, slot, tag, vbase, addr)))
    def softmax(self, key, at, sb, pb, nkb=4, only=None, skip=(), dlcap=None, use=0):
        end = at + 4*nkb if at >= 0 else 0
        u = self.first_read(VR(P0 + 8*pb, 8), max(end, use))
        prel = self.last_read(VR(P0 + 8*pb, 8), u) + 1
        cap = min(u - 3, self.next_write(VR(S0 + 16*sb, 16), end) - 1, self.n - 1 if dlcap is None else dlcap)
        n = 4 * nkb; edl = {}
        for e in range(n):
            if (only is not None and ('e', e) not in only) or ('e', e) in skip: continue
            rel = at + 4*(e//4) + 3 + 5 if at >= 0 else 0
            edl[e] = max(rel, cap - 1 - 2*(n - 1 - e), min(cap - 1, rel + e % 4))
            self.ops.append(Op((key, 'e', e), 'E', rel, edl[e], i_exp(sb, e)))
        for i in range(2 * nkb):
            if (only is not None and ('c', i) not in only) or ('c', i) in skip: continue
            rel = max(prel, at + 4*(i//2) + 3 + 6 if at >= 0 else 0)
            self.ops.append(Op((key, 'c', i), 'H', rel, max(rel, cap - (2*nkb - 1 - i), min(cap, edl.get(2*i+1, 0) + 1)), i_cvt(sb, pb, i),
                               deps=[(key, 'e', 2*i), (key, 'e', 2*i+1)]))
            assert rel <= u - 1, (key, i, rel, u)
        if only is None:
            for i in range(2 * nkb, 8):
                self.ops.append(Op((key, 'z', i), 'H', prel, max(prel, u - 3), f'v_mov_b32 {v(P0+8*pb+i)}, 0'))

NG = 132
LOOP_MF = qkg(0) + pvg(2) + qkg(1) + pvg(3) + qkg(2) + pvg(0) + qkg(3) + pvg(1)
assert len(LOOP_MF) == NG
BARG = OPT.get('barg', 47)
DMAG = [10, 14, 18, 22, 26, 30, 34, 38]
RLG = [41, 43, 92, 96] if BARG not in (41, 43) else [45, 47, 92, 96]

def steady():
    NT = 6
    ops = []
    gaps = [Gap() for _ in range(NG * (NT + 1))]
    for j in range(NT):
        b = NG * j
        for q in range(4):
            pvs = b + 82 + 33*q; qs = b + 33*q
            for e in range(16):
                g = qs + OPT['delta'] + 2*e
                ops.append(Op(('e', j, q, e), 'E', g, g, None))
            for i in range(8):
                ops.append(Op(('c', j, q, i), 'H', pvs - NG + 17, pvs - 3 - (7 - i), None, deps=[('e', j, q, 2*i), ('e', j, q, 2*i+1)]))
        for f in range(16):
            for t in range(2):
                ops.append(Op(('v', j, f//2, f%2, t), 'T', max(b + 50 + f, b + BARG + 1), b + 82 + f - LAT - (1 - t), None))
            ops.append(Op(('k', j, f//4, f%4), 'R', b + 100 + f, min(b + NG - 2 - (15 - f), b + NG + f - LAT), None,
                          deps=[('k', j, (f-1)//4, (f-1)%4)] if f else []))
        for i in range(4): ops.append(Op(('rl', j, i), 'E', b + RLG[i], b + RLG[i], None))
        for i in range(8): ops.append(Op(('d', j, i), 'D', b + DMAG[i], b + DMAG[i], None))
        gaps[b + BARG].block = 'all'
        gaps[b + NG - 1].block = 'half'
    schedule(NG * (NT + 1), ops, gaps)
    def pattern(j):
        return [[(o.key[0], o.key[1] - j) + o.key[2:] for o in gaps[NG*j + g].mem + gaps[NG*j + g].valu] for g in range(NG)]
    assert pattern(3) == pattern(4), 'no steady state'
    return pattern(3)
PAT = steady()
LEFT = {k for g in PAT for k in g if k[1] == -1}
assert all(k[0] in 'ec' and k[2] == 3 for k in LEFT), LEFT
LEFT3 = {(k[0], k[3]) for k in LEFT}
HEADWAIT = 's_waitcnt lgkmcnt(4)'

class Txt:
    def __init__(self, t): self.text = t

def body(sl):
    def text(k):
        if k[0] == 'e': return i_exp(k[2], k[3])
        if k[0] == 'c': return i_cvt(k[2], k[2], k[3])
        if k[0] == 'v': return i_vread(k[2], k[3], k[4], sl, '+0')
        if k[0] == 'k': return i_kread(k[2], k[3], (sl + 1) % 4, '+1')
        if k[0] == 'rl': return f'v_readlane_b32 {s(SETS[sl%2] + k[2])}, {v(BT+k[2])}, {s(sLN)}'
        if k[0] == 'd': return i_dma(1, k[2], SETS[sl % 2], '+2') if k[2] < 4 else i_dma(0, k[2] - 4, SETS[(sl + 1) % 2], '+3')
    gaps = [Gap() for _ in range(NG)]
    for g in range(NG):
        for k in PAT[g]: (gaps[g].mem if k[0] in 'vkd' else gaps[g].valu).append(Txt(text(k)))
    gaps[DMAG[0] - 2].sc.append(i_m0(1, (sl + 2) % 4))
    gaps[DMAG[4] - 2].sc.append(i_m0(0, (sl + 3) % 4))
    gaps[RLG[-1] + 2].sc.append(f's_add_u32 {s(sLN)}, {s(sLN)}, 1')
    gaps[BARG - OPT.get('vmo', 1)].sc.append('s_waitcnt vmcnt(16)')
    gaps[BARG].sc.append('s_barrier')
    if sl == 0: gaps[NG - 3].sc.append(f's_sub_u32 {s(sIT)}, {s(sIT)}, 1')
    gaps[NG - 2].sc.append(HEADWAIT)
    lines = emit(LOOP_MF, gaps)
    ab = OPT.get('abl', 0)
    if ab & 1: lines = [l for l in lines if not l.startswith('buffer_load')]
    if ab & 2: lines = [l for l in lines if not l.startswith(('s_barrier', 's_waitcnt vmcnt'))]
    if ab & 32: lines = [l for l in lines if not l.startswith('s_barrier')]
    return lines

def loop_code():
    _, pend = add_lgkm_waits(body(1))
    out = [f'.p2align {OPT.get("al", 6)}'] + ['s_nop 0'] * OPT.get('alo', 0)
    for sl in (1, 2, 3, 0):
        l, pend2 = add_lgkm_waits(body(sl), pend)
        assert [x[0] for x in pend2] == [x[0] for x in pend]
        out += [f'L_b{sl}:'] + l
    return out + ['s_cbranch_scc0 L_b1'], pend

def epi_list(q, first):
    t = T0 + 2 * (q & 1)
    o = O0 + 32*q
    L = [('H', f'v_accvgpr_read_b32 {v(t)}, {a(aL+4*q)}', -1),
         ('H', f'v_accvgpr_read_b32 {v(t+1)}, {a(aL+4*q+1)}', -1),
         ('H', f'v_add_f32 {v(t)}, {v(t)}, {v(t+1)}', -1),
         ('E', f'v_rcp_f32 {v(t+1)}, {v(t)}', -1),
         ('H', f'v_subrev_u32 {v(t)}, 0x2b800000, {v(t)}', -1),
         ('H', f'v_mov_b32 {v(T0+4)}, {v(t)}' if first else f'v_max_u32 {v(T0+4)}, {v(T0+4)}, {v(t)}', -1)]
    def muls(u): return [('M', (o + 8*u + i, t + 1), u) for i in range(8)]
    def cvts(u): return [('H', f'v_cvt_pk_bf16_f32 {v(o+8*u+i)}, {v(o+8*u+2*i)}, {v(o+8*u+2*i+1)}', u) for i in range(4)]
    def swaps(u): return [('H', f'v_permlane16_swap_b32 {v(o+8*u+i)}, {v(o+8*u+2+i)}', u) for i in range(2)]
    def store(u):
        return [('D', f'buffer_store_dwordx4 {v(o+8*u,4)}, {v(OV)}, s[16:19], {"0" if q == 0 else s(sQ1+q-1)} offen offset:{64*u}{FL[OPT.get(f"of{q}", OPT["of"])]}', u)]
    if OPT['ep']:
        def writes(u): return [('T', f'ds_write_b64 {v(EW)}, {v(o+8*u+2*i,2)} offset:{64*u+32*i}', u) for i in range(2)]
        for u in range(4): L += muls(u) + cvts(u) + writes(u)
        L += [('R', f'ds_read_b128 {v(o+8*p+4,4)}, {v(ER)} offset:{1088*p}', 3) for p in range(4)]
        L += [('D', f'buffer_store_dwordx4 {v(o+8*p+4,4)}, {v(EG)}, s[16:19], {"0" if q == 0 else s(sQ1+q-1)} offen offset:{1024*p}{FL[OPT.get(f"of{q}", OPT["of"])]}', 3) for p in range(4)]
        return L
    h = lambda l, a_, b_: l[a_:b_]
    L += muls(0) + cvts(0) + h(muls(1), 0, 2) + swaps(0) + store(0) + h(muls(1), 2, 8) + cvts(1) + h(muls(2), 0, 2) + swaps(1) + store(1) \
       + h(muls(2), 2, 8) + cvts(2) + h(muls(3), 0, 2) + swaps(2) + store(2) + h(muls(3), 2, 8) + cvts(3) + [('H', 's_nop 1', 3)] + swaps(3) + store(3)
    return L

def final(q, items):
    return [sm(q, pb) for pb, vb, nk in items] + [pv(q, db, ks, pb, vb) for db in range(8) for pb, vb, nk in items for ks in range(nk)]

def tail_merged():
    P = Prog(); G = P.group
    k3 = lambda q, sb: qkg(q, 1, sb=sb, kbase=aX, mask=True)
    fin = lambda q, pb: final(q, [(q, None, 2), (pb, 'ov', 1)])
    G('q0', qkg(0)); G('p2', pvg(2)); G('p3', pvg(3)); G('r0', k3(0, 2)); G('r1', k3(1, 3)); G('q1', qkg(1))
    if OPT['tord'] == 0:
        G('f0', fin(0, 2)); G('q2', qkg(2)); G('r2', k3(2, 0)); G('f1', fin(1, 3)); G('q3', qkg(3)); G('r3', k3(3, 1))
    else:
        G('f0', fin(0, 2)); G('r2', k3(2, 0)); G('q2', qkg(2)); G('f1', fin(1, 3)); G('r3', k3(3, 1)); G('q3', qkg(3))
    G('f2', fin(2, 0)); G('f3', fin(3, 1))
    P.done(); p = P.pos
    bar2 = p['p3'] + 8
    P.softmax('left', -1, 3, 3, only=LEFT3)
    for q in range(4):
        P.softmax(f's{q}', p[f'q{q}'], q, q, use=p[f'f{q}'])
        P.softmax(f't{q}', p[f'r{q}'], (q + 2) % 4, (q + 2) % 4, 1, use=p[f'f{q}'])
    P.kload('k3', p['r0'], 2, 'T3', 1, kbase=aX, rel0=2); P.vload('v2', p['f0'], 1, 'T2', rel0=2)
    P.vload('v3', p['f0'], 2, 'T3', 1, 'ov', rel0=bar2 + 1)
    g = P.gaps
    g[0].sc.append('s_waitcnt vmcnt(8)'); g[1].sc.append('s_barrier'); g[1].block = 'all'
    g[bar2 - 1].sc.append('s_waitcnt vmcnt(4)'); g[bar2].sc.append('s_barrier'); g[bar2].block = 'all'
    return P

def tail_pairs(nkb):
    nks = 1 if nkb <= 2 else 2
    small = nkb <= 2
    vx = aX if small else None
    P = Prog()
    G = P.group
    G('A1', qkg(0, sb=0)); G('A2', pvg(2)); G('A3', qkg(1, sb=1)); G('A4', pvg(3))
    G('A5', qkg(0, sb=2)); G('A6', qkg(1, sb=3)); G('A7', pvg(0, pb=0))
    if not small: G('A8', pvg(1, pb=1))
    G('A9a', qkg(0, nkb, sb=0, mask=True)); G('A9b', qkg(1, nkb, sb=1, mask=True))
    if small:
        G('A8', pvg(1, pb=1))
        G('A10', final(0, [(2, None, 2), (0, vx, 1)])); G('B1', qkg(2, sb=2)); G('A11', final(1, [(3, None, 2), (1, vx, 1)]))
        G('B2', qkg(3, sb=3)); G('B3', qkg(2, sb=0)); G('B4', pvg(2, pb=2))
        G('B7a', qkg(2, nkb, sb=2, kbase=aQ, mask=True)); G('B7b', qkg(3, nkb, sb=3, kbase=aQ, mask=True)); G('B5', pvg(3, pb=3))
        if OPT['tord']:
            G('B8', final(2, [(0, None, 2), (2, vx, 1)])); G('B6', qkg(3, sb=1))
            G('B9a', final(3, [(3, vx, 1)])); G('B9', final(3, [(1, None, 2)]))
        else:
            G('B6', qkg(3, sb=1))
            G('B8', final(2, [(0, None, 2), (2, vx, 1)])); G('B9', final(3, [(1, None, 2), (3, vx, 1)]))
    else:
        G('A10p', pvg(0, pb=2)); G('A11p', pvg(1, pb=3)); G('B1', qkg(2, sb=2))
        G('A10', final(0, [(0, None, 2)])); G('A11', final(1, [(1, None, 2)]))
        G('B2', qkg(3, sb=3)); G('B3', qkg(2, sb=0)); G('B4', pvg(2, pb=2)); G('B5', pvg(3, pb=3)); G('B6', qkg(3, sb=1))
        G('B8p', pvg(2, pb=0)); G('B7a', qkg(2, nkb, sb=2, mask=True)); G('B9p', pvg(3, pb=1)); G('B7b', qkg(3, nkb, sb=3, mask=True))
        G('B8', final(2, [(2, None, 2)])); G('B9', final(3, [(3, None, 2)]))
    P.done(); p = P.pos
    bar2 = p['A6'] + 10
    P.softmax('left', -1, 3, 3, only=LEFT3)
    P.softmax('s10', p['A1'], 0, 0); P.softmax('s11', p['A3'], 1, 1); P.softmax('s20', p['A5'], 2, 2); P.softmax('s21', p['A6'], 3, 3)
    P.softmax('s30', p['A9a'], 0, 0, nkb); P.softmax('s31', p['A9b'], 1, 1, nkb, use=p['A10'])
    P.softmax('s12', p['B1'], 2, 2); P.softmax('s13', p['B2'], 3, 3); P.softmax('s22', p['B3'], 0, 0); P.softmax('s23', p['B6'], 1, 1)
    P.softmax('s32', p['B7a'], 2, 2, nkb); P.softmax('s33', p['B7b'], 3, 3, nkb, use=p['B8'])
    P.kload('k2', p['A5'], 2, 'T2', rel0=2); P.vload('v1', p['A7'], 1, 'T1', rel0=2)
    P.kload('k3', p['A9a'], 3, 'T3', nkb, rel0=bar2 + 1)
    P.kload('k1b', p['B1'], 1, 'T1'); P.kload('k2b', p['B3'], 2, 'T2'); P.vload('v1b', p['B4'], 1, 'T1')
    if small:
        P.vload('v2', p['A10'], 2, 'T2', rel0=bar2 + 1); P.vload('v3', p['A10'], 3, 'T3', 1, vx, rel0=bar2 + 1)
        P.kload('k3b', p['B7a'], 3, 'T3', nkb, kbase=aQ); P.vload('v2b', p['B8'], 2, 'T2')
    else:
        P.vload('v2', p['A10p'], 2, 'T2', rel0=bar2 + 1); P.vload('v3', p['A10'], 3, 'T3')
        P.kload('k3b', p['B7a'], 3, 'T3', nkb); P.vload('v2b', p['B8p'], 2, 'T2'); P.vload('v3b', p['B8'], 3, 'T3')
    for i in range(4):
        P.ops.append(Op(('d', i), 'D', 10 + 4*i, 11 + 4*i, i_dma(1, i, SETS[1], 'T3')))
    g = P.gaps
    g[0].sc.append('s_waitcnt vmcnt(8)'); g[1].sc.append('s_barrier'); g[1].block = 'all'
    g[8].sc.append(i_m0(1, 3))
    g[bar2 - 1].sc.append('s_waitcnt vmcnt(0)'); g[bar2].sc.append('s_barrier'); g[bar2].block = 'all'
    return P

def tail(nkb, pend):
    P = tail_merged() if nkb == 1 and OPT['tv'] == 3 else tail_pairs(nkb)
    p = P.pos
    prev = None
    if OPT['ep']:
        t = T0
        setup = [f'v_mbcnt_lo_u32_b32 {v(t)}, -1, 0', f'v_mbcnt_hi_u32_b32 {v(t)}, -1, {v(t)}',
                 f'v_and_b32 {v(t+1)}, 15, {v(t)}', f'v_lshrrev_b32 {v(t+2)}, 4, {v(t)}',
                 f'v_mul_u32_u24 {v(EW)}, 272, {v(t+1)}', f'v_lshl_add_u32 {v(EW)}, {v(t+2)}, 3, {v(EW)}',
                 f'v_mul_u32_u24 {v(ER)}, 272, {v(t+2)}', f'v_lshl_add_u32 {v(ER)}, {v(t+1)}, 4, {v(ER)}',
                 f'v_add_u32 {v(EW)}, {s(sT+3)}, {v(EW)}', f'v_add_u32 {v(ER)}, {s(sT+3)}, {v(ER)}',
                 f'v_lshlrev_b32 {v(EG)}, 4, {v(t)}', f'v_add_u32 {v(EG)}, {s(sT+4)}, {v(EG)}']
        for i, x in enumerate(setup):
            o = Op(('su', i), 'H', 24, INF, x, fifo=prev, pri=100 + i); prev = o.key; P.ops.append(o)
    for q in range(4):
        lrel = P.last_write(AR(aL + 4*q, 4), INF) + 5
        nst = 0
        for i, (c, t, u) in enumerate(epi_list(q, q == 0)):
            rel = lrel if u < 0 else max(lrel, P.last_write(VR(O0 + 32*q + 8*u, 8), INF) + 5)
            fin = P.last_write(VR(O0 + 32*q, 32), INF) + 5
            edl = OPT.get(f'edl{q}', OPT.get('edl', INF))
            nst += c == 'D'
            dl = INF if edl >= INF else fin + edl + (LAT + OPT['ssp'] * (nst - 1) if c == 'D' and OPT['ep'] else 0)
            o = Op(('ep', q, i), {'M': 'H'}.get(c, c), rel, dl if dl < P.n - 1 else INF, f'v_mul_f32 {v(t[0])}, {v(t[1])}, {v(t[0])}' if c == 'M' else t,
                   fifo=prev, pri=rel + OPT['epri'] + i // 2)
            o.raw = (c, t); prev = o.key; P.ops.append(o)
            if c != 'D': lastnd = o.key
        if OPT['ep']: prev = lastnd
    g = P.gaps
    todo = schedule(P.n, P.ops, g, overflow=True)
    if OPT.get('ts'):
        names = {1: ('A5', 'A10', 'B2'), 2: ('B4', 'B8', 'B9'), 3: ('A2', 'A7', 'A11')}[OPT['ts']] if 'A5' in p else {1: ('p3', 'f0', 'f1'), 2: ('q3', 'f2', 'f3')}[OPT['ts']]
        for k, nm in enumerate(names): g[p[nm]].sc += stamp(1 + k)
        if nkb == 1: print('stamp mfma idx', [p[nm] for nm in names], p)
    lines = emit(P.mf, g)
    assert all(o.key[0] == 'ep' for o in todo), [o.key for o in todo]
    i = 0
    while i < len(todo):
        c, t = todo[i].raw
        if c == 'M' and i + 1 < len(todo) and todo[i+1].raw[0] == 'M' and t[0] % 2 == 0 and todo[i+1].raw[1][0] == t[0] + 1:
            lines.append(f'v_pk_mul_f32 {v(t[0],2)}, {v(t[0],2)}, {v(t[1]-1,2)} op_sel:[0,1] op_sel_hi:[1,1]'); i += 2
        else:
            lines.append(todo[i].text); i += 1
    lines, _ = add_lgkm_waits(lines, pend)
    return lines

def scale_q(q):
    out = []
    for h in range(0, 16, 4):
        for i in range(4):
            x = S0 + 16*q + h + i; t = T0 + 2*i
            out += [f'v_lshlrev_b32 {v(t)}, 16, {v(x)}', f'v_and_b32 {v(t+1)}, 0xffff0000, {v(x)}']
        out += [f'v_pk_mul_f32 {v(T0+2*i,2)}, {v(T0+2*i,2)}, {s(sC,2)}' for i in range(4)]
        out += [f'v_cvt_pk_bf16_f32 {v(S0+16*q+h+i)}, {v(T0+2*i)}, {v(T0+2*i+1)}' for i in range(4)]
        out += [f'v_accvgpr_write_b32 {a(aQ+16*q+h+i)}, {v(S0+16*q+h+i)}' for i in range(4)]
    return out
def qread(q): return [f'ds_read_b128 {v(S0+16*q+4*ks,4)}, {v(QA+ks)} offset:{(q&1)*0x4000}' for ks in range(4)] + ['s_waitcnt lgkmcnt(0)']
def qload(q):
    return [f's_add_u32 m0, {s(sMK)}, {0x20000 + (q&1)*0x4000}', 's_nop 0'] + \
           [f'buffer_load_dwordx4 {v(QD+p)}, s[4:7], {"0" if q == 0 else s(sQ1+q-1)} offen offset:{1024*p}{FL[OPT["qf"]]} lds ; ld Q{q}' for p in range(4)]
def dma4(isv, tile):
    return [f's_add_u32 m0, {s(sMV if isv else sMK)}, {s(sSL+tile)}', 's_nop 0'] + [i_dma(isv, i, 40 + 4*tile, tile) for i in range(4)]
def btprep(tile):
    out = []
    for i in range(4):
        r = 40 + 4*tile + i
        out.append(f's_lshl_b32 {s(r)}, {s(r)}, 16')
        if i < 3: out.append(f's_or_b32 {s(r)}, {s(r)}, {(3-i)*1024}')
    return out

def resolve_waitvm(lines):
    out = []; vm = []
    for l in lines:
        if l.startswith('WAITVM'):
            tags = l.split(None, 1)[1].split('|')
            last = max(i for i, t in enumerate(vm) if t in tags)
            out.append(f's_waitcnt vmcnt({len(vm) - 1 - last}) ; {tags}')
        else:
            if l.startswith(('buffer_', 'global_')): vm.append(l.split(';')[1].strip() if ';' in l else '')
            out.append(l)
    return out

def prologue():
    t = T0
    L = ([f's_mov_b32 s77, {OPT["twice"]}', 'L_again:'] if OPT.get('twice') else []) + ['s_cmp_ge_u32 s2, 256', 's_cbranch_scc1 L_end',
         's_load_dwordx8 s[24:31], s[0:1], 0', 's_load_dwordx4 s[32:35], s[0:1], 32']
    if OPT['cpf']:
        L += ['s_getpc_b64 s[4:5]', 'L_pc:', 's_lshr_b32 s6, s2, 3', 's_lshl_b32 s6, s6, 10',
              'v_lshl_add_u32 v2, v0, 2, s6', 'v_min_u32 v2, L_pfend-L_pc-4, v2', 'v_mov_b32 v3, s5',
              'v_add_co_u32 v2, vcc, s4, v2', 's_nop 1', 'v_addc_co_u32 v3, vcc, 0, v3, vcc', f'global_load_dword {v(T0+7)}, v[2:3], off']
    L += stamp(0) + (['s_memrealtime s[100:101]'] if OPT['stamp'] else [])
    L += [f'v_lshrrev_b32 {v(t)}, 6, v0',
          f'v_and_b32 {v(t+2)}, 15, v0',
          f'v_readfirstlane_b32 {s(sW)}, {v(t)}',
          f'v_bfe_u32 {v(t+3)}, v0, 4, 2',
          f's_and_b32 {s(sT)}, s2, 7', f's_lshr_b32 {s(sT+1)}, s2, 3', f's_lshl_b32 {s(sT)}, {s(sT)}, 5',
          f's_add_u32 {s(sT)}, {s(sT)}, {s(sT+1)}', f's_lshl_b32 {s(sT+1)}, {s(sT)}, 16',
          f'v_lshlrev_b32 {v(t+4)}, 14, {v(t)}', f'v_lshl_add_u32 {v(t+4)}, {v(t+3)}, 8, {v(t+4)}', f'v_xor_b32 {v(t+5)}, {v(t+2)}, {v(t+3)}']
    for p in range(4):
        L += [f'v_xor_b32 {v(QD+p)}, {4*p}, {v(t+5)}', f'v_lshl_add_u32 {v(QD+p)}, {v(QD+p)}, 4, {v(t+4)}']
    L += [f's_lshl_b32 {s(sMK)}, {s(sW)}, 12', 's_mov_b32 s6, 0x10000', 's_mov_b32 s7, 0x20000',
          's_waitcnt lgkmcnt(0)',
          f's_load_dword {s(sCL)}, s[32:33], 0', 's_load_dwordx16 s[40:55], s[30:31], 0',
          f's_add_u32 s4, s24, {s(sT+1)}', 's_addc_u32 s5, s25, 0']
    L += qload(0)
    L += [f'v_and_b32 {v(t+1)}, 63, v0', f'v_lshlrev_b32 {v(t+6)}, 4, {v(t+1)}',
          's_mov_b32 s20, s30', 's_mov_b32 s21, s31', 's_movk_i32 s22, 0x200', 's_mov_b32 s23, 0x20000',
          f'buffer_load_dwordx4 {v(BT,4)}, {v(t+6)}, s[20:23], 0 offen ; ld BT',
          f's_lshr_b32 {s(sT)}, {s(sT)}, 4', f's_lshl_b32 {s(sT)}, {s(sT)}, 8',
          f's_add_u32 s8, s26, {s(sT)}', 's_addc_u32 s9, s27, 0', 's_sub_u32 s8, s8, 3072', 's_subb_u32 s9, s9, 0',
          f's_sub_u32 s10, {KBYTES+3072}, {s(sT)}', 's_mov_b32 s11, 0x20000',
          f'v_lshl_add_u32 {v(t+4)}, {v(t)}, 2, {v(t+3)}',
          f'v_xor_b32 {v(t+6)}, {v(t+2)}, {v(t+4)}', f'v_lshlrev_b32 {v(t+6)}, 4, {v(t+6)}',
          f'v_lshl_add_u32 {v(DK)}, {v(t+4)}, 12, {v(t+6)}',
          f'v_and_b32 {v(t+6)}, 7, {v(t+4)}', f'v_lshlrev_b32 {v(t+6)}, 1, {v(t+6)}',
          f'v_xor_b32 {v(t+6)}, {v(t+2)}, {v(t+6)}', f'v_lshlrev_b32 {v(t+6)}, 4, {v(t+6)}',
          f'v_lshl_add_u32 {v(DV)}, {v(t+4)}, 12, {v(t+6)}',
          f's_movk_i32 {s(sQ1)}, 0x1000', f's_movk_i32 {s(sQ1+1)}, 0x2000', f's_movk_i32 {s(sQ1+2)}, 0x3000',
          f's_add_u32 s12, s28, {s(sT)}', 's_addc_u32 s13, s29, 0', 's_sub_u32 s12, s12, 3072', 's_subb_u32 s13, s13, 0',
          's_mov_b32 s14, s10', 's_mov_b32 s15, 0x20000',
          f's_add_u32 s16, s34, {s(sT+1)}', 's_addc_u32 s17, s35, 0', 's_mov_b32 s18, 0x10000', 's_mov_b32 s19, 0x20000',
          f's_add_u32 {s(sMV)}, {s(sMK)}, 0x10000', f's_mov_b32 {s(sC)}, 0x3e0293ee',
          's_waitcnt lgkmcnt(0)'] + stamp(1)
    L += [f's_cmp_lt_i32 {s(sCL)}, 1', f's_cselect_b32 {s(sC)}, 0, {s(sC)}', f's_cselect_b32 {s(sCL)}, 0x800, {s(sCL)}',
          f's_min_u32 {s(sCLT)}, {s(sCL)}, 0x800', f's_max_u32 {s(sCL)}, {s(sCLT)}, {MINCL}',
          f's_add_u32 {s(sN)}, {s(sCL)}, 63', f's_lshr_b32 {s(sN)}, {s(sN)}, 6',
          f's_mov_b32 {s(sNP)}, {s(sN)}']
    if OPT['tv'] == 3:
        L += [f's_sub_u32 {s(sNP)}, {s(sCL)}, 1', f's_and_b32 {s(sNP)}, {s(sNP)}, 63', f's_cmp_lt_u32 {s(sNP)}, 16', f's_addc_u32 {s(sNP)}, {s(sN)}, 0']
    L += [f's_sub_u32 {s(sE)}, 0, {s(sNP)}', f's_and_b32 {s(sE)}, {s(sE)}, 3', f's_lshl_b32 {s(sSL)}, {s(sE)}, 14']
    L += btprep(0) + dma4(0, 0) + qload(1)
    L += [f's_mov_b32 {s(sC2)}, {s(sC)}',
          f's_cmp_lt_u32 {s(sCLT)}, {4096 if OPT["forceslow"] else MINCL}', f's_cselect_b32 {s(sFORCE)}, 1, 0',
          f's_add_u32 {s(sIT)}, {s(sNP)}, {s(sE)}', f's_lshr_b32 {s(sIT)}, {s(sIT)}, 2', f's_sub_u32 {s(sIT)}, {s(sIT)}, 2']
    for i in range(1, 4):
        L += [f's_add_u32 {s(sSL+i)}, {s(sSL)}, {i*0x4000}', f's_and_b32 {s(sSL+i)}, {s(sSL+i)}, 0xc000']
    L += [f's_sub_u32 {s(sT)}, {s(sN)}, 1', f's_lshl_b32 {s(sT)}, {s(sT)}, 6', f's_sub_u32 {s(sT)}, {s(sCL)}, {s(sT)}',
          f's_add_u32 {s(sNKB)}, {s(sT)}, 15', f's_lshr_b32 {s(sNKB)}, {s(sNKB)}, 4',
          f's_sub_u32 {s(sT)}, {s(sT)}, 1', f's_and_b32 {s(sT)}, {s(sT)}, 15',
          f's_and_b32 {s(sT+1)}, {s(sE)}, 1', f's_sub_u32 {s(sT+1)}, 4, {s(sT+1)}', f's_sub_u32 {s(sT+2)}, 7, {s(sT+1)}',
          f's_mov_b32 {s(sLN)}, 5',
          f's_lshl_b32 {s(sT+3)}, {s(sW)}, 13', f's_add_u32 {s(sT+3)}, {s(sT+3)}, 0x20000', f's_lshl_b32 {s(sT+4)}, {s(sW)}, 14']
    L += [f'v_lshrrev_b32 {v(t+4)}, 2, {v(t+2)}', f'v_lshlrev_b32 {v(t+4)}, 4, {v(t+4)}',
          f'v_and_b32 {v(t+6)}, 3, {v(t+2)}', f'v_add_u32 {v(t+4)}, {v(t+4)}, {v(t+6)}', f'v_lshlrev_b32 {v(t+4)}, 8, {v(t+4)}',
          f'v_lshlrev_b32 {v(t+6)}, 12, {v(t)}', f'v_lshl_add_u32 {v(t+6)}, {v(t+2)}, 8, {v(t+6)}', f'v_add_u32 {v(t+6)}, 0x20000, {v(t+6)}']
    for ks in range(4):
        L += [f'v_xor_b32 {v(MK)}, {4*ks}, {v(t+5)}', f'v_lshl_add_u32 {v(KA+ks)}, {v(MK)}, 4, {v(t+4)}',
              f'v_lshl_add_u32 {v(QA+ks)}, {v(MK)}, 4, {v(t+6)}', f'v_add_u32 {v(KA0+ks)}, {s(sSL)}, {v(KA+ks)}']
    L += [f'v_bfe_u32 {v(t+5)}, {v(t+1)}, 2, 2',
          f'v_lshl_add_u32 {v(t+4)}, {v(t+3)}, 4, {v(t+5)}', f'v_lshlrev_b32 {v(t+4)}, 8, {v(t+4)}',
          f'v_and_b32 {v(MK)}, 3, {v(t+1)}', f'v_lshl_add_u32 {v(t+4)}, {v(MK)}, 3, {v(t+4)}', f'v_add_u32 {v(t+4)}, 0x10000, {v(t+4)}',
          f'v_lshl_add_u32 {v(t+5)}, {v(t+3)}, 2, {v(t+5)}', f'v_and_b32 {v(t+5)}, 7, {v(t+5)}']
    for db in range(8):
        L += [f'v_xor_b32 {v(VA+db)}, {db}, {v(t+5)}', f'v_lshl_add_u32 {v(VA+db)}, {v(VA+db)}, 5, {v(t+4)}',
              f'v_add_u32 {v(VA0+db)}, {s(sSL)}, {v(VA+db)}']
    L += [f'v_lshlrev_b32 {v(t+4)}, 14, {v(t)}', f'v_lshl_add_u32 {v(t+4)}, {v(t+2)}, 8, {v(t+4)}',
          f'v_and_b32 {v(t+5)}, 1, {v(t+3)}', f'v_lshl_add_u32 {v(t+4)}, {v(t+5)}, 5, {v(t+4)}',
          f'v_lshrrev_b32 {v(t+5)}, 1, {v(t+3)}', f'v_lshl_add_u32 {v(OV)}, {v(t+5)}, 4, {v(t+4)}',
          f'v_and_b32 {v(t+4)}, 1, {v(t+1)}', f'v_mov_b32 {v(t+5)}, 0xaaaaaaaa',
          f'v_mul_lo_u32 {v(t+4)}, {v(t+4)}, {v(t+5)}', f'v_or_b32 {v(IDX)}, 0x44444444, {v(t+4)}', f'v_mov_b32 {v(t+5)}, 0x3f803f80']
    L += [f'v_accvgpr_write_b32 {a(aONE+i)}, {v(t+5)}' for i in range(4)]
    L += [f'v_lshlrev_b32 {v(t+4)}, 2, {v(t+3)}', f'v_mov_b32 {v(t+5)}, {NEG:#x}']
    for r in range(4):
        L += [f'v_add_u32 {v(t+6)}, {r}, {v(t+4)}', f'v_cmp_lt_u32 vcc, {s(sT)}, {v(t+6)}', 's_nop 1',
              f'v_cndmask_b32 {v(MK+r)}, 0, {v(t+5)}, vcc']
    L += btprep(1) + btprep(2) + btprep(3)
    L += [f'v_mov_b32 {v(O0+i)}, 0' for i in range(64, 128)]
    L += [f'v_accvgpr_write_b32 {a(aL+i)}, 0' for i in range(16)]
    groups = {'q2': qload(2), 'q3': qload(3), 'v0': dma4(1, 0), 'k1': dma4(0, 1), 'v1': dma4(1, 1), 'k2': dma4(0, 2), 'v2': dma4(1, 2), 'k3': dma4(0, 3)}
    plan = {0: dict(A=['q2'], B=['v0'], C=['q3'], D=['k1', 'v1'], E=['k2'], F=['v2', 'k3']),
            1: dict(A=['q2'], B=['v0'], C=['q3'], D=['k1'], E2=['v1', 'k2'], G=['v2', 'k3']),
            2: dict(A=['q2', 'v0'], C=['q3', 'k1'], D=['v1'], E2=['k2'], G=['v2', 'k3']),
            3: dict(A0=['v0'], A=['q2'], C=['q3', 'k1'], D=['v1', 'k2'], G=['v2', 'k3'])}[OPT['po']]
    at = lambda p_: [x for g_ in plan.get(p_, []) for x in groups[g_]]
    L += at('A0') + ['WAITVM ld Q0'] + stamp(2) + qread(0) + at('A') + scale_q(0) + ['WAITVM ld BT']
    for i in range(4):
        L.append(f'v_lshlrev_b32 {v(BT+i)}, 16, {v(BT+i)}')
        if i < 3: L.append(f'v_or_b32 {v(BT+i)}, {(3-i)*1024}, {v(BT+i)}')
    L += ['s_nop 0'] + [f'v_readlane_b32 {s(SETS[k]+i)}, {v(BT+i)}, {s(sT+1+k)}' for k in range(2) for i in range(4)]
    L += ['WAITVM dma K 0', 's_barrier']
    L += [i_kread(kb, ks, 0, '0', addr=KA0) for kb in range(4) for ks in range(4)] + at('B')
    P = Prog()
    for name, mf in (('q0', qkg(0)), ('q1', qkg(1)), ('q2', qkg(2)), ('p0', pvg(0, first=True)), ('q3', qkg(3)), ('p1', pvg(1, first=True))): P.group(name, mf)
    P.done(); p = P.pos
    P.softmax('s0', p['q0'], 0, 0, dlcap=p['q1'] + 4); P.softmax('s1', p['q1'], 1, 1, dlcap=p['q2'] + 4)
    P.softmax('s2', p['q2'], 2, 2, dlcap=p['q3'] - 1); P.softmax('s3', p['q3'], 3, 3, skip=LEFT3)
    P.vload('v', p['p0'], 0, '0', addr=VA0, rel0=p['q2'])
    kb0 = p['p1'] - 1
    P.kload('k', P.n, 0, '1', addr=T0, rel0=kb0 + 1, dlmax=P.n - 2)
    g = P.gaps
    todo = schedule(P.n, P.ops, g, overflow=True)
    assert not todo
    g[p['q1'] - 1].post += ['WAITVM ld Q1'] + qread(1) + at('C') + scale_q(1) + ['s_nop 0']
    g[p['q2'] - 1].post += ['WAITVM ld Q2'] + qread(2) + at('D') + scale_q(2) + ['WAITVM dma V 0', 's_barrier']
    g[p['q3'] - 1].post += ['WAITVM ld Q3'] + stamp(3) + qread(3) + at('E') + scale_q(3) + at('E2') + \
                           [f'v_add_u32 {v(T0+ks)}, {s(sSL+1)}, {v(KA+ks)}' for ks in range(4)]
    g[kb0].post += at('F') + ['WAITVM dma K 1', 's_barrier']
    g[P.n - 1].post += at('G') + [HEADWAIT]
    L += emit(P.mf, g)
    L = resolve_waitvm(L)
    L, pend = add_lgkm_waits(L)
    L += stamp(4)
    L += [f's_cmp_eq_u32 {s(sE)}, 2', 's_cbranch_scc1 L_b3', f's_cmp_eq_u32 {s(sE)}, 1', 's_cbranch_scc1 L_b2',
          f's_cmp_eq_u32 {s(sE)}, 3', 's_cbranch_scc1 L_b0', f's_cmp_eq_u32 {s(sNP)}, 4', 's_cbranch_scc1 L_tail']
    return L, pend

def slow():
    t = T0
    L = ['L_slow:', 's_waitcnt vmcnt(0) lgkmcnt(0)']
    M, LS, KV, VD0, VD1 = KA, BT, DK, DV, IDX
    L += [f'v_mbcnt_lo_u32_b32 {v(t+1)}, -1, 0', f'v_mbcnt_hi_u32_b32 {v(t+1)}, -1, {v(t+1)}',
          f'v_and_b32 {v(t+2)}, 15, {v(t+1)}', f'v_lshrrev_b32 {v(t+3)}, 4, {v(t+1)}']
    L += [f's_lshl_b32 {s(sT)}, {s(sW)}, 14', f'v_lshlrev_b32 {v(t+4)}, 8, {v(t+2)}', f'v_lshl_add_u32 {v(t+4)}, {v(t+3)}, 4, {v(t+4)}',
          f'v_add_u32 {v(t+4)}, {s(sT)}, {v(t+4)}']
    L += [f'buffer_load_dwordx4 {v(S0+16*q+4*ks,4)}, {v(t+4)}, s[4:7], {"0" if q == 0 else s(sQ1)} offen offset:{64*ks}' for q in range(2) for ks in range(4)]
    L += [f'v_lshlrev_b32 {v(t+4)}, 12, {v(t+2)}', f'v_lshl_add_u32 {v(KV)}, {v(t+3)}, 4, {v(t+4)}', f'v_add_u32 {v(KV)}, 3072, {v(KV)}',
          f'v_lshlrev_b32 {v(t+4)}, 1, {v(t+3)}', f'v_xor_b32 {v(t+4)}, {v(t+2)}, {v(t+4)}',
          f'v_lshlrev_b32 {v(t+4)}, 4, {v(t+4)}', f'v_lshl_add_u32 {v(VD0)}, {v(t+3)}, 12, {v(t+4)}', f'v_add_u32 {v(VD0)}, 3072, {v(VD0)}',
          f'v_xor_b32 {v(t+4)}, 0x80, {v(t+4)}', f'v_lshl_add_u32 {v(VD1)}, {v(t+3)}, 12, {v(t+4)}', f'v_add_u32 {v(VD1)}, {3072 + 16384}, {v(VD1)}',
          f's_lshl_b32 {s(sMV)}, {s(sW)}, 13', f's_add_u32 {s(sMV)}, {s(sMV)}, 0x20000',
          f'v_bfe_u32 {v(t+5)}, {v(t+1)}, 2, 2', f'v_lshl_add_u32 {v(t+5)}, {v(t+3)}, 2, {v(t+5)}',
          f'v_lshlrev_b32 {v(t+4)}, 8, {v(t+5)}', f'v_and_b32 {v(t+6)}, 3, {v(t+1)}',
          f'v_lshl_add_u32 {v(t+4)}, {v(t+6)}, 3, {v(t+4)}', f'v_add_u32 {v(t+4)}, {s(sMV)}, {v(t+4)}', f'v_and_b32 {v(t+5)}, 7, {v(t+5)}']
    for db in range(8):
        L += [f'v_xor_b32 {v(VA+db)}, {db}, {v(t+5)}', f'v_lshl_add_u32 {v(VA+db)}, {v(VA+db)}, 5, {v(t+4)}']
    L += [f'v_lshlrev_b32 {v(MK)}, 2, {v(t+3)}', f'v_mov_b32 {v(MK+1)}, {NEG:#x}']
    L += [f'v_mov_b32 {v(O0+i)}, 0' for i in range(128)]
    L += [f'v_mov_b32 {v(M+q)}, 0xff7fffff' for q in range(4)] + [f'v_mov_b32 {v(LS+q)}, 0' for q in range(4)]
    L += ['s_waitcnt vmcnt(0)'] + scale_q(0) + scale_q(1)
    L += [f's_mov_b32 {s(sIT)}, 0', 'L_slow_loop:',
          f's_lshr_b32 {s(sT)}, {s(sIT)}, 2',
          f's_load_dwordx2 s[40:41], s[30:31], {s(sT)}', 's_waitcnt lgkmcnt(0)',
          's_lshl_b32 s40, s40, 16', 's_lshl_b32 s41, s41, 16']
    for kb in range(2):
        for ks in range(4):
            L.append(f'buffer_load_dwordx4 {a(aK+16*kb+4*ks,4)}, {v(KV)}, s[8:11], s{40+kb} offen offset:{64*ks}')
    for b in range(2):
        for p in range(4):
            L += [f's_add_u32 m0, {s(sMV)}, {b*4096 + p*1024}', f's_add_u32 s42, s{40+b}, {(p//2)*32768}',
                  f'buffer_load_dwordx4 {v(VD1 if p & 1 else VD0)}, s[12:15], s42 offen lds']
    L += ['s_waitcnt vmcnt(0)']
    for db in range(8):
        for tt in range(2):
            L.append(f'ds_read_b64_tr_b16 {a(aV+8*db+2*tt,2)}, {v(VA+db)} offset:{tt*4096}')
    L += [f's_sub_u32 {s(sT)}, {s(sCLT)}, {s(sIT)}', 's_waitcnt lgkmcnt(0)']
    for q in range(4):
        S = S0 + 16*q
        L += qkg(q, 2) + ['s_nop 7']
        for e in range(8):
            L += [f'v_add_u32 {v(t)}, {16*(e//4) + e%4}, {v(MK)}', f'v_cmp_gt_u32 vcc, {s(sT)}, {v(t)}', 's_nop 1',
                  f'v_cndmask_b32 {v(S+e)}, {v(MK+1)}, {v(S+e)}, vcc']
        L += [f'v_max3_f32 {v(t)}, {v(S)}, {v(S+1)}, {v(S+2)}', f'v_max3_f32 {v(t)}, {v(t)}, {v(S+3)}, {v(S+4)}',
              f'v_max3_f32 {v(t)}, {v(t)}, {v(S+5)}, {v(S+6)}', f'v_max3_f32 {v(t)}, {v(t)}, {v(S+7)}, {v(M+q)}',
              f'v_mov_b32 {v(t+1)}, {v(t)}', 's_nop 1', f'v_permlane16_swap_b32 {v(t)}, {v(t+1)}', f'v_max_f32 {v(t)}, {v(t)}, {v(t+1)}',
              f'v_mov_b32 {v(t+1)}, {v(t)}', 's_nop 1', f'v_permlane32_swap_b32 {v(t)}, {v(t+1)}', f'v_max_f32 {v(t)}, {v(t)}, {v(t+1)}',
              f'v_sub_f32 {v(t+1)}, {v(M+q)}, {v(t)}', f'v_exp_f32 {v(t+1)}, {v(t+1)}', f'v_mov_b32 {v(M+q)}, {v(t)}']
        L += [f'v_sub_f32 {v(S+e)}, {v(S+e)}, {v(t)}' for e in range(8)]
        L += [f'v_exp_f32 {v(S+e)}, {v(S+e)}' for e in range(8)]
        L += [f'v_mul_f32 {v(LS+q)}, {v(LS+q)}, {v(t+1)}']
        L += [f'v_mul_f32 {v(O0+32*q+i)}, {v(O0+32*q+i)}, {v(t+1)}' for i in range(32)]
        L += [i_cvt(q, q, i) for i in range(4)]
        for i in range(4):
            L += [f'v_lshlrev_b32 {v(t)}, 16, {v(P0+8*q+i)}', f'v_and_b32 {v(t+1)}, 0xffff0000, {v(P0+8*q+i)}',
                  f'v_add_f32 {v(LS+q)}, {v(LS+q)}, {v(t)}', f'v_add_f32 {v(LS+q)}, {v(LS+q)}, {v(t+1)}']
        L += [pv(q, db, 0) for db in range(8)]
    L += [f's_add_u32 {s(sIT)}, {s(sIT)}, 32', f's_cmp_lt_u32 {s(sIT)}, {s(sCLT)}', 's_cbranch_scc1 L_slow_loop', 's_nop 7']
    for q in range(4):
        o = O0 + 32*q
        L += [f'v_mov_b32 {v(t)}, {v(LS+q)}', f'v_mov_b32 {v(t+1)}, {v(LS+q)}', 's_nop 1',
              f'v_permlane16_swap_b32 {v(t)}, {v(t+1)}', f'v_add_f32 {v(t)}, {v(t)}, {v(t+1)}',
              f'v_mov_b32 {v(t+1)}, {v(t)}', 's_nop 1', f'v_permlane32_swap_b32 {v(t)}, {v(t+1)}', f'v_add_f32 {v(t)}, {v(t)}, {v(t+1)}',
              f'v_rcp_f32 {v(t)}, {v(t)}', 's_nop 0']
        L += [f'v_mul_f32 {v(o+i)}, {v(o+i)}, {v(t)}' for i in range(32)]
        for u in range(4):
            L += [f'v_cvt_pk_bf16_f32 {v(o+8*u+i)}, {v(o+8*u+2*i)}, {v(o+8*u+2*i+1)}' for i in range(4)]
        for u in range(4):
            L += [f'v_permlane16_swap_b32 {v(o+8*u+i)}, {v(o+8*u+2+i)}' for i in range(2)]
        for u in range(4):
            L.append(f'buffer_store_dwordx4 {v(o+8*u,4)}, {v(OV)}, s[16:19], {"0" if q == 0 else s(sQ1+q-1)} offen offset:{64*u}')
    return L + ['s_endpgm']

NFIN = 0
def finish():
    global NFIN
    NFIN += 1
    L = [f'v_cmp_lt_u32 vcc, 0x28000000, {v(T0+4)}' if not OPT.get('abl') else 's_mov_b64 vcc, 0',
         f's_cmp_lg_u32 {s(sFORCE)}, 0', 's_cbranch_scc1 L_slow', 's_nop 3', 's_cbranch_vccnz L_slow']
    if OPT.get('twice'):
        L += ['s_cmp_eq_u32 s77, 0', f's_cbranch_scc1 L_fin{NFIN}', 's_sub_u32 s77, s77, 1', 's_waitcnt vmcnt(0) lgkmcnt(0)', 's_barrier',
              'v_mbcnt_lo_u32_b32 v0, -1, 0', 'v_mbcnt_hi_u32_b32 v0, -1, v0', f's_lshl_b32 {s(sT)}, {s(sW)}, 6', f'v_add_u32 v0, {s(sT)}, v0', 's_branch L_again', f'L_fin{NFIN}:']
    if OPT['stamp']:
        L += [f's_memtime s[40:41]', 's_waitcnt vmcnt(0)', 's_memtime s[42:43]', f's_memrealtime s[44:45]', 's_waitcnt lgkmcnt(0)']
        st = lambda i: sST + 2*i if i < 6 else 40 + 2*(i - 6)
        if OPT.get('fixed'):
            L += [f's_mov_b32 {s(sT+4)}, {OPT["fixed"]}']
            if OPT.get('xcc'):
                L += [f's_getreg_b32 {s(sT+5)}, hwreg(HW_REG_XCC_ID, 0, 4)', f's_sub_u32 {s(sT+5)}, {s(sT+5)}, s2', f's_and_b32 {s(sT+5)}, {s(sT+5)}, 7']
                if OPT['xcc'] == 2: L += [f's_sub_u32 {s(sT+5)}, 7, {s(sT+5)}']
                L += [f's_mul_i32 {s(sT+5)}, {s(sT+5)}, 500', f's_add_u32 {s(sT+4)}, {s(sT+4)}, {s(sT+5)}']
            if OPT.get('phase'):
                L += [f's_sub_u32 {s(sT+5)}, {s(st(OPT["phase"]))}, {s(st(OPT.get("phase0", 0)))}']
                if OPT.get('neg'): L += [f's_sub_u32 {s(sT+5)}, {OPT["neg"]}, {s(sT+5)}']
                L += [f's_lshr_b32 {s(sT+5)}, {s(sT+5)}, {OPT.get("sh", 3)}', f's_add_u32 {s(sT+4)}, {s(sT+4)}, {s(sT+5)}']
            return L + [f'L_spin{NFIN}:', f's_memrealtime {s(sT,2)}', 's_waitcnt lgkmcnt(0)', f's_sub_u32 {s(sT)}, {s(sT)}, s100',
                        f's_cmp_lt_u32 {s(sT)}, {s(sT+4)}', f's_cbranch_scc1 L_spin{NFIN}', 's_endpgm']
        L += ['s_load_dwordx2 s[24:25], s[0:1], 56', 's_waitcnt lgkmcnt(0)', 's_mov_b32 s26, 0x100000', 's_mov_b32 s27, 0x20000']
        L += [f'v_mov_b32 v{i}, {s(st(i))}' for i in range(8)]
        L += ['v_mov_b32 v8, s42', 'v_mov_b32 v9, s44', 'v_mov_b32 v10, s100', 'v_mov_b32 v11, 0',
              f's_lshl_b32 {s(sT)}, s2, 2', f's_add_u32 {s(sT)}, {s(sT)}, {s(sW)}', f's_lshl_b32 {s(sT)}, {s(sT)}, 6',
              'v_mov_b32 v12, 0', 's_mov_b64 exec, 1',
              f'buffer_store_dwordx4 v[0:3], v12, s[24:27], {s(sT)} offen',
              f'buffer_store_dwordx4 v[4:7], v12, s[24:27], {s(sT)} offen offset:16',
              f'buffer_store_dwordx4 v[8:11], v12, s[24:27], {s(sT)} offen offset:32']
    return L + ['s_endpgm']

def main():
    pro, pend0 = prologue()
    loop, pend = loop_code()
    assert [x[0] for x in pend0] == [x[0] for x in pend], (pend0, pend)
    L = [f'{NAME}:'] + pro + loop
    L += ['L_tail:'] + stamp(5) + [f's_cmp_gt_u32 {s(sNKB)}, 1', 's_cbranch_scc1 L_tail234']
    L += tail(1, pend) + finish() + ['L_pfend:']
    L += ['L_tail234:', f's_cmp_eq_u32 {s(sNKB)}, 3', 's_cbranch_scc1 L_tail3', f's_cmp_eq_u32 {s(sNKB)}, 4', 's_cbranch_scc1 L_tail4']
    L += tail(2, pend) + finish() + ['L_tail3:'] + tail(3, pend) + finish() + ['L_tail4:'] + tail(4, pend) + finish()
    L += slow() + ['L_end:', 's_endpgm']
    L, nn = fix_hazards(L, verbose=OPT.get('verbose', 0))
    print('nop states inserted:', nn, ' leftovers:', sorted(LEFT3))
    hdr = open('standalone__paged_block_table_kv_pagedattention__prompt.s.ref').read().split('; Override')[0]
    txt = hdr + '; Generated by gen/gen2.py (hand-written generator).\n'
    txt += '; @launch grid=(256,1,1) block=(256,1,1) lds=163840\n'
    txt += f'.amdgcn_target "amdgcn-amd-amdhsa--gfx950"\n.text\n.globl {NAME}\n.p2align 8\n.type {NAME},@function\n'
    for l in L: txt += (l if l.endswith(':') or l.startswith(('.', ';')) else '    ' + l) + '\n'
    txt += f'''.section .rodata,"a"
.p2align 6
.amdhsa_kernel {NAME}
  .amdhsa_next_free_vgpr 504
  .amdhsa_next_free_sgpr 102
  .amdhsa_accum_offset 256
  .amdhsa_group_segment_fixed_size 0
  .amdhsa_kernarg_size 64
  .amdhsa_user_sgpr_count 2
  .amdhsa_user_sgpr_kernarg_segment_ptr 1
  .amdhsa_system_sgpr_workgroup_id_x 1
.end_amdhsa_kernel
'''
    open(sys.argv[1], 'w').write(txt)
    if OPT.get('show'):
        for g in range(NG): print(g, PAT[g])
main()
```

```python
import sys
from asmcheck import parse, fix_hazards, Ins

NAME = 'standalone__paged_block_table_kv_pagedattention__prompt_kernel'
FL = {0: '', 1: ' nt', 2: ' sc1', 3: ' sc0 sc1', 4: ' sc1 nt', 5: ' sc0 sc1 nt', 6: ' sc0', 7: ' sc0 nt'}
OPT = dict(po=19, cpf=1, qf=0, kf=0, of=2, delta=9, stamp=0, lat=8, forceslow=0, tord=2, epri=12, ep=0, ssp=4, tv=4, edl=0)
for a_ in sys.argv[2:]:
    k_, v_ = a_.split('='); OPT[k_] = int(v_, 0)

S0, P0, KA, VA, BT, DK, DV, IDX, OV, MK, T0, O0 = 0, 64, 96, 100, 108, 112, 113, 114, 115, 116, 120, 128
QD, QA = P0 + 24, P0 + 28
KA0, VA0 = O0, S0 + 52
EW, ER, EG = T0 + 5, T0 + 6, T0 + 7
aQ, aK, aV, aL, aONE, aX = 0, 64, 128, 192, 208, 212
sW, sCL, sN, sIT, sLN = 3, 36, 37, 38, 39
SETS = (56, 60)
sMK, sMV, sC, sC2, sNKB, sE, sFORCE, sCLT = 64, 65, 66, 67, 68, 69, 70, 71
sNP = 75
sQ1 = 72
sSL = 96
sT = 78
sST = 84
KBYTES = 132 * 65536
LAT = OPT['lat']
NEG = 0xf149f2ca
INF = 10 ** 6
MINCL = 193

def v(b, n=1): return f'v{b}' if n == 1 else f'v[{b}:{b+n-1}]'
def a(b, n=1): return f'a{b}' if n == 1 else f'a[{b}:{b+n-1}]'
def s(b, n=1): return f's{b}' if n == 1 else f's[{b}:{b+n-1}]'
def VR(b, n=1): return {('v', i) for i in range(b, b + n)}
def AR(b, n=1): return {('a', i) for i in range(b, b + n)}

MF = 'v_mfma_f32_16x16x32_bf16'
def qk(q, kb, ks, sb=None, kbase=aK, mask=False):
    D = v(S0 + 16*(q if sb is None else sb) + 4*kb, 4)
    C = D if ks else (v(MK, 4) if mask else '0')
    return f'{MF} {D}, {a(kbase+16*kb+4*ks,4)}, {a(aQ+16*q+4*ks,4)}, {C}'
def vfrag(db, ks, vbase):
    if vbase == 'ov': return aX + 16 + 2*db
    return aV + (2*db+ks)*4 if vbase is None else vbase + 4*db
def pv(q, db, ks, pb=None, vbase=None, first=False):
    D = v(O0 + 32*q + 4*db, 4)
    return f'{MF} {D}, {a(vfrag(db, ks, vbase),4)}, {v(P0+8*(q if pb is None else pb)+4*ks,4)}, {"0" if first and ks == 0 else D}'
def sm(q, pb=None):
    return f'v_smfmac_f32_16x16x64_bf16 {a(aL+4*q,4)}, {a(aONE,4)}, {v(P0+8*(q if pb is None else pb),8)}, {v(IDX)}'
def qkg(q, nkb=4, sb=None, kbase=aK, mask=False):
    return [qk(q, kb, ks, sb, kbase, mask and kb == nkb-1) for kb in range(nkb) for ks in range(4)]
def pvg(q, pb=None, first=False): return [pv(q, db, ks, pb, None, first) for db in range(8) for ks in range(2)] + [sm(q, pb)]

def i_exp(sb, n): return f'v_exp_f32 {v(S0+16*sb+n)}, {v(S0+16*sb+n)}'
def i_cvt(sb, pb, i): return f'v_cvt_pk_bf16_f32 {v(P0+8*pb+i)}, {v(S0+16*sb+2*i)}, {v(S0+16*sb+2*i+1)}'
def i_kread(kb, ks, slot, tag, kbase=aK, addr=KA):
    return f'ds_read_b128 {a(kbase+16*kb+4*ks,4)}, {v(addr+ks)} offset:{slot*16384+kb*1024}'
def i_vread(db, ks, t, slot, tag, vbase=None, addr=VA):
    return f'ds_read_b64_tr_b16 {a(vfrag(db, ks, vbase)+2*t,2)}, {v(addr+db)} offset:{slot*16384+(2*ks+t)*1024}'
def i_dma(isv, i, soff, tag):
    return f'buffer_load_dwordx4 {v(DV if isv else DK)}, {s(12 if isv else 8,4)}, {s(soff+i)} offen offset:{i*1024}{FL[OPT["kf"]]} lds'
def i_m0(isv, slot): return f's_add_u32 m0, {s(sMV if isv else sMK)}, {slot*16384}'
def stamp(i): return [f's_memtime {s(sST+2*i,2)}'] if OPT['stamp'] and not (OPT.get('wb') and 1 <= i <= 4) else []

class Op:
    def __init__(self, key, cls, rel, dl, text, deps=(), fifo=None, pri=None):
        self.key, self.cls, self.rel, self.dl, self.text, self.deps, self.fifo = key, cls, rel, dl, text, list(deps), fifo
        self.pri = dl if pri is None else pri
        self.gap = None
class Gap:
    def __init__(self): self.sc, self.mem, self.valu, self.post = [], [], [], []; self.block = None

def schedule(ngaps, ops, gaps, overflow=False):
    byk = {o.key: o for o in ops}
    todo = list(ops)
    def ready(o, g):
        if o.rel > g: return False
        for d in o.deps:
            p = byk.get(d)
            if p is not None and (p.gap is None or p.gap >= g): return False
        if o.fifo is not None:
            p = byk[o.fifo]
            if p.gap is None or (o.cls in 'DRT' and p.cls not in 'RT' and p.gap >= g): return False
            if o.cls == 'D' and p.cls == 'R' and p.gap + LAT > g: return False
            if o.cls == 'D' and p.cls == 'D' and p.gap + OPT['ssp'] > g: return False
        return True
    def put(o, g):
        o.gap = g; todo.remove(o)
        (gaps[g].mem if o.cls in 'DRT' else gaps[g].valu).append(o)
    for g in range(ngaps):
        if gaps[g].block != 'all':
            cand = sorted((o for o in todo if ready(o, g)), key=lambda o: o.pri)
            if gaps[g].block == 'half': cand = [o for o in cand if o.cls == 'H'][:1]
            if cand:
                top = cand[0]
                halves = [o for o in cand if o.cls in 'RTH']
                full = [o for o in cand if o.cls in 'ED']
                if top.cls in 'RTH' and len(halves) == 1 and full and top.pri - g > 6 and top.fifo is None: top = full[0]
                put(top, g)
                if top.cls in 'RTH' and gaps[g].block != 'half':
                    c2 = sorted((o for o in todo if o.cls in 'RTH' and ready(o, g) and not (o.cls == 'R' and top.cls == 'R')), key=lambda o: o.pri)
                    if c2:
                        pick = c2[0]
                        if top.cls in 'RT' and pick.cls in 'RT' and pick.pri - g > 8:
                            h = [o for o in c2 if o.cls == 'H']
                            if h: pick = h[0]
                        put(pick, g)
        late = [o for o in todo if o.dl <= g]
        if late:
            if not overflow: raise RuntimeError(f'deadline miss at gap {g}: {[o.key for o in late]}')
            def force(o):
                if o.gap is not None: return
                for d in o.deps + ([o.fifo] if o.fifo else []):
                    if d in byk: force(byk[d])
                assert o.rel <= g, (o.key, o.rel, g)
                o.gap = g; todo.remove(o)
                if o.cls in 'RT' and o.fifo is None and gaps[g].block != 'all': gaps[g].mem.append(o)
                else: gaps[g].post.append(o.text)
            for o in sorted(late, key=lambda o: (o.fifo is not None, {'R': 0, 'T': 0, 'D': 0, 'E': 1, 'H': 2}[o.cls], o.dl)): force(o)
    return todo

def emit(mf, gaps):
    out = []
    for m, g in zip(mf, gaps):
        out.append(m)
        sc = list(g.sc)
        if any(o.text.startswith('buffer_load') for o in g.mem) and not sc: sc = ['s_nop 0']
        out += sc + [o.text for o in g.mem] + [o.text for o in g.valu] + g.post
    return out

def add_lgkm_waits(lines, pre_ds=()):
    q = [(set(r), -age) for r, age in pre_ds]
    out = []; gap = -1; lastm = None; nvis = None
    for x in parse(lines):
        if x.cls == 'mfma':
            needed = [i for i, (r, g) in enumerate(q) if r & x.r]
            if needed:
                k = max(needed)
                if lastm is not None and k < nvis:
                    while k + 1 < nvis and q[k + 1][1] <= gap - LAT: k += 1
                    n = min(15, nvis - 1 - k)
                    if out[lastm:lastm+1] == ['s_nop 0']: out[lastm] = f's_waitcnt lgkmcnt({n})'
                    else: out.insert(lastm, f's_waitcnt lgkmcnt({n})')
                    k = nvis - 1 - n
                else:
                    n = min(15, len(q) - 1 - k)
                    out.append(f's_waitcnt lgkmcnt({n})')
                    k = len(q) - 1 - n
                q = q[k + 1:]
            gap += 1
            out.append(x.text); lastm = len(out); nvis = len(q)
        else:
            if x.cls == 'vmem':
                needed = [i for i, (r, g) in enumerate(q) if r & x.r]
                if needed:
                    n = min(15, len(q) - 1 - max(needed)); drop = len(q) - n
                    out.append(f's_waitcnt lgkmcnt({n})'); q = q[drop:]
                    if nvis is not None: nvis = max(0, nvis - drop)
            if x.cls == 'ds': q.append((set(x.w), gap))
            if x.cls == 'wait' and x.lgkm is not None:
                drop = max(0, len(q) - x.lgkm); q = q[drop:]
                if nvis is not None: nvis = max(0, nvis - drop)
            out.append(x.text)
    return out, [(r, gap - g) for r, g in q]

class Prog:
    def __init__(self): self.mf = []; self.ops = []; self.pos = {}
    def group(self, name, mf): self.pos[name] = len(self.mf); self.mf += mf
    def done(self):
        self.ins = [Ins(m) for m in self.mf]; self.n = len(self.mf); self.gaps = [Gap() for _ in self.mf]
    def first_read(self, R, lo): return next((i for i in range(lo, self.n) if R & self.ins[i].srcAB), INF)
    def last_read(self, R, hi): return next((i for i in range(min(hi, self.n) - 1, -1, -1) if R & self.ins[i].srcAB), -1)
    def last_write(self, R, hi): return next((i for i in range(min(hi, self.n) - 1, -1, -1) if R & self.ins[i].w), -1)
    def next_write(self, R, lo): return next((i for i in range(lo, self.n) if R & self.ins[i].w), INF)
    def kload(self, key, use, slot, tag, nkb=4, kbase=aK, addr=KA, rel0=0, dlmax=None):
        for f in range(4 * nkb):
            R = AR(kbase + 4*f, 4)
            u = self.first_read(R, use) if use < self.n else self.n + f
            rel = min(self.n - 1, max(rel0, self.last_read(R, u) + 1))
            dl = u - LAT if dlmax is None else min(u - LAT, dlmax - (4*nkb - 1 - f))
            self.ops.append(Op((key, f), 'R', rel, max(rel, dl), i_kread(f//4, f%4, slot, tag, kbase, addr), deps=[(key, f-1)] if f else []))
    def vload(self, key, use, slot, tag, nks=2, vbase=None, addr=VA, rel0=0):
        for db in range(8):
            for ks in range(nks):
                R = AR(vfrag(db, ks, vbase), 4)
                u = self.first_read(R, use)
                rel = max(rel0, self.last_read(R, u) + 1)
                for t in range(2):
                    if vbase == 'ov' and t == 1 and db < 7: continue
                    self.ops.append(Op((key, db, ks, t), 'T', rel, max(rel, u - LAT - (1 - t)), i_vread(db, ks, t, slot, tag, vbase, addr)))
    def softmax(self, key, at, sb, pb, nkb=4, only=None, skip=(), dlcap=None, use=0, lastrel=INF, zero=True):
        end = at + 4*nkb if at >= 0 else 0
        u = self.first_read(VR(P0 + 8*pb, 8), max(end, use))
        prel = min(self.last_read(VR(P0 + 8*pb, 8), u) + 1, u - 1)
        cap = min(u - 3, self.next_write(VR(S0 + 16*sb, 16), end) - 1, self.n - 1 if dlcap is None else dlcap)
        n = 4 * nkb; edl = {}
        for e in range(n):
            if (only is not None and ('e', e) not in only) or ('e', e) in skip: continue
            rel = min(lastrel, at + 4*(e//4) + 3 + 5) if at >= 0 else 0
            edl[e] = min(max(rel, cap - 1 - 2*(n - 1 - e), min(cap - 1, rel + e % 4)), max(rel, cap))
            self.ops.append(Op((key, 'e', e), 'E', rel, edl[e], i_exp(sb, e)))
        for i in range(2 * nkb):
            if (only is not None and ('c', i) not in only) or ('c', i) in skip: continue
            rel = max(prel, min(lastrel, at + 4*(i//2) + 3 + 6) if at >= 0 else 0)
            self.ops.append(Op((key, 'c', i), 'H', rel, max(rel, cap - (2*nkb - 1 - i), min(cap, edl.get(2*i+1, 0) + 1)), i_cvt(sb, pb, i),
                               deps=[(key, 'e', 2*i), (key, 'e', 2*i+1)]))
            assert rel <= u - 1, (key, i, rel, u)
        if only is None and zero:
            for i in range(2 * nkb, 8):
                self.ops.append(Op((key, 'z', i), 'H', prel, max(prel, u - 3), f'v_mov_b32 {v(P0+8*pb+i)}, 0'))

NG = 132
LOOP_MF = qkg(0) + pvg(2) + qkg(1) + pvg(3) + qkg(2) + pvg(0) + qkg(3) + pvg(1)
assert len(LOOP_MF) == NG
BARG = OPT.get('barg', 47)
DMAG = [10, 14, 18, 22, 26, 30, 34, 38]
RLG = [41, 43, 92, 96] if BARG not in (41, 43) else [45, 47, 92, 96]

def steady():
    NT = 6
    ops = []
    gaps = [Gap() for _ in range(NG * (NT + 1))]
    for j in range(NT):
        b = NG * j
        for q in range(4):
            pvs = b + 82 + 33*q; qs = b + 33*q
            for e in range(16):
                g = qs + OPT['delta'] + 2*e
                ops.append(Op(('e', j, q, e), 'E', g, g, None))
            for i in range(8):
                ops.append(Op(('c', j, q, i), 'H', pvs - NG + 17, pvs - 3 - (7 - i), None, deps=[('e', j, q, 2*i), ('e', j, q, 2*i+1)]))
        for f in range(16):
            for t in range(2):
                ops.append(Op(('v', j, f//2, f%2, t), 'T', max(b + 50 + f, b + BARG + 1), b + 82 + f - LAT - (1 - t), None))
            ops.append(Op(('k', j, f//4, f%4), 'R', b + 100 + f, min(b + NG - 2 - (15 - f), b + NG + f - LAT), None,
                          deps=[('k', j, (f-1)//4, (f-1)%4)] if f else []))
        for i in range(4): ops.append(Op(('rl', j, i), 'E', b + RLG[i], b + RLG[i], None))
        for i in range(8): ops.append(Op(('d', j, i), 'D', b + DMAG[i], b + DMAG[i], None))
        gaps[b + BARG].block = 'all'
        gaps[b + NG - 1].block = 'half'
    schedule(NG * (NT + 1), ops, gaps)
    def pattern(j):
        return [[(o.key[0], o.key[1] - j) + o.key[2:] for o in gaps[NG*j + g].mem + gaps[NG*j + g].valu] for g in range(NG)]
    assert pattern(3) == pattern(4), 'no steady state'
    return pattern(3)
PAT = steady()
LEFT = {k for g in PAT for k in g if k[1] == -1}
assert all(k[0] in 'ec' and k[2] == 3 for k in LEFT), LEFT
LEFT3 = {(k[0], k[3]) for k in LEFT}
HEADWAIT = 's_waitcnt lgkmcnt(4)'

class Txt:
    def __init__(self, t): self.text = t

def body(sl):
    def text(k):
        if k[0] == 'e': return i_exp(k[2], k[3])
        if k[0] == 'c': return i_cvt(k[2], k[2], k[3])
        if k[0] == 'v': return i_vread(k[2], k[3], k[4], sl, '+0')
        if k[0] == 'k': return i_kread(k[2], k[3], (sl + 1) % 4, '+1')
        if k[0] == 'rl': return f'v_readlane_b32 {s(SETS[sl%2] + k[2])}, {v(BT+k[2])}, {s(sLN)}'
        if k[0] == 'd': return i_dma(1, k[2], SETS[sl % 2], '+2') if k[2] < 4 else i_dma(0, k[2] - 4, SETS[(sl + 1) % 2], '+3')
    gaps = [Gap() for _ in range(NG)]
    for g in range(NG):
        for k in PAT[g]: (gaps[g].mem if k[0] in 'vkd' else gaps[g].valu).append(Txt(text(k)))
    gaps[DMAG[0] - 2].sc.append(i_m0(1, (sl + 2) % 4))
    gaps[DMAG[4] - 2].sc.append(i_m0(0, (sl + 3) % 4))
    gaps[RLG[-1] + 2].sc.append(f's_add_u32 {s(sLN)}, {s(sLN)}, 1')
    gaps[BARG - OPT.get('vmo', 1)].sc.append('s_waitcnt vmcnt(16)')
    gaps[BARG].sc.append('s_barrier')
    if sl == 0: gaps[NG - 3].sc.append(f's_sub_u32 {s(sIT)}, {s(sIT)}, 1')
    gaps[NG - 2].sc.append(HEADWAIT)
    lines = emit(LOOP_MF, gaps)
    ab = OPT.get('abl', 0)
    if ab & 1: lines = [l for l in lines if not l.startswith('buffer_load')]
    if ab & 2: lines = [l for l in lines if not l.startswith(('s_barrier', 's_waitcnt vmcnt'))]
    if ab & 32: lines = [l for l in lines if not l.startswith('s_barrier')]
    return lines

def loop_code():
    _, pend = add_lgkm_waits(body(1))
    out = [f'.p2align {OPT.get("al", 6)}'] + ['s_nop 0'] * OPT.get('alo', 0)
    for sl in (1, 2, 3, 0):
        l, pend2 = add_lgkm_waits(body(sl), pend)
        assert [x[0] for x in pend2] == [x[0] for x in pend]
        out += [f'L_b{sl}:'] + l
    return out + ['s_cbranch_scc0 L_b1'], pend

def epi_list(q, first):
    t = T0 + 2 * (q & 1)
    o = O0 + 32*q
    L = [('H', f'v_accvgpr_read_b32 {v(t)}, {a(aL+4*q)}', -1),
         ('H', f'v_accvgpr_read_b32 {v(t+1)}, {a(aL+4*q+1)}', -1),
         ('H', f'v_add_f32 {v(t)}, {v(t)}, {v(t+1)}', -1),
         ('E', f'v_rcp_f32 {v(t+1)}, {v(t)}', -1),
         ('H', f'v_subrev_u32 {v(t)}, 0x2b800000, {v(t)}', -1),
         ('H', f'v_mov_b32 {v(T0+4)}, {v(t)}' if first else f'v_max_u32 {v(T0+4)}, {v(T0+4)}, {v(t)}', -1)]
    def muls(u): return [('M', (o + 8*u + i, t + 1), u) for i in range(8)]
    def cvts(u): return [('H', f'v_cvt_pk_bf16_f32 {v(o+8*u+i)}, {v(o+8*u+2*i)}, {v(o+8*u+2*i+1)}', u) for i in range(4)]
    def swaps(u): return [('H', f'v_permlane16_swap_b32 {v(o+8*u+i)}, {v(o+8*u+2+i)}', u) for i in range(2)]
    def store(u):
        return [('D', f'buffer_store_dwordx4 {v(o+8*u,4)}, {v(OV)}, s[16:19], {"0" if q == 0 else s(sQ1+q-1)} offen offset:{64*u}{FL[OPT.get(f"of{q}", OPT["of"])]}', u)]
    if OPT['ep']:
        def writes(u): return [('T', f'ds_write_b64 {v(EW)}, {v(o+8*u+2*i,2)} offset:{64*u+32*i}', u) for i in range(2)]
        for u in range(4): L += muls(u) + cvts(u) + writes(u)
        L += [('R', f'ds_read_b128 {v(o+8*p+4,4)}, {v(ER)} offset:{1088*p}', 3) for p in range(4)]
        L += [('D', f'buffer_store_dwordx4 {v(o+8*p+4,4)}, {v(EG)}, s[16:19], {"0" if q == 0 else s(sQ1+q-1)} offen offset:{1024*p}{FL[OPT.get(f"of{q}", OPT["of"])]}', 3) for p in range(4)]
        return L
    h = lambda l, a_, b_: l[a_:b_]
    L += muls(0) + cvts(0) + h(muls(1), 0, 2) + swaps(0) + store(0) + h(muls(1), 2, 8) + cvts(1) + h(muls(2), 0, 2) + swaps(1) + store(1) \
       + h(muls(2), 2, 8) + cvts(2) + h(muls(3), 0, 2) + swaps(2) + store(2) + h(muls(3), 2, 8) + cvts(3) + [('H', 's_nop 1', 3)] + swaps(3) + store(3)
    return L

def final(q, items):
    return [sm(q, pb) for pb, vb, nk in items] + [pv(q, db, ks, pb, vb) for db in range(8) for pb, vb, nk in items for ks in range(nk)]

def tail_merged():
    P = Prog(); G = P.group
    k3 = lambda q, sb: qkg(q, 1, sb=sb, kbase=aX, mask=True)
    fin = lambda q, pb: final(q, [(q, None, 2), (pb, 'ov', 1)])
    G('q0', qkg(0)); G('p2', pvg(2)); G('p3', pvg(3)); G('r0', k3(0, 2)); G('r1', k3(1, 3)); G('q1', qkg(1))
    if OPT['tord'] == 0:
        G('f0', fin(0, 2)); G('q2', qkg(2)); G('r2', k3(2, 0)); G('f1', fin(1, 3)); G('q3', qkg(3)); G('r3', k3(3, 1))
    else:
        G('f0', fin(0, 2)); G('r2', k3(2, 0)); G('q2', qkg(2)); G('f1', fin(1, 3)); G('r3', k3(3, 1)); G('q3', qkg(3))
    G('f2', fin(2, 0)); G('f3', fin(3, 1))
    P.done(); p = P.pos
    bar2 = p['p3'] + 8
    P.softmax('left', -1, 3, 3, only=LEFT3)
    for q in range(4):
        P.softmax(f's{q}', p[f'q{q}'], q, q, use=p[f'f{q}'])
        P.softmax(f't{q}', p[f'r{q}'], (q + 2) % 4, (q + 2) % 4, 1, use=p[f'f{q}'])
    P.kload('k3', p['r0'], 2, 'T3', 1, kbase=aX, rel0=2); P.vload('v2', p['f0'], 1, 'T2', rel0=2)
    P.vload('v3', p['f0'], 2, 'T3', 1, 'ov', rel0=bar2 + 1)
    g = P.gaps
    g[0].sc.append('s_waitcnt vmcnt(8)'); g[1].sc.append('s_barrier'); g[1].block = 'all'
    g[bar2 - 1].sc.append('s_waitcnt vmcnt(4)'); g[bar2].sc.append('s_barrier'); g[bar2].block = 'all'
    return P

def tail_x():
    P = Prog(); G = P.group
    G('A1', qkg(0, sb=0)); G('A2', pvg(2)); G('A3', qkg(1, sb=1)); G('A4', pvg(3)); G('A5', qkg(0, sb=2))
    if OPT['tord'] < 2: G('A6', qkg(1, sb=3))
    G('A7', pvg(0, pb=0)); G('A8', pvg(1, pb=1)); G('A10', final(0, [(2, None, 2)]))
    if OPT['tord'] == 2: G('A6', qkg(1, sb=3))
    G('B1', qkg(2, sb=2)); G('A11', final(1, [(3, None, 2)])); G('B2', qkg(3, sb=3)); G('B3', qkg(2, sb=0))
    G('r3', qkg(3, 1, sb=1, kbase=aX, mask=True)); G('B4', pvg(2, pb=2)); G('B5', pvg(3, pb=3))
    if OPT['tord']:
        G('B8', final(2, [(0, None, 2)])); G('B6', qkg(3, sb=1)); G('x3', final(3, [(3, 'ov', 1)])); G('B9', final(3, [(1, None, 2)]))
    else:
        G('B6', qkg(3, sb=1)); G('B8', final(2, [(0, None, 2)])); G('B9', final(3, [(1, None, 2), (3, 'ov', 1)]))
    P.done(); p = P.pos
    bar2 = p['A5'] + 6
    P.softmax('left', -1, 3, 3, only=LEFT3)
    P.softmax('s10', p['A1'], 0, 0); P.softmax('s11', p['A3'], 1, 1); P.softmax('s20', p['A5'], 2, 2); P.softmax('s21', p['A6'], 3, 3)
    P.softmax('s12', p['B1'], 2, 2); P.softmax('s13', p['B2'], 3, 3); P.softmax('s22', p['B3'], 0, 0); P.softmax('s23', p['B6'], 1, 1)
    P.softmax('t3', p['r3'], 1, 3, 1, use=p['B8'])
    P.kload('k2', p['A5'], 2, 'T2', rel0=2); P.vload('v1', p['A7'], 1, 'T1', rel0=2); P.vload('v2', p['A10'], 2, 'T2', rel0=bar2 + 1)
    P.kload('k1b', p['B1'], 1, 'T1'); P.kload('k2b', p['B3'], 2, 'T2'); P.vload('v1b', p['B4'], 1, 'T1'); P.vload('v2b', p['B8'], 2, 'T2')
    g = P.gaps
    g[0].sc.append('s_waitcnt vmcnt(8)'); g[1].sc.append('s_barrier'); g[1].block = 'all'
    g[bar2 - 1].sc.append('s_waitcnt vmcnt(4)'); g[bar2].sc.append('s_barrier'); g[bar2].block = 'all'
    return P

def tail_pairs(nkb):
    nks = 1 if nkb <= 2 else 2
    small = nkb <= 2
    vx = aX if small else None
    P = Prog()
    G = P.group
    G('A1', qkg(0, sb=0)); G('A2', pvg(2)); G('A3', qkg(1, sb=1)); G('A4', pvg(3))
    G('A5', qkg(0, sb=2)); G('A6', qkg(1, sb=3)); G('A7', pvg(0, pb=0))
    if not small: G('A8', pvg(1, pb=1))
    G('A9a', qkg(0, nkb, sb=0, mask=True)); G('A9b', qkg(1, nkb, sb=1, mask=True))
    if small:
        G('A8', pvg(1, pb=1))
        G('A10', final(0, [(2, None, 2), (0, vx, 1)])); G('B1', qkg(2, sb=2)); G('A11', final(1, [(3, None, 2), (1, vx, 1)]))
        G('B2', qkg(3, sb=3)); G('B3', qkg(2, sb=0)); G('B4', pvg(2, pb=2))
        G('B7a', qkg(2, nkb, sb=2, kbase=aQ, mask=True)); G('B7b', qkg(3, nkb, sb=3, kbase=aQ, mask=True)); G('B5', pvg(3, pb=3))
        if OPT['tord']:
            G('B8', final(2, [(0, None, 2), (2, vx, 1)])); G('B6', qkg(3, sb=1))
            G('B9a', final(3, [(3, vx, 1)])); G('B9', final(3, [(1, None, 2)]))
        else:
            G('B6', qkg(3, sb=1))
            G('B8', final(2, [(0, None, 2), (2, vx, 1)])); G('B9', final(3, [(1, None, 2), (3, vx, 1)]))
    else:
        G('A10p', pvg(0, pb=2)); G('A11p', pvg(1, pb=3)); G('B1', qkg(2, sb=2))
        G('A10', final(0, [(0, None, 2)])); G('A11', final(1, [(1, None, 2)]))
        G('B2', qkg(3, sb=3)); G('B3', qkg(2, sb=0)); G('B4', pvg(2, pb=2)); G('B5', pvg(3, pb=3)); G('B6', qkg(3, sb=1))
        G('B8p', pvg(2, pb=0)); G('B7a', qkg(2, nkb, sb=2, mask=True)); G('B9p', pvg(3, pb=1)); G('B7b', qkg(3, nkb, sb=3, mask=True))
        G('B8', final(2, [(2, None, 2)])); G('B9', final(3, [(3, None, 2)]))
    P.done(); p = P.pos
    bar2 = p['A6'] + 10
    P.softmax('left', -1, 3, 3, only=LEFT3)
    P.softmax('s10', p['A1'], 0, 0); P.softmax('s11', p['A3'], 1, 1); P.softmax('s20', p['A5'], 2, 2); P.softmax('s21', p['A6'], 3, 3)
    P.softmax('s30', p['A9a'], 0, 0, nkb); P.softmax('s31', p['A9b'], 1, 1, nkb, use=p['A10'])
    P.softmax('s12', p['B1'], 2, 2); P.softmax('s13', p['B2'], 3, 3); P.softmax('s22', p['B3'], 0, 0); P.softmax('s23', p['B6'], 1, 1)
    P.softmax('s32', p['B7a'], 2, 2, nkb); P.softmax('s33', p['B7b'], 3, 3, nkb, use=p['B8'])
    P.kload('k2', p['A5'], 2, 'T2', rel0=2); P.vload('v1', p['A7'], 1, 'T1', rel0=2)
    P.kload('k3', p['A9a'], 3, 'T3', nkb, rel0=bar2 + 1)
    P.kload('k1b', p['B1'], 1, 'T1'); P.kload('k2b', p['B3'], 2, 'T2'); P.vload('v1b', p['B4'], 1, 'T1')
    if small:
        P.vload('v2', p['A10'], 2, 'T2', rel0=bar2 + 1); P.vload('v3', p['A10'], 3, 'T3', 1, vx, rel0=bar2 + 1)
        P.kload('k3b', p['B7a'], 3, 'T3', nkb, kbase=aQ); P.vload('v2b', p['B8'], 2, 'T2')
    else:
        P.vload('v2', p['A10p'], 2, 'T2', rel0=bar2 + 1); P.vload('v3', p['A10'], 3, 'T3')
        P.kload('k3b', p['B7a'], 3, 'T3', nkb); P.vload('v2b', p['B8p'], 2, 'T2'); P.vload('v3b', p['B8'], 3, 'T3')
    for i in range(4):
        P.ops.append(Op(('d', i), 'D', 10 + 4*i, 11 + 4*i, i_dma(1, i, SETS[1], 'T3')))
    g = P.gaps
    g[0].sc.append('s_waitcnt vmcnt(8)'); g[1].sc.append('s_barrier'); g[1].block = 'all'
    g[8].sc.append(i_m0(1, 3))
    g[bar2 - 1].sc.append('s_waitcnt vmcnt(0)'); g[bar2].sc.append('s_barrier'); g[bar2].block = 'all'
    return P

def tail(nkb, pend):
    P = {3: tail_merged, 4: tail_x}[OPT['tv']]() if nkb == 1 and OPT['tv'] >= 3 else tail_pairs(nkb)
    p = P.pos
    prev = None
    if OPT['ep']:
        t = T0
        setup = [f'v_mbcnt_lo_u32_b32 {v(t)}, -1, 0', f'v_mbcnt_hi_u32_b32 {v(t)}, -1, {v(t)}',
                 f'v_and_b32 {v(t+1)}, 15, {v(t)}', f'v_lshrrev_b32 {v(t+2)}, 4, {v(t)}',
                 f'v_mul_u32_u24 {v(EW)}, 272, {v(t+1)}', f'v_lshl_add_u32 {v(EW)}, {v(t+2)}, 3, {v(EW)}',
                 f'v_mul_u32_u24 {v(ER)}, 272, {v(t+2)}', f'v_lshl_add_u32 {v(ER)}, {v(t+1)}, 4, {v(ER)}',
                 f'v_add_u32 {v(EW)}, {s(sT+3)}, {v(EW)}', f'v_add_u32 {v(ER)}, {s(sT+3)}, {v(ER)}',
                 f'v_lshlrev_b32 {v(EG)}, 4, {v(t)}', f'v_add_u32 {v(EG)}, {s(sT+4)}, {v(EG)}']
        for i, x in enumerate(setup):
            o = Op(('su', i), 'H', 24, INF, x, fifo=prev, pri=100 + i); prev = o.key; P.ops.append(o)
    for q in range(4):
        lrel = P.last_write(AR(aL + 4*q, 4), INF) + 5
        nst = 0
        for i, (c, t, u) in enumerate(epi_list(q, q == 0)):
            rel = lrel if u < 0 else max(lrel, P.last_write(VR(O0 + 32*q + 8*u, 8), INF) + 5)
            fin = P.last_write(VR(O0 + 32*q, 32), INF) + 5
            edl = OPT.get(f'edl{q}', OPT.get('edl', INF))
            nst += c == 'D'
            dl = INF if edl >= INF else fin + edl + (LAT + OPT['ssp'] * (nst - 1) if c == 'D' and OPT['ep'] else 0)
            o = Op(('ep', q, i), {'M': 'H'}.get(c, c), rel, dl if dl < P.n - 1 else INF, f'v_mul_f32 {v(t[0])}, {v(t[1])}, {v(t[0])}' if c == 'M' else t,
                   fifo=prev, pri=rel + OPT['epri'] + i // 2)
            o.raw = (c, t); prev = o.key; P.ops.append(o)
            if c != 'D': lastnd = o.key
        if OPT['ep']: prev = lastnd
    g = P.gaps
    todo = schedule(P.n, P.ops, g, overflow=True)
    if OPT.get('ts'):
        names = {1: ('A5', 'A10', 'B2'), 2: ('B4', 'B8', 'B9'), 3: ('A2', 'A7', 'A11')}[OPT['ts']] if 'A5' in p else {1: ('p3', 'f0', 'f1'), 2: ('q3', 'f2', 'f3')}[OPT['ts']]
        for k, nm in enumerate(names): g[p[nm]].sc += stamp(1 + k)
        if nkb == 1: print('stamp mfma idx', [p[nm] for nm in names], p)
    lines = emit(P.mf, g)
    assert all(o.key[0] == 'ep' for o in todo), [o.key for o in todo]
    i = 0
    while i < len(todo):
        c, t = todo[i].raw
        if c == 'M' and i + 1 < len(todo) and todo[i+1].raw[0] == 'M' and t[0] % 2 == 0 and todo[i+1].raw[1][0] == t[0] + 1:
            lines.append(f'v_pk_mul_f32 {v(t[0],2)}, {v(t[0],2)}, {v(t[1]-1,2)} op_sel:[0,1] op_sel_hi:[1,1]'); i += 2
        else:
            lines.append(todo[i].text); i += 1
    lines, _ = add_lgkm_waits(lines, pend)
    return lines

def scale_q(q):
    out = []
    for h in range(0, 16, 4):
        for i in range(4):
            x = S0 + 16*q + h + i; t = T0 + 2*i
            out += [f'v_lshlrev_b32 {v(t)}, 16, {v(x)}', f'v_and_b32 {v(t+1)}, 0xffff0000, {v(x)}']
        out += [f'v_pk_mul_f32 {v(T0+2*i,2)}, {v(T0+2*i,2)}, {s(sC,2)}' for i in range(4)]
        out += [f'v_cvt_pk_bf16_f32 {v(S0+16*q+h+i)}, {v(T0+2*i)}, {v(T0+2*i+1)}' for i in range(4)]
        out += [f'v_accvgpr_write_b32 {a(aQ+16*q+h+i)}, {v(S0+16*q+h+i)}' for i in range(4)]
    return out
def qread(q): return [f'ds_read_b128 {v(S0+16*q+4*ks,4)}, {v(QA+ks)} offset:{(q&1)*0x4000}' for ks in range(4)] + ['s_waitcnt lgkmcnt(0)']
def qload(q):
    return [f's_add_u32 m0, {s(sMK)}, {0x20000 + (q&1)*0x4000}', 's_nop 0'] + \
           [f'buffer_load_dwordx4 {v(QD+p)}, s[4:7], {"0" if q == 0 else s(sQ1+q-1)} offen offset:{1024*p}{FL[OPT["qf"]]} lds ; ld Q{q}' for p in range(4)]
def dma4(isv, tile):
    return [f's_add_u32 m0, {s(sMV if isv else sMK)}, {s(sSL+tile)}', 's_nop 0'] + [i_dma(isv, i, 40 + 4*tile, tile) for i in range(4)]
def btprep(tile):
    out = []
    for i in range(4):
        r = 40 + 4*tile + i
        out.append(f's_lshl_b32 {s(r)}, {s(r)}, 16')
        if i < 3: out.append(f's_or_b32 {s(r)}, {s(r)}, {(3-i)*1024}')
    return out

def resolve_waitvm(lines):
    out = []; vm = []
    for l in lines:
        if l.startswith('WAITVM'):
            tags = l.split(None, 1)[1].split('|')
            last = max(i for i, t in enumerate(vm) if t in tags)
            wb = {1: ('ld Q0', 'ld Q1'), 2: ('ld Q2', 'ld Q3'), 3: ('dma K 0', 'dma V 0')}.get(OPT.get('wb'), ())
            st_ = lambda i: [f's_memtime {s(sST+2*i,2)}']
            if tags[0] in wb: out += st_(1 + 2*wb.index(tags[0]))
            out.append(f's_waitcnt vmcnt({len(vm) - 1 - last}) ; {tags}')
            if tags[0] in wb: out += st_(2 + 2*wb.index(tags[0]))
        else:
            if l.startswith(('buffer_', 'global_')): vm.append(l.split(';')[1].strip() if ';' in l else '')
            out.append(l)
    return out

def prologue():
    t = T0
    L = ([f's_mov_b32 s77, {OPT["twice"]}', 'L_again:'] if OPT.get('twice') else []) + ['s_cmp_ge_u32 s2, 256', 's_cbranch_scc1 L_end',
         's_load_dwordx8 s[24:31], s[0:1], 0', 's_load_dwordx4 s[32:35], s[0:1], 32']
    if OPT['cpf']:
        L += ['s_getpc_b64 s[4:5]', 'L_pc:', 's_lshr_b32 s6, s2, 3', 's_lshl_b32 s6, s6, 10',
              'v_lshl_add_u32 v2, v0, 2, s6', 'v_min_u32 v2, L_pfend-L_pc-4, v2', 'v_mov_b32 v3, s5',
              'v_add_co_u32 v2, vcc, s4, v2', 's_nop 1', 'v_addc_co_u32 v3, vcc, 0, v3, vcc', f'global_load_dword {v(T0+7)}, v[2:3], off']
    L += stamp(0) + (['s_memrealtime s[100:101]'] if OPT['stamp'] else [])
    L += [f'v_lshrrev_b32 {v(t)}, 6, v0',
          f'v_and_b32 {v(t+2)}, 15, v0',
          f'v_readfirstlane_b32 {s(sW)}, {v(t)}',
          f'v_bfe_u32 {v(t+3)}, v0, 4, 2',
          f's_and_b32 {s(sT)}, s2, 7', f's_lshr_b32 {s(sT+1)}, s2, 3', f's_lshl_b32 {s(sT)}, {s(sT)}, 5',
          f's_add_u32 {s(sT)}, {s(sT)}, {s(sT+1)}', f's_lshl_b32 {s(sT+1)}, {s(sT)}, 16',
          f'v_lshlrev_b32 {v(t+4)}, 14, {v(t)}', f'v_lshl_add_u32 {v(t+4)}, {v(t+3)}, 8, {v(t+4)}', f'v_xor_b32 {v(t+5)}, {v(t+2)}, {v(t+3)}']
    for p in range(4):
        L += [f'v_xor_b32 {v(QD+p)}, {4*p}, {v(t+5)}', f'v_lshl_add_u32 {v(QD+p)}, {v(QD+p)}, 4, {v(t+4)}']
    L += [f's_lshl_b32 {s(sMK)}, {s(sW)}, 12', 's_mov_b32 s6, 0x10000', 's_mov_b32 s7, 0x20000',
          's_waitcnt lgkmcnt(0)',
          f's_load_dword {s(sCL)}, s[32:33], 0', 's_load_dwordx16 s[40:55], s[30:31], 0',
          f's_add_u32 s4, s24, {s(sT+1)}', 's_addc_u32 s5, s25, 0']
    L += qload(0)
    L += [f'v_and_b32 {v(t+1)}, 63, v0', f'v_lshlrev_b32 {v(t+6)}, 4, {v(t+1)}',
          's_mov_b32 s20, s30', 's_mov_b32 s21, s31', 's_movk_i32 s22, 0x200', 's_mov_b32 s23, 0x20000',
          f'buffer_load_dwordx4 {v(BT,4)}, {v(t+6)}, s[20:23], 0 offen ; ld BT',
          f's_lshr_b32 {s(sT)}, {s(sT)}, 4', f's_lshl_b32 {s(sT)}, {s(sT)}, 8',
          f's_add_u32 s8, s26, {s(sT)}', 's_addc_u32 s9, s27, 0', 's_sub_u32 s8, s8, 3072', 's_subb_u32 s9, s9, 0',
          f's_sub_u32 s10, {KBYTES+3072}, {s(sT)}', 's_mov_b32 s11, 0x20000',
          f'v_lshl_add_u32 {v(t+4)}, {v(t)}, 2, {v(t+3)}',
          f'v_xor_b32 {v(t+6)}, {v(t+2)}, {v(t+4)}', f'v_lshlrev_b32 {v(t+6)}, 4, {v(t+6)}',
          f'v_lshl_add_u32 {v(DK)}, {v(t+4)}, 12, {v(t+6)}',
          f'v_and_b32 {v(t+6)}, 7, {v(t+4)}', f'v_lshlrev_b32 {v(t+6)}, 1, {v(t+6)}',
          f'v_xor_b32 {v(t+6)}, {v(t+2)}, {v(t+6)}', f'v_lshlrev_b32 {v(t+6)}, 4, {v(t+6)}',
          f'v_lshl_add_u32 {v(DV)}, {v(t+4)}, 12, {v(t+6)}',
          f's_movk_i32 {s(sQ1)}, 0x1000', f's_movk_i32 {s(sQ1+1)}, 0x2000', f's_movk_i32 {s(sQ1+2)}, 0x3000',
          f's_add_u32 s12, s28, {s(sT)}', 's_addc_u32 s13, s29, 0', 's_sub_u32 s12, s12, 3072', 's_subb_u32 s13, s13, 0',
          's_mov_b32 s14, s10', 's_mov_b32 s15, 0x20000',
          f's_add_u32 s16, s34, {s(sT+1)}', 's_addc_u32 s17, s35, 0', 's_mov_b32 s18, 0x10000', 's_mov_b32 s19, 0x20000',
          f's_add_u32 {s(sMV)}, {s(sMK)}, 0x10000', f's_mov_b32 {s(sC)}, 0x3e0293ee',
          's_waitcnt lgkmcnt(0)'] + stamp(1)
    L += [f's_cmp_lt_i32 {s(sCL)}, 1', f's_cselect_b32 {s(sC)}, 0, {s(sC)}', f's_cselect_b32 {s(sCL)}, 0x800, {s(sCL)}',
          f's_min_u32 {s(sCLT)}, {s(sCL)}, 0x800', f's_max_u32 {s(sCL)}, {s(sCLT)}, {MINCL}',
          f's_add_u32 {s(sN)}, {s(sCL)}, 63', f's_lshr_b32 {s(sN)}, {s(sN)}, 6',
          f's_mov_b32 {s(sNP)}, {s(sN)}']
    if OPT['tv'] == 3:
        L += [f's_sub_u32 {s(sNP)}, {s(sCL)}, 1', f's_and_b32 {s(sNP)}, {s(sNP)}, 63', f's_cmp_lt_u32 {s(sNP)}, 16', f's_addc_u32 {s(sNP)}, {s(sN)}, 0']
    L += [f's_sub_u32 {s(sE)}, 0, {s(sNP)}', f's_and_b32 {s(sE)}, {s(sE)}, 3', f's_lshl_b32 {s(sSL)}, {s(sE)}, 14']
    L += btprep(0) + dma4(0, 0) + qload(1)
    L += [f's_mov_b32 {s(sC2)}, {s(sC)}',
          f's_cmp_lt_u32 {s(sCLT)}, {4096 if OPT["forceslow"] else MINCL}', f's_cselect_b32 {s(sFORCE)}, 1, 0',
          f's_add_u32 {s(sIT)}, {s(sNP)}, {s(sE)}', f's_lshr_b32 {s(sIT)}, {s(sIT)}, 2', f's_sub_u32 {s(sIT)}, {s(sIT)}, 2']
    for i in range(1, 4):
        L += [f's_add_u32 {s(sSL+i)}, {s(sSL)}, {i*0x4000}', f's_and_b32 {s(sSL+i)}, {s(sSL+i)}, 0xc000']
    L += [f's_sub_u32 {s(sT)}, {s(sN)}, 1', f's_lshl_b32 {s(sT)}, {s(sT)}, 6', f's_sub_u32 {s(sT)}, {s(sCL)}, {s(sT)}',
          f's_add_u32 {s(sNKB)}, {s(sT)}, 15', f's_lshr_b32 {s(sNKB)}, {s(sNKB)}, 4',
          f's_sub_u32 {s(sT)}, {s(sT)}, 1', f's_and_b32 {s(sT)}, {s(sT)}, 15',
          f's_and_b32 {s(sT+1)}, {s(sE)}, 1', f's_sub_u32 {s(sT+1)}, 4, {s(sT+1)}', f's_sub_u32 {s(sT+2)}, 7, {s(sT+1)}',
          f's_mov_b32 {s(sLN)}, 5',
          f's_lshl_b32 {s(sT+3)}, {s(sW)}, 13', f's_add_u32 {s(sT+3)}, {s(sT+3)}, 0x20000', f's_lshl_b32 {s(sT+4)}, {s(sW)}, 14']
    L += [f'v_lshrrev_b32 {v(t+4)}, 2, {v(t+2)}', f'v_lshlrev_b32 {v(t+4)}, 4, {v(t+4)}',
          f'v_and_b32 {v(t+6)}, 3, {v(t+2)}', f'v_add_u32 {v(t+4)}, {v(t+4)}, {v(t+6)}', f'v_lshlrev_b32 {v(t+4)}, 8, {v(t+4)}',
          f'v_lshlrev_b32 {v(t+6)}, 12, {v(t)}', f'v_lshl_add_u32 {v(t+6)}, {v(t+2)}, 8, {v(t+6)}', f'v_add_u32 {v(t+6)}, 0x20000, {v(t+6)}']
    for ks in range(4):
        L += [f'v_xor_b32 {v(MK)}, {4*ks}, {v(t+5)}', f'v_lshl_add_u32 {v(KA+ks)}, {v(MK)}, 4, {v(t+4)}',
              f'v_lshl_add_u32 {v(QA+ks)}, {v(MK)}, 4, {v(t+6)}', f'v_add_u32 {v(KA0+ks)}, {s(sSL)}, {v(KA+ks)}']
    L += [f'v_bfe_u32 {v(t+5)}, {v(t+1)}, 2, 2',
          f'v_lshl_add_u32 {v(t+4)}, {v(t+3)}, 4, {v(t+5)}', f'v_lshlrev_b32 {v(t+4)}, 8, {v(t+4)}',
          f'v_and_b32 {v(MK)}, 3, {v(t+1)}', f'v_lshl_add_u32 {v(t+4)}, {v(MK)}, 3, {v(t+4)}', f'v_add_u32 {v(t+4)}, 0x10000, {v(t+4)}',
          f'v_lshl_add_u32 {v(t+5)}, {v(t+3)}, 2, {v(t+5)}', f'v_and_b32 {v(t+5)}, 7, {v(t+5)}']
    for db in range(8):
        L += [f'v_xor_b32 {v(VA+db)}, {db}, {v(t+5)}', f'v_lshl_add_u32 {v(VA+db)}, {v(VA+db)}, 5, {v(t+4)}',
              f'v_add_u32 {v(VA0+db)}, {s(sSL)}, {v(VA+db)}']
    L += [f'v_lshlrev_b32 {v(t+4)}, 14, {v(t)}', f'v_lshl_add_u32 {v(t+4)}, {v(t+2)}, 8, {v(t+4)}',
          f'v_and_b32 {v(t+5)}, 1, {v(t+3)}', f'v_lshl_add_u32 {v(t+4)}, {v(t+5)}, 5, {v(t+4)}',
          f'v_lshrrev_b32 {v(t+5)}, 1, {v(t+3)}', f'v_lshl_add_u32 {v(OV)}, {v(t+5)}, 4, {v(t+4)}',
          f'v_and_b32 {v(t+4)}, 1, {v(t+1)}', f'v_mov_b32 {v(t+5)}, 0xaaaaaaaa',
          f'v_mul_lo_u32 {v(t+4)}, {v(t+4)}, {v(t+5)}', f'v_or_b32 {v(IDX)}, 0x44444444, {v(t+4)}', f'v_mov_b32 {v(t+5)}, 0x3f803f80']
    L += [f'v_accvgpr_write_b32 {a(aONE+i)}, {v(t+5)}' for i in range(4)]
    L += [f'v_lshlrev_b32 {v(t+4)}, 2, {v(t+3)}', f'v_mov_b32 {v(t+5)}, {NEG:#x}']
    for r in range(4):
        L += [f'v_add_u32 {v(t+6)}, {r}, {v(t+4)}', f'v_cmp_lt_u32 vcc, {s(sT)}, {v(t+6)}', 's_nop 1',
              f'v_cndmask_b32 {v(MK+r)}, 0, {v(t+5)}, vcc']
    L += btprep(1) + btprep(2) + btprep(3)
    L += [f'v_mov_b32 {v(O0+i)}, 0' for i in range(64, 128)]
    L += [f'v_accvgpr_write_b32 {a(aL+i)}, 0' for i in range(16)]
    groups = {'q2': qload(2), 'q3': qload(3), 'v0': dma4(1, 0), 'k1': dma4(0, 1), 'v1': dma4(1, 1), 'k2': dma4(0, 2), 'v2': dma4(1, 2), 'k3': dma4(0, 3)}
    plan = {0: dict(A=['q2'], B=['v0'], C=['q3'], D=['k1', 'v1'], E=['k2'], F=['v2', 'k3']),
            1: dict(A=['q2'], B=['v0'], C=['q3'], D=['k1'], E2=['v1', 'k2'], G=['v2', 'k3']),
            2: dict(A=['q2', 'v0'], C=['q3', 'k1'], D=['v1'], E2=['k2'], G=['v2', 'k3']),
            3: dict(A0=['v0'], A=['q2'], C=['q3', 'k1'], D=['v1', 'k2'], G=['v2', 'k3']),
            4: dict(A=['q2'], B=['v0'], C=['q3', 'k1'], D=['v1'], E2=['k2'], G=['v2', 'k3']),
            5: dict(A=['q2'], B=['v0'], C=['q3', 'k1'], D2=['v1', 'k2'], G=['v2', 'k3']),
            6: dict(A=['q2'], B=['v0', 'k1'], C=['q3'], D2=['v1', 'k2'], G=['v2', 'k3']),
            7: dict(A=['q2'], B=['v0'], C=['q3', 'k1'], D2=['v1', 'k2'], E2=['v2', 'k3']),
            8: dict(A=['q2'], B=['v0', 'k1'], C=['q3'], P=['v1', 'k2'], S=['v2', 'k3']),
            9: dict(A=['q2', 'v0'], B=['k1'], C=['q3'], P=['v1', 'k2'], S=['v2', 'k3']),
            10: dict(A0=['v0'], A=['q2'], B=['k1'], C=['q3'], P=['v1', 'k2'], S=['v2', 'k3']),
            11: dict(A=['q2'], B=['v0', 'k1'], C=['q3'], D2=['v1', 'k2'], S=['v2', 'k3']),
            12: dict(A=['q2'], B=['v0', 'k1'], C3=['q3'], P=['v1', 'k2'], S=['v2', 'k3']),
            13: dict(A=['q2'], B=['v0'], B2=['k1'], C3=['q3'], P=['v1', 'k2'], S=['v2', 'k3']),
            14: dict(A=['v0'], B=['q2'], C=['k1'], C3=['q3'], P=['v1', 'k2'], S=['v2', 'k3']),
            15: dict(A=['q2'], B2=['v0'], C2=['k1'], C3=['q3'], P=['v1', 'k2'], S=['v2', 'k3']),
            16: dict(A2=['q2'], B2=['v0'], C2=['k1'], C3=['q3'], P=['v1', 'k2'], S=['v2', 'k3']),
            17: dict(A=['q2'], B=['v0'], C=['k1'], C2=['q3'], P=['v1', 'k2'], S=['v2', 'k3']),
            18: dict(A=['q2'], B=['v0'], B2=['k1'], C2=['q3'], P=['v1', 'k2'], S=['v2', 'k3']),
            19: dict(A=['v0'], B=['q2'], C=['k1'], C3=['q3'], P=['v1'], S=['k2', 'v2'], K=['k3']),
            20: dict(A=['v0'], B=['q2'], C=['k1'], C3=['q3'], S=['v1', 'k2'], K=['v2', 'k3']),
            21: dict(A=['v0'], B=['q2'], C=['k1'], C2=['q3'], S=['v1', 'k2'], K=['v2', 'k3']),
            22: dict(A=['v0'], A2=['q2'], B2=['k1'], C2=['q3'], S=['v1', 'k2'], K=['v2', 'k3']),
            23: dict(A0=['v0'], A=['q2'], B2=['k1'], C2=['q3'], S=['v1', 'k2'], K=['v2', 'k3']),
            24: dict(A=['v0'], B=['q2'], C=['q3'], C3=['k1'], S=['v1', 'k2'], K=['v2', 'k3'])}[OPT['po']]
    at = lambda p_: [x for g_ in plan.get(p_, []) for x in groups[g_]]
    X = OPT['tv'] == 4
    btv = lambda i: [f'v_lshlrev_b32 {v(BT+i)}, 16, {v(BT+i)}'] + ([f'v_or_b32 {v(BT+i)}, {(3-i)*1024}, {v(BT+i)}'] if i < 3 else [])
    L += at('A0') + ['WAITVM ld Q0'] + stamp(2)
    if X:
        L += ['WAITVM ld BT'] + btv(0) + [f's_sub_u32 {s(sT+5)}, {s(sN)}, 1', f'v_readlane_b32 {s(sT)}, {v(BT)}, {s(sT+5)}'] + qread(0)
        L += [f's_add_u32 m0, {s(sMV)}, {s(sSL+3)}', f's_sub_u32 {s(sT+5)}, {s(sT)}, 1024',
              f'buffer_load_dwordx4 {v(DV)}, s[12:15], {s(sT)} offen lds ; dmx V',
              f'buffer_load_dwordx4 {v(DK)}, s[8:11], {s(sT+5)} offen offset:1024 lds ; dmx K']
    else: L += qread(0)
    L += at('A') + scale_q(0) + at('A2') + ['WAITVM ld BT']
    for i in range(1 if X else 0, 4): L += btv(i)
    L += ['s_nop 0'] + [f'v_readlane_b32 {s(SETS[k]+i)}, {v(BT+i)}, {s(sT+1+k)}' for k in range(2) for i in range(4)]
    L += ['WAITVM dma K 0', 's_barrier']
    L += [i_kread(kb, ks, 0, '0', addr=KA0) for kb in range(4) for ks in range(4)] + at('B')
    def tile0(x):
        P = Prog(); G = P.group
        r = lambda q, sb: qkg(q, 1, sb=sb, kbase=aX, mask=True)
        xv = lambda q: [pv(q, db, 0, 2, 'ov', first=q < 2) for db in range(8)] + [sm(q, 2)]
        G('q0', qkg(0))
        if x: G('r0', r(0, 2)); G('r1', r(1, 3))
        G('q1', qkg(1))
        if x: G('x0', xv(0)); G('x1', xv(1)); G('r2', r(2, 3))
        G('q2', qkg(2))
        if x: G('x2', xv(2))
        G('p0', pvg(0, first=not x)); G('p1', pvg(1, first=not x)); G('q3', qkg(3))
        P.done(); p = P.pos
        w1, w2 = p['r0' if x else 'q1'], p['r2' if x else 'q2']
        P.softmax('s0', p['q0'], 0, 0, dlcap=w1 + 4); P.softmax('s1', p['q1'], 1, 1, dlcap=w2 + (-1 if x else 4))
        P.softmax('s2', p['q2'], 2, 2, dlcap=p['q3'] - 1, use=P.n); P.softmax('s3', p['q3'], 3, 3, skip=LEFT3, lastrel=P.n - 1)
        if x:
            P.softmax('t0', p['r0'], 2, 2, 1); P.softmax('t1', p['r1'], 3, 2, 1, use=p['x1'], zero=False)
            P.softmax('t2', p['r2'], 3, 2, 1, zero=False)
        P.vload('v', p['p0'], 0, '0', addr=VA0, rel0=w2)
        P.kload('k', P.n, 0, '1', addr=T0, rel0=p['q3'], dlmax=P.n - 1)
        g = P.gaps
        for pt, gi in (('P', p['p0'] + 1), ('K', p['q3'] + 1)):
            step = 2 if pt == 'K' and len(plan.get('K', [])) > 1 else 4
            for y in at(pt):
                if y.startswith('s_add'): g[gi - 1].sc.append(y)
                elif y.startswith('buffer'):
                    P.ops.append(Op(('d', gi), 'D', gi, gi, y)); gi += step
        assert not schedule(P.n, P.ops, g, overflow=True)
        sc3 = []; ext = at('S')
        for i, y in enumerate(scale_q(3)):
            sc3.append(y)
            if i % 10 == 4 and ext:
                if ext[0].startswith('s_add'): sc3 += ext[:2]; ext = ext[2:]
                sc3.append(ext.pop(0))
        assert not ext
        xr = []
        if x:
            XA = S0 + 36
            xr = [f's_add_u32 {s(sT)}, {s(sSL+3)}, 0x10000'] + [f'v_add_u32 {v(XA+ks)}, {s(sT)}, {v(KA+ks)}' for ks in range(4)] + \
                 [f'v_add_u32 {v(XA+4+db)}, {s(sSL+3)}, {v(VA+db)}' for db in range(8)] + ['WAITVM dmx K', 's_barrier'] + \
                 [f'ds_read_b128 {a(aX+4*ks,4)}, {v(XA+ks)} offset:1024 ; rx K {ks}' for ks in range(4)] + \
                 [f'ds_read_b64_tr_b16 {a(aX+16+2*db,2)}, {v(XA+4+min(db,7))} offset:0 ; rx V {min(db,7)}' for db in range(9)]
        g[w1 - 1].post += at('B2') + xr + ['WAITVM ld Q1'] + qread(1) + at('C') + scale_q(1) + at('C2') + ['s_nop 0']
        g[w2 - 1].post += at('C3') + ['WAITVM ld Q2'] + qread(2) + at('D') + scale_q(2) + ['WAITVM dma V 0|dma K 1', 's_barrier']
        g[p['q3'] - 1].post += (['s_barrier'] if x else []) + at('D2') + ['WAITVM ld Q3'] + stamp(3) + qread(3) + sc3 + \
                               [f'v_add_u32 {v(T0+ks)}, {s(sSL+1)}, {v(KA+ks)}' for ks in range(4)]
        g[P.n - 1].post += [HEADWAIT]
        full, pend = add_lgkm_waits(resolve_waitvm(L + ['L_split:'] + emit(P.mf, g)))
        k = full.index('L_split:')
        return full[:k], full[k+1:] + stamp(4) + [
            f's_cmp_eq_u32 {s(sE)}, 2', 's_cbranch_scc1 L_b3', f's_cmp_eq_u32 {s(sE)}, 1', 's_cbranch_scc1 L_b2',
            f's_cmp_eq_u32 {s(sE)}, 3', 's_cbranch_scc1 L_b0', f's_cmp_eq_u32 {s(sNP)}, 4', 's_cbranch_scc1 L_tail'], pend
    assert OPT['po'] >= 8
    head, tn, pend = tile0(False)
    if not X: return head + tn, [], pend
    head2, tx, pend2 = tile0(True)
    assert head == head2 and [z[0] for z in pend] == [z[0] for z in pend2]
    return head + [f's_cmp_lg_u32 {s(sNKB)}, 1', 's_cbranch_scc1 L_tile0n'] + tx, ['L_tile0n:'] + tn + ['s_branch L_b1'], pend

def slow():
    t = T0
    L = ['L_slow:', 's_waitcnt vmcnt(0) lgkmcnt(0)']
    M, LS, KV, VD0, VD1 = KA, BT, DK, DV, IDX
    L += [f'v_mbcnt_lo_u32_b32 {v(t+1)}, -1, 0', f'v_mbcnt_hi_u32_b32 {v(t+1)}, -1, {v(t+1)}',
          f'v_and_b32 {v(t+2)}, 15, {v(t+1)}', f'v_lshrrev_b32 {v(t+3)}, 4, {v(t+1)}']
    L += [f's_lshl_b32 {s(sT)}, {s(sW)}, 14', f'v_lshlrev_b32 {v(t+4)}, 8, {v(t+2)}', f'v_lshl_add_u32 {v(t+4)}, {v(t+3)}, 4, {v(t+4)}',
          f'v_add_u32 {v(t+4)}, {s(sT)}, {v(t+4)}']
    L += [f'buffer_load_dwordx4 {v(S0+16*q+4*ks,4)}, {v(t+4)}, s[4:7], {"0" if q == 0 else s(sQ1)} offen offset:{64*ks}' for q in range(2) for ks in range(4)]
    L += [f'v_lshlrev_b32 {v(t+4)}, 12, {v(t+2)}', f'v_lshl_add_u32 {v(KV)}, {v(t+3)}, 4, {v(t+4)}', f'v_add_u32 {v(KV)}, 3072, {v(KV)}',
          f'v_lshlrev_b32 {v(t+4)}, 1, {v(t+3)}', f'v_xor_b32 {v(t+4)}, {v(t+2)}, {v(t+4)}',
          f'v_lshlrev_b32 {v(t+4)}, 4, {v(t+4)}', f'v_lshl_add_u32 {v(VD0)}, {v(t+3)}, 12, {v(t+4)}', f'v_add_u32 {v(VD0)}, 3072, {v(VD0)}',
          f'v_xor_b32 {v(t+4)}, 0x80, {v(t+4)}', f'v_lshl_add_u32 {v(VD1)}, {v(t+3)}, 12, {v(t+4)}', f'v_add_u32 {v(VD1)}, {3072 + 16384}, {v(VD1)}',
          f's_lshl_b32 {s(sMV)}, {s(sW)}, 13', f's_add_u32 {s(sMV)}, {s(sMV)}, 0x20000',
          f'v_bfe_u32 {v(t+5)}, {v(t+1)}, 2, 2', f'v_lshl_add_u32 {v(t+5)}, {v(t+3)}, 2, {v(t+5)}',
          f'v_lshlrev_b32 {v(t+4)}, 8, {v(t+5)}', f'v_and_b32 {v(t+6)}, 3, {v(t+1)}',
          f'v_lshl_add_u32 {v(t+4)}, {v(t+6)}, 3, {v(t+4)}', f'v_add_u32 {v(t+4)}, {s(sMV)}, {v(t+4)}', f'v_and_b32 {v(t+5)}, 7, {v(t+5)}']
    for db in range(8):
        L += [f'v_xor_b32 {v(VA+db)}, {db}, {v(t+5)}', f'v_lshl_add_u32 {v(VA+db)}, {v(VA+db)}, 5, {v(t+4)}']
    L += [f'v_lshlrev_b32 {v(MK)}, 2, {v(t+3)}', f'v_mov_b32 {v(MK+1)}, {NEG:#x}']
    L += [f'v_mov_b32 {v(O0+i)}, 0' for i in range(128)]
    L += [f'v_mov_b32 {v(M+q)}, 0xff7fffff' for q in range(4)] + [f'v_mov_b32 {v(LS+q)}, 0' for q in range(4)]
    L += ['s_waitcnt vmcnt(0)'] + scale_q(0) + scale_q(1)
    L += [f's_mov_b32 {s(sIT)}, 0', 'L_slow_loop:',
          f's_lshr_b32 {s(sT)}, {s(sIT)}, 2',
          f's_load_dwordx2 s[40:41], s[30:31], {s(sT)}', 's_waitcnt lgkmcnt(0)',
          's_lshl_b32 s40, s40, 16', 's_lshl_b32 s41, s41, 16']
    for kb in range(2):
        for ks in range(4):
            L.append(f'buffer_load_dwordx4 {a(aK+16*kb+4*ks,4)}, {v(KV)}, s[8:11], s{40+kb} offen offset:{64*ks}')
    for b in range(2):
        for p in range(4):
            L += [f's_add_u32 m0, {s(sMV)}, {b*4096 + p*1024}', f's_add_u32 s42, s{40+b}, {(p//2)*32768}',
                  f'buffer_load_dwordx4 {v(VD1 if p & 1 else VD0)}, s[12:15], s42 offen lds']
    L += ['s_waitcnt vmcnt(0)']
    for db in range(8):
        for tt in range(2):
            L.append(f'ds_read_b64_tr_b16 {a(aV+8*db+2*tt,2)}, {v(VA+db)} offset:{tt*4096}')
    L += [f's_sub_u32 {s(sT)}, {s(sCLT)}, {s(sIT)}', 's_waitcnt lgkmcnt(0)']
    for q in range(4):
        S = S0 + 16*q
        L += qkg(q, 2) + ['s_nop 7']
        for e in range(8):
            L += [f'v_add_u32 {v(t)}, {16*(e//4) + e%4}, {v(MK)}', f'v_cmp_gt_u32 vcc, {s(sT)}, {v(t)}', 's_nop 1',
                  f'v_cndmask_b32 {v(S+e)}, {v(MK+1)}, {v(S+e)}, vcc']
        L += [f'v_max3_f32 {v(t)}, {v(S)}, {v(S+1)}, {v(S+2)}', f'v_max3_f32 {v(t)}, {v(t)}, {v(S+3)}, {v(S+4)}',
              f'v_max3_f32 {v(t)}, {v(t)}, {v(S+5)}, {v(S+6)}', f'v_max3_f32 {v(t)}, {v(t)}, {v(S+7)}, {v(M+q)}',
              f'v_mov_b32 {v(t+1)}, {v(t)}', 's_nop 1', f'v_permlane16_swap_b32 {v(t)}, {v(t+1)}', f'v_max_f32 {v(t)}, {v(t)}, {v(t+1)}',
              f'v_mov_b32 {v(t+1)}, {v(t)}', 's_nop 1', f'v_permlane32_swap_b32 {v(t)}, {v(t+1)}', f'v_max_f32 {v(t)}, {v(t)}, {v(t+1)}',
              f'v_sub_f32 {v(t+1)}, {v(M+q)}, {v(t)}', f'v_exp_f32 {v(t+1)}, {v(t+1)}', f'v_mov_b32 {v(M+q)}, {v(t)}']
        L += [f'v_sub_f32 {v(S+e)}, {v(S+e)}, {v(t)}' for e in range(8)]
        L += [f'v_exp_f32 {v(S+e)}, {v(S+e)}' for e in range(8)]
        L += [f'v_mul_f32 {v(LS+q)}, {v(LS+q)}, {v(t+1)}']
        L += [f'v_mul_f32 {v(O0+32*q+i)}, {v(O0+32*q+i)}, {v(t+1)}' for i in range(32)]
        L += [i_cvt(q, q, i) for i in range(4)]
        for i in range(4):
            L += [f'v_lshlrev_b32 {v(t)}, 16, {v(P0+8*q+i)}', f'v_and_b32 {v(t+1)}, 0xffff0000, {v(P0+8*q+i)}',
                  f'v_add_f32 {v(LS+q)}, {v(LS+q)}, {v(t)}', f'v_add_f32 {v(LS+q)}, {v(LS+q)}, {v(t+1)}']
        L += [pv(q, db, 0) for db in range(8)]
    L += [f's_add_u32 {s(sIT)}, {s(sIT)}, 32', f's_cmp_lt_u32 {s(sIT)}, {s(sCLT)}', 's_cbranch_scc1 L_slow_loop', 's_nop 7']
    for q in range(4):
        o = O0 + 32*q
        L += [f'v_mov_b32 {v(t)}, {v(LS+q)}', f'v_mov_b32 {v(t+1)}, {v(LS+q)}', 's_nop 1',
              f'v_permlane16_swap_b32 {v(t)}, {v(t+1)}', f'v_add_f32 {v(t)}, {v(t)}, {v(t+1)}',
              f'v_mov_b32 {v(t+1)}, {v(t)}', 's_nop 1', f'v_permlane32_swap_b32 {v(t)}, {v(t+1)}', f'v_add_f32 {v(t)}, {v(t)}, {v(t+1)}',
              f'v_rcp_f32 {v(t)}, {v(t)}', 's_nop 0']
        L += [f'v_mul_f32 {v(o+i)}, {v(o+i)}, {v(t)}' for i in range(32)]
        for u in range(4):
            L += [f'v_cvt_pk_bf16_f32 {v(o+8*u+i)}, {v(o+8*u+2*i)}, {v(o+8*u+2*i+1)}' for i in range(4)]
        for u in range(4):
            L += [f'v_permlane16_swap_b32 {v(o+8*u+i)}, {v(o+8*u+2+i)}' for i in range(2)]
        for u in range(4):
            L.append(f'buffer_store_dwordx4 {v(o+8*u,4)}, {v(OV)}, s[16:19], {"0" if q == 0 else s(sQ1+q-1)} offen offset:{64*u}')
    return L + ['s_endpgm']

NFIN = 0
def finish():
    global NFIN
    NFIN += 1
    L = [f'v_cmp_lt_u32 vcc, 0x28000000, {v(T0+4)}' if not OPT.get('abl') else 's_mov_b64 vcc, 0',
         f's_cmp_lg_u32 {s(sFORCE)}, 0', 's_cbranch_scc1 L_slow', 's_nop 3', 's_cbranch_vccnz L_slow']
    if OPT.get('twice'):
        L += ['s_cmp_eq_u32 s77, 0', f's_cbranch_scc1 L_fin{NFIN}', 's_sub_u32 s77, s77, 1', 's_waitcnt vmcnt(0) lgkmcnt(0)', 's_barrier',
              'v_mbcnt_lo_u32_b32 v0, -1, 0', 'v_mbcnt_hi_u32_b32 v0, -1, v0', f's_lshl_b32 {s(sT)}, {s(sW)}, 6', f'v_add_u32 v0, {s(sT)}, v0', 's_branch L_again', f'L_fin{NFIN}:']
    if OPT['stamp']:
        L += [f's_memtime s[40:41]', 's_waitcnt vmcnt(0)', 's_memtime s[42:43]', f's_memrealtime s[44:45]', 's_waitcnt lgkmcnt(0)']
        st = lambda i: sST + 2*i if i < 6 else 40 + 2*(i - 6)
        if OPT.get('fixed'):
            L += [f's_mov_b32 {s(sT+4)}, {OPT["fixed"]}']
            if OPT.get('xcc'):
                L += [f's_getreg_b32 {s(sT+5)}, hwreg(HW_REG_XCC_ID, 0, 4)', f's_sub_u32 {s(sT+5)}, {s(sT+5)}, s2', f's_and_b32 {s(sT+5)}, {s(sT+5)}, 7']
                if OPT['xcc'] == 2: L += [f's_sub_u32 {s(sT+5)}, 7, {s(sT+5)}']
                L += [f's_mul_i32 {s(sT+5)}, {s(sT+5)}, 500', f's_add_u32 {s(sT+4)}, {s(sT+4)}, {s(sT+5)}']
            if OPT.get('phase'):
                L += [f's_sub_u32 {s(sT+5)}, {s(st(OPT["phase"]))}, {s(st(OPT.get("phase0", 0)))}']
                if OPT.get('neg'): L += [f's_sub_u32 {s(sT+5)}, {OPT["neg"]}, {s(sT+5)}']
                L += [f's_lshr_b32 {s(sT+5)}, {s(sT+5)}, {OPT.get("sh", 3)}', f's_add_u32 {s(sT+4)}, {s(sT+4)}, {s(sT+5)}']
            return L + [f'L_spin{NFIN}:', f's_memrealtime {s(sT,2)}', 's_waitcnt lgkmcnt(0)', f's_sub_u32 {s(sT)}, {s(sT)}, s100',
                        f's_cmp_lt_u32 {s(sT)}, {s(sT+4)}', f's_cbranch_scc1 L_spin{NFIN}', 's_endpgm']
        L += ['s_load_dwordx2 s[24:25], s[0:1], 56', 's_waitcnt lgkmcnt(0)', 's_mov_b32 s26, 0x100000', 's_mov_b32 s27, 0x20000']
        L += [f'v_mov_b32 v{i}, {s(st(i))}' for i in range(8)]
        L += ['v_mov_b32 v8, s42', 'v_mov_b32 v9, s44', 'v_mov_b32 v10, s100', 'v_mov_b32 v11, 0',
              f's_lshl_b32 {s(sT)}, s2, 2', f's_add_u32 {s(sT)}, {s(sT)}, {s(sW)}', f's_lshl_b32 {s(sT)}, {s(sT)}, 6',
              'v_mov_b32 v12, 0', 's_mov_b64 exec, 1',
              f'buffer_store_dwordx4 v[0:3], v12, s[24:27], {s(sT)} offen',
              f'buffer_store_dwordx4 v[4:7], v12, s[24:27], {s(sT)} offen offset:16',
              f'buffer_store_dwordx4 v[8:11], v12, s[24:27], {s(sT)} offen offset:32']
    return L + ['s_endpgm']

def main():
    pro, pro2, pend0 = prologue()
    loop, pend = loop_code()
    assert [x[0] for x in pend0] == [x[0] for x in pend], (pend0, pend)
    L = [f'{NAME}:'] + pro + loop
    L += ['L_tail:'] + stamp(5) + [f's_cmp_gt_u32 {s(sNKB)}, 1', 's_cbranch_scc1 L_tail234']
    L += tail(1, pend) + finish() + ['L_pfend:']
    L += ['L_tail234:', f's_cmp_eq_u32 {s(sNKB)}, 3', 's_cbranch_scc1 L_tail3', f's_cmp_eq_u32 {s(sNKB)}, 4', 's_cbranch_scc1 L_tail4']
    L += tail(2, pend) + finish() + ['L_tail3:'] + tail(3, pend) + finish() + ['L_tail4:'] + tail(4, pend) + finish()
    L += pro2 + slow() + ['L_end:', 's_endpgm']
    L, nn = fix_hazards(L, verbose=OPT.get('verbose', 0))
    print('nop states inserted:', nn, ' leftovers:', sorted(LEFT3))
    hdr = open('standalone__paged_block_table_kv_pagedattention__prompt.s.ref').read().split('; Override')[0]
    txt = hdr + '; Generated by gen/gen2.py (hand-written generator).\n'
    txt += '; @launch grid=(256,1,1) block=(256,1,1) lds=163840\n'
    txt += f'.amdgcn_target "amdgcn-amd-amdhsa--gfx950"\n.text\n.globl {NAME}\n.p2align 8\n.type {NAME},@function\n'
    for l in L: txt += (l if l.endswith(':') or l.startswith(('.', ';')) else '    ' + l) + '\n'
    txt += f'''.section .rodata,"a"
.p2align 6
.amdhsa_kernel {NAME}
  .amdhsa_next_free_vgpr 504
  .amdhsa_next_free_sgpr 102
  .amdhsa_accum_offset 256
  .amdhsa_group_segment_fixed_size 0
  .amdhsa_kernarg_size 64
  .amdhsa_user_sgpr_count 2
  .amdhsa_user_sgpr_kernarg_segment_ptr 1
  .amdhsa_system_sgpr_workgroup_id_x 1
.end_amdhsa_kernel
'''
    open(sys.argv[1], 'w').write(txt)
    if OPT.get('show'):
        for g in range(NG): print(g, PAT[g])
main()
```

```python
import sys
from asmcheck import parse, fix_hazards, Ins

NAME = 'standalone__paged_block_table_kv_pagedattention__prompt_kernel'
FL = {0: '', 1: ' nt', 2: ' sc1', 3: ' sc0 sc1', 4: ' sc1 nt', 5: ' sc0 sc1 nt', 6: ' sc0', 7: ' sc0 nt'}
OPT = dict(po=19, cpf=1, qf=0, kf=2, of=2, delta=9, stamp=0, lat=8, forceslow=0, tord=2, epri=12, ep=0, ssp=4, tv=4, edl=0, ttu=2, walk=0, wsp=224, pkd=6)
for a_ in sys.argv[2:]:
    k_, v_ = a_.split('='); OPT[k_] = int(v_, 0)

S0, P0, KA, VA, BT, DK, DV, IDX, OV, MK, T0, O0 = 0, 64, 96, 100, 108, 112, 113, 114, 115, 116, 120, 128
QD, QA = P0 + 24, P0 + 28
KA0, VA0 = O0, S0 + 52
EW, ER, EG = T0 + 5, T0 + 6, T0 + 7
aQ, aK, aV, aL, aONE, aX = 0, 64, 128, 192, 208, 212
sW, sCL, sN, sIT, sLN = 3, 36, 37, 38, 39
SETS = (56, 60)
sMK, sMV, sC, sC2, sNKB, sE, sFORCE, sCLT = 64, 65, 66, 67, 68, 69, 70, 71
sNP = 75
sQ1 = 72
sSL = 96
sT = 78
sST = 84
KBYTES = 132 * 65536
LAT = OPT['lat']
NEG = 0xf149f2ca
INF = 10 ** 6
MINCL = 193

def v(b, n=1): return f'v{b}' if n == 1 else f'v[{b}:{b+n-1}]'
def a(b, n=1): return f'a{b}' if n == 1 else f'a[{b}:{b+n-1}]'
def s(b, n=1): return f's{b}' if n == 1 else f's[{b}:{b+n-1}]'
def VR(b, n=1): return {('v', i) for i in range(b, b + n)}
def AR(b, n=1): return {('a', i) for i in range(b, b + n)}

MF = 'v_mfma_f32_16x16x32_bf16'
def qk(q, kb, ks, sb=None, kbase=aK, mask=False):
    D = v(S0 + 16*(q if sb is None else sb) + 4*kb, 4)
    C = D if ks else (v(MK, 4) if mask else '0')
    return f'{MF} {D}, {a(kbase+16*kb+4*ks,4)}, {a(aQ+16*q+4*ks,4)}, {C}'
def vfrag(db, ks, vbase):
    if vbase == 'ov': return aX + 16 + 2*db
    return aV + (2*db+ks)*4 if vbase is None else vbase + 4*db
def pv(q, db, ks, pb=None, vbase=None, first=False):
    D = v(O0 + 32*q + 4*db, 4)
    return f'{MF} {D}, {a(vfrag(db, ks, vbase),4)}, {v(P0+8*(q if pb is None else pb)+4*ks,4)}, {"0" if first and ks == 0 else D}'
def sm(q, pb=None):
    return f'v_smfmac_f32_16x16x64_bf16 {a(aL+4*q,4)}, {a(aONE,4)}, {v(P0+8*(q if pb is None else pb),8)}, {v(IDX)}'
def qkg(q, nkb=4, sb=None, kbase=aK, mask=False):
    return [qk(q, kb, ks, sb, kbase, mask and kb == nkb-1) for kb in range(nkb) for ks in range(4)]
def pvg(q, pb=None, first=False): return [pv(q, db, ks, pb, None, first) for db in range(8) for ks in range(2)] + [sm(q, pb)]

def i_exp(sb, n): return f'v_exp_f32 {v(S0+16*sb+n)}, {v(S0+16*sb+n)}'
def i_cvt(sb, pb, i): return f'v_cvt_pk_bf16_f32 {v(P0+8*pb+i)}, {v(S0+16*sb+2*i)}, {v(S0+16*sb+2*i+1)}'
def i_kread(kb, ks, slot, tag, kbase=aK, addr=KA):
    return f'ds_read_b128 {a(kbase+16*kb+4*ks,4)}, {v(addr+ks)} offset:{slot*16384+kb*1024}'
def i_vread(db, ks, t, slot, tag, vbase=None, addr=VA):
    return f'ds_read_b64_tr_b16 {a(vfrag(db, ks, vbase)+2*t,2)}, {v(addr+db)} offset:{slot*16384+(2*ks+t)*1024}'
def i_dma(isv, i, soff, tag):
    return f'buffer_load_dwordx4 {v(DV if isv else DK)}, {s(12 if isv else 8,4)}, {s(soff+i)} offen offset:{i*1024}{FL[OPT["kf"]]} lds'
def i_m0(isv, slot): return f's_add_u32 m0, {s(sMV if isv else sMK)}, {slot*16384}'
def stamp(i): return [f's_memtime {s(sST+2*i,2)}'] if OPT['stamp'] and not (OPT.get('wb') and 1 <= i <= 4) else []

class Op:
    def __init__(self, key, cls, rel, dl, text, deps=(), fifo=None, pri=None):
        self.key, self.cls, self.rel, self.dl, self.text, self.deps, self.fifo = key, cls, rel, dl, text, list(deps), fifo
        self.pri = dl if pri is None else pri
        self.gap = None
class Gap:
    def __init__(self): self.sc, self.mem, self.valu, self.post = [], [], [], []; self.block = None

def schedule(ngaps, ops, gaps, overflow=False):
    byk = {o.key: o for o in ops}
    todo = list(ops)
    def ready(o, g):
        if o.rel > g: return False
        for d in o.deps:
            p = byk.get(d)
            if p is not None and (p.gap is None or p.gap >= g): return False
        if o.fifo is not None:
            p = byk[o.fifo]
            if p.gap is None or (o.cls in 'DRT' and p.cls not in 'RT' and p.gap >= g): return False
            if o.cls == 'D' and p.cls == 'R' and p.gap + LAT > g: return False
            if o.cls == 'D' and p.cls == 'D' and p.gap + OPT['ssp'] > g: return False
        return True
    def put(o, g):
        o.gap = g; todo.remove(o)
        (gaps[g].mem if o.cls in 'DRT' else gaps[g].valu).append(o)
    for g in range(ngaps):
        if gaps[g].block != 'all':
            cand = sorted((o for o in todo if ready(o, g)), key=lambda o: o.pri)
            if gaps[g].block == 'half': cand = [o for o in cand if o.cls == 'H'][:1]
            if cand:
                top = cand[0]
                halves = [o for o in cand if o.cls in 'RTH']
                full = [o for o in cand if o.cls in 'ED']
                if top.cls in 'RTH' and len(halves) == 1 and full and top.pri - g > 6 and top.fifo is None: top = full[0]
                put(top, g)
                if top.cls in 'RTH' and gaps[g].block != 'half':
                    c2 = sorted((o for o in todo if o.cls in 'RTH' and ready(o, g) and not (o.cls == 'R' and top.cls == 'R')), key=lambda o: o.pri)
                    if c2:
                        pick = c2[0]
                        busy = g > 0 and len(gaps[g-1].mem) > 1
                        if top.cls in 'RT' and pick.cls in 'RT' and (pick.pri - g > 8 or (busy and pick.pri - g > OPT['ttu'])):
                            h = [o for o in c2 if o.cls == 'H']
                            if h: pick = h[0]
                            elif busy and pick.pri - g > OPT['ttu']: pick = None
                        if pick: put(pick, g)
        late = [o for o in todo if o.dl <= g]
        if late:
            if not overflow: raise RuntimeError(f'deadline miss at gap {g}: {[o.key for o in late]}')
            def force(o):
                if o.gap is not None: return
                for d in o.deps + ([o.fifo] if o.fifo else []):
                    if d in byk: force(byk[d])
                assert o.rel <= g, (o.key, o.rel, g)
                o.gap = g; todo.remove(o)
                if o.cls in 'RT' and o.fifo is None and gaps[g].block != 'all': gaps[g].mem.append(o)
                else: gaps[g].post.append(o.text)
            for o in sorted(late, key=lambda o: (o.fifo is not None, {'R': 0, 'T': 0, 'D': 0, 'E': 1, 'H': 2}[o.cls], o.dl)): force(o)
    return todo

def emit(mf, gaps):
    out = []
    for m, g in zip(mf, gaps):
        out.append(m)
        sc = list(g.sc)
        if any(o.text.startswith('buffer_load') for o in g.mem) and not sc: sc = ['s_nop 0']
        out += sc + [o.text for o in g.mem] + [o.text for o in g.valu] + g.post
    return out

def add_lgkm_waits(lines, pre_ds=()):
    q = [(set(r), -age) for r, age in pre_ds]
    out = []; gap = -1; lastm = None; nvis = None
    for x in parse(lines):
        if x.cls == 'mfma':
            needed = [i for i, (r, g) in enumerate(q) if r & x.r]
            if needed:
                k = max(needed)
                if lastm is not None and k < nvis:
                    while k + 1 < nvis and q[k + 1][1] <= gap - LAT: k += 1
                    n = min(15, nvis - 1 - k)
                    if out[lastm:lastm+1] == ['s_nop 0']: out[lastm] = f's_waitcnt lgkmcnt({n})'
                    else: out.insert(lastm, f's_waitcnt lgkmcnt({n})')
                    k = nvis - 1 - n
                else:
                    n = min(15, len(q) - 1 - k)
                    out.append(f's_waitcnt lgkmcnt({n})')
                    k = len(q) - 1 - n
                q = q[k + 1:]
            gap += 1
            out.append(x.text); lastm = len(out); nvis = len(q)
        else:
            if x.cls == 'vmem':
                needed = [i for i, (r, g) in enumerate(q) if r & x.r]
                if needed:
                    n = min(15, len(q) - 1 - max(needed)); drop = len(q) - n
                    out.append(f's_waitcnt lgkmcnt({n})'); q = q[drop:]
                    if nvis is not None: nvis = max(0, nvis - drop)
            if x.cls == 'ds': q.append((set(x.w), gap))
            if x.cls == 'wait' and x.lgkm is not None:
                drop = max(0, len(q) - x.lgkm); q = q[drop:]
                if nvis is not None: nvis = max(0, nvis - drop)
            out.append(x.text)
    return out, [(r, gap - g) for r, g in q]

class Prog:
    def __init__(self): self.mf = []; self.ops = []; self.pos = {}
    def group(self, name, mf): self.pos[name] = len(self.mf); self.mf += mf
    def done(self):
        self.ins = [Ins(m) for m in self.mf]; self.n = len(self.mf); self.gaps = [Gap() for _ in self.mf]
    def first_read(self, R, lo): return next((i for i in range(lo, self.n) if R & self.ins[i].srcAB), INF)
    def last_read(self, R, hi): return next((i for i in range(min(hi, self.n) - 1, -1, -1) if R & self.ins[i].srcAB), -1)
    def last_write(self, R, hi): return next((i for i in range(min(hi, self.n) - 1, -1, -1) if R & self.ins[i].w), -1)
    def next_write(self, R, lo): return next((i for i in range(lo, self.n) if R & self.ins[i].w), INF)
    def kload(self, key, use, slot, tag, nkb=4, kbase=aK, addr=KA, rel0=0, dlmax=None):
        for f in range(4 * nkb):
            R = AR(kbase + 4*f, 4)
            u = self.first_read(R, use) if use < self.n else self.n + f
            rel = min(self.n - 1, max(rel0, self.last_read(R, u) + 1))
            dl = u - LAT if dlmax is None else min(u - LAT, dlmax - (4*nkb - 1 - f))
            self.ops.append(Op((key, f), 'R', rel, max(rel, dl), i_kread(f//4, f%4, slot, tag, kbase, addr), deps=[(key, f-1)] if f else []))
    def vload(self, key, use, slot, tag, nks=2, vbase=None, addr=VA, rel0=0):
        for db in range(8):
            for ks in range(nks):
                R = AR(vfrag(db, ks, vbase), 4)
                u = self.first_read(R, use)
                rel = max(rel0, self.last_read(R, u) + 1)
                for t in range(2):
                    if vbase == 'ov' and t == 1 and db < 7: continue
                    self.ops.append(Op((key, db, ks, t), 'T', rel, max(rel, u - LAT - (1 - t)), i_vread(db, ks, t, slot, tag, vbase, addr)))
    def softmax(self, key, at, sb, pb, nkb=4, only=None, skip=(), dlcap=None, use=0, lastrel=INF, zero=True):
        end = at + 4*nkb if at >= 0 else 0
        u = self.first_read(VR(P0 + 8*pb, 8), max(end, use))
        prel = min(self.last_read(VR(P0 + 8*pb, 8), u) + 1, u - 1)
        cap = min(u - 3, self.next_write(VR(S0 + 16*sb, 16), end) - 1, self.n - 1 if dlcap is None else dlcap)
        n = 4 * nkb; edl = {}
        for e in range(n):
            if (only is not None and ('e', e) not in only) or ('e', e) in skip: continue
            rel = min(lastrel, at + 4*(e//4) + 3 + 5) if at >= 0 else 0
            edl[e] = min(max(rel, cap - 1 - 2*(n - 1 - e), min(cap - 1, rel + e % 4)), max(rel, cap))
            self.ops.append(Op((key, 'e', e), 'E', rel, edl[e], i_exp(sb, e)))
        for i in range(2 * nkb):
            if (only is not None and ('c', i) not in only) or ('c', i) in skip: continue
            rel = max(prel, min(lastrel, at + 4*(i//2) + 3 + 6) if at >= 0 else 0)
            self.ops.append(Op((key, 'c', i), 'H', rel, max(rel, cap - (2*nkb - 1 - i), min(cap, edl.get(2*i+1, 0) + 1)), i_cvt(sb, pb, i),
                               deps=[(key, 'e', 2*i), (key, 'e', 2*i+1)]))
            assert rel <= u - 1, (key, i, rel, u)
        if only is None and zero:
            for i in range(2 * nkb, 8):
                self.ops.append(Op((key, 'z', i), 'H', prel, max(prel, u - 3), f'v_mov_b32 {v(P0+8*pb+i)}, 0'))

NG = 132
LOOP_MF = qkg(0) + pvg(2) + qkg(1) + pvg(3) + qkg(2) + pvg(0) + qkg(3) + pvg(1)
assert len(LOOP_MF) == NG
BARG = OPT.get('barg', 47)
DMAG = [10, 14, 18, 22, 26, 30, 34, 38]
RLG = [41, 43, 92, 96] if BARG not in (41, 43) else [45, 47, 92, 96]

def steady():
    NT = 6
    ops = []
    gaps = [Gap() for _ in range(NG * (NT + 1))]
    for j in range(NT):
        b = NG * j
        for q in range(4):
            pvs = b + 82 + 33*q; qs = b + 33*q
            for e in range(16):
                g = qs + OPT['delta'] + 2*e
                ops.append(Op(('e', j, q, e), 'E', g, g, None))
            for i in range(8):
                ops.append(Op(('c', j, q, i), 'H', pvs - NG + 17, pvs - 3 - (7 - i), None, deps=[('e', j, q, 2*i), ('e', j, q, 2*i+1)]))
        for f in range(16):
            for t in range(2):
                ops.append(Op(('v', j, f//2, f%2, t), 'T', max(b + 50 + f, b + BARG + 1), b + 82 + f - LAT - (1 - t), None))
            ops.append(Op(('k', j, f//4, f%4), 'R', b + 100 + f, min(b + NG - 2 - (15 - f), b + NG + f - LAT), None,
                          deps=[('k', j, (f-1)//4, (f-1)%4)] if f else []))
        for i in range(4): ops.append(Op(('rl', j, i), 'E', b + RLG[i], b + RLG[i], None))
        for i in range(8): ops.append(Op(('d', j, i), 'D', b + DMAG[i], b + DMAG[i], None))
        gaps[b + BARG].block = 'all'
        gaps[b + NG - 1].block = 'half'
    schedule(NG * (NT + 1), ops, gaps)
    def pattern(j):
        return [[(o.key[0], o.key[1] - j) + o.key[2:] for o in gaps[NG*j + g].mem + gaps[NG*j + g].valu] for g in range(NG)]
    assert pattern(3) == pattern(4), 'no steady state'
    return pattern(3)
PAT = steady()
LEFT = {k for g in PAT for k in g if k[1] == -1}
assert all(k[0] in 'ec' and k[2] == 3 for k in LEFT), LEFT
LEFT3 = {(k[0], k[3]) for k in LEFT}
HEADWAIT = 's_waitcnt lgkmcnt(4)'

class Txt:
    def __init__(self, t): self.text = t

def body(sl):
    def text(k):
        if k[0] == 'e': return i_exp(k[2], k[3])
        if k[0] == 'c': return i_cvt(k[2], k[2], k[3])
        if k[0] == 'v': return i_vread(k[2], k[3], k[4], sl, '+0')
        if k[0] == 'k': return i_kread(k[2], k[3], (sl + 1) % 4, '+1')
        if k[0] == 'rl': return f'v_readlane_b32 {s(SETS[sl%2] + k[2])}, {v(BT+k[2])}, {s(sLN)}'
        if k[0] == 'd': return i_dma(1, k[2], SETS[sl % 2], '+2') if k[2] < 4 else i_dma(0, k[2] - 4, SETS[(sl + 1) % 2], '+3')
    gaps = [Gap() for _ in range(NG)]
    for g in range(NG):
        for k in PAT[g]: (gaps[g].mem if k[0] in 'vkd' else gaps[g].valu).append(Txt(text(k)))
    gaps[DMAG[0] - 2].sc.append(i_m0(1, (sl + 2) % 4))
    gaps[DMAG[4] - 2].sc.append(i_m0(0, (sl + 3) % 4))
    gaps[RLG[-1] + 2].sc.append(f's_add_u32 {s(sLN)}, {s(sLN)}, 1')
    gaps[BARG - OPT.get('vmo', 1)].sc.append('s_waitcnt vmcnt(16)')
    gaps[BARG].sc.append('s_barrier')
    if sl == 0: gaps[NG - 3].sc.append(f's_sub_u32 {s(sIT)}, {s(sIT)}, 1')
    gaps[NG - 2].sc.append(HEADWAIT)
    lines = emit(LOOP_MF, gaps)
    ab = OPT.get('abl', 0)
    if ab & 1: lines = [l for l in lines if not l.startswith('buffer_load')]
    if ab & 2: lines = [l for l in lines if not l.startswith(('s_barrier', 's_waitcnt vmcnt'))]
    if ab & 32: lines = [l for l in lines if not l.startswith('s_barrier')]
    return lines

def loop_code():
    _, pend = add_lgkm_waits(body(1))
    out = [f'.p2align {OPT.get("al", 6)}'] + ['s_nop 0'] * OPT.get('alo', 0)
    for sl in (1, 2, 3, 0):
        l, pend2 = add_lgkm_waits(body(sl), pend)
        assert [x[0] for x in pend2] == [x[0] for x in pend]
        out += [f'L_b{sl}:']
        if OPT.get('its'):
            for k in range(3):
                out += [f's_cmp_eq_u32 {s(sLN)}, {OPT["its"] + k * OPT.get("itd", 1)}', f's_cbranch_scc0 L_sk{sl}{k}', f's_mem{"real" if OPT.get("rt") else ""}time {s(sST+2+2*k,2)}', f'L_sk{sl}{k}:']
        out += l
    return out + ['s_cbranch_scc0 L_b1'], pend

def epi_list(q, first):
    t = T0 + 2 * (q & 1)
    o = O0 + 32*q
    L = [('H', f'v_accvgpr_read_b32 {v(t)}, {a(aL+4*q)}', -1),
         ('H', f'v_accvgpr_read_b32 {v(t+1)}, {a(aL+4*q+1)}', -1),
         ('H', f'v_add_f32 {v(t)}, {v(t)}, {v(t+1)}', -1),
         ('E', f'v_rcp_f32 {v(t+1)}, {v(t)}', -1),
         ('H', f'v_subrev_u32 {v(t)}, 0x2b800000, {v(t)}', -1),
         ('H', f'v_mov_b32 {v(T0+4)}, {v(t)}' if first else f'v_max_u32 {v(T0+4)}, {v(T0+4)}, {v(t)}', -1)]
    def muls(u): return [('M', (o + 8*u + i, t + 1), u) for i in range(8)]
    def cvts(u): return [('H', f'v_cvt_pk_bf16_f32 {v(o+8*u+i)}, {v(o+8*u+2*i)}, {v(o+8*u+2*i+1)}', u) for i in range(4)]
    def swaps(u): return [('E', f'v_permlane16_swap_b32 {v(o+8*u+i)}, {v(o+8*u+2+i)}', u) for i in range(2)]
    def store(u):
        return [('D', f'buffer_store_dwordx4 {v(o+8*u,4)}, {v(OV)}, s[16:19], {"0" if q == 0 else s(sQ1+q-1)} offen offset:{64*u}{FL[OPT.get(f"of{q}", OPT["of"])]}', u)]
    if OPT['ep']:
        def writes(u): return [('T', f'ds_write_b64 {v(EW)}, {v(o+8*u+2*i,2)} offset:{64*u+32*i}', u) for i in range(2)]
        for u in range(4): L += muls(u) + cvts(u) + writes(u)
        L += [('R', f'ds_read_b128 {v(o+8*p+4,4)}, {v(ER)} offset:{1088*p}', 3) for p in range(4)]
        L += [('D', f'buffer_store_dwordx4 {v(o+8*p+4,4)}, {v(EG)}, s[16:19], {"0" if q == 0 else s(sQ1+q-1)} offen offset:{1024*p}{FL[OPT.get(f"of{q}", OPT["of"])]}', 3) for p in range(4)]
        return L
    h = lambda l, a_, b_: l[a_:b_]
    L += muls(0) + cvts(0) + h(muls(1), 0, 2) + swaps(0) + store(0) + h(muls(1), 2, 8) + cvts(1) + h(muls(2), 0, 2) + swaps(1) + store(1) \
       + h(muls(2), 2, 8) + cvts(2) + h(muls(3), 0, 2) + swaps(2) + store(2) + h(muls(3), 2, 8) + cvts(3) + [('H', 's_nop 1', 3)] + swaps(3) + store(3)
    return L

def final(q, items):
    return [sm(q, pb) for pb, vb, nk in items] + [pv(q, db, ks, pb, vb) for db in range(8) for pb, vb, nk in items for ks in range(nk)]

def tail_merged():
    P = Prog(); G = P.group
    k3 = lambda q, sb: qkg(q, 1, sb=sb, kbase=aX, mask=True)
    fin = lambda q, pb: final(q, [(q, None, 2), (pb, 'ov', 1)])
    G('q0', qkg(0)); G('p2', pvg(2)); G('p3', pvg(3)); G('r0', k3(0, 2)); G('r1', k3(1, 3)); G('q1', qkg(1))
    if OPT['tord'] == 0:
        G('f0', fin(0, 2)); G('q2', qkg(2)); G('r2', k3(2, 0)); G('f1', fin(1, 3)); G('q3', qkg(3)); G('r3', k3(3, 1))
    else:
        G('f0', fin(0, 2)); G('r2', k3(2, 0)); G('q2', qkg(2)); G('f1', fin(1, 3)); G('r3', k3(3, 1)); G('q3', qkg(3))
    G('f2', fin(2, 0)); G('f3', fin(3, 1))
    P.done(); p = P.pos
    bar2 = p['p3'] + 8
    P.softmax('left', -1, 3, 3, only=LEFT3)
    for q in range(4):
        P.softmax(f's{q}', p[f'q{q}'], q, q, use=p[f'f{q}'])
        P.softmax(f't{q}', p[f'r{q}'], (q + 2) % 4, (q + 2) % 4, 1, use=p[f'f{q}'])
    P.kload('k3', p['r0'], 2, 'T3', 1, kbase=aX, rel0=2); P.vload('v2', p['f0'], 1, 'T2', rel0=2)
    P.vload('v3', p['f0'], 2, 'T3', 1, 'ov', rel0=bar2 + 1)
    g = P.gaps
    g[0].sc.append('s_waitcnt vmcnt(8)'); g[1].sc.append('s_barrier'); g[1].block = 'all'
    g[bar2 - 1].sc.append('s_waitcnt vmcnt(4)'); g[bar2].sc.append('s_barrier'); g[bar2].block = 'all'
    return P

def tail_x():
    P = Prog(); G = P.group
    G('A1', qkg(0, sb=0)); G('A2', pvg(2)); G('A3', qkg(1, sb=1)); G('A4', pvg(3)); G('A5', qkg(0, sb=2))
    if OPT['tord'] < 2: G('A6', qkg(1, sb=3))
    G('A7', pvg(0, pb=0)); G('A8', pvg(1, pb=1)); G('A10', final(0, [(2, None, 2)]))
    if OPT['tord'] == 2: G('A6', qkg(1, sb=3))
    G('B1', qkg(2, sb=2)); G('A11', final(1, [(3, None, 2)])); G('B2', qkg(3, sb=3)); G('B3', qkg(2, sb=0))
    G('r3', qkg(3, 1, sb=1, kbase=aX, mask=True)); G('B4', pvg(2, pb=2)); G('B5', pvg(3, pb=3))
    if OPT['tord']:
        G('B8', final(2, [(0, None, 2)])); G('B6', qkg(3, sb=1)); G('x3', final(3, [(3, 'ov', 1)])); G('B9', final(3, [(1, None, 2)]))
    else:
        G('B6', qkg(3, sb=1)); G('B8', final(2, [(0, None, 2)])); G('B9', final(3, [(1, None, 2), (3, 'ov', 1)]))
    P.done(); p = P.pos
    bar2 = p['A5'] + 6
    P.softmax('left', -1, 3, 3, only=LEFT3)
    P.softmax('s10', p['A1'], 0, 0); P.softmax('s11', p['A3'], 1, 1); P.softmax('s20', p['A5'], 2, 2); P.softmax('s21', p['A6'], 3, 3)
    P.softmax('s12', p['B1'], 2, 2); P.softmax('s13', p['B2'], 3, 3); P.softmax('s22', p['B3'], 0, 0); P.softmax('s23', p['B6'], 1, 1)
    P.softmax('t3', p['r3'], 1, 3, 1, use=p['B8'])
    P.kload('k2', p['A5'], 2, 'T2', rel0=2); P.vload('v1', p['A7'], 1, 'T1', rel0=2); P.vload('v2', p['A10'], 2, 'T2', rel0=bar2 + 1)
    P.kload('k1b', p['B1'], 1, 'T1'); P.kload('k2b', p['B3'], 2, 'T2'); P.vload('v1b', p['B4'], 1, 'T1'); P.vload('v2b', p['B8'], 2, 'T2')
    g = P.gaps
    g[0].sc.append('s_waitcnt vmcnt(8)'); g[1].sc.append('s_barrier'); g[1].block = 'all'
    g[bar2 - 1].sc.append('s_waitcnt vmcnt(4)'); g[bar2].sc.append('s_barrier'); g[bar2].block = 'all'
    if OPT.get('otlb') == 2:
        P.ops.append(Op(('ot', 0), 'D', bar2 + 2, bar2 + 2, f'buffer_load_dword {v(BT)}, {v(OV)}, s[16:19], 0 offen sc1'))
    return P

def tail_pairs(nkb):
    nks = 1 if nkb <= 2 else 2
    small = nkb <= 2
    vx = aX if small else None
    P = Prog()
    G = P.group
    G('A1', qkg(0, sb=0)); G('A2', pvg(2)); G('A3', qkg(1, sb=1)); G('A4', pvg(3))
    G('A5', qkg(0, sb=2)); G('A6', qkg(1, sb=3)); G('A7', pvg(0, pb=0))
    if not small: G('A8', pvg(1, pb=1))
    G('A9a', qkg(0, nkb, sb=0, mask=True)); G('A9b', qkg(1, nkb, sb=1, mask=True))
    if small:
        G('A8', pvg(1, pb=1))
        G('A10', final(0, [(2, None, 2), (0, vx, 1)])); G('B1', qkg(2, sb=2)); G('A11', final(1, [(3, None, 2), (1, vx, 1)]))
        G('B2', qkg(3, sb=3)); G('B3', qkg(2, sb=0)); G('B4', pvg(2, pb=2))
        G('B7a', qkg(2, nkb, sb=2, kbase=aQ, mask=True)); G('B7b', qkg(3, nkb, sb=3, kbase=aQ, mask=True)); G('B5', pvg(3, pb=3))
        if OPT['tord']:
            G('B8', final(2, [(0, None, 2), (2, vx, 1)])); G('B6', qkg(3, sb=1))
            G('B9a', final(3, [(3, vx, 1)])); G('B9', final(3, [(1, None, 2)]))
        else:
            G('B6', qkg(3, sb=1))
            G('B8', final(2, [(0, None, 2), (2, vx, 1)])); G('B9', final(3, [(1, None, 2), (3, vx, 1)]))
    else:
        G('A10p', pvg(0, pb=2)); G('A11p', pvg(1, pb=3)); G('B1', qkg(2, sb=2))
        G('A10', final(0, [(0, None, 2)])); G('A11', final(1, [(1, None, 2)]))
        G('B2', qkg(3, sb=3)); G('B3', qkg(2, sb=0)); G('B4', pvg(2, pb=2)); G('B5', pvg(3, pb=3)); G('B6', qkg(3, sb=1))
        G('B8p', pvg(2, pb=0)); G('B7a', qkg(2, nkb, sb=2, mask=True)); G('B9p', pvg(3, pb=1)); G('B7b', qkg(3, nkb, sb=3, mask=True))
        G('B8', final(2, [(2, None, 2)])); G('B9', final(3, [(3, None, 2)]))
    P.done(); p = P.pos
    bar2 = p['A6'] + 10
    P.softmax('left', -1, 3, 3, only=LEFT3)
    P.softmax('s10', p['A1'], 0, 0); P.softmax('s11', p['A3'], 1, 1); P.softmax('s20', p['A5'], 2, 2); P.softmax('s21', p['A6'], 3, 3)
    P.softmax('s30', p['A9a'], 0, 0, nkb); P.softmax('s31', p['A9b'], 1, 1, nkb, use=p['A10'])
    P.softmax('s12', p['B1'], 2, 2); P.softmax('s13', p['B2'], 3, 3); P.softmax('s22', p['B3'], 0, 0); P.softmax('s23', p['B6'], 1, 1)
    P.softmax('s32', p['B7a'], 2, 2, nkb); P.softmax('s33', p['B7b'], 3, 3, nkb, use=p['B8'])
    P.kload('k2', p['A5'], 2, 'T2', rel0=2); P.vload('v1', p['A7'], 1, 'T1', rel0=2)
    P.kload('k3', p['A9a'], 3, 'T3', nkb, rel0=bar2 + 1)
    P.kload('k1b', p['B1'], 1, 'T1'); P.kload('k2b', p['B3'], 2, 'T2'); P.vload('v1b', p['B4'], 1, 'T1')
    if small:
        P.vload('v2', p['A10'], 2, 'T2', rel0=bar2 + 1); P.vload('v3', p['A10'], 3, 'T3', 1, vx, rel0=bar2 + 1)
        P.kload('k3b', p['B7a'], 3, 'T3', nkb, kbase=aQ); P.vload('v2b', p['B8'], 2, 'T2')
    else:
        P.vload('v2', p['A10p'], 2, 'T2', rel0=bar2 + 1); P.vload('v3', p['A10'], 3, 'T3')
        P.kload('k3b', p['B7a'], 3, 'T3', nkb); P.vload('v2b', p['B8p'], 2, 'T2'); P.vload('v3b', p['B8'], 3, 'T3')
    for i in range(4):
        P.ops.append(Op(('d', i), 'D', 10 + 4*i, 11 + 4*i, i_dma(1, i, SETS[1], 'T3')))
    g = P.gaps
    g[0].sc.append('s_waitcnt vmcnt(8)'); g[1].sc.append('s_barrier'); g[1].block = 'all'
    g[8].sc.append(i_m0(1, 3))
    g[bar2 - 1].sc.append('s_waitcnt vmcnt(0)'); g[bar2].sc.append('s_barrier'); g[bar2].block = 'all'
    return P

def tail(nkb, pend):
    P = {3: tail_merged, 4: tail_x}[OPT['tv']]() if nkb == 1 and OPT['tv'] >= 3 else tail_pairs(nkb)
    p = P.pos
    prev = None
    if OPT['ep']:
        t = T0
        setup = [f'v_mbcnt_lo_u32_b32 {v(t)}, -1, 0', f'v_mbcnt_hi_u32_b32 {v(t)}, -1, {v(t)}',
                 f'v_and_b32 {v(t+1)}, 15, {v(t)}', f'v_lshrrev_b32 {v(t+2)}, 4, {v(t)}',
                 f'v_mul_u32_u24 {v(EW)}, 272, {v(t+1)}', f'v_lshl_add_u32 {v(EW)}, {v(t+2)}, 3, {v(EW)}',
                 f'v_mul_u32_u24 {v(ER)}, 272, {v(t+2)}', f'v_lshl_add_u32 {v(ER)}, {v(t+1)}, 4, {v(ER)}',
                 f'v_add_u32 {v(EW)}, {s(sT+3)}, {v(EW)}', f'v_add_u32 {v(ER)}, {s(sT+3)}, {v(ER)}',
                 f'v_lshlrev_b32 {v(EG)}, 4, {v(t)}', f'v_add_u32 {v(EG)}, {s(sT+4)}, {v(EG)}']
        for i, x in enumerate(setup):
            o = Op(('su', i), 'H', 24, INF, x, fifo=prev, pri=100 + i); prev = o.key; P.ops.append(o)
    for q in range(4):
        lrel = P.last_write(AR(aL + 4*q, 4), INF) + 5
        nst = 0
        for i, (c, t, u) in enumerate(epi_list(q, q == 0)):
            rel = lrel if u < 0 else max(lrel, P.last_write(VR(O0 + 32*q + 8*u, 8), INF) + 5)
            fin = P.last_write(VR(O0 + 32*q, 32), INF) + 5
            edl = OPT.get(f'edl{q}', OPT.get('edl', INF))
            nst += c == 'D'
            dl = INF if edl >= INF else fin + edl + (LAT + OPT['ssp'] * (nst - 1) if c == 'D' and OPT['ep'] else 0)
            o = Op(('ep', q, i), {'M': 'H'}.get(c, c), rel, dl if dl < P.n - 1 else INF, f'v_mul_f32 {v(t[0])}, {v(t[1])}, {v(t[0])}' if c == 'M' else t,
                   fifo=prev, pri=rel + OPT['epri'] + i // 2)
            o.raw = (c, t); prev = o.key; P.ops.append(o)
            if c != 'D': lastnd = o.key
        if OPT['ep']: prev = lastnd
    g = P.gaps
    todo = schedule(P.n, P.ops, g, overflow=True)
    if OPT.get('ts'):
        names = {1: ('A5', 'A10', 'B2'), 2: ('B4', 'B8', 'B9'), 3: ('A2', 'A7', 'A11')}[OPT['ts']] if 'A5' in p else {1: ('p3', 'f0', 'f1'), 2: ('q3', 'f2', 'f3')}[OPT['ts']]
        for k, nm in enumerate(names): g[p[nm]].sc += stamp(1 + k)
        if nkb == 1: print('stamp mfma idx', [p[nm] for nm in names], p)
    if OPT['pkd']:
        import re
        for gp in g:
            if sum(x.startswith('v_mul_f32') for x in gp.post) < OPT['pkd']: continue
            out = []; i = 0
            while i < len(gp.post):
                m = re.match(r'v_mul_f32 v(\d+), v(\d+),', gp.post[i])
                if m and int(m.group(1)) % 2 == 0 and i + 1 < len(gp.post) and gp.post[i+1].startswith(f'v_mul_f32 v{int(m.group(1))+1},'):
                    out.append(f'v_pk_mul_f32 {v(int(m.group(1)),2)}, {v(int(m.group(1)),2)}, {v(int(m.group(2))-1,2)} op_sel:[0,1] op_sel_hi:[1,1]'); i += 2
                else: out.append(gp.post[i]); i += 1
            gp.post = out
    lines = emit(P.mf, g)
    assert all(o.key[0] == 'ep' for o in todo), [o.key for o in todo]
    i = 0
    while i < len(todo):
        c, t = todo[i].raw
        if c == 'M' and i + 1 < len(todo) and todo[i+1].raw[0] == 'M' and t[0] % 2 == 0 and todo[i+1].raw[1][0] == t[0] + 1:
            lines.append(f'v_pk_mul_f32 {v(t[0],2)}, {v(t[0],2)}, {v(t[1]-1,2)} op_sel:[0,1] op_sel_hi:[1,1]'); i += 2
        else:
            lines.append(todo[i].text); i += 1
    lines, _ = add_lgkm_waits(lines, pend)
    return lines

def scale_q(q):
    out = []
    for h in range(0, 16, 4):
        for i in range(4):
            x = S0 + 16*q + h + i; t = T0 + 2*i
            out += [f'v_lshlrev_b32 {v(t)}, 16, {v(x)}', f'v_and_b32 {v(t+1)}, 0xffff0000, {v(x)}']
        out += [f'v_pk_mul_f32 {v(T0+2*i,2)}, {v(T0+2*i,2)}, {s(sC,2)}' for i in range(4)]
        out += [f'v_cvt_pk_bf16_f32 {v(S0+16*q+h+i)}, {v(T0+2*i)}, {v(T0+2*i+1)}' for i in range(4)]
        out += [f'v_accvgpr_write_b32 {a(aQ+16*q+h+i)}, {v(S0+16*q+h+i)}' for i in range(4)]
    return out
def qread(q): return [f'ds_read_b128 {v(S0+16*q+4*ks,4)}, {v(QA+ks)} offset:{(q&1)*0x4000}' for ks in range(4)] + ['s_waitcnt lgkmcnt(0)']
def qload(q):
    return [f's_add_u32 m0, {s(sMK)}, {0x20000 + (q&1)*0x4000}', 's_nop 0'] + \
           [f'buffer_load_dwordx4 {v(QD+p)}, s[4:7], {"0" if q == 0 else s(sQ1+q-1)} offen offset:{1024*p}{FL[OPT["qf"]]} lds ; ld Q{q}' for p in range(4)]
def dma4(isv, tile):
    return [f's_add_u32 m0, {s(sMV if isv else sMK)}, {s(sSL+tile)}', 's_nop 0'] + [i_dma(isv, i, 40 + 4*tile, tile) for i in range(4)]
def btprep(tile):
    out = []
    for i in range(4):
        r = 40 + 4*tile + i
        out.append(f's_lshl_b32 {s(r)}, {s(r)}, 16')
        if i < 3: out.append(f's_or_b32 {s(r)}, {s(r)}, {(3-i)*1024}')
    return out

def resolve_waitvm(lines):
    out = []; vm = []
    for l in lines:
        if l.startswith('WAITVM'):
            tags = l.split(None, 1)[1].split('|')
            last = max(i for i, t in enumerate(vm) if t in tags)
            wb = {1: ('ld Q0', 'ld Q1'), 2: ('ld Q2', 'ld Q3'), 3: ('dma K 0', 'dma V 0'), 4: ('dmx K', 'ld BT')}.get(OPT.get('wb'), ())
            st_ = lambda i: [f's_memtime {s(sST+2*i,2)}']
            if tags[0] in wb: out += st_(1 + 2*wb.index(tags[0]))
            out.append(f's_waitcnt vmcnt({len(vm) - 1 - last}) ; {tags}')
            if tags[0] in wb: out += st_(2 + 2*wb.index(tags[0]))
        else:
            if l.startswith(('buffer_', 'global_')): vm.append(l.split(';')[1].strip() if ';' in l else '')
            out.append(l)
    return out

def prologue():
    t = T0
    L = ([f's_mov_b32 s77, {OPT["twice"]}', 'L_again:'] if OPT.get('twice') else []) + ['s_cmp_ge_u32 s2, 256', 's_cbranch_scc1 L_end',
         's_load_dwordx8 s[24:31], s[0:1], 0', 's_load_dwordx4 s[32:35], s[0:1], 32']
    cpf = []
    if OPT['cpf']:
        cpf = ['s_getpc_b64 s[8:9]', 'L_pc:', 's_lshr_b32 s10, s2, 3', 's_lshl_b32 s10, s10, 10',
              'v_lshl_add_u32 v2, v0, 2, s10', 'v_min_u32 v2, L_pfend-L_pc-4, v2', 'v_mov_b32 v3, s9',
              'v_add_co_u32 v2, vcc, s8, v2', 's_nop 1', 'v_addc_co_u32 v3, vcc, 0, v3, vcc', f'global_load_dword {v(T0+7)}, v[2:3], off']
    if OPT['cpf'] == 1: L += cpf
    L += stamp(0) + (['s_memrealtime s[100:101]'] if OPT['stamp'] else [])
    L += [f'v_lshrrev_b32 {v(t)}, 6, v0',
          f'v_and_b32 {v(t+2)}, 15, v0',
          f'v_readfirstlane_b32 {s(sW)}, {v(t)}',
          f'v_bfe_u32 {v(t+3)}, v0, 4, 2',
          f's_and_b32 {s(sT)}, s2, 7', f's_lshr_b32 {s(sT+1)}, s2, 3', f's_lshl_b32 {s(sT)}, {s(sT)}, 5',
          f's_add_u32 {s(sT)}, {s(sT)}, {s(sT+1)}', f's_lshl_b32 {s(sT+1)}, {s(sT)}, 16',
          f'v_lshlrev_b32 {v(t+4)}, 14, {v(t)}', f'v_lshl_add_u32 {v(t+4)}, {v(t+3)}, 8, {v(t+4)}', f'v_xor_b32 {v(t+5)}, {v(t+2)}, {v(t+3)}']
    for p in range(4):
        L += [f'v_xor_b32 {v(QD+p)}, {4*p}, {v(t+5)}', f'v_lshl_add_u32 {v(QD+p)}, {v(QD+p)}, 4, {v(t+4)}']
    L += [f's_lshl_b32 {s(sMK)}, {s(sW)}, 12', 's_mov_b32 s6, 0x10000', 's_mov_b32 s7, 0x20000']
    if OPT['cpf'] == 2: L += cpf
    L += ['s_waitcnt lgkmcnt(0)',
          f's_load_dword {s(sCL)}, s[32:33], 0', 's_load_dwordx16 s[40:55], s[30:31], 0',
          f's_add_u32 s4, s24, {s(sT+1)}', 's_addc_u32 s5, s25, 0']
    L += qload(0)
    if OPT['cpf'] == 3: L += cpf
    L += [f'v_and_b32 {v(t+1)}, 63, v0', f'v_lshlrev_b32 {v(t+6)}, 4, {v(t+1)}',
          's_mov_b32 s20, s30', 's_mov_b32 s21, s31', 's_movk_i32 s22, 0x200', 's_mov_b32 s23, 0x20000',
          f'buffer_load_dwordx4 {v(BT,4)}, {v(t+6)}, s[20:23], 0 offen ; ld BT',
          f's_lshr_b32 {s(sT)}, {s(sT)}, 4', f's_lshl_b32 {s(sT)}, {s(sT)}, 8',
          f's_add_u32 s8, s26, {s(sT)}', 's_addc_u32 s9, s27, 0', 's_sub_u32 s8, s8, 3072', 's_subb_u32 s9, s9, 0',
          f's_sub_u32 s10, {KBYTES+3072}, {s(sT)}', 's_mov_b32 s11, 0x20000',
          f'v_lshl_add_u32 {v(t+4)}, {v(t)}, 2, {v(t+3)}',
          f'v_xor_b32 {v(t+6)}, {v(t+2)}, {v(t+4)}', f'v_lshlrev_b32 {v(t+6)}, 4, {v(t+6)}',
          f'v_lshl_add_u32 {v(DK)}, {v(t+4)}, 12, {v(t+6)}',
          f'v_and_b32 {v(t+6)}, 7, {v(t+4)}', f'v_lshlrev_b32 {v(t+6)}, 1, {v(t+6)}',
          f'v_xor_b32 {v(t+6)}, {v(t+2)}, {v(t+6)}', f'v_lshlrev_b32 {v(t+6)}, 4, {v(t+6)}',
          f'v_lshl_add_u32 {v(DV)}, {v(t+4)}, 12, {v(t+6)}',
          f's_movk_i32 {s(sQ1)}, 0x1000', f's_movk_i32 {s(sQ1+1)}, 0x2000', f's_movk_i32 {s(sQ1+2)}, 0x3000',
          f's_add_u32 s12, s28, {s(sT)}', 's_addc_u32 s13, s29, 0', 's_sub_u32 s12, s12, 3072', 's_subb_u32 s13, s13, 0',
          's_mov_b32 s14, s10', 's_mov_b32 s15, 0x20000',
          f's_add_u32 s16, s34, {s(sT+1)}', 's_addc_u32 s17, s35, 0', 's_mov_b32 s18, 0x10000', 's_mov_b32 s19, 0x20000',
          f's_add_u32 {s(sMV)}, {s(sMK)}, 0x10000', f's_mov_b32 {s(sC)}, 0x3e0293ee',
          's_waitcnt lgkmcnt(0)'] + stamp(1)
    L += [f's_cmp_lt_i32 {s(sCL)}, 1', f's_cselect_b32 {s(sC)}, 0, {s(sC)}', f's_cselect_b32 {s(sCL)}, 0x800, {s(sCL)}',
          f's_min_u32 {s(sCLT)}, {s(sCL)}, 0x800', f's_max_u32 {s(sCL)}, {s(sCLT)}, {MINCL}',
          f's_add_u32 {s(sN)}, {s(sCL)}, 63', f's_lshr_b32 {s(sN)}, {s(sN)}, 6',
          f's_mov_b32 {s(sNP)}, {s(sN)}']
    if OPT['tv'] == 3:
        L += [f's_sub_u32 {s(sNP)}, {s(sCL)}, 1', f's_and_b32 {s(sNP)}, {s(sNP)}, 63', f's_cmp_lt_u32 {s(sNP)}, 16', f's_addc_u32 {s(sNP)}, {s(sN)}, 0']
    L += [f's_sub_u32 {s(sE)}, 0, {s(sNP)}', f's_and_b32 {s(sE)}, {s(sE)}, 3', f's_lshl_b32 {s(sSL)}, {s(sE)}, 14']
    L += btprep(0) + dma4(0, 0) + qload(1)
    if OPT.get('otlb') == 1:
        L += [f'buffer_load_dword {v(O0+8)}, {v(QD)}, s[16:19], 0 offen sc1 ; ld O']
    L += [f's_mov_b32 {s(sC2)}, {s(sC)}',
          f's_cmp_lt_u32 {s(sCLT)}, {4096 if OPT["forceslow"] else MINCL}', f's_cselect_b32 {s(sFORCE)}, 1, 0',
          f's_add_u32 {s(sIT)}, {s(sNP)}, {s(sE)}', f's_lshr_b32 {s(sIT)}, {s(sIT)}, 2', f's_sub_u32 {s(sIT)}, {s(sIT)}, 2']
    for i in range(1, 4):
        L += [f's_add_u32 {s(sSL+i)}, {s(sSL)}, {i*0x4000}', f's_and_b32 {s(sSL+i)}, {s(sSL+i)}, 0xc000']
    L += [f's_sub_u32 {s(sT)}, {s(sN)}, 1', f's_lshl_b32 {s(sT)}, {s(sT)}, 6', f's_sub_u32 {s(sT)}, {s(sCL)}, {s(sT)}',
          f's_add_u32 {s(sNKB)}, {s(sT)}, 15', f's_lshr_b32 {s(sNKB)}, {s(sNKB)}, 4',
          f's_sub_u32 {s(sT)}, {s(sT)}, 1', f's_and_b32 {s(sT)}, {s(sT)}, 15',
          f's_and_b32 {s(sT+1)}, {s(sE)}, 1', f's_sub_u32 {s(sT+1)}, 4, {s(sT+1)}', f's_sub_u32 {s(sT+2)}, 7, {s(sT+1)}',
          f's_mov_b32 {s(sLN)}, 5',
          f's_lshl_b32 {s(sT+3)}, {s(sW)}, 13', f's_add_u32 {s(sT+3)}, {s(sT+3)}, 0x20000', f's_lshl_b32 {s(sT+4)}, {s(sW)}, 14']
    L += [f'v_lshrrev_b32 {v(t+4)}, 2, {v(t+2)}', f'v_lshlrev_b32 {v(t+4)}, 4, {v(t+4)}',
          f'v_and_b32 {v(t+6)}, 3, {v(t+2)}', f'v_add_u32 {v(t+4)}, {v(t+4)}, {v(t+6)}', f'v_lshlrev_b32 {v(t+4)}, 8, {v(t+4)}',
          f'v_lshlrev_b32 {v(t+6)}, 12, {v(t)}', f'v_lshl_add_u32 {v(t+6)}, {v(t+2)}, 8, {v(t+6)}', f'v_add_u32 {v(t+6)}, 0x20000, {v(t+6)}']
    for ks in range(4):
        L += [f'v_xor_b32 {v(MK)}, {4*ks}, {v(t+5)}', f'v_lshl_add_u32 {v(KA+ks)}, {v(MK)}, 4, {v(t+4)}',
              f'v_lshl_add_u32 {v(QA+ks)}, {v(MK)}, 4, {v(t+6)}', f'v_add_u32 {v(KA0+ks)}, {s(sSL)}, {v(KA+ks)}']
    L += [f'v_bfe_u32 {v(t+5)}, {v(t+1)}, 2, 2',
          f'v_lshl_add_u32 {v(t+4)}, {v(t+3)}, 4, {v(t+5)}', f'v_lshlrev_b32 {v(t+4)}, 8, {v(t+4)}',
          f'v_and_b32 {v(MK)}, 3, {v(t+1)}', f'v_lshl_add_u32 {v(t+4)}, {v(MK)}, 3, {v(t+4)}', f'v_add_u32 {v(t+4)}, 0x10000, {v(t+4)}',
          f'v_lshl_add_u32 {v(t+5)}, {v(t+3)}, 2, {v(t+5)}', f'v_and_b32 {v(t+5)}, 7, {v(t+5)}']
    for db in range(8):
        L += [f'v_xor_b32 {v(VA+db)}, {db}, {v(t+5)}', f'v_lshl_add_u32 {v(VA+db)}, {v(VA+db)}, 5, {v(t+4)}',
              f'v_add_u32 {v(VA0+db)}, {s(sSL)}, {v(VA+db)}']
    L += [f'v_lshlrev_b32 {v(t+4)}, 14, {v(t)}', f'v_lshl_add_u32 {v(t+4)}, {v(t+2)}, 8, {v(t+4)}',
          f'v_and_b32 {v(t+5)}, 1, {v(t+3)}', f'v_lshl_add_u32 {v(t+4)}, {v(t+5)}, 5, {v(t+4)}',
          f'v_lshrrev_b32 {v(t+5)}, 1, {v(t+3)}', f'v_lshl_add_u32 {v(OV)}, {v(t+5)}, 4, {v(t+4)}',
          f'v_and_b32 {v(t+4)}, 1, {v(t+1)}', f'v_mov_b32 {v(t+5)}, 0xaaaaaaaa',
          f'v_mul_lo_u32 {v(t+4)}, {v(t+4)}, {v(t+5)}', f'v_or_b32 {v(IDX)}, 0x44444444, {v(t+4)}', f'v_mov_b32 {v(t+5)}, 0x3f803f80']
    L += [f'v_accvgpr_write_b32 {a(aONE+i)}, {v(t+5)}' for i in range(4)]
    L += [f'v_lshlrev_b32 {v(t+4)}, 2, {v(t+3)}', f'v_mov_b32 {v(t+5)}, {NEG:#x}']
    for r in range(4):
        L += [f'v_add_u32 {v(t+6)}, {r}, {v(t+4)}', f'v_cmp_lt_u32 vcc, {s(sT)}, {v(t+6)}', 's_nop 1',
              f'v_cndmask_b32 {v(MK+r)}, 0, {v(t+5)}, vcc']
    L += btprep(1) + btprep(2) + btprep(3)
    L += [f'v_mov_b32 {v(O0+i)}, 0' for i in range(64, 128)]
    L += [f'v_accvgpr_write_b32 {a(aL+i)}, 0' for i in range(16)]
    groups = {'q2': qload(2), 'q3': qload(3), 'v0': dma4(1, 0), 'k1': dma4(0, 1), 'v1': dma4(1, 1), 'k2': dma4(0, 2), 'v2': dma4(1, 2), 'k3': dma4(0, 3)}
    plan = {0: dict(A=['q2'], B=['v0'], C=['q3'], D=['k1', 'v1'], E=['k2'], F=['v2', 'k3']),
            1: dict(A=['q2'], B=['v0'], C=['q3'], D=['k1'], E2=['v1', 'k2'], G=['v2', 'k3']),
            2: dict(A=['q2', 'v0'], C=['q3', 'k1'], D=['v1'], E2=['k2'], G=['v2', 'k3']),
            3: dict(A0=['v0'], A=['q2'], C=['q3', 'k1'], D=['v1', 'k2'], G=['v2', 'k3']),
            4: dict(A=['q2'], B=['v0'], C=['q3', 'k1'], D=['v1'], E2=['k2'], G=['v2', 'k3']),
            5: dict(A=['q2'], B=['v0'], C=['q3', 'k1'], D2=['v1', 'k2'], G=['v2', 'k3']),
            6: dict(A=['q2'], B=['v0', 'k1'], C=['q3'], D2=['v1', 'k2'], G=['v2', 'k3']),
            7: dict(A=['q2'], B=['v0'], C=['q3', 'k1'], D2=['v1', 'k2'], E2=['v2', 'k3']),
            8: dict(A=['q2'], B=['v0', 'k1'], C=['q3'], P=['v1', 'k2'], S=['v2', 'k3']),
            9: dict(A=['q2', 'v0'], B=['k1'], C=['q3'], P=['v1', 'k2'], S=['v2', 'k3']),
            10: dict(A0=['v0'], A=['q2'], B=['k1'], C=['q3'], P=['v1', 'k2'], S=['v2', 'k3']),
            11: dict(A=['q2'], B=['v0', 'k1'], C=['q3'], D2=['v1', 'k2'], S=['v2', 'k3']),
            12: dict(A=['q2'], B=['v0', 'k1'], C3=['q3'], P=['v1', 'k2'], S=['v2', 'k3']),
            13: dict(A=['q2'], B=['v0'], B2=['k1'], C3=['q3'], P=['v1', 'k2'], S=['v2', 'k3']),
            14: dict(A=['v0'], B=['q2'], C=['k1'], C3=['q3'], P=['v1', 'k2'], S=['v2', 'k3']),
            15: dict(A=['q2'], B2=['v0'], C2=['k1'], C3=['q3'], P=['v1', 'k2'], S=['v2', 'k3']),
            16: dict(A2=['q2'], B2=['v0'], C2=['k1'], C3=['q3'], P=['v1', 'k2'], S=['v2', 'k3']),
            17: dict(A=['q2'], B=['v0'], C=['k1'], C2=['q3'], P=['v1', 'k2'], S=['v2', 'k3']),
            18: dict(A=['q2'], B=['v0'], B2=['k1'], C2=['q3'], P=['v1', 'k2'], S=['v2', 'k3']),
            19: dict(A=['v0'], B=['q2'], C=['k1'], C3=['q3'], P=['v1'], S=['k2', 'v2'], K=['k3']),
            20: dict(A=['v0'], B=['q2'], C=['k1'], C3=['q3'], S=['v1', 'k2'], K=['v2', 'k3']),
            21: dict(A=['v0'], B=['q2'], C=['k1'], C2=['q3'], S=['v1', 'k2'], K=['v2', 'k3']),
            22: dict(A=['v0'], A2=['q2'], B2=['k1'], C2=['q3'], S=['v1', 'k2'], K=['v2', 'k3']),
            23: dict(A0=['v0'], A=['q2'], B2=['k1'], C2=['q3'], S=['v1', 'k2'], K=['v2', 'k3']),
            24: dict(A=['v0'], B=['q2'], C=['q3'], C3=['k1'], S=['v1', 'k2'], K=['v2', 'k3'])}[OPT['po']]
    at = lambda p_: [x for g_ in plan.get(p_, []) for x in groups[g_]]
    X = OPT['tv'] == 4
    btv = lambda i: [f'v_lshlrev_b32 {v(BT+i)}, 16, {v(BT+i)}'] + ([f'v_or_b32 {v(BT+i)}, {(3-i)*1024}, {v(BT+i)}'] if i < 3 else [])
    L += at('A0') + (['L_walk:'] if OPT['walk'] else []) + ['WAITVM ld Q0'] + stamp(2)
    if X:
        L += ['WAITVM ld BT'] + btv(0) + [f's_sub_u32 {s(sT+5)}, {s(sN)}, 1', f'v_readlane_b32 {s(sT)}, {v(BT)}, {s(sT+5)}'] + qread(0)
        L += [f's_add_u32 m0, {s(sMV)}, {s(sSL+3)}', f's_sub_u32 {s(sT+5)}, {s(sT)}, 1024',
              f'buffer_load_dwordx4 {v(DV)}, s[12:15], {s(sT)} offen lds ; dmx V',
              f'buffer_load_dwordx4 {v(DK)}, s[8:11], {s(sT+5)} offen offset:1024 lds ; dmx K']
    else: L += qread(0)
    L += at('A') + scale_q(0) + at('A2') + ['WAITVM ld BT']
    for i in range(1 if X else 0, 4): L += btv(i)
    L += ['s_nop 0'] + [f'v_readlane_b32 {s(SETS[k]+i)}, {v(BT+i)}, {s(sT+1+k)}' for k in range(2) for i in range(4)]
    L += ['WAITVM dma K 0', 's_barrier']
    L += [i_kread(kb, ks, 0, '0', addr=KA0) for kb in range(4) for ks in range(4)] + at('B')
    def tile0(x):
        P = Prog(); G = P.group
        r = lambda q, sb: qkg(q, 1, sb=sb, kbase=aX, mask=True)
        xv = lambda q: [pv(q, db, 0, 2, 'ov', first=q < 2) for db in range(8)] + [sm(q, 2)]
        G('q0', qkg(0))
        if x: G('r0', r(0, 2)); G('r1', r(1, 3))
        G('q1', qkg(1))
        if x: G('x0', xv(0)); G('x1', xv(1)); G('r2', r(2, 3))
        G('q2', qkg(2))
        if x: G('x2', xv(2))
        G('p0', pvg(0, first=not x)); G('p1', pvg(1, first=not x)); G('q3', qkg(3))
        P.done(); p = P.pos
        w1, w2 = p['r0' if x else 'q1'], p['r2' if x else 'q2']
        P.softmax('s0', p['q0'], 0, 0, dlcap=w1 + 4); P.softmax('s1', p['q1'], 1, 1, dlcap=w2 + (-1 if x else 4))
        P.softmax('s2', p['q2'], 2, 2, dlcap=p['q3'] - 1, use=P.n); P.softmax('s3', p['q3'], 3, 3, skip=LEFT3, lastrel=P.n - 1)
        if x:
            P.softmax('t0', p['r0'], 2, 2, 1); P.softmax('t1', p['r1'], 3, 2, 1, use=p['x1'], zero=False)
            P.softmax('t2', p['r2'], 3, 2, 1, zero=False)
        P.vload('v', p['p0'], 0, '0', addr=VA0, rel0=w2)
        P.kload('k', P.n, 0, '1', addr=T0, rel0=p['q3'], dlmax=P.n - 1)
        g = P.gaps
        for pt, gi in (('P', p['p0'] + 1), ('K', p['q3'] + 1)):
            step = 2 if pt == 'K' and len(plan.get('K', [])) > 1 else 4
            for y in at(pt):
                if y.startswith('s_add'): g[gi - 1].sc.append(y)
                elif y.startswith('buffer'):
                    P.ops.append(Op(('d', gi), 'D', gi, gi, y)); gi += step
        assert not schedule(P.n, P.ops, g, overflow=True)
        sc3 = []; ext = at('S')
        for i, y in enumerate(scale_q(3)):
            sc3.append(y)
            if i % 10 == 4 and ext:
                if ext[0].startswith('s_add'): sc3 += ext[:2]; ext = ext[2:]
                sc3.append(ext.pop(0))
        assert not ext
        xr = []
        if x:
            XA = S0 + 36
            xr = [f's_add_u32 {s(sT)}, {s(sSL+3)}, 0x10000'] + [f'v_add_u32 {v(XA+ks)}, {s(sT)}, {v(KA+ks)}' for ks in range(4)] + \
                 [f'v_add_u32 {v(XA+4+db)}, {s(sSL+3)}, {v(VA+db)}' for db in range(8)] + ['WAITVM dmx K', 's_barrier'] + \
                 [f'ds_read_b128 {a(aX+4*ks,4)}, {v(XA+ks)} offset:1024 ; rx K {ks}' for ks in range(4)] + \
                 [f'ds_read_b64_tr_b16 {a(aX+16+2*db,2)}, {v(XA+4+min(db,7))} offset:0 ; rx V {min(db,7)}' for db in range(9)]
        g[w1 - 1].post += at('B2') + xr + ['WAITVM ld Q1'] + qread(1) + at('C') + scale_q(1) + at('C2') + ['s_nop 0']
        g[w2 - 1].post += at('C3') + ['WAITVM ld Q2'] + qread(2) + at('D') + scale_q(2) + ['WAITVM dma V 0|dma K 1', 's_barrier']
        g[p['q3'] - 1].post += (['s_barrier'] if x else []) + at('D2') + ['WAITVM ld Q3'] + stamp(3) + qread(3) + sc3 + \
                               [f'v_add_u32 {v(T0+ks)}, {s(sSL+1)}, {v(KA+ks)}' for ks in range(4)]
        g[P.n - 1].post += [HEADWAIT]
        full, pend = add_lgkm_waits(resolve_waitvm(L + ['L_split:'] + emit(P.mf, g)))
        k = full.index('L_split:')
        return full[:k], full[k+1:] + stamp(4) + [
            f's_cmp_eq_u32 {s(sE)}, 2', 's_cbranch_scc1 L_b3', f's_cmp_eq_u32 {s(sE)}, 1', 's_cbranch_scc1 L_b2',
            f's_cmp_eq_u32 {s(sE)}, 3', 's_cbranch_scc1 L_b0', f's_cmp_eq_u32 {s(sNP)}, 4', 's_cbranch_scc1 L_tail'], pend
    assert OPT['po'] >= 8
    head, tn, pend = tile0(False)
    if not X: return head + tn, [], pend
    head2, tx, pend2 = tile0(True)
    assert head == head2 and [z[0] for z in pend] == [z[0] for z in pend2]
    return head + [f's_cmp_lg_u32 {s(sNKB)}, 1', 's_cbranch_scc1 L_tile0n'] + tx, ['L_tile0n:'] + tn + ['s_branch L_b1'], pend

def slow():
    t = T0
    L = ['L_slow:', 's_waitcnt vmcnt(0) lgkmcnt(0)']
    M, LS, KV, VD0, VD1 = KA, BT, DK, DV, IDX
    L += [f'v_mbcnt_lo_u32_b32 {v(t+1)}, -1, 0', f'v_mbcnt_hi_u32_b32 {v(t+1)}, -1, {v(t+1)}',
          f'v_and_b32 {v(t+2)}, 15, {v(t+1)}', f'v_lshrrev_b32 {v(t+3)}, 4, {v(t+1)}']
    L += [f's_lshl_b32 {s(sT)}, {s(sW)}, 14', f'v_lshlrev_b32 {v(t+4)}, 8, {v(t+2)}', f'v_lshl_add_u32 {v(t+4)}, {v(t+3)}, 4, {v(t+4)}',
          f'v_add_u32 {v(t+4)}, {s(sT)}, {v(t+4)}']
    L += [f'buffer_load_dwordx4 {v(S0+16*q+4*ks,4)}, {v(t+4)}, s[4:7], {"0" if q == 0 else s(sQ1)} offen offset:{64*ks}' for q in range(2) for ks in range(4)]
    L += [f'v_lshlrev_b32 {v(t+4)}, 12, {v(t+2)}', f'v_lshl_add_u32 {v(KV)}, {v(t+3)}, 4, {v(t+4)}', f'v_add_u32 {v(KV)}, 3072, {v(KV)}',
          f'v_lshlrev_b32 {v(t+4)}, 1, {v(t+3)}', f'v_xor_b32 {v(t+4)}, {v(t+2)}, {v(t+4)}',
          f'v_lshlrev_b32 {v(t+4)}, 4, {v(t+4)}', f'v_lshl_add_u32 {v(VD0)}, {v(t+3)}, 12, {v(t+4)}', f'v_add_u32 {v(VD0)}, 3072, {v(VD0)}',
          f'v_xor_b32 {v(t+4)}, 0x80, {v(t+4)}', f'v_lshl_add_u32 {v(VD1)}, {v(t+3)}, 12, {v(t+4)}', f'v_add_u32 {v(VD1)}, {3072 + 16384}, {v(VD1)}',
          f's_lshl_b32 {s(sMV)}, {s(sW)}, 13', f's_add_u32 {s(sMV)}, {s(sMV)}, 0x20000',
          f'v_bfe_u32 {v(t+5)}, {v(t+1)}, 2, 2', f'v_lshl_add_u32 {v(t+5)}, {v(t+3)}, 2, {v(t+5)}',
          f'v_lshlrev_b32 {v(t+4)}, 8, {v(t+5)}', f'v_and_b32 {v(t+6)}, 3, {v(t+1)}',
          f'v_lshl_add_u32 {v(t+4)}, {v(t+6)}, 3, {v(t+4)}', f'v_add_u32 {v(t+4)}, {s(sMV)}, {v(t+4)}', f'v_and_b32 {v(t+5)}, 7, {v(t+5)}']
    for db in range(8):
        L += [f'v_xor_b32 {v(VA+db)}, {db}, {v(t+5)}', f'v_lshl_add_u32 {v(VA+db)}, {v(VA+db)}, 5, {v(t+4)}']
    L += [f'v_lshlrev_b32 {v(MK)}, 2, {v(t+3)}', f'v_mov_b32 {v(MK+1)}, {NEG:#x}']
    L += [f'v_mov_b32 {v(O0+i)}, 0' for i in range(128)]
    L += [f'v_mov_b32 {v(M+q)}, 0xff7fffff' for q in range(4)] + [f'v_mov_b32 {v(LS+q)}, 0' for q in range(4)]
    L += ['s_waitcnt vmcnt(0)'] + scale_q(0) + scale_q(1)
    L += [f's_mov_b32 {s(sIT)}, 0', 'L_slow_loop:',
          f's_lshr_b32 {s(sT)}, {s(sIT)}, 2',
          f's_load_dwordx2 s[40:41], s[30:31], {s(sT)}', 's_waitcnt lgkmcnt(0)',
          's_lshl_b32 s40, s40, 16', 's_lshl_b32 s41, s41, 16']
    for kb in range(2):
        for ks in range(4):
            L.append(f'buffer_load_dwordx4 {a(aK+16*kb+4*ks,4)}, {v(KV)}, s[8:11], s{40+kb} offen offset:{64*ks}')
    for b in range(2):
        for p in range(4):
            L += [f's_add_u32 m0, {s(sMV)}, {b*4096 + p*1024}', f's_add_u32 s42, s{40+b}, {(p//2)*32768}',
                  f'buffer_load_dwordx4 {v(VD1 if p & 1 else VD0)}, s[12:15], s42 offen lds']
    L += ['s_waitcnt vmcnt(0)']
    for db in range(8):
        for tt in range(2):
            L.append(f'ds_read_b64_tr_b16 {a(aV+8*db+2*tt,2)}, {v(VA+db)} offset:{tt*4096}')
    L += [f's_sub_u32 {s(sT)}, {s(sCLT)}, {s(sIT)}', 's_waitcnt lgkmcnt(0)']
    for q in range(4):
        S = S0 + 16*q
        L += qkg(q, 2) + ['s_nop 7']
        for e in range(8):
            L += [f'v_add_u32 {v(t)}, {16*(e//4) + e%4}, {v(MK)}', f'v_cmp_gt_u32 vcc, {s(sT)}, {v(t)}', 's_nop 1',
                  f'v_cndmask_b32 {v(S+e)}, {v(MK+1)}, {v(S+e)}, vcc']
        L += [f'v_max3_f32 {v(t)}, {v(S)}, {v(S+1)}, {v(S+2)}', f'v_max3_f32 {v(t)}, {v(t)}, {v(S+3)}, {v(S+4)}',
              f'v_max3_f32 {v(t)}, {v(t)}, {v(S+5)}, {v(S+6)}', f'v_max3_f32 {v(t)}, {v(t)}, {v(S+7)}, {v(M+q)}',
              f'v_mov_b32 {v(t+1)}, {v(t)}', 's_nop 1', f'v_permlane16_swap_b32 {v(t)}, {v(t+1)}', f'v_max_f32 {v(t)}, {v(t)}, {v(t+1)}',
              f'v_mov_b32 {v(t+1)}, {v(t)}', 's_nop 1', f'v_permlane32_swap_b32 {v(t)}, {v(t+1)}', f'v_max_f32 {v(t)}, {v(t)}, {v(t+1)}',
              f'v_sub_f32 {v(t+1)}, {v(M+q)}, {v(t)}', f'v_exp_f32 {v(t+1)}, {v(t+1)}', f'v_mov_b32 {v(M+q)}, {v(t)}']
        L += [f'v_sub_f32 {v(S+e)}, {v(S+e)}, {v(t)}' for e in range(8)]
        L += [f'v_exp_f32 {v(S+e)}, {v(S+e)}' for e in range(8)]
        L += [f'v_mul_f32 {v(LS+q)}, {v(LS+q)}, {v(t+1)}']
        L += [f'v_mul_f32 {v(O0+32*q+i)}, {v(O0+32*q+i)}, {v(t+1)}' for i in range(32)]
        L += [i_cvt(q, q, i) for i in range(4)]
        for i in range(4):
            L += [f'v_lshlrev_b32 {v(t)}, 16, {v(P0+8*q+i)}', f'v_and_b32 {v(t+1)}, 0xffff0000, {v(P0+8*q+i)}',
                  f'v_add_f32 {v(LS+q)}, {v(LS+q)}, {v(t)}', f'v_add_f32 {v(LS+q)}, {v(LS+q)}, {v(t+1)}']
        L += [pv(q, db, 0) for db in range(8)]
    L += [f's_add_u32 {s(sIT)}, {s(sIT)}, 32', f's_cmp_lt_u32 {s(sIT)}, {s(sCLT)}', 's_cbranch_scc1 L_slow_loop', 's_nop 7']
    for q in range(4):
        o = O0 + 32*q
        L += [f'v_mov_b32 {v(t)}, {v(LS+q)}', f'v_mov_b32 {v(t+1)}, {v(LS+q)}', 's_nop 1',
              f'v_permlane16_swap_b32 {v(t)}, {v(t+1)}', f'v_add_f32 {v(t)}, {v(t)}, {v(t+1)}',
              f'v_mov_b32 {v(t+1)}, {v(t)}', 's_nop 1', f'v_permlane32_swap_b32 {v(t)}, {v(t+1)}', f'v_add_f32 {v(t)}, {v(t)}, {v(t+1)}',
              f'v_rcp_f32 {v(t)}, {v(t)}', 's_nop 0']
        L += [f'v_mul_f32 {v(o+i)}, {v(o+i)}, {v(t)}' for i in range(32)]
        for u in range(4):
            L += [f'v_cvt_pk_bf16_f32 {v(o+8*u+i)}, {v(o+8*u+2*i)}, {v(o+8*u+2*i+1)}' for i in range(4)]
        for u in range(4):
            L += [f'v_permlane16_swap_b32 {v(o+8*u+i)}, {v(o+8*u+2+i)}' for i in range(2)]
        for u in range(4):
            L.append(f'buffer_store_dwordx4 {v(o+8*u,4)}, {v(OV)}, s[16:19], {"0" if q == 0 else s(sQ1+q-1)} offen offset:{64*u}')
    return L + ['s_endpgm']

NFIN = 0
def finish():
    global NFIN
    NFIN += 1
    L = [f'v_cmp_lt_u32 vcc, 0x28000000, {v(T0+4)}' if not OPT.get('abl') else 's_mov_b64 vcc, 0',
         f's_cmp_lg_u32 {s(sFORCE)}, 0', 's_cbranch_scc1 L_slow', 's_nop 3', 's_cbranch_vccnz L_slow']
    if OPT.get('twice'):
        L += ['s_cmp_eq_u32 s77, 0', f's_cbranch_scc1 L_fin{NFIN}', 's_sub_u32 s77, s77, 1', 's_waitcnt vmcnt(0) lgkmcnt(0)', 's_barrier',
              'v_mbcnt_lo_u32_b32 v0, -1, 0', 'v_mbcnt_hi_u32_b32 v0, -1, v0', f's_lshl_b32 {s(sT)}, {s(sW)}, 6', f'v_add_u32 v0, {s(sT)}, v0', 's_branch L_again', f'L_fin{NFIN}:']
    if OPT['stamp']:
        L += [f's_memtime s[40:41]', 's_waitcnt vmcnt(0)', 's_memtime s[42:43]', f's_memrealtime s[44:45]', 's_waitcnt lgkmcnt(0)']
        st = lambda i: sST + 2*i if i < 6 else 40 + 2*(i - 6)
        if OPT.get('fixed'):
            L += [f's_mov_b32 {s(sT+4)}, {OPT["fixed"]}']
            if OPT.get('xcc'):
                L += [f's_getreg_b32 {s(sT+5)}, hwreg(HW_REG_XCC_ID, 0, 4)', f's_sub_u32 {s(sT+5)}, {s(sT+5)}, s2', f's_and_b32 {s(sT+5)}, {s(sT+5)}, 7']
                if OPT['xcc'] == 2: L += [f's_sub_u32 {s(sT+5)}, 7, {s(sT+5)}']
                L += [f's_mul_i32 {s(sT+5)}, {s(sT+5)}, 500', f's_add_u32 {s(sT+4)}, {s(sT+4)}, {s(sT+5)}']
            if OPT.get('phase'):
                L += [f's_sub_u32 {s(sT+5)}, {s(st(OPT["phase"]))}, {s(st(OPT.get("phase0", 0)))}']
                if OPT.get('neg'): L += [f's_sub_u32 {s(sT+5)}, {OPT["neg"]}, {s(sT+5)}']
                L += [f's_lshr_b32 {s(sT+5)}, {s(sT+5)}, {OPT.get("sh", 3)}', f's_add_u32 {s(sT+4)}, {s(sT+4)}, {s(sT+5)}']
            return L + [f'L_spin{NFIN}:', f's_memrealtime {s(sT,2)}', 's_waitcnt lgkmcnt(0)', f's_sub_u32 {s(sT)}, {s(sT)}, s100',
                        f's_cmp_lt_u32 {s(sT)}, {s(sT+4)}', f's_cbranch_scc1 L_spin{NFIN}', 's_endpgm']
        L += ['s_load_dwordx2 s[24:25], s[0:1], 56', 's_waitcnt lgkmcnt(0)', 's_mov_b32 s26, 0x100000', 's_mov_b32 s27, 0x20000']
        L += [f'v_mov_b32 v{i}, {s(st(i))}' for i in range(8)]
        L += ['v_mov_b32 v8, s42', 'v_mov_b32 v9, s44', 'v_mov_b32 v10, s100', 'v_mov_b32 v11, 0',
              f's_lshl_b32 {s(sT)}, s2, 2', f's_add_u32 {s(sT)}, {s(sT)}, {s(sW)}', f's_lshl_b32 {s(sT)}, {s(sT)}, 6',
              'v_mov_b32 v12, 0', 's_mov_b64 exec, 1',
              f'buffer_store_dwordx4 v[0:3], v12, s[24:27], {s(sT)} offen',
              f'buffer_store_dwordx4 v[4:7], v12, s[24:27], {s(sT)} offen offset:16',
              f'buffer_store_dwordx4 v[8:11], v12, s[24:27], {s(sT)} offen offset:32']
    return L + ['s_endpgm']

def sizes(L):
    import subprocess, re, tempfile, os
    d = tempfile.mkdtemp()
    open(d + '/a.s', 'w').write('.amdgcn_target "amdgcn-amd-amdhsa--gfx950"\n.text\n' + '\n'.join(l for l in L if not l.startswith('.')) + '\n')
    subprocess.check_call(['clang', '-x', 'assembler', '-target', 'amdgcn-amd-amdhsa', '-mcpu=gfx950', '-c', d + '/a.s', '-o', d + '/a.o'])
    out = subprocess.check_output(['llvm-objdump', '-d', '--mcpu=gfx950', d + '/a.o']).decode()
    sz = [4 * len(m.group(1).split()) for m in re.finditer(r'// [0-9A-F]+: ([0-9A-F ]+)', out)]
    it = iter(sz)
    return [next(it) if Ins(l).states else 0 for l in L]

def add_walk(L):
    sz = sizes(L); ins = parse(L)
    regions = [(L.index('L_walk:') + 1, L.index('L_b1:') - 1), (L.index('L_tail:'), L.index('L_pfend:') - 8)]
    pads = []
    for lo, hi in regions:
        acc = OPT['wsp'] - 64 if lo == regions[0][0] else OPT['wsp']; best = None
        for i in range(lo, hi):
            acc += sz[i]
            if acc >= OPT['wsp'] - 64 and ins[i].states and ins[i].cls != 'br' and not L[i].startswith(('s_cmp', 's_waitcnt')):
                cost = 0 if ins[i].cls == 'mfma' and ins[i+1].cls == 'mfma' else 2 if ins[i+1].cls == 'mfma' else 3
                if best is None or cost <= best[0]: best = (cost, i, acc)
            if acc >= OPT['wsp'] and best:
                pads.append(best[1]); acc -= best[2]; best = None
    n = len(pads); cut = [n * w // 4 for w in range(5)]
    out = []
    for i, l in enumerate(L):
        if l == 'L_walk:':
            out += ['s_mov_b64 vcc, -1']
            for w in range(3): out += [f's_cmp_eq_u32 {s(sW)}, {w}', f's_cbranch_scc1 L_pad{cut[w]}']
            out += [f's_branch L_pad{cut[3]}', 'L_ret:', 's_mov_b64 vcc, 0']
            continue
        out.append(l)
        if i in pads:
            k = pads.index(i)
            out += [f'L_pad{k}:', f's_cbranch_vccnz {"L_ret" if k + 1 in cut else f"L_pad{k+1}"}']
    print('pads', n)
    return out

def main():
    pro, pro2, pend0 = prologue()
    loop, pend = loop_code()
    assert [x[0] for x in pend0] == [x[0] for x in pend], (pend0, pend)
    L = [f'{NAME}:'] + pro + loop
    L += ['L_tail:'] + stamp(5) + [f's_cmp_gt_u32 {s(sNKB)}, 1', 's_cbranch_scc1 L_tail234']
    L += tail(1, pend) + finish() + ['L_pfend:']
    L += ['L_tail234:', f's_cmp_eq_u32 {s(sNKB)}, 3', 's_cbranch_scc1 L_tail3', f's_cmp_eq_u32 {s(sNKB)}, 4', 's_cbranch_scc1 L_tail4']
    L += tail(2, pend) + finish() + ['L_tail3:'] + tail(3, pend) + finish() + ['L_tail4:'] + tail(4, pend) + finish()
    L += pro2 + slow() + ['L_end:', 's_endpgm']
    L, nn = fix_hazards(L, verbose=OPT.get('verbose', 0))
    if OPT['walk']: L = add_walk(L)
    print('nop states inserted:', nn, ' leftovers:', sorted(LEFT3))
    hdr = open('standalone__paged_block_table_kv_pagedattention__prompt.s.ref').read().split('; Override')[0]
    txt = hdr + '; Generated by gen/gen2.py (hand-written generator).\n'
    txt += '; @launch grid=(256,1,1) block=(256,1,1) lds=163840\n'
    txt += f'.amdgcn_target "amdgcn-amd-amdhsa--gfx950"\n.text\n.globl {NAME}\n.p2align 8\n.type {NAME},@function\n'
    for l in L: txt += (l if l.endswith(':') or l.startswith(('.', ';')) else '    ' + l) + '\n'
    txt += f'''.section .rodata,"a"
.p2align 6
.amdhsa_kernel {NAME}
  .amdhsa_next_free_vgpr 504
  .amdhsa_next_free_sgpr 102
  .amdhsa_accum_offset 256
  .amdhsa_group_segment_fixed_size 0
  .amdhsa_kernarg_size 64
  .amdhsa_user_sgpr_count 2
  .amdhsa_user_sgpr_kernarg_segment_ptr 1
  .amdhsa_system_sgpr_workgroup_id_x 1
.end_amdhsa_kernel
'''
    open(sys.argv[1], 'w').write(txt)
    if OPT.get('show'):
        for g in range(NG): print(g, PAT[g])
main()
```

```python
import sys
from asmcheck import parse, fix_hazards, Ins

NAME = 'standalone__paged_block_table_kv_pagedattention__prompt_kernel'
FL = {0: '', 1: ' nt', 2: ' sc1', 3: ' sc0 sc1', 4: ' sc1 nt', 5: ' sc0 sc1 nt', 6: ' sc0', 7: ' sc0 nt'}
OPT = dict(po=26, cpf=1, qf=0, kf=2, of=2, delta=9, stamp=0, lat=8, forceslow=0, tord=2, epri=12, ep=0, ssp=4, tv=4, edl=4, ttu=2, walk=0, wsp=224, pkd=6, touch=0, snake=1)
for a_ in sys.argv[2:]:
    k_, v_ = a_.split('='); OPT[k_] = int(v_, 0)

S0, P0, KA, VA, BT, DK, DV, IDX, OV, MK, T0, O0 = 0, 64, 96, 100, 108, 112, 113, 114, 115, 116, 120, 128
QD, QA = P0 + 24, P0 + 28
KA0, VA0 = O0, S0 + 52
EW, ER, EG = T0 + 5, T0 + 6, T0 + 7
aQ, aK, aV, aL, aONE, aX = 0, 64, 128, 192, 208, 212
sW, sCL, sN, sIT, sLN = 3, 36, 37, 38, 39
SETS = (56, 60)
sMK, sMV, sC, sC2, sNKB, sE, sFORCE, sCLT = 64, 65, 66, 67, 68, 69, 70, 71
sNP = 75
sQ1 = 72
sSL = 96
sT = 78
sST = 84
KBYTES = 132 * 65536
LAT = OPT['lat']
NEG = 0xf149f2ca
INF = 10 ** 6
MINCL = 193

def v(b, n=1): return f'v{b}' if n == 1 else f'v[{b}:{b+n-1}]'
def a(b, n=1): return f'a{b}' if n == 1 else f'a[{b}:{b+n-1}]'
def s(b, n=1): return f's{b}' if n == 1 else f's[{b}:{b+n-1}]'
def VR(b, n=1): return {('v', i) for i in range(b, b + n)}
def AR(b, n=1): return {('a', i) for i in range(b, b + n)}

MF = 'v_mfma_f32_16x16x32_bf16'
def kord(f):
    return f // 4, (3 - f % 4 if OPT['snake'] and (f // 4) % 2 else f % 4)
def qk(q, f, sb=None, kbase=aK, mask=False):
    kb, ks = kord(f)
    D = v(S0 + 16*(q if sb is None else sb) + 4*kb, 4)
    C = D if f % 4 else (v(MK, 4) if mask else '0')
    return f'{MF} {D}, {a(kbase+16*kb+4*ks,4)}, {a(aQ+16*q+4*ks,4)}, {C}'
def vfrag(db, ks, vbase):
    if vbase == 'ov': return aX + 16 + 2*db
    return aV + (2*db+ks)*4 if vbase is None else vbase + 4*db
def pv(q, db, ks, pb=None, vbase=None, first=False):
    D = v(O0 + 32*q + 4*db, 4)
    return f'{MF} {D}, {a(vfrag(db, ks, vbase),4)}, {v(P0+8*(q if pb is None else pb)+4*ks,4)}, {"0" if first and ks == 0 else D}'
def sm(q, pb=None):
    return f'v_smfmac_f32_16x16x64_bf16 {a(aL+4*q,4)}, {a(aONE,4)}, {v(P0+8*(q if pb is None else pb),8)}, {v(IDX)}'
def qkg(q, nkb=4, sb=None, kbase=aK, mask=False):
    return [qk(q, f, sb, kbase, mask and f // 4 == nkb-1) for f in range(4 * nkb)]
def pvg(q, pb=None, first=False): return [pv(q, db, ks, pb, None, first) for db in range(8) for ks in range(2)] + [sm(q, pb)]

def i_exp(sb, n): return f'v_exp_f32 {v(S0+16*sb+n)}, {v(S0+16*sb+n)}'
def i_cvt(sb, pb, i): return f'v_cvt_pk_bf16_f32 {v(P0+8*pb+i)}, {v(S0+16*sb+2*i)}, {v(S0+16*sb+2*i+1)}'
def i_kread(kb, ks, slot, tag, kbase=aK, addr=KA):
    return f'ds_read_b128 {a(kbase+16*kb+4*ks,4)}, {v(addr+ks)} offset:{slot*16384+kb*1024}'
def i_vread(db, ks, t, slot, tag, vbase=None, addr=VA):
    return f'ds_read_b64_tr_b16 {a(vfrag(db, ks, vbase)+2*t,2)}, {v(addr+db)} offset:{slot*16384+(2*ks+t)*1024}'
def i_dma(isv, i, soff, tag):
    return f'buffer_load_dwordx4 {v(DV if isv else DK)}, {s(12 if isv else 8,4)}, {s(soff+i)} offen offset:{i*1024}{FL[OPT["kf"]]} lds'
def i_m0(isv, slot): return f's_add_u32 m0, {s(sMV if isv else sMK)}, {slot*16384}'
def stamp(i): return [f's_memtime {s(sST+2*i,2)}'] if OPT['stamp'] and not (OPT.get('wb') and 1 <= i <= 4) else []

class Op:
    def __init__(self, key, cls, rel, dl, text, deps=(), fifo=None, pri=None):
        self.key, self.cls, self.rel, self.dl, self.text, self.deps, self.fifo = key, cls, rel, dl, text, list(deps), fifo
        self.pri = dl if pri is None else pri
        self.gap = None
class Gap:
    def __init__(self): self.sc, self.mem, self.valu, self.post = [], [], [], []; self.block = None

def schedule(ngaps, ops, gaps, overflow=False):
    byk = {o.key: o for o in ops}
    todo = list(ops)
    def ready(o, g):
        if o.rel > g: return False
        for d in o.deps:
            p = byk.get(d)
            if p is not None and (p.gap is None or p.gap >= g): return False
        if o.fifo is not None:
            p = byk[o.fifo]
            if p.gap is None or (o.cls in 'DRT' and p.cls not in 'RT' and p.gap >= g): return False
            if o.cls == 'D' and p.cls == 'R' and p.gap + LAT > g: return False
            if o.cls == 'D' and p.cls == 'D' and p.gap + OPT['ssp'] > g: return False
        return True
    def put(o, g):
        o.gap = g; todo.remove(o)
        (gaps[g].mem if o.cls in 'DRT' else gaps[g].valu).append(o)
    for g in range(ngaps):
        if gaps[g].block != 'all':
            cand = sorted((o for o in todo if ready(o, g)), key=lambda o: o.pri)
            if gaps[g].block == 'half': cand = [o for o in cand if o.cls == 'H'][:1]
            if cand:
                top = cand[0]
                halves = [o for o in cand if o.cls in 'RTH']
                full = [o for o in cand if o.cls in 'ED']
                if top.cls in 'RTH' and len(halves) == 1 and full and top.pri - g > 6 and top.fifo is None: top = full[0]
                put(top, g)
                if top.cls in 'RTH' and gaps[g].block != 'half':
                    c2 = sorted((o for o in todo if o.cls in 'RTH' and ready(o, g) and not (o.cls == 'R' and top.cls == 'R')), key=lambda o: o.pri)
                    if c2:
                        pick = c2[0]
                        busy = g > 0 and len(gaps[g-1].mem) > 1
                        if top.cls in 'RT' and pick.cls in 'RT' and (pick.pri - g > 8 or (busy and pick.pri - g > OPT['ttu'])):
                            h = [o for o in c2 if o.cls == 'H']
                            if h: pick = h[0]
                            elif busy and pick.pri - g > OPT['ttu']: pick = None
                        if pick: put(pick, g)
        late = [o for o in todo if o.dl <= g]
        if late:
            if not overflow: raise RuntimeError(f'deadline miss at gap {g}: {[o.key for o in late]}')
            def force(o):
                if o.gap is not None: return
                for d in o.deps + ([o.fifo] if o.fifo else []):
                    if d in byk: force(byk[d])
                assert o.rel <= g, (o.key, o.rel, g)
                o.gap = g; todo.remove(o)
                if o.cls in 'RT' and o.fifo is None and gaps[g].block != 'all': gaps[g].mem.append(o)
                else: gaps[g].post.append(o.text)
            for o in sorted(late, key=lambda o: (o.fifo is not None, {'R': 0, 'T': 0, 'D': 0, 'E': 1, 'H': 2}[o.cls], o.dl)): force(o)
    return todo

def emit(mf, gaps):
    out = []
    for m, g in zip(mf, gaps):
        out.append(m)
        sc = list(g.sc)
        if any(o.text.startswith('buffer_load') for o in g.mem) and not sc: sc = ['s_nop 0']
        out += sc + [o.text for o in g.mem] + [o.text for o in g.valu] + g.post
    return out

def add_lgkm_waits(lines, pre_ds=()):
    q = [(set(r), -age) for r, age in pre_ds]
    out = []; gap = -1; lastm = None; nvis = None
    for x in parse(lines):
        if x.cls == 'mfma':
            needed = [i for i, (r, g) in enumerate(q) if r & x.r]
            if needed:
                k = max(needed)
                if lastm is not None and k < nvis:
                    while k + 1 < nvis and q[k + 1][1] <= gap - LAT: k += 1
                    n = min(15, nvis - 1 - k)
                    if out[lastm:lastm+1] == ['s_nop 0']: out[lastm] = f's_waitcnt lgkmcnt({n})'
                    else: out.insert(lastm, f's_waitcnt lgkmcnt({n})')
                    k = nvis - 1 - n
                else:
                    n = min(15, len(q) - 1 - k)
                    out.append(f's_waitcnt lgkmcnt({n})')
                    k = len(q) - 1 - n
                q = q[k + 1:]
            gap += 1
            out.append(x.text); lastm = len(out); nvis = len(q)
        else:
            if x.cls == 'vmem':
                needed = [i for i, (r, g) in enumerate(q) if r & x.r]
                if needed:
                    n = min(15, len(q) - 1 - max(needed)); drop = len(q) - n
                    out.append(f's_waitcnt lgkmcnt({n})'); q = q[drop:]
                    if nvis is not None: nvis = max(0, nvis - drop)
            if x.cls == 'ds': q.append((set(x.w), gap))
            if x.cls == 'wait' and x.lgkm is not None:
                drop = max(0, len(q) - x.lgkm); q = q[drop:]
                if nvis is not None: nvis = max(0, nvis - drop)
            out.append(x.text)
    return out, [(r, gap - g) for r, g in q]

class Prog:
    def __init__(self): self.mf = []; self.ops = []; self.pos = {}
    def group(self, name, mf): self.pos[name] = len(self.mf); self.mf += mf
    def done(self):
        self.ins = [Ins(m) for m in self.mf]; self.n = len(self.mf); self.gaps = [Gap() for _ in self.mf]
    def first_read(self, R, lo): return next((i for i in range(lo, self.n) if R & self.ins[i].srcAB), INF)
    def last_read(self, R, hi): return next((i for i in range(min(hi, self.n) - 1, -1, -1) if R & self.ins[i].srcAB), -1)
    def last_write(self, R, hi): return next((i for i in range(min(hi, self.n) - 1, -1, -1) if R & self.ins[i].w), -1)
    def next_write(self, R, lo): return next((i for i in range(lo, self.n) if R & self.ins[i].w), INF)
    def kload(self, key, use, slot, tag, nkb=4, kbase=aK, addr=KA, rel0=0, dlmax=None):
        for f in range(4 * nkb):
            kb, ks = kord(f)
            R = AR(kbase + 16*kb + 4*ks, 4)
            u = self.first_read(R, use) if use < self.n else self.n + f
            rel = min(self.n - 1, max(rel0, self.last_read(R, u) + 1))
            dl = u - LAT if dlmax is None else min(u - LAT, dlmax - (4*nkb - 1 - f))
            self.ops.append(Op((key, f), 'R', rel, max(rel, dl), i_kread(kb, ks, slot, tag, kbase, addr), deps=[(key, f-1)] if f else []))
    def vload(self, key, use, slot, tag, nks=2, vbase=None, addr=VA, rel0=0):
        for db in range(8):
            for ks in range(nks):
                R = AR(vfrag(db, ks, vbase), 4)
                u = self.first_read(R, use)
                rel = max(rel0, self.last_read(R, u) + 1)
                for t in range(2):
                    if vbase == 'ov' and t == 1 and db < 7: continue
                    self.ops.append(Op((key, db, ks, t), 'T', rel, max(rel, u - LAT - (1 - t)), i_vread(db, ks, t, slot, tag, vbase, addr)))
    def softmax(self, key, at, sb, pb, nkb=4, only=None, skip=(), dlcap=None, use=0, lastrel=INF, zero=True):
        end = at + 4*nkb if at >= 0 else 0
        u = self.first_read(VR(P0 + 8*pb, 8), max(end, use))
        prel = min(self.last_read(VR(P0 + 8*pb, 8), u) + 1, u - 1)
        cap = min(u - 3, self.next_write(VR(S0 + 16*sb, 16), end) - 1, self.n - 1 if dlcap is None else dlcap)
        n = 4 * nkb; edl = {}
        for e in range(n):
            if (only is not None and ('e', e) not in only) or ('e', e) in skip: continue
            rel = min(lastrel, at + 4*(e//4) + 3 + 5) if at >= 0 else 0
            edl[e] = min(max(rel, cap - 1 - 2*(n - 1 - e), min(cap - 1, rel + e % 4)), max(rel, cap))
            self.ops.append(Op((key, 'e', e), 'E', rel, edl[e], i_exp(sb, e)))
        for i in range(2 * nkb):
            if (only is not None and ('c', i) not in only) or ('c', i) in skip: continue
            rel = max(prel, min(lastrel, at + 4*(i//2) + 3 + 6) if at >= 0 else 0)
            self.ops.append(Op((key, 'c', i), 'H', rel, max(rel, cap - (2*nkb - 1 - i), min(cap, edl.get(2*i+1, 0) + 1)), i_cvt(sb, pb, i),
                               deps=[(key, 'e', 2*i), (key, 'e', 2*i+1)]))
            assert rel <= u - 1, (key, i, rel, u)
        if only is None and zero:
            for i in range(2 * nkb, 8):
                self.ops.append(Op((key, 'z', i), 'H', prel, max(prel, u - 3), f'v_mov_b32 {v(P0+8*pb+i)}, 0'))

NG = 132
LOOP_MF = qkg(0) + pvg(2) + qkg(1) + pvg(3) + qkg(2) + pvg(0) + qkg(3) + pvg(1)
assert len(LOOP_MF) == NG
BARG = OPT.get('barg', 47)
DMAG = [10, 14, 18, 22, 26, 30, 34, 38]
RLG = [41, 43, 92, 96] if BARG not in (41, 43) else [45, 47, 92, 96]

def steady():
    NT = 6
    ops = []
    gaps = [Gap() for _ in range(NG * (NT + 1))]
    for j in range(NT):
        b = NG * j
        for q in range(4):
            pvs = b + 82 + 33*q; qs = b + 33*q
            for e in range(16):
                g = qs + OPT['delta'] + 2*e
                ops.append(Op(('e', j, q, e), 'E', g, g, None))
            for i in range(8):
                ops.append(Op(('c', j, q, i), 'H', pvs - NG + 17, pvs - 3 - (7 - i), None, deps=[('e', j, q, 2*i), ('e', j, q, 2*i+1)]))
        for f in range(16):
            for t in range(2):
                ops.append(Op(('v', j, f//2, f%2, t), 'T', max(b + 50 + f, b + BARG + 1), b + 82 + f - LAT - (1 - t), None))
            ops.append(Op(('k', j, f//4, f%4), 'R', b + 100 + f, min(b + NG - 2 - (15 - f), b + NG + f - LAT), None,
                          deps=[('k', j, (f-1)//4, (f-1)%4)] if f else []))
        for i in range(4): ops.append(Op(('rl', j, i), 'E', b + RLG[i], b + RLG[i], None))
        for i in range(8): ops.append(Op(('d', j, i), 'D', b + DMAG[i], b + DMAG[i], None))
        gaps[b + BARG].block = 'all'
        gaps[b + NG - 1].block = 'half'
    schedule(NG * (NT + 1), ops, gaps)
    def pattern(j):
        return [[(o.key[0], o.key[1] - j) + o.key[2:] for o in gaps[NG*j + g].mem + gaps[NG*j + g].valu] for g in range(NG)]
    assert pattern(3) == pattern(4), 'no steady state'
    return pattern(3)
PAT = steady()
LEFT = {k for g in PAT for k in g if k[1] == -1}
assert all(k[0] in 'ec' and k[2] == 3 for k in LEFT), LEFT
LEFT3 = {(k[0], k[3]) for k in LEFT}
HEADWAIT = 's_waitcnt lgkmcnt(4)'

class Txt:
    def __init__(self, t): self.text = t

def body(sl):
    def text(k):
        if k[0] == 'e': return i_exp(k[2], k[3])
        if k[0] == 'c': return i_cvt(k[2], k[2], k[3])
        if k[0] == 'v': return i_vread(k[2], k[3], k[4], sl, '+0')
        if k[0] == 'k': return i_kread(*kord(4*k[2] + k[3]), (sl + 1) % 4, '+1')
        if k[0] == 'rl': return f'v_readlane_b32 {s(SETS[sl%2] + k[2])}, {v(BT+k[2])}, {s(sLN)}'
        if k[0] == 'd': return i_dma(1, k[2], SETS[sl % 2], '+2') if k[2] < 4 else i_dma(0, k[2] - 4, SETS[(sl + 1) % 2], '+3')
    gaps = [Gap() for _ in range(NG)]
    for g in range(NG):
        for k in PAT[g]: (gaps[g].mem if k[0] in 'vkd' else gaps[g].valu).append(Txt(text(k)))
    gaps[DMAG[0] - 2].sc.append(i_m0(1, (sl + 2) % 4))
    gaps[DMAG[4] - 2].sc.append(i_m0(0, (sl + 3) % 4))
    gaps[RLG[-1] + 2].sc.append(f's_add_u32 {s(sLN)}, {s(sLN)}, 1')
    gaps[BARG - OPT.get('vmo', 1)].sc.append('s_waitcnt vmcnt(16)')
    gaps[BARG].sc.append('s_barrier')
    if sl == 0: gaps[NG - 3].sc.append(f's_sub_u32 {s(sIT)}, {s(sIT)}, 1')
    gaps[NG - 2].sc.append(HEADWAIT)
    lines = emit(LOOP_MF, gaps)
    ab = OPT.get('abl', 0)
    if ab & 1: lines = [l for l in lines if not l.startswith('buffer_load')]
    if ab & 2: lines = [l for l in lines if not l.startswith(('s_barrier', 's_waitcnt vmcnt'))]
    if ab & 32: lines = [l for l in lines if not l.startswith('s_barrier')]
    return lines

def loop_code():
    _, pend = add_lgkm_waits(body(1))
    out = ['s_branch L_b1', 'L_padA:', 's_branch L_ret'] if OPT['touch'] else []
    out += ['.p2align 6']
    for sl in (1, 2, 3, 0):
        l, pend2 = add_lgkm_waits(body(sl), pend)
        assert [x[0] for x in pend2] == [x[0] for x in pend]
        out += [f'L_b{sl}:']
        if OPT.get('its'):
            for k in range(3):
                out += [f's_cmp_eq_u32 {s(sLN)}, {OPT["its"] + k * OPT.get("itd", 1)}', f's_cbranch_scc0 L_sk{sl}{k}', f's_mem{"real" if OPT.get("rt") else ""}time {s(sST+2+2*k,2)}', f'L_sk{sl}{k}:']
        out += l
        if OPT['touch'] and sl == 2: out += ['L_padB:', 's_cbranch_vccnz L_ret']
    return out + ['s_cbranch_scc0 L_b1'], pend

def epi_list(q, first):
    t = T0 + 2 * (q & 1)
    o = O0 + 32*q
    L = [('H', f'v_accvgpr_read_b32 {v(t)}, {a(aL+4*q)}', -1),
         ('H', f'v_accvgpr_read_b32 {v(t+1)}, {a(aL+4*q+1)}', -1),
         ('H', f'v_add_f32 {v(t)}, {v(t)}, {v(t+1)}', -1),
         ('E', f'v_rcp_f32 {v(t+1)}, {v(t)}', -1),
         ('H', f'v_subrev_u32 {v(t)}, 0x2b800000, {v(t)}', -1),
         ('H', f'v_mov_b32 {v(T0+4)}, {v(t)}' if first else f'v_max_u32 {v(T0+4)}, {v(T0+4)}, {v(t)}', -1)]
    def muls(u): return [('M', (o + 8*u + i, t + 1), u) for i in range(8)]
    def cvts(u): return [('H', f'v_cvt_pk_bf16_f32 {v(o+8*u+i)}, {v(o+8*u+2*i)}, {v(o+8*u+2*i+1)}', u) for i in range(4)]
    def swaps(u): return [('E', f'v_permlane16_swap_b32 {v(o+8*u+i)}, {v(o+8*u+2+i)}', u) for i in range(2)]
    def store(u):
        return [('D', f'buffer_store_dwordx4 {v(o+8*u,4)}, {v(OV)}, s[16:19], {"0" if q == 0 else s(sQ1+q-1)} offen offset:{64*u}{FL[OPT.get(f"of{q}", OPT["of"])]}', u)]
    if OPT['ep']:
        def writes(u): return [('T', f'ds_write_b64 {v(EW)}, {v(o+8*u+2*i,2)} offset:{64*u+32*i}', u) for i in range(2)]
        for u in range(4): L += muls(u) + cvts(u) + writes(u)
        L += [('R', f'ds_read_b128 {v(o+8*p+4,4)}, {v(ER)} offset:{1088*p}', 3) for p in range(4)]
        L += [('D', f'buffer_store_dwordx4 {v(o+8*p+4,4)}, {v(EG)}, s[16:19], {"0" if q == 0 else s(sQ1+q-1)} offen offset:{1024*p}{FL[OPT.get(f"of{q}", OPT["of"])]}', 3) for p in range(4)]
        return L
    h = lambda l, a_, b_: l[a_:b_]
    L += muls(0) + cvts(0) + h(muls(1), 0, 2) + swaps(0) + store(0) + h(muls(1), 2, 8) + cvts(1) + h(muls(2), 0, 2) + swaps(1) + store(1) \
       + h(muls(2), 2, 8) + cvts(2) + h(muls(3), 0, 2) + swaps(2) + store(2) + h(muls(3), 2, 8) + cvts(3) + [('H', 's_nop 1', 3)] + swaps(3) + store(3)
    return L

def final(q, items):
    return [sm(q, pb) for pb, vb, nk in items] + [pv(q, db, ks, pb, vb) for db in range(8) for pb, vb, nk in items for ks in range(nk)]

def tail_merged():
    P = Prog(); G = P.group
    k3 = lambda q, sb: qkg(q, 1, sb=sb, kbase=aX, mask=True)
    fin = lambda q, pb: final(q, [(q, None, 2), (pb, 'ov', 1)])
    G('q0', qkg(0)); G('p2', pvg(2)); G('p3', pvg(3)); G('r0', k3(0, 2)); G('r1', k3(1, 3)); G('q1', qkg(1))
    if OPT['tord'] == 0:
        G('f0', fin(0, 2)); G('q2', qkg(2)); G('r2', k3(2, 0)); G('f1', fin(1, 3)); G('q3', qkg(3)); G('r3', k3(3, 1))
    else:
        G('f0', fin(0, 2)); G('r2', k3(2, 0)); G('q2', qkg(2)); G('f1', fin(1, 3)); G('r3', k3(3, 1)); G('q3', qkg(3))
    G('f2', fin(2, 0)); G('f3', fin(3, 1))
    P.done(); p = P.pos
    bar2 = p['p3'] + 8
    P.softmax('left', -1, 3, 3, only=LEFT3)
    for q in range(4):
        P.softmax(f's{q}', p[f'q{q}'], q, q, use=p[f'f{q}'])
        P.softmax(f't{q}', p[f'r{q}'], (q + 2) % 4, (q + 2) % 4, 1, use=p[f'f{q}'])
    P.kload('k3', p['r0'], 2, 'T3', 1, kbase=aX, rel0=2); P.vload('v2', p['f0'], 1, 'T2', rel0=2)
    P.vload('v3', p['f0'], 2, 'T3', 1, 'ov', rel0=bar2 + 1)
    g = P.gaps
    g[0].sc.append('s_waitcnt vmcnt(8)'); g[1].sc.append('s_barrier'); g[1].block = 'all'
    g[bar2 - 1].sc.append('s_waitcnt vmcnt(4)'); g[bar2].sc.append('s_barrier'); g[bar2].block = 'all'
    return P

def tail_x():
    P = Prog(); G = P.group
    G('A1', qkg(0, sb=0)); G('A2', pvg(2)); G('A3', qkg(1, sb=1)); G('A4', pvg(3)); G('A5', qkg(0, sb=2))
    if OPT['tord'] < 2: G('A6', qkg(1, sb=3))
    G('A7', pvg(0, pb=0)); G('A8', pvg(1, pb=1)); G('A10', final(0, [(2, None, 2)]))
    if OPT['tord'] == 2: G('A6', qkg(1, sb=3))
    G('B1', qkg(2, sb=2)); G('A11', final(1, [(3, None, 2)])); G('B2', qkg(3, sb=3)); G('B3', qkg(2, sb=0))
    G('r3', qkg(3, 1, sb=1, kbase=aX, mask=True)); G('B4', pvg(2, pb=2)); G('B5', pvg(3, pb=3))
    if OPT['tord']:
        G('B8', final(2, [(0, None, 2)])); G('B6', qkg(3, sb=1)); G('x3', final(3, [(3, 'ov', 1)])); G('B9', final(3, [(1, None, 2)]))
    else:
        G('B6', qkg(3, sb=1)); G('B8', final(2, [(0, None, 2)])); G('B9', final(3, [(1, None, 2), (3, 'ov', 1)]))
    P.done(); p = P.pos
    bar2 = p['A5'] + 6
    P.softmax('left', -1, 3, 3, only=LEFT3)
    P.softmax('s10', p['A1'], 0, 0); P.softmax('s11', p['A3'], 1, 1); P.softmax('s20', p['A5'], 2, 2); P.softmax('s21', p['A6'], 3, 3)
    P.softmax('s12', p['B1'], 2, 2); P.softmax('s13', p['B2'], 3, 3); P.softmax('s22', p['B3'], 0, 0); P.softmax('s23', p['B6'], 1, 1)
    P.softmax('t3', p['r3'], 1, 3, 1, use=p['B8'])
    P.kload('k2', p['A5'], 2, 'T2', rel0=2); P.vload('v1', p['A7'], 1, 'T1', rel0=2); P.vload('v2', p['A10'], 2, 'T2', rel0=bar2 + 1)
    P.kload('k1b', p['B1'], 1, 'T1'); P.kload('k2b', p['B3'], 2, 'T2'); P.vload('v1b', p['B4'], 1, 'T1'); P.vload('v2b', p['B8'], 2, 'T2')
    g = P.gaps
    g[0].sc.append('s_waitcnt vmcnt(8)'); g[1].sc.append('s_barrier'); g[1].block = 'all'
    g[bar2 - 1].sc.append('s_waitcnt vmcnt(4)'); g[bar2].sc.append('s_barrier'); g[bar2].block = 'all'
    if OPT.get('otlb') == 2:
        P.ops.append(Op(('ot', 0), 'D', bar2 + 2, bar2 + 2, f'buffer_load_dword {v(BT)}, {v(OV)}, s[16:19], 0 offen sc1'))
    return P

def tail_pairs(nkb):
    nks = 1 if nkb <= 2 else 2
    small = nkb <= 2
    vx = aX if small else None
    P = Prog()
    G = P.group
    G('A1', qkg(0, sb=0)); G('A2', pvg(2)); G('A3', qkg(1, sb=1)); G('A4', pvg(3))
    G('A5', qkg(0, sb=2)); G('A6', qkg(1, sb=3)); G('A7', pvg(0, pb=0))
    if not small: G('A8', pvg(1, pb=1))
    G('A9a', qkg(0, nkb, sb=0, mask=True)); G('A9b', qkg(1, nkb, sb=1, mask=True))
    if small:
        G('A8', pvg(1, pb=1))
        G('A10', final(0, [(2, None, 2), (0, vx, 1)])); G('B1', qkg(2, sb=2)); G('A11', final(1, [(3, None, 2), (1, vx, 1)]))
        G('B2', qkg(3, sb=3)); G('B3', qkg(2, sb=0)); G('B4', pvg(2, pb=2))
        G('B7a', qkg(2, nkb, sb=2, kbase=aQ, mask=True)); G('B7b', qkg(3, nkb, sb=3, kbase=aQ, mask=True)); G('B5', pvg(3, pb=3))
        if OPT['tord']:
            G('B8', final(2, [(0, None, 2), (2, vx, 1)])); G('B6', qkg(3, sb=1))
            G('B9a', final(3, [(3, vx, 1)])); G('B9', final(3, [(1, None, 2)]))
        else:
            G('B6', qkg(3, sb=1))
            G('B8', final(2, [(0, None, 2), (2, vx, 1)])); G('B9', final(3, [(1, None, 2), (3, vx, 1)]))
    else:
        G('A10p', pvg(0, pb=2)); G('A11p', pvg(1, pb=3)); G('B1', qkg(2, sb=2))
        G('A10', final(0, [(0, None, 2)])); G('A11', final(1, [(1, None, 2)]))
        G('B2', qkg(3, sb=3)); G('B3', qkg(2, sb=0)); G('B4', pvg(2, pb=2)); G('B5', pvg(3, pb=3)); G('B6', qkg(3, sb=1))
        G('B8p', pvg(2, pb=0)); G('B7a', qkg(2, nkb, sb=2, mask=True)); G('B9p', pvg(3, pb=1)); G('B7b', qkg(3, nkb, sb=3, mask=True))
        G('B8', final(2, [(2, None, 2)])); G('B9', final(3, [(3, None, 2)]))
    P.done(); p = P.pos
    bar2 = p['A6'] + 10
    P.softmax('left', -1, 3, 3, only=LEFT3)
    P.softmax('s10', p['A1'], 0, 0); P.softmax('s11', p['A3'], 1, 1); P.softmax('s20', p['A5'], 2, 2); P.softmax('s21', p['A6'], 3, 3)
    P.softmax('s30', p['A9a'], 0, 0, nkb); P.softmax('s31', p['A9b'], 1, 1, nkb, use=p['A10'])
    P.softmax('s12', p['B1'], 2, 2); P.softmax('s13', p['B2'], 3, 3); P.softmax('s22', p['B3'], 0, 0); P.softmax('s23', p['B6'], 1, 1)
    P.softmax('s32', p['B7a'], 2, 2, nkb); P.softmax('s33', p['B7b'], 3, 3, nkb, use=p['B8'])
    P.kload('k2', p['A5'], 2, 'T2', rel0=2); P.vload('v1', p['A7'], 1, 'T1', rel0=2)
    P.kload('k3', p['A9a'], 3, 'T3', nkb, rel0=bar2 + 1)
    P.kload('k1b', p['B1'], 1, 'T1'); P.kload('k2b', p['B3'], 2, 'T2'); P.vload('v1b', p['B4'], 1, 'T1')
    if small:
        P.vload('v2', p['A10'], 2, 'T2', rel0=bar2 + 1); P.vload('v3', p['A10'], 3, 'T3', 1, vx, rel0=bar2 + 1)
        P.kload('k3b', p['B7a'], 3, 'T3', nkb, kbase=aQ); P.vload('v2b', p['B8'], 2, 'T2')
    else:
        P.vload('v2', p['A10p'], 2, 'T2', rel0=bar2 + 1); P.vload('v3', p['A10'], 3, 'T3')
        P.kload('k3b', p['B7a'], 3, 'T3', nkb); P.vload('v2b', p['B8p'], 2, 'T2'); P.vload('v3b', p['B8'], 3, 'T3')
    for i in range(4):
        P.ops.append(Op(('d', i), 'D', 10 + 4*i, 11 + 4*i, i_dma(1, i, SETS[1], 'T3')))
    g = P.gaps
    g[0].sc.append('s_waitcnt vmcnt(8)'); g[1].sc.append('s_barrier'); g[1].block = 'all'
    g[8].sc.append(i_m0(1, 3))
    g[bar2 - 1].sc.append('s_waitcnt vmcnt(0)'); g[bar2].sc.append('s_barrier'); g[bar2].block = 'all'
    return P

def tail(nkb, pend):
    P = {3: tail_merged, 4: tail_x}[OPT['tv']]() if nkb == 1 and OPT['tv'] >= 3 else tail_pairs(nkb)
    p = P.pos
    prev = None
    if OPT['ep']:
        t = T0
        setup = [f'v_mbcnt_lo_u32_b32 {v(t)}, -1, 0', f'v_mbcnt_hi_u32_b32 {v(t)}, -1, {v(t)}',
                 f'v_and_b32 {v(t+1)}, 15, {v(t)}', f'v_lshrrev_b32 {v(t+2)}, 4, {v(t)}',
                 f'v_mul_u32_u24 {v(EW)}, 272, {v(t+1)}', f'v_lshl_add_u32 {v(EW)}, {v(t+2)}, 3, {v(EW)}',
                 f'v_mul_u32_u24 {v(ER)}, 272, {v(t+2)}', f'v_lshl_add_u32 {v(ER)}, {v(t+1)}, 4, {v(ER)}',
                 f'v_add_u32 {v(EW)}, {s(sT+3)}, {v(EW)}', f'v_add_u32 {v(ER)}, {s(sT+3)}, {v(ER)}',
                 f'v_lshlrev_b32 {v(EG)}, 4, {v(t)}', f'v_add_u32 {v(EG)}, {s(sT+4)}, {v(EG)}']
        for i, x in enumerate(setup):
            o = Op(('su', i), 'H', 24, INF, x, fifo=prev, pri=100 + i); prev = o.key; P.ops.append(o)
    for q in range(4):
        lrel = P.last_write(AR(aL + 4*q, 4), INF) + 5
        nst = 0
        for i, (c, t, u) in enumerate(epi_list(q, q == 0)):
            rel = lrel if u < 0 else max(lrel, P.last_write(VR(O0 + 32*q + 8*u, 8), INF) + 5)
            fin = P.last_write(VR(O0 + 32*q, 32), INF) + 5
            edl = OPT.get(f'edl{q}', OPT.get('edl', INF))
            nst += c == 'D'
            dl = INF if edl >= INF else fin + edl + (LAT + OPT['ssp'] * (nst - 1) if c == 'D' and OPT['ep'] else 0)
            o = Op(('ep', q, i), {'M': 'H'}.get(c, c), rel, dl if dl < P.n - 1 else INF, f'v_mul_f32 {v(t[0])}, {v(t[1])}, {v(t[0])}' if c == 'M' else t,
                   fifo=prev, pri=rel + OPT['epri'] + i // 2)
            o.raw = (c, t); prev = o.key; P.ops.append(o)
            if c != 'D': lastnd = o.key
        if OPT['ep']: prev = lastnd
    g = P.gaps
    todo = schedule(P.n, P.ops, g, overflow=True)
    if OPT.get('ts'):
        names = {1: ('A5', 'A10', 'B2'), 2: ('B4', 'B8', 'B9'), 3: ('A2', 'A7', 'A11')}[OPT['ts']] if 'A5' in p else {1: ('p3', 'f0', 'f1'), 2: ('q3', 'f2', 'f3')}[OPT['ts']]
        for k, nm in enumerate(names): g[p[nm]].sc += stamp(1 + k)
        if nkb == 1: print('stamp mfma idx', [p[nm] for nm in names], p)
    if OPT['pkd']:
        import re
        for gp in g:
            if sum(x.startswith('v_mul_f32') for x in gp.post) < OPT['pkd']: continue
            out = []; i = 0
            while i < len(gp.post):
                m = re.match(r'v_mul_f32 v(\d+), v(\d+),', gp.post[i])
                if m and int(m.group(1)) % 2 == 0 and i + 1 < len(gp.post) and gp.post[i+1].startswith(f'v_mul_f32 v{int(m.group(1))+1},'):
                    out.append(f'v_pk_mul_f32 {v(int(m.group(1)),2)}, {v(int(m.group(1)),2)}, {v(int(m.group(2))-1,2)} op_sel:[0,1] op_sel_hi:[1,1]'); i += 2
                else: out.append(gp.post[i]); i += 1
            gp.post = out
    lines = emit(P.mf, g)
    assert all(o.key[0] == 'ep' for o in todo), [o.key for o in todo]
    i = 0
    while i < len(todo):
        c, t = todo[i].raw
        if c == 'M' and i + 1 < len(todo) and todo[i+1].raw[0] == 'M' and t[0] % 2 == 0 and todo[i+1].raw[1][0] == t[0] + 1:
            lines.append(f'v_pk_mul_f32 {v(t[0],2)}, {v(t[0],2)}, {v(t[1]-1,2)} op_sel:[0,1] op_sel_hi:[1,1]'); i += 2
        else:
            lines.append(todo[i].text); i += 1
    lines, _ = add_lgkm_waits(lines, pend)
    return lines

def scale_q(q):
    out = []
    for h in range(0, 16, 4):
        for i in range(4):
            x = S0 + 16*q + h + i; t = T0 + 2*i
            out += [f'v_lshlrev_b32 {v(t)}, 16, {v(x)}', f'v_and_b32 {v(t+1)}, 0xffff0000, {v(x)}']
        out += [f'v_pk_mul_f32 {v(T0+2*i,2)}, {v(T0+2*i,2)}, {s(sC,2)}' for i in range(4)]
        out += [f'v_cvt_pk_bf16_f32 {v(S0+16*q+h+i)}, {v(T0+2*i)}, {v(T0+2*i+1)}' for i in range(4)]
        out += [f'v_accvgpr_write_b32 {a(aQ+16*q+h+i)}, {v(S0+16*q+h+i)}' for i in range(4)]
    return out
def qread(q): return [f'ds_read_b128 {v(S0+16*q+4*ks,4)}, {v(QA+ks)} offset:{(q&1)*0x4000}' for ks in range(4)] + ['s_waitcnt lgkmcnt(0)']
def qload(q):
    return [f's_add_u32 m0, {s(sMK)}, {0x20000 + (q&1)*0x4000}', 's_nop 0'] + \
           [f'buffer_load_dwordx4 {v(QD+p)}, s[4:7], {"0" if q == 0 else s(sQ1+q-1)} offen offset:{1024*p}{FL[OPT["qf"]]} lds ; ld Q{q}' for p in range(4)]
def dma4(isv, tile):
    return [f's_add_u32 m0, {s(sMV if isv else sMK)}, {s(sSL+tile)}', 's_nop 0'] + [i_dma(isv, i, 40 + 4*tile, tile) for i in range(4)]
def btprep(tile):
    out = []
    for i in range(4):
        r = 40 + 4*tile + i
        out.append(f's_min_u32 {s(r)}, {s(r)}, 131')
        out.append(f's_lshl_b32 {s(r)}, {s(r)}, 16')
        if i < 3: out.append(f's_or_b32 {s(r)}, {s(r)}, {(3-i)*1024}')
    return out

def resolve_waitvm(lines):
    out = []; vm = []
    for l in lines:
        if l.startswith('WAITVM'):
            tags = l.split(None, 1)[1].split('|')
            last = max(i for i, t in enumerate(vm) if t in tags)
            wb = {1: ('ld Q0', 'ld Q1'), 2: ('ld Q2', 'ld Q3'), 3: ('dma K 0', 'dma V 0'), 4: ('dmx K', 'ld BT')}.get(OPT.get('wb'), ())
            st_ = lambda i: [f's_memtime {s(sST+2*i,2)}']
            if tags[0] in wb: out += st_(1 + 2*wb.index(tags[0]))
            out.append(f's_waitcnt vmcnt({len(vm) - 1 - last}) ; {tags}')
            if tags[0] in wb: out += st_(2 + 2*wb.index(tags[0]))
        else:
            if l.startswith(('buffer_', 'global_')): vm.append(l.split(';')[1].strip() if ';' in l else '')
            out.append(l)
    return out

def prologue():
    t = T0
    L = ([f's_mov_b32 s77, {OPT["twice"]}', 'L_again:'] if OPT.get('twice') else []) + ['s_cmp_ge_u32 s2, 256', 's_cbranch_scc1 L_end',
         's_load_dwordx8 s[24:31], s[0:1], 0', 's_load_dwordx4 s[32:35], s[0:1], 32']
    L += [f's_lshr_b32 {s(sT+1)}, s2, 3']
    if OPT['cpf']:
        L += ['s_getpc_b64 s[8:9]', 'L_pc:', f's_lshl_b32 s10, {s(sT+1)}, 10', 'v_lshl_add_u32 v2, v0, 2, s10', 'v_mov_b32 v3, 0',
              'v_lshl_add_u64 v[2:3], v[2:3], 0, s[8:9]', f'global_load_dword {v(T0+7)}, v[2:3], off']
    L += stamp(0) + (['s_memrealtime s[100:101]'] if OPT['stamp'] else [])
    L += [f'v_lshrrev_b32 {v(t)}, 6, v0',
          f'v_and_b32 {v(t+2)}, 15, v0',
          f'v_readfirstlane_b32 {s(sW)}, {v(t)}',
          f'v_bfe_u32 {v(t+3)}, v0, 4, 2',
          f's_and_b32 {s(sT)}, s2, 7', f's_lshl_b32 {s(sT)}, {s(sT)}, 5',
          f's_add_u32 {s(sT)}, {s(sT)}, {s(sT+1)}', f's_lshl_b32 {s(sT+1)}, {s(sT)}, 16',
          f'v_lshl_add_u32 {v(t+4)}, {v(t)}, 6, {v(t+3)}', f'v_xor_b32 {v(t+5)}, {v(t+2)}, {v(t+3)}',
          f'v_lshl_add_u32 {v(QD)}, {v(t+4)}, 4, {v(t+5)}', f'v_lshlrev_b32 {v(QD)}, 4, {v(QD)}',
          f's_lshl_b32 {s(sMK)}, {s(sW)}, 12', f'v_xor_b32 {v(QD+1)}, 64, {v(QD)}', f'v_xor_b32 {v(QD+2)}, 0x80, {v(QD)}',
          f'v_xor_b32 {v(QD+3)}, 64, {v(QD+2)}', 's_mov_b32 s6, 0x10000', 's_mov_b32 s7, 0x20000', qload(0)[0],
          's_waitcnt lgkmcnt(0)',
          f's_add_u32 s4, s24, {s(sT+1)}', 's_addc_u32 s5, s25, 0',
          f's_load_dword {s(sCL)}, s[32:33], 0', 's_load_dwordx16 s[40:55], s[30:31], 0']
    L += qload(0)[2:]
    L += [f'v_and_b32 {v(t+1)}, 63, v0', f'v_lshlrev_b32 {v(t+6)}, 4, {v(t+1)}',
          's_mov_b32 s20, s30', 's_mov_b32 s21, s31', 's_movk_i32 s22, 0x200', 's_mov_b32 s23, 0x20000',
          f'buffer_load_dwordx4 {v(BT,4)}, {v(t+6)}, s[20:23], 0 offen ; ld BT',
          f's_lshr_b32 {s(sT)}, {s(sT)}, 4', f's_lshl_b32 {s(sT)}, {s(sT)}, 8',
          f's_add_u32 s8, s26, {s(sT)}', 's_addc_u32 s9, s27, 0', 's_sub_u32 s8, s8, 3072', 's_subb_u32 s9, s9, 0',
          f's_sub_u32 s10, {KBYTES+3072}, {s(sT)}', 's_mov_b32 s11, 0x20000',
          f'v_lshl_add_u32 {v(t+4)}, {v(t)}, 2, {v(t+3)}',
          f'v_xor_b32 {v(t+6)}, {v(t+2)}, {v(t+4)}', f'v_lshlrev_b32 {v(t+6)}, 4, {v(t+6)}',
          f'v_lshl_add_u32 {v(DK)}, {v(t+4)}, 12, {v(t+6)}',
          f'v_and_b32 {v(t+6)}, 7, {v(t+4)}', f'v_lshlrev_b32 {v(t+6)}, 1, {v(t+6)}',
          f'v_xor_b32 {v(t+6)}, {v(t+2)}, {v(t+6)}', f'v_lshlrev_b32 {v(t+6)}, 4, {v(t+6)}',
          f'v_lshl_add_u32 {v(DV)}, {v(t+4)}, 12, {v(t+6)}',
          f's_movk_i32 {s(sQ1)}, 0x1000', f's_movk_i32 {s(sQ1+1)}, 0x2000', f's_movk_i32 {s(sQ1+2)}, 0x3000',
          f's_add_u32 s12, s28, {s(sT)}', 's_addc_u32 s13, s29, 0', 's_sub_u32 s12, s12, 3072', 's_subb_u32 s13, s13, 0',
          's_mov_b32 s14, s10', 's_mov_b32 s15, 0x20000',
          f's_add_u32 s16, s34, {s(sT+1)}', 's_addc_u32 s17, s35, 0', 's_mov_b32 s18, 0x10000', 's_mov_b32 s19, 0x20000',
          f's_add_u32 {s(sMV)}, {s(sMK)}, 0x10000', f's_mov_b32 {s(sC)}, 0x3e0293ee',
          's_waitcnt lgkmcnt(0)'] + stamp(1)
    L += [f's_cmp_lt_i32 {s(sCL)}, 1', f's_cselect_b32 {s(sC)}, 0, {s(sC)}', f's_cselect_b32 {s(sCL)}, 0x800, {s(sCL)}',
          f's_min_u32 {s(sCLT)}, {s(sCL)}, 0x800', f's_max_u32 {s(sCL)}, {s(sCLT)}, {MINCL}',
          f's_add_u32 {s(sN)}, {s(sCL)}, 63', f's_lshr_b32 {s(sN)}, {s(sN)}, 6',
          f's_mov_b32 {s(sNP)}, {s(sN)}']
    if OPT['tv'] == 3:
        L += [f's_sub_u32 {s(sNP)}, {s(sCL)}, 1', f's_and_b32 {s(sNP)}, {s(sNP)}, 63', f's_cmp_lt_u32 {s(sNP)}, 16', f's_addc_u32 {s(sNP)}, {s(sN)}, 0']
    L += [f's_sub_u32 {s(sE)}, 0, {s(sNP)}', f's_and_b32 {s(sE)}, {s(sE)}, 3', f's_lshl_b32 {s(sSL)}, {s(sE)}, 14']
    L += btprep(0) + dma4(0, 0) + qload(1)
    if OPT.get('otlb') == 1:
        L += [f'buffer_load_dword {v(O0+8)}, {v(QD)}, s[16:19], 0 offen sc1 ; ld O']
    L += [f's_mov_b32 {s(sC2)}, {s(sC)}',
          f's_cmp_lt_u32 {s(sCLT)}, {4096 if OPT["forceslow"] else MINCL}', f's_cselect_b32 {s(sFORCE)}, 1, 0',
          f's_add_u32 {s(sIT)}, {s(sNP)}, {s(sE)}', f's_lshr_b32 {s(sIT)}, {s(sIT)}, 2', f's_sub_u32 {s(sIT)}, {s(sIT)}, 2']
    for i in range(1, 4):
        L += [f's_add_u32 {s(sSL+i)}, {s(sSL)}, {i*0x4000}', f's_and_b32 {s(sSL+i)}, {s(sSL+i)}, 0xc000']
    L += [f's_sub_u32 {s(sT)}, {s(sN)}, 1', f's_lshl_b32 {s(sT)}, {s(sT)}, 6', f's_sub_u32 {s(sT)}, {s(sCL)}, {s(sT)}',
          f's_add_u32 {s(sNKB)}, {s(sT)}, 15', f's_lshr_b32 {s(sNKB)}, {s(sNKB)}, 4',
          f's_sub_u32 {s(sT)}, {s(sT)}, 1', f's_and_b32 {s(sT)}, {s(sT)}, 15',
          f's_and_b32 {s(sT+1)}, {s(sE)}, 1', f's_sub_u32 {s(sT+1)}, 4, {s(sT+1)}', f's_sub_u32 {s(sT+2)}, 7, {s(sT+1)}',
          f's_mov_b32 {s(sLN)}, 5',
          f's_lshl_b32 {s(sT+3)}, {s(sW)}, 13', f's_add_u32 {s(sT+3)}, {s(sT+3)}, 0x20000', f's_lshl_b32 {s(sT+4)}, {s(sW)}, 14']
    L += [f'v_lshrrev_b32 {v(t+4)}, 2, {v(t+2)}', f'v_lshlrev_b32 {v(t+4)}, 4, {v(t+4)}',
          f'v_and_b32 {v(t+6)}, 3, {v(t+2)}', f'v_add_u32 {v(t+4)}, {v(t+4)}, {v(t+6)}', f'v_lshlrev_b32 {v(t+4)}, 8, {v(t+4)}',
          f'v_lshlrev_b32 {v(t+6)}, 12, {v(t)}', f'v_lshl_add_u32 {v(t+6)}, {v(t+2)}, 8, {v(t+6)}', f'v_add_u32 {v(t+6)}, 0x20000, {v(t+6)}']
    for ks in range(4):
        L += [f'v_xor_b32 {v(MK)}, {4*ks}, {v(t+5)}', f'v_lshl_add_u32 {v(KA+ks)}, {v(MK)}, 4, {v(t+4)}',
              f'v_lshl_add_u32 {v(QA+ks)}, {v(MK)}, 4, {v(t+6)}', f'v_add_u32 {v(KA0+ks)}, {s(sSL)}, {v(KA+ks)}']
    L += [f'v_bfe_u32 {v(t+5)}, {v(t+1)}, 2, 2',
          f'v_lshl_add_u32 {v(t+4)}, {v(t+3)}, 4, {v(t+5)}', f'v_lshlrev_b32 {v(t+4)}, 8, {v(t+4)}',
          f'v_and_b32 {v(MK)}, 3, {v(t+1)}', f'v_lshl_add_u32 {v(t+4)}, {v(MK)}, 3, {v(t+4)}', f'v_add_u32 {v(t+4)}, 0x10000, {v(t+4)}',
          f'v_lshl_add_u32 {v(t+5)}, {v(t+3)}, 2, {v(t+5)}', f'v_and_b32 {v(t+5)}, 7, {v(t+5)}']
    for db in range(8):
        L += [f'v_xor_b32 {v(VA+db)}, {db}, {v(t+5)}', f'v_lshl_add_u32 {v(VA+db)}, {v(VA+db)}, 5, {v(t+4)}',
              f'v_add_u32 {v(VA0+db)}, {s(sSL)}, {v(VA+db)}']
    L += [f'v_lshlrev_b32 {v(t+4)}, 14, {v(t)}', f'v_lshl_add_u32 {v(t+4)}, {v(t+2)}, 8, {v(t+4)}',
          f'v_and_b32 {v(t+5)}, 1, {v(t+3)}', f'v_lshl_add_u32 {v(t+4)}, {v(t+5)}, 5, {v(t+4)}',
          f'v_lshrrev_b32 {v(t+5)}, 1, {v(t+3)}', f'v_lshl_add_u32 {v(OV)}, {v(t+5)}, 4, {v(t+4)}',
          f'v_and_b32 {v(t+4)}, 1, {v(t+1)}', f'v_mov_b32 {v(t+5)}, 0xaaaaaaaa',
          f'v_mul_lo_u32 {v(t+4)}, {v(t+4)}, {v(t+5)}', f'v_or_b32 {v(IDX)}, 0x44444444, {v(t+4)}', f'v_mov_b32 {v(t+5)}, 0x3f803f80']
    L += [f'v_accvgpr_write_b32 {a(aONE+i)}, {v(t+5)}' for i in range(4)]
    L += [f'v_lshlrev_b32 {v(t+4)}, 2, {v(t+3)}', f'v_mov_b32 {v(t+5)}, {NEG:#x}']
    for r in range(4):
        L += [f'v_add_u32 {v(t+6)}, {r}, {v(t+4)}', f'v_cmp_lt_u32 vcc, {s(sT)}, {v(t+6)}', 's_nop 1',
              f'v_cndmask_b32 {v(MK+r)}, 0, {v(t+5)}, vcc']
    L += btprep(1) + btprep(2) + btprep(3)
    L += [f'v_mov_b32 {v(O0+i)}, 0' for i in range(64, 128)]
    L += [f'v_accvgpr_write_b32 {a(aL+i)}, 0' for i in range(16)]
    groups = {'q2': qload(2), 'q3': qload(3), 'v0': dma4(1, 0), 'k1': dma4(0, 1), 'v1': dma4(1, 1), 'k2': dma4(0, 2), 'v2': dma4(1, 2), 'k3': dma4(0, 3)}
    plan = {0: dict(A=['q2'], B=['v0'], C=['q3'], D=['k1', 'v1'], E=['k2'], F=['v2', 'k3']),
            1: dict(A=['q2'], B=['v0'], C=['q3'], D=['k1'], E2=['v1', 'k2'], G=['v2', 'k3']),
            2: dict(A=['q2', 'v0'], C=['q3', 'k1'], D=['v1'], E2=['k2'], G=['v2', 'k3']),
            3: dict(A0=['v0'], A=['q2'], C=['q3', 'k1'], D=['v1', 'k2'], G=['v2', 'k3']),
            4: dict(A=['q2'], B=['v0'], C=['q3', 'k1'], D=['v1'], E2=['k2'], G=['v2', 'k3']),
            5: dict(A=['q2'], B=['v0'], C=['q3', 'k1'], D2=['v1', 'k2'], G=['v2', 'k3']),
            6: dict(A=['q2'], B=['v0', 'k1'], C=['q3'], D2=['v1', 'k2'], G=['v2', 'k3']),
            7: dict(A=['q2'], B=['v0'], C=['q3', 'k1'], D2=['v1', 'k2'], E2=['v2', 'k3']),
            8: dict(A=['q2'], B=['v0', 'k1'], C=['q3'], P=['v1', 'k2'], S=['v2', 'k3']),
            9: dict(A=['q2', 'v0'], B=['k1'], C=['q3'], P=['v1', 'k2'], S=['v2', 'k3']),
            10: dict(A0=['v0'], A=['q2'], B=['k1'], C=['q3'], P=['v1', 'k2'], S=['v2', 'k3']),
            11: dict(A=['q2'], B=['v0', 'k1'], C=['q3'], D2=['v1', 'k2'], S=['v2', 'k3']),
            12: dict(A=['q2'], B=['v0', 'k1'], C3=['q3'], P=['v1', 'k2'], S=['v2', 'k3']),
            13: dict(A=['q2'], B=['v0'], B2=['k1'], C3=['q3'], P=['v1', 'k2'], S=['v2', 'k3']),
            14: dict(A=['v0'], B=['q2'], C=['k1'], C3=['q3'], P=['v1', 'k2'], S=['v2', 'k3']),
            15: dict(A=['q2'], B2=['v0'], C2=['k1'], C3=['q3'], P=['v1', 'k2'], S=['v2', 'k3']),
            16: dict(A2=['q2'], B2=['v0'], C2=['k1'], C3=['q3'], P=['v1', 'k2'], S=['v2', 'k3']),
            17: dict(A=['q2'], B=['v0'], C=['k1'], C2=['q3'], P=['v1', 'k2'], S=['v2', 'k3']),
            18: dict(A=['q2'], B=['v0'], B2=['k1'], C2=['q3'], P=['v1', 'k2'], S=['v2', 'k3']),
            19: dict(A=['v0'], B=['q2'], C=['k1'], C3=['q3'], P=['v1'], S=['k2', 'v2'], K=['k3']),
            20: dict(A=['v0'], B=['q2'], C=['k1'], C3=['q3'], S=['v1', 'k2'], K=['v2', 'k3']),
            21: dict(A=['v0'], B=['q2'], C=['k1'], C2=['q3'], S=['v1', 'k2'], K=['v2', 'k3']),
            22: dict(A=['v0'], A2=['q2'], B2=['k1'], C2=['q3'], S=['v1', 'k2'], K=['v2', 'k3']),
            23: dict(A0=['v0'], A=['q2'], B2=['k1'], C2=['q3'], S=['v1', 'k2'], K=['v2', 'k3']),
            24: dict(A=['v0'], B=['q2'], C=['q3'], C3=['k1'], S=['v1', 'k2'], K=['v2', 'k3']),
            25: dict(A=['v0'], B=['q2'], C=['k1'], C3=['q3'], P=['v1', 'k2'], S=['v2'], K=['k3']),
            26: dict(A=['v0'], B=['q2'], C=['k1'], C3=['q3'], D=['v1'], P=['k2'], S=['v2'], K=['k3']),
            27: dict(A=['v0'], B=['q2'], C=['k1', 'v1'], C3=['q3'], P=['k2'], S=['v2'], K=['k3']),
            28: dict(A=['v0', 'k1'], B=['q2'], C2=['q3'], P=['v1', 'k2'], S=['v2'], K=['k3']),
            29: dict(A=['v0'], A2=['k1'], B=['q2'], C2=['q3'], D=['v1'], P=['k2'], S=['v2'], K=['k3'])}[OPT['po']]
    at = lambda p_: [x for g_ in plan.get(p_, []) for x in groups[g_]]
    X = OPT['tv'] == 4
    btv = lambda i: [f'v_min_u32 {v(BT+i)}, 131, {v(BT+i)}', f'v_lshlrev_b32 {v(BT+i)}, 16, {v(BT+i)}'] + ([f'v_or_b32 {v(BT+i)}, {(3-i)*1024}, {v(BT+i)}'] if i < 3 else [])
    touch = []
    if OPT['touch']:
        touch = ['s_mov_b64 vcc, -1', f's_cmp_eq_u32 {s(sW)}, 0', 's_cbranch_scc1 L_padB', f's_cmp_eq_u32 {s(sW)}, 1', 's_cbranch_scc1 L_padA',
                 'L_ret:', 's_mov_b64 vcc, 0']
    L += at('A0') + (touch if OPT['touch'] == 1 else []) + ['WAITVM ld Q0'] + stamp(2)
    if X:
        L += ['WAITVM ld BT'] + btv(0) + [f's_sub_u32 {s(sT+5)}, {s(sN)}, 1', f'v_readlane_b32 {s(sT)}, {v(BT)}, {s(sT+5)}'] + qread(0)
        L += [f's_add_u32 m0, {s(sMV)}, {s(sSL+3)}', f's_sub_u32 {s(sT+5)}, {s(sT)}, 1024',
              f'buffer_load_dwordx4 {v(DV)}, s[12:15], {s(sT)} offen lds ; dmx V',
              f'buffer_load_dwordx4 {v(DK)}, s[8:11], {s(sT+5)} offen offset:1024 lds ; dmx K']
    else: L += qread(0)
    L += at('A') + scale_q(0) + at('A2') + ['WAITVM ld BT']
    for i in range(1 if X else 0, 4): L += btv(i)
    L += ['s_nop 0'] + [f'v_readlane_b32 {s(SETS[k]+i)}, {v(BT+i)}, {s(sT+1+k)}' for k in range(2) for i in range(4)]
    L += (touch if OPT['touch'] == 2 else []) + ['WAITVM dma K 0', 's_barrier']
    L += [i_kread(*kord(f), 0, '0', addr=KA0) for f in range(16)] + at('B')
    def tile0(x):
        P = Prog(); G = P.group
        r = lambda q, sb: qkg(q, 1, sb=sb, kbase=aX, mask=True)
        xv = lambda q: [pv(q, db, 0, 2, 'ov', first=q < 2) for db in range(8)] + [sm(q, 2)]
        G('q0', qkg(0))
        if x: G('r0', r(0, 2)); G('r1', r(1, 3))
        G('q1', qkg(1))
        if x: G('x0', xv(0)); G('x1', xv(1)); G('r2', r(2, 3))
        G('q2', qkg(2))
        if x: G('x2', xv(2))
        G('p0', pvg(0, first=not x)); G('p1', pvg(1, first=not x)); G('q3', qkg(3))
        P.done(); p = P.pos
        w1, w2 = p['r0' if x else 'q1'], p['r2' if x else 'q2']
        P.softmax('s0', p['q0'], 0, 0, dlcap=w1 + 4); P.softmax('s1', p['q1'], 1, 1, dlcap=w2 + (-1 if x else 4))
        P.softmax('s2', p['q2'], 2, 2, dlcap=p['q3'] - 1, use=P.n); P.softmax('s3', p['q3'], 3, 3, skip=LEFT3, lastrel=P.n - 1)
        if x:
            P.softmax('t0', p['r0'], 2, 2, 1); P.softmax('t1', p['r1'], 3, 2, 1, use=p['x1'], zero=False)
            P.softmax('t2', p['r2'], 3, 2, 1, zero=False)
        P.vload('v', p['p0'], 0, '0', addr=VA0, rel0=w2)
        P.kload('k', P.n, 0, '1', addr=T0, rel0=p['q3'], dlmax=P.n - 1)
        g = P.gaps
        for pt, gi in (('P', p['p0'] + 1), ('K', p['q3'] + 1)):
            step = 2 if pt == 'K' and len(plan.get('K', [])) > 1 else 4
            for y in at(pt):
                if y.startswith('s_add'): g[gi - 1].sc.append(y)
                elif y.startswith('buffer'):
                    P.ops.append(Op(('d', gi), 'D', gi, gi, y)); gi += step
        assert not schedule(P.n, P.ops, g, overflow=True)
        sc3 = []; ext = at('S')
        for i, y in enumerate(scale_q(3)):
            sc3.append(y)
            if i % 10 == 4 and ext:
                if ext[0].startswith('s_add'): sc3 += ext[:2]; ext = ext[2:]
                sc3.append(ext.pop(0))
        assert not ext
        xr = []
        if x:
            XA = S0 + 36
            xr = [f's_add_u32 {s(sT)}, {s(sSL+3)}, 0x10000'] + [f'v_add_u32 {v(XA+ks)}, {s(sT)}, {v(KA+ks)}' for ks in range(4)] + \
                 [f'v_add_u32 {v(XA+4+db)}, {s(sSL+3)}, {v(VA+db)}' for db in range(8)] + ['WAITVM dmx K', 's_barrier'] + \
                 [f'ds_read_b128 {a(aX+4*ks,4)}, {v(XA+ks)} offset:1024 ; rx K {ks}' for ks in range(4)] + \
                 [f'ds_read_b64_tr_b16 {a(aX+16+2*db,2)}, {v(XA+4+min(db,7))} offset:0 ; rx V {min(db,7)}' for db in range(9)]
        g[w1 - 1].post += at('B2') + xr + ['WAITVM ld Q1'] + qread(1) + at('C') + scale_q(1) + at('C2') + ['s_nop 0']
        g[w2 - 1].post += at('C3') + ['WAITVM ld Q2'] + qread(2) + at('D') + scale_q(2) + ['WAITVM dma V 0|dma K 1', 's_barrier']
        g[p['q3'] - 1].post += (['s_barrier'] if x else []) + at('D2') + ['WAITVM ld Q3'] + stamp(3) + qread(3) + sc3 + \
                               [f'v_add_u32 {v(T0+ks)}, {s(sSL+1)}, {v(KA+ks)}' for ks in range(4)]
        g[P.n - 1].post += [HEADWAIT]
        full, pend = add_lgkm_waits(resolve_waitvm(L + ['L_split:'] + emit(P.mf, g)))
        k = full.index('L_split:')
        return full[:k], full[k+1:] + stamp(4) + [
            f's_cmp_eq_u32 {s(sE)}, 2', 's_cbranch_scc1 L_b3', f's_cmp_eq_u32 {s(sE)}, 1', 's_cbranch_scc1 L_b2',
            f's_cmp_eq_u32 {s(sE)}, 3', 's_cbranch_scc1 L_b0', f's_cmp_eq_u32 {s(sNP)}, 4', 's_cbranch_scc1 L_tail'], pend
    assert OPT['po'] >= 8
    head, tn, pend = tile0(False)
    if not X: return head + tn, [], pend
    head2, tx, pend2 = tile0(True)
    assert head == head2 and [z[0] for z in pend] == [z[0] for z in pend2]
    return head + [f's_cmp_lg_u32 {s(sNKB)}, 1', 's_cbranch_scc1 L_tile0n'] + tx, ['L_tile0n:'] + tn + ['s_branch L_b1'], pend

def slow():
    t = T0
    L = ['L_slow:', 's_waitcnt vmcnt(0) lgkmcnt(0)']
    M, LS, KV, VD0, VD1 = KA, BT, DK, DV, IDX
    L += [f'v_mbcnt_lo_u32_b32 {v(t+1)}, -1, 0', f'v_mbcnt_hi_u32_b32 {v(t+1)}, -1, {v(t+1)}',
          f'v_and_b32 {v(t+2)}, 15, {v(t+1)}', f'v_lshrrev_b32 {v(t+3)}, 4, {v(t+1)}']
    L += [f's_lshl_b32 {s(sT)}, {s(sW)}, 14', f'v_lshlrev_b32 {v(t+4)}, 8, {v(t+2)}', f'v_lshl_add_u32 {v(t+4)}, {v(t+3)}, 4, {v(t+4)}',
          f'v_add_u32 {v(t+4)}, {s(sT)}, {v(t+4)}']
    L += [f'buffer_load_dwordx4 {v(S0+16*q+4*ks,4)}, {v(t+4)}, s[4:7], {"0" if q == 0 else s(sQ1)} offen offset:{64*ks}' for q in range(2) for ks in range(4)]
    L += [f'v_lshlrev_b32 {v(t+4)}, 12, {v(t+2)}', f'v_lshl_add_u32 {v(KV)}, {v(t+3)}, 4, {v(t+4)}', f'v_add_u32 {v(KV)}, 3072, {v(KV)}',
          f'v_lshlrev_b32 {v(t+4)}, 1, {v(t+3)}', f'v_xor_b32 {v(t+4)}, {v(t+2)}, {v(t+4)}',
          f'v_lshlrev_b32 {v(t+4)}, 4, {v(t+4)}', f'v_lshl_add_u32 {v(VD0)}, {v(t+3)}, 12, {v(t+4)}', f'v_add_u32 {v(VD0)}, 3072, {v(VD0)}',
          f'v_xor_b32 {v(t+4)}, 0x80, {v(t+4)}', f'v_lshl_add_u32 {v(VD1)}, {v(t+3)}, 12, {v(t+4)}', f'v_add_u32 {v(VD1)}, {3072 + 16384}, {v(VD1)}',
          f's_lshl_b32 {s(sMV)}, {s(sW)}, 13', f's_add_u32 {s(sMV)}, {s(sMV)}, 0x20000',
          f'v_bfe_u32 {v(t+5)}, {v(t+1)}, 2, 2', f'v_lshl_add_u32 {v(t+5)}, {v(t+3)}, 2, {v(t+5)}',
          f'v_lshlrev_b32 {v(t+4)}, 8, {v(t+5)}', f'v_and_b32 {v(t+6)}, 3, {v(t+1)}',
          f'v_lshl_add_u32 {v(t+4)}, {v(t+6)}, 3, {v(t+4)}', f'v_add_u32 {v(t+4)}, {s(sMV)}, {v(t+4)}', f'v_and_b32 {v(t+5)}, 7, {v(t+5)}']
    for db in range(8):
        L += [f'v_xor_b32 {v(VA+db)}, {db}, {v(t+5)}', f'v_lshl_add_u32 {v(VA+db)}, {v(VA+db)}, 5, {v(t+4)}']
    L += [f'v_lshlrev_b32 {v(MK)}, 2, {v(t+3)}', f'v_mov_b32 {v(MK+1)}, {NEG:#x}']
    L += [f'v_mov_b32 {v(O0+i)}, 0' for i in range(128)]
    L += [f'v_mov_b32 {v(M+q)}, 0xff7fffff' for q in range(4)] + [f'v_mov_b32 {v(LS+q)}, 0' for q in range(4)]
    L += ['s_waitcnt vmcnt(0)'] + scale_q(0) + scale_q(1)
    L += [f's_mov_b32 {s(sIT)}, 0', 'L_slow_loop:',
          f's_lshr_b32 {s(sT)}, {s(sIT)}, 2',
          f's_load_dwordx2 s[40:41], s[30:31], {s(sT)}', 's_waitcnt lgkmcnt(0)',
          's_min_u32 s40, s40, 131', 's_min_u32 s41, s41, 131', 's_lshl_b32 s40, s40, 16', 's_lshl_b32 s41, s41, 16']
    for kb in range(2):
        for ks in range(4):
            L.append(f'buffer_load_dwordx4 {a(aK+16*kb+4*ks,4)}, {v(KV)}, s[8:11], s{40+kb} offen offset:{64*ks}')
    for b in range(2):
        for p in range(4):
            L += [f's_add_u32 m0, {s(sMV)}, {b*4096 + p*1024}', f's_add_u32 s42, s{40+b}, {(p//2)*32768}',
                  f'buffer_load_dwordx4 {v(VD1 if p & 1 else VD0)}, s[12:15], s42 offen lds']
    L += ['s_waitcnt vmcnt(0)']
    for db in range(8):
        for tt in range(2):
            L.append(f'ds_read_b64_tr_b16 {a(aV+8*db+2*tt,2)}, {v(VA+db)} offset:{tt*4096}')
    L += [f's_sub_u32 {s(sT)}, {s(sCLT)}, {s(sIT)}', 's_waitcnt lgkmcnt(0)']
    for q in range(4):
        S = S0 + 16*q
        L += qkg(q, 2) + ['s_nop 7']
        for e in range(8):
            L += [f'v_add_u32 {v(t)}, {16*(e//4) + e%4}, {v(MK)}', f'v_cmp_gt_u32 vcc, {s(sT)}, {v(t)}', 's_nop 1',
                  f'v_cndmask_b32 {v(S+e)}, {v(MK+1)}, {v(S+e)}, vcc']
        L += [f'v_max3_f32 {v(t)}, {v(S)}, {v(S+1)}, {v(S+2)}', f'v_max3_f32 {v(t)}, {v(t)}, {v(S+3)}, {v(S+4)}',
              f'v_max3_f32 {v(t)}, {v(t)}, {v(S+5)}, {v(S+6)}', f'v_max3_f32 {v(t)}, {v(t)}, {v(S+7)}, {v(M+q)}',
              f'v_mov_b32 {v(t+1)}, {v(t)}', 's_nop 1', f'v_permlane16_swap_b32 {v(t)}, {v(t+1)}', f'v_max_f32 {v(t)}, {v(t)}, {v(t+1)}',
              f'v_mov_b32 {v(t+1)}, {v(t)}', 's_nop 1', f'v_permlane32_swap_b32 {v(t)}, {v(t+1)}', f'v_max_f32 {v(t)}, {v(t)}, {v(t+1)}',
              f'v_sub_f32 {v(t+1)}, {v(M+q)}, {v(t)}', f'v_exp_f32 {v(t+1)}, {v(t+1)}', f'v_mov_b32 {v(M+q)}, {v(t)}']
        L += [f'v_sub_f32 {v(S+e)}, {v(S+e)}, {v(t)}' for e in range(8)]
        L += [f'v_exp_f32 {v(S+e)}, {v(S+e)}' for e in range(8)]
        L += [f'v_mul_f32 {v(LS+q)}, {v(LS+q)}, {v(t+1)}']
        L += [f'v_mul_f32 {v(O0+32*q+i)}, {v(O0+32*q+i)}, {v(t+1)}' for i in range(32)]
        L += [i_cvt(q, q, i) for i in range(4)]
        for i in range(4):
            L += [f'v_lshlrev_b32 {v(t)}, 16, {v(P0+8*q+i)}', f'v_and_b32 {v(t+1)}, 0xffff0000, {v(P0+8*q+i)}',
                  f'v_add_f32 {v(LS+q)}, {v(LS+q)}, {v(t)}', f'v_add_f32 {v(LS+q)}, {v(LS+q)}, {v(t+1)}']
        L += [pv(q, db, 0) for db in range(8)]
    L += [f's_add_u32 {s(sIT)}, {s(sIT)}, 32', f's_cmp_lt_u32 {s(sIT)}, {s(sCLT)}', 's_cbranch_scc1 L_slow_loop', 's_nop 7']
    for q in range(4):
        o = O0 + 32*q
        L += [f'v_mov_b32 {v(t)}, {v(LS+q)}', f'v_mov_b32 {v(t+1)}, {v(LS+q)}', 's_nop 1',
              f'v_permlane16_swap_b32 {v(t)}, {v(t+1)}', f'v_add_f32 {v(t)}, {v(t)}, {v(t+1)}',
              f'v_mov_b32 {v(t+1)}, {v(t)}', 's_nop 1', f'v_permlane32_swap_b32 {v(t)}, {v(t+1)}', f'v_add_f32 {v(t)}, {v(t)}, {v(t+1)}',
              f'v_rcp_f32 {v(t)}, {v(t)}', 's_nop 0']
        L += [f'v_mul_f32 {v(o+i)}, {v(o+i)}, {v(t)}' for i in range(32)]
        for u in range(4):
            L += [f'v_cvt_pk_bf16_f32 {v(o+8*u+i)}, {v(o+8*u+2*i)}, {v(o+8*u+2*i+1)}' for i in range(4)]
        for u in range(4):
            L += [f'v_permlane16_swap_b32 {v(o+8*u+i)}, {v(o+8*u+2+i)}' for i in range(2)]
        for u in range(4):
            L.append(f'buffer_store_dwordx4 {v(o+8*u,4)}, {v(OV)}, s[16:19], {"0" if q == 0 else s(sQ1+q-1)} offen offset:{64*u}')
    return L + ['s_endpgm']

DOC = '''; Paged-KV attention, one workgroup per CU: 256 query rows against one KV head, 4 waves x 64 rows, 64-key tiles.
;  * S^T = K.Q^T and O^T += V^T.P^T with v_mfma_f32_16x16x32_bf16 (P stays in registers, V via ds_read_b64_tr_b16),
;    row sums with one v_smfmac_f32_16x16x64_bf16 per 16 rows and tile.  Q is scaled once by log2(e)/sqrt(D).
;  * Softmax guard: the fast path uses 0 as stand-in for the row maximum.  Every row sum is checked at run time; if one
;    leaves [2^-40, 2^40] (or is not a number) the wave recomputes its rows in L_slow with the true running maximum.
;    L_slow also serves context lengths below 193.  context_lens <= 0 (all keys masked) gives the uniform average.
'''
NFIN = 0
def finish():
    global NFIN
    NFIN += 1
    L = [f'v_cmp_lt_u32 vcc, 0x28000000, {v(T0+4)}' if not OPT.get('abl') else 's_mov_b64 vcc, 0',
         f's_cmp_lg_u32 {s(sFORCE)}, 0', 's_cbranch_scc1 L_slow', 's_nop 3', 's_cbranch_vccnz L_slow']
    if OPT.get('twice'):
        L += ['s_cmp_eq_u32 s77, 0', f's_cbranch_scc1 L_fin{NFIN}', 's_sub_u32 s77, s77, 1', 's_waitcnt vmcnt(0) lgkmcnt(0)', 's_barrier',
              'v_mbcnt_lo_u32_b32 v0, -1, 0', 'v_mbcnt_hi_u32_b32 v0, -1, v0', f's_lshl_b32 {s(sT)}, {s(sW)}, 6', f'v_add_u32 v0, {s(sT)}, v0', 's_branch L_again', f'L_fin{NFIN}:']
    if OPT['stamp']:
        L += [f's_memtime s[40:41]', 's_waitcnt vmcnt(0)', 's_memtime s[42:43]', f's_memrealtime s[44:45]', 's_waitcnt lgkmcnt(0)']
        st = lambda i: sST + 2*i if i < 6 else 40 + 2*(i - 6)
        if OPT.get('fixed'):
            L += [f's_mov_b32 {s(sT+4)}, {OPT["fixed"]}']
            if OPT.get('xcc'):
                L += [f's_getreg_b32 {s(sT+5)}, hwreg(HW_REG_XCC_ID, 0, 4)', f's_sub_u32 {s(sT+5)}, {s(sT+5)}, s2', f's_and_b32 {s(sT+5)}, {s(sT+5)}, 7']
                if OPT['xcc'] == 2: L += [f's_sub_u32 {s(sT+5)}, 7, {s(sT+5)}']
                L += [f's_mul_i32 {s(sT+5)}, {s(sT+5)}, 500', f's_add_u32 {s(sT+4)}, {s(sT+4)}, {s(sT+5)}']
            if OPT.get('phase'):
                L += [f's_sub_u32 {s(sT+5)}, {s(st(OPT["phase"]))}, {s(st(OPT.get("phase0", 0)))}']
                if OPT.get('neg'): L += [f's_sub_u32 {s(sT+5)}, {OPT["neg"]}, {s(sT+5)}']
                L += [f's_lshr_b32 {s(sT+5)}, {s(sT+5)}, {OPT.get("sh", 3)}', f's_add_u32 {s(sT+4)}, {s(sT+4)}, {s(sT+5)}']
            return L + [f'L_spin{NFIN}:', f's_memrealtime {s(sT,2)}', 's_waitcnt lgkmcnt(0)', f's_sub_u32 {s(sT)}, {s(sT)}, s100',
                        f's_cmp_lt_u32 {s(sT)}, {s(sT+4)}', f's_cbranch_scc1 L_spin{NFIN}', 's_endpgm']
        L += ['s_load_dwordx2 s[24:25], s[0:1], 56', 's_waitcnt lgkmcnt(0)', 's_mov_b32 s26, 0x100000', 's_mov_b32 s27, 0x20000']
        L += [f'v_mov_b32 v{i}, {s(st(i))}' for i in range(8)]
        L += ['v_mov_b32 v8, s42', 'v_mov_b32 v9, s44', 'v_mov_b32 v10, s100', 'v_mov_b32 v11, 0',
              f's_lshl_b32 {s(sT)}, s2, 2', f's_add_u32 {s(sT)}, {s(sT)}, {s(sW)}', f's_lshl_b32 {s(sT)}, {s(sT)}, 6',
              'v_mov_b32 v12, 0', 's_mov_b64 exec, 1',
              f'buffer_store_dwordx4 v[0:3], v12, s[24:27], {s(sT)} offen',
              f'buffer_store_dwordx4 v[4:7], v12, s[24:27], {s(sT)} offen offset:16',
              f'buffer_store_dwordx4 v[8:11], v12, s[24:27], {s(sT)} offen offset:32']
    return L + ['s_endpgm']

def sizes(L):
    import subprocess, re, tempfile, os
    d = tempfile.mkdtemp()
    open(d + '/a.s', 'w').write('.amdgcn_target "amdgcn-amd-amdhsa--gfx950"\n.text\n' + '\n'.join(l for l in L if not l.startswith('.')) + '\n')
    subprocess.check_call(['clang', '-x', 'assembler', '-target', 'amdgcn-amd-amdhsa', '-mcpu=gfx950', '-c', d + '/a.s', '-o', d + '/a.o'])
    out = subprocess.check_output(['llvm-objdump', '-d', '--mcpu=gfx950', d + '/a.o']).decode()
    sz = [4 * len(m.group(1).split()) for m in re.finditer(r'// [0-9A-F]+: ([0-9A-F ]+)', out)]
    it = iter(sz)
    return [next(it) if Ins(l).states else 0 for l in L]

def add_walk(L):
    sz = sizes(L); ins = parse(L)
    regions = [(L.index('L_walk:') + 1, L.index('L_b1:') - 1), (L.index('L_tail:'), L.index('L_pfend:') - 8)]
    pads = []
    for lo, hi in regions:
        acc = OPT['wsp'] - 64 if lo == regions[0][0] else OPT['wsp']; best = None
        for i in range(lo, hi):
            acc += sz[i]
            if acc >= OPT['wsp'] - 64 and ins[i].states and ins[i].cls != 'br' and not L[i].startswith(('s_cmp', 's_waitcnt')):
                cost = 0 if ins[i].cls == 'mfma' and ins[i+1].cls == 'mfma' else 2 if ins[i+1].cls == 'mfma' else 3
                if best is None or cost <= best[0]: best = (cost, i, acc)
            if acc >= OPT['wsp'] and best:
                pads.append(best[1]); acc -= best[2]; best = None
    n = len(pads); cut = [n * w // 4 for w in range(5)]
    out = []
    for i, l in enumerate(L):
        if l == 'L_walk:':
            out += ['s_mov_b64 vcc, -1']
            for w in range(3): out += [f's_cmp_eq_u32 {s(sW)}, {w}', f's_cbranch_scc1 L_pad{cut[w]}']
            out += [f's_branch L_pad{cut[3]}', 'L_ret:', 's_mov_b64 vcc, 0']
            continue
        out.append(l)
        if i in pads:
            k = pads.index(i)
            out += [f'L_pad{k}:', f's_cbranch_vccnz {"L_ret" if k + 1 in cut else f"L_pad{k+1}"}']
    print('pads', n)
    return out

def main():
    pro, pro2, pend0 = prologue()
    loop, pend = loop_code()
    assert [x[0] for x in pend0] == [x[0] for x in pend], (pend0, pend)
    L = [f'{NAME}:'] + pro + loop
    L += ['L_tail:'] + stamp(5) + [f's_cmp_gt_u32 {s(sNKB)}, 1', 's_cbranch_scc1 L_tail234']
    L += tail(1, pend) + finish() + ['L_pfend:']
    L += ['L_tail234:', f's_cmp_eq_u32 {s(sNKB)}, 3', 's_cbranch_scc1 L_tail3', f's_cmp_eq_u32 {s(sNKB)}, 4', 's_cbranch_scc1 L_tail4']
    L += tail(2, pend) + finish() + ['L_tail3:'] + tail(3, pend) + finish() + ['L_tail4:'] + tail(4, pend) + finish()
    L += pro2 + slow() + ['L_end:', 's_endpgm']
    L, nn = fix_hazards(L, verbose=OPT.get('verbose', 0))
    if OPT['walk']: L = add_walk(L)
    sz = sizes(L)
    assert sum(sz[L.index('L_pc:'):]) > 32768 + 64 if OPT['cpf'] else True
    print('bytes up to the last Q0 load:', sum(sz[:max(i for i, l in enumerate(L) if l.endswith('ld Q0')) + 1]), ' executed code:', sum(sz[:L.index('L_pfend:')]))
    print('nop states inserted:', nn, ' leftovers:', sorted(LEFT3))
    hdr = open('standalone__paged_block_table_kv_pagedattention__prompt.s.ref').read().split('; Override')[0]
    txt = hdr + DOC + '; Generated by gen/gen2.py (own generator script).\n'
    txt += '; @launch grid=(256,1,1) block=(256,1,1) lds=163840\n'
    txt += f'.amdgcn_target "amdgcn-amd-amdhsa--gfx950"\n.text\n.globl {NAME}\n.p2align 8\n.type {NAME},@function\n'
    for l in L: txt += (l if l.endswith(':') or l.startswith(('.', ';')) else '    ' + l) + '\n'
    txt += f'''.section .rodata,"a"
.p2align 6
.amdhsa_kernel {NAME}
  .amdhsa_next_free_vgpr 504
  .amdhsa_next_free_sgpr 102
  .amdhsa_accum_offset 256
  .amdhsa_group_segment_fixed_size 0
  .amdhsa_kernarg_size 64
  .amdhsa_user_sgpr_count 2
  .amdhsa_user_sgpr_kernarg_segment_ptr 1
  .amdhsa_system_sgpr_workgroup_id_x 1
.end_amdhsa_kernel
'''
    open(sys.argv[1], 'w').write(txt)
    if OPT.get('show'):
        for g in range(NG): print(g, PAT[g])
main()
```

```python
import sys
from asmcheck import parse, fix_hazards, Ins

NAME = 'standalone__paged_block_table_kv_pagedattention__prompt_kernel'
FL = {0: '', 1: ' nt', 2: ' sc1', 3: ' sc0 sc1', 4: ' sc1 nt', 5: ' sc0 sc1 nt', 6: ' sc0', 7: ' sc0 nt'}
OPT = dict(po=26, cpf=1, qf=0, kf=2, of=2, delta=9, stamp=0, lat=8, forceslow=0, tord=2, epri=12, ep=0, ssp=4, tv=4, edl=4, ttu=2, walk=0, wsp=224, pkd=6, touch=0, snake=1, stag=1)
for a_ in sys.argv[2:]:
    k_, v_ = a_.split('='); OPT[k_] = int(v_, 0)

S0, P0, KA, VA, BT, DK, DV, IDX, OV, MK, T0, O0 = 0, 64, 96, 100, 108, 112, 113, 114, 115, 116, 120, 128
QD, QA = P0 + 24, P0 + 28
KA0, VA0 = O0, S0 + 52
EW, ER, EG = T0 + 5, T0 + 6, T0 + 7
aQ, aK, aV, aL, aONE, aX = 0, 64, 128, 192, 208, 212
sW, sCL, sN, sIT, sLN = 3, 36, 37, 38, 39
SETS = (56, 60)
sMK, sMV, sC, sC2, sNKB, sE, sFORCE, sCLT = 64, 65, 66, 67, 68, 69, 70, 71
sNP = 75
sQ1 = 72
sSL = 96
sT = 78
sST = 84
KBYTES = 132 * 65536
LAT = OPT['lat']
NEG = 0xf149f2ca
INF = 10 ** 6
MINCL = 193

def v(b, n=1): return f'v{b}' if n == 1 else f'v[{b}:{b+n-1}]'
def a(b, n=1): return f'a{b}' if n == 1 else f'a[{b}:{b+n-1}]'
def s(b, n=1): return f's{b}' if n == 1 else f's[{b}:{b+n-1}]'
def VR(b, n=1): return {('v', i) for i in range(b, b + n)}
def AR(b, n=1): return {('a', i) for i in range(b, b + n)}

MF = 'v_mfma_f32_16x16x32_bf16'
def kord(f):
    return f // 4, (3 - f % 4 if OPT['snake'] and (f // 4) % 2 else f % 4)
def qk(q, f, sb=None, kbase=aK, mask=False):
    kb, ks = kord(f)
    D = v(S0 + 16*(q if sb is None else sb) + 4*kb, 4)
    C = D if f % 4 else (v(MK, 4) if mask else '0')
    return f'{MF} {D}, {a(kbase+16*kb+4*ks,4)}, {a(aQ+16*q+4*ks,4)}, {C}'
def vfrag(db, ks, vbase):
    if vbase == 'ov': return aX + 16 + 2*db
    return aV + (2*db+ks)*4 if vbase is None else vbase + 4*db
def pv(q, db, ks, pb=None, vbase=None, first=False):
    D = v(O0 + 32*q + 4*db, 4)
    return f'{MF} {D}, {a(vfrag(db, ks, vbase),4)}, {v(P0+8*(q if pb is None else pb)+4*ks,4)}, {"0" if first and ks == 0 else D}'
def sm(q, pb=None):
    return f'v_smfmac_f32_16x16x64_bf16 {a(aL+4*q,4)}, {a(aONE,4)}, {v(P0+8*(q if pb is None else pb),8)}, {v(IDX)}'
def qkg(q, nkb=4, sb=None, kbase=aK, mask=False):
    return [qk(q, f, sb, kbase, mask and f // 4 == nkb-1) for f in range(4 * nkb)]
def pvg(q, pb=None, first=False): return [pv(q, db, ks, pb, None, first) for db in range(8) for ks in range(2)] + [sm(q, pb)]

def i_exp(sb, n): return f'v_exp_f32 {v(S0+16*sb+n)}, {v(S0+16*sb+n)}'
def i_cvt(sb, pb, i): return f'v_cvt_pk_bf16_f32 {v(P0+8*pb+i)}, {v(S0+16*sb+2*i)}, {v(S0+16*sb+2*i+1)}'
def i_kread(kb, ks, slot, tag, kbase=aK, addr=KA):
    return f'ds_read_b128 {a(kbase+16*kb+4*ks,4)}, {v(addr+ks)} offset:{slot*16384+kb*1024}'
def i_vread(db, ks, t, slot, tag, vbase=None, addr=VA):
    return f'ds_read_b64_tr_b16 {a(vfrag(db, ks, vbase)+2*t,2)}, {v(addr+db)} offset:{slot*16384+(2*ks+t)*1024}'
def i_dma(isv, i, soff, tag):
    return f'buffer_load_dwordx4 {v(DV if isv else DK)}, {s(12 if isv else 8,4)}, {s(soff+i)} offen offset:{i*1024}{FL[OPT["kf"]]} lds'
def i_m0(isv, slot): return f's_add_u32 m0, {s(sMV if isv else sMK)}, {slot*16384}'
def stamp(i): return [f's_memtime {s(sST+2*i,2)}'] if OPT['stamp'] and not (OPT.get('wb') and 1 <= i <= 4) else []

class Op:
    def __init__(self, key, cls, rel, dl, text, deps=(), fifo=None, pri=None):
        self.key, self.cls, self.rel, self.dl, self.text, self.deps, self.fifo = key, cls, rel, dl, text, list(deps), fifo
        self.pri = dl if pri is None else pri
        self.gap = None
class Gap:
    def __init__(self): self.sc, self.mem, self.valu, self.post = [], [], [], []; self.block = None

def schedule(ngaps, ops, gaps, overflow=False):
    byk = {o.key: o for o in ops}
    todo = list(ops)
    def ready(o, g):
        if o.rel > g: return False
        for d in o.deps:
            p = byk.get(d)
            if p is not None and (p.gap is None or p.gap >= g): return False
        if o.fifo is not None:
            p = byk[o.fifo]
            if p.gap is None or (o.cls in 'DRT' and p.cls not in 'RT' and p.gap >= g): return False
            if o.cls == 'D' and p.cls == 'R' and p.gap + LAT > g: return False
            if o.cls == 'D' and p.cls == 'D' and p.gap + OPT['ssp'] > g: return False
        return True
    def put(o, g):
        o.gap = g; todo.remove(o)
        (gaps[g].mem if o.cls in 'DRT' else gaps[g].valu).append(o)
    for g in range(ngaps):
        if gaps[g].block != 'all':
            cand = sorted((o for o in todo if ready(o, g)), key=lambda o: o.pri)
            if gaps[g].block == 'half': cand = [o for o in cand if o.cls == 'H'][:1]
            if cand:
                top = cand[0]
                halves = [o for o in cand if o.cls in 'RTH']
                full = [o for o in cand if o.cls in 'ED']
                if top.cls in 'RTH' and len(halves) == 1 and full and top.pri - g > 6 and top.fifo is None: top = full[0]
                put(top, g)
                if top.cls in 'RTH' and gaps[g].block != 'half':
                    c2 = sorted((o for o in todo if o.cls in 'RTH' and ready(o, g) and not (o.cls == 'R' and top.cls == 'R')), key=lambda o: o.pri)
                    if c2:
                        pick = c2[0]
                        busy = g > 0 and len(gaps[g-1].mem) > 1
                        if top.cls in 'RT' and pick.cls in 'RT' and (pick.pri - g > 8 or (busy and pick.pri - g > OPT['ttu'])):
                            h = [o for o in c2 if o.cls == 'H']
                            if h: pick = h[0]
                            elif busy and pick.pri - g > OPT['ttu']: pick = None
                        if pick: put(pick, g)
        late = [o for o in todo if o.dl <= g]
        if late:
            if not overflow: raise RuntimeError(f'deadline miss at gap {g}: {[o.key for o in late]}')
            def force(o):
                if o.gap is not None: return
                for d in o.deps + ([o.fifo] if o.fifo else []):
                    if d in byk: force(byk[d])
                assert o.rel <= g, (o.key, o.rel, g)
                o.gap = g; todo.remove(o)
                if o.cls in 'RT' and o.fifo is None and gaps[g].block != 'all': gaps[g].mem.append(o)
                else: gaps[g].post.append(o.text)
            for o in sorted(late, key=lambda o: (o.fifo is not None, {'R': 0, 'T': 0, 'D': 0, 'E': 1, 'H': 2}[o.cls], o.dl)): force(o)
    return todo

def emit(mf, gaps):
    out = []
    for m, g in zip(mf, gaps):
        out.append(m)
        sc = list(g.sc)
        if any(o.text.startswith('buffer_load') for o in g.mem) and not sc: sc = ['s_nop 0']
        out += sc + [o.text for o in g.mem] + [o.text for o in g.valu] + g.post
    return out

def add_lgkm_waits(lines, pre_ds=()):
    q = [(set(r), -age) for r, age in pre_ds]
    out = []; gap = -1; lastm = None; nvis = None
    for x in parse(lines):
        if x.cls == 'mfma':
            needed = [i for i, (r, g) in enumerate(q) if r & x.r]
            if needed:
                k = max(needed)
                if lastm is not None and k < nvis:
                    while k + 1 < nvis and q[k + 1][1] <= gap - LAT: k += 1
                    n = min(15, nvis - 1 - k)
                    if out[lastm:lastm+1] == ['s_nop 0']: out[lastm] = f's_waitcnt lgkmcnt({n})'
                    else: out.insert(lastm, f's_waitcnt lgkmcnt({n})')
                    k = nvis - 1 - n
                else:
                    n = min(15, len(q) - 1 - k)
                    out.append(f's_waitcnt lgkmcnt({n})')
                    k = len(q) - 1 - n
                q = q[k + 1:]
            gap += 1
            out.append(x.text); lastm = len(out); nvis = len(q)
        else:
            if x.cls == 'vmem':
                needed = [i for i, (r, g) in enumerate(q) if r & x.r]
                if needed:
                    n = min(15, len(q) - 1 - max(needed)); drop = len(q) - n
                    out.append(f's_waitcnt lgkmcnt({n})'); q = q[drop:]
                    if nvis is not None: nvis = max(0, nvis - drop)
            if x.cls == 'ds': q.append((set(x.w), gap))
            if x.cls == 'wait' and x.lgkm is not None:
                drop = max(0, len(q) - x.lgkm); q = q[drop:]
                if nvis is not None: nvis = max(0, nvis - drop)
            out.append(x.text)
    return out, [(r, gap - g) for r, g in q]

class Prog:
    def __init__(self): self.mf = []; self.ops = []; self.pos = {}
    def group(self, name, mf): self.pos[name] = len(self.mf); self.mf += mf
    def done(self):
        self.ins = [Ins(m) for m in self.mf]; self.n = len(self.mf); self.gaps = [Gap() for _ in self.mf]
    def first_read(self, R, lo): return next((i for i in range(lo, self.n) if R & self.ins[i].srcAB), INF)
    def last_read(self, R, hi): return next((i for i in range(min(hi, self.n) - 1, -1, -1) if R & self.ins[i].srcAB), -1)
    def last_write(self, R, hi): return next((i for i in range(min(hi, self.n) - 1, -1, -1) if R & self.ins[i].w), -1)
    def next_write(self, R, lo): return next((i for i in range(lo, self.n) if R & self.ins[i].w), INF)
    def kload(self, key, use, slot, tag, nkb=4, kbase=aK, addr=KA, rel0=0, dlmax=None):
        for f in range(4 * nkb):
            kb, ks = kord(f)
            R = AR(kbase + 16*kb + 4*ks, 4)
            u = self.first_read(R, use) if use < self.n else self.n + f
            rel = min(self.n - 1, max(rel0, self.last_read(R, u) + 1))
            dl = u - LAT if dlmax is None else min(u - LAT, dlmax - (4*nkb - 1 - f))
            self.ops.append(Op((key, f), 'R', rel, max(rel, dl), i_kread(kb, ks, slot, tag, kbase, addr), deps=[(key, f-1)] if f else []))
    def vload(self, key, use, slot, tag, nks=2, vbase=None, addr=VA, rel0=0):
        for db in range(8):
            for ks in range(nks):
                R = AR(vfrag(db, ks, vbase), 4)
                u = self.first_read(R, use)
                rel = max(rel0, self.last_read(R, u) + 1)
                for t in range(2):
                    if vbase == 'ov' and t == 1 and db < 7: continue
                    self.ops.append(Op((key, db, ks, t), 'T', rel, max(rel, u - LAT - (1 - t)), i_vread(db, ks, t, slot, tag, vbase, addr)))
    def softmax(self, key, at, sb, pb, nkb=4, only=None, skip=(), dlcap=None, use=0, lastrel=INF, zero=True):
        end = at + 4*nkb if at >= 0 else 0
        u = self.first_read(VR(P0 + 8*pb, 8), max(end, use))
        prel = min(self.last_read(VR(P0 + 8*pb, 8), u) + 1, u - 1)
        cap = min(u - 3, self.next_write(VR(S0 + 16*sb, 16), end) - 1, self.n - 1 if dlcap is None else dlcap)
        n = 4 * nkb; edl = {}
        for e in range(n):
            if (only is not None and ('e', e) not in only) or ('e', e) in skip: continue
            rel = min(lastrel, at + 4*(e//4) + 3 + 5) if at >= 0 else 0
            edl[e] = min(max(rel, cap - 1 - 2*(n - 1 - e), min(cap - 1, rel + e % 4)), max(rel, cap))
            self.ops.append(Op((key, 'e', e), 'E', rel, edl[e], i_exp(sb, e)))
        for i in range(2 * nkb):
            if (only is not None and ('c', i) not in only) or ('c', i) in skip: continue
            rel = max(prel, min(lastrel, at + 4*(i//2) + 3 + 6) if at >= 0 else 0)
            self.ops.append(Op((key, 'c', i), 'H', rel, max(rel, cap - (2*nkb - 1 - i), min(cap, edl.get(2*i+1, 0) + 1)), i_cvt(sb, pb, i),
                               deps=[(key, 'e', 2*i), (key, 'e', 2*i+1)]))
            assert rel <= u - 1, (key, i, rel, u)
        if only is None and zero:
            for i in range(2 * nkb, 8):
                self.ops.append(Op((key, 'z', i), 'H', prel, max(prel, u - 3), f'v_mov_b32 {v(P0+8*pb+i)}, 0'))

NG = 132
LOOP_MF = qkg(0) + pvg(2) + qkg(1) + pvg(3) + qkg(2) + pvg(0) + qkg(3) + pvg(1)
assert len(LOOP_MF) == NG
BARG = OPT.get('barg', 47)
DMAG = [10, 14, 18, 22, 26, 30, 34, 38]
RLG = [41, 43, 92, 96] if BARG not in (41, 43) else [45, 47, 92, 96]

def steady(DMAG, RLG, sh0):
    NT = 6
    ops = []
    gaps = [Gap() for _ in range(NG * (NT + 1))]
    for j in range(NT):
        b = NG * j
        for q in range(4):
            pvs = b + 82 + 33*q; qs = b + 33*q
            for e in range(16):
                g = qs + OPT['delta'] + 2*e + (sh0 if q == 0 else 0)
                ops.append(Op(('e', j, q, e), 'E', g, g, None))
            for i in range(8):
                ops.append(Op(('c', j, q, i), 'H', pvs - NG + 17, pvs - 3 - (7 - i), None, deps=[('e', j, q, 2*i), ('e', j, q, 2*i+1)]))
        for f in range(16):
            for t in range(2):
                ops.append(Op(('v', j, f//2, f%2, t), 'T', max(b + 50 + f, b + BARG + 1), b + 82 + f - LAT - (1 - t), None))
            ops.append(Op(('k', j, f//4, f%4), 'R', b + 100 + f, min(b + NG - 2 - (15 - f), b + NG + f - LAT), None,
                          deps=[('k', j, (f-1)//4, (f-1)%4)] if f else []))
        for i in range(4): ops.append(Op(('rl', j, i), 'E', b + RLG[i], b + RLG[i], None))
        for i in range(8): ops.append(Op(('d', j, i), 'D', b + DMAG[i], b + DMAG[i], None))
        gaps[b + BARG].block = 'all'
        gaps[b + NG - 1].block = 'half'
    schedule(NG * (NT + 1), ops, gaps)
    def pattern(j):
        return [[(o.key[0], o.key[1] - j) + o.key[2:] for o in gaps[NG*j + g].mem + gaps[NG*j + g].valu] for g in range(NG)]
    assert pattern(3) == pattern(4), 'no steady state'
    return pattern(3)
NCOPY = {0: 1, 1: 2, 2: 2, 4: 4}[OPT['stag']]
VARS = []
for ph in (0, 2, 1, 3)[:NCOPY]:
    dg = [g + ph for g in DMAG]; rg = RLG if ph < 3 else [43, 45, 92, 96]
    VARS.append((steady(dg, rg, ph & 1), dg, rg))
PAT = VARS[0][0]
assert all({k for g in V[0] for k in g if k[1] == -1} == {k for g in PAT for k in g if k[1] == -1} for V in VARS)
LEFT = {k for g in PAT for k in g if k[1] == -1}
assert all(k[0] in 'ec' and k[2] == 3 for k in LEFT), LEFT
LEFT3 = {(k[0], k[3]) for k in LEFT}
HEADWAIT = 's_waitcnt lgkmcnt(4)'

class Txt:
    def __init__(self, t): self.text = t

def body(sl, w=0):
    PAT, DMAG, RLG = VARS[w]
    def text(k):
        if k[0] == 'e': return i_exp(k[2], k[3])
        if k[0] == 'c': return i_cvt(k[2], k[2], k[3])
        if k[0] == 'v': return i_vread(k[2], k[3], k[4], sl, '+0')
        if k[0] == 'k': return i_kread(*kord(4*k[2] + k[3]), (sl + 1) % 4, '+1')
        if k[0] == 'rl': return f'v_readlane_b32 {s(SETS[sl%2] + k[2])}, {v(BT+k[2])}, {s(sLN)}'
        if k[0] == 'd': return i_dma(1, k[2], SETS[sl % 2], '+2') if k[2] < 4 else i_dma(0, k[2] - 4, SETS[(sl + 1) % 2], '+3')
    gaps = [Gap() for _ in range(NG)]
    for g in range(NG):
        for k in PAT[g]: (gaps[g].mem if k[0] in 'vkd' else gaps[g].valu).append(Txt(text(k)))
    gaps[DMAG[0] - 2].sc.append(i_m0(1, (sl + 2) % 4))
    gaps[DMAG[4] - 2].sc.append(i_m0(0, (sl + 3) % 4))
    gaps[RLG[-1] + 2].sc.append(f's_add_u32 {s(sLN)}, {s(sLN)}, 1')
    gaps[BARG - OPT.get('vmo', 1)].sc.append('s_waitcnt vmcnt(16)')
    gaps[BARG].sc.append('s_barrier')
    if sl == 0: gaps[NG - 3].sc.append(f's_sub_u32 {s(sIT)}, {s(sIT)}, 1')
    gaps[NG - 2].sc.append(HEADWAIT)
    lines = emit(LOOP_MF, gaps)
    ab = OPT.get('abl', 0)
    if ab & 1: lines = [l for l in lines if not l.startswith('buffer_load')]
    if ab & 2: lines = [l for l in lines if not l.startswith(('s_barrier', 's_waitcnt vmcnt'))]
    if ab & 32: lines = [l for l in lines if not l.startswith('s_barrier')]
    return lines

def dispatch(w):
    x = 'bcde'[w]
    return [f's_cmp_eq_u32 {s(sE)}, 2', f's_cbranch_scc1 L_{x}3', f's_cmp_eq_u32 {s(sE)}, 1', f's_cbranch_scc1 L_{x}2',
            f's_cmp_eq_u32 {s(sE)}, 3', f's_cbranch_scc1 L_{x}0', f's_cmp_eq_u32 {s(sNP)}, 4', 's_cbranch_scc1 L_tail']
def wave_select():
    if NCOPY == 1: return []
    if NCOPY == 2: return [f's_bitcmp1_b32 {s(sW)}, {OPT["stag"] - 1}', 's_cbranch_scc1 L_w1']
    return [x for w in (1, 2, 3) for x in (f's_cmp_eq_u32 {s(sW)}, {w}', f's_cbranch_scc1 L_w{w}')]
def loop_copy(w, pend):
    x = 'bcde'[w]
    out = [f'L_w{w}:'] + dispatch(w) + ['.p2align 6']
    for sl in (1, 2, 3, 0):
        l, pend2 = add_lgkm_waits(body(sl, w), pend)
        assert [x_[0] for x_ in pend2] == [x_[0] for x_ in pend]
        out += [f'L_{x}{sl}:'] + l
    return out + [f's_cbranch_scc0 L_{x}1', 's_branch L_tail']

def loop_code():
    _, pend = add_lgkm_waits(body(1))
    out = ['s_branch L_b1', 'L_padA:', 's_branch L_ret'] if OPT['touch'] else []
    out += ['.p2align 6']
    for sl in (1, 2, 3, 0):
        l, pend2 = add_lgkm_waits(body(sl), pend)
        assert [x[0] for x in pend2] == [x[0] for x in pend]
        out += [f'L_b{sl}:']
        if OPT.get('its'):
            for k in range(3):
                out += [f's_cmp_eq_u32 {s(sLN)}, {OPT["its"] + k * OPT.get("itd", 1)}', f's_cbranch_scc0 L_sk{sl}{k}', f's_mem{"real" if OPT.get("rt") else ""}time {s(sST+2+2*k,2)}', f'L_sk{sl}{k}:']
        out += l
        if OPT['touch'] and sl == 2: out += ['L_padB:', 's_cbranch_vccnz L_ret']
    return out + ['s_cbranch_scc0 L_b1'], pend

def epi_list(q, first):
    t = T0 + 2 * (q & 1)
    o = O0 + 32*q
    L = [('H', f'v_accvgpr_read_b32 {v(t)}, {a(aL+4*q)}', -1),
         ('H', f'v_accvgpr_read_b32 {v(t+1)}, {a(aL+4*q+1)}', -1),
         ('H', f'v_add_f32 {v(t)}, {v(t)}, {v(t+1)}', -1),
         ('E', f'v_rcp_f32 {v(t+1)}, {v(t)}', -1),
         ('H', f'v_subrev_u32 {v(t)}, 0x2b800000, {v(t)}', -1),
         ('H', f'v_mov_b32 {v(T0+4)}, {v(t)}' if first else f'v_max_u32 {v(T0+4)}, {v(T0+4)}, {v(t)}', -1)]
    def muls(u): return [('M', (o + 8*u + i, t + 1), u) for i in range(8)]
    def cvts(u): return [('H', f'v_cvt_pk_bf16_f32 {v(o+8*u+i)}, {v(o+8*u+2*i)}, {v(o+8*u+2*i+1)}', u) for i in range(4)]
    def swaps(u): return [('E', f'v_permlane16_swap_b32 {v(o+8*u+i)}, {v(o+8*u+2+i)}', u) for i in range(2)]
    def store(u):
        return [('D', f'buffer_store_dwordx4 {v(o+8*u,4)}, {v(OV)}, s[16:19], {"0" if q == 0 else s(sQ1+q-1)} offen offset:{64*u}{FL[OPT.get(f"of{q}", OPT["of"])]}', u)]
    if OPT['ep']:
        def writes(u): return [('T', f'ds_write_b64 {v(EW)}, {v(o+8*u+2*i,2)} offset:{64*u+32*i}', u) for i in range(2)]
        for u in range(4): L += muls(u) + cvts(u) + writes(u)
        L += [('R', f'ds_read_b128 {v(o+8*p+4,4)}, {v(ER)} offset:{1088*p}', 3) for p in range(4)]
        L += [('D', f'buffer_store_dwordx4 {v(o+8*p+4,4)}, {v(EG)}, s[16:19], {"0" if q == 0 else s(sQ1+q-1)} offen offset:{1024*p}{FL[OPT.get(f"of{q}", OPT["of"])]}', 3) for p in range(4)]
        return L
    h = lambda l, a_, b_: l[a_:b_]
    L += muls(0) + cvts(0) + h(muls(1), 0, 2) + swaps(0) + store(0) + h(muls(1), 2, 8) + cvts(1) + h(muls(2), 0, 2) + swaps(1) + store(1) \
       + h(muls(2), 2, 8) + cvts(2) + h(muls(3), 0, 2) + swaps(2) + store(2) + h(muls(3), 2, 8) + cvts(3) + [('H', 's_nop 1', 3)] + swaps(3) + store(3)
    return L

def final(q, items):
    return [sm(q, pb) for pb, vb, nk in items] + [pv(q, db, ks, pb, vb) for db in range(8) for pb, vb, nk in items for ks in range(nk)]

def tail_merged():
    P = Prog(); G = P.group
    k3 = lambda q, sb: qkg(q, 1, sb=sb, kbase=aX, mask=True)
    fin = lambda q, pb: final(q, [(q, None, 2), (pb, 'ov', 1)])
    G('q0', qkg(0)); G('p2', pvg(2)); G('p3', pvg(3)); G('r0', k3(0, 2)); G('r1', k3(1, 3)); G('q1', qkg(1))
    if OPT['tord'] == 0:
        G('f0', fin(0, 2)); G('q2', qkg(2)); G('r2', k3(2, 0)); G('f1', fin(1, 3)); G('q3', qkg(3)); G('r3', k3(3, 1))
    else:
        G('f0', fin(0, 2)); G('r2', k3(2, 0)); G('q2', qkg(2)); G('f1', fin(1, 3)); G('r3', k3(3, 1)); G('q3', qkg(3))
    G('f2', fin(2, 0)); G('f3', fin(3, 1))
    P.done(); p = P.pos
    bar2 = p['p3'] + 8
    P.softmax('left', -1, 3, 3, only=LEFT3)
    for q in range(4):
        P.softmax(f's{q}', p[f'q{q}'], q, q, use=p[f'f{q}'])
        P.softmax(f't{q}', p[f'r{q}'], (q + 2) % 4, (q + 2) % 4, 1, use=p[f'f{q}'])
    P.kload('k3', p['r0'], 2, 'T3', 1, kbase=aX, rel0=2); P.vload('v2', p['f0'], 1, 'T2', rel0=2)
    P.vload('v3', p['f0'], 2, 'T3', 1, 'ov', rel0=bar2 + 1)
    g = P.gaps
    g[0].sc.append('s_waitcnt vmcnt(8)'); g[1].sc.append('s_barrier'); g[1].block = 'all'
    g[bar2 - 1].sc.append('s_waitcnt vmcnt(4)'); g[bar2].sc.append('s_barrier'); g[bar2].block = 'all'
    return P

def tail_x():
    P = Prog(); G = P.group
    G('A1', qkg(0, sb=0)); G('A2', pvg(2)); G('A3', qkg(1, sb=1)); G('A4', pvg(3)); G('A5', qkg(0, sb=2))
    if OPT['tord'] < 2: G('A6', qkg(1, sb=3))
    G('A7', pvg(0, pb=0)); G('A8', pvg(1, pb=1)); G('A10', final(0, [(2, None, 2)]))
    if OPT['tord'] == 2: G('A6', qkg(1, sb=3))
    G('B1', qkg(2, sb=2)); G('A11', final(1, [(3, None, 2)])); G('B2', qkg(3, sb=3)); G('B3', qkg(2, sb=0))
    G('r3', qkg(3, 1, sb=1, kbase=aX, mask=True)); G('B4', pvg(2, pb=2)); G('B5', pvg(3, pb=3))
    if OPT['tord']:
        G('B8', final(2, [(0, None, 2)])); G('B6', qkg(3, sb=1)); G('x3', final(3, [(3, 'ov', 1)])); G('B9', final(3, [(1, None, 2)]))
    else:
        G('B6', qkg(3, sb=1)); G('B8', final(2, [(0, None, 2)])); G('B9', final(3, [(1, None, 2), (3, 'ov', 1)]))
    P.done(); p = P.pos
    bar2 = p['A5'] + 6
    P.softmax('left', -1, 3, 3, only=LEFT3)
    P.softmax('s10', p['A1'], 0, 0); P.softmax('s11', p['A3'], 1, 1); P.softmax('s20', p['A5'], 2, 2); P.softmax('s21', p['A6'], 3, 3)
    P.softmax('s12', p['B1'], 2, 2); P.softmax('s13', p['B2'], 3, 3); P.softmax('s22', p['B3'], 0, 0); P.softmax('s23', p['B6'], 1, 1)
    P.softmax('t3', p['r3'], 1, 3, 1, use=p['B8'])
    P.kload('k2', p['A5'], 2, 'T2', rel0=2); P.vload('v1', p['A7'], 1, 'T1', rel0=2); P.vload('v2', p['A10'], 2, 'T2', rel0=bar2 + 1)
    P.kload('k1b', p['B1'], 1, 'T1'); P.kload('k2b', p['B3'], 2, 'T2'); P.vload('v1b', p['B4'], 1, 'T1'); P.vload('v2b', p['B8'], 2, 'T2')
    g = P.gaps
    g[0].sc.append('s_waitcnt vmcnt(8)'); g[1].sc.append('s_barrier'); g[1].block = 'all'
    g[bar2 - 1].sc.append('s_waitcnt vmcnt(4)'); g[bar2].sc.append('s_barrier'); g[bar2].block = 'all'
    if OPT.get('otlb') == 2:
        P.ops.append(Op(('ot', 0), 'D', bar2 + 2, bar2 + 2, f'buffer_load_dword {v(BT)}, {v(OV)}, s[16:19], 0 offen sc1'))
    return P

def tail_pairs(nkb):
    nks = 1 if nkb <= 2 else 2
    small = nkb <= 2
    vx = aX if small else None
    P = Prog()
    G = P.group
    G('A1', qkg(0, sb=0)); G('A2', pvg(2)); G('A3', qkg(1, sb=1)); G('A4', pvg(3))
    G('A5', qkg(0, sb=2)); G('A6', qkg(1, sb=3)); G('A7', pvg(0, pb=0))
    if not small: G('A8', pvg(1, pb=1))
    G('A9a', qkg(0, nkb, sb=0, mask=True)); G('A9b', qkg(1, nkb, sb=1, mask=True))
    if small:
        G('A8', pvg(1, pb=1))
        G('A10', final(0, [(2, None, 2), (0, vx, 1)])); G('B1', qkg(2, sb=2)); G('A11', final(1, [(3, None, 2), (1, vx, 1)]))
        G('B2', qkg(3, sb=3)); G('B3', qkg(2, sb=0)); G('B4', pvg(2, pb=2))
        G('B7a', qkg(2, nkb, sb=2, kbase=aQ, mask=True)); G('B7b', qkg(3, nkb, sb=3, kbase=aQ, mask=True)); G('B5', pvg(3, pb=3))
        if OPT['tord']:
            G('B8', final(2, [(0, None, 2), (2, vx, 1)])); G('B6', qkg(3, sb=1))
            G('B9a', final(3, [(3, vx, 1)])); G('B9', final(3, [(1, None, 2)]))
        else:
            G('B6', qkg(3, sb=1))
            G('B8', final(2, [(0, None, 2), (2, vx, 1)])); G('B9', final(3, [(1, None, 2), (3, vx, 1)]))
    else:
        G('A10p', pvg(0, pb=2)); G('A11p', pvg(1, pb=3)); G('B1', qkg(2, sb=2))
        G('A10', final(0, [(0, None, 2)])); G('A11', final(1, [(1, None, 2)]))
        G('B2', qkg(3, sb=3)); G('B3', qkg(2, sb=0)); G('B4', pvg(2, pb=2)); G('B5', pvg(3, pb=3)); G('B6', qkg(3, sb=1))
        G('B8p', pvg(2, pb=0)); G('B7a', qkg(2, nkb, sb=2, mask=True)); G('B9p', pvg(3, pb=1)); G('B7b', qkg(3, nkb, sb=3, mask=True))
        G('B8', final(2, [(2, None, 2)])); G('B9', final(3, [(3, None, 2)]))
    P.done(); p = P.pos
    bar2 = p['A6'] + 10
    P.softmax('left', -1, 3, 3, only=LEFT3)
    P.softmax('s10', p['A1'], 0, 0); P.softmax('s11', p['A3'], 1, 1); P.softmax('s20', p['A5'], 2, 2); P.softmax('s21', p['A6'], 3, 3)
    P.softmax('s30', p['A9a'], 0, 0, nkb); P.softmax('s31', p['A9b'], 1, 1, nkb, use=p['A10'])
    P.softmax('s12', p['B1'], 2, 2); P.softmax('s13', p['B2'], 3, 3); P.softmax('s22', p['B3'], 0, 0); P.softmax('s23', p['B6'], 1, 1)
    P.softmax('s32', p['B7a'], 2, 2, nkb); P.softmax('s33', p['B7b'], 3, 3, nkb, use=p['B8'])
    P.kload('k2', p['A5'], 2, 'T2', rel0=2); P.vload('v1', p['A7'], 1, 'T1', rel0=2)
    P.kload('k3', p['A9a'], 3, 'T3', nkb, rel0=bar2 + 1)
    P.kload('k1b', p['B1'], 1, 'T1'); P.kload('k2b', p['B3'], 2, 'T2'); P.vload('v1b', p['B4'], 1, 'T1')
    if small:
        P.vload('v2', p['A10'], 2, 'T2', rel0=bar2 + 1); P.vload('v3', p['A10'], 3, 'T3', 1, vx, rel0=bar2 + 1)
        P.kload('k3b', p['B7a'], 3, 'T3', nkb, kbase=aQ); P.vload('v2b', p['B8'], 2, 'T2')
    else:
        P.vload('v2', p['A10p'], 2, 'T2', rel0=bar2 + 1); P.vload('v3', p['A10'], 3, 'T3')
        P.kload('k3b', p['B7a'], 3, 'T3', nkb); P.vload('v2b', p['B8p'], 2, 'T2'); P.vload('v3b', p['B8'], 3, 'T3')
    for i in range(4):
        P.ops.append(Op(('d', i), 'D', 10 + 4*i, 11 + 4*i, i_dma(1, i, SETS[1], 'T3')))
    g = P.gaps
    g[0].sc.append('s_waitcnt vmcnt(8)'); g[1].sc.append('s_barrier'); g[1].block = 'all'
    g[8].sc.append(i_m0(1, 3))
    g[bar2 - 1].sc.append('s_waitcnt vmcnt(0)'); g[bar2].sc.append('s_barrier'); g[bar2].block = 'all'
    return P

def tail(nkb, pend):
    P = {3: tail_merged, 4: tail_x}[OPT['tv']]() if nkb == 1 and OPT['tv'] >= 3 else tail_pairs(nkb)
    p = P.pos
    prev = None
    if OPT['ep']:
        t = T0
        setup = [f'v_mbcnt_lo_u32_b32 {v(t)}, -1, 0', f'v_mbcnt_hi_u32_b32 {v(t)}, -1, {v(t)}',
                 f'v_and_b32 {v(t+1)}, 15, {v(t)}', f'v_lshrrev_b32 {v(t+2)}, 4, {v(t)}',
                 f'v_mul_u32_u24 {v(EW)}, 272, {v(t+1)}', f'v_lshl_add_u32 {v(EW)}, {v(t+2)}, 3, {v(EW)}',
                 f'v_mul_u32_u24 {v(ER)}, 272, {v(t+2)}', f'v_lshl_add_u32 {v(ER)}, {v(t+1)}, 4, {v(ER)}',
                 f'v_add_u32 {v(EW)}, {s(sT+3)}, {v(EW)}', f'v_add_u32 {v(ER)}, {s(sT+3)}, {v(ER)}',
                 f'v_lshlrev_b32 {v(EG)}, 4, {v(t)}', f'v_add_u32 {v(EG)}, {s(sT+4)}, {v(EG)}']
        for i, x in enumerate(setup):
            o = Op(('su', i), 'H', 24, INF, x, fifo=prev, pri=100 + i); prev = o.key; P.ops.append(o)
    for q in range(4):
        lrel = P.last_write(AR(aL + 4*q, 4), INF) + 5
        nst = 0
        for i, (c, t, u) in enumerate(epi_list(q, q == 0)):
            rel = lrel if u < 0 else max(lrel, P.last_write(VR(O0 + 32*q + 8*u, 8), INF) + 5)
            fin = P.last_write(VR(O0 + 32*q, 32), INF) + 5
            edl = OPT.get(f'edl{q}', OPT.get('edl', INF))
            nst += c == 'D'
            dl = INF if edl >= INF else fin + edl + (LAT + OPT['ssp'] * (nst - 1) if c == 'D' and OPT['ep'] else 0)
            o = Op(('ep', q, i), {'M': 'H'}.get(c, c), rel, dl if dl < P.n - 1 else INF, f'v_mul_f32 {v(t[0])}, {v(t[1])}, {v(t[0])}' if c == 'M' else t,
                   fifo=prev, pri=rel + OPT['epri'] + i // 2)
            o.raw = (c, t); prev = o.key; P.ops.append(o)
            if c != 'D': lastnd = o.key
        if OPT['ep']: prev = lastnd
    g = P.gaps
    todo = schedule(P.n, P.ops, g, overflow=True)
    if OPT.get('ts'):
        names = {1: ('A5', 'A10', 'B2'), 2: ('B4', 'B8', 'B9'), 3: ('A2', 'A7', 'A11')}[OPT['ts']] if 'A5' in p else {1: ('p3', 'f0', 'f1'), 2: ('q3', 'f2', 'f3')}[OPT['ts']]
        for k, nm in enumerate(names): g[p[nm]].sc += stamp(1 + k)
        if nkb == 1: print('stamp mfma idx', [p[nm] for nm in names], p)
    if OPT['pkd']:
        import re
        for gp in g:
            if sum(x.startswith('v_mul_f32') for x in gp.post) < OPT['pkd']: continue
            out = []; i = 0
            while i < len(gp.post):
                m = re.match(r'v_mul_f32 v(\d+), v(\d+),', gp.post[i])
                if m and int(m.group(1)) % 2 == 0 and i + 1 < len(gp.post) and gp.post[i+1].startswith(f'v_mul_f32 v{int(m.group(1))+1},'):
                    out.append(f'v_pk_mul_f32 {v(int(m.group(1)),2)}, {v(int(m.group(1)),2)}, {v(int(m.group(2))-1,2)} op_sel:[0,1] op_sel_hi:[1,1]'); i += 2
                else: out.append(gp.post[i]); i += 1
            gp.post = out
    lines = emit(P.mf, g)
    assert all(o.key[0] == 'ep' for o in todo), [o.key for o in todo]
    i = 0
    while i < len(todo):
        c, t = todo[i].raw
        if c == 'M' and i + 1 < len(todo) and todo[i+1].raw[0] == 'M' and t[0] % 2 == 0 and todo[i+1].raw[1][0] == t[0] + 1:
            lines.append(f'v_pk_mul_f32 {v(t[0],2)}, {v(t[0],2)}, {v(t[1]-1,2)} op_sel:[0,1] op_sel_hi:[1,1]'); i += 2
        else:
            lines.append(todo[i].text); i += 1
    lines, _ = add_lgkm_waits(lines, pend)
    return lines

def scale_q(q):
    out = []
    for h in range(0, 16, 4):
        for i in range(4):
            x = S0 + 16*q + h + i; t = T0 + 2*i
            out += [f'v_lshlrev_b32 {v(t)}, 16, {v(x)}', f'v_and_b32 {v(t+1)}, 0xffff0000, {v(x)}']
        out += [f'v_pk_mul_f32 {v(T0+2*i,2)}, {v(T0+2*i,2)}, {s(sC,2)}' for i in range(4)]
        out += [f'v_cvt_pk_bf16_f32 {v(S0+16*q+h+i)}, {v(T0+2*i)}, {v(T0+2*i+1)}' for i in range(4)]
        out += [f'v_accvgpr_write_b32 {a(aQ+16*q+h+i)}, {v(S0+16*q+h+i)}' for i in range(4)]
    return out
def qread(q): return [f'ds_read_b128 {v(S0+16*q+4*ks,4)}, {v(QA+ks)} offset:{(q&1)*0x4000}' for ks in range(4)] + ['s_waitcnt lgkmcnt(0)']
def qload(q):
    return [f's_add_u32 m0, {s(sMK)}, {0x20000 + (q&1)*0x4000}', 's_nop 0'] + \
           [f'buffer_load_dwordx4 {v(QD+p)}, s[4:7], {"0" if q == 0 else s(sQ1+q-1)} offen offset:{1024*p}{FL[OPT["qf"]]} lds ; ld Q{q}' for p in range(4)]
def dma4(isv, tile):
    return [f's_add_u32 m0, {s(sMV if isv else sMK)}, {s(sSL+tile)}', 's_nop 0'] + [i_dma(isv, i, 40 + 4*tile, tile) for i in range(4)]
def btprep(tile):
    out = []
    for i in range(4):
        r = 40 + 4*tile + i
        out.append(f's_min_u32 {s(r)}, {s(r)}, 131')
        out.append(f's_lshl_b32 {s(r)}, {s(r)}, 16')
        if i < 3: out.append(f's_or_b32 {s(r)}, {s(r)}, {(3-i)*1024}')
    return out

def resolve_waitvm(lines):
    out = []; vm = []
    for l in lines:
        if l.startswith('WAITVM'):
            tags = l.split(None, 1)[1].split('|')
            last = max(i for i, t in enumerate(vm) if t in tags)
            wb = {1: ('ld Q0', 'ld Q1'), 2: ('ld Q2', 'ld Q3'), 3: ('dma K 0', 'dma V 0'), 4: ('dmx K', 'ld BT')}.get(OPT.get('wb'), ())
            st_ = lambda i: [f's_memtime {s(sST+2*i,2)}']
            if tags[0] in wb: out += st_(1 + 2*wb.index(tags[0]))
            out.append(f's_waitcnt vmcnt({len(vm) - 1 - last}) ; {tags}')
            if tags[0] in wb: out += st_(2 + 2*wb.index(tags[0]))
        else:
            if l.startswith(('buffer_', 'global_')): vm.append(l.split(';')[1].strip() if ';' in l else '')
            out.append(l)
    return out

def prologue():
    t = T0
    L = ([f's_mov_b32 s77, {OPT["twice"]}', 'L_again:'] if OPT.get('twice') else []) + ['s_cmp_ge_u32 s2, 256', 's_cbranch_scc1 L_end',
         's_load_dwordx8 s[24:31], s[0:1], 0', 's_load_dwordx4 s[32:35], s[0:1], 32']
    L += [f's_lshr_b32 {s(sT+1)}, s2, 3']
    if OPT['cpf']:
        L += ['s_getpc_b64 s[8:9]', 'L_pc:', f's_lshl_b32 s10, {s(sT+1)}, 10', 'v_lshl_add_u32 v2, v0, 2, s10', 'v_mov_b32 v3, 0',
              'v_lshl_add_u64 v[2:3], v[2:3], 0, s[8:9]', f'global_load_dword {v(T0+7)}, v[2:3], off']
    L += stamp(0) + (['s_memrealtime s[100:101]'] if OPT['stamp'] else [])
    L += [f'v_lshrrev_b32 {v(t)}, 6, v0',
          f'v_and_b32 {v(t+2)}, 15, v0',
          f'v_readfirstlane_b32 {s(sW)}, {v(t)}',
          f'v_bfe_u32 {v(t+3)}, v0, 4, 2',
          f's_and_b32 {s(sT)}, s2, 7', f's_lshl_b32 {s(sT)}, {s(sT)}, 5',
          f's_add_u32 {s(sT)}, {s(sT)}, {s(sT+1)}', f's_lshl_b32 {s(sT+1)}, {s(sT)}, 16',
          f'v_lshl_add_u32 {v(t+4)}, {v(t)}, 6, {v(t+3)}', f'v_xor_b32 {v(t+5)}, {v(t+2)}, {v(t+3)}',
          f'v_lshl_add_u32 {v(QD)}, {v(t+4)}, 4, {v(t+5)}', f'v_lshlrev_b32 {v(QD)}, 4, {v(QD)}',
          f's_lshl_b32 {s(sMK)}, {s(sW)}, 12', f'v_xor_b32 {v(QD+1)}, 64, {v(QD)}', f'v_xor_b32 {v(QD+2)}, 0x80, {v(QD)}',
          f'v_xor_b32 {v(QD+3)}, 64, {v(QD+2)}', 's_mov_b32 s6, 0x10000', 's_mov_b32 s7, 0x20000', qload(0)[0],
          's_waitcnt lgkmcnt(0)',
          f's_add_u32 s4, s24, {s(sT+1)}', 's_addc_u32 s5, s25, 0',
          f's_load_dword {s(sCL)}, s[32:33], 0', 's_load_dwordx16 s[40:55], s[30:31], 0']
    L += qload(0)[2:]
    if OPT['cpf'] and NCOPY > 2:
        L += ['s_mov_b64 s[8:9], 0x8000', 'v_lshl_add_u64 v[2:3], v[2:3], 0, s[8:9]', f'global_load_dword {v(T0+7)}, v[2:3], off']
    L += [f'v_and_b32 {v(t+1)}, 63, v0', f'v_lshlrev_b32 {v(t+6)}, 4, {v(t+1)}',
          's_mov_b32 s20, s30', 's_mov_b32 s21, s31', 's_movk_i32 s22, 0x200', 's_mov_b32 s23, 0x20000',
          f'buffer_load_dwordx4 {v(BT,4)}, {v(t+6)}, s[20:23], 0 offen ; ld BT',
          f's_lshr_b32 {s(sT)}, {s(sT)}, 4', f's_lshl_b32 {s(sT)}, {s(sT)}, 8',
          f's_add_u32 s8, s26, {s(sT)}', 's_addc_u32 s9, s27, 0', 's_sub_u32 s8, s8, 3072', 's_subb_u32 s9, s9, 0',
          f's_sub_u32 s10, {KBYTES+3072}, {s(sT)}', 's_mov_b32 s11, 0x20000',
          f'v_lshl_add_u32 {v(t+4)}, {v(t)}, 2, {v(t+3)}',
          f'v_xor_b32 {v(t+6)}, {v(t+2)}, {v(t+4)}', f'v_lshlrev_b32 {v(t+6)}, 4, {v(t+6)}',
          f'v_lshl_add_u32 {v(DK)}, {v(t+4)}, 12, {v(t+6)}',
          f'v_and_b32 {v(t+6)}, 7, {v(t+4)}', f'v_lshlrev_b32 {v(t+6)}, 1, {v(t+6)}',
          f'v_xor_b32 {v(t+6)}, {v(t+2)}, {v(t+6)}', f'v_lshlrev_b32 {v(t+6)}, 4, {v(t+6)}',
          f'v_lshl_add_u32 {v(DV)}, {v(t+4)}, 12, {v(t+6)}',
          f's_movk_i32 {s(sQ1)}, 0x1000', f's_movk_i32 {s(sQ1+1)}, 0x2000', f's_movk_i32 {s(sQ1+2)}, 0x3000',
          f's_add_u32 s12, s28, {s(sT)}', 's_addc_u32 s13, s29, 0', 's_sub_u32 s12, s12, 3072', 's_subb_u32 s13, s13, 0',
          's_mov_b32 s14, s10', 's_mov_b32 s15, 0x20000',
          f's_add_u32 s16, s34, {s(sT+1)}', 's_addc_u32 s17, s35, 0', 's_mov_b32 s18, 0x10000', 's_mov_b32 s19, 0x20000',
          f's_add_u32 {s(sMV)}, {s(sMK)}, 0x10000', f's_mov_b32 {s(sC)}, 0x3e0293ee',
          's_waitcnt lgkmcnt(0)'] + stamp(1)
    L += [f's_cmp_lt_i32 {s(sCL)}, 1', f's_cselect_b32 {s(sC)}, 0, {s(sC)}', f's_cselect_b32 {s(sCL)}, 0x800, {s(sCL)}',
          f's_min_u32 {s(sCLT)}, {s(sCL)}, 0x800', f's_max_u32 {s(sCL)}, {s(sCLT)}, {MINCL}',
          f's_add_u32 {s(sN)}, {s(sCL)}, 63', f's_lshr_b32 {s(sN)}, {s(sN)}, 6',
          f's_mov_b32 {s(sNP)}, {s(sN)}']
    if OPT['tv'] == 3:
        L += [f's_sub_u32 {s(sNP)}, {s(sCL)}, 1', f's_and_b32 {s(sNP)}, {s(sNP)}, 63', f's_cmp_lt_u32 {s(sNP)}, 16', f's_addc_u32 {s(sNP)}, {s(sN)}, 0']
    L += [f's_sub_u32 {s(sE)}, 0, {s(sNP)}', f's_and_b32 {s(sE)}, {s(sE)}, 3', f's_lshl_b32 {s(sSL)}, {s(sE)}, 14']
    L += btprep(0) + dma4(0, 0) + qload(1)
    if OPT.get('otlb') == 1:
        L += [f'buffer_load_dword {v(O0+8)}, {v(QD)}, s[16:19], 0 offen sc1 ; ld O']
    L += [f's_mov_b32 {s(sC2)}, {s(sC)}',
          f's_cmp_lt_u32 {s(sCLT)}, {4096 if OPT["forceslow"] else MINCL}', f's_cselect_b32 {s(sFORCE)}, 1, 0',
          f's_add_u32 {s(sIT)}, {s(sNP)}, {s(sE)}', f's_lshr_b32 {s(sIT)}, {s(sIT)}, 2', f's_sub_u32 {s(sIT)}, {s(sIT)}, 2']
    for i in range(1, 4):
        L += [f's_add_u32 {s(sSL+i)}, {s(sSL)}, {i*0x4000}', f's_and_b32 {s(sSL+i)}, {s(sSL+i)}, 0xc000']
    L += [f's_sub_u32 {s(sT)}, {s(sN)}, 1', f's_lshl_b32 {s(sT)}, {s(sT)}, 6', f's_sub_u32 {s(sT)}, {s(sCL)}, {s(sT)}',
          f's_add_u32 {s(sNKB)}, {s(sT)}, 15', f's_lshr_b32 {s(sNKB)}, {s(sNKB)}, 4',
          f's_sub_u32 {s(sT)}, {s(sT)}, 1', f's_and_b32 {s(sT)}, {s(sT)}, 15',
          f's_and_b32 {s(sT+1)}, {s(sE)}, 1', f's_sub_u32 {s(sT+1)}, 4, {s(sT+1)}', f's_sub_u32 {s(sT+2)}, 7, {s(sT+1)}',
          f's_mov_b32 {s(sLN)}, 5',
          f's_lshl_b32 {s(sT+3)}, {s(sW)}, 13', f's_add_u32 {s(sT+3)}, {s(sT+3)}, 0x20000', f's_lshl_b32 {s(sT+4)}, {s(sW)}, 14']
    L += [f'v_lshrrev_b32 {v(t+4)}, 2, {v(t+2)}', f'v_lshlrev_b32 {v(t+4)}, 4, {v(t+4)}',
          f'v_and_b32 {v(t+6)}, 3, {v(t+2)}', f'v_add_u32 {v(t+4)}, {v(t+4)}, {v(t+6)}', f'v_lshlrev_b32 {v(t+4)}, 8, {v(t+4)}',
          f'v_lshlrev_b32 {v(t+6)}, 12, {v(t)}', f'v_lshl_add_u32 {v(t+6)}, {v(t+2)}, 8, {v(t+6)}', f'v_add_u32 {v(t+6)}, 0x20000, {v(t+6)}']
    for ks in range(4):
        L += [f'v_xor_b32 {v(MK)}, {4*ks}, {v(t+5)}', f'v_lshl_add_u32 {v(KA+ks)}, {v(MK)}, 4, {v(t+4)}',
              f'v_lshl_add_u32 {v(QA+ks)}, {v(MK)}, 4, {v(t+6)}', f'v_add_u32 {v(KA0+ks)}, {s(sSL)}, {v(KA+ks)}']
    L += [f'v_bfe_u32 {v(t+5)}, {v(t+1)}, 2, 2',
          f'v_lshl_add_u32 {v(t+4)}, {v(t+3)}, 4, {v(t+5)}', f'v_lshlrev_b32 {v(t+4)}, 8, {v(t+4)}',
          f'v_and_b32 {v(MK)}, 3, {v(t+1)}', f'v_lshl_add_u32 {v(t+4)}, {v(MK)}, 3, {v(t+4)}', f'v_add_u32 {v(t+4)}, 0x10000, {v(t+4)}',
          f'v_lshl_add_u32 {v(t+5)}, {v(t+3)}, 2, {v(t+5)}', f'v_and_b32 {v(t+5)}, 7, {v(t+5)}']
    for db in range(8):
        L += [f'v_xor_b32 {v(VA+db)}, {db}, {v(t+5)}', f'v_lshl_add_u32 {v(VA+db)}, {v(VA+db)}, 5, {v(t+4)}',
              f'v_add_u32 {v(VA0+db)}, {s(sSL)}, {v(VA+db)}']
    L += [f'v_lshlrev_b32 {v(t+4)}, 14, {v(t)}', f'v_lshl_add_u32 {v(t+4)}, {v(t+2)}, 8, {v(t+4)}',
          f'v_and_b32 {v(t+5)}, 1, {v(t+3)}', f'v_lshl_add_u32 {v(t+4)}, {v(t+5)}, 5, {v(t+4)}',
          f'v_lshrrev_b32 {v(t+5)}, 1, {v(t+3)}', f'v_lshl_add_u32 {v(OV)}, {v(t+5)}, 4, {v(t+4)}',
          f'v_and_b32 {v(t+4)}, 1, {v(t+1)}', f'v_mov_b32 {v(t+5)}, 0xaaaaaaaa',
          f'v_mul_lo_u32 {v(t+4)}, {v(t+4)}, {v(t+5)}', f'v_or_b32 {v(IDX)}, 0x44444444, {v(t+4)}', f'v_mov_b32 {v(t+5)}, 0x3f803f80']
    L += [f'v_accvgpr_write_b32 {a(aONE+i)}, {v(t+5)}' for i in range(4)]
    L += [f'v_lshlrev_b32 {v(t+4)}, 2, {v(t+3)}', f'v_mov_b32 {v(t+5)}, {NEG:#x}']
    for r in range(4):
        L += [f'v_add_u32 {v(t+6)}, {r}, {v(t+4)}', f'v_cmp_lt_u32 vcc, {s(sT)}, {v(t+6)}', 's_nop 1',
              f'v_cndmask_b32 {v(MK+r)}, 0, {v(t+5)}, vcc']
    L += btprep(1) + btprep(2) + btprep(3)
    L += [f'v_mov_b32 {v(O0+i)}, 0' for i in range(64, 128)]
    L += [f'v_accvgpr_write_b32 {a(aL+i)}, 0' for i in range(16)]
    groups = {'q2': qload(2), 'q3': qload(3), 'v0': dma4(1, 0), 'k1': dma4(0, 1), 'v1': dma4(1, 1), 'k2': dma4(0, 2), 'v2': dma4(1, 2), 'k3': dma4(0, 3)}
    plan = {0: dict(A=['q2'], B=['v0'], C=['q3'], D=['k1', 'v1'], E=['k2'], F=['v2', 'k3']),
            1: dict(A=['q2'], B=['v0'], C=['q3'], D=['k1'], E2=['v1', 'k2'], G=['v2', 'k3']),
            2: dict(A=['q2', 'v0'], C=['q3', 'k1'], D=['v1'], E2=['k2'], G=['v2', 'k3']),
            3: dict(A0=['v0'], A=['q2'], C=['q3', 'k1'], D=['v1', 'k2'], G=['v2', 'k3']),
            4: dict(A=['q2'], B=['v0'], C=['q3', 'k1'], D=['v1'], E2=['k2'], G=['v2', 'k3']),
            5: dict(A=['q2'], B=['v0'], C=['q3', 'k1'], D2=['v1', 'k2'], G=['v2', 'k3']),
            6: dict(A=['q2'], B=['v0', 'k1'], C=['q3'], D2=['v1', 'k2'], G=['v2', 'k3']),
            7: dict(A=['q2'], B=['v0'], C=['q3', 'k1'], D2=['v1', 'k2'], E2=['v2', 'k3']),
            8: dict(A=['q2'], B=['v0', 'k1'], C=['q3'], P=['v1', 'k2'], S=['v2', 'k3']),
            9: dict(A=['q2', 'v0'], B=['k1'], C=['q3'], P=['v1', 'k2'], S=['v2', 'k3']),
            10: dict(A0=['v0'], A=['q2'], B=['k1'], C=['q3'], P=['v1', 'k2'], S=['v2', 'k3']),
            11: dict(A=['q2'], B=['v0', 'k1'], C=['q3'], D2=['v1', 'k2'], S=['v2', 'k3']),
            12: dict(A=['q2'], B=['v0', 'k1'], C3=['q3'], P=['v1', 'k2'], S=['v2', 'k3']),
            13: dict(A=['q2'], B=['v0'], B2=['k1'], C3=['q3'], P=['v1', 'k2'], S=['v2', 'k3']),
            14: dict(A=['v0'], B=['q2'], C=['k1'], C3=['q3'], P=['v1', 'k2'], S=['v2', 'k3']),
            15: dict(A=['q2'], B2=['v0'], C2=['k1'], C3=['q3'], P=['v1', 'k2'], S=['v2', 'k3']),
            16: dict(A2=['q2'], B2=['v0'], C2=['k1'], C3=['q3'], P=['v1', 'k2'], S=['v2', 'k3']),
            17: dict(A=['q2'], B=['v0'], C=['k1'], C2=['q3'], P=['v1', 'k2'], S=['v2', 'k3']),
            18: dict(A=['q2'], B=['v0'], B2=['k1'], C2=['q3'], P=['v1', 'k2'], S=['v2', 'k3']),
            19: dict(A=['v0'], B=['q2'], C=['k1'], C3=['q3'], P=['v1'], S=['k2', 'v2'], K=['k3']),
            20: dict(A=['v0'], B=['q2'], C=['k1'], C3=['q3'], S=['v1', 'k2'], K=['v2', 'k3']),
            21: dict(A=['v0'], B=['q2'], C=['k1'], C2=['q3'], S=['v1', 'k2'], K=['v2', 'k3']),
            22: dict(A=['v0'], A2=['q2'], B2=['k1'], C2=['q3'], S=['v1', 'k2'], K=['v2', 'k3']),
            23: dict(A0=['v0'], A=['q2'], B2=['k1'], C2=['q3'], S=['v1', 'k2'], K=['v2', 'k3']),
            24: dict(A=['v0'], B=['q2'], C=['q3'], C3=['k1'], S=['v1', 'k2'], K=['v2', 'k3']),
            25: dict(A=['v0'], B=['q2'], C=['k1'], C3=['q3'], P=['v1', 'k2'], S=['v2'], K=['k3']),
            26: dict(A=['v0'], B=['q2'], C=['k1'], C3=['q3'], D=['v1'], P=['k2'], S=['v2'], K=['k3']),
            27: dict(A=['v0'], B=['q2'], C=['k1', 'v1'], C3=['q3'], P=['k2'], S=['v2'], K=['k3']),
            28: dict(A=['v0', 'k1'], B=['q2'], C2=['q3'], P=['v1', 'k2'], S=['v2'], K=['k3']),
            29: dict(A=['v0'], A2=['k1'], B=['q2'], C2=['q3'], D=['v1'], P=['k2'], S=['v2'], K=['k3'])}[OPT['po']]
    at = lambda p_: [x for g_ in plan.get(p_, []) for x in groups[g_]]
    X = OPT['tv'] == 4
    btv = lambda i: [f'v_min_u32 {v(BT+i)}, 131, {v(BT+i)}', f'v_lshlrev_b32 {v(BT+i)}, 16, {v(BT+i)}'] + ([f'v_or_b32 {v(BT+i)}, {(3-i)*1024}, {v(BT+i)}'] if i < 3 else [])
    touch = []
    if OPT['touch']:
        touch = ['s_mov_b64 vcc, -1', f's_cmp_eq_u32 {s(sW)}, 0', 's_cbranch_scc1 L_padB', f's_cmp_eq_u32 {s(sW)}, 1', 's_cbranch_scc1 L_padA',
                 'L_ret:', 's_mov_b64 vcc, 0']
    L += at('A0') + (touch if OPT['touch'] == 1 else []) + (['L_walk:'] if OPT['walk'] else []) + ['WAITVM ld Q0'] + stamp(2)
    if X:
        L += ['WAITVM ld BT'] + btv(0) + [f's_sub_u32 {s(sT+5)}, {s(sN)}, 1', f'v_readlane_b32 {s(sT)}, {v(BT)}, {s(sT+5)}'] + qread(0)
        L += [f's_add_u32 m0, {s(sMV)}, {s(sSL+3)}', f's_sub_u32 {s(sT+5)}, {s(sT)}, 1024',
              f'buffer_load_dwordx4 {v(DV)}, s[12:15], {s(sT)} offen lds ; dmx V',
              f'buffer_load_dwordx4 {v(DK)}, s[8:11], {s(sT+5)} offen offset:1024 lds ; dmx K']
    else: L += qread(0)
    L += at('A') + scale_q(0) + at('A2') + ['WAITVM ld BT']
    for i in range(1 if X else 0, 4): L += btv(i)
    L += ['s_nop 0'] + [f'v_readlane_b32 {s(SETS[k]+i)}, {v(BT+i)}, {s(sT+1+k)}' for k in range(2) for i in range(4)]
    L += (touch if OPT['touch'] == 2 else []) + ['WAITVM dma K 0', 's_barrier']
    L += [i_kread(*kord(f), 0, '0', addr=KA0) for f in range(16)] + at('B')
    def tile0(x):
        P = Prog(); G = P.group
        r = lambda q, sb: qkg(q, 1, sb=sb, kbase=aX, mask=True)
        xv = lambda q: [pv(q, db, 0, 2, 'ov', first=q < 2) for db in range(8)] + [sm(q, 2)]
        G('q0', qkg(0))
        if x: G('r0', r(0, 2)); G('r1', r(1, 3))
        G('q1', qkg(1))
        if x: G('x0', xv(0)); G('x1', xv(1)); G('r2', r(2, 3))
        G('q2', qkg(2))
        if x: G('x2', xv(2))
        G('p0', pvg(0, first=not x)); G('p1', pvg(1, first=not x)); G('q3', qkg(3))
        P.done(); p = P.pos
        w1, w2 = p['r0' if x else 'q1'], p['r2' if x else 'q2']
        P.softmax('s0', p['q0'], 0, 0, dlcap=w1 + 4); P.softmax('s1', p['q1'], 1, 1, dlcap=w2 + (-1 if x else 4))
        P.softmax('s2', p['q2'], 2, 2, dlcap=p['q3'] - 1, use=P.n); P.softmax('s3', p['q3'], 3, 3, skip=LEFT3, lastrel=P.n - 1)
        if x:
            P.softmax('t0', p['r0'], 2, 2, 1); P.softmax('t1', p['r1'], 3, 2, 1, use=p['x1'], zero=False)
            P.softmax('t2', p['r2'], 3, 2, 1, zero=False)
        P.vload('v', p['p0'], 0, '0', addr=VA0, rel0=w2)
        P.kload('k', P.n, 0, '1', addr=T0, rel0=p['q3'], dlmax=P.n - 1)
        g = P.gaps
        for pt, gi in (('P', p['p0'] + 1), ('K', p['q3'] + 1)):
            step = 2 if pt == 'K' and len(plan.get('K', [])) > 1 else 4
            for y in at(pt):
                if y.startswith('s_add'): g[gi - 1].sc.append(y)
                elif y.startswith('buffer'):
                    P.ops.append(Op(('d', gi), 'D', gi, gi, y)); gi += step
        assert not schedule(P.n, P.ops, g, overflow=True)
        sc3 = []; ext = at('S')
        for i, y in enumerate(scale_q(3)):
            sc3.append(y)
            if i % 10 == 4 and ext:
                if ext[0].startswith('s_add'): sc3 += ext[:2]; ext = ext[2:]
                sc3.append(ext.pop(0))
        assert not ext
        xr = []
        if x:
            XA = S0 + 36
            xr = [f's_add_u32 {s(sT)}, {s(sSL+3)}, 0x10000'] + [f'v_add_u32 {v(XA+ks)}, {s(sT)}, {v(KA+ks)}' for ks in range(4)] + \
                 [f'v_add_u32 {v(XA+4+db)}, {s(sSL+3)}, {v(VA+db)}' for db in range(8)] + ['WAITVM dmx K', 's_barrier'] + \
                 [f'ds_read_b128 {a(aX+4*ks,4)}, {v(XA+ks)} offset:1024 ; rx K {ks}' for ks in range(4)] + \
                 [f'ds_read_b64_tr_b16 {a(aX+16+2*db,2)}, {v(XA+4+min(db,7))} offset:0 ; rx V {min(db,7)}' for db in range(9)]
        g[w1 - 1].post += at('B2') + xr + ['WAITVM ld Q1'] + qread(1) + at('C') + scale_q(1) + at('C2') + ['s_nop 0']
        g[w2 - 1].post += at('C3') + ['WAITVM ld Q2'] + qread(2) + at('D') + scale_q(2) + ['WAITVM dma V 0|dma K 1', 's_barrier']
        g[p['q3'] - 1].post += (['s_barrier'] if x else []) + at('D2') + ['WAITVM ld Q3'] + stamp(3) + qread(3) + sc3 + \
                               [f'v_add_u32 {v(T0+ks)}, {s(sSL+1)}, {v(KA+ks)}' for ks in range(4)]
        g[P.n - 1].post += [HEADWAIT]
        full, pend = add_lgkm_waits(resolve_waitvm(L + ['L_split:'] + emit(P.mf, g)))
        k = full.index('L_split:')
        return full[:k], full[k+1:] + stamp(4) + wave_select() + dispatch(0), pend
    assert OPT['po'] >= 8
    head, tn, pend = tile0(False)
    if not X: return head + tn, [], pend
    head2, tx, pend2 = tile0(True)
    assert head == head2 and [z[0] for z in pend] == [z[0] for z in pend2]
    return head + [f's_cmp_lg_u32 {s(sNKB)}, 1', 's_cbranch_scc1 L_tile0n'] + tx, ['L_tile0n:'] + tn + ['s_branch L_b1'], pend

def slow():
    t = T0
    L = ['L_slow:', 's_waitcnt vmcnt(0) lgkmcnt(0)']
    M, LS, KV, VD0, VD1 = KA, BT, DK, DV, IDX
    L += [f'v_mbcnt_lo_u32_b32 {v(t+1)}, -1, 0', f'v_mbcnt_hi_u32_b32 {v(t+1)}, -1, {v(t+1)}',
          f'v_and_b32 {v(t+2)}, 15, {v(t+1)}', f'v_lshrrev_b32 {v(t+3)}, 4, {v(t+1)}']
    L += [f's_lshl_b32 {s(sT)}, {s(sW)}, 14', f'v_lshlrev_b32 {v(t+4)}, 8, {v(t+2)}', f'v_lshl_add_u32 {v(t+4)}, {v(t+3)}, 4, {v(t+4)}',
          f'v_add_u32 {v(t+4)}, {s(sT)}, {v(t+4)}']
    L += [f'buffer_load_dwordx4 {v(S0+16*q+4*ks,4)}, {v(t+4)}, s[4:7], {"0" if q == 0 else s(sQ1)} offen offset:{64*ks}' for q in range(2) for ks in range(4)]
    L += [f'v_lshlrev_b32 {v(t+4)}, 12, {v(t+2)}', f'v_lshl_add_u32 {v(KV)}, {v(t+3)}, 4, {v(t+4)}', f'v_add_u32 {v(KV)}, 3072, {v(KV)}',
          f'v_lshlrev_b32 {v(t+4)}, 1, {v(t+3)}', f'v_xor_b32 {v(t+4)}, {v(t+2)}, {v(t+4)}',
          f'v_lshlrev_b32 {v(t+4)}, 4, {v(t+4)}', f'v_lshl_add_u32 {v(VD0)}, {v(t+3)}, 12, {v(t+4)}', f'v_add_u32 {v(VD0)}, 3072, {v(VD0)}',
          f'v_xor_b32 {v(t+4)}, 0x80, {v(t+4)}', f'v_lshl_add_u32 {v(VD1)}, {v(t+3)}, 12, {v(t+4)}', f'v_add_u32 {v(VD1)}, {3072 + 16384}, {v(VD1)}',
          f's_lshl_b32 {s(sMV)}, {s(sW)}, 13', f's_add_u32 {s(sMV)}, {s(sMV)}, 0x20000',
          f'v_bfe_u32 {v(t+5)}, {v(t+1)}, 2, 2', f'v_lshl_add_u32 {v(t+5)}, {v(t+3)}, 2, {v(t+5)}',
          f'v_lshlrev_b32 {v(t+4)}, 8, {v(t+5)}', f'v_and_b32 {v(t+6)}, 3, {v(t+1)}',
          f'v_lshl_add_u32 {v(t+4)}, {v(t+6)}, 3, {v(t+4)}', f'v_add_u32 {v(t+4)}, {s(sMV)}, {v(t+4)}', f'v_and_b32 {v(t+5)}, 7, {v(t+5)}']
    for db in range(8):
        L += [f'v_xor_b32 {v(VA+db)}, {db}, {v(t+5)}', f'v_lshl_add_u32 {v(VA+db)}, {v(VA+db)}, 5, {v(t+4)}']
    L += [f'v_lshlrev_b32 {v(MK)}, 2, {v(t+3)}', f'v_mov_b32 {v(MK+1)}, {NEG:#x}']
    L += [f'v_mov_b32 {v(O0+i)}, 0' for i in range(128)]
    L += [f'v_mov_b32 {v(M+q)}, 0xff7fffff' for q in range(4)] + [f'v_mov_b32 {v(LS+q)}, 0' for q in range(4)]
    L += ['s_waitcnt vmcnt(0)'] + scale_q(0) + scale_q(1)
    L += [f's_mov_b32 {s(sIT)}, 0', 'L_slow_loop:',
          f's_lshr_b32 {s(sT)}, {s(sIT)}, 2',
          f's_load_dwordx2 s[40:41], s[30:31], {s(sT)}', 's_waitcnt lgkmcnt(0)',
          's_min_u32 s40, s40, 131', 's_min_u32 s41, s41, 131', 's_lshl_b32 s40, s40, 16', 's_lshl_b32 s41, s41, 16']
    for kb in range(2):
        for ks in range(4):
            L.append(f'buffer_load_dwordx4 {a(aK+16*kb+4*ks,4)}, {v(KV)}, s[8:11], s{40+kb} offen offset:{64*ks}')
    for b in range(2):
        for p in range(4):
            L += [f's_add_u32 m0, {s(sMV)}, {b*4096 + p*1024}', f's_add_u32 s42, s{40+b}, {(p//2)*32768}',
                  f'buffer_load_dwordx4 {v(VD1 if p & 1 else VD0)}, s[12:15], s42 offen lds']
    L += ['s_waitcnt vmcnt(0)']
    for db in range(8):
        for tt in range(2):
            L.append(f'ds_read_b64_tr_b16 {a(aV+8*db+2*tt,2)}, {v(VA+db)} offset:{tt*4096}')
    L += [f's_sub_u32 {s(sT)}, {s(sCLT)}, {s(sIT)}', 's_waitcnt lgkmcnt(0)']
    for q in range(4):
        S = S0 + 16*q
        L += qkg(q, 2) + ['s_nop 7']
        for e in range(8):
            L += [f'v_add_u32 {v(t)}, {16*(e//4) + e%4}, {v(MK)}', f'v_cmp_gt_u32 vcc, {s(sT)}, {v(t)}', 's_nop 1',
                  f'v_cndmask_b32 {v(S+e)}, {v(MK+1)}, {v(S+e)}, vcc']
        L += [f'v_max3_f32 {v(t)}, {v(S)}, {v(S+1)}, {v(S+2)}', f'v_max3_f32 {v(t)}, {v(t)}, {v(S+3)}, {v(S+4)}',
              f'v_max3_f32 {v(t)}, {v(t)}, {v(S+5)}, {v(S+6)}', f'v_max3_f32 {v(t)}, {v(t)}, {v(S+7)}, {v(M+q)}',
              f'v_mov_b32 {v(t+1)}, {v(t)}', 's_nop 1', f'v_permlane16_swap_b32 {v(t)}, {v(t+1)}', f'v_max_f32 {v(t)}, {v(t)}, {v(t+1)}',
              f'v_mov_b32 {v(t+1)}, {v(t)}', 's_nop 1', f'v_permlane32_swap_b32 {v(t)}, {v(t+1)}', f'v_max_f32 {v(t)}, {v(t)}, {v(t+1)}',
              f'v_sub_f32 {v(t+1)}, {v(M+q)}, {v(t)}', f'v_exp_f32 {v(t+1)}, {v(t+1)}', f'v_mov_b32 {v(M+q)}, {v(t)}']
        L += [f'v_sub_f32 {v(S+e)}, {v(S+e)}, {v(t)}' for e in range(8)]
        L += [f'v_exp_f32 {v(S+e)}, {v(S+e)}' for e in range(8)]
        L += [f'v_mul_f32 {v(LS+q)}, {v(LS+q)}, {v(t+1)}']
        L += [f'v_mul_f32 {v(O0+32*q+i)}, {v(O0+32*q+i)}, {v(t+1)}' for i in range(32)]
        L += [i_cvt(q, q, i) for i in range(4)]
        for i in range(4):
            L += [f'v_lshlrev_b32 {v(t)}, 16, {v(P0+8*q+i)}', f'v_and_b32 {v(t+1)}, 0xffff0000, {v(P0+8*q+i)}',
                  f'v_add_f32 {v(LS+q)}, {v(LS+q)}, {v(t)}', f'v_add_f32 {v(LS+q)}, {v(LS+q)}, {v(t+1)}']
        L += [pv(q, db, 0) for db in range(8)]
    L += [f's_add_u32 {s(sIT)}, {s(sIT)}, 32', f's_cmp_lt_u32 {s(sIT)}, {s(sCLT)}', 's_cbranch_scc1 L_slow_loop', 's_nop 7']
    for q in range(4):
        o = O0 + 32*q
        L += [f'v_mov_b32 {v(t)}, {v(LS+q)}', f'v_mov_b32 {v(t+1)}, {v(LS+q)}', 's_nop 1',
              f'v_permlane16_swap_b32 {v(t)}, {v(t+1)}', f'v_add_f32 {v(t)}, {v(t)}, {v(t+1)}',
              f'v_mov_b32 {v(t+1)}, {v(t)}', 's_nop 1', f'v_permlane32_swap_b32 {v(t)}, {v(t+1)}', f'v_add_f32 {v(t)}, {v(t)}, {v(t+1)}',
              f'v_rcp_f32 {v(t)}, {v(t)}', 's_nop 0']
        L += [f'v_mul_f32 {v(o+i)}, {v(o+i)}, {v(t)}' for i in range(32)]
        for u in range(4):
            L += [f'v_cvt_pk_bf16_f32 {v(o+8*u+i)}, {v(o+8*u+2*i)}, {v(o+8*u+2*i+1)}' for i in range(4)]
        for u in range(4):
            L += [f'v_permlane16_swap_b32 {v(o+8*u+i)}, {v(o+8*u+2+i)}' for i in range(2)]
        for u in range(4):
            L.append(f'buffer_store_dwordx4 {v(o+8*u,4)}, {v(OV)}, s[16:19], {"0" if q == 0 else s(sQ1+q-1)} offen offset:{64*u}')
    return L + ['s_endpgm']

DOC = '''; Paged-KV attention, one workgroup per CU: 256 query rows against one KV head, 4 waves x 64 rows, 64-key tiles.
;  * S^T = K.Q^T and O^T += V^T.P^T with v_mfma_f32_16x16x32_bf16 (P stays in registers, V via ds_read_b64_tr_b16),
;    row sums with one v_smfmac_f32_16x16x64_bf16 per 16 rows and tile.  Q is scaled once by log2(e)/sqrt(D).
;  * Softmax guard: the fast path uses 0 as stand-in for the row maximum.  Every row sum is checked at run time; if one
;    leaves [2^-40, 2^40] (or is not a number) the wave recomputes its rows in L_slow with the true running maximum.
;    L_slow also serves context lengths below 193.  context_lens <= 0 (all keys masked) gives the uniform average.
'''
NFIN = 0
def finish():
    global NFIN
    NFIN += 1
    L = [f'v_cmp_lt_u32 vcc, 0x28000000, {v(T0+4)}' if not OPT.get('abl') else 's_mov_b64 vcc, 0',
         f's_cmp_lg_u32 {s(sFORCE)}, 0', 's_cbranch_scc1 L_slow', 's_nop 3', 's_cbranch_vccnz L_slow']
    if OPT.get('twice'):
        L += ['s_cmp_eq_u32 s77, 0', f's_cbranch_scc1 L_fin{NFIN}', 's_sub_u32 s77, s77, 1', 's_waitcnt vmcnt(0) lgkmcnt(0)', 's_barrier',
              'v_mbcnt_lo_u32_b32 v0, -1, 0', 'v_mbcnt_hi_u32_b32 v0, -1, v0', f's_lshl_b32 {s(sT)}, {s(sW)}, 6', f'v_add_u32 v0, {s(sT)}, v0', 's_branch L_again', f'L_fin{NFIN}:']
    if OPT['stamp']:
        L += [f's_memtime s[40:41]', 's_waitcnt vmcnt(0)', 's_memtime s[42:43]', f's_memrealtime s[44:45]', 's_waitcnt lgkmcnt(0)']
        st = lambda i: sST + 2*i if i < 6 else 40 + 2*(i - 6)
        if OPT.get('fixed'):
            L += [f's_mov_b32 {s(sT+4)}, {OPT["fixed"]}']
            if OPT.get('xcc'):
                L += [f's_getreg_b32 {s(sT+5)}, hwreg(HW_REG_XCC_ID, 0, 4)', f's_sub_u32 {s(sT+5)}, {s(sT+5)}, s2', f's_and_b32 {s(sT+5)}, {s(sT+5)}, 7']
                if OPT['xcc'] == 2: L += [f's_sub_u32 {s(sT+5)}, 7, {s(sT+5)}']
                L += [f's_mul_i32 {s(sT+5)}, {s(sT+5)}, 500', f's_add_u32 {s(sT+4)}, {s(sT+4)}, {s(sT+5)}']
            if OPT.get('phase'):
                L += [f's_sub_u32 {s(sT+5)}, {s(st(OPT["phase"]))}, {s(st(OPT.get("phase0", 0)))}']
                if OPT.get('neg'): L += [f's_sub_u32 {s(sT+5)}, {OPT["neg"]}, {s(sT+5)}']
                L += [f's_lshr_b32 {s(sT+5)}, {s(sT+5)}, {OPT.get("sh", 3)}', f's_add_u32 {s(sT+4)}, {s(sT+4)}, {s(sT+5)}']
            return L + [f'L_spin{NFIN}:', f's_memrealtime {s(sT,2)}', 's_waitcnt lgkmcnt(0)', f's_sub_u32 {s(sT)}, {s(sT)}, s100',
                        f's_cmp_lt_u32 {s(sT)}, {s(sT+4)}', f's_cbranch_scc1 L_spin{NFIN}', 's_endpgm']
        L += ['s_load_dwordx2 s[24:25], s[0:1], 56', 's_waitcnt lgkmcnt(0)', 's_mov_b32 s26, 0x100000', 's_mov_b32 s27, 0x20000']
        L += [f'v_mov_b32 v{i}, {s(st(i))}' for i in range(8)]
        L += ['v_mov_b32 v8, s42', 'v_mov_b32 v9, s44', 'v_mov_b32 v10, s100', 'v_mov_b32 v11, 0',
              f's_lshl_b32 {s(sT)}, s2, 2', f's_add_u32 {s(sT)}, {s(sT)}, {s(sW)}', f's_lshl_b32 {s(sT)}, {s(sT)}, 6',
              'v_mov_b32 v12, 0', 's_mov_b64 exec, 1',
              f'buffer_store_dwordx4 v[0:3], v12, s[24:27], {s(sT)} offen',
              f'buffer_store_dwordx4 v[4:7], v12, s[24:27], {s(sT)} offen offset:16',
              f'buffer_store_dwordx4 v[8:11], v12, s[24:27], {s(sT)} offen offset:32']
    return L + ['s_endpgm']

def sizes(L):
    import subprocess, re, tempfile, os
    d = tempfile.mkdtemp()
    open(d + '/a.s', 'w').write('.amdgcn_target "amdgcn-amd-amdhsa--gfx950"\n.text\n' + '\n'.join(l for l in L if not l.startswith('.')) + '\n')
    subprocess.check_call(['clang', '-x', 'assembler', '-target', 'amdgcn-amd-amdhsa', '-mcpu=gfx950', '-c', d + '/a.s', '-o', d + '/a.o'])
    out = subprocess.check_output(['llvm-objdump', '-d', '--mcpu=gfx950', d + '/a.o']).decode()
    sz = [4 * len(m.group(1).split()) for m in re.finditer(r'// [0-9A-F]+: ([0-9A-F ]+)', out)]
    it = iter(sz)
    return [next(it) if Ins(l).states else 0 for l in L]

def add_walk(L):
    sz = sizes(L); ins = parse(L)
    regions = [(L.index('L_walk:') + 1, L.index('L_b1:') - 1), (L.index('L_tail:'), L.index('L_pfend:') - 8)]
    if OPT['walk'] == 2: regions = [(L.index('L_walk:') + 1, L.index('L_pfend:') - 8)]
    pads = []
    for lo, hi in regions:
        acc = OPT['wsp'] - 64 if lo == regions[0][0] else OPT['wsp']; best = None
        for i in range(lo, hi):
            acc += sz[i]
            if acc >= OPT['wsp'] - max(64, OPT['wsp'] // 4) and ins[i].states and ins[i].cls != 'br' and not L[i].startswith(('s_cmp', 's_waitcnt')):
                cost = 0 if ins[i].cls == 'mfma' and ins[i+1].cls == 'mfma' else 2 if ins[i+1].cls == 'mfma' else 3
                if best is None or cost <= best[0]: best = (cost, i, acc)
            if acc >= OPT['wsp'] and best:
                pads.append(best[1]); acc -= best[2]; best = None
    n = len(pads); cut = [n * w // 4 for w in range(5)]
    out = []
    for i, l in enumerate(L):
        if l == 'L_walk:':
            out += ['s_mov_b64 vcc, -1']
            for w in range(3): out += [f's_cmp_eq_u32 {s(sW)}, {w}', f's_cbranch_scc1 L_pad{cut[w]}']
            out += [f's_branch L_pad{cut[3]}', 'L_ret:', 's_mov_b64 vcc, 0']
            continue
        out.append(l)
        if i in pads:
            k = pads.index(i)
            out += [f'L_pad{k}:', f's_cbranch_vccnz {"L_ret" if k + 1 in cut else f"L_pad{k+1}"}']
    print('pads', n)
    return out

def main():
    pro, pro2, pend0 = prologue()
    loop, pend = loop_code()
    assert [x[0] for x in pend0] == [x[0] for x in pend], (pend0, pend)
    L = [f'{NAME}:'] + pro + loop
    L += ['L_tail:'] + stamp(5) + [f's_cmp_gt_u32 {s(sNKB)}, 1', 's_cbranch_scc1 L_tail234']
    L += tail(1, pend) + finish()
    for w in range(1, NCOPY): L += loop_copy(w, pend)
    L += ['L_pfend:']
    L += ['L_tail234:', f's_cmp_eq_u32 {s(sNKB)}, 3', 's_cbranch_scc1 L_tail3', f's_cmp_eq_u32 {s(sNKB)}, 4', 's_cbranch_scc1 L_tail4']
    L += tail(2, pend) + finish() + ['L_tail3:'] + tail(3, pend) + finish() + ['L_tail4:'] + tail(4, pend) + finish()
    L += pro2 + slow() + ['L_end:', 's_endpgm']
    L, nn = fix_hazards(L, verbose=OPT.get('verbose', 0))
    if OPT['walk']: L = add_walk(L)
    sz = sizes(L)
    assert sum(sz[L.index('L_pc:'):]) > (65536 if NCOPY > 2 else 32768) + 64 if OPT['cpf'] else True
    print('bytes up to the last Q0 load:', sum(sz[:max(i for i, l in enumerate(L) if l.endswith('ld Q0')) + 1]), ' executed code:', sum(sz[:L.index('L_pfend:')]))
    print('nop states inserted:', nn, ' leftovers:', sorted(LEFT3))
    hdr = open('standalone__paged_block_table_kv_pagedattention__prompt.s.ref').read().split('; Override')[0]
    txt = hdr + DOC + '; Generated by gen/gen2.py (own generator script).\n'
    txt += '; @launch grid=(256,1,1) block=(256,1,1) lds=163840\n'
    txt += f'.amdgcn_target "amdgcn-amd-amdhsa--gfx950"\n.text\n.globl {NAME}\n.p2align 8\n.type {NAME},@function\n'
    for l in L: txt += (l if l.endswith(':') or l.startswith(('.', ';')) else '    ' + l) + '\n'
    txt += f'''.section .rodata,"a"
.p2align 6
.amdhsa_kernel {NAME}
  .amdhsa_next_free_vgpr 504
  .amdhsa_next_free_sgpr 102
  .amdhsa_accum_offset 256
  .amdhsa_group_segment_fixed_size 0
  .amdhsa_kernarg_size 64
  .amdhsa_user_sgpr_count 2
  .amdhsa_user_sgpr_kernarg_segment_ptr 1
  .amdhsa_system_sgpr_workgroup_id_x 1
.end_amdhsa_kernel
'''
    open(sys.argv[1], 'w').write(txt)
    if OPT.get('show'):
        for g in range(NG): print(g, PAT[g])
main()
```

```python
import sys
from asmcheck import parse, fix_hazards, Ins

NAME = 'standalone__paged_block_table_kv_pagedattention__prompt_kernel'
FL = {0: '', 1: ' nt', 2: ' sc1', 3: ' sc0 sc1', 4: ' sc1 nt', 5: ' sc0 sc1 nt', 6: ' sc0', 7: ' sc0 nt'}
OPT = dict(po=26, cpf=1, qf=0, kf=2, of=2, delta=9, stamp=0, lat=8, forceslow=0, tord=2, epri=12, ep=0, ssp=4, tv=4, edl=4, ttu=2, walk=0, wsp=224, pkd=6, touch=0, snake=1, stag=1)
for a_ in sys.argv[2:]:
    k_, v_ = a_.split('='); OPT[k_] = int(v_, 0)

S0, P0, KA, VA, BT, DK, DV, IDX, OV, MK, T0, O0 = 0, 64, 96, 100, 108, 112, 113, 114, 115, 116, 120, 128
QD, QA = P0 + 24, P0 + 28
KA0, VA0 = O0, S0 + 52
EW, ER, EG = T0 + 5, T0 + 6, T0 + 7
aQ, aK, aV, aL, aONE, aX = 0, 64, 128, 192, 208, 212
sW, sCL, sN, sIT, sLN = 3, 36, 37, 38, 39
SETS = (56, 60)
sMK, sMV, sC, sC2, sNKB, sE, sFORCE, sCLT = 64, 65, 66, 67, 68, 69, 70, 71
sNP = 75
sE2 = 76
sQ1 = 72
sSL = 96
sT = 78
sST = 84
KBYTES = 132 * 65536
LAT = OPT['lat']
NEG = 0xf149f2ca
INF = 10 ** 6
MINCL = 193

def v(b, n=1): return f'v{b}' if n == 1 else f'v[{b}:{b+n-1}]'
def a(b, n=1): return f'a{b}' if n == 1 else f'a[{b}:{b+n-1}]'
def s(b, n=1): return f's{b}' if n == 1 else f's[{b}:{b+n-1}]'
def VR(b, n=1): return {('v', i) for i in range(b, b + n)}
def AR(b, n=1): return {('a', i) for i in range(b, b + n)}

MF = 'v_mfma_f32_16x16x32_bf16'
def kord(f):
    return f // 4, (3 - f % 4 if OPT['snake'] and (f // 4) % 2 else f % 4)
def qk(q, f, sb=None, kbase=aK, mask=False):
    kb, ks = kord(f)
    D = v(S0 + 16*(q if sb is None else sb) + 4*kb, 4)
    C = D if f % 4 else (v(MK, 4) if mask else '0')
    return f'{MF} {D}, {a(kbase+16*kb+4*ks,4)}, {a(aQ+16*q+4*ks,4)}, {C}'
def vfrag(db, ks, vbase):
    if vbase == 'ov': return aX + 16 + 2*db
    return aV + (2*db+ks)*4 if vbase is None else vbase + 4*db
def pv(q, db, ks, pb=None, vbase=None, first=False):
    D = v(O0 + 32*q + 4*db, 4)
    return f'{MF} {D}, {a(vfrag(db, ks, vbase),4)}, {v(P0+8*(q if pb is None else pb)+4*ks,4)}, {"0" if first and ks == 0 else D}'
def sm(q, pb=None):
    return f'v_smfmac_f32_16x16x64_bf16 {a(aL+4*q,4)}, {a(aONE,4)}, {v(P0+8*(q if pb is None else pb),8)}, {v(IDX)}'
def qkg(q, nkb=4, sb=None, kbase=aK, mask=False):
    return [qk(q, f, sb, kbase, mask and f // 4 == nkb-1) for f in range(4 * nkb)]
def pvg(q, pb=None, first=False): return [pv(q, db, ks, pb, None, first) for db in range(8) for ks in range(2)] + [sm(q, pb)]

def i_exp(sb, n): return f'v_exp_f32 {v(S0+16*sb+n)}, {v(S0+16*sb+n)}'
def i_cvt(sb, pb, i): return f'v_cvt_pk_bf16_f32 {v(P0+8*pb+i)}, {v(S0+16*sb+2*i)}, {v(S0+16*sb+2*i+1)}'
def i_kread(kb, ks, slot, tag, kbase=aK, addr=KA):
    return f'ds_read_b128 {a(kbase+16*kb+4*ks,4)}, {v(addr+ks)} offset:{slot*16384+kb*1024}'
def i_vread(db, ks, t, slot, tag, vbase=None, addr=VA):
    return f'ds_read_b64_tr_b16 {a(vfrag(db, ks, vbase)+2*t,2)}, {v(addr+db)} offset:{slot*16384+(2*ks+t)*1024}'
def i_dma(isv, i, soff, tag):
    return f'buffer_load_dwordx4 {v(DV if isv else DK)}, {s(12 if isv else 8,4)}, {s(soff+i)} offen offset:{i*1024}{FL[OPT["kf"]]} lds'
def i_m0(isv, slot): return f's_add_u32 m0, {s(sMV if isv else sMK)}, {slot*16384}'
def stamp(i): return [f's_memtime {s(sST+2*i,2)}'] if OPT['stamp'] and not (OPT.get('wb') and 1 <= i <= 4) else []

class Op:
    def __init__(self, key, cls, rel, dl, text, deps=(), fifo=None, pri=None):
        self.key, self.cls, self.rel, self.dl, self.text, self.deps, self.fifo = key, cls, rel, dl, text, list(deps), fifo
        self.pri = dl if pri is None else pri
        self.gap = None
class Gap:
    def __init__(self): self.sc, self.mem, self.valu, self.post = [], [], [], []; self.block = None

def schedule(ngaps, ops, gaps, overflow=False):
    byk = {o.key: o for o in ops}
    todo = list(ops)
    def ready(o, g):
        if o.rel > g: return False
        for d in o.deps:
            p = byk.get(d)
            if p is not None and (p.gap is None or p.gap >= g): return False
        if o.fifo is not None:
            p = byk[o.fifo]
            if p.gap is None or (o.cls in 'DRT' and p.cls not in 'RT' and p.gap >= g): return False
            if o.cls == 'D' and p.cls == 'R' and p.gap + LAT > g: return False
            if o.cls == 'D' and p.cls == 'D' and p.gap + OPT['ssp'] > g: return False
        return True
    def put(o, g):
        o.gap = g; todo.remove(o)
        (gaps[g].mem if o.cls in 'DRT' else gaps[g].valu).append(o)
    for g in range(ngaps):
        if gaps[g].block != 'all':
            cand = sorted((o for o in todo if ready(o, g)), key=lambda o: o.pri)
            if gaps[g].block == 'half': cand = [o for o in cand if o.cls == 'H'][:1]
            if cand:
                top = cand[0]
                halves = [o for o in cand if o.cls in 'RTH']
                full = [o for o in cand if o.cls in 'ED']
                if top.cls in 'RTH' and len(halves) == 1 and full and top.pri - g > 6 and top.fifo is None: top = full[0]
                put(top, g)
                if top.cls in 'RTH' and gaps[g].block != 'half':
                    c2 = sorted((o for o in todo if o.cls in 'RTH' and ready(o, g) and not (o.cls == 'R' and top.cls == 'R')), key=lambda o: o.pri)
                    if c2:
                        pick = c2[0]
                        busy = g > 0 and len(gaps[g-1].mem) > 1
                        if top.cls in 'RT' and pick.cls in 'RT' and (pick.pri - g > 8 or (busy and pick.pri - g > OPT['ttu'])):
                            h = [o for o in c2 if o.cls == 'H']
                            if h: pick = h[0]
                            elif busy and pick.pri - g > OPT['ttu']: pick = None
                        if pick: put(pick, g)
        late = [o for o in todo if o.dl <= g]
        if late:
            if not overflow: raise RuntimeError(f'deadline miss at gap {g}: {[o.key for o in late]}')
            def force(o):
                if o.gap is not None: return
                for d in o.deps + ([o.fifo] if o.fifo else []):
                    if d in byk: force(byk[d])
                assert o.rel <= g, (o.key, o.rel, g)
                o.gap = g; todo.remove(o)
                if o.cls in 'RT' and o.fifo is None and gaps[g].block != 'all': gaps[g].mem.append(o)
                else: gaps[g].post.append(o.text)
            for o in sorted(late, key=lambda o: (o.fifo is not None, {'R': 0, 'T': 0, 'D': 0, 'E': 1, 'H': 2}[o.cls], o.dl)): force(o)
    return todo

def emit(mf, gaps):
    out = []
    for m, g in zip(mf, gaps):
        out.append(m)
        sc = list(g.sc)
        if any(o.text.startswith('buffer_load') for o in g.mem) and not sc: sc = ['s_nop 0']
        out += sc + [o.text for o in g.mem] + [o.text for o in g.valu] + g.post
    return out

def add_lgkm_waits(lines, pre_ds=()):
    q = [(set(r), -age) for r, age in pre_ds]
    out = []; gap = -1; lastm = None; nvis = None
    for x in parse(lines):
        if x.cls == 'mfma':
            needed = [i for i, (r, g) in enumerate(q) if r & x.r]
            if needed:
                k = max(needed)
                if lastm is not None and k < nvis:
                    while k + 1 < nvis and q[k + 1][1] <= gap - LAT: k += 1
                    n = min(15, nvis - 1 - k)
                    if out[lastm:lastm+1] == ['s_nop 0']: out[lastm] = f's_waitcnt lgkmcnt({n})'
                    else: out.insert(lastm, f's_waitcnt lgkmcnt({n})')
                    k = nvis - 1 - n
                else:
                    n = min(15, len(q) - 1 - k)
                    out.append(f's_waitcnt lgkmcnt({n})')
                    k = len(q) - 1 - n
                q = q[k + 1:]
            gap += 1
            out.append(x.text); lastm = len(out); nvis = len(q)
        else:
            if x.cls == 'vmem':
                needed = [i for i, (r, g) in enumerate(q) if r & x.r]
                if needed:
                    n = min(15, len(q) - 1 - max(needed)); drop = len(q) - n
                    out.append(f's_waitcnt lgkmcnt({n})'); q = q[drop:]
                    if nvis is not None: nvis = max(0, nvis - drop)
            if x.cls == 'ds': q.append((set(x.w), gap))
            if x.cls == 'wait' and x.lgkm is not None:
                drop = max(0, len(q) - x.lgkm); q = q[drop:]
                if nvis is not None: nvis = max(0, nvis - drop)
            out.append(x.text)
    return out, [(r, gap - g) for r, g in q]

class Prog:
    def __init__(self): self.mf = []; self.ops = []; self.pos = {}
    def group(self, name, mf): self.pos[name] = len(self.mf); self.mf += mf
    def done(self):
        self.ins = [Ins(m) for m in self.mf]; self.n = len(self.mf); self.gaps = [Gap() for _ in self.mf]
    def first_read(self, R, lo): return next((i for i in range(lo, self.n) if R & self.ins[i].srcAB), INF)
    def last_read(self, R, hi): return next((i for i in range(min(hi, self.n) - 1, -1, -1) if R & self.ins[i].srcAB), -1)
    def last_write(self, R, hi): return next((i for i in range(min(hi, self.n) - 1, -1, -1) if R & self.ins[i].w), -1)
    def next_write(self, R, lo): return next((i for i in range(lo, self.n) if R & self.ins[i].w), INF)
    def kload(self, key, use, slot, tag, nkb=4, kbase=aK, addr=KA, rel0=0, dlmax=None):
        for f in range(4 * nkb):
            kb, ks = kord(f)
            R = AR(kbase + 16*kb + 4*ks, 4)
            u = self.first_read(R, use) if use < self.n else self.n + f
            rel = min(self.n - 1, max(rel0, self.last_read(R, u) + 1))
            dl = u - LAT if dlmax is None else min(u - LAT, dlmax - (4*nkb - 1 - f))
            self.ops.append(Op((key, f), 'R', rel, max(rel, dl), i_kread(kb, ks, slot, tag, kbase, addr), deps=[(key, f-1)] if f else []))
    def vload(self, key, use, slot, tag, nks=2, vbase=None, addr=VA, rel0=0):
        for db in range(8):
            for ks in range(nks):
                R = AR(vfrag(db, ks, vbase), 4)
                u = self.first_read(R, use)
                rel = max(rel0, self.last_read(R, u) + 1)
                for t in range(2):
                    if vbase == 'ov' and t == 1 and db < 7: continue
                    self.ops.append(Op((key, db, ks, t), 'T', rel, max(rel, u - LAT - (1 - t)), i_vread(db, ks, t, slot, tag, vbase, addr)))
    def softmax(self, key, at, sb, pb, nkb=4, only=None, skip=(), dlcap=None, use=0, lastrel=INF, zero=True):
        end = at + 4*nkb if at >= 0 else 0
        u = self.first_read(VR(P0 + 8*pb, 8), max(end, use))
        prel = min(self.last_read(VR(P0 + 8*pb, 8), u) + 1, u - 1)
        cap = min(u - 3, self.next_write(VR(S0 + 16*sb, 16), end) - 1, self.n - 1 if dlcap is None else dlcap)
        n = 4 * nkb; edl = {}
        for e in range(n):
            if (only is not None and ('e', e) not in only) or ('e', e) in skip: continue
            rel = min(lastrel, at + 4*(e//4) + 3 + 5) if at >= 0 else 0
            edl[e] = min(max(rel, cap - 1 - 2*(n - 1 - e), min(cap - 1, rel + e % 4)), max(rel, cap))
            self.ops.append(Op((key, 'e', e), 'E', rel, edl[e], i_exp(sb, e)))
        for i in range(2 * nkb):
            if (only is not None and ('c', i) not in only) or ('c', i) in skip: continue
            rel = max(prel, min(lastrel, at + 4*(i//2) + 3 + 6) if at >= 0 else 0)
            self.ops.append(Op((key, 'c', i), 'H', rel, max(rel, cap - (2*nkb - 1 - i), min(cap, edl.get(2*i+1, 0) + 1)), i_cvt(sb, pb, i),
                               deps=[(key, 'e', 2*i), (key, 'e', 2*i+1)]))
            assert rel <= u - 1, (key, i, rel, u)
        if only is None and zero:
            for i in range(2 * nkb, 8):
                self.ops.append(Op((key, 'z', i), 'H', prel, max(prel, u - 3), f'v_mov_b32 {v(P0+8*pb+i)}, 0'))

NG = 132
LOOP_MF = qkg(0) + pvg(2) + qkg(1) + pvg(3) + qkg(2) + pvg(0) + qkg(3) + pvg(1)
assert len(LOOP_MF) == NG
BARG = OPT.get('barg', 47)
DMAG = [10, 14, 18, 22, 26, 30, 34, 38]
RLG = [41, 43, 92, 96] if BARG not in (41, 43) else [45, 47, 92, 96]

def steady(DMAG, RLG, sh0):
    NT = 6
    ops = []
    gaps = [Gap() for _ in range(NG * (NT + 1))]
    for j in range(NT):
        b = NG * j
        for q in range(4):
            pvs = b + 82 + 33*q; qs = b + 33*q
            for e in range(16):
                g = qs + OPT['delta'] + 2*e + (sh0 if q == 0 else 0)
                ops.append(Op(('e', j, q, e), 'E', g, g, None))
            for i in range(8):
                ops.append(Op(('c', j, q, i), 'H', pvs - NG + 17, pvs - 3 - (7 - i), None, deps=[('e', j, q, 2*i), ('e', j, q, 2*i+1)]))
        for f in range(16):
            for t in range(2):
                ops.append(Op(('v', j, f//2, f%2, t), 'T', max(b + 50 + f, b + BARG + 1), b + 82 + f - LAT - (1 - t), None))
            ops.append(Op(('k', j, f//4, f%4), 'R', b + 100 + f, min(b + NG - 2 - (15 - f), b + NG + f - LAT), None,
                          deps=[('k', j, (f-1)//4, (f-1)%4)] if f else []))
        for i in range(4): ops.append(Op(('rl', j, i), 'E', b + RLG[i], b + RLG[i], None))
        for i in range(8): ops.append(Op(('d', j, i), 'D', b + DMAG[i], b + DMAG[i], None))
        gaps[b + BARG].block = 'all'
        gaps[b + NG - 1].block = 'half'
    schedule(NG * (NT + 1), ops, gaps)
    def pattern(j):
        return [[(o.key[0], o.key[1] - j) + o.key[2:] for o in gaps[NG*j + g].mem + gaps[NG*j + g].valu] for g in range(NG)]
    assert pattern(3) == pattern(4), 'no steady state'
    return pattern(3)
NCOPY = {0: 1, 1: 2, 2: 2, 4: 4}[OPT['stag']]
VARS = []
for ph in (0, 2, 1, 3)[:NCOPY]:
    dg = [g + ph for g in DMAG]; rg = RLG if ph < 3 else [43, 45, 92, 96]
    VARS.append((steady(dg, rg, ph & 1), dg, rg))
PAT = VARS[0][0]
assert all({k for g in V[0] for k in g if k[1] == -1} == {k for g in PAT for k in g if k[1] == -1} for V in VARS)
LEFT = {k for g in PAT for k in g if k[1] == -1}
assert all(k[0] in 'ec' and k[2] == 3 for k in LEFT), LEFT
LEFT3 = {(k[0], k[3]) for k in LEFT}
HEADWAIT = 's_waitcnt lgkmcnt(4)'

class Txt:
    def __init__(self, t): self.text = t

def body(sl, w=0):
    PAT, DMAG, RLG = VARS[w]
    def text(k):
        if k[0] == 'e': return i_exp(k[2], k[3])
        if k[0] == 'c': return i_cvt(k[2], k[2], k[3])
        if k[0] == 'v': return i_vread(k[2], k[3], k[4], sl, '+0')
        if k[0] == 'k': return i_kread(*kord(4*k[2] + k[3]), (sl + 1) % 4, '+1')
        if k[0] == 'rl': return f'v_readlane_b32 {s(SETS[sl%2] + k[2])}, {v(BT+k[2])}, {s(sLN)}'
        if k[0] == 'd': return i_dma(1, k[2], SETS[sl % 2], '+2') if k[2] < 4 else i_dma(0, k[2] - 4, SETS[(sl + 1) % 2], '+3')
    gaps = [Gap() for _ in range(NG)]
    for g in range(NG):
        for k in PAT[g]: (gaps[g].mem if k[0] in 'vkd' else gaps[g].valu).append(Txt(text(k)))
    gaps[DMAG[0] - 2].sc.append(i_m0(1, (sl + 2) % 4))
    gaps[DMAG[4] - 2].sc.append(i_m0(0, (sl + 3) % 4))
    gaps[RLG[-1] + 2].sc.append(f's_add_u32 {s(sLN)}, {s(sLN)}, 1')
    gaps[BARG - OPT.get('vmo', 1)].sc.append('s_waitcnt vmcnt(16)')
    gaps[BARG].sc.append('s_barrier')
    if sl == 0: gaps[NG - 3].sc.append(f's_sub_u32 {s(sIT)}, {s(sIT)}, 1')
    gaps[NG - 2].sc.append(HEADWAIT)
    lines = emit(LOOP_MF, gaps)
    ab = OPT.get('abl', 0)
    if ab & 1: lines = [l for l in lines if not l.startswith('buffer_load')]
    if ab & 2: lines = [l for l in lines if not l.startswith(('s_barrier', 's_waitcnt vmcnt'))]
    if ab & 32: lines = [l for l in lines if not l.startswith('s_barrier')]
    return lines

def dispatch(w):
    x = 'bcde'[w]
    return [f's_cmp_eq_u32 {s(sE)}, 2', f's_cbranch_scc1 L_{x}3', f's_cmp_eq_u32 {s(sE)}, 1', f's_cbranch_scc1 L_{x}2',
            f's_cmp_eq_u32 {s(sE)}, 3', f's_cbranch_scc1 L_{x}0', f's_cmp_eq_u32 {s(sNP)}, 4', 's_cbranch_scc1 L_tail']
def wave_select():
    if NCOPY == 1: return []
    if NCOPY == 2:
        return [f's_cmp_eq_u32 {s(sE2)}, 6', 's_cbranch_scc1 L_c3', f's_cmp_gt_u32 {s(sE2)}, 3', 's_cbranch_scc1 L_w1']
    return [x for w in (1, 2, 3) for x in (f's_cmp_eq_u32 {s(sW)}, {w}', f's_cbranch_scc1 L_w{w}')]
def loop_copy(w, pend):
    x = 'bcde'[w]
    out = [f'L_w{w}:'] + dispatch(w) + ['.p2align 6']
    for sl in (1, 2, 3, 0):
        l, pend2 = add_lgkm_waits(body(sl, w), pend)
        assert [x_[0] for x_ in pend2] == [x_[0] for x_ in pend]
        out += [f'L_{x}{sl}:'] + l
    return out + [f's_cbranch_scc0 L_{x}1', 's_branch L_tail']

def loop_code():
    _, pend = add_lgkm_waits(body(1))
    out = ['s_branch L_b1', 'L_padA:', 's_branch L_ret'] if OPT['touch'] else []
    out += ['.p2align 6']
    for sl in (1, 2, 3, 0):
        l, pend2 = add_lgkm_waits(body(sl), pend)
        assert [x[0] for x in pend2] == [x[0] for x in pend]
        out += [f'L_b{sl}:']
        if OPT.get('its'):
            for k in range(3):
                out += [f's_cmp_eq_u32 {s(sLN)}, {OPT["its"] + k * OPT.get("itd", 1)}', f's_cbranch_scc0 L_sk{sl}{k}', f's_mem{"real" if OPT.get("rt") else ""}time {s(sST+2+2*k,2)}', f'L_sk{sl}{k}:']
        out += l
        if OPT['touch'] and sl == 2: out += ['L_padB:', 's_cbranch_vccnz L_ret']
    return out + ['s_cbranch_scc0 L_b1'], pend

def epi_list(q, first):
    t = T0 + 2 * (q & 1)
    o = O0 + 32*q
    L = [('H', f'v_accvgpr_read_b32 {v(t)}, {a(aL+4*q)}', -1),
         ('H', f'v_accvgpr_read_b32 {v(t+1)}, {a(aL+4*q+1)}', -1),
         ('H', f'v_add_f32 {v(t)}, {v(t)}, {v(t+1)}', -1),
         ('E', f'v_rcp_f32 {v(t+1)}, {v(t)}', -1),
         ('H', f'v_subrev_u32 {v(t)}, 0x2b800000, {v(t)}', -1),
         ('H', f'v_mov_b32 {v(T0+4)}, {v(t)}' if first else f'v_max_u32 {v(T0+4)}, {v(T0+4)}, {v(t)}', -1)]
    def muls(u): return [('M', (o + 8*u + i, t + 1), u) for i in range(8)]
    def cvts(u): return [('H', f'v_cvt_pk_bf16_f32 {v(o+8*u+i)}, {v(o+8*u+2*i)}, {v(o+8*u+2*i+1)}', u) for i in range(4)]
    def swaps(u): return [('E', f'v_permlane16_swap_b32 {v(o+8*u+i)}, {v(o+8*u+2+i)}', u) for i in range(2)]
    def store(u):
        return [('D', f'buffer_store_dwordx4 {v(o+8*u,4)}, {v(OV)}, s[16:19], {"0" if q == 0 else s(sQ1+q-1)} offen offset:{64*u}{FL[OPT.get(f"of{q}", OPT["of"])]}', u)]
    if OPT['ep']:
        def writes(u): return [('T', f'ds_write_b64 {v(EW)}, {v(o+8*u+2*i,2)} offset:{64*u+32*i}', u) for i in range(2)]
        for u in range(4): L += muls(u) + cvts(u) + writes(u)
        L += [('R', f'ds_read_b128 {v(o+8*p+4,4)}, {v(ER)} offset:{1088*p}', 3) for p in range(4)]
        L += [('D', f'buffer_store_dwordx4 {v(o+8*p+4,4)}, {v(EG)}, s[16:19], {"0" if q == 0 else s(sQ1+q-1)} offen offset:{1024*p}{FL[OPT.get(f"of{q}", OPT["of"])]}', 3) for p in range(4)]
        return L
    h = lambda l, a_, b_: l[a_:b_]
    L += muls(0) + cvts(0) + h(muls(1), 0, 2) + swaps(0) + store(0) + h(muls(1), 2, 8) + cvts(1) + h(muls(2), 0, 2) + swaps(1) + store(1) \
       + h(muls(2), 2, 8) + cvts(2) + h(muls(3), 0, 2) + swaps(2) + store(2) + h(muls(3), 2, 8) + cvts(3) + [('H', 's_nop 1', 3)] + swaps(3) + store(3)
    return L

def final(q, items):
    return [sm(q, pb) for pb, vb, nk in items] + [pv(q, db, ks, pb, vb) for db in range(8) for pb, vb, nk in items for ks in range(nk)]

def tail_merged():
    P = Prog(); G = P.group
    k3 = lambda q, sb: qkg(q, 1, sb=sb, kbase=aX, mask=True)
    fin = lambda q, pb: final(q, [(q, None, 2), (pb, 'ov', 1)])
    G('q0', qkg(0)); G('p2', pvg(2)); G('p3', pvg(3)); G('r0', k3(0, 2)); G('r1', k3(1, 3)); G('q1', qkg(1))
    if OPT['tord'] == 0:
        G('f0', fin(0, 2)); G('q2', qkg(2)); G('r2', k3(2, 0)); G('f1', fin(1, 3)); G('q3', qkg(3)); G('r3', k3(3, 1))
    else:
        G('f0', fin(0, 2)); G('r2', k3(2, 0)); G('q2', qkg(2)); G('f1', fin(1, 3)); G('r3', k3(3, 1)); G('q3', qkg(3))
    G('f2', fin(2, 0)); G('f3', fin(3, 1))
    P.done(); p = P.pos
    bar2 = p['p3'] + 8
    P.softmax('left', -1, 3, 3, only=LEFT3)
    for q in range(4):
        P.softmax(f's{q}', p[f'q{q}'], q, q, use=p[f'f{q}'])
        P.softmax(f't{q}', p[f'r{q}'], (q + 2) % 4, (q + 2) % 4, 1, use=p[f'f{q}'])
    P.kload('k3', p['r0'], 2, 'T3', 1, kbase=aX, rel0=2); P.vload('v2', p['f0'], 1, 'T2', rel0=2)
    P.vload('v3', p['f0'], 2, 'T3', 1, 'ov', rel0=bar2 + 1)
    g = P.gaps
    g[0].sc.append('s_waitcnt vmcnt(8)'); g[1].sc.append('s_barrier'); g[1].block = 'all'
    g[bar2 - 1].sc.append('s_waitcnt vmcnt(4)'); g[bar2].sc.append('s_barrier'); g[bar2].block = 'all'
    return P

def tail_x():
    P = Prog(); G = P.group
    G('A1', qkg(0, sb=0)); G('A2', pvg(2)); G('A3', qkg(1, sb=1)); G('A4', pvg(3)); G('A5', qkg(0, sb=2))
    if OPT['tord'] < 2: G('A6', qkg(1, sb=3))
    G('A7', pvg(0, pb=0)); G('A8', pvg(1, pb=1)); G('A10', final(0, [(2, None, 2)]))
    if OPT['tord'] == 2: G('A6', qkg(1, sb=3))
    G('B1', qkg(2, sb=2)); G('A11', final(1, [(3, None, 2)])); G('B2', qkg(3, sb=3)); G('B3', qkg(2, sb=0))
    G('r3', qkg(3, 1, sb=1, kbase=aX, mask=True)); G('B4', pvg(2, pb=2)); G('B5', pvg(3, pb=3))
    if OPT['tord']:
        G('B8', final(2, [(0, None, 2)])); G('B6', qkg(3, sb=1)); G('x3', final(3, [(3, 'ov', 1)])); G('B9', final(3, [(1, None, 2)]))
    else:
        G('B6', qkg(3, sb=1)); G('B8', final(2, [(0, None, 2)])); G('B9', final(3, [(1, None, 2), (3, 'ov', 1)]))
    P.done(); p = P.pos
    bar2 = p['A5'] + 6
    P.softmax('left', -1, 3, 3, only=LEFT3)
    P.softmax('s10', p['A1'], 0, 0); P.softmax('s11', p['A3'], 1, 1); P.softmax('s20', p['A5'], 2, 2); P.softmax('s21', p['A6'], 3, 3)
    P.softmax('s12', p['B1'], 2, 2); P.softmax('s13', p['B2'], 3, 3); P.softmax('s22', p['B3'], 0, 0); P.softmax('s23', p['B6'], 1, 1)
    P.softmax('t3', p['r3'], 1, 3, 1, use=p['B8'])
    P.kload('k2', p['A5'], 2, 'T2', rel0=2); P.vload('v1', p['A7'], 1, 'T1', rel0=2); P.vload('v2', p['A10'], 2, 'T2', rel0=bar2 + 1)
    P.kload('k1b', p['B1'], 1, 'T1'); P.kload('k2b', p['B3'], 2, 'T2'); P.vload('v1b', p['B4'], 1, 'T1'); P.vload('v2b', p['B8'], 2, 'T2')
    g = P.gaps
    g[0].sc.append('s_waitcnt vmcnt(8)'); g[1].sc.append('s_barrier'); g[1].block = 'all'
    g[bar2 - 1].sc.append('s_waitcnt vmcnt(4)'); g[bar2].sc.append('s_barrier'); g[bar2].block = 'all'
    if OPT.get('otlb') == 2:
        P.ops.append(Op(('ot', 0), 'D', bar2 + 2, bar2 + 2, f'buffer_load_dword {v(BT)}, {v(OV)}, s[16:19], 0 offen sc1'))
    return P

def tail_pairs(nkb):
    nks = 1 if nkb <= 2 else 2
    small = nkb <= 2
    vx = aX if small else None
    P = Prog()
    G = P.group
    G('A1', qkg(0, sb=0)); G('A2', pvg(2)); G('A3', qkg(1, sb=1)); G('A4', pvg(3))
    G('A5', qkg(0, sb=2)); G('A6', qkg(1, sb=3)); G('A7', pvg(0, pb=0))
    if not small: G('A8', pvg(1, pb=1))
    G('A9a', qkg(0, nkb, sb=0, mask=True)); G('A9b', qkg(1, nkb, sb=1, mask=True))
    if small:
        G('A8', pvg(1, pb=1))
        G('A10', final(0, [(2, None, 2), (0, vx, 1)])); G('B1', qkg(2, sb=2)); G('A11', final(1, [(3, None, 2), (1, vx, 1)]))
        G('B2', qkg(3, sb=3)); G('B3', qkg(2, sb=0)); G('B4', pvg(2, pb=2))
        G('B7a', qkg(2, nkb, sb=2, kbase=aQ, mask=True)); G('B7b', qkg(3, nkb, sb=3, kbase=aQ, mask=True)); G('B5', pvg(3, pb=3))
        if OPT['tord']:
            G('B8', final(2, [(0, None, 2), (2, vx, 1)])); G('B6', qkg(3, sb=1))
            G('B9a', final(3, [(3, vx, 1)])); G('B9', final(3, [(1, None, 2)]))
        else:
            G('B6', qkg(3, sb=1))
            G('B8', final(2, [(0, None, 2), (2, vx, 1)])); G('B9', final(3, [(1, None, 2), (3, vx, 1)]))
    else:
        G('A10p', pvg(0, pb=2)); G('A11p', pvg(1, pb=3)); G('B1', qkg(2, sb=2))
        G('A10', final(0, [(0, None, 2)])); G('A11', final(1, [(1, None, 2)]))
        G('B2', qkg(3, sb=3)); G('B3', qkg(2, sb=0)); G('B4', pvg(2, pb=2)); G('B5', pvg(3, pb=3)); G('B6', qkg(3, sb=1))
        G('B8p', pvg(2, pb=0)); G('B7a', qkg(2, nkb, sb=2, mask=True)); G('B9p', pvg(3, pb=1)); G('B7b', qkg(3, nkb, sb=3, mask=True))
        G('B8', final(2, [(2, None, 2)])); G('B9', final(3, [(3, None, 2)]))
    P.done(); p = P.pos
    bar2 = p['A6'] + 10
    P.softmax('left', -1, 3, 3, only=LEFT3)
    P.softmax('s10', p['A1'], 0, 0); P.softmax('s11', p['A3'], 1, 1); P.softmax('s20', p['A5'], 2, 2); P.softmax('s21', p['A6'], 3, 3)
    P.softmax('s30', p['A9a'], 0, 0, nkb); P.softmax('s31', p['A9b'], 1, 1, nkb, use=p['A10'])
    P.softmax('s12', p['B1'], 2, 2); P.softmax('s13', p['B2'], 3, 3); P.softmax('s22', p['B3'], 0, 0); P.softmax('s23', p['B6'], 1, 1)
    P.softmax('s32', p['B7a'], 2, 2, nkb); P.softmax('s33', p['B7b'], 3, 3, nkb, use=p['B8'])
    P.kload('k2', p['A5'], 2, 'T2', rel0=2); P.vload('v1', p['A7'], 1, 'T1', rel0=2)
    P.kload('k3', p['A9a'], 3, 'T3', nkb, rel0=bar2 + 1)
    P.kload('k1b', p['B1'], 1, 'T1'); P.kload('k2b', p['B3'], 2, 'T2'); P.vload('v1b', p['B4'], 1, 'T1')
    if small:
        P.vload('v2', p['A10'], 2, 'T2', rel0=bar2 + 1); P.vload('v3', p['A10'], 3, 'T3', 1, vx, rel0=bar2 + 1)
        P.kload('k3b', p['B7a'], 3, 'T3', nkb, kbase=aQ); P.vload('v2b', p['B8'], 2, 'T2')
    else:
        P.vload('v2', p['A10p'], 2, 'T2', rel0=bar2 + 1); P.vload('v3', p['A10'], 3, 'T3')
        P.kload('k3b', p['B7a'], 3, 'T3', nkb); P.vload('v2b', p['B8p'], 2, 'T2'); P.vload('v3b', p['B8'], 3, 'T3')
    for i in range(4):
        P.ops.append(Op(('d', i), 'D', 10 + 4*i, 11 + 4*i, i_dma(1, i, SETS[1], 'T3')))
    g = P.gaps
    g[0].sc.append('s_waitcnt vmcnt(8)'); g[1].sc.append('s_barrier'); g[1].block = 'all'
    g[8].sc.append(i_m0(1, 3))
    g[bar2 - 1].sc.append('s_waitcnt vmcnt(0)'); g[bar2].sc.append('s_barrier'); g[bar2].block = 'all'
    return P

def tail(nkb, pend):
    P = {3: tail_merged, 4: tail_x}[OPT['tv']]() if nkb == 1 and OPT['tv'] >= 3 else tail_pairs(nkb)
    p = P.pos
    prev = None
    if OPT['ep']:
        t = T0
        setup = [f'v_mbcnt_lo_u32_b32 {v(t)}, -1, 0', f'v_mbcnt_hi_u32_b32 {v(t)}, -1, {v(t)}',
                 f'v_and_b32 {v(t+1)}, 15, {v(t)}', f'v_lshrrev_b32 {v(t+2)}, 4, {v(t)}',
                 f'v_mul_u32_u24 {v(EW)}, 272, {v(t+1)}', f'v_lshl_add_u32 {v(EW)}, {v(t+2)}, 3, {v(EW)}',
                 f'v_mul_u32_u24 {v(ER)}, 272, {v(t+2)}', f'v_lshl_add_u32 {v(ER)}, {v(t+1)}, 4, {v(ER)}',
                 f'v_add_u32 {v(EW)}, {s(sT+3)}, {v(EW)}', f'v_add_u32 {v(ER)}, {s(sT+3)}, {v(ER)}',
                 f'v_lshlrev_b32 {v(EG)}, 4, {v(t)}', f'v_add_u32 {v(EG)}, {s(sT+4)}, {v(EG)}']
        for i, x in enumerate(setup):
            o = Op(('su', i), 'H', 24, INF, x, fifo=prev, pri=100 + i); prev = o.key; P.ops.append(o)
    for q in range(4):
        lrel = P.last_write(AR(aL + 4*q, 4), INF) + 5
        nst = 0
        for i, (c, t, u) in enumerate(epi_list(q, q == 0)):
            rel = lrel if u < 0 else max(lrel, P.last_write(VR(O0 + 32*q + 8*u, 8), INF) + 5)
            fin = P.last_write(VR(O0 + 32*q, 32), INF) + 5
            edl = OPT.get(f'edl{q}', OPT.get('edl', INF))
            nst += c == 'D'
            dl = INF if edl >= INF else fin + edl + (LAT + OPT['ssp'] * (nst - 1) if c == 'D' and OPT['ep'] else 0)
            o = Op(('ep', q, i), {'M': 'H'}.get(c, c), rel, dl if dl < P.n - 1 else INF, f'v_mul_f32 {v(t[0])}, {v(t[1])}, {v(t[0])}' if c == 'M' else t,
                   fifo=prev, pri=rel + OPT['epri'] + i // 2)
            o.raw = (c, t); prev = o.key; P.ops.append(o)
            if c != 'D': lastnd = o.key
        if OPT['ep']: prev = lastnd
    g = P.gaps
    todo = schedule(P.n, P.ops, g, overflow=True)
    if OPT.get('ts'):
        names = {1: ('A5', 'A10', 'B2'), 2: ('B4', 'B8', 'B9'), 3: ('A2', 'A7', 'A11')}[OPT['ts']] if 'A5' in p else {1: ('p3', 'f0', 'f1'), 2: ('q3', 'f2', 'f3')}[OPT['ts']]
        for k, nm in enumerate(names): g[p[nm]].sc += stamp(1 + k)
        if nkb == 1: print('stamp mfma idx', [p[nm] for nm in names], p)
    if OPT['pkd']:
        import re
        for gp in g:
            if sum(x.startswith('v_mul_f32') for x in gp.post) < OPT['pkd']: continue
            out = []; i = 0
            while i < len(gp.post):
                m = re.match(r'v_mul_f32 v(\d+), v(\d+),', gp.post[i])
                if m and int(m.group(1)) % 2 == 0 and i + 1 < len(gp.post) and gp.post[i+1].startswith(f'v_mul_f32 v{int(m.group(1))+1},'):
                    out.append(f'v_pk_mul_f32 {v(int(m.group(1)),2)}, {v(int(m.group(1)),2)}, {v(int(m.group(2))-1,2)} op_sel:[0,1] op_sel_hi:[1,1]'); i += 2
                else: out.append(gp.post[i]); i += 1
            gp.post = out
    lines = emit(P.mf, g)
    assert all(o.key[0] == 'ep' for o in todo), [o.key for o in todo]
    i = 0
    while i < len(todo):
        c, t = todo[i].raw
        if c == 'M' and i + 1 < len(todo) and todo[i+1].raw[0] == 'M' and t[0] % 2 == 0 and todo[i+1].raw[1][0] == t[0] + 1:
            lines.append(f'v_pk_mul_f32 {v(t[0],2)}, {v(t[0],2)}, {v(t[1]-1,2)} op_sel:[0,1] op_sel_hi:[1,1]'); i += 2
        else:
            lines.append(todo[i].text); i += 1
    lines, _ = add_lgkm_waits(lines, pend)
    return lines

def scale_q(q):
    out = []
    for h in range(0, 16, 4):
        for i in range(4):
            x = S0 + 16*q + h + i; t = T0 + 2*i
            out += [f'v_lshlrev_b32 {v(t)}, 16, {v(x)}', f'v_and_b32 {v(t+1)}, 0xffff0000, {v(x)}']
        out += [f'v_pk_mul_f32 {v(T0+2*i,2)}, {v(T0+2*i,2)}, {s(sC,2)}' for i in range(4)]
        out += [f'v_cvt_pk_bf16_f32 {v(S0+16*q+h+i)}, {v(T0+2*i)}, {v(T0+2*i+1)}' for i in range(4)]
        out += [f'v_accvgpr_write_b32 {a(aQ+16*q+h+i)}, {v(S0+16*q+h+i)}' for i in range(4)]
    return out
def qread(q): return [f'ds_read_b128 {v(S0+16*q+4*ks,4)}, {v(QA+ks)} offset:{(q&1)*0x4000}' for ks in range(4)] + ['s_waitcnt lgkmcnt(0)']
def qload(q):
    return [f's_add_u32 m0, {s(sMK)}, {0x20000 + (q&1)*0x4000}', 's_nop 0'] + \
           [f'buffer_load_dwordx4 {v(QD+p)}, s[4:7], {"0" if q == 0 else s(sQ1+q-1)} offen offset:{1024*p}{FL[OPT["qf"]]} lds ; ld Q{q}' for p in range(4)]
def dma4(isv, tile):
    return [f's_add_u32 m0, {s(sMV if isv else sMK)}, {s(sSL+tile)}', 's_nop 0'] + [i_dma(isv, i, 40 + 4*tile, tile) for i in range(4)]
def btprep(tile):
    out = []
    for i in range(4):
        r = 40 + 4*tile + i
        out.append(f's_min_u32 {s(r)}, {s(r)}, 131')
        out.append(f's_lshl_b32 {s(r)}, {s(r)}, 16')
        if i < 3: out.append(f's_or_b32 {s(r)}, {s(r)}, {(3-i)*1024}')
    return out

def resolve_waitvm(lines):
    out = []; vm = []
    for l in lines:
        if l.startswith('WAITVM'):
            tags = l.split(None, 1)[1].split('|')
            last = max(i for i, t in enumerate(vm) if t in tags)
            wb = {1: ('ld Q0', 'ld Q1'), 2: ('ld Q2', 'ld Q3'), 3: ('dma K 0', 'dma V 0'), 4: ('dmx K', 'ld BT')}.get(OPT.get('wb'), ())
            st_ = lambda i: [f's_memtime {s(sST+2*i,2)}']
            if tags[0] in wb: out += st_(1 + 2*wb.index(tags[0]))
            out.append(f's_waitcnt vmcnt({len(vm) - 1 - last}) ; {tags}')
            if tags[0] in wb: out += st_(2 + 2*wb.index(tags[0]))
        else:
            if l.startswith(('buffer_', 'global_')): vm.append(l.split(';')[1].strip() if ';' in l else '')
            out.append(l)
    return out

def prologue():
    t = T0
    L = ([f's_mov_b32 s77, {OPT["twice"]}', 'L_again:'] if OPT.get('twice') else []) + ['s_cmp_ge_u32 s2, 256', 's_cbranch_scc1 L_end',
         's_load_dwordx8 s[24:31], s[0:1], 0', 's_load_dwordx4 s[32:35], s[0:1], 32']
    L += [f's_lshr_b32 {s(sT+1)}, s2, 3']
    if OPT['cpf']:
        L += ['s_getpc_b64 s[8:9]', 'L_pc:', f's_lshl_b32 s10, {s(sT+1)}, 10', 'v_lshl_add_u32 v2, v0, 2, s10', 'v_mov_b32 v3, 0',
              'v_lshl_add_u64 v[2:3], v[2:3], 0, s[8:9]', f'global_load_dword {v(T0+7)}, v[2:3], off']
    L += stamp(0) + (['s_memrealtime s[100:101]'] if OPT['stamp'] else [])
    L += [f'v_lshrrev_b32 {v(t)}, 6, v0',
          f'v_and_b32 {v(t+2)}, 15, v0',
          f'v_readfirstlane_b32 {s(sW)}, {v(t)}',
          f'v_bfe_u32 {v(t+3)}, v0, 4, 2',
          f's_and_b32 {s(sT)}, s2, 7', f's_lshl_b32 {s(sT)}, {s(sT)}, 5',
          f's_add_u32 {s(sT)}, {s(sT)}, {s(sT+1)}', f's_lshl_b32 {s(sT+1)}, {s(sT)}, 16',
          f'v_lshl_add_u32 {v(t+4)}, {v(t)}, 6, {v(t+3)}', f'v_xor_b32 {v(t+5)}, {v(t+2)}, {v(t+3)}',
          f'v_lshl_add_u32 {v(QD)}, {v(t+4)}, 4, {v(t+5)}', f'v_lshlrev_b32 {v(QD)}, 4, {v(QD)}',
          f's_lshl_b32 {s(sMK)}, {s(sW)}, 12', f'v_xor_b32 {v(QD+1)}, 64, {v(QD)}', f'v_xor_b32 {v(QD+2)}, 0x80, {v(QD)}',
          f'v_xor_b32 {v(QD+3)}, 64, {v(QD+2)}', 's_mov_b32 s6, 0x10000', 's_mov_b32 s7, 0x20000', qload(0)[0],
          's_waitcnt lgkmcnt(0)',
          f's_add_u32 s4, s24, {s(sT+1)}', 's_addc_u32 s5, s25, 0',
          f's_load_dword {s(sCL)}, s[32:33], 0', 's_load_dwordx16 s[40:55], s[30:31], 0']
    L += qload(0)[2:]
    if OPT['cpf'] and NCOPY > 2:
        L += ['s_mov_b64 s[8:9], 0x8000', 'v_lshl_add_u64 v[2:3], v[2:3], 0, s[8:9]', f'global_load_dword {v(T0+7)}, v[2:3], off']
    L += [f'v_and_b32 {v(t+1)}, 63, v0', f'v_lshlrev_b32 {v(t+6)}, 4, {v(t+1)}',
          's_mov_b32 s20, s30', 's_mov_b32 s21, s31', 's_movk_i32 s22, 0x200', 's_mov_b32 s23, 0x20000',
          f'buffer_load_dwordx4 {v(BT,4)}, {v(t+6)}, s[20:23], 0 offen ; ld BT',
          f's_lshr_b32 {s(sT)}, {s(sT)}, 4', f's_lshl_b32 {s(sT)}, {s(sT)}, 8',
          f's_add_u32 s8, s26, {s(sT)}', 's_addc_u32 s9, s27, 0', 's_sub_u32 s8, s8, 3072', 's_subb_u32 s9, s9, 0',
          f's_sub_u32 s10, {KBYTES+3072}, {s(sT)}', 's_mov_b32 s11, 0x20000',
          f'v_lshl_add_u32 {v(t+4)}, {v(t)}, 2, {v(t+3)}',
          f'v_xor_b32 {v(t+6)}, {v(t+2)}, {v(t+4)}', f'v_lshlrev_b32 {v(t+6)}, 4, {v(t+6)}',
          f'v_lshl_add_u32 {v(DK)}, {v(t+4)}, 12, {v(t+6)}',
          f'v_and_b32 {v(t+6)}, 7, {v(t+4)}', f'v_lshlrev_b32 {v(t+6)}, 1, {v(t+6)}',
          f'v_xor_b32 {v(t+6)}, {v(t+2)}, {v(t+6)}', f'v_lshlrev_b32 {v(t+6)}, 4, {v(t+6)}',
          f'v_lshl_add_u32 {v(DV)}, {v(t+4)}, 12, {v(t+6)}',
          f's_movk_i32 {s(sQ1)}, 0x1000', f's_movk_i32 {s(sQ1+1)}, 0x2000', f's_movk_i32 {s(sQ1+2)}, 0x3000',
          f's_add_u32 s12, s28, {s(sT)}', 's_addc_u32 s13, s29, 0', 's_sub_u32 s12, s12, 3072', 's_subb_u32 s13, s13, 0',
          's_mov_b32 s14, s10', 's_mov_b32 s15, 0x20000',
          f's_add_u32 s16, s34, {s(sT+1)}', 's_addc_u32 s17, s35, 0', 's_mov_b32 s18, 0x10000', 's_mov_b32 s19, 0x20000',
          f's_add_u32 {s(sMV)}, {s(sMK)}, 0x10000', f's_mov_b32 {s(sC)}, 0x3e0293ee',
          's_waitcnt lgkmcnt(0)'] + stamp(1)
    L += [f's_cmp_lt_i32 {s(sCL)}, 1', f's_cselect_b32 {s(sC)}, 0, {s(sC)}', f's_cselect_b32 {s(sCL)}, 0x800, {s(sCL)}',
          f's_min_u32 {s(sCLT)}, {s(sCL)}, 0x800', f's_max_u32 {s(sCL)}, {s(sCLT)}, {MINCL}',
          f's_add_u32 {s(sN)}, {s(sCL)}, 63', f's_lshr_b32 {s(sN)}, {s(sN)}, 6',
          f's_mov_b32 {s(sNP)}, {s(sN)}']
    if OPT['tv'] == 3:
        L += [f's_sub_u32 {s(sNP)}, {s(sCL)}, 1', f's_and_b32 {s(sNP)}, {s(sNP)}, 63', f's_cmp_lt_u32 {s(sNP)}, 16', f's_addc_u32 {s(sNP)}, {s(sN)}, 0']
    L += [f's_sub_u32 {s(sE)}, 0, {s(sNP)}', f's_and_b32 {s(sE)}, {s(sE)}, 3', f's_lshl_b32 {s(sSL)}, {s(sE)}, 14']
    L += btprep(0) + dma4(0, 0) + qload(1)
    if OPT.get('otlb') == 1:
        L += [f'buffer_load_dword {v(O0+8)}, {v(QD)}, s[16:19], 0 offen sc1 ; ld O']
    L += [f's_mov_b32 {s(sC2)}, {s(sC)}',
          f's_cmp_lt_u32 {s(sCLT)}, {4096 if OPT["forceslow"] else MINCL}', f's_cselect_b32 {s(sFORCE)}, 1, 0',
          f's_add_u32 {s(sIT)}, {s(sNP)}, {s(sE)}', f's_lshr_b32 {s(sIT)}, {s(sIT)}, 2', f's_sub_u32 {s(sIT)}, {s(sIT)}, 2']
    for i in range(1, 4):
        L += [f's_add_u32 {s(sSL+i)}, {s(sSL)}, {i*0x4000}', f's_and_b32 {s(sSL+i)}, {s(sSL+i)}, 0xc000']
    L += [f's_sub_u32 {s(sT)}, {s(sN)}, 1', f's_lshl_b32 {s(sT)}, {s(sT)}, 6', f's_sub_u32 {s(sT)}, {s(sCL)}, {s(sT)}',
          f's_add_u32 {s(sNKB)}, {s(sT)}, 15', f's_lshr_b32 {s(sNKB)}, {s(sNKB)}, 4',
          f's_sub_u32 {s(sT)}, {s(sT)}, 1', f's_and_b32 {s(sT)}, {s(sT)}, 15',
          f's_and_b32 {s(sT+1)}, {s(sE)}, 1', f's_sub_u32 {s(sT+1)}, 4, {s(sT+1)}', f's_sub_u32 {s(sT+2)}, 7, {s(sT+1)}',
          f's_mov_b32 {s(sLN)}, 5', f's_bfe_u32 {s(sE2)}, {s(sW)}, {0x10000 + max(OPT["stag"], 1) - 1:#x}', f's_lshl2_add_u32 {s(sE2)}, {s(sE2)}, {s(sE)}',
          f's_lshl_b32 {s(sT+3)}, {s(sW)}, 13', f's_add_u32 {s(sT+3)}, {s(sT+3)}, 0x20000', f's_lshl_b32 {s(sT+4)}, {s(sW)}, 14']
    L += [f'v_lshrrev_b32 {v(t+4)}, 2, {v(t+2)}', f'v_lshlrev_b32 {v(t+4)}, 4, {v(t+4)}',
          f'v_and_b32 {v(t+6)}, 3, {v(t+2)}', f'v_add_u32 {v(t+4)}, {v(t+4)}, {v(t+6)}', f'v_lshlrev_b32 {v(t+4)}, 8, {v(t+4)}',
          f'v_lshlrev_b32 {v(t+6)}, 12, {v(t)}', f'v_lshl_add_u32 {v(t+6)}, {v(t+2)}, 8, {v(t+6)}', f'v_add_u32 {v(t+6)}, 0x20000, {v(t+6)}']
    for ks in range(4):
        L += [f'v_xor_b32 {v(MK)}, {4*ks}, {v(t+5)}', f'v_lshl_add_u32 {v(KA+ks)}, {v(MK)}, 4, {v(t+4)}',
              f'v_lshl_add_u32 {v(QA+ks)}, {v(MK)}, 4, {v(t+6)}', f'v_add_u32 {v(KA0+ks)}, {s(sSL)}, {v(KA+ks)}']
    L += [f'v_bfe_u32 {v(t+5)}, {v(t+1)}, 2, 2',
          f'v_lshl_add_u32 {v(t+4)}, {v(t+3)}, 4, {v(t+5)}', f'v_lshlrev_b32 {v(t+4)}, 8, {v(t+4)}',
          f'v_and_b32 {v(MK)}, 3, {v(t+1)}', f'v_lshl_add_u32 {v(t+4)}, {v(MK)}, 3, {v(t+4)}', f'v_add_u32 {v(t+4)}, 0x10000, {v(t+4)}',
          f'v_lshl_add_u32 {v(t+5)}, {v(t+3)}, 2, {v(t+5)}', f'v_and_b32 {v(t+5)}, 7, {v(t+5)}']
    for db in range(8):
        L += [f'v_xor_b32 {v(VA+db)}, {db}, {v(t+5)}', f'v_lshl_add_u32 {v(VA+db)}, {v(VA+db)}, 5, {v(t+4)}',
              f'v_add_u32 {v(VA0+db)}, {s(sSL)}, {v(VA+db)}']
    L += [f'v_lshlrev_b32 {v(t+4)}, 14, {v(t)}', f'v_lshl_add_u32 {v(t+4)}, {v(t+2)}, 8, {v(t+4)}',
          f'v_and_b32 {v(t+5)}, 1, {v(t+3)}', f'v_lshl_add_u32 {v(t+4)}, {v(t+5)}, 5, {v(t+4)}',
          f'v_lshrrev_b32 {v(t+5)}, 1, {v(t+3)}', f'v_lshl_add_u32 {v(OV)}, {v(t+5)}, 4, {v(t+4)}',
          f'v_and_b32 {v(t+4)}, 1, {v(t+1)}', f'v_mov_b32 {v(t+5)}, 0xaaaaaaaa',
          f'v_mul_lo_u32 {v(t+4)}, {v(t+4)}, {v(t+5)}', f'v_or_b32 {v(IDX)}, 0x44444444, {v(t+4)}', f'v_mov_b32 {v(t+5)}, 0x3f803f80']
    L += [f'v_accvgpr_write_b32 {a(aONE+i)}, {v(t+5)}' for i in range(4)]
    L += [f'v_lshlrev_b32 {v(t+4)}, 2, {v(t+3)}', f'v_mov_b32 {v(t+5)}, {NEG:#x}']
    for r in range(4):
        L += [f'v_add_u32 {v(t+6)}, {r}, {v(t+4)}', f'v_cmp_lt_u32 vcc, {s(sT)}, {v(t+6)}', 's_nop 1',
              f'v_cndmask_b32 {v(MK+r)}, 0, {v(t+5)}, vcc']
    L += btprep(1) + btprep(2) + btprep(3)
    L += [f'v_mov_b32 {v(O0+i)}, 0' for i in range(64, 128)]
    L += [f'v_accvgpr_write_b32 {a(aL+i)}, 0' for i in range(16)]
    groups = {'q2': qload(2), 'q3': qload(3), 'v0': dma4(1, 0), 'k1': dma4(0, 1), 'v1': dma4(1, 1), 'k2': dma4(0, 2), 'v2': dma4(1, 2), 'k3': dma4(0, 3)}
    plan = {0: dict(A=['q2'], B=['v0'], C=['q3'], D=['k1', 'v1'], E=['k2'], F=['v2', 'k3']),
            1: dict(A=['q2'], B=['v0'], C=['q3'], D=['k1'], E2=['v1', 'k2'], G=['v2', 'k3']),
            2: dict(A=['q2', 'v0'], C=['q3', 'k1'], D=['v1'], E2=['k2'], G=['v2', 'k3']),
            3: dict(A0=['v0'], A=['q2'], C=['q3', 'k1'], D=['v1', 'k2'], G=['v2', 'k3']),
            4: dict(A=['q2'], B=['v0'], C=['q3', 'k1'], D=['v1'], E2=['k2'], G=['v2', 'k3']),
            5: dict(A=['q2'], B=['v0'], C=['q3', 'k1'], D2=['v1', 'k2'], G=['v2', 'k3']),
            6: dict(A=['q2'], B=['v0', 'k1'], C=['q3'], D2=['v1', 'k2'], G=['v2', 'k3']),
            7: dict(A=['q2'], B=['v0'], C=['q3', 'k1'], D2=['v1', 'k2'], E2=['v2', 'k3']),
            8: dict(A=['q2'], B=['v0', 'k1'], C=['q3'], P=['v1', 'k2'], S=['v2', 'k3']),
            9: dict(A=['q2', 'v0'], B=['k1'], C=['q3'], P=['v1', 'k2'], S=['v2', 'k3']),
            10: dict(A0=['v0'], A=['q2'], B=['k1'], C=['q3'], P=['v1', 'k2'], S=['v2', 'k3']),
            11: dict(A=['q2'], B=['v0', 'k1'], C=['q3'], D2=['v1', 'k2'], S=['v2', 'k3']),
            12: dict(A=['q2'], B=['v0', 'k1'], C3=['q3'], P=['v1', 'k2'], S=['v2', 'k3']),
            13: dict(A=['q2'], B=['v0'], B2=['k1'], C3=['q3'], P=['v1', 'k2'], S=['v2', 'k3']),
            14: dict(A=['v0'], B=['q2'], C=['k1'], C3=['q3'], P=['v1', 'k2'], S=['v2', 'k3']),
            15: dict(A=['q2'], B2=['v0'], C2=['k1'], C3=['q3'], P=['v1', 'k2'], S=['v2', 'k3']),
            16: dict(A2=['q2'], B2=['v0'], C2=['k1'], C3=['q3'], P=['v1', 'k2'], S=['v2', 'k3']),
            17: dict(A=['q2'], B=['v0'], C=['k1'], C2=['q3'], P=['v1', 'k2'], S=['v2', 'k3']),
            18: dict(A=['q2'], B=['v0'], B2=['k1'], C2=['q3'], P=['v1', 'k2'], S=['v2', 'k3']),
            19: dict(A=['v0'], B=['q2'], C=['k1'], C3=['q3'], P=['v1'], S=['k2', 'v2'], K=['k3']),
            20: dict(A=['v0'], B=['q2'], C=['k1'], C3=['q3'], S=['v1', 'k2'], K=['v2', 'k3']),
            21: dict(A=['v0'], B=['q2'], C=['k1'], C2=['q3'], S=['v1', 'k2'], K=['v2', 'k3']),
            22: dict(A=['v0'], A2=['q2'], B2=['k1'], C2=['q3'], S=['v1', 'k2'], K=['v2', 'k3']),
            23: dict(A0=['v0'], A=['q2'], B2=['k1'], C2=['q3'], S=['v1', 'k2'], K=['v2', 'k3']),
            24: dict(A=['v0'], B=['q2'], C=['q3'], C3=['k1'], S=['v1', 'k2'], K=['v2', 'k3']),
            25: dict(A=['v0'], B=['q2'], C=['k1'], C3=['q3'], P=['v1', 'k2'], S=['v2'], K=['k3']),
            26: dict(A=['v0'], B=['q2'], C=['k1'], C3=['q3'], D=['v1'], P=['k2'], S=['v2'], K=['k3']),
            27: dict(A=['v0'], B=['q2'], C=['k1', 'v1'], C3=['q3'], P=['k2'], S=['v2'], K=['k3']),
            28: dict(A=['v0', 'k1'], B=['q2'], C2=['q3'], P=['v1', 'k2'], S=['v2'], K=['k3']),
            29: dict(A=['v0'], A2=['k1'], B=['q2'], C2=['q3'], D=['v1'], P=['k2'], S=['v2'], K=['k3'])}[OPT['po']]
    at = lambda p_: [x for g_ in plan.get(p_, []) for x in groups[g_]]
    X = OPT['tv'] == 4
    btv = lambda i: [f'v_min_u32 {v(BT+i)}, 131, {v(BT+i)}', f'v_lshlrev_b32 {v(BT+i)}, 16, {v(BT+i)}'] + ([f'v_or_b32 {v(BT+i)}, {(3-i)*1024}, {v(BT+i)}'] if i < 3 else [])
    touch = []
    if OPT['touch']:
        touch = ['s_mov_b64 vcc, -1', f's_cmp_eq_u32 {s(sW)}, 0', 's_cbranch_scc1 L_padB', f's_cmp_eq_u32 {s(sW)}, 1', 's_cbranch_scc1 L_padA',
                 'L_ret:', 's_mov_b64 vcc, 0']
    L += at('A0') + (touch if OPT['touch'] == 1 else []) + (['L_walk:'] if OPT['walk'] else []) + ['WAITVM ld Q0'] + stamp(2)
    if X:
        L += ['WAITVM ld BT'] + btv(0) + [f's_sub_u32 {s(sT+5)}, {s(sN)}, 1', f'v_readlane_b32 {s(sT)}, {v(BT)}, {s(sT+5)}'] + qread(0)
        L += [f's_add_u32 m0, {s(sMV)}, {s(sSL+3)}', f's_sub_u32 {s(sT+5)}, {s(sT)}, 1024',
              f'buffer_load_dwordx4 {v(DV)}, s[12:15], {s(sT)} offen lds ; dmx V',
              f'buffer_load_dwordx4 {v(DK)}, s[8:11], {s(sT+5)} offen offset:1024 lds ; dmx K']
    else: L += qread(0)
    L += at('A') + scale_q(0) + at('A2') + ['WAITVM ld BT']
    for i in range(1 if X else 0, 4): L += btv(i)
    L += ['s_nop 0'] + [f'v_readlane_b32 {s(SETS[k]+i)}, {v(BT+i)}, {s(sT+1+k)}' for k in range(2) for i in range(4)]
    L += (touch if OPT['touch'] == 2 else []) + ['WAITVM dma K 0', 's_barrier']
    L += [i_kread(*kord(f), 0, '0', addr=KA0) for f in range(16)] + at('B')
    def tile0(x):
        P = Prog(); G = P.group
        r = lambda q, sb: qkg(q, 1, sb=sb, kbase=aX, mask=True)
        xv = lambda q: [pv(q, db, 0, 2, 'ov', first=q < 2) for db in range(8)] + [sm(q, 2)]
        G('q0', qkg(0))
        if x: G('r0', r(0, 2)); G('r1', r(1, 3))
        G('q1', qkg(1))
        if x: G('x0', xv(0)); G('x1', xv(1)); G('r2', r(2, 3))
        G('q2', qkg(2))
        if x: G('x2', xv(2))
        G('p0', pvg(0, first=not x)); G('p1', pvg(1, first=not x)); G('q3', qkg(3))
        P.done(); p = P.pos
        w1, w2 = p['r0' if x else 'q1'], p['r2' if x else 'q2']
        P.softmax('s0', p['q0'], 0, 0, dlcap=w1 + 4); P.softmax('s1', p['q1'], 1, 1, dlcap=w2 + (-1 if x else 4))
        P.softmax('s2', p['q2'], 2, 2, dlcap=p['q3'] - 1, use=P.n); P.softmax('s3', p['q3'], 3, 3, skip=LEFT3, lastrel=P.n - 1)
        if x:
            P.softmax('t0', p['r0'], 2, 2, 1); P.softmax('t1', p['r1'], 3, 2, 1, use=p['x1'], zero=False)
            P.softmax('t2', p['r2'], 3, 2, 1, zero=False)
        P.vload('v', p['p0'], 0, '0', addr=VA0, rel0=w2)
        P.kload('k', P.n, 0, '1', addr=T0, rel0=p['q3'], dlmax=P.n - 1)
        g = P.gaps
        for pt, gi in (('P', p['p0'] + 1), ('K', p['q3'] + 1)):
            step = 2 if pt == 'K' and len(plan.get('K', [])) > 1 else 4
            for y in at(pt):
                if y.startswith('s_add'): g[gi - 1].sc.append(y)
                elif y.startswith('buffer'):
                    P.ops.append(Op(('d', gi), 'D', gi, gi, y)); gi += step
        assert not schedule(P.n, P.ops, g, overflow=True)
        sc3 = []; ext = at('S')
        for i, y in enumerate(scale_q(3)):
            sc3.append(y)
            if i % 10 == 4 and ext:
                if ext[0].startswith('s_add'): sc3 += ext[:2]; ext = ext[2:]
                sc3.append(ext.pop(0))
        assert not ext
        xr = []
        if x:
            XA = S0 + 36
            xr = [f's_add_u32 {s(sT)}, {s(sSL+3)}, 0x10000'] + [f'v_add_u32 {v(XA+ks)}, {s(sT)}, {v(KA+ks)}' for ks in range(4)] + \
                 [f'v_add_u32 {v(XA+4+db)}, {s(sSL+3)}, {v(VA+db)}' for db in range(8)] + ['WAITVM dmx K', 's_barrier'] + \
                 [f'ds_read_b128 {a(aX+4*ks,4)}, {v(XA+ks)} offset:1024 ; rx K {ks}' for ks in range(4)] + \
                 [f'ds_read_b64_tr_b16 {a(aX+16+2*db,2)}, {v(XA+4+min(db,7))} offset:0 ; rx V {min(db,7)}' for db in range(9)]
        g[w1 - 1].post += at('B2') + xr + ['WAITVM ld Q1'] + qread(1) + at('C') + scale_q(1) + at('C2') + ['s_nop 0']
        g[w2 - 1].post += at('C3') + ['WAITVM ld Q2'] + qread(2) + at('D') + scale_q(2) + ['WAITVM dma V 0|dma K 1', 's_barrier']
        g[p['q3'] - 1].post += (['s_barrier'] if x else []) + at('D2') + ['WAITVM ld Q3'] + stamp(3) + qread(3) + sc3 + \
                               [f'v_add_u32 {v(T0+ks)}, {s(sSL+1)}, {v(KA+ks)}' for ks in range(4)]
        g[P.n - 1].post += [HEADWAIT]
        full, pend = add_lgkm_waits(resolve_waitvm(L + ['L_split:'] + emit(P.mf, g)))
        k = full.index('L_split:')
        return full[:k], full[k+1:] + stamp(4) + wave_select() + dispatch(0), pend
    assert OPT['po'] >= 8
    head, tn, pend = tile0(False)
    if not X: return head + tn, [], pend
    head2, tx, pend2 = tile0(True)
    assert head == head2 and [z[0] for z in pend] == [z[0] for z in pend2]
    return head + [f's_cmp_lg_u32 {s(sNKB)}, 1', 's_cbranch_scc1 L_tile0n'] + tx, ['L_tile0n:'] + tn + ['s_branch L_b1'], pend

def slow():
    t = T0
    L = ['L_slow:', 's_waitcnt vmcnt(0) lgkmcnt(0)']
    M, LS, KV, VD0, VD1 = KA, BT, DK, DV, IDX
    L += [f'v_mbcnt_lo_u32_b32 {v(t+1)}, -1, 0', f'v_mbcnt_hi_u32_b32 {v(t+1)}, -1, {v(t+1)}',
          f'v_and_b32 {v(t+2)}, 15, {v(t+1)}', f'v_lshrrev_b32 {v(t+3)}, 4, {v(t+1)}']
    L += [f's_lshl_b32 {s(sT)}, {s(sW)}, 14', f'v_lshlrev_b32 {v(t+4)}, 8, {v(t+2)}', f'v_lshl_add_u32 {v(t+4)}, {v(t+3)}, 4, {v(t+4)}',
          f'v_add_u32 {v(t+4)}, {s(sT)}, {v(t+4)}']
    L += [f'buffer_load_dwordx4 {v(S0+16*q+4*ks,4)}, {v(t+4)}, s[4:7], {"0" if q == 0 else s(sQ1)} offen offset:{64*ks}' for q in range(2) for ks in range(4)]
    L += [f'v_lshlrev_b32 {v(t+4)}, 12, {v(t+2)}', f'v_lshl_add_u32 {v(KV)}, {v(t+3)}, 4, {v(t+4)}', f'v_add_u32 {v(KV)}, 3072, {v(KV)}',
          f'v_lshlrev_b32 {v(t+4)}, 1, {v(t+3)}', f'v_xor_b32 {v(t+4)}, {v(t+2)}, {v(t+4)}',
          f'v_lshlrev_b32 {v(t+4)}, 4, {v(t+4)}', f'v_lshl_add_u32 {v(VD0)}, {v(t+3)}, 12, {v(t+4)}', f'v_add_u32 {v(VD0)}, 3072, {v(VD0)}',
          f'v_xor_b32 {v(t+4)}, 0x80, {v(t+4)}', f'v_lshl_add_u32 {v(VD1)}, {v(t+3)}, 12, {v(t+4)}', f'v_add_u32 {v(VD1)}, {3072 + 16384}, {v(VD1)}',
          f's_lshl_b32 {s(sMV)}, {s(sW)}, 13', f's_add_u32 {s(sMV)}, {s(sMV)}, 0x20000',
          f'v_bfe_u32 {v(t+5)}, {v(t+1)}, 2, 2', f'v_lshl_add_u32 {v(t+5)}, {v(t+3)}, 2, {v(t+5)}',
          f'v_lshlrev_b32 {v(t+4)}, 8, {v(t+5)}', f'v_and_b32 {v(t+6)}, 3, {v(t+1)}',
          f'v_lshl_add_u32 {v(t+4)}, {v(t+6)}, 3, {v(t+4)}', f'v_add_u32 {v(t+4)}, {s(sMV)}, {v(t+4)}', f'v_and_b32 {v(t+5)}, 7, {v(t+5)}']
    for db in range(8):
        L += [f'v_xor_b32 {v(VA+db)}, {db}, {v(t+5)}', f'v_lshl_add_u32 {v(VA+db)}, {v(VA+db)}, 5, {v(t+4)}']
    L += [f'v_lshlrev_b32 {v(MK)}, 2, {v(t+3)}', f'v_mov_b32 {v(MK+1)}, {NEG:#x}']
    L += [f'v_mov_b32 {v(O0+i)}, 0' for i in range(128)]
    L += [f'v_mov_b32 {v(M+q)}, 0xff7fffff' for q in range(4)] + [f'v_mov_b32 {v(LS+q)}, 0' for q in range(4)]
    L += ['s_waitcnt vmcnt(0)'] + scale_q(0) + scale_q(1)
    L += [f's_mov_b32 {s(sIT)}, 0', 'L_slow_loop:',
          f's_lshr_b32 {s(sT)}, {s(sIT)}, 2',
          f's_load_dwordx2 s[40:41], s[30:31], {s(sT)}', 's_waitcnt lgkmcnt(0)',
          's_min_u32 s40, s40, 131', 's_min_u32 s41, s41, 131', 's_lshl_b32 s40, s40, 16', 's_lshl_b32 s41, s41, 16']
    for kb in range(2):
        for ks in range(4):
            L.append(f'buffer_load_dwordx4 {a(aK+16*kb+4*ks,4)}, {v(KV)}, s[8:11], s{40+kb} offen offset:{64*ks}')
    for b in range(2):
        for p in range(4):
            L += [f's_add_u32 m0, {s(sMV)}, {b*4096 + p*1024}', f's_add_u32 s42, s{40+b}, {(p//2)*32768}',
                  f'buffer_load_dwordx4 {v(VD1 if p & 1 else VD0)}, s[12:15], s42 offen lds']
    L += ['s_waitcnt vmcnt(0)']
    for db in range(8):
        for tt in range(2):
            L.append(f'ds_read_b64_tr_b16 {a(aV+8*db+2*tt,2)}, {v(VA+db)} offset:{tt*4096}')
    L += [f's_sub_u32 {s(sT)}, {s(sCLT)}, {s(sIT)}', 's_waitcnt lgkmcnt(0)']
    for q in range(4):
        S = S0 + 16*q
        L += qkg(q, 2) + ['s_nop 7']
        for e in range(8):
            L += [f'v_add_u32 {v(t)}, {16*(e//4) + e%4}, {v(MK)}', f'v_cmp_gt_u32 vcc, {s(sT)}, {v(t)}', 's_nop 1',
                  f'v_cndmask_b32 {v(S+e)}, {v(MK+1)}, {v(S+e)}, vcc']
        L += [f'v_max3_f32 {v(t)}, {v(S)}, {v(S+1)}, {v(S+2)}', f'v_max3_f32 {v(t)}, {v(t)}, {v(S+3)}, {v(S+4)}',
              f'v_max3_f32 {v(t)}, {v(t)}, {v(S+5)}, {v(S+6)}', f'v_max3_f32 {v(t)}, {v(t)}, {v(S+7)}, {v(M+q)}',
              f'v_mov_b32 {v(t+1)}, {v(t)}', 's_nop 1', f'v_permlane16_swap_b32 {v(t)}, {v(t+1)}', f'v_max_f32 {v(t)}, {v(t)}, {v(t+1)}',
              f'v_mov_b32 {v(t+1)}, {v(t)}', 's_nop 1', f'v_permlane32_swap_b32 {v(t)}, {v(t+1)}', f'v_max_f32 {v(t)}, {v(t)}, {v(t+1)}',
              f'v_sub_f32 {v(t+1)}, {v(M+q)}, {v(t)}', f'v_exp_f32 {v(t+1)}, {v(t+1)}', f'v_mov_b32 {v(M+q)}, {v(t)}']
        L += [f'v_sub_f32 {v(S+e)}, {v(S+e)}, {v(t)}' for e in range(8)]
        L += [f'v_exp_f32 {v(S+e)}, {v(S+e)}' for e in range(8)]
        L += [f'v_mul_f32 {v(LS+q)}, {v(LS+q)}, {v(t+1)}']
        L += [f'v_mul_f32 {v(O0+32*q+i)}, {v(O0+32*q+i)}, {v(t+1)}' for i in range(32)]
        L += [i_cvt(q, q, i) for i in range(4)]
        for i in range(4):
            L += [f'v_lshlrev_b32 {v(t)}, 16, {v(P0+8*q+i)}', f'v_and_b32 {v(t+1)}, 0xffff0000, {v(P0+8*q+i)}',
                  f'v_add_f32 {v(LS+q)}, {v(LS+q)}, {v(t)}', f'v_add_f32 {v(LS+q)}, {v(LS+q)}, {v(t+1)}']
        L += [pv(q, db, 0) for db in range(8)]
    L += [f's_add_u32 {s(sIT)}, {s(sIT)}, 32', f's_cmp_lt_u32 {s(sIT)}, {s(sCLT)}', 's_cbranch_scc1 L_slow_loop', 's_nop 7']
    for q in range(4):
        o = O0 + 32*q
        L += [f'v_mov_b32 {v(t)}, {v(LS+q)}', f'v_mov_b32 {v(t+1)}, {v(LS+q)}', 's_nop 1',
              f'v_permlane16_swap_b32 {v(t)}, {v(t+1)}', f'v_add_f32 {v(t)}, {v(t)}, {v(t+1)}',
              f'v_mov_b32 {v(t+1)}, {v(t)}', 's_nop 1', f'v_permlane32_swap_b32 {v(t)}, {v(t+1)}', f'v_add_f32 {v(t)}, {v(t)}, {v(t+1)}',
              f'v_rcp_f32 {v(t)}, {v(t)}', 's_nop 0']
        L += [f'v_mul_f32 {v(o+i)}, {v(o+i)}, {v(t)}' for i in range(32)]
        for u in range(4):
            L += [f'v_cvt_pk_bf16_f32 {v(o+8*u+i)}, {v(o+8*u+2*i)}, {v(o+8*u+2*i+1)}' for i in range(4)]
        for u in range(4):
            L += [f'v_permlane16_swap_b32 {v(o+8*u+i)}, {v(o+8*u+2+i)}' for i in range(2)]
        for u in range(4):
            L.append(f'buffer_store_dwordx4 {v(o+8*u,4)}, {v(OV)}, s[16:19], {"0" if q == 0 else s(sQ1+q-1)} offen offset:{64*u}')
    return L + ['s_endpgm']

DOC = '''; Paged-KV attention, one workgroup per CU: 256 query rows against one KV head, 4 waves x 64 rows, 64-key tiles.
;  * S^T = K.Q^T and O^T += V^T.P^T with v_mfma_f32_16x16x32_bf16 (P stays in registers, V via ds_read_b64_tr_b16),
;    row sums with one v_smfmac_f32_16x16x64_bf16 per 16 rows and tile.  Q is scaled once by log2(e)/sqrt(D).
;  * Softmax guard: the fast path uses 0 as stand-in for the row maximum.  Every row sum is checked at run time; if one
;    leaves [2^-40, 2^40] (or is not a number) the wave recomputes its rows in L_slow with the true running maximum.
;    L_slow also serves context lengths below 193.  context_lens <= 0 (all keys masked) gives the uniform average.
'''
NFIN = 0
def finish():
    global NFIN
    NFIN += 1
    L = [f'v_cmp_lt_u32 vcc, 0x28000000, {v(T0+4)}' if not OPT.get('abl') else 's_mov_b64 vcc, 0',
         f's_cmp_lg_u32 {s(sFORCE)}, 0', 's_cbranch_scc1 L_slow', 's_nop 3', 's_cbranch_vccnz L_slow']
    if OPT.get('twice'):
        L += ['s_cmp_eq_u32 s77, 0', f's_cbranch_scc1 L_fin{NFIN}', 's_sub_u32 s77, s77, 1', 's_waitcnt vmcnt(0) lgkmcnt(0)', 's_barrier',
              'v_mbcnt_lo_u32_b32 v0, -1, 0', 'v_mbcnt_hi_u32_b32 v0, -1, v0', f's_lshl_b32 {s(sT)}, {s(sW)}, 6', f'v_add_u32 v0, {s(sT)}, v0', 's_branch L_again', f'L_fin{NFIN}:']
    if OPT['stamp']:
        L += [f's_memtime s[40:41]', 's_waitcnt vmcnt(0)', 's_memtime s[42:43]', f's_memrealtime s[44:45]', 's_waitcnt lgkmcnt(0)']
        st = lambda i: sST + 2*i if i < 6 else 40 + 2*(i - 6)
        if OPT.get('fixed'):
            L += [f's_mov_b32 {s(sT+4)}, {OPT["fixed"]}']
            if OPT.get('xcc'):
                L += [f's_getreg_b32 {s(sT+5)}, hwreg(HW_REG_XCC_ID, 0, 4)', f's_sub_u32 {s(sT+5)}, {s(sT+5)}, s2', f's_and_b32 {s(sT+5)}, {s(sT+5)}, 7']
                if OPT['xcc'] == 2: L += [f's_sub_u32 {s(sT+5)}, 7, {s(sT+5)}']
                L += [f's_mul_i32 {s(sT+5)}, {s(sT+5)}, 500', f's_add_u32 {s(sT+4)}, {s(sT+4)}, {s(sT+5)}']
            if OPT.get('phase'):
                L += [f's_sub_u32 {s(sT+5)}, {s(st(OPT["phase"]))}, {s(st(OPT.get("phase0", 0)))}']
                if OPT.get('neg'): L += [f's_sub_u32 {s(sT+5)}, {OPT["neg"]}, {s(sT+5)}']
                L += [f's_lshr_b32 {s(sT+5)}, {s(sT+5)}, {OPT.get("sh", 3)}', f's_add_u32 {s(sT+4)}, {s(sT+4)}, {s(sT+5)}']
            return L + [f'L_spin{NFIN}:', f's_memrealtime {s(sT,2)}', 's_waitcnt lgkmcnt(0)', f's_sub_u32 {s(sT)}, {s(sT)}, s100',
                        f's_cmp_lt_u32 {s(sT)}, {s(sT+4)}', f's_cbranch_scc1 L_spin{NFIN}', 's_endpgm']
        L += ['s_load_dwordx2 s[24:25], s[0:1], 56', 's_waitcnt lgkmcnt(0)', 's_mov_b32 s26, 0x100000', 's_mov_b32 s27, 0x20000']
        L += [f'v_mov_b32 v{i}, {s(st(i))}' for i in range(8)]
        L += ['v_mov_b32 v8, s42', 'v_mov_b32 v9, s44', 'v_mov_b32 v10, s100', 'v_mov_b32 v11, 0',
              f's_lshl_b32 {s(sT)}, s2, 2', f's_add_u32 {s(sT)}, {s(sT)}, {s(sW)}', f's_lshl_b32 {s(sT)}, {s(sT)}, 6',
              'v_mov_b32 v12, 0', 's_mov_b64 exec, 1',
              f'buffer_store_dwordx4 v[0:3], v12, s[24:27], {s(sT)} offen',
              f'buffer_store_dwordx4 v[4:7], v12, s[24:27], {s(sT)} offen offset:16',
              f'buffer_store_dwordx4 v[8:11], v12, s[24:27], {s(sT)} offen offset:32']
    return L + ['s_endpgm']

def sizes(L):
    import subprocess, re, tempfile, os
    d = tempfile.mkdtemp()
    open(d + '/a.s', 'w').write('.amdgcn_target "amdgcn-amd-amdhsa--gfx950"\n.text\n' + '\n'.join(l for l in L if not l.startswith('.')) + '\n')
    subprocess.check_call(['clang', '-x', 'assembler', '-target', 'amdgcn-amd-amdhsa', '-mcpu=gfx950', '-c', d + '/a.s', '-o', d + '/a.o'])
    out = subprocess.check_output(['llvm-objdump', '-d', '--mcpu=gfx950', d + '/a.o']).decode()
    sz = [4 * len(m.group(1).split()) for m in re.finditer(r'// [0-9A-F]+: ([0-9A-F ]+)', out)]
    it = iter(sz)
    return [next(it) if Ins(l).states else 0 for l in L]

def add_walk(L):
    sz = sizes(L); ins = parse(L)
    regions = [(L.index('L_walk:') + 1, L.index('L_b1:') - 1), (L.index('L_tail:'), L.index('L_pfend:') - 8)]
    if OPT['walk'] == 2: regions = [(L.index('L_walk:') + 1, L.index('L_pfend:') - 8)]
    pads = []
    for lo, hi in regions:
        acc = OPT['wsp'] - 64 if lo == regions[0][0] else OPT['wsp']; best = None
        for i in range(lo, hi):
            acc += sz[i]
            if acc >= OPT['wsp'] - max(64, OPT['wsp'] // 4) and ins[i].states and ins[i].cls != 'br' and not L[i].startswith(('s_cmp', 's_waitcnt')):
                cost = 0 if ins[i].cls == 'mfma' and ins[i+1].cls == 'mfma' else 2 if ins[i+1].cls == 'mfma' else 3
                if best is None or cost <= best[0]: best = (cost, i, acc)
            if acc >= OPT['wsp'] and best:
                pads.append(best[1]); acc -= best[2]; best = None
    n = len(pads); cut = [n * w // 4 for w in range(5)]
    out = []
    for i, l in enumerate(L):
        if l == 'L_walk:':
            out += ['s_mov_b64 vcc, -1']
            for w in range(3): out += [f's_cmp_eq_u32 {s(sW)}, {w}', f's_cbranch_scc1 L_pad{cut[w]}']
            out += [f's_branch L_pad{cut[3]}', 'L_ret:', 's_mov_b64 vcc, 0']
            continue
        out.append(l)
        if i in pads:
            k = pads.index(i)
            out += [f'L_pad{k}:', f's_cbranch_vccnz {"L_ret" if k + 1 in cut else f"L_pad{k+1}"}']
    print('pads', n)
    return out

def main():
    pro, pro2, pend0 = prologue()
    loop, pend = loop_code()
    assert [x[0] for x in pend0] == [x[0] for x in pend], (pend0, pend)
    L = [f'{NAME}:'] + pro + loop
    L += ['L_tail:'] + stamp(5) + [f's_cmp_gt_u32 {s(sNKB)}, 1', 's_cbranch_scc1 L_tail234']
    L += tail(1, pend) + finish()
    for w in range(1, NCOPY): L += loop_copy(w, pend)
    L += ['L_pfend:']
    L += ['L_tail234:', f's_cmp_eq_u32 {s(sNKB)}, 3', 's_cbranch_scc1 L_tail3', f's_cmp_eq_u32 {s(sNKB)}, 4', 's_cbranch_scc1 L_tail4']
    L += tail(2, pend) + finish() + ['L_tail3:'] + tail(3, pend) + finish() + ['L_tail4:'] + tail(4, pend) + finish()
    L += pro2 + slow() + ['L_end:', 's_endpgm']
    L, nn = fix_hazards(L, verbose=OPT.get('verbose', 0))
    if OPT['walk']: L = add_walk(L)
    sz = sizes(L)
    assert sum(sz[L.index('L_pc:'):]) > (65536 if NCOPY > 2 else 32768) + 64 if OPT['cpf'] else True
    print('bytes up to the last Q0 load:', sum(sz[:max(i for i, l in enumerate(L) if l.endswith('ld Q0')) + 1]), ' executed code:', sum(sz[:L.index('L_pfend:')]))
    print('nop states inserted:', nn, ' leftovers:', sorted(LEFT3))
    hdr = open('standalone__paged_block_table_kv_pagedattention__prompt.s.ref').read().split('; Override')[0]
    txt = hdr + DOC + '; Generated by gen/gen2.py (own generator script).\n'
    txt += '; @launch grid=(256,1,1) block=(256,1,1) lds=163840\n'
    txt += f'.amdgcn_target "amdgcn-amd-amdhsa--gfx950"\n.text\n.globl {NAME}\n.p2align 8\n.type {NAME},@function\n'
    for l in L: txt += (l if l.endswith(':') or l.startswith(('.', ';')) else '    ' + l) + '\n'
    txt += f'''.section .rodata,"a"
.p2align 6
.amdhsa_kernel {NAME}
  .amdhsa_next_free_vgpr 504
  .amdhsa_next_free_sgpr 102
  .amdhsa_accum_offset 256
  .amdhsa_group_segment_fixed_size 0
  .amdhsa_kernarg_size 64
  .amdhsa_user_sgpr_count 2
  .amdhsa_user_sgpr_kernarg_segment_ptr 1
  .amdhsa_system_sgpr_workgroup_id_x 1
.end_amdhsa_kernel
'''
    open(sys.argv[1], 'w').write(txt)
    if OPT.get('show'):
        for g in range(NG): print(g, PAT[g])
main()
```

```python
import sys
from asmcheck import parse, fix_hazards, Ins

NAME = 'standalone__paged_block_table_kv_pagedattention__prompt_kernel'
FL = {0: '', 1: ' nt', 2: ' sc1', 3: ' sc0 sc1', 4: ' sc1 nt', 5: ' sc0 sc1 nt', 6: ' sc0', 7: ' sc0 nt'}
OPT = dict(po=26, cpf=1, qf=0, kf=2, of=2, delta=9, stamp=0, lat=8, forceslow=0, tord=2, epri=12, ep=0, ssp=4, tv=4, edl=4, ttu=2, walk=0, wsp=224, pkd=6, touch=0, snake=1, stag=1, rot=6, urot=0, hmap=0)
for a_ in sys.argv[2:]:
    k_, v_ = a_.split('='); OPT[k_] = int(v_, 0)

S0, P0, KA, VA, BT, DK, DV, IDX, OV, MK, T0, O0 = 0, 64, 96, 100, 108, 112, 113, 114, 115, 116, 120, 128
QD, QA = P0 + 24, P0 + 28
KA0, VA0 = O0, S0 + 52
EW, ER, EG = T0 + 5, T0 + 6, T0 + 7
aQ, aK, aV, aL, aONE, aX = 0, 64, 128, 192, 208, 212
sW, sCL, sN, sIT, sLN = 3, 36, 37, 38, 39
SETS = (56, 60)
sMK, sMV, sC, sC2, sNKB, sE, sFORCE, sCLT = 64, 65, 66, 67, 68, 69, 70, 71
sNP = 75
sE2 = 76
sQ0 = 77
sY = 35
sQ1 = 72
sSL = 96
sT = 78
sST = 84
KBYTES = 132 * 65536
LAT = OPT['lat']
NEG = 0xf149f2ca
INF = 10 ** 6
WSH, QSH = (12, 14) if OPT['rot'] >= 4 else (14, 12)
MINCL = 193

def v(b, n=1): return f'v{b}' if n == 1 else f'v[{b}:{b+n-1}]'
def a(b, n=1): return f'a{b}' if n == 1 else f'a[{b}:{b+n-1}]'
def s(b, n=1): return f's{b}' if n == 1 else f's[{b}:{b+n-1}]'
def VR(b, n=1): return {('v', i) for i in range(b, b + n)}
def AR(b, n=1): return {('a', i) for i in range(b, b + n)}

MF = 'v_mfma_f32_16x16x32_bf16'
def kord(f):
    return f // 4, (3 - f % 4 if OPT['snake'] and (f // 4) % 2 else f % 4)
def qk(q, f, sb=None, kbase=aK, mask=False):
    kb, ks = kord(f)
    D = v(S0 + 16*(q if sb is None else sb) + 4*kb, 4)
    C = D if f % 4 else (v(MK, 4) if mask else '0')
    return f'{MF} {D}, {a(kbase+16*kb+4*ks,4)}, {a(aQ+16*q+4*ks,4)}, {C}'
def vfrag(db, ks, vbase):
    if vbase == 'ov': return aX + 16 + 2*db
    return aV + (2*db+ks)*4 if vbase is None else vbase + 4*db
def pv(q, db, ks, pb=None, vbase=None, first=False):
    D = v(O0 + 32*q + 4*db, 4)
    return f'{MF} {D}, {a(vfrag(db, ks, vbase),4)}, {v(P0+8*(q if pb is None else pb)+4*ks,4)}, {"0" if first and ks == 0 else D}'
def sm(q, pb=None):
    return f'v_smfmac_f32_16x16x64_bf16 {a(aL+4*q,4)}, {a(aONE,4)}, {v(P0+8*(q if pb is None else pb),8)}, {v(IDX)}'
def qkg(q, nkb=4, sb=None, kbase=aK, mask=False):
    return [qk(q, f, sb, kbase, mask and f // 4 == nkb-1) for f in range(4 * nkb)]
def pvg(q, pb=None, first=False): return [pv(q, db, ks, pb, None, first) for db in range(8) for ks in range(2)] + [sm(q, pb)]

def i_exp(sb, n): return f'v_exp_f32 {v(S0+16*sb+n)}, {v(S0+16*sb+n)}'
def i_cvt(sb, pb, i): return f'v_cvt_pk_bf16_f32 {v(P0+8*pb+i)}, {v(S0+16*sb+2*i)}, {v(S0+16*sb+2*i+1)}'
def i_kread(kb, ks, slot, tag, kbase=aK, addr=KA):
    return f'ds_read_b128 {a(kbase+16*kb+4*ks,4)}, {v(addr+ks)} offset:{slot*16384+kb*1024}'
def i_vread(db, ks, t, slot, tag, vbase=None, addr=VA):
    return f'ds_read_b64_tr_b16 {a(vfrag(db, ks, vbase)+2*t,2)}, {v(addr+db)} offset:{slot*16384+(2*ks+t)*1024}'
def i_dma(isv, i, soff, tag):
    return f'buffer_load_dwordx4 {v(DV if isv else DK)}, {s(12 if isv else 8,4)}, {s(soff+i)} offen offset:{i*1024}{FL[OPT["kf"]]} lds'
def i_m0(isv, slot): return f's_add_u32 m0, {s(sMV if isv else sMK)}, {slot*16384}'
def qoff(q): return s(sQ0) if q == 0 and OPT['rot'] else '0' if q == 0 else s(sQ1 + q - 1)
def stamp(i): return [f's_memtime {s(sST+2*i,2)}'] if OPT['stamp'] and not (OPT.get('wb') and 1 <= i <= 4) else []

class Op:
    def __init__(self, key, cls, rel, dl, text, deps=(), fifo=None, pri=None):
        self.key, self.cls, self.rel, self.dl, self.text, self.deps, self.fifo = key, cls, rel, dl, text, list(deps), fifo
        self.pri = dl if pri is None else pri
        self.gap = None
class Gap:
    def __init__(self): self.sc, self.mem, self.valu, self.post = [], [], [], []; self.block = None

def schedule(ngaps, ops, gaps, overflow=False):
    byk = {o.key: o for o in ops}
    todo = list(ops)
    def ready(o, g):
        if o.rel > g: return False
        for d in o.deps:
            p = byk.get(d)
            if p is not None and (p.gap is None or p.gap >= g): return False
        if o.fifo is not None:
            p = byk[o.fifo]
            if p.gap is None or (o.cls in 'DRT' and p.cls not in 'RT' and p.gap >= g): return False
            if o.cls == 'D' and p.cls == 'R' and p.gap + LAT > g: return False
            if o.cls == 'D' and p.cls == 'D' and p.gap + OPT['ssp'] > g: return False
        return True
    def put(o, g):
        o.gap = g; todo.remove(o)
        (gaps[g].mem if o.cls in 'DRT' else gaps[g].valu).append(o)
    for g in range(ngaps):
        if gaps[g].block != 'all':
            cand = sorted((o for o in todo if ready(o, g)), key=lambda o: o.pri)
            if gaps[g].block == 'half': cand = [o for o in cand if o.cls == 'H'][:1]
            if cand:
                top = cand[0]
                halves = [o for o in cand if o.cls in 'RTH']
                full = [o for o in cand if o.cls in 'ED']
                if top.cls in 'RTH' and len(halves) == 1 and full and top.pri - g > 6 and top.fifo is None: top = full[0]
                put(top, g)
                if top.cls in 'RTH' and gaps[g].block != 'half':
                    c2 = sorted((o for o in todo if o.cls in 'RTH' and ready(o, g) and not (o.cls == 'R' and top.cls == 'R')), key=lambda o: o.pri)
                    if c2:
                        pick = c2[0]
                        busy = g > 0 and len(gaps[g-1].mem) > 1
                        if top.cls in 'RT' and pick.cls in 'RT' and (pick.pri - g > 8 or (busy and pick.pri - g > OPT['ttu'])):
                            h = [o for o in c2 if o.cls == 'H']
                            if h: pick = h[0]
                            elif busy and pick.pri - g > OPT['ttu']: pick = None
                        if pick: put(pick, g)
        late = [o for o in todo if o.dl <= g]
        if late:
            if not overflow: raise RuntimeError(f'deadline miss at gap {g}: {[o.key for o in late]}')
            def force(o):
                if o.gap is not None: return
                for d in o.deps + ([o.fifo] if o.fifo else []):
                    if d in byk: force(byk[d])
                assert o.rel <= g, (o.key, o.rel, g)
                o.gap = g; todo.remove(o)
                if o.cls in 'RT' and o.fifo is None and gaps[g].block != 'all': gaps[g].mem.append(o)
                else: gaps[g].post.append(o.text)
            for o in sorted(late, key=lambda o: (o.fifo is not None, {'R': 0, 'T': 0, 'D': 0, 'E': 1, 'H': 2}[o.cls], o.dl)): force(o)
    return todo

def emit(mf, gaps):
    out = []
    for m, g in zip(mf, gaps):
        out.append(m)
        sc = list(g.sc)
        if any(o.text.startswith('buffer_load') for o in g.mem) and not sc: sc = ['s_nop 0']
        out += sc + [o.text for o in g.mem] + [o.text for o in g.valu] + g.post
    return out

def add_lgkm_waits(lines, pre_ds=()):
    q = [(set(r), -age) for r, age in pre_ds]
    out = []; gap = -1; lastm = None; nvis = None
    for x in parse(lines):
        if x.cls == 'mfma':
            needed = [i for i, (r, g) in enumerate(q) if r & x.r]
            if needed:
                k = max(needed)
                if lastm is not None and k < nvis:
                    while k + 1 < nvis and q[k + 1][1] <= gap - LAT: k += 1
                    n = min(15, nvis - 1 - k)
                    if out[lastm:lastm+1] == ['s_nop 0']: out[lastm] = f's_waitcnt lgkmcnt({n})'
                    else: out.insert(lastm, f's_waitcnt lgkmcnt({n})')
                    k = nvis - 1 - n
                else:
                    n = min(15, len(q) - 1 - k)
                    out.append(f's_waitcnt lgkmcnt({n})')
                    k = len(q) - 1 - n
                q = q[k + 1:]
            gap += 1
            out.append(x.text); lastm = len(out); nvis = len(q)
        else:
            if x.cls == 'vmem':
                needed = [i for i, (r, g) in enumerate(q) if r & x.r]
                if needed:
                    n = min(15, len(q) - 1 - max(needed)); drop = len(q) - n
                    out.append(f's_waitcnt lgkmcnt({n})'); q = q[drop:]
                    if nvis is not None: nvis = max(0, nvis - drop)
            if x.cls == 'ds': q.append((set(x.w), gap))
            if x.cls == 'wait' and x.lgkm is not None:
                drop = max(0, len(q) - x.lgkm); q = q[drop:]
                if nvis is not None: nvis = max(0, nvis - drop)
            out.append(x.text)
    return out, [(r, gap - g) for r, g in q]

class Prog:
    def __init__(self): self.mf = []; self.ops = []; self.pos = {}
    def group(self, name, mf): self.pos[name] = len(self.mf); self.mf += mf
    def done(self):
        self.ins = [Ins(m) for m in self.mf]; self.n = len(self.mf); self.gaps = [Gap() for _ in self.mf]
    def first_read(self, R, lo): return next((i for i in range(lo, self.n) if R & self.ins[i].srcAB), INF)
    def last_read(self, R, hi): return next((i for i in range(min(hi, self.n) - 1, -1, -1) if R & self.ins[i].srcAB), -1)
    def last_write(self, R, hi): return next((i for i in range(min(hi, self.n) - 1, -1, -1) if R & self.ins[i].w), -1)
    def next_write(self, R, lo): return next((i for i in range(lo, self.n) if R & self.ins[i].w), INF)
    def kload(self, key, use, slot, tag, nkb=4, kbase=aK, addr=KA, rel0=0, dlmax=None):
        for f in range(4 * nkb):
            kb, ks = kord(f)
            R = AR(kbase + 16*kb + 4*ks, 4)
            u = self.first_read(R, use) if use < self.n else self.n + f
            rel = min(self.n - 1, max(rel0, self.last_read(R, u) + 1))
            dl = u - LAT if dlmax is None else min(u - LAT, dlmax - (4*nkb - 1 - f))
            self.ops.append(Op((key, f), 'R', rel, max(rel, dl), i_kread(kb, ks, slot, tag, kbase, addr), deps=[(key, f-1)] if f else []))
    def vload(self, key, use, slot, tag, nks=2, vbase=None, addr=VA, rel0=0):
        for db in range(8):
            for ks in range(nks):
                R = AR(vfrag(db, ks, vbase), 4)
                u = self.first_read(R, use)
                rel = max(rel0, self.last_read(R, u) + 1)
                for t in range(2):
                    if vbase == 'ov' and t == 1 and db < 7: continue
                    self.ops.append(Op((key, db, ks, t), 'T', rel, max(rel, u - LAT - (1 - t)), i_vread(db, ks, t, slot, tag, vbase, addr)))
    def softmax(self, key, at, sb, pb, nkb=4, only=None, skip=(), dlcap=None, use=0, lastrel=INF, zero=True):
        end = at + 4*nkb if at >= 0 else 0
        u = self.first_read(VR(P0 + 8*pb, 8), max(end, use))
        prel = min(self.last_read(VR(P0 + 8*pb, 8), u) + 1, u - 1)
        cap = min(u - 3, self.next_write(VR(S0 + 16*sb, 16), end) - 1, self.n - 1 if dlcap is None else dlcap)
        n = 4 * nkb; edl = {}
        for e in range(n):
            if (only is not None and ('e', e) not in only) or ('e', e) in skip: continue
            rel = min(lastrel, at + 4*(e//4) + 3 + 5) if at >= 0 else 0
            edl[e] = min(max(rel, cap - 1 - 2*(n - 1 - e), min(cap - 1, rel + e % 4)), max(rel, cap))
            self.ops.append(Op((key, 'e', e), 'E', rel, edl[e], i_exp(sb, e)))
        for i in range(2 * nkb):
            if (only is not None and ('c', i) not in only) or ('c', i) in skip: continue
            rel = max(prel, min(lastrel, at + 4*(i//2) + 3 + 6) if at >= 0 else 0)
            self.ops.append(Op((key, 'c', i), 'H', rel, max(rel, cap - (2*nkb - 1 - i), min(cap, edl.get(2*i+1, 0) + 1)), i_cvt(sb, pb, i),
                               deps=[(key, 'e', 2*i), (key, 'e', 2*i+1)]))
            assert rel <= u - 1, (key, i, rel, u)
        if only is None and zero:
            for i in range(2 * nkb, 8):
                self.ops.append(Op((key, 'z', i), 'H', prel, max(prel, u - 3), f'v_mov_b32 {v(P0+8*pb+i)}, 0'))

NG = 132
LOOP_MF = qkg(0) + pvg(2) + qkg(1) + pvg(3) + qkg(2) + pvg(0) + qkg(3) + pvg(1)
assert len(LOOP_MF) == NG
BARG = OPT.get('barg', 47)
DMAG = [10, 14, 18, 22, 26, 30, 34, 38]
RLG = [41, 43, 92, 96] if BARG not in (41, 43) else [45, 47, 92, 96]

def steady(DMAG, RLG, sh0, shv=0):
    NT = 6
    ops = []
    gaps = [Gap() for _ in range(NG * (NT + 1))]
    for j in range(NT):
        b = NG * j
        for q in range(4):
            pvs = b + 82 + 33*q; qs = b + 33*q
            for e in range(16):
                g = qs + OPT['delta'] + 2*e + (sh0 if q == 0 else 0) + (shv if (q == 1 and e >= 4) or q == 2 else 0)
                ops.append(Op(('e', j, q, e), 'E', g, g, None))
            for i in range(8):
                ops.append(Op(('c', j, q, i), 'H', pvs - NG + 17, pvs - 3 - (7 - i), None, deps=[('e', j, q, 2*i), ('e', j, q, 2*i+1)]))
        for f in range(16):
            for t in range(2):
                ops.append(Op(('v', j, f//2, f%2, t), 'T', max(b + 50 + f, b + BARG + 1), b + 82 + f - LAT - (1 - t), None))
            ops.append(Op(('k', j, f//4, f%4), 'R', b + 100 + f, min(b + NG - 2 - (15 - f), b + NG + f - LAT), None,
                          deps=[('k', j, (f-1)//4, (f-1)%4)] if f else []))
        for i in range(4): ops.append(Op(('rl', j, i), 'E', b + RLG[i], b + RLG[i], None))
        for i in range(8): ops.append(Op(('d', j, i), 'D', b + DMAG[i], b + DMAG[i], None))
        gaps[b + BARG].block = 'all'
        gaps[b + NG - 1].block = 'half'
    schedule(NG * (NT + 1), ops, gaps)
    def pattern(j):
        return [[(o.key[0], o.key[1] - j) + o.key[2:] for o in gaps[NG*j + g].mem + gaps[NG*j + g].valu] for g in range(NG)]
    assert pattern(3) == pattern(4), 'no steady state'
    return pattern(3)
NCOPY = {0: 1, 1: 2, 2: 2, 4: 4}[OPT['stag']]
VARS = []
for ph in (0, 2, 1, 3)[:NCOPY]:
    dg = [g + ph for g in DMAG]; rg = RLG if ph < 3 else [43, 45, 92, 96]
    shv = OPT.get('shv', 0) and ph == 2
    if shv: rg = [41, 43, 93, 97]
    VARS.append((steady(dg, rg, ph & 1, shv), dg, rg))
PAT = VARS[0][0]
assert all({k for g in V[0] for k in g if k[1] == -1} == {k for g in PAT for k in g if k[1] == -1} for V in VARS)
LEFT = {k for g in PAT for k in g if k[1] == -1}
assert all(k[0] in 'ec' and k[2] == 3 for k in LEFT), LEFT
LEFT3 = {(k[0], k[3]) for k in LEFT}
HEADWAIT = 's_waitcnt lgkmcnt(4)'

class Txt:
    def __init__(self, t): self.text = t

def body(sl, w=0):
    PAT, DMAG, RLG = VARS[w]
    def text(k):
        if k[0] == 'e': return i_exp(k[2], k[3])
        if k[0] == 'c': return i_cvt(k[2], k[2], k[3])
        if k[0] == 'v': return i_vread(k[2], k[3], k[4], sl, '+0')
        if k[0] == 'k': return i_kread(*kord(4*k[2] + k[3]), (sl + 1) % 4, '+1')
        if k[0] == 'rl': return f'v_readlane_b32 {s(SETS[sl%2] + k[2])}, {v(BT+k[2])}, {s(sLN)}'
        if k[0] == 'd': return i_dma(1, k[2], SETS[sl % 2], '+2') if k[2] < 4 else i_dma(0, k[2] - 4, SETS[(sl + 1) % 2], '+3')
    gaps = [Gap() for _ in range(NG)]
    for g in range(NG):
        for k in PAT[g]: (gaps[g].mem if k[0] in 'vkd' else gaps[g].valu).append(Txt(text(k)))
    gaps[DMAG[0] - 2].sc.append(i_m0(1, (sl + 2) % 4))
    gaps[DMAG[4] - 2].sc.append(i_m0(0, (sl + 3) % 4))
    gaps[RLG[-1] + 2].sc.append(f's_add_u32 {s(sLN)}, {s(sLN)}, 1')
    gaps[BARG - OPT.get('vmo', 1)].sc.append('s_waitcnt vmcnt(16)')
    gaps[BARG].sc.append('s_barrier')
    if sl == 0: gaps[NG - 3].sc.append(f's_sub_u32 {s(sIT)}, {s(sIT)}, 1')
    gaps[NG - 2].sc.append(HEADWAIT)
    lines = emit(LOOP_MF, gaps)
    ab = OPT.get('abl', 0)
    if ab & 1: lines = [l for l in lines if not l.startswith('buffer_load')]
    if ab & 2: lines = [l for l in lines if not l.startswith(('s_barrier', 's_waitcnt vmcnt'))]
    if ab & 32: lines = [l for l in lines if not l.startswith('s_barrier')]
    return lines

def dispatch(w):
    x = 'bcde'[w]
    return [f's_cmp_eq_u32 {s(sE)}, 2', f's_cbranch_scc1 L_{x}3', f's_cmp_eq_u32 {s(sE)}, 1', f's_cbranch_scc1 L_{x}2',
            f's_cmp_eq_u32 {s(sE)}, 3', f's_cbranch_scc1 L_{x}0', f's_cmp_eq_u32 {s(sNP)}, 4', 's_cbranch_scc1 L_tail']
def wave_select():
    if NCOPY == 1: return []
    if NCOPY == 2:
        return [f's_cmp_eq_u32 {s(sE2)}, 6', 's_cbranch_scc1 L_c3', f's_cmp_gt_u32 {s(sE2)}, 3', 's_cbranch_scc1 L_w1']
    return [x for w in (1, 2, 3) for x in (f's_cmp_eq_u32 {s(sW)}, {w}', f's_cbranch_scc1 L_w{w}')]
def loop_copy(w, pend):
    x = 'bcde'[w]
    out = [f'L_w{w}:'] + dispatch(w) + ['.p2align 6']
    for sl in (1, 2, 3, 0):
        l, pend2 = add_lgkm_waits(body(sl, w), pend)
        assert [x_[0] for x_ in pend2] == [x_[0] for x_ in pend]
        out += [f'L_{x}{sl}:'] + l
    return out + [f's_cbranch_scc0 L_{x}1', 's_branch L_tail']

def loop_code():
    _, pend = add_lgkm_waits(body(1))
    out = ['s_branch L_b1', 'L_padA:', 's_branch L_ret'] if OPT['touch'] else []
    out += ['.p2align 6']
    for sl in (1, 2, 3, 0):
        l, pend2 = add_lgkm_waits(body(sl), pend)
        assert [x[0] for x in pend2] == [x[0] for x in pend]
        out += [f'L_b{sl}:']
        if OPT.get('its'):
            for k in range(3):
                out += [f's_cmp_eq_u32 {s(sLN)}, {OPT["its"] + k * OPT.get("itd", 1)}', f's_cbranch_scc0 L_sk{sl}{k}', f's_mem{"real" if OPT.get("rt") else ""}time {s(sST+2+2*k,2)}', f'L_sk{sl}{k}:']
        out += l
        if OPT['touch'] and sl == 2: out += ['L_padB:', 's_cbranch_vccnz L_ret']
    return out + ['s_cbranch_scc0 L_b1'], pend

def epi_list(q, first):
    t = T0 + 2 * (q & 1)
    o = O0 + 32*q
    L = [('H', f'v_accvgpr_read_b32 {v(t)}, {a(aL+4*q)}', -1),
         ('H', f'v_accvgpr_read_b32 {v(t+1)}, {a(aL+4*q+1)}', -1),
         ('H', f'v_add_f32 {v(t)}, {v(t)}, {v(t+1)}', -1),
         ('E', f'v_rcp_f32 {v(t+1)}, {v(t)}', -1),
         ('H', f'v_subrev_u32 {v(t)}, 0x2b800000, {v(t)}', -1),
         ('H', f'v_mov_b32 {v(T0+4)}, {v(t)}' if first else f'v_max_u32 {v(T0+4)}, {v(T0+4)}, {v(t)}', -1)]
    def muls(u): return [('M', (o + 8*u + i, t + 1), u) for i in range(8)]
    def cvts(u): return [('H', f'v_cvt_pk_bf16_f32 {v(o+8*u+i)}, {v(o+8*u+2*i)}, {v(o+8*u+2*i+1)}', u) for i in range(4)]
    def swaps(u): return [('E', f'v_permlane16_swap_b32 {v(o+8*u+i)}, {v(o+8*u+2+i)}', u) for i in range(2)]
    def store(u):
        if OPT['urot']: return [('D', f'buffer_store_dwordx4 {v(o+8*u,4)}, {v(BT+u)}, s[16:19], {qoff(q)} offen{FL[OPT.get(f"of{q}", OPT["of"])]}', u)]
        return [('D', f'buffer_store_dwordx4 {v(o+8*u,4)}, {v(OV)}, s[16:19], {qoff(q)} offen offset:{64*u}{FL[OPT.get(f"of{q}", OPT["of"])]}', u)]
    if OPT['ep']:
        def writes(u): return [('T', f'ds_write_b64 {v(EW)}, {v(o+8*u+2*i,2)} offset:{64*u+32*i}', u) for i in range(2)]
        for u in range(4): L += muls(u) + cvts(u) + writes(u)
        L += [('R', f'ds_read_b128 {v(o+8*p+4,4)}, {v(ER)} offset:{1088*p}', 3) for p in range(4)]
        L += [('D', f'buffer_store_dwordx4 {v(o+8*p+4,4)}, {v(EG)}, s[16:19], {qoff(q)} offen offset:{1024*p}{FL[OPT.get(f"of{q}", OPT["of"])]}', 3) for p in range(4)]
        return L
    h = lambda l, a_, b_: l[a_:b_]
    L += muls(0) + cvts(0) + h(muls(1), 0, 2) + swaps(0) + store(0) + h(muls(1), 2, 8) + cvts(1) + h(muls(2), 0, 2) + swaps(1) + store(1) \
       + h(muls(2), 2, 8) + cvts(2) + h(muls(3), 0, 2) + swaps(2) + store(2) + h(muls(3), 2, 8) + cvts(3) + [('H', 's_nop 1', 3)] + swaps(3) + store(3)
    return L

def final(q, items):
    return [sm(q, pb) for pb, vb, nk in items] + [pv(q, db, ks, pb, vb) for db in range(8) for pb, vb, nk in items for ks in range(nk)]

def tail_merged():
    P = Prog(); G = P.group
    k3 = lambda q, sb: qkg(q, 1, sb=sb, kbase=aX, mask=True)
    fin = lambda q, pb: final(q, [(q, None, 2), (pb, 'ov', 1)])
    G('q0', qkg(0)); G('p2', pvg(2)); G('p3', pvg(3)); G('r0', k3(0, 2)); G('r1', k3(1, 3)); G('q1', qkg(1))
    if OPT['tord'] == 0:
        G('f0', fin(0, 2)); G('q2', qkg(2)); G('r2', k3(2, 0)); G('f1', fin(1, 3)); G('q3', qkg(3)); G('r3', k3(3, 1))
    else:
        G('f0', fin(0, 2)); G('r2', k3(2, 0)); G('q2', qkg(2)); G('f1', fin(1, 3)); G('r3', k3(3, 1)); G('q3', qkg(3))
    G('f2', fin(2, 0)); G('f3', fin(3, 1))
    P.done(); p = P.pos
    bar2 = p['p3'] + 8
    P.softmax('left', -1, 3, 3, only=LEFT3)
    for q in range(4):
        P.softmax(f's{q}', p[f'q{q}'], q, q, use=p[f'f{q}'])
        P.softmax(f't{q}', p[f'r{q}'], (q + 2) % 4, (q + 2) % 4, 1, use=p[f'f{q}'])
    P.kload('k3', p['r0'], 2, 'T3', 1, kbase=aX, rel0=2); P.vload('v2', p['f0'], 1, 'T2', rel0=2)
    P.vload('v3', p['f0'], 2, 'T3', 1, 'ov', rel0=bar2 + 1)
    g = P.gaps
    g[0].sc.append('s_waitcnt vmcnt(8)'); g[1].sc.append('s_barrier'); g[1].block = 'all'
    g[bar2 - 1].sc.append('s_waitcnt vmcnt(4)'); g[bar2].sc.append('s_barrier'); g[bar2].block = 'all'
    return P

def tail_y():
    P = Prog(); G = P.group
    G('q0', qkg(0)); G('p2', pvg(2)); G('p3', pvg(3)); G('q1', qkg(1)); G('f0', final(0, [(0, None, 2)]))
    G('q2', qkg(2)); G('f1', final(1, [(1, None, 2)])); G('r3', qkg(3, 1, sb=0, kbase=aX, mask=True)); G('q3', qkg(3))
    if OPT['tord'] == 2: G('x3', final(3, [(0, 'ov', 1)])); G('f2', final(2, [(2, None, 2)])); G('f3', final(3, [(3, None, 2)]))
    else: G('f2', final(2, [(2, None, 2)])); G('f3', final(3, [(3, None, 2), (0, 'ov', 1)]))
    P.done(); p = P.pos
    P.softmax('left', -1, 3, 3, only=LEFT3)
    for q in range(4): P.softmax(f's{q}', p[f'q{q}'], q, q, use=p[f'f{q}'])
    P.softmax('t3', p['r3'], 0, 0, 1)
    P.vload('v2', p['f0'], 1, 'T2', rel0=2)
    g = P.gaps
    g[0].sc.append('s_waitcnt vmcnt(8)'); g[1].sc.append('s_barrier'); g[1].block = 'all'
    return P

def tail_x():
    P = Prog(); G = P.group
    G('A1', qkg(0, sb=0)); G('A2', pvg(2)); G('A3', qkg(1, sb=1)); G('A4', pvg(3)); G('A5', qkg(0, sb=2))
    if OPT['tord'] < 2: G('A6', qkg(1, sb=3))
    G('A7', pvg(0, pb=0)); G('A8', pvg(1, pb=1)); G('A10', final(0, [(2, None, 2)]))
    if OPT['tord'] == 2: G('A6', qkg(1, sb=3))
    G('B1', qkg(2, sb=2)); G('A11', final(1, [(3, None, 2)])); G('B2', qkg(3, sb=3)); G('B3', qkg(2, sb=0))
    G('r3', qkg(3, 1, sb=1, kbase=aX, mask=True)); G('B4', pvg(2, pb=2)); G('B5', pvg(3, pb=3))
    if OPT['tord']:
        G('B8', final(2, [(0, None, 2)])); G('B6', qkg(3, sb=1)); G('x3', final(3, [(3, 'ov', 1)])); G('B9', final(3, [(1, None, 2)]))
    else:
        G('B6', qkg(3, sb=1)); G('B8', final(2, [(0, None, 2)])); G('B9', final(3, [(1, None, 2), (3, 'ov', 1)]))
    P.done(); p = P.pos
    bar2 = p['A5'] + 6
    P.softmax('left', -1, 3, 3, only=LEFT3)
    P.softmax('s10', p['A1'], 0, 0); P.softmax('s11', p['A3'], 1, 1); P.softmax('s20', p['A5'], 2, 2); P.softmax('s21', p['A6'], 3, 3)
    P.softmax('s12', p['B1'], 2, 2); P.softmax('s13', p['B2'], 3, 3); P.softmax('s22', p['B3'], 0, 0); P.softmax('s23', p['B6'], 1, 1)
    P.softmax('t3', p['r3'], 1, 3, 1, use=p['B8'])
    P.kload('k2', p['A5'], 2, 'T2', rel0=2); P.vload('v1', p['A7'], 1, 'T1', rel0=2); P.vload('v2', p['A10'], 2, 'T2', rel0=bar2 + 1)
    P.kload('k1b', p['B1'], 1, 'T1'); P.kload('k2b', p['B3'], 2, 'T2'); P.vload('v1b', p['B4'], 1, 'T1'); P.vload('v2b', p['B8'], 2, 'T2')
    g = P.gaps
    g[0].sc.append('s_waitcnt vmcnt(8)'); g[1].sc.append('s_barrier'); g[1].block = 'all'
    g[bar2 - 1].sc.append('s_waitcnt vmcnt(4)'); g[bar2].sc.append('s_barrier'); g[bar2].block = 'all'
    if OPT.get('otlb') == 2:
        P.ops.append(Op(('ot', 0), 'D', bar2 + 2, bar2 + 2, f'buffer_load_dword {v(BT)}, {v(OV)}, s[16:19], 0 offen sc1'))
    return P

def tail_pairs(nkb):
    nks = 1 if nkb <= 2 else 2
    small = nkb <= 2
    vx = aX if small else None
    P = Prog()
    G = P.group
    G('A1', qkg(0, sb=0)); G('A2', pvg(2)); G('A3', qkg(1, sb=1)); G('A4', pvg(3))
    G('A5', qkg(0, sb=2)); G('A6', qkg(1, sb=3)); G('A7', pvg(0, pb=0))
    if not small: G('A8', pvg(1, pb=1))
    G('A9a', qkg(0, nkb, sb=0, mask=True)); G('A9b', qkg(1, nkb, sb=1, mask=True))
    if small:
        G('A8', pvg(1, pb=1))
        G('A10', final(0, [(2, None, 2), (0, vx, 1)])); G('B1', qkg(2, sb=2)); G('A11', final(1, [(3, None, 2), (1, vx, 1)]))
        G('B2', qkg(3, sb=3)); G('B3', qkg(2, sb=0)); G('B4', pvg(2, pb=2))
        G('B7a', qkg(2, nkb, sb=2, kbase=aQ, mask=True)); G('B7b', qkg(3, nkb, sb=3, kbase=aQ, mask=True)); G('B5', pvg(3, pb=3))
        if OPT['tord']:
            G('B8', final(2, [(0, None, 2), (2, vx, 1)])); G('B6', qkg(3, sb=1))
            G('B9a', final(3, [(3, vx, 1)])); G('B9', final(3, [(1, None, 2)]))
        else:
            G('B6', qkg(3, sb=1))
            G('B8', final(2, [(0, None, 2), (2, vx, 1)])); G('B9', final(3, [(1, None, 2), (3, vx, 1)]))
    else:
        G('A10p', pvg(0, pb=2)); G('A11p', pvg(1, pb=3)); G('B1', qkg(2, sb=2))
        G('A10', final(0, [(0, None, 2)])); G('A11', final(1, [(1, None, 2)]))
        G('B2', qkg(3, sb=3)); G('B3', qkg(2, sb=0)); G('B4', pvg(2, pb=2)); G('B5', pvg(3, pb=3)); G('B6', qkg(3, sb=1))
        G('B8p', pvg(2, pb=0)); G('B7a', qkg(2, nkb, sb=2, mask=True)); G('B9p', pvg(3, pb=1)); G('B7b', qkg(3, nkb, sb=3, mask=True))
        G('B8', final(2, [(2, None, 2)])); G('B9', final(3, [(3, None, 2)]))
    P.done(); p = P.pos
    bar2 = p['A6'] + 10
    P.softmax('left', -1, 3, 3, only=LEFT3)
    P.softmax('s10', p['A1'], 0, 0); P.softmax('s11', p['A3'], 1, 1); P.softmax('s20', p['A5'], 2, 2); P.softmax('s21', p['A6'], 3, 3)
    P.softmax('s30', p['A9a'], 0, 0, nkb); P.softmax('s31', p['A9b'], 1, 1, nkb, use=p['A10'])
    P.softmax('s12', p['B1'], 2, 2); P.softmax('s13', p['B2'], 3, 3); P.softmax('s22', p['B3'], 0, 0); P.softmax('s23', p['B6'], 1, 1)
    P.softmax('s32', p['B7a'], 2, 2, nkb); P.softmax('s33', p['B7b'], 3, 3, nkb, use=p['B8'])
    P.kload('k2', p['A5'], 2, 'T2', rel0=2); P.vload('v1', p['A7'], 1, 'T1', rel0=2)
    P.kload('k3', p['A9a'], 3, 'T3', nkb, rel0=bar2 + 1)
    P.kload('k1b', p['B1'], 1, 'T1'); P.kload('k2b', p['B3'], 2, 'T2'); P.vload('v1b', p['B4'], 1, 'T1')
    if small:
        P.vload('v2', p['A10'], 2, 'T2', rel0=bar2 + 1); P.vload('v3', p['A10'], 3, 'T3', 1, vx, rel0=bar2 + 1)
        P.kload('k3b', p['B7a'], 3, 'T3', nkb, kbase=aQ); P.vload('v2b', p['B8'], 2, 'T2')
    else:
        P.vload('v2', p['A10p'], 2, 'T2', rel0=bar2 + 1); P.vload('v3', p['A10'], 3, 'T3')
        P.kload('k3b', p['B7a'], 3, 'T3', nkb); P.vload('v2b', p['B8p'], 2, 'T2'); P.vload('v3b', p['B8'], 3, 'T3')
    for i in range(4):
        P.ops.append(Op(('d', i), 'D', 10 + 4*i, 11 + 4*i, i_dma(1, i, SETS[1], 'T3')))
    g = P.gaps
    g[0].sc.append('s_waitcnt vmcnt(8)'); g[1].sc.append('s_barrier'); g[1].block = 'all'
    g[8].sc.append(i_m0(1, 3))
    g[bar2 - 1].sc.append('s_waitcnt vmcnt(0)'); g[bar2].sc.append('s_barrier'); g[bar2].block = 'all'
    return P

def tail(nkb, pend):
    P = {3: tail_merged, 4: tail_x, 5: tail_y}[OPT['tv']]() if nkb == 1 and OPT['tv'] >= 3 else tail_pairs(nkb)
    p = P.pos
    prev = None
    if OPT['urot']:
        for i, x in enumerate([f'v_or_b32 {v(BT)}, {s(sY)}, {v(OV)}'] + [f'v_xor_b32 {v(BT+u)}, {64*u}, {v(BT)}' for u in (1, 2, 3)]):
            o = Op(('su', i), 'H', 24, INF, x, fifo=prev, pri=60 + i); prev = o.key; P.ops.append(o)
    if OPT['ep']:
        t = T0
        setup = [f'v_mbcnt_lo_u32_b32 {v(t)}, -1, 0', f'v_mbcnt_hi_u32_b32 {v(t)}, -1, {v(t)}',
                 f'v_and_b32 {v(t+1)}, 15, {v(t)}', f'v_lshrrev_b32 {v(t+2)}, 4, {v(t)}',
                 f'v_mul_u32_u24 {v(EW)}, 272, {v(t+1)}', f'v_lshl_add_u32 {v(EW)}, {v(t+2)}, 3, {v(EW)}',
                 f'v_mul_u32_u24 {v(ER)}, 272, {v(t+2)}', f'v_lshl_add_u32 {v(ER)}, {v(t+1)}, 4, {v(ER)}',
                 f'v_add_u32 {v(EW)}, {s(sT+3)}, {v(EW)}', f'v_add_u32 {v(ER)}, {s(sT+3)}, {v(ER)}',
                 f'v_lshlrev_b32 {v(EG)}, 4, {v(t)}', f'v_add_u32 {v(EG)}, {s(sT+4)}, {v(EG)}']
        for i, x in enumerate(setup):
            o = Op(('su', i), 'H', 24, INF, x, fifo=prev, pri=100 + i); prev = o.key; P.ops.append(o)
    for q in range(4):
        lrel = P.last_write(AR(aL + 4*q, 4), INF) + 5
        nst = 0
        for i, (c, t, u) in enumerate(epi_list(q, q == 0)):
            rel = lrel if u < 0 else max(lrel, P.last_write(VR(O0 + 32*q + 8*u, 8), INF) + 5)
            fin = P.last_write(VR(O0 + 32*q, 32), INF) + 5
            edl = OPT.get(f'edl{q}', OPT.get('edl', INF))
            nst += c == 'D'
            dl = INF if edl >= INF else fin + edl + (LAT + OPT['ssp'] * (nst - 1) if c == 'D' and OPT['ep'] else 0)
            o = Op(('ep', q, i), {'M': 'H'}.get(c, c), rel, dl if dl < P.n - 1 else INF, f'v_mul_f32 {v(t[0])}, {v(t[1])}, {v(t[0])}' if c == 'M' else t,
                   fifo=prev, pri=rel + OPT['epri'] + i // 2)
            o.raw = (c, t); prev = o.key; P.ops.append(o)
            if c != 'D': lastnd = o.key
        if OPT['ep']: prev = lastnd
    g = P.gaps
    todo = schedule(P.n, P.ops, g, overflow=True)
    if OPT.get('ts'):
        names = {1: ('A5', 'A10', 'B2'), 2: ('B4', 'B8', 'B9'), 3: ('A2', 'A7', 'A11')}[OPT['ts']] if 'A5' in p else {1: ('p3', 'f0', 'f1'), 2: ('q3', 'f2', 'f3')}[OPT['ts']]
        for k, nm in enumerate(names): g[p[nm]].sc += stamp(1 + k)
        if nkb == 1: print('stamp mfma idx', [p[nm] for nm in names], p)
    if OPT['pkd']:
        import re
        for gp in g:
            if sum(x.startswith('v_mul_f32') for x in gp.post) < OPT['pkd']: continue
            out = []; i = 0
            while i < len(gp.post):
                m = re.match(r'v_mul_f32 v(\d+), v(\d+),', gp.post[i])
                if m and int(m.group(1)) % 2 == 0 and i + 1 < len(gp.post) and gp.post[i+1].startswith(f'v_mul_f32 v{int(m.group(1))+1},'):
                    out.append(f'v_pk_mul_f32 {v(int(m.group(1)),2)}, {v(int(m.group(1)),2)}, {v(int(m.group(2))-1,2)} op_sel:[0,1] op_sel_hi:[1,1]'); i += 2
                else: out.append(gp.post[i]); i += 1
            gp.post = out
    lines = emit(P.mf, g)
    assert all(o.key[0] == 'ep' for o in todo), [o.key for o in todo]
    i = 0
    while i < len(todo):
        c, t = todo[i].raw
        if c == 'M' and i + 1 < len(todo) and todo[i+1].raw[0] == 'M' and t[0] % 2 == 0 and todo[i+1].raw[1][0] == t[0] + 1:
            lines.append(f'v_pk_mul_f32 {v(t[0],2)}, {v(t[0],2)}, {v(t[1]-1,2)} op_sel:[0,1] op_sel_hi:[1,1]'); i += 2
        else:
            lines.append(todo[i].text); i += 1
    lines, _ = add_lgkm_waits(lines, pend)
    return lines

def scale_q(q):
    out = []
    for h in range(0, 16, 4):
        for i in range(4):
            x = S0 + 16*q + h + i; t = T0 + 2*i
            out += [f'v_lshlrev_b32 {v(t)}, 16, {v(x)}', f'v_and_b32 {v(t+1)}, 0xffff0000, {v(x)}']
        out += [f'v_pk_mul_f32 {v(T0+2*i,2)}, {v(T0+2*i,2)}, {s(sC,2)}' for i in range(4)]
        out += [f'v_cvt_pk_bf16_f32 {v(S0+16*q+h+i)}, {v(T0+2*i)}, {v(T0+2*i+1)}' for i in range(4)]
        out += [f'v_accvgpr_write_b32 {a(aQ+16*q+h+i)}, {v(S0+16*q+h+i)}' for i in range(4)]
    return out
def qread(q): return [f'ds_read_b128 {v(S0+16*q+4*ks,4)}, {v(QA+ks)} offset:{(q&1)*0x4000}' for ks in range(4)] + ['s_waitcnt lgkmcnt(0)']
def qload(q):
    return [f's_add_u32 m0, {s(sMK)}, {0x20000 + (q&1)*0x4000}', 's_nop 0'] + \
           [f'buffer_load_dwordx4 {v(QD+p)}, s[4:7], {qoff(q)} offen offset:{1024*p}{FL[OPT["qf"]]} lds ; ld Q{q}' for p in range(4)]
def dma4(isv, tile):
    return [f's_add_u32 m0, {s(sMV if isv else sMK)}, {s(sSL+tile)}', 's_nop 0'] + [i_dma(isv, i, 40 + 4*tile, tile) for i in range(4)]
def btprep(tile):
    out = []
    for i in range(4):
        r = 40 + 4*tile + i
        out.append(f's_min_u32 {s(r)}, {s(r)}, 131')
        out.append(f's_lshl_b32 {s(r)}, {s(r)}, 16')
        if i < 3: out.append(f's_or_b32 {s(r)}, {s(r)}, {(3-i)*1024}')
    return out

def resolve_waitvm(lines):
    out = []; vm = []
    for l in lines:
        if l.startswith('WAITVM'):
            tags = l.split(None, 1)[1].split('|')
            last = max(i for i, t in enumerate(vm) if t in tags)
            wb = {1: ('ld Q0', 'ld Q1'), 2: ('ld Q2', 'ld Q3'), 3: ('dma K 0', 'dma V 0'), 4: ('dmx K', 'ld BT')}.get(OPT.get('wb'), ())
            st_ = lambda i: [f's_memtime {s(sST+2*i,2)}']
            if tags[0] in wb: out += st_(1 + 2*wb.index(tags[0]))
            out.append(f's_waitcnt vmcnt({len(vm) - 1 - last}) ; {tags}')
            if tags[0] in wb: out += st_(2 + 2*wb.index(tags[0]))
        else:
            if l.startswith(('buffer_', 'global_')): vm.append(l.split(';')[1].strip() if ';' in l else '')
            out.append(l)
    return out

def prologue():
    t = T0
    L = ([f's_mov_b32 s77, {OPT["twice"]}', 'L_again:'] if OPT.get('twice') else []) + ['s_cmp_ge_u32 s2, 256', 's_cbranch_scc1 L_end',
         's_load_dwordx8 s[24:31], s[0:1], 0', 's_load_dwordx4 s[32:35], s[0:1], 32']
    L += [f's_lshr_b32 {s(sT+1)}, s2, 3']
    if OPT['cpf']:
        L += ['s_getpc_b64 s[8:9]', 'L_pc:', f's_lshl_b32 s10, {s(sT+1)}, 10', 'v_lshl_add_u32 v2, v0, 2, s10', 'v_mov_b32 v3, 0',
              'v_lshl_add_u64 v[2:3], v[2:3], 0, s[8:9]', f'global_load_dword {v(T0+7)}, v[2:3], off']
    L += stamp(0) + (['s_memrealtime s[100:101]'] if OPT['stamp'] else [])
    L += [f'v_lshrrev_b32 {v(t)}, 6, v0',
          f'v_and_b32 {v(t+2)}, 15, v0',
          f'v_readfirstlane_b32 {s(sW)}, {v(t)}',
          f'v_bfe_u32 {v(t+3)}, v0, 4, 2',
          f's_and_b32 {s(sT)}, s2, 7'] + ([f's_lshl_b32 {s(sT)}, {s(sT)}, 5', f's_add_u32 {s(sT)}, {s(sT)}, {s(sT+1)}'] if not OPT['hmap'] else
          [f's_lshl_b32 {s(sT)}, {s(sT)}, 4', f's_and_b32 {s(sT+2)}, {s(sT+1)}, 15', f's_add_u32 {s(sT)}, {s(sT)}, {s(sT+2)}', f's_and_b32 {s(sT+2)}, s2, 128', f's_add_u32 {s(sT)}, {s(sT)}, {s(sT+2)}']) + [ f's_lshl_b32 {s(sT+1)}, {s(sT)}, 16',
          f'v_lshl_add_u32 {v(t+4)}, {v(t)}, {WSH-8}, {v(t+3)}', f'v_xor_b32 {v(t+5)}, {v(t+2)}, {v(t+3)}',
          f'v_lshl_add_u32 {v(QD)}, {v(t+4)}, 4, {v(t+5)}', f'v_lshlrev_b32 {v(QD)}, 4, {v(QD)}',
          f's_lshl_b32 {s(sMK)}, {s(sW)}, 12'] + \
         {0: [], 1: [f's_mov_b32 {s(sQ0)}, {s(sMK)}'],
          2: [f's_add_u32 {s(sQ0)}, {s(sT)}, {s(sW)}', f's_and_b32 {s(sQ0)}, {s(sQ0)}, 3', f's_lshl_b32 {s(sQ0)}, {s(sQ0)}, 12'],
          3: [f's_and_b32 {s(sQ0)}, {s(sT)}, 3', f's_lshl_b32 {s(sQ0)}, {s(sQ0)}, 12'],
          4: [f's_and_b32 {s(sQ0)}, {s(sT)}, 3', f's_lshl_b32 {s(sQ0)}, {s(sQ0)}, 14'],
          5: [f's_mov_b32 {s(sQ0)}, 0'],
          6: [f's_add_u32 {s(sQ0)}, {s(sT)}, {s(sW)}', f's_and_b32 {s(sQ0)}, {s(sQ0)}, 3', f's_lshl_b32 {s(sQ0)}, {s(sQ0)}, 14']}[OPT['rot']] + [
          f'v_xor_b32 {v(QD+1)}, 64, {v(QD)}', f'v_xor_b32 {v(QD+2)}, 0x80, {v(QD)}',
          f'v_xor_b32 {v(QD+3)}, 64, {v(QD+2)}', 's_mov_b32 s6, 0x10000', 's_mov_b32 s7, 0x20000', qload(0)[0],
          's_waitcnt lgkmcnt(0)',
          f's_add_u32 s4, s24, {s(sT+1)}', 's_addc_u32 s5, s25, 0',
          f's_load_dword {s(sCL)}, s[32:33], 0', 's_load_dwordx16 s[40:55], s[30:31], 0']
    L += qload(0)[2:]
    if OPT['cpf'] and NCOPY > 2:
        L += ['s_mov_b64 s[8:9], 0x8000', 'v_lshl_add_u64 v[2:3], v[2:3], 0, s[8:9]', f'global_load_dword {v(T0+7)}, v[2:3], off']
    L += [f'v_and_b32 {v(t+1)}, 63, v0', f'v_lshlrev_b32 {v(t+6)}, 4, {v(t+1)}',
          's_mov_b32 s20, s30', 's_mov_b32 s21, s31', 's_movk_i32 s22, 0x200', 's_mov_b32 s23, 0x20000',
          f'buffer_load_dwordx4 {v(BT,4)}, {v(t+6)}, s[20:23], 0 offen ; ld BT',
          f's_lshr_b32 {s(sT)}, {s(sT)}, 4', f's_lshl_b32 {s(sT)}, {s(sT)}, 8',
          f's_add_u32 s8, s26, {s(sT)}', 's_addc_u32 s9, s27, 0', 's_sub_u32 s8, s8, 3072', 's_subb_u32 s9, s9, 0',
          f's_sub_u32 s10, {KBYTES+3072}, {s(sT)}', 's_mov_b32 s11, 0x20000',
          f'v_lshl_add_u32 {v(t+4)}, {v(t)}, 2, {v(t+3)}',
          f'v_xor_b32 {v(t+6)}, {v(t+2)}, {v(t+4)}', f'v_lshlrev_b32 {v(t+6)}, 4, {v(t+6)}',
          f'v_lshl_add_u32 {v(DK)}, {v(t+4)}, 12, {v(t+6)}',
          f'v_and_b32 {v(t+6)}, 7, {v(t+4)}', f'v_lshlrev_b32 {v(t+6)}, 1, {v(t+6)}',
          f'v_xor_b32 {v(t+6)}, {v(t+2)}, {v(t+6)}', f'v_lshlrev_b32 {v(t+6)}, 4, {v(t+6)}',
          f'v_lshl_add_u32 {v(DV)}, {v(t+4)}, 12, {v(t+6)}',
          ] + ([x for q in range(1, 4) for x in (f's_add_u32 {s(sQ1+q-1)}, {s(sQ0)}, {q << QSH}', f's_and_b32 {s(sQ1+q-1)}, {s(sQ1+q-1)}, {3 << QSH}')] if OPT['rot'] else
               [f's_movk_i32 {s(sQ1)}, 0x1000', f's_movk_i32 {s(sQ1+1)}, 0x2000', f's_movk_i32 {s(sQ1+2)}, 0x3000']) + [
          f's_add_u32 s12, s28, {s(sT)}', 's_addc_u32 s13, s29, 0', 's_sub_u32 s12, s12, 3072', 's_subb_u32 s13, s13, 0',
          's_mov_b32 s14, s10', 's_mov_b32 s15, 0x20000',
          f's_add_u32 s16, s34, {s(sT+1)}', 's_addc_u32 s17, s35, 0', 's_mov_b32 s18, 0x10000', 's_mov_b32 s19, 0x20000',
          f's_add_u32 {s(sMV)}, {s(sMK)}, 0x10000', f's_mov_b32 {s(sC)}, 0x3e0293ee',
          's_waitcnt lgkmcnt(0)'] + stamp(1)
    L += [f's_cmp_lt_i32 {s(sCL)}, 1', f's_cselect_b32 {s(sC)}, 0, {s(sC)}', f's_cselect_b32 {s(sCL)}, 0x800, {s(sCL)}',
          f's_min_u32 {s(sCLT)}, {s(sCL)}, 0x800', f's_max_u32 {s(sCL)}, {s(sCLT)}, {MINCL}',
          f's_add_u32 {s(sN)}, {s(sCL)}, 63', f's_lshr_b32 {s(sN)}, {s(sN)}, 6',
          f's_mov_b32 {s(sNP)}, {s(sN)}']
    if OPT['tv'] in (3, 5):
        L += [f's_sub_u32 {s(sNP)}, {s(sCL)}, 1', f's_and_b32 {s(sNP)}, {s(sNP)}, 63', f's_cmp_lt_u32 {s(sNP)}, 16', f's_addc_u32 {s(sNP)}, {s(sN)}, 0']
    L += [f's_sub_u32 {s(sE)}, 0, {s(sNP)}', f's_and_b32 {s(sE)}, {s(sE)}, 3', f's_lshl_b32 {s(sSL)}, {s(sE)}, 14']
    L += btprep(0) + dma4(0, 0) + qload(1)
    if OPT.get('otlb') == 1:
        L += [f'buffer_load_dword {v(O0+8)}, {v(QD)}, s[16:19], 0 offen sc1 ; ld O']
    L += [f's_mov_b32 {s(sC2)}, {s(sC)}',
          f's_cmp_lt_u32 {s(sCLT)}, {4096 if OPT["forceslow"] else MINCL}', f's_cselect_b32 {s(sFORCE)}, 1, 0',
          f's_add_u32 {s(sIT)}, {s(sNP)}, {s(sE)}', f's_lshr_b32 {s(sIT)}, {s(sIT)}, 2', f's_sub_u32 {s(sIT)}, {s(sIT)}, 2']
    for i in range(1, 4):
        L += [f's_add_u32 {s(sSL+i)}, {s(sSL)}, {i*0x4000}', f's_and_b32 {s(sSL+i)}, {s(sSL+i)}, 0xc000']
    L += [f's_sub_u32 {s(sT)}, {s(sN)}, 1', f's_lshl_b32 {s(sT)}, {s(sT)}, 6', f's_sub_u32 {s(sT)}, {s(sCL)}, {s(sT)}',
          f's_add_u32 {s(sNKB)}, {s(sT)}, 15', f's_lshr_b32 {s(sNKB)}, {s(sNKB)}, 4',
          f's_sub_u32 {s(sT)}, {s(sT)}, 1', f's_and_b32 {s(sT)}, {s(sT)}, 15',
          f's_and_b32 {s(sT+1)}, {s(sE)}, 1', f's_sub_u32 {s(sT+1)}, 4, {s(sT+1)}', f's_sub_u32 {s(sT+2)}, 7, {s(sT+1)}',
          f's_mov_b32 {s(sLN)}, 5', f's_bfe_u32 {s(sE2)}, {s(sW)}, {0x10000 + max(OPT["stag"], 1) - 1:#x}', f's_lshl2_add_u32 {s(sE2)}, {s(sE2)}, {s(sE)}',
          f's_lshl_b32 {s(sT+3)}, {s(sW)}, 13', f's_add_u32 {s(sT+3)}, {s(sT+3)}, 0x20000', f's_lshl_b32 {s(sT+4)}, {s(sW)}, {WSH}']
    L += [f'v_lshrrev_b32 {v(t+4)}, 2, {v(t+2)}', f'v_lshlrev_b32 {v(t+4)}, 4, {v(t+4)}',
          f'v_and_b32 {v(t+6)}, 3, {v(t+2)}', f'v_add_u32 {v(t+4)}, {v(t+4)}, {v(t+6)}', f'v_lshlrev_b32 {v(t+4)}, 8, {v(t+4)}',
          f'v_lshlrev_b32 {v(t+6)}, 12, {v(t)}', f'v_lshl_add_u32 {v(t+6)}, {v(t+2)}, 8, {v(t+6)}', f'v_add_u32 {v(t+6)}, 0x20000, {v(t+6)}']
    for ks in range(4):
        L += [f'v_xor_b32 {v(MK)}, {4*ks}, {v(t+5)}', f'v_lshl_add_u32 {v(KA+ks)}, {v(MK)}, 4, {v(t+4)}',
              f'v_lshl_add_u32 {v(QA+ks)}, {v(MK)}, 4, {v(t+6)}', f'v_add_u32 {v(KA0+ks)}, {s(sSL)}, {v(KA+ks)}']
    L += [f'v_bfe_u32 {v(t+5)}, {v(t+1)}, 2, 2',
          f'v_lshl_add_u32 {v(t+4)}, {v(t+3)}, 4, {v(t+5)}', f'v_lshlrev_b32 {v(t+4)}, 8, {v(t+4)}',
          f'v_and_b32 {v(MK)}, 3, {v(t+1)}', f'v_lshl_add_u32 {v(t+4)}, {v(MK)}, 3, {v(t+4)}', f'v_add_u32 {v(t+4)}, 0x10000, {v(t+4)}',
          f'v_lshl_add_u32 {v(t+5)}, {v(t+3)}, 2, {v(t+5)}', f'v_and_b32 {v(t+5)}, 7, {v(t+5)}']
    if OPT['urot']:
        L += {1: [f's_lshl_b32 {s(sY)}, {s(sW)}, 1'], 2: [f's_bfe_u32 {s(sY)}, s2, 0x20003', f's_lshl_b32 {s(sY)}, {s(sY)}, 1'],
              3: [f's_bfe_u32 {s(sY)}, s2, 0x20005', f's_xor_b32 {s(sY)}, {s(sY)}, {s(sW)}', f's_lshl_b32 {s(sY)}, {s(sY)}, 1']}[OPT['urot']]
        L += [f'v_xor_b32 {v(t+5)}, {s(sY)}, {v(t+5)}', f's_lshl_b32 {s(sY)}, {s(sY)}, 5']
    for db in range(8):
        L += [f'v_xor_b32 {v(VA+db)}, {db}, {v(t+5)}', f'v_lshl_add_u32 {v(VA+db)}, {v(VA+db)}, 5, {v(t+4)}',
              f'v_add_u32 {v(VA0+db)}, {s(sSL)}, {v(VA+db)}']
    L += [f'v_lshlrev_b32 {v(t+4)}, {WSH}, {v(t)}', f'v_lshl_add_u32 {v(t+4)}, {v(t+2)}, 8, {v(t+4)}',
          f'v_and_b32 {v(t+5)}, 1, {v(t+3)}', f'v_lshl_add_u32 {v(t+4)}, {v(t+5)}, 5, {v(t+4)}',
          f'v_lshrrev_b32 {v(t+5)}, 1, {v(t+3)}', f'v_lshl_add_u32 {v(OV)}, {v(t+5)}, 4, {v(t+4)}',
          f'v_and_b32 {v(t+4)}, 1, {v(t+1)}', f'v_mov_b32 {v(t+5)}, 0xaaaaaaaa',
          f'v_mul_lo_u32 {v(t+4)}, {v(t+4)}, {v(t+5)}', f'v_or_b32 {v(IDX)}, 0x44444444, {v(t+4)}', f'v_mov_b32 {v(t+5)}, 0x3f803f80']
    L += [f'v_accvgpr_write_b32 {a(aONE+i)}, {v(t+5)}' for i in range(4)]
    L += [f'v_lshlrev_b32 {v(t+4)}, 2, {v(t+3)}', f'v_mov_b32 {v(t+5)}, {NEG:#x}']
    for r in range(4):
        L += [f'v_add_u32 {v(t+6)}, {r}, {v(t+4)}', f'v_cmp_lt_u32 vcc, {s(sT)}, {v(t+6)}', 's_nop 1',
              f'v_cndmask_b32 {v(MK+r)}, 0, {v(t+5)}, vcc']
    L += btprep(1) + btprep(2) + btprep(3)
    L += [f'v_mov_b32 {v(O0+i)}, 0' for i in range(64, 128)]
    L += [f'v_accvgpr_write_b32 {a(aL+i)}, 0' for i in range(16)]
    groups = {'q2': qload(2), 'q3': qload(3), 'v0': dma4(1, 0), 'k1': dma4(0, 1), 'v1': dma4(1, 1), 'k2': dma4(0, 2), 'v2': dma4(1, 2), 'k3': dma4(0, 3)}
    plan = {0: dict(A=['q2'], B=['v0'], C=['q3'], D=['k1', 'v1'], E=['k2'], F=['v2', 'k3']),
            1: dict(A=['q2'], B=['v0'], C=['q3'], D=['k1'], E2=['v1', 'k2'], G=['v2', 'k3']),
            2: dict(A=['q2', 'v0'], C=['q3', 'k1'], D=['v1'], E2=['k2'], G=['v2', 'k3']),
            3: dict(A0=['v0'], A=['q2'], C=['q3', 'k1'], D=['v1', 'k2'], G=['v2', 'k3']),
            4: dict(A=['q2'], B=['v0'], C=['q3', 'k1'], D=['v1'], E2=['k2'], G=['v2', 'k3']),
            5: dict(A=['q2'], B=['v0'], C=['q3', 'k1'], D2=['v1', 'k2'], G=['v2', 'k3']),
            6: dict(A=['q2'], B=['v0', 'k1'], C=['q3'], D2=['v1', 'k2'], G=['v2', 'k3']),
            7: dict(A=['q2'], B=['v0'], C=['q3', 'k1'], D2=['v1', 'k2'], E2=['v2', 'k3']),
            8: dict(A=['q2'], B=['v0', 'k1'], C=['q3'], P=['v1', 'k2'], S=['v2', 'k3']),
            9: dict(A=['q2', 'v0'], B=['k1'], C=['q3'], P=['v1', 'k2'], S=['v2', 'k3']),
            10: dict(A0=['v0'], A=['q2'], B=['k1'], C=['q3'], P=['v1', 'k2'], S=['v2', 'k3']),
            11: dict(A=['q2'], B=['v0', 'k1'], C=['q3'], D2=['v1', 'k2'], S=['v2', 'k3']),
            12: dict(A=['q2'], B=['v0', 'k1'], C3=['q3'], P=['v1', 'k2'], S=['v2', 'k3']),
            13: dict(A=['q2'], B=['v0'], B2=['k1'], C3=['q3'], P=['v1', 'k2'], S=['v2', 'k3']),
            14: dict(A=['v0'], B=['q2'], C=['k1'], C3=['q3'], P=['v1', 'k2'], S=['v2', 'k3']),
            15: dict(A=['q2'], B2=['v0'], C2=['k1'], C3=['q3'], P=['v1', 'k2'], S=['v2', 'k3']),
            16: dict(A2=['q2'], B2=['v0'], C2=['k1'], C3=['q3'], P=['v1', 'k2'], S=['v2', 'k3']),
            17: dict(A=['q2'], B=['v0'], C=['k1'], C2=['q3'], P=['v1', 'k2'], S=['v2', 'k3']),
            18: dict(A=['q2'], B=['v0'], B2=['k1'], C2=['q3'], P=['v1', 'k2'], S=['v2', 'k3']),
            19: dict(A=['v0'], B=['q2'], C=['k1'], C3=['q3'], P=['v1'], S=['k2', 'v2'], K=['k3']),
            20: dict(A=['v0'], B=['q2'], C=['k1'], C3=['q3'], S=['v1', 'k2'], K=['v2', 'k3']),
            21: dict(A=['v0'], B=['q2'], C=['k1'], C2=['q3'], S=['v1', 'k2'], K=['v2', 'k3']),
            22: dict(A=['v0'], A2=['q2'], B2=['k1'], C2=['q3'], S=['v1', 'k2'], K=['v2', 'k3']),
            23: dict(A0=['v0'], A=['q2'], B2=['k1'], C2=['q3'], S=['v1', 'k2'], K=['v2', 'k3']),
            24: dict(A=['v0'], B=['q2'], C=['q3'], C3=['k1'], S=['v1', 'k2'], K=['v2', 'k3']),
            25: dict(A=['v0'], B=['q2'], C=['k1'], C3=['q3'], P=['v1', 'k2'], S=['v2'], K=['k3']),
            26: dict(A=['v0'], B=['q2'], C=['k1'], C3=['q3'], D=['v1'], P=['k2'], S=['v2'], K=['k3']),
            27: dict(A=['v0'], B=['q2'], C=['k1', 'v1'], C3=['q3'], P=['k2'], S=['v2'], K=['k3']),
            28: dict(A=['v0', 'k1'], B=['q2'], C2=['q3'], P=['v1', 'k2'], S=['v2'], K=['k3']),
            29: dict(A=['v0'], A2=['k1'], B=['q2'], C2=['q3'], D=['v1'], P=['k2'], S=['v2'], K=['k3'])}[OPT['po']]
    at = lambda p_: [x for g_ in plan.get(p_, []) for x in groups[g_]]
    X = OPT['tv'] >= 4
    btv = lambda i: [f'v_min_u32 {v(BT+i)}, 131, {v(BT+i)}', f'v_lshlrev_b32 {v(BT+i)}, 16, {v(BT+i)}'] + ([f'v_or_b32 {v(BT+i)}, {(3-i)*1024}, {v(BT+i)}'] if i < 3 else [])
    touch = []
    if OPT['touch']:
        touch = ['s_mov_b64 vcc, -1', f's_cmp_eq_u32 {s(sW)}, 0', 's_cbranch_scc1 L_padB', f's_cmp_eq_u32 {s(sW)}, 1', 's_cbranch_scc1 L_padA',
                 'L_ret:', 's_mov_b64 vcc, 0']
    L += at('A0') + (touch if OPT['touch'] == 1 else []) + (['L_walk:'] if OPT['walk'] else []) + ['WAITVM ld Q0'] + stamp(2)
    if X:
        L += ['WAITVM ld BT'] + btv(0) + [f's_sub_u32 {s(sT+5)}, {s(sN)}, 1', f'v_readlane_b32 {s(sT)}, {v(BT)}, {s(sT+5)}'] + qread(0)
        L += [f's_add_u32 m0, {s(sMV)}, {s(sSL+3)}', f's_sub_u32 {s(sT+5)}, {s(sT)}, 1024',
              f'buffer_load_dwordx4 {v(DV)}, s[12:15], {s(sT)} offen lds ; dmx V',
              f'buffer_load_dwordx4 {v(DK)}, s[8:11], {s(sT+5)} offen offset:1024 lds ; dmx K']
    else: L += qread(0)
    L += at('A') + scale_q(0) + at('A2') + ['WAITVM ld BT']
    for i in range(1 if X else 0, 4): L += btv(i)
    L += ['s_nop 0'] + [f'v_readlane_b32 {s(SETS[k]+i)}, {v(BT+i)}, {s(sT+1+k)}' for k in range(2) for i in range(4)]
    L += (touch if OPT['touch'] == 2 else []) + ['WAITVM dma K 0', 's_barrier']
    L += [i_kread(*kord(f), 0, '0', addr=KA0) for f in range(16)] + at('B')
    def tile0(x):
        P = Prog(); G = P.group
        r = lambda q, sb: qkg(q, 1, sb=sb, kbase=aX, mask=True)
        xv = lambda q: [pv(q, db, 0, 2, 'ov', first=q < 2) for db in range(8)] + [sm(q, 2)]
        G('q0', qkg(0))
        if x: G('r0', r(0, 2)); G('r1', r(1, 3))
        G('q1', qkg(1))
        if x: G('x0', xv(0)); G('x1', xv(1)); G('r2', r(2, 3))
        G('q2', qkg(2))
        if x: G('x2', xv(2))
        G('p0', pvg(0, first=not x)); G('p1', pvg(1, first=not x)); G('q3', qkg(3))
        P.done(); p = P.pos
        w1, w2 = p['r0' if x else 'q1'], p['r2' if x else 'q2']
        P.softmax('s0', p['q0'], 0, 0, dlcap=w1 + 4); P.softmax('s1', p['q1'], 1, 1, dlcap=w2 + (-1 if x else 4))
        P.softmax('s2', p['q2'], 2, 2, dlcap=p['q3'] - 1, use=P.n); P.softmax('s3', p['q3'], 3, 3, skip=LEFT3, lastrel=P.n - 1)
        if x:
            P.softmax('t0', p['r0'], 2, 2, 1); P.softmax('t1', p['r1'], 3, 2, 1, use=p['x1'], zero=False)
            P.softmax('t2', p['r2'], 3, 2, 1, zero=False)
        P.vload('v', p['p0'], 0, '0', addr=VA0, rel0=w2)
        P.kload('k', P.n, 0, '1', addr=T0, rel0=p['q3'], dlmax=P.n - 1)
        g = P.gaps
        for pt, gi in (('P', p['p0'] + 1), ('K', p['q3'] + 1)):
            step = 2 if pt == 'K' and len(plan.get('K', [])) > 1 else 4
            for y in at(pt):
                if y.startswith('s_add'): g[gi - 1].sc.append(y)
                elif y.startswith('buffer'):
                    P.ops.append(Op(('d', gi), 'D', gi, gi, y)); gi += step
        assert not schedule(P.n, P.ops, g, overflow=True)
        sc3 = []; ext = at('S')
        for i, y in enumerate(scale_q(3)):
            sc3.append(y)
            if i % 10 == 4 and ext:
                if ext[0].startswith('s_add'): sc3 += ext[:2]; ext = ext[2:]
                sc3.append(ext.pop(0))
        assert not ext
        xr = []
        if x:
            XA = S0 + 36
            xr = [f's_add_u32 {s(sT)}, {s(sSL+3)}, 0x10000'] + [f'v_add_u32 {v(XA+ks)}, {s(sT)}, {v(KA+ks)}' for ks in range(4)] + \
                 [f'v_add_u32 {v(XA+4+db)}, {s(sSL+3)}, {v(VA+db)}' for db in range(8)] + ['WAITVM dmx K', 's_barrier'] + \
                 [f'ds_read_b128 {a(aX+4*ks,4)}, {v(XA+ks)} offset:1024 ; rx K {ks}' for ks in range(4)] + \
                 [f'ds_read_b64_tr_b16 {a(aX+16+2*db,2)}, {v(XA+4+min(db,7))} offset:0 ; rx V {min(db,7)}' for db in range(9)]
        g[w1 - 1].post += at('B2') + xr + ['WAITVM ld Q1'] + qread(1) + at('C') + scale_q(1) + at('C2') + ['s_nop 0']
        g[w2 - 1].post += at('C3') + ['WAITVM ld Q2'] + qread(2) + at('D') + scale_q(2) + ['WAITVM dma V 0|dma K 1', 's_barrier']
        g[p['q3'] - 1].post += (['s_barrier'] if x else []) + at('D2') + ['WAITVM ld Q3'] + stamp(3) + qread(3) + sc3 + \
                               [f'v_add_u32 {v(T0+ks)}, {s(sSL+1)}, {v(KA+ks)}' for ks in range(4)]
        g[P.n - 1].post += [HEADWAIT]
        full, pend = add_lgkm_waits(resolve_waitvm(L + ['L_split:'] + emit(P.mf, g)))
        k = full.index('L_split:')
        return full[:k], full[k+1:] + stamp(4) + wave_select() + dispatch(0), pend
    assert OPT['po'] >= 8
    head, tn, pend = tile0(False)
    if not X: return head + tn, [], pend
    head2, tx, pend2 = tile0(True)
    assert head == head2 and [z[0] for z in pend] == [z[0] for z in pend2]
    return head + [f's_cmp_lg_u32 {s(sNKB)}, 1', 's_cbranch_scc1 L_tile0n'] + tx, ['L_tile0n:'] + tn + ['s_branch L_b1'], pend

def slow():
    t = T0
    L = ['L_slow:', 's_waitcnt vmcnt(0) lgkmcnt(0)']
    M, LS, KV, VD0, VD1 = KA, BT, DK, DV, IDX
    L += [f'v_mbcnt_lo_u32_b32 {v(t+1)}, -1, 0', f'v_mbcnt_hi_u32_b32 {v(t+1)}, -1, {v(t+1)}',
          f'v_and_b32 {v(t+2)}, 15, {v(t+1)}', f'v_lshrrev_b32 {v(t+3)}, 4, {v(t+1)}']
    L += [f's_lshl_b32 {s(sT)}, {s(sW)}, {WSH}', f'v_lshlrev_b32 {v(t+4)}, 8, {v(t+2)}', f'v_lshl_add_u32 {v(t+4)}, {v(t+3)}, 4, {v(t+4)}',
          f'v_add_u32 {v(t+4)}, {s(sT)}, {v(t+4)}']
    L += [f'buffer_load_dwordx4 {v(S0+16*q+4*ks,4)}, {v(t+4)}, s[4:7], {qoff(q)} offen offset:{64*ks}' for q in range(2) for ks in range(4)]
    L += [f'v_lshlrev_b32 {v(t+4)}, 12, {v(t+2)}', f'v_lshl_add_u32 {v(KV)}, {v(t+3)}, 4, {v(t+4)}', f'v_add_u32 {v(KV)}, 3072, {v(KV)}',
          f'v_lshlrev_b32 {v(t+4)}, 1, {v(t+3)}', f'v_xor_b32 {v(t+4)}, {v(t+2)}, {v(t+4)}',
          f'v_lshlrev_b32 {v(t+4)}, 4, {v(t+4)}', f'v_lshl_add_u32 {v(VD0)}, {v(t+3)}, 12, {v(t+4)}', f'v_add_u32 {v(VD0)}, 3072, {v(VD0)}',
          f'v_xor_b32 {v(t+4)}, 0x80, {v(t+4)}', f'v_lshl_add_u32 {v(VD1)}, {v(t+3)}, 12, {v(t+4)}', f'v_add_u32 {v(VD1)}, {3072 + 16384}, {v(VD1)}',
          f's_lshl_b32 {s(sMV)}, {s(sW)}, 13', f's_add_u32 {s(sMV)}, {s(sMV)}, 0x20000',
          f'v_bfe_u32 {v(t+5)}, {v(t+1)}, 2, 2', f'v_lshl_add_u32 {v(t+5)}, {v(t+3)}, 2, {v(t+5)}',
          f'v_lshlrev_b32 {v(t+4)}, 8, {v(t+5)}', f'v_and_b32 {v(t+6)}, 3, {v(t+1)}',
          f'v_lshl_add_u32 {v(t+4)}, {v(t+6)}, 3, {v(t+4)}', f'v_add_u32 {v(t+4)}, {s(sMV)}, {v(t+4)}', f'v_and_b32 {v(t+5)}, 7, {v(t+5)}']
    for db in range(8):
        L += [f'v_xor_b32 {v(VA+db)}, {db}, {v(t+5)}', f'v_lshl_add_u32 {v(VA+db)}, {v(VA+db)}, 5, {v(t+4)}']
    L += [f'v_lshlrev_b32 {v(MK)}, 2, {v(t+3)}', f'v_mov_b32 {v(MK+1)}, {NEG:#x}']
    L += [f'v_mov_b32 {v(O0+i)}, 0' for i in range(128)]
    L += [f'v_mov_b32 {v(M+q)}, 0xff7fffff' for q in range(4)] + [f'v_mov_b32 {v(LS+q)}, 0' for q in range(4)]
    L += ['s_waitcnt vmcnt(0)'] + scale_q(0) + scale_q(1)
    L += [f's_mov_b32 {s(sIT)}, 0', 'L_slow_loop:',
          f's_lshr_b32 {s(sT)}, {s(sIT)}, 2',
          f's_load_dwordx2 s[40:41], s[30:31], {s(sT)}', 's_waitcnt lgkmcnt(0)',
          's_min_u32 s40, s40, 131', 's_min_u32 s41, s41, 131', 's_lshl_b32 s40, s40, 16', 's_lshl_b32 s41, s41, 16']
    for kb in range(2):
        for ks in range(4):
            L.append(f'buffer_load_dwordx4 {a(aK+16*kb+4*ks,4)}, {v(KV)}, s[8:11], s{40+kb} offen offset:{64*ks}')
    for b in range(2):
        for p in range(4):
            L += [f's_add_u32 m0, {s(sMV)}, {b*4096 + p*1024}', f's_add_u32 s42, s{40+b}, {(p//2)*32768}',
                  f'buffer_load_dwordx4 {v(VD1 if p & 1 else VD0)}, s[12:15], s42 offen lds']
    L += ['s_waitcnt vmcnt(0)']
    for db in range(8):
        for tt in range(2):
            L.append(f'ds_read_b64_tr_b16 {a(aV+8*db+2*tt,2)}, {v(VA+db)} offset:{tt*4096}')
    L += [f's_sub_u32 {s(sT)}, {s(sCLT)}, {s(sIT)}', 's_waitcnt lgkmcnt(0)']
    for q in range(4):
        S = S0 + 16*q
        L += qkg(q, 2) + ['s_nop 7']
        for e in range(8):
            L += [f'v_add_u32 {v(t)}, {16*(e//4) + e%4}, {v(MK)}', f'v_cmp_gt_u32 vcc, {s(sT)}, {v(t)}', 's_nop 1',
                  f'v_cndmask_b32 {v(S+e)}, {v(MK+1)}, {v(S+e)}, vcc']
        L += [f'v_max3_f32 {v(t)}, {v(S)}, {v(S+1)}, {v(S+2)}', f'v_max3_f32 {v(t)}, {v(t)}, {v(S+3)}, {v(S+4)}',
              f'v_max3_f32 {v(t)}, {v(t)}, {v(S+5)}, {v(S+6)}', f'v_max3_f32 {v(t)}, {v(t)}, {v(S+7)}, {v(M+q)}',
              f'v_mov_b32 {v(t+1)}, {v(t)}', 's_nop 1', f'v_permlane16_swap_b32 {v(t)}, {v(t+1)}', f'v_max_f32 {v(t)}, {v(t)}, {v(t+1)}',
              f'v_mov_b32 {v(t+1)}, {v(t)}', 's_nop 1', f'v_permlane32_swap_b32 {v(t)}, {v(t+1)}', f'v_max_f32 {v(t)}, {v(t)}, {v(t+1)}',
              f'v_sub_f32 {v(t+1)}, {v(M+q)}, {v(t)}', f'v_exp_f32 {v(t+1)}, {v(t+1)}', f'v_mov_b32 {v(M+q)}, {v(t)}']
        L += [f'v_sub_f32 {v(S+e)}, {v(S+e)}, {v(t)}' for e in range(8)]
        L += [f'v_exp_f32 {v(S+e)}, {v(S+e)}' for e in range(8)]
        L += [f'v_mul_f32 {v(LS+q)}, {v(LS+q)}, {v(t+1)}']
        L += [f'v_mul_f32 {v(O0+32*q+i)}, {v(O0+32*q+i)}, {v(t+1)}' for i in range(32)]
        L += [i_cvt(q, q, i) for i in range(4)]
        for i in range(4):
            L += [f'v_lshlrev_b32 {v(t)}, 16, {v(P0+8*q+i)}', f'v_and_b32 {v(t+1)}, 0xffff0000, {v(P0+8*q+i)}',
                  f'v_add_f32 {v(LS+q)}, {v(LS+q)}, {v(t)}', f'v_add_f32 {v(LS+q)}, {v(LS+q)}, {v(t+1)}']
        L += [pv(q, db, 0) for db in range(8)]
    L += [f's_add_u32 {s(sIT)}, {s(sIT)}, 32', f's_cmp_lt_u32 {s(sIT)}, {s(sCLT)}', 's_cbranch_scc1 L_slow_loop', 's_nop 7']
    for q in range(4):
        o = O0 + 32*q
        L += [f'v_mov_b32 {v(t)}, {v(LS+q)}', f'v_mov_b32 {v(t+1)}, {v(LS+q)}', 's_nop 1',
              f'v_permlane16_swap_b32 {v(t)}, {v(t+1)}', f'v_add_f32 {v(t)}, {v(t)}, {v(t+1)}',
              f'v_mov_b32 {v(t+1)}, {v(t)}', 's_nop 1', f'v_permlane32_swap_b32 {v(t)}, {v(t+1)}', f'v_add_f32 {v(t)}, {v(t)}, {v(t+1)}',
              f'v_rcp_f32 {v(t)}, {v(t)}', 's_nop 0']
        L += [f'v_mul_f32 {v(o+i)}, {v(o+i)}, {v(t)}' for i in range(32)]
        for u in range(4):
            L += [f'v_cvt_pk_bf16_f32 {v(o+8*u+i)}, {v(o+8*u+2*i)}, {v(o+8*u+2*i+1)}' for i in range(4)]
        for u in range(4):
            L += [f'v_permlane16_swap_b32 {v(o+8*u+i)}, {v(o+8*u+2+i)}' for i in range(2)]
        for u in range(4):
            L.append(f'buffer_store_dwordx4 {v(o+8*u,4)}, {v(OV)}, s[16:19], {qoff(q)} offen offset:{64*u}')
    return L + ['s_endpgm']

DOC = '''; Paged-KV attention, one workgroup per CU: 256 query rows against one KV head, 4 waves x 64 rows, 64-key tiles.
;  * S^T = K.Q^T and O^T += V^T.P^T with v_mfma_f32_16x16x32_bf16 (P stays in registers, V via ds_read_b64_tr_b16),
;    row sums with one v_smfmac_f32_16x16x64_bf16 per 16 rows and tile.  Q is scaled once by log2(e)/sqrt(D).
;  * Softmax guard: the fast path uses 0 as stand-in for the row maximum.  Every row sum is checked at run time; if one
;    leaves [2^-40, 2^40] (or is not a number) the wave recomputes its rows in L_slow with the true running maximum.
;    L_slow also serves context lengths below 193.  context_lens <= 0 (all keys masked) gives the uniform average.
;    first, so that their stores overlap the remaining rows.
'''
NFIN = 0
def finish():
    global NFIN
    NFIN += 1
    L = [f'v_cmp_lt_u32 vcc, 0x28000000, {v(T0+4)}' if not OPT.get('abl') else 's_mov_b64 vcc, 0',
         f's_cmp_lg_u32 {s(sFORCE)}, 0', 's_cbranch_scc1 L_slow', 's_nop 3', 's_cbranch_vccnz L_slow']
    if OPT.get('twice'):
        L += ['s_cmp_eq_u32 s77, 0', f's_cbranch_scc1 L_fin{NFIN}', 's_sub_u32 s77, s77, 1', 's_waitcnt vmcnt(0) lgkmcnt(0)', 's_barrier',
              'v_mbcnt_lo_u32_b32 v0, -1, 0', 'v_mbcnt_hi_u32_b32 v0, -1, v0', f's_lshl_b32 {s(sT)}, {s(sW)}, 6', f'v_add_u32 v0, {s(sT)}, v0', 's_branch L_again', f'L_fin{NFIN}:']
    if OPT['stamp']:
        L += [f's_memtime s[40:41]', 's_waitcnt vmcnt(0)', 's_memtime s[42:43]', f's_memrealtime s[44:45]', 's_waitcnt lgkmcnt(0)']
        st = lambda i: sST + 2*i if i < 6 else 40 + 2*(i - 6)
        if OPT.get('fixed'):
            L += [f's_mov_b32 {s(sT+4)}, {OPT["fixed"]}']
            if OPT.get('xcc'):
                L += [f's_getreg_b32 {s(sT+5)}, hwreg(HW_REG_XCC_ID, 0, 4)', f's_sub_u32 {s(sT+5)}, {s(sT+5)}, s2', f's_and_b32 {s(sT+5)}, {s(sT+5)}, 7']
                if OPT['xcc'] == 2: L += [f's_sub_u32 {s(sT+5)}, 7, {s(sT+5)}']
                L += [f's_mul_i32 {s(sT+5)}, {s(sT+5)}, 500', f's_add_u32 {s(sT+4)}, {s(sT+4)}, {s(sT+5)}']
            if OPT.get('phase'):
                L += [f's_sub_u32 {s(sT+5)}, {s(st(OPT["phase"]))}, {s(st(OPT.get("phase0", 0)))}']
                if OPT.get('neg'): L += [f's_sub_u32 {s(sT+5)}, {OPT["neg"]}, {s(sT+5)}']
                L += [f's_lshr_b32 {s(sT+5)}, {s(sT+5)}, {OPT.get("sh", 3)}', f's_add_u32 {s(sT+4)}, {s(sT+4)}, {s(sT+5)}']
            return L + [f'L_spin{NFIN}:', f's_memrealtime {s(sT,2)}', 's_waitcnt lgkmcnt(0)', f's_sub_u32 {s(sT)}, {s(sT)}, s100',
                        f's_cmp_lt_u32 {s(sT)}, {s(sT+4)}', f's_cbranch_scc1 L_spin{NFIN}', 's_endpgm']
        L += ['s_load_dwordx2 s[24:25], s[0:1], 56', 's_waitcnt lgkmcnt(0)', 's_mov_b32 s26, 0x100000', 's_mov_b32 s27, 0x20000']
        L += [f'v_mov_b32 v{i}, {s(st(i))}' for i in range(8)]
        L += ['v_mov_b32 v8, s42', 'v_mov_b32 v9, s44', 'v_mov_b32 v10, s100', 'v_mov_b32 v11, 0',
              f's_lshl_b32 {s(sT)}, s2, 2', f's_add_u32 {s(sT)}, {s(sT)}, {s(sW)}', f's_lshl_b32 {s(sT)}, {s(sT)}, 6',
              'v_mov_b32 v12, 0', 's_mov_b64 exec, 1',
              f'buffer_store_dwordx4 v[0:3], v12, s[24:27], {s(sT)} offen',
              f'buffer_store_dwordx4 v[4:7], v12, s[24:27], {s(sT)} offen offset:16',
              f'buffer_store_dwordx4 v[8:11], v12, s[24:27], {s(sT)} offen offset:32']
    return L + ['s_endpgm']

def sizes(L):
    import subprocess, re, tempfile, os
    d = tempfile.mkdtemp()
    open(d + '/a.s', 'w').write('.amdgcn_target "amdgcn-amd-amdhsa--gfx950"\n.text\n' + '\n'.join(l for l in L if not l.startswith('.')) + '\n')
    subprocess.check_call(['clang', '-x', 'assembler', '-target', 'amdgcn-amd-amdhsa', '-mcpu=gfx950', '-c', d + '/a.s', '-o', d + '/a.o'])
    out = subprocess.check_output(['llvm-objdump', '-d', '--mcpu=gfx950', d + '/a.o']).decode()
    sz = [4 * len(m.group(1).split()) for m in re.finditer(r'// [0-9A-F]+: ([0-9A-F ]+)', out)]
    it = iter(sz)
    return [next(it) if Ins(l).states else 0 for l in L]

def add_walk(L):
    sz = sizes(L); ins = parse(L)
    regions = [(L.index('L_walk:') + 1, L.index('L_b1:') - 1), (L.index('L_tail:'), L.index('L_pfend:') - 8)]
    if OPT['walk'] == 2: regions = [(L.index('L_walk:') + 1, L.index('L_pfend:') - 8)]
    pads = []
    for lo, hi in regions:
        acc = OPT['wsp'] - 64 if lo == regions[0][0] else OPT['wsp']; best = None
        for i in range(lo, hi):
            acc += sz[i]
            if acc >= OPT['wsp'] - max(64, OPT['wsp'] // 4) and ins[i].states and ins[i].cls != 'br' and not L[i].startswith(('s_cmp', 's_waitcnt')):
                cost = 0 if ins[i].cls == 'mfma' and ins[i+1].cls == 'mfma' else 2 if ins[i+1].cls == 'mfma' else 3
                if best is None or cost <= best[0]: best = (cost, i, acc)
            if acc >= OPT['wsp'] and best:
                pads.append(best[1]); acc -= best[2]; best = None
    n = len(pads); cut = [n * w // 4 for w in range(5)]
    out = []
    for i, l in enumerate(L):
        if l == 'L_walk:':
            out += ['s_mov_b64 vcc, -1']
            for w in range(3): out += [f's_cmp_eq_u32 {s(sW)}, {w}', f's_cbranch_scc1 L_pad{cut[w]}']
            out += [f's_branch L_pad{cut[3]}', 'L_ret:', 's_mov_b64 vcc, 0']
            continue
        out.append(l)
        if i in pads:
            k = pads.index(i)
            out += [f'L_pad{k}:', f's_cbranch_vccnz {"L_ret" if k + 1 in cut else f"L_pad{k+1}"}']
    print('pads', n)
    return out

def main():
    pro, pro2, pend0 = prologue()
    loop, pend = loop_code()
    assert [x[0] for x in pend0] == [x[0] for x in pend], (pend0, pend)
    L = [f'{NAME}:'] + pro + loop
    L += ['L_tail:'] + stamp(5) + [f's_cmp_gt_u32 {s(sNKB)}, 1', 's_cbranch_scc1 L_tail234']
    L += tail(1, pend) + finish()
    for w in range(1, NCOPY): L += loop_copy(w, pend)
    L += ['L_pfend:']
    L += ['L_tail234:', f's_cmp_eq_u32 {s(sNKB)}, 3', 's_cbranch_scc1 L_tail3', f's_cmp_eq_u32 {s(sNKB)}, 4', 's_cbranch_scc1 L_tail4']
    L += tail(2, pend) + finish() + ['L_tail3:'] + tail(3, pend) + finish() + ['L_tail4:'] + tail(4, pend) + finish()
    L += pro2 + slow() + ['L_end:', 's_endpgm']
    L, nn = fix_hazards(L, verbose=OPT.get('verbose', 0))
    if OPT['walk']: L = add_walk(L)
    sz = sizes(L)
    assert sum(sz[L.index('L_pc:'):]) > (65536 if NCOPY > 2 else 32768) + 64 if OPT['cpf'] else True
    print('bytes up to the last Q0 load:', sum(sz[:max(i for i, l in enumerate(L) if l.endswith('ld Q0')) + 1]), ' executed code:', sum(sz[:L.index('L_pfend:')]))
    print('nop states inserted:', nn, ' leftovers:', sorted(LEFT3))
    hdr = open('standalone__paged_block_table_kv_pagedattention__prompt.s.ref').read().split('; Override')[0]
    txt = hdr + DOC + '; Generated by gen/gen2.py (own generator script).\n'
    txt += '; @launch grid=(256,1,1) block=(256,1,1) lds=163840\n'
    txt += f'.amdgcn_target "amdgcn-amd-amdhsa--gfx950"\n.text\n.globl {NAME}\n.p2align 8\n.type {NAME},@function\n'
    for l in L: txt += (l if l.endswith(':') or l.startswith(('.', ';')) else '    ' + l) + '\n'
    txt += f'''.section .rodata,"a"
.p2align 6
.amdhsa_kernel {NAME}
  .amdhsa_next_free_vgpr 504
  .amdhsa_next_free_sgpr 102
  .amdhsa_accum_offset 256
  .amdhsa_group_segment_fixed_size 0
  .amdhsa_kernarg_size 64
  .amdhsa_user_sgpr_count 2
  .amdhsa_user_sgpr_kernarg_segment_ptr 1
  .amdhsa_system_sgpr_workgroup_id_x 1
.end_amdhsa_kernel
'''
    open(sys.argv[1], 'w').write(txt)
    if OPT.get('show'):
        for g in range(NG): print(g, PAT[g])
main()
```

```python
import sys
from asmcheck import parse, fix_hazards, Ins

NAME = 'standalone__paged_block_table_kv_pagedattention__prompt_kernel'
FL = {0: '', 1: ' nt', 2: ' sc1', 3: ' sc0 sc1', 4: ' sc1 nt', 5: ' sc0 sc1 nt', 6: ' sc0', 7: ' sc0 nt'}
OPT = dict(po=31, cpf=1, qf=0, kf=2, of=2, delta=9, stamp=0, lat=8, forceslow=0, tord=1, epri=12, ep=0, ssp=4, tv=3, edl=0, ttu=2, walk=0, wsp=224, pkd=6, touch=0, snake=1, stag=1, rot=6, urot=0, hmap=0, t0o=1)
for a_ in sys.argv[2:]:
    k_, v_ = a_.split('='); OPT[k_] = int(v_, 0)

S0, P0, KA, VA, BT, DK, DV, IDX, OV, MK, T0, O0 = 0, 64, 96, 100, 108, 112, 113, 114, 115, 116, 120, 128
QD, QA = P0 + 24, P0 + 28
KA0, VA0 = O0, S0 + 52
EW, ER, EG = T0 + 5, T0 + 6, T0 + 7
aQ, aK, aV, aL, aONE, aX = 0, 64, 128, 192, 208, 212
sW, sCL, sN, sIT, sLN = 3, 36, 37, 38, 39
SETS = (56, 60)
sMK, sMV, sC, sC2, sNKB, sE, sFORCE, sCLT = 64, 65, 66, 67, 68, 69, 70, 71
sNP = 75
sE2 = 76
sQ0 = 77
sY = 35
sQ1 = 72
sSL = 96
sT = 78
sST = 84
KBYTES = 132 * 65536
LAT = OPT['lat']
NEG = 0xf149f2ca
INF = 10 ** 6
WSH, QSH = (12, 14) if OPT['rot'] >= 4 else (14, 12)
MINCL = 193

def v(b, n=1): return f'v{b}' if n == 1 else f'v[{b}:{b+n-1}]'
def a(b, n=1): return f'a{b}' if n == 1 else f'a[{b}:{b+n-1}]'
def s(b, n=1): return f's{b}' if n == 1 else f's[{b}:{b+n-1}]'
def VR(b, n=1): return {('v', i) for i in range(b, b + n)}
def AR(b, n=1): return {('a', i) for i in range(b, b + n)}

MF = 'v_mfma_f32_16x16x32_bf16'
def kord(f):
    return f // 4, (3 - f % 4 if OPT['snake'] and (f // 4) % 2 else f % 4)
def qk(q, f, sb=None, kbase=aK, mask=False):
    kb, ks = kord(f)
    D = v(S0 + 16*(q if sb is None else sb) + 4*kb, 4)
    C = D if f % 4 else (v(MK, 4) if mask else '0')
    return f'{MF} {D}, {a(kbase+16*kb+4*ks,4)}, {a(aQ+16*q+4*ks,4)}, {C}'
def vfrag(db, ks, vbase):
    if vbase == 'ov': return aX + 16 + 2*db
    return aV + (2*db+ks)*4 if vbase is None else vbase + 4*db
def pv(q, db, ks, pb=None, vbase=None, first=False):
    D = v(O0 + 32*q + 4*db, 4)
    return f'{MF} {D}, {a(vfrag(db, ks, vbase),4)}, {v(P0+8*(q if pb is None else pb)+4*ks,4)}, {"0" if first and ks == 0 else D}'
def sm(q, pb=None):
    return f'v_smfmac_f32_16x16x64_bf16 {a(aL+4*q,4)}, {a(aONE,4)}, {v(P0+8*(q if pb is None else pb),8)}, {v(IDX)}'
def qkg(q, nkb=4, sb=None, kbase=aK, mask=False):
    return [qk(q, f, sb, kbase, mask and f // 4 == nkb-1) for f in range(4 * nkb)]
def pvg(q, pb=None, first=False): return [pv(q, db, ks, pb, None, first) for db in range(8) for ks in range(2)] + [sm(q, pb)]

def i_exp(sb, n): return f'v_exp_f32 {v(S0+16*sb+n)}, {v(S0+16*sb+n)}'
def i_cvt(sb, pb, i): return f'v_cvt_pk_bf16_f32 {v(P0+8*pb+i)}, {v(S0+16*sb+2*i)}, {v(S0+16*sb+2*i+1)}'
def i_kread(kb, ks, slot, tag, kbase=aK, addr=KA):
    return f'ds_read_b128 {a(kbase+16*kb+4*ks,4)}, {v(addr+ks)} offset:{slot*16384+kb*1024}'
def i_vread(db, ks, t, slot, tag, vbase=None, addr=VA):
    return f'ds_read_b64_tr_b16 {a(vfrag(db, ks, vbase)+2*t,2)}, {v(addr+db)} offset:{slot*16384+(2*ks+t)*1024}'
def i_dma(isv, i, soff, tag):
    return f'buffer_load_dwordx4 {v(DV if isv else DK)}, {s(12 if isv else 8,4)}, {s(soff+i)} offen offset:{i*1024}{FL[OPT["kf"]]} lds'
def i_m0(isv, slot): return f's_add_u32 m0, {s(sMV if isv else sMK)}, {slot*16384}'
def qoff(q): return s(sQ0) if q == 0 and OPT['rot'] else '0' if q == 0 else s(sQ1 + q - 1)
def stamp(i): return [f's_memtime {s(sST+2*i,2)}'] if OPT['stamp'] and not (OPT.get('wb') and 1 <= i <= 4) else []

class Op:
    def __init__(self, key, cls, rel, dl, text, deps=(), fifo=None, pri=None):
        self.key, self.cls, self.rel, self.dl, self.text, self.deps, self.fifo = key, cls, rel, dl, text, list(deps), fifo
        self.pri = dl if pri is None else pri
        self.gap = None
class Gap:
    def __init__(self): self.sc, self.mem, self.valu, self.post = [], [], [], []; self.block = None

def schedule(ngaps, ops, gaps, overflow=False):
    byk = {o.key: o for o in ops}
    todo = list(ops)
    def ready(o, g):
        if o.rel > g: return False
        for d in o.deps:
            p = byk.get(d)
            if p is not None and (p.gap is None or p.gap >= g): return False
        if o.fifo is not None:
            p = byk[o.fifo]
            if p.gap is None or (o.cls in 'DRT' and p.cls not in 'RT' and p.gap >= g): return False
            if o.cls == 'D' and p.cls == 'R' and p.gap + LAT > g: return False
            if o.cls == 'D' and p.cls == 'D' and p.gap + OPT['ssp'] > g: return False
        return True
    def put(o, g):
        o.gap = g; todo.remove(o)
        (gaps[g].mem if o.cls in 'DRT' else gaps[g].valu).append(o)
    for g in range(ngaps):
        if gaps[g].block != 'all':
            cand = sorted((o for o in todo if ready(o, g)), key=lambda o: o.pri)
            if gaps[g].block == 'half': cand = [o for o in cand if o.cls == 'H'][:1]
            if cand:
                top = cand[0]
                halves = [o for o in cand if o.cls in 'RTH']
                full = [o for o in cand if o.cls in 'ED']
                if top.cls in 'RTH' and len(halves) == 1 and full and top.pri - g > 6 and top.fifo is None: top = full[0]
                put(top, g)
                if top.cls in 'RTH' and gaps[g].block != 'half':
                    c2 = sorted((o for o in todo if o.cls in 'RTH' and ready(o, g) and not (o.cls == 'R' and top.cls == 'R')), key=lambda o: o.pri)
                    if c2:
                        pick = c2[0]
                        busy = g > 0 and len(gaps[g-1].mem) > 1
                        if top.cls in 'RT' and pick.cls in 'RT' and (pick.pri - g > 8 or (busy and pick.pri - g > OPT['ttu'])):
                            h = [o for o in c2 if o.cls == 'H']
                            if h: pick = h[0]
                            elif busy and pick.pri - g > OPT['ttu']: pick = None
                        if pick: put(pick, g)
        late = [o for o in todo if o.dl <= g]
        if late:
            if not overflow: raise RuntimeError(f'deadline miss at gap {g}: {[o.key for o in late]}')
            def force(o):
                if o.gap is not None: return
                for d in o.deps + ([o.fifo] if o.fifo else []):
                    if d in byk: force(byk[d])
                assert o.rel <= g, (o.key, o.rel, g)
                o.gap = g; todo.remove(o)
                if o.cls in 'RT' and o.fifo is None and gaps[g].block != 'all': gaps[g].mem.append(o)
                else: gaps[g].post.append(o.text)
            for o in sorted(late, key=lambda o: (o.fifo is not None, {'R': 0, 'T': 0, 'D': 0, 'E': 1, 'H': 2}[o.cls], o.dl)): force(o)
    return todo

def emit(mf, gaps):
    out = []
    for m, g in zip(mf, gaps):
        out.append(m)
        sc = list(g.sc)
        if any(o.text.startswith('buffer_load') for o in g.mem) and not sc: sc = ['s_nop 0']
        out += sc + [o.text for o in g.mem] + [o.text for o in g.valu] + g.post
    return out

def add_lgkm_waits(lines, pre_ds=()):
    q = [(set(r), -age) for r, age in pre_ds]
    out = []; gap = -1; lastm = None; nvis = None
    for x in parse(lines):
        if x.cls == 'mfma':
            needed = [i for i, (r, g) in enumerate(q) if r & x.r]
            if needed:
                k = max(needed)
                if lastm is not None and k < nvis:
                    while k + 1 < nvis and q[k + 1][1] <= gap - LAT: k += 1
                    n = min(15, nvis - 1 - k)
                    if out[lastm:lastm+1] == ['s_nop 0']: out[lastm] = f's_waitcnt lgkmcnt({n})'
                    else: out.insert(lastm, f's_waitcnt lgkmcnt({n})')
                    k = nvis - 1 - n
                else:
                    n = min(15, len(q) - 1 - k)
                    out.append(f's_waitcnt lgkmcnt({n})')
                    k = len(q) - 1 - n
                q = q[k + 1:]
            gap += 1
            out.append(x.text); lastm = len(out); nvis = len(q)
        else:
            if x.cls == 'vmem':
                needed = [i for i, (r, g) in enumerate(q) if r & x.r]
                if needed:
                    n = min(15, len(q) - 1 - max(needed)); drop = len(q) - n
                    out.append(f's_waitcnt lgkmcnt({n})'); q = q[drop:]
                    if nvis is not None: nvis = max(0, nvis - drop)
            if x.cls == 'ds': q.append((set(x.w), gap))
            if x.cls == 'wait' and x.lgkm is not None:
                drop = max(0, len(q) - x.lgkm); q = q[drop:]
                if nvis is not None: nvis = max(0, nvis - drop)
            out.append(x.text)
    return out, [(r, gap - g) for r, g in q]

class Prog:
    def __init__(self): self.mf = []; self.ops = []; self.pos = {}
    def group(self, name, mf): self.pos[name] = len(self.mf); self.mf += mf
    def done(self):
        self.ins = [Ins(m) for m in self.mf]; self.n = len(self.mf); self.gaps = [Gap() for _ in self.mf]
    def first_read(self, R, lo): return next((i for i in range(lo, self.n) if R & self.ins[i].srcAB), INF)
    def last_read(self, R, hi): return next((i for i in range(min(hi, self.n) - 1, -1, -1) if R & self.ins[i].srcAB), -1)
    def last_write(self, R, hi): return next((i for i in range(min(hi, self.n) - 1, -1, -1) if R & self.ins[i].w), -1)
    def next_write(self, R, lo): return next((i for i in range(lo, self.n) if R & self.ins[i].w), INF)
    def kload(self, key, use, slot, tag, nkb=4, kbase=aK, addr=KA, rel0=0, dlmax=None):
        for f in range(4 * nkb):
            kb, ks = kord(f)
            R = AR(kbase + 16*kb + 4*ks, 4)
            u = self.first_read(R, use) if use < self.n else self.n + f
            rel = min(self.n - 1, max(rel0, self.last_read(R, u) + 1))
            dl = u - LAT if dlmax is None else min(u - LAT, dlmax - (4*nkb - 1 - f))
            self.ops.append(Op((key, f), 'R', rel, max(rel, dl), i_kread(kb, ks, slot, tag, kbase, addr), deps=[(key, f-1)] if f else []))
    def vload(self, key, use, slot, tag, nks=2, vbase=None, addr=VA, rel0=0):
        for db in range(8):
            for ks in range(nks):
                R = AR(vfrag(db, ks, vbase), 4)
                u = self.first_read(R, use)
                rel = max(rel0, self.last_read(R, u) + 1)
                for t in range(2):
                    if vbase == 'ov' and t == 1 and db < 7: continue
                    self.ops.append(Op((key, db, ks, t), 'T', rel, max(rel, u - LAT - (1 - t)), i_vread(db, ks, t, slot, tag, vbase, addr)))
    def softmax(self, key, at, sb, pb, nkb=4, only=None, skip=(), dlcap=None, use=0, lastrel=INF, zero=True):
        end = at + 4*nkb if at >= 0 else 0
        u = self.first_read(VR(P0 + 8*pb, 8), max(end, use))
        prel = min(self.last_read(VR(P0 + 8*pb, 8), u) + 1, u - 1)
        cap = min(u - 3, self.next_write(VR(S0 + 16*sb, 16), end) - 1, self.n - 1 if dlcap is None else dlcap)
        n = 4 * nkb; edl = {}
        for e in range(n):
            if (only is not None and ('e', e) not in only) or ('e', e) in skip: continue
            rel = min(lastrel, at + 4*(e//4) + 3 + 5) if at >= 0 else 0
            edl[e] = min(max(rel, cap - 1 - 2*(n - 1 - e), min(cap - 1, rel + e % 4)), max(rel, cap))
            self.ops.append(Op((key, 'e', e), 'E', rel, edl[e], i_exp(sb, e)))
        for i in range(2 * nkb):
            if (only is not None and ('c', i) not in only) or ('c', i) in skip: continue
            rel = max(prel, min(lastrel, at + 4*(i//2) + 3 + 6) if at >= 0 else 0)
            self.ops.append(Op((key, 'c', i), 'H', rel, max(rel, cap - (2*nkb - 1 - i), min(cap, edl.get(2*i+1, 0) + 1)), i_cvt(sb, pb, i),
                               deps=[(key, 'e', 2*i), (key, 'e', 2*i+1)]))
            assert rel <= u - 1, (key, i, rel, u)
        if only is None and zero:
            for i in range(2 * nkb, 8):
                self.ops.append(Op((key, 'z', i), 'H', prel, max(prel, u - 3), f'v_mov_b32 {v(P0+8*pb+i)}, 0'))

NG = 132
LOOP_MF = qkg(0) + pvg(2) + qkg(1) + pvg(3) + qkg(2) + pvg(0) + qkg(3) + pvg(1)
assert len(LOOP_MF) == NG
BARG = OPT.get('barg', 47)
DMAG = [10, 14, 18, 22, 26, 30, 34, 38]
RLG = [41, 43, 92, 96] if BARG not in (41, 43) else [45, 47, 92, 96]

def steady(DMAG, RLG, sh0, shv=0):
    NT = 6
    ops = []
    gaps = [Gap() for _ in range(NG * (NT + 1))]
    for j in range(NT):
        b = NG * j
        for q in range(4):
            pvs = b + 82 + 33*q; qs = b + 33*q
            for e in range(16):
                g = qs + OPT['delta'] + 2*e + (sh0 if q == 0 else 0) + (shv if (q == 1 and e >= 4) or q == 2 else 0)
                ops.append(Op(('e', j, q, e), 'E', g, g, None))
            for i in range(8):
                ops.append(Op(('c', j, q, i), 'H', pvs - NG + 17, pvs - 3 - (7 - i), None, deps=[('e', j, q, 2*i), ('e', j, q, 2*i+1)]))
        for f in range(16):
            for t in range(2):
                ops.append(Op(('v', j, f//2, f%2, t), 'T', max(b + 50 + f, b + BARG + 1), b + 82 + f - LAT - (1 - t), None))
            ops.append(Op(('k', j, f//4, f%4), 'R', b + 100 + f, min(b + NG - 2 - (15 - f), b + NG + f - LAT), None,
                          deps=[('k', j, (f-1)//4, (f-1)%4)] if f else []))
        for i in range(4): ops.append(Op(('rl', j, i), 'E', b + RLG[i], b + RLG[i], None))
        for i in range(8): ops.append(Op(('d', j, i), 'D', b + DMAG[i], b + DMAG[i], None))
        gaps[b + BARG].block = 'all'
        gaps[b + NG - 1].block = 'half'
    schedule(NG * (NT + 1), ops, gaps)
    def pattern(j):
        return [[(o.key[0], o.key[1] - j) + o.key[2:] for o in gaps[NG*j + g].mem + gaps[NG*j + g].valu] for g in range(NG)]
    assert pattern(3) == pattern(4), 'no steady state'
    return pattern(3)
NCOPY = {0: 1, 1: 2, 2: 2, 4: 4}[OPT['stag']]
VARS = []
for ph in (0, 2, 1, 3)[:NCOPY]:
    dg = [g + ph for g in DMAG]; rg = RLG if ph < 3 else [43, 45, 92, 96]
    shv = OPT.get('shv', 0) and ph == 2
    if shv: rg = [41, 43, 93, 97]
    VARS.append((steady(dg, rg, ph & 1, shv), dg, rg))
PAT = VARS[0][0]
assert all({k for g in V[0] for k in g if k[1] == -1} == {k for g in PAT for k in g if k[1] == -1} for V in VARS)
LEFT = {k for g in PAT for k in g if k[1] == -1}
assert all(k[0] in 'ec' and k[2] == 3 for k in LEFT), LEFT
LEFT3 = {(k[0], k[3]) for k in LEFT}
HEADWAIT = 's_waitcnt lgkmcnt(4)'

class Txt:
    def __init__(self, t): self.text = t

def body(sl, w=0):
    PAT, DMAG, RLG = VARS[w]
    def text(k):
        if k[0] == 'e': return i_exp(k[2], k[3])
        if k[0] == 'c': return i_cvt(k[2], k[2], k[3])
        if k[0] == 'v': return i_vread(k[2], k[3], k[4], sl, '+0')
        if k[0] == 'k': return i_kread(*kord(4*k[2] + k[3]), (sl + 1) % 4, '+1')
        if k[0] == 'rl': return f'v_readlane_b32 {s(SETS[sl%2] + k[2])}, {v(BT+k[2])}, {s(sLN)}'
        if k[0] == 'd': return i_dma(1, k[2], SETS[sl % 2], '+2') if k[2] < 4 else i_dma(0, k[2] - 4, SETS[(sl + 1) % 2], '+3')
    gaps = [Gap() for _ in range(NG)]
    for g in range(NG):
        for k in PAT[g]: (gaps[g].mem if k[0] in 'vkd' else gaps[g].valu).append(Txt(text(k)))
    gaps[DMAG[0] - 2].sc.append(i_m0(1, (sl + 2) % 4))
    gaps[DMAG[4] - 2].sc.append(i_m0(0, (sl + 3) % 4))
    gaps[RLG[-1] + 2].sc.append(f's_add_u32 {s(sLN)}, {s(sLN)}, 1')
    gaps[BARG - OPT.get('vmo', 1)].sc.append('s_waitcnt vmcnt(16)')
    gaps[BARG].sc.append('s_barrier')
    if sl == 0: gaps[NG - 3].sc.append(f's_sub_u32 {s(sIT)}, {s(sIT)}, 1')
    gaps[NG - 2].sc.append(HEADWAIT)
    lines = emit(LOOP_MF, gaps)
    ab = OPT.get('abl', 0)
    if ab & 1: lines = [l for l in lines if not l.startswith('buffer_load')]
    if ab & 2: lines = [l for l in lines if not l.startswith(('s_barrier', 's_waitcnt vmcnt'))]
    if ab & 32: lines = [l for l in lines if not l.startswith('s_barrier')]
    return lines

def dispatch(w):
    x = 'bcde'[w]
    return [f's_cmp_eq_u32 {s(sE)}, 2', f's_cbranch_scc1 L_{x}3', f's_cmp_eq_u32 {s(sE)}, 1', f's_cbranch_scc1 L_{x}2',
            f's_cmp_eq_u32 {s(sE)}, 3', f's_cbranch_scc1 L_{x}0', f's_cmp_eq_u32 {s(sNP)}, 4', 's_cbranch_scc1 L_tail']
def wave_select():
    if NCOPY == 1: return []
    if NCOPY == 2:
        return [f's_cmp_eq_u32 {s(sE2)}, 6', 's_cbranch_scc1 L_c3', f's_cmp_gt_u32 {s(sE2)}, 3', 's_cbranch_scc1 L_w1']
    return [x for w in (1, 2, 3) for x in (f's_cmp_eq_u32 {s(sW)}, {w}', f's_cbranch_scc1 L_w{w}')]
def loop_copy(w, pend):
    x = 'bcde'[w]
    out = [f'L_w{w}:'] + dispatch(w) + ['.p2align 6']
    for sl in (1, 2, 3, 0):
        l, pend2 = add_lgkm_waits(body(sl, w), pend)
        assert [x_[0] for x_ in pend2] == [x_[0] for x_ in pend]
        out += [f'L_{x}{sl}:'] + l
    return out + [f's_cbranch_scc0 L_{x}1', 's_branch L_tail']

def loop_code():
    _, pend = add_lgkm_waits(body(1))
    out = ['s_branch L_b1', 'L_padA:', 's_branch L_ret'] if OPT['touch'] else []
    out += ['.p2align 6']
    for sl in (1, 2, 3, 0):
        l, pend2 = add_lgkm_waits(body(sl), pend)
        assert [x[0] for x in pend2] == [x[0] for x in pend]
        out += [f'L_b{sl}:']
        if OPT.get('its'):
            for k in range(3):
                out += [f's_cmp_eq_u32 {s(sLN)}, {OPT["its"] + k * OPT.get("itd", 1)}', f's_cbranch_scc0 L_sk{sl}{k}', f's_mem{"real" if OPT.get("rt") else ""}time {s(sST+2+2*k,2)}', f'L_sk{sl}{k}:']
        out += l
        if OPT['touch'] and sl == 2: out += ['L_padB:', 's_cbranch_vccnz L_ret']
    return out + ['s_cbranch_scc0 L_b1'], pend

def epi_list(q, first):
    t = T0 + 2 * (q & 1)
    o = O0 + 32*q
    L = [('H', f'v_accvgpr_read_b32 {v(t)}, {a(aL+4*q)}', -1),
         ('H', f'v_accvgpr_read_b32 {v(t+1)}, {a(aL+4*q+1)}', -1),
         ('H', f'v_add_f32 {v(t)}, {v(t)}, {v(t+1)}', -1),
         ('E', f'v_rcp_f32 {v(t+1)}, {v(t)}', -1),
         ('H', f'v_subrev_u32 {v(t)}, 0x2b800000, {v(t)}', -1),
         ('H', f'v_mov_b32 {v(T0+4)}, {v(t)}' if first else f'v_max_u32 {v(T0+4)}, {v(T0+4)}, {v(t)}', -1)]
    def muls(u): return [('M', (o + 8*u + i, t + 1), u) for i in range(8)]
    def cvts(u): return [('H', f'v_cvt_pk_bf16_f32 {v(o+8*u+i)}, {v(o+8*u+2*i)}, {v(o+8*u+2*i+1)}', u) for i in range(4)]
    def swaps(u): return [('E', f'v_permlane16_swap_b32 {v(o+8*u+i)}, {v(o+8*u+2+i)}', u) for i in range(2)]
    def store(u):
        if OPT['urot']: return [('D', f'buffer_store_dwordx4 {v(o+8*u,4)}, {v(BT+u)}, s[16:19], {qoff(q)} offen{FL[OPT.get(f"of{q}", OPT["of"])]}', u)]
        return [('D', f'buffer_store_dwordx4 {v(o+8*u,4)}, {v(OV)}, s[16:19], {qoff(q)} offen offset:{64*u}{FL[OPT.get(f"of{q}", OPT["of"])]}', u)]
    if OPT['ep']:
        def writes(u): return [('T', f'ds_write_b64 {v(EW)}, {v(o+8*u+2*i,2)} offset:{64*u+32*i}', u) for i in range(2)]
        for u in range(4): L += muls(u) + cvts(u) + writes(u)
        L += [('R', f'ds_read_b128 {v(o+8*p+4,4)}, {v(ER)} offset:{1088*p}', 3) for p in range(4)]
        L += [('D', f'buffer_store_dwordx4 {v(o+8*p+4,4)}, {v(EG)}, s[16:19], {qoff(q)} offen offset:{1024*p}{FL[OPT.get(f"of{q}", OPT["of"])]}', 3) for p in range(4)]
        return L
    h = lambda l, a_, b_: l[a_:b_]
    L += muls(0) + cvts(0) + h(muls(1), 0, 2) + swaps(0) + store(0) + h(muls(1), 2, 8) + cvts(1) + h(muls(2), 0, 2) + swaps(1) + store(1) \
       + h(muls(2), 2, 8) + cvts(2) + h(muls(3), 0, 2) + swaps(2) + store(2) + h(muls(3), 2, 8) + cvts(3) + [('H', 's_nop 1', 3)] + swaps(3) + store(3)
    return L

def final(q, items):
    return [sm(q, pb) for pb, vb, nk in items] + [pv(q, db, ks, pb, vb) for db in range(8) for pb, vb, nk in items for ks in range(nk)]

def tail_merged():
    P = Prog(); G = P.group
    k3 = lambda q, sb: qkg(q, 1, sb=sb, kbase=aX, mask=True)
    fin = lambda q, pb: final(q, [(q, None, 2), (pb, 'ov', 1)])
    G('q0', qkg(0)); G('p2', pvg(2)); G('p3', pvg(3)); G('r0', k3(0, 2)); G('r1', k3(1, 3)); G('q1', qkg(1))
    if OPT['tord'] == 0:
        G('f0', fin(0, 2)); G('q2', qkg(2)); G('r2', k3(2, 0)); G('f1', fin(1, 3)); G('q3', qkg(3)); G('r3', k3(3, 1))
    else:
        G('f0', fin(0, 2)); G('r2', k3(2, 0)); G('q2', qkg(2)); G('f1', fin(1, 3)); G('r3', k3(3, 1)); G('q3', qkg(3))
    G('f2', fin(2, 0)); G('f3', fin(3, 1))
    P.done(); p = P.pos
    bar2 = p['p3'] + 8
    P.softmax('left', -1, 3, 3, only=LEFT3)
    for q in range(4):
        P.softmax(f's{q}', p[f'q{q}'], q, q, use=p[f'f{q}'])
        P.softmax(f't{q}', p[f'r{q}'], (q + 2) % 4, (q + 2) % 4, 1, use=p[f'f{q}'])
    P.kload('k3', p['r0'], 2, 'T3', 1, kbase=aX, rel0=2); P.vload('v2', p['f0'], 1, 'T2', rel0=2)
    P.vload('v3', p['f0'], 2, 'T3', 1, 'ov', rel0=bar2 + 1)
    g = P.gaps
    g[0].sc.append('s_waitcnt vmcnt(8)'); g[1].sc.append('s_barrier'); g[1].block = 'all'
    g[bar2 - 1].sc.append('s_waitcnt vmcnt(4)'); g[bar2].sc.append('s_barrier'); g[bar2].block = 'all'
    return P

def tail_y():
    P = Prog(); G = P.group
    G('q0', qkg(0)); G('p2', pvg(2)); G('p3', pvg(3)); G('q1', qkg(1)); G('f0', final(0, [(0, None, 2)]))
    G('q2', qkg(2)); G('f1', final(1, [(1, None, 2)])); G('r3', qkg(3, 1, sb=0, kbase=aX, mask=True)); G('q3', qkg(3))
    if OPT['tord'] == 2: G('x3', final(3, [(0, 'ov', 1)])); G('f2', final(2, [(2, None, 2)])); G('f3', final(3, [(3, None, 2)]))
    else: G('f2', final(2, [(2, None, 2)])); G('f3', final(3, [(3, None, 2), (0, 'ov', 1)]))
    P.done(); p = P.pos
    P.softmax('left', -1, 3, 3, only=LEFT3)
    for q in range(4): P.softmax(f's{q}', p[f'q{q}'], q, q, use=p[f'f{q}'])
    P.softmax('t3', p['r3'], 0, 0, 1)
    P.vload('v2', p['f0'], 1, 'T2', rel0=2)
    g = P.gaps
    g[0].sc.append('s_waitcnt vmcnt(8)'); g[1].sc.append('s_barrier'); g[1].block = 'all'
    return P

def tail_x():
    P = Prog(); G = P.group
    G('A1', qkg(0, sb=0)); G('A2', pvg(2)); G('A3', qkg(1, sb=1)); G('A4', pvg(3)); G('A5', qkg(0, sb=2))
    if OPT['tord'] < 2: G('A6', qkg(1, sb=3))
    G('A7', pvg(0, pb=0)); G('A8', pvg(1, pb=1)); G('A10', final(0, [(2, None, 2)]))
    if OPT['tord'] == 2: G('A6', qkg(1, sb=3))
    G('B1', qkg(2, sb=2)); G('A11', final(1, [(3, None, 2)])); G('B2', qkg(3, sb=3)); G('B3', qkg(2, sb=0))
    G('r3', qkg(3, 1, sb=1, kbase=aX, mask=True)); G('B4', pvg(2, pb=2)); G('B5', pvg(3, pb=3))
    if OPT['tord']:
        G('B8', final(2, [(0, None, 2)])); G('B6', qkg(3, sb=1)); G('x3', final(3, [(3, 'ov', 1)])); G('B9', final(3, [(1, None, 2)]))
    else:
        G('B6', qkg(3, sb=1)); G('B8', final(2, [(0, None, 2)])); G('B9', final(3, [(1, None, 2), (3, 'ov', 1)]))
    P.done(); p = P.pos
    bar2 = p['A5'] + 6
    P.softmax('left', -1, 3, 3, only=LEFT3)
    P.softmax('s10', p['A1'], 0, 0); P.softmax('s11', p['A3'], 1, 1); P.softmax('s20', p['A5'], 2, 2); P.softmax('s21', p['A6'], 3, 3)
    P.softmax('s12', p['B1'], 2, 2); P.softmax('s13', p['B2'], 3, 3); P.softmax('s22', p['B3'], 0, 0); P.softmax('s23', p['B6'], 1, 1)
    P.softmax('t3', p['r3'], 1, 3, 1, use=p['B8'])
    P.kload('k2', p['A5'], 2, 'T2', rel0=2); P.vload('v1', p['A7'], 1, 'T1', rel0=2); P.vload('v2', p['A10'], 2, 'T2', rel0=bar2 + 1)
    P.kload('k1b', p['B1'], 1, 'T1'); P.kload('k2b', p['B3'], 2, 'T2'); P.vload('v1b', p['B4'], 1, 'T1'); P.vload('v2b', p['B8'], 2, 'T2')
    g = P.gaps
    g[0].sc.append('s_waitcnt vmcnt(8)'); g[1].sc.append('s_barrier'); g[1].block = 'all'
    g[bar2 - 1].sc.append('s_waitcnt vmcnt(4)'); g[bar2].sc.append('s_barrier'); g[bar2].block = 'all'
    if OPT.get('otlb') == 2:
        P.ops.append(Op(('ot', 0), 'D', bar2 + 2, bar2 + 2, f'buffer_load_dword {v(BT)}, {v(OV)}, s[16:19], 0 offen sc1'))
    return P

def tail_pairs(nkb):
    nks = 1 if nkb <= 2 else 2
    small = nkb <= 2
    vx = aX if small else None
    P = Prog()
    G = P.group
    G('A1', qkg(0, sb=0)); G('A2', pvg(2)); G('A3', qkg(1, sb=1)); G('A4', pvg(3))
    G('A5', qkg(0, sb=2)); G('A6', qkg(1, sb=3)); G('A7', pvg(0, pb=0))
    if not small: G('A8', pvg(1, pb=1))
    G('A9a', qkg(0, nkb, sb=0, mask=True)); G('A9b', qkg(1, nkb, sb=1, mask=True))
    if small:
        G('A8', pvg(1, pb=1))
        G('A10', final(0, [(2, None, 2), (0, vx, 1)])); G('B1', qkg(2, sb=2)); G('A11', final(1, [(3, None, 2), (1, vx, 1)]))
        G('B2', qkg(3, sb=3)); G('B3', qkg(2, sb=0)); G('B4', pvg(2, pb=2))
        G('B7a', qkg(2, nkb, sb=2, kbase=aQ, mask=True)); G('B7b', qkg(3, nkb, sb=3, kbase=aQ, mask=True)); G('B5', pvg(3, pb=3))
        if OPT['tord']:
            G('B8', final(2, [(0, None, 2), (2, vx, 1)])); G('B6', qkg(3, sb=1))
            G('B9a', final(3, [(3, vx, 1)])); G('B9', final(3, [(1, None, 2)]))
        else:
            G('B6', qkg(3, sb=1))
            G('B8', final(2, [(0, None, 2), (2, vx, 1)])); G('B9', final(3, [(1, None, 2), (3, vx, 1)]))
    else:
        G('A10p', pvg(0, pb=2)); G('A11p', pvg(1, pb=3)); G('B1', qkg(2, sb=2))
        G('A10', final(0, [(0, None, 2)])); G('A11', final(1, [(1, None, 2)]))
        G('B2', qkg(3, sb=3)); G('B3', qkg(2, sb=0)); G('B4', pvg(2, pb=2)); G('B5', pvg(3, pb=3)); G('B6', qkg(3, sb=1))
        G('B8p', pvg(2, pb=0)); G('B7a', qkg(2, nkb, sb=2, mask=True)); G('B9p', pvg(3, pb=1)); G('B7b', qkg(3, nkb, sb=3, mask=True))
        G('B8', final(2, [(2, None, 2)])); G('B9', final(3, [(3, None, 2)]))
    P.done(); p = P.pos
    bar2 = p['A6'] + 10
    P.softmax('left', -1, 3, 3, only=LEFT3)
    P.softmax('s10', p['A1'], 0, 0); P.softmax('s11', p['A3'], 1, 1); P.softmax('s20', p['A5'], 2, 2); P.softmax('s21', p['A6'], 3, 3)
    P.softmax('s30', p['A9a'], 0, 0, nkb); P.softmax('s31', p['A9b'], 1, 1, nkb, use=p['A10'])
    P.softmax('s12', p['B1'], 2, 2); P.softmax('s13', p['B2'], 3, 3); P.softmax('s22', p['B3'], 0, 0); P.softmax('s23', p['B6'], 1, 1)
    P.softmax('s32', p['B7a'], 2, 2, nkb); P.softmax('s33', p['B7b'], 3, 3, nkb, use=p['B8'])
    P.kload('k2', p['A5'], 2, 'T2', rel0=2); P.vload('v1', p['A7'], 1, 'T1', rel0=2)
    P.kload('k3', p['A9a'], 3, 'T3', nkb, rel0=bar2 + 1)
    P.kload('k1b', p['B1'], 1, 'T1'); P.kload('k2b', p['B3'], 2, 'T2'); P.vload('v1b', p['B4'], 1, 'T1')
    if small:
        P.vload('v2', p['A10'], 2, 'T2', rel0=bar2 + 1); P.vload('v3', p['A10'], 3, 'T3', 1, vx, rel0=bar2 + 1)
        P.kload('k3b', p['B7a'], 3, 'T3', nkb, kbase=aQ); P.vload('v2b', p['B8'], 2, 'T2')
    else:
        P.vload('v2', p['A10p'], 2, 'T2', rel0=bar2 + 1); P.vload('v3', p['A10'], 3, 'T3')
        P.kload('k3b', p['B7a'], 3, 'T3', nkb); P.vload('v2b', p['B8p'], 2, 'T2'); P.vload('v3b', p['B8'], 3, 'T3')
    for i in range(4):
        P.ops.append(Op(('d', i), 'D', 10 + 4*i, 11 + 4*i, i_dma(1, i, SETS[1], 'T3')))
    g = P.gaps
    g[0].sc.append('s_waitcnt vmcnt(8)'); g[1].sc.append('s_barrier'); g[1].block = 'all'
    g[8].sc.append(i_m0(1, 3))
    g[bar2 - 1].sc.append('s_waitcnt vmcnt(0)'); g[bar2].sc.append('s_barrier'); g[bar2].block = 'all'
    return P

def tail(nkb, pend):
    P = {3: tail_merged, 4: tail_x, 5: tail_y}[OPT['tv']]() if nkb == 1 and OPT['tv'] >= 3 else tail_pairs(nkb)
    p = P.pos
    prev = None
    if OPT['urot']:
        for i, x in enumerate([f'v_or_b32 {v(BT)}, {s(sY)}, {v(OV)}'] + [f'v_xor_b32 {v(BT+u)}, {64*u}, {v(BT)}' for u in (1, 2, 3)]):
            o = Op(('su', i), 'H', 24, INF, x, fifo=prev, pri=60 + i); prev = o.key; P.ops.append(o)
    if OPT['ep']:
        t = T0
        setup = [f'v_mbcnt_lo_u32_b32 {v(t)}, -1, 0', f'v_mbcnt_hi_u32_b32 {v(t)}, -1, {v(t)}',
                 f'v_and_b32 {v(t+1)}, 15, {v(t)}', f'v_lshrrev_b32 {v(t+2)}, 4, {v(t)}',
                 f'v_mul_u32_u24 {v(EW)}, 272, {v(t+1)}', f'v_lshl_add_u32 {v(EW)}, {v(t+2)}, 3, {v(EW)}',
                 f'v_mul_u32_u24 {v(ER)}, 272, {v(t+2)}', f'v_lshl_add_u32 {v(ER)}, {v(t+1)}, 4, {v(ER)}',
                 f'v_add_u32 {v(EW)}, {s(sT+3)}, {v(EW)}', f'v_add_u32 {v(ER)}, {s(sT+3)}, {v(ER)}',
                 f'v_lshlrev_b32 {v(EG)}, 4, {v(t)}', f'v_add_u32 {v(EG)}, {s(sT+4)}, {v(EG)}']
        for i, x in enumerate(setup):
            o = Op(('su', i), 'H', 24, INF, x, fifo=prev, pri=100 + i); prev = o.key; P.ops.append(o)
    for q in range(4):
        lrel = P.last_write(AR(aL + 4*q, 4), INF) + 5
        nst = 0
        for i, (c, t, u) in enumerate(epi_list(q, q == 0)):
            rel = lrel if u < 0 else max(lrel, P.last_write(VR(O0 + 32*q + 8*u, 8), INF) + 5)
            fin = P.last_write(VR(O0 + 32*q, 32), INF) + 5
            edl = OPT.get(f'edl{q}', OPT.get('edl', INF))
            nst += c == 'D'
            dl = INF if edl >= INF else fin + edl + (LAT + OPT['ssp'] * (nst - 1) if c == 'D' and OPT['ep'] else 0)
            o = Op(('ep', q, i), {'M': 'H'}.get(c, c), rel, dl if dl < P.n - 1 else INF, f'v_mul_f32 {v(t[0])}, {v(t[1])}, {v(t[0])}' if c == 'M' else t,
                   fifo=prev, pri=rel + OPT['epri'] + i // 2)
            o.raw = (c, t); prev = o.key; P.ops.append(o)
            if c != 'D': lastnd = o.key
        if OPT['ep']: prev = lastnd
    g = P.gaps
    todo = schedule(P.n, P.ops, g, overflow=True)
    if OPT.get('ts'):
        names = {1: ('A5', 'A10', 'B2'), 2: ('B4', 'B8', 'B9'), 3: ('A2', 'A7', 'A11')}[OPT['ts']] if 'A5' in p else {1: ('p3', 'f0', 'f1'), 2: ('q3', 'f2', 'f3')}[OPT['ts']]
        for k, nm in enumerate(names): g[p[nm]].sc += stamp(1 + k)
        if nkb == 1: print('stamp mfma idx', [p[nm] for nm in names], p)
    if OPT['pkd']:
        import re
        for gp in g:
            if sum(x.startswith('v_mul_f32') for x in gp.post) < OPT['pkd']: continue
            out = []; i = 0
            while i < len(gp.post):
                m = re.match(r'v_mul_f32 v(\d+), v(\d+),', gp.post[i])
                if m and int(m.group(1)) % 2 == 0 and i + 1 < len(gp.post) and gp.post[i+1].startswith(f'v_mul_f32 v{int(m.group(1))+1},'):
                    out.append(f'v_pk_mul_f32 {v(int(m.group(1)),2)}, {v(int(m.group(1)),2)}, {v(int(m.group(2))-1,2)} op_sel:[0,1] op_sel_hi:[1,1]'); i += 2
                else: out.append(gp.post[i]); i += 1
            gp.post = out
    lines = emit(P.mf, g)
    assert all(o.key[0] == 'ep' for o in todo), [o.key for o in todo]
    i = 0
    while i < len(todo):
        c, t = todo[i].raw
        if c == 'M' and i + 1 < len(todo) and todo[i+1].raw[0] == 'M' and t[0] % 2 == 0 and todo[i+1].raw[1][0] == t[0] + 1:
            lines.append(f'v_pk_mul_f32 {v(t[0],2)}, {v(t[0],2)}, {v(t[1]-1,2)} op_sel:[0,1] op_sel_hi:[1,1]'); i += 2
        else:
            lines.append(todo[i].text); i += 1
    lines, _ = add_lgkm_waits(lines, pend)
    return lines

def scale_q(q):
    out = []
    for h in range(0, 16, 4):
        for i in range(4):
            x = S0 + 16*q + h + i; t = T0 + 2*i
            out += [f'v_lshlrev_b32 {v(t)}, 16, {v(x)}', f'v_and_b32 {v(t+1)}, 0xffff0000, {v(x)}']
        out += [f'v_pk_mul_f32 {v(T0+2*i,2)}, {v(T0+2*i,2)}, {s(sC,2)}' for i in range(4)]
        out += [f'v_cvt_pk_bf16_f32 {v(S0+16*q+h+i)}, {v(T0+2*i)}, {v(T0+2*i+1)}' for i in range(4)]
        out += [f'v_accvgpr_write_b32 {a(aQ+16*q+h+i)}, {v(S0+16*q+h+i)}' for i in range(4)]
    return out
def qread(q): return [f'ds_read_b128 {v(S0+16*q+4*ks,4)}, {v(QA+ks)} offset:{(q&1)*0x4000}' for ks in range(4)] + ['s_waitcnt lgkmcnt(0)']
def qload(q):
    return [f's_add_u32 m0, {s(sMK)}, {0x20000 + (q&1)*0x4000}', 's_nop 0'] + \
           [f'buffer_load_dwordx4 {v(QD+p)}, s[4:7], {qoff(q)} offen offset:{1024*p}{FL[OPT["qf"]]} lds ; ld Q{q}' for p in range(4)]
def dma4(isv, tile):
    return [f's_add_u32 m0, {s(sMV if isv else sMK)}, {s(sSL+tile)}', 's_nop 0'] + [i_dma(isv, i, 40 + 4*tile, tile) for i in range(4)]
def btprep(tile):
    out = []
    for i in range(4):
        r = 40 + 4*tile + i
        out.append(f's_min_u32 {s(r)}, {s(r)}, 131')
        out.append(f's_lshl_b32 {s(r)}, {s(r)}, 16')
        if i < 3: out.append(f's_or_b32 {s(r)}, {s(r)}, {(3-i)*1024}')
    return out

def resolve_waitvm(lines):
    out = []; vm = []
    for l in lines:
        if l.startswith('WAITVM'):
            tags = l.split(None, 1)[1].split('|')
            last = max(i for i, t in enumerate(vm) if t in tags)
            wb = {1: ('ld Q0', 'ld Q1'), 2: ('ld Q2', 'ld Q3'), 3: ('dma K 0', 'dma V 0'), 4: ('ld BT', 'ld BT')}.get(OPT.get('wb'), ())
            st_ = lambda i: [f's_memtime {s(sST+2*i,2)}']
            if tags[0] in wb: out += st_(1 + 2*wb.index(tags[0]))
            out.append(f's_waitcnt vmcnt({len(vm) - 1 - last}) ; {tags}')
            if tags[0] in wb: out += st_(2 + 2*wb.index(tags[0]))
        else:
            if l.startswith(('buffer_', 'global_')): vm.append(l.split(';')[1].strip() if ';' in l else '')
            out.append(l)
    return out

def prologue():
    t = T0
    L = ([f's_mov_b32 s77, {OPT["twice"]}', 'L_again:'] if OPT.get('twice') else []) + ['s_cmp_ge_u32 s2, 256', 's_cbranch_scc1 L_end',
         's_load_dwordx8 s[24:31], s[0:1], 0', 's_load_dwordx4 s[32:35], s[0:1], 32']
    L += [f's_lshr_b32 {s(sT+1)}, s2, 3']
    if OPT['cpf']:
        L += ['s_getpc_b64 s[8:9]', 'L_pc:', f's_lshl_b32 s10, {s(sT+1)}, 10', 'v_lshl_add_u32 v2, v0, 2, s10', 'v_mov_b32 v3, 0',
              'v_lshl_add_u64 v[2:3], v[2:3], 0, s[8:9]', f'global_load_dword {v(T0+7)}, v[2:3], off']
    L += stamp(0) + (['s_memrealtime s[100:101]'] if OPT['stamp'] else [])
    L += [f'v_lshrrev_b32 {v(t)}, 6, v0',
          f'v_and_b32 {v(t+2)}, 15, v0',
          f'v_readfirstlane_b32 {s(sW)}, {v(t)}',
          f'v_bfe_u32 {v(t+3)}, v0, 4, 2',
          f's_and_b32 {s(sT)}, s2, 7'] + ([f's_lshl_b32 {s(sT)}, {s(sT)}, 5', f's_add_u32 {s(sT)}, {s(sT)}, {s(sT+1)}'] if not OPT['hmap'] else
          [f's_lshl_b32 {s(sT)}, {s(sT)}, 4', f's_and_b32 {s(sT+2)}, {s(sT+1)}, 15', f's_add_u32 {s(sT)}, {s(sT)}, {s(sT+2)}', f's_and_b32 {s(sT+2)}, s2, 128', f's_add_u32 {s(sT)}, {s(sT)}, {s(sT+2)}']) + [ f's_lshl_b32 {s(sT+1)}, {s(sT)}, 16',
          f'v_lshl_add_u32 {v(t+4)}, {v(t)}, {WSH-8}, {v(t+3)}', f'v_xor_b32 {v(t+5)}, {v(t+2)}, {v(t+3)}',
          f'v_lshl_add_u32 {v(QD)}, {v(t+4)}, 4, {v(t+5)}', f'v_lshlrev_b32 {v(QD)}, 4, {v(QD)}',
          f's_lshl_b32 {s(sMK)}, {s(sW)}, 12'] + \
         {0: [], 1: [f's_mov_b32 {s(sQ0)}, {s(sMK)}'],
          2: [f's_add_u32 {s(sQ0)}, {s(sT)}, {s(sW)}', f's_and_b32 {s(sQ0)}, {s(sQ0)}, 3', f's_lshl_b32 {s(sQ0)}, {s(sQ0)}, 12'],
          3: [f's_and_b32 {s(sQ0)}, {s(sT)}, 3', f's_lshl_b32 {s(sQ0)}, {s(sQ0)}, 12'],
          4: [f's_and_b32 {s(sQ0)}, {s(sT)}, 3', f's_lshl_b32 {s(sQ0)}, {s(sQ0)}, 14'],
          5: [f's_mov_b32 {s(sQ0)}, 0'],
          6: [f's_add_u32 {s(sQ0)}, {s(sT)}, {s(sW)}', f's_and_b32 {s(sQ0)}, {s(sQ0)}, 3', f's_lshl_b32 {s(sQ0)}, {s(sQ0)}, 14']}[OPT['rot']] + [
          f'v_xor_b32 {v(QD+1)}, 64, {v(QD)}', f'v_xor_b32 {v(QD+2)}, 0x80, {v(QD)}',
          f'v_xor_b32 {v(QD+3)}, 64, {v(QD+2)}', 's_mov_b32 s6, 0x10000', 's_mov_b32 s7, 0x20000', qload(0)[0],
          's_waitcnt lgkmcnt(0)',
          f's_add_u32 s4, s24, {s(sT+1)}', 's_addc_u32 s5, s25, 0',
          f's_load_dword {s(sCL)}, s[32:33], 0', 's_load_dwordx16 s[40:55], s[30:31], 0']
    L += qload(0)[2:]
    if OPT['cpf'] and NCOPY > 2:
        L += ['s_mov_b64 s[8:9], 0x8000', 'v_lshl_add_u64 v[2:3], v[2:3], 0, s[8:9]', f'global_load_dword {v(T0+7)}, v[2:3], off']
    L += [f'v_and_b32 {v(t+1)}, 63, v0', f'v_lshlrev_b32 {v(t+6)}, 4, {v(t+1)}',
          's_mov_b32 s20, s30', 's_mov_b32 s21, s31', 's_movk_i32 s22, 0x200', 's_mov_b32 s23, 0x20000',
          f'buffer_load_dwordx4 {v(BT,4)}, {v(t+6)}, s[20:23], 0 offen ; ld BT',
          f's_lshr_b32 {s(sT)}, {s(sT)}, 4', f's_lshl_b32 {s(sT)}, {s(sT)}, 8',
          f's_add_u32 s8, s26, {s(sT)}', 's_addc_u32 s9, s27, 0', 's_sub_u32 s8, s8, 3072', 's_subb_u32 s9, s9, 0',
          f's_sub_u32 s10, {KBYTES+3072}, {s(sT)}', 's_mov_b32 s11, 0x20000',
          f'v_lshl_add_u32 {v(t+4)}, {v(t)}, 2, {v(t+3)}',
          f'v_xor_b32 {v(t+6)}, {v(t+2)}, {v(t+4)}', f'v_lshlrev_b32 {v(t+6)}, 4, {v(t+6)}',
          f'v_lshl_add_u32 {v(DK)}, {v(t+4)}, 12, {v(t+6)}',
          f'v_and_b32 {v(t+6)}, 7, {v(t+4)}', f'v_lshlrev_b32 {v(t+6)}, 1, {v(t+6)}',
          f'v_xor_b32 {v(t+6)}, {v(t+2)}, {v(t+6)}', f'v_lshlrev_b32 {v(t+6)}, 4, {v(t+6)}',
          f'v_lshl_add_u32 {v(DV)}, {v(t+4)}, 12, {v(t+6)}',
          ] + ([x for q in range(1, 4) for x in (f's_add_u32 {s(sQ1+q-1)}, {s(sQ0)}, {q << QSH}', f's_and_b32 {s(sQ1+q-1)}, {s(sQ1+q-1)}, {3 << QSH}')] if OPT['rot'] else
               [f's_movk_i32 {s(sQ1)}, 0x1000', f's_movk_i32 {s(sQ1+1)}, 0x2000', f's_movk_i32 {s(sQ1+2)}, 0x3000']) + [
          f's_add_u32 s12, s28, {s(sT)}', 's_addc_u32 s13, s29, 0', 's_sub_u32 s12, s12, 3072', 's_subb_u32 s13, s13, 0',
          's_mov_b32 s14, s10', 's_mov_b32 s15, 0x20000',
          f's_add_u32 s16, s34, {s(sT+1)}', 's_addc_u32 s17, s35, 0', 's_mov_b32 s18, 0x10000', 's_mov_b32 s19, 0x20000',
          f's_add_u32 {s(sMV)}, {s(sMK)}, 0x10000', f's_mov_b32 {s(sC)}, 0x3e0293ee',
          's_waitcnt lgkmcnt(0)'] + stamp(1)
    L += [f's_cmp_lt_i32 {s(sCL)}, 1', f's_cselect_b32 {s(sC)}, 0, {s(sC)}', f's_cselect_b32 {s(sCL)}, 0x800, {s(sCL)}',
          f's_min_u32 {s(sCLT)}, {s(sCL)}, 0x800', f's_max_u32 {s(sCL)}, {s(sCLT)}, {MINCL}',
          f's_add_u32 {s(sN)}, {s(sCL)}, 63', f's_lshr_b32 {s(sN)}, {s(sN)}, 6',
          f's_mov_b32 {s(sNP)}, {s(sN)}']
    if OPT['tv'] in (3, 5):
        L += [f's_sub_u32 {s(sNP)}, {s(sCL)}, 1', f's_and_b32 {s(sNP)}, {s(sNP)}, 63', f's_cmp_lt_u32 {s(sNP)}, 16', f's_addc_u32 {s(sNP)}, {s(sN)}, 0']
    L += [f's_sub_u32 {s(sE)}, 0, {s(sNP)}', f's_and_b32 {s(sE)}, {s(sE)}, 3', f's_lshl_b32 {s(sSL)}, {s(sE)}, 14']
    L += btprep(0) + dma4(0, 0) + qload(1)
    if OPT.get('otlb') == 1:
        L += [f'buffer_load_dword {v(O0+8)}, {v(QD)}, s[16:19], 0 offen sc1 ; ld O']
    L += [f's_mov_b32 {s(sC2)}, {s(sC)}',
          f's_cmp_lt_u32 {s(sCLT)}, {4096 if OPT["forceslow"] else MINCL}', f's_cselect_b32 {s(sFORCE)}, 1, 0',
          f's_add_u32 {s(sIT)}, {s(sNP)}, {s(sE)}', f's_lshr_b32 {s(sIT)}, {s(sIT)}, 2', f's_sub_u32 {s(sIT)}, {s(sIT)}, 2']
    for i in range(1, 4):
        L += [f's_add_u32 {s(sSL+i)}, {s(sSL)}, {i*0x4000}', f's_and_b32 {s(sSL+i)}, {s(sSL+i)}, 0xc000']
    L += [f's_sub_u32 {s(sT)}, {s(sN)}, 1', f's_lshl_b32 {s(sT)}, {s(sT)}, 6', f's_sub_u32 {s(sT)}, {s(sCL)}, {s(sT)}',
          f's_add_u32 {s(sNKB)}, {s(sT)}, 15', f's_lshr_b32 {s(sNKB)}, {s(sNKB)}, 4',
          f's_sub_u32 {s(sT)}, {s(sT)}, 1', f's_and_b32 {s(sT)}, {s(sT)}, 15',
          f's_and_b32 {s(sT+1)}, {s(sE)}, 1', f's_sub_u32 {s(sT+1)}, 4, {s(sT+1)}', f's_sub_u32 {s(sT+2)}, 7, {s(sT+1)}',
          f's_mov_b32 {s(sLN)}, 5', f's_bfe_u32 {s(sE2)}, {s(sW)}, {0x10000 + max(OPT["stag"], 1) - 1:#x}', f's_lshl2_add_u32 {s(sE2)}, {s(sE2)}, {s(sE)}',
          f's_lshl_b32 {s(sT+3)}, {s(sW)}, 13', f's_add_u32 {s(sT+3)}, {s(sT+3)}, 0x20000', f's_lshl_b32 {s(sT+4)}, {s(sW)}, {WSH}']
    L += [f'v_lshrrev_b32 {v(t+4)}, 2, {v(t+2)}', f'v_lshlrev_b32 {v(t+4)}, 4, {v(t+4)}',
          f'v_and_b32 {v(t+6)}, 3, {v(t+2)}', f'v_add_u32 {v(t+4)}, {v(t+4)}, {v(t+6)}', f'v_lshlrev_b32 {v(t+4)}, 8, {v(t+4)}',
          f'v_lshlrev_b32 {v(t+6)}, 12, {v(t)}', f'v_lshl_add_u32 {v(t+6)}, {v(t+2)}, 8, {v(t+6)}', f'v_add_u32 {v(t+6)}, 0x20000, {v(t+6)}']
    for ks in range(4):
        L += [f'v_xor_b32 {v(MK)}, {4*ks}, {v(t+5)}', f'v_lshl_add_u32 {v(KA+ks)}, {v(MK)}, 4, {v(t+4)}',
              f'v_lshl_add_u32 {v(QA+ks)}, {v(MK)}, 4, {v(t+6)}', f'v_add_u32 {v(KA0+ks)}, {s(sSL)}, {v(KA+ks)}']
    L += [f'v_bfe_u32 {v(t+5)}, {v(t+1)}, 2, 2',
          f'v_lshl_add_u32 {v(t+4)}, {v(t+3)}, 4, {v(t+5)}', f'v_lshlrev_b32 {v(t+4)}, 8, {v(t+4)}',
          f'v_and_b32 {v(MK)}, 3, {v(t+1)}', f'v_lshl_add_u32 {v(t+4)}, {v(MK)}, 3, {v(t+4)}', f'v_add_u32 {v(t+4)}, 0x10000, {v(t+4)}',
          f'v_lshl_add_u32 {v(t+5)}, {v(t+3)}, 2, {v(t+5)}', f'v_and_b32 {v(t+5)}, 7, {v(t+5)}']
    if OPT['urot']:
        L += {1: [f's_lshl_b32 {s(sY)}, {s(sW)}, 1'], 2: [f's_bfe_u32 {s(sY)}, s2, 0x20003', f's_lshl_b32 {s(sY)}, {s(sY)}, 1'],
              3: [f's_bfe_u32 {s(sY)}, s2, 0x20005', f's_xor_b32 {s(sY)}, {s(sY)}, {s(sW)}', f's_lshl_b32 {s(sY)}, {s(sY)}, 1']}[OPT['urot']]
        L += [f'v_xor_b32 {v(t+5)}, {s(sY)}, {v(t+5)}', f's_lshl_b32 {s(sY)}, {s(sY)}, 5']
    for db in range(8):
        L += [f'v_xor_b32 {v(VA+db)}, {db}, {v(t+5)}', f'v_lshl_add_u32 {v(VA+db)}, {v(VA+db)}, 5, {v(t+4)}',
              f'v_add_u32 {v(VA0+db)}, {s(sSL)}, {v(VA+db)}']
    L += [f'v_lshlrev_b32 {v(t+4)}, {WSH}, {v(t)}', f'v_lshl_add_u32 {v(t+4)}, {v(t+2)}, 8, {v(t+4)}',
          f'v_and_b32 {v(t+5)}, 1, {v(t+3)}', f'v_lshl_add_u32 {v(t+4)}, {v(t+5)}, 5, {v(t+4)}',
          f'v_lshrrev_b32 {v(t+5)}, 1, {v(t+3)}', f'v_lshl_add_u32 {v(OV)}, {v(t+5)}, 4, {v(t+4)}',
          f'v_and_b32 {v(t+4)}, 1, {v(t+1)}', f'v_mov_b32 {v(t+5)}, 0xaaaaaaaa',
          f'v_mul_lo_u32 {v(t+4)}, {v(t+4)}, {v(t+5)}', f'v_or_b32 {v(IDX)}, 0x44444444, {v(t+4)}', f'v_mov_b32 {v(t+5)}, 0x3f803f80']
    L += [f'v_accvgpr_write_b32 {a(aONE+i)}, {v(t+5)}' for i in range(4)]
    L += [f'v_lshlrev_b32 {v(t+4)}, 2, {v(t+3)}', f'v_mov_b32 {v(t+5)}, {NEG:#x}']
    for r in range(4):
        L += [f'v_add_u32 {v(t+6)}, {r}, {v(t+4)}', f'v_cmp_lt_u32 vcc, {s(sT)}, {v(t+6)}', 's_nop 1',
              f'v_cndmask_b32 {v(MK+r)}, 0, {v(t+5)}, vcc']
    L += btprep(1) + btprep(2) + btprep(3)
    L += [f'v_mov_b32 {v(O0+i)}, 0' for i in range(64, 128)]
    L += [f'v_accvgpr_write_b32 {a(aL+i)}, 0' for i in range(16)]
    groups = {'q2': qload(2), 'q3': qload(3), 'v0': dma4(1, 0), 'k1': dma4(0, 1), 'v1': dma4(1, 1), 'k2': dma4(0, 2), 'v2': dma4(1, 2), 'k3': dma4(0, 3)}
    plan = {0: dict(A=['q2'], B=['v0'], C=['q3'], D=['k1', 'v1'], E=['k2'], F=['v2', 'k3']),
            1: dict(A=['q2'], B=['v0'], C=['q3'], D=['k1'], E2=['v1', 'k2'], G=['v2', 'k3']),
            2: dict(A=['q2', 'v0'], C=['q3', 'k1'], D=['v1'], E2=['k2'], G=['v2', 'k3']),
            3: dict(A0=['v0'], A=['q2'], C=['q3', 'k1'], D=['v1', 'k2'], G=['v2', 'k3']),
            4: dict(A=['q2'], B=['v0'], C=['q3', 'k1'], D=['v1'], E2=['k2'], G=['v2', 'k3']),
            5: dict(A=['q2'], B=['v0'], C=['q3', 'k1'], D2=['v1', 'k2'], G=['v2', 'k3']),
            6: dict(A=['q2'], B=['v0', 'k1'], C=['q3'], D2=['v1', 'k2'], G=['v2', 'k3']),
            7: dict(A=['q2'], B=['v0'], C=['q3', 'k1'], D2=['v1', 'k2'], E2=['v2', 'k3']),
            8: dict(A=['q2'], B=['v0', 'k1'], C=['q3'], P=['v1', 'k2'], S=['v2', 'k3']),
            9: dict(A=['q2', 'v0'], B=['k1'], C=['q3'], P=['v1', 'k2'], S=['v2', 'k3']),
            10: dict(A0=['v0'], A=['q2'], B=['k1'], C=['q3'], P=['v1', 'k2'], S=['v2', 'k3']),
            11: dict(A=['q2'], B=['v0', 'k1'], C=['q3'], D2=['v1', 'k2'], S=['v2', 'k3']),
            12: dict(A=['q2'], B=['v0', 'k1'], C3=['q3'], P=['v1', 'k2'], S=['v2', 'k3']),
            13: dict(A=['q2'], B=['v0'], B2=['k1'], C3=['q3'], P=['v1', 'k2'], S=['v2', 'k3']),
            14: dict(A=['v0'], B=['q2'], C=['k1'], C3=['q3'], P=['v1', 'k2'], S=['v2', 'k3']),
            15: dict(A=['q2'], B2=['v0'], C2=['k1'], C3=['q3'], P=['v1', 'k2'], S=['v2', 'k3']),
            16: dict(A2=['q2'], B2=['v0'], C2=['k1'], C3=['q3'], P=['v1', 'k2'], S=['v2', 'k3']),
            17: dict(A=['q2'], B=['v0'], C=['k1'], C2=['q3'], P=['v1', 'k2'], S=['v2', 'k3']),
            18: dict(A=['q2'], B=['v0'], B2=['k1'], C2=['q3'], P=['v1', 'k2'], S=['v2', 'k3']),
            19: dict(A=['v0'], B=['q2'], C=['k1'], C3=['q3'], P=['v1'], S=['k2', 'v2'], K=['k3']),
            20: dict(A=['v0'], B=['q2'], C=['k1'], C3=['q3'], S=['v1', 'k2'], K=['v2', 'k3']),
            21: dict(A=['v0'], B=['q2'], C=['k1'], C2=['q3'], S=['v1', 'k2'], K=['v2', 'k3']),
            22: dict(A=['v0'], A2=['q2'], B2=['k1'], C2=['q3'], S=['v1', 'k2'], K=['v2', 'k3']),
            23: dict(A0=['v0'], A=['q2'], B2=['k1'], C2=['q3'], S=['v1', 'k2'], K=['v2', 'k3']),
            24: dict(A=['v0'], B=['q2'], C=['q3'], C3=['k1'], S=['v1', 'k2'], K=['v2', 'k3']),
            25: dict(A=['v0'], B=['q2'], C=['k1'], C3=['q3'], P=['v1', 'k2'], S=['v2'], K=['k3']),
            26: dict(A=['v0'], B=['q2'], C=['k1'], C3=['q3'], D=['v1'], P=['k2'], S=['v2'], K=['k3']),
            27: dict(A=['v0'], B=['q2'], C=['k1', 'v1'], C3=['q3'], P=['k2'], S=['v2'], K=['k3']),
            28: dict(A=['v0', 'k1'], B=['q2'], C2=['q3'], P=['v1', 'k2'], S=['v2'], K=['k3']),
            30: dict(A=['v0'], B=['q2'], C=['k1'], C2=['q3'], P=['v1'], S=['k2', 'v2'], K=['k3']),
            31: dict(A=['v0'], B=['q2'], C=['k1'], C3=['q3'], P=['v1'], S=['k2'], K=['v2', 'k3']),
            32: dict(A=['q2'], B=['v0'], C=['k1'], C3=['q3'], P=['v1'], S=['k2'], K=['v2', 'k3']),
            33: dict(A=['v0'], A2=['q2'], C=['q3'], C2=['k1'], P=['v1'], S=['k2'], K=['v2', 'k3']),
            29: dict(A=['v0'], A2=['k1'], B=['q2'], C2=['q3'], D=['v1'], P=['k2'], S=['v2'], K=['k3'])}[OPT['po']]
    at = lambda p_: [x for g_ in plan.get(p_, []) for x in groups[g_]]
    X = OPT['tv'] >= 4
    btv = lambda i: [f'v_min_u32 {v(BT+i)}, 131, {v(BT+i)}', f'v_lshlrev_b32 {v(BT+i)}, 16, {v(BT+i)}'] + ([f'v_or_b32 {v(BT+i)}, {(3-i)*1024}, {v(BT+i)}'] if i < 3 else [])
    touch = []
    if OPT['touch']:
        touch = ['s_mov_b64 vcc, -1', f's_cmp_eq_u32 {s(sW)}, 0', 's_cbranch_scc1 L_padB', f's_cmp_eq_u32 {s(sW)}, 1', 's_cbranch_scc1 L_padA',
                 'L_ret:', 's_mov_b64 vcc, 0']
    L += at('A0') + (touch if OPT['touch'] == 1 else []) + (['L_walk:'] if OPT['walk'] else []) + ['WAITVM ld Q0'] + stamp(2)
    if X:
        L += ['WAITVM ld BT'] + btv(0) + [f's_sub_u32 {s(sT+5)}, {s(sN)}, 1', f'v_readlane_b32 {s(sT)}, {v(BT)}, {s(sT+5)}'] + qread(0)
        L += [f's_add_u32 m0, {s(sMV)}, {s(sSL+3)}', f's_sub_u32 {s(sT+5)}, {s(sT)}, 1024',
              f'buffer_load_dwordx4 {v(DV)}, s[12:15], {s(sT)} offen lds ; dmx V',
              f'buffer_load_dwordx4 {v(DK)}, s[8:11], {s(sT+5)} offen offset:1024 lds ; dmx K']
    else: L += qread(0)
    L += at('A') + scale_q(0) + at('A2') + ['WAITVM ld BT']
    for i in range(1 if X else 0, 4): L += btv(i)
    L += ['s_nop 0'] + [f'v_readlane_b32 {s(SETS[k]+i)}, {v(BT+i)}, {s(sT+1+k)}' for k in range(2) for i in range(4)]
    L += (touch if OPT['touch'] == 2 else []) + ['WAITVM dma K 0', 's_barrier']
    L += [i_kread(*kord(f), 0, '0', addr=KA0) for f in range(16)] + at('B')
    def tile0(x):
        P = Prog(); G = P.group
        r = lambda q, sb: qkg(q, 1, sb=sb, kbase=aX, mask=True)
        xv = lambda q: [pv(q, db, 0, 2, 'ov', first=q < 2) for db in range(8)] + [sm(q, 2)]
        G('q0', qkg(0))
        if x: G('r0', r(0, 2)); G('r1', r(1, 3))
        G('q1', qkg(1))
        if x: G('x0', xv(0)); G('x1', xv(1)); G('r2', r(2, 3))
        G('q2', qkg(2))
        if x: G('x2', xv(2))
        for nm in {0: ('p0', 'p1', 'q3'), 1: ('p0', 'q3', 'p1'), 2: ('q3', 'p0', 'p1')}[OPT['t0o']]:
            G(nm, qkg(3) if nm == 'q3' else pvg(int(nm[1]), first=not x))
        P.done(); p = P.pos
        w1, w2 = p['r0' if x else 'q1'], p['r2' if x else 'q2']
        P.softmax('s0', p['q0'], 0, 0, dlcap=w1 + 4); P.softmax('s1', p['q1'], 1, 1, dlcap=w2 + (-1 if x else 4))
        P.softmax('s2', p['q2'], 2, 2, dlcap=p['q3'] - 1 if OPT['t0o'] == 0 else P.n - 1, use=P.n); P.softmax('s3', p['q3'], 3, 3, skip=LEFT3, lastrel=P.n - 1)
        if x:
            P.softmax('t0', p['r0'], 2, 2, 1); P.softmax('t1', p['r1'], 3, 2, 1, use=p['x1'], zero=False)
            P.softmax('t2', p['r2'], 3, 2, 1, zero=False)
        P.vload('v', p['p0'], 0, '0', addr=VA0, rel0=w2)
        P.kload('k', P.n, 0, '1', addr=T0, rel0=p['q3'], dlmax=P.n - 1)
        g = P.gaps
        for pt, gi in (('P', p['p0'] + 1), ('K', p['q3'] + 1)):
            step = 2 if pt == 'K' and len(plan.get('K', [])) > 1 and OPT['t0o'] == 0 else 4
            for y in at(pt):
                if y.startswith('s_add'): g[gi - 1].sc.append(y)
                elif y.startswith('buffer'):
                    P.ops.append(Op(('d', gi), 'D', gi, gi, y)); gi += step
        assert not schedule(P.n, P.ops, g, overflow=True)
        sc3 = []; ext = at('S')
        for i, y in enumerate(scale_q(3)):
            sc3.append(y)
            if i % 10 == 4 and ext:
                if ext[0].startswith('s_add'): sc3 += ext[:2]; ext = ext[2:]
                sc3.append(ext.pop(0))
        assert not ext
        xr = []
        if x:
            XA = S0 + 36
            xr = [f's_add_u32 {s(sT)}, {s(sSL+3)}, 0x10000'] + [f'v_add_u32 {v(XA+ks)}, {s(sT)}, {v(KA+ks)}' for ks in range(4)] + \
                 [f'v_add_u32 {v(XA+4+db)}, {s(sSL+3)}, {v(VA+db)}' for db in range(8)] + ['WAITVM dmx K', 's_barrier'] + \
                 [f'ds_read_b128 {a(aX+4*ks,4)}, {v(XA+ks)} offset:1024 ; rx K {ks}' for ks in range(4)] + \
                 [f'ds_read_b64_tr_b16 {a(aX+16+2*db,2)}, {v(XA+4+min(db,7))} offset:0 ; rx V {min(db,7)}' for db in range(9)]
        g[w1 - 1].post += at('B2') + xr + ['WAITVM ld Q1'] + qread(1) + at('C') + scale_q(1) + at('C2') + ['s_nop 0']
        g[w2 - 1].post += at('C3') + ['WAITVM ld Q2'] + qread(2) + at('D') + scale_q(2) + ['WAITVM dma V 0|dma K 1', 's_barrier']
        g[p['q3'] - 1].post += (['s_barrier'] if x else []) + at('D2') + ['WAITVM ld Q3'] + stamp(3) + qread(3) + sc3 + \
                               [f'v_add_u32 {v(T0+ks)}, {s(sSL+1)}, {v(KA+ks)}' for ks in range(4)]
        g[P.n - 1].post += [HEADWAIT]
        full, pend = add_lgkm_waits(resolve_waitvm(L + ['L_split:'] + emit(P.mf, g)))
        k = full.index('L_split:')
        return full[:k], full[k+1:] + stamp(4) + wave_select() + dispatch(0), pend
    assert OPT['po'] >= 8
    head, tn, pend = tile0(False)
    if not X: return head + tn, [], pend
    head2, tx, pend2 = tile0(True)
    assert head == head2 and [z[0] for z in pend] == [z[0] for z in pend2]
    return head + [f's_cmp_lg_u32 {s(sNKB)}, 1', 's_cbranch_scc1 L_tile0n'] + tx, ['L_tile0n:'] + tn + ['s_branch L_b1'], pend

def slow():
    t = T0
    L = ['L_slow:', 's_waitcnt vmcnt(0) lgkmcnt(0)']
    M, LS, KV, VD0, VD1 = KA, BT, DK, DV, IDX
    L += [f'v_mbcnt_lo_u32_b32 {v(t+1)}, -1, 0', f'v_mbcnt_hi_u32_b32 {v(t+1)}, -1, {v(t+1)}',
          f'v_and_b32 {v(t+2)}, 15, {v(t+1)}', f'v_lshrrev_b32 {v(t+3)}, 4, {v(t+1)}']
    L += [f's_lshl_b32 {s(sT)}, {s(sW)}, {WSH}', f'v_lshlrev_b32 {v(t+4)}, 8, {v(t+2)}', f'v_lshl_add_u32 {v(t+4)}, {v(t+3)}, 4, {v(t+4)}',
          f'v_add_u32 {v(t+4)}, {s(sT)}, {v(t+4)}']
    L += [f'buffer_load_dwordx4 {v(S0+16*q+4*ks,4)}, {v(t+4)}, s[4:7], {qoff(q)} offen offset:{64*ks}' for q in range(2) for ks in range(4)]
    L += [f'v_lshlrev_b32 {v(t+4)}, 12, {v(t+2)}', f'v_lshl_add_u32 {v(KV)}, {v(t+3)}, 4, {v(t+4)}', f'v_add_u32 {v(KV)}, 3072, {v(KV)}',
          f'v_lshlrev_b32 {v(t+4)}, 1, {v(t+3)}', f'v_xor_b32 {v(t+4)}, {v(t+2)}, {v(t+4)}',
          f'v_lshlrev_b32 {v(t+4)}, 4, {v(t+4)}', f'v_lshl_add_u32 {v(VD0)}, {v(t+3)}, 12, {v(t+4)}', f'v_add_u32 {v(VD0)}, 3072, {v(VD0)}',
          f'v_xor_b32 {v(t+4)}, 0x80, {v(t+4)}', f'v_lshl_add_u32 {v(VD1)}, {v(t+3)}, 12, {v(t+4)}', f'v_add_u32 {v(VD1)}, {3072 + 16384}, {v(VD1)}',
          f's_lshl_b32 {s(sMV)}, {s(sW)}, 13', f's_add_u32 {s(sMV)}, {s(sMV)}, 0x20000',
          f'v_bfe_u32 {v(t+5)}, {v(t+1)}, 2, 2', f'v_lshl_add_u32 {v(t+5)}, {v(t+3)}, 2, {v(t+5)}',
          f'v_lshlrev_b32 {v(t+4)}, 8, {v(t+5)}', f'v_and_b32 {v(t+6)}, 3, {v(t+1)}',
          f'v_lshl_add_u32 {v(t+4)}, {v(t+6)}, 3, {v(t+4)}', f'v_add_u32 {v(t+4)}, {s(sMV)}, {v(t+4)}', f'v_and_b32 {v(t+5)}, 7, {v(t+5)}']
    for db in range(8):
        L += [f'v_xor_b32 {v(VA+db)}, {db}, {v(t+5)}', f'v_lshl_add_u32 {v(VA+db)}, {v(VA+db)}, 5, {v(t+4)}']
    L += [f'v_lshlrev_b32 {v(MK)}, 2, {v(t+3)}', f'v_mov_b32 {v(MK+1)}, {NEG:#x}']
    L += [f'v_mov_b32 {v(O0+i)}, 0' for i in range(128)]
    L += [f'v_mov_b32 {v(M+q)}, 0xff7fffff' for q in range(4)] + [f'v_mov_b32 {v(LS+q)}, 0' for q in range(4)]
    L += ['s_waitcnt vmcnt(0)'] + scale_q(0) + scale_q(1)
    L += [f's_mov_b32 {s(sIT)}, 0', 'L_slow_loop:',
          f's_lshr_b32 {s(sT)}, {s(sIT)}, 2',
          f's_load_dwordx2 s[40:41], s[30:31], {s(sT)}', 's_waitcnt lgkmcnt(0)',
          's_min_u32 s40, s40, 131', 's_min_u32 s41, s41, 131', 's_lshl_b32 s40, s40, 16', 's_lshl_b32 s41, s41, 16']
    for kb in range(2):
        for ks in range(4):
            L.append(f'buffer_load_dwordx4 {a(aK+16*kb+4*ks,4)}, {v(KV)}, s[8:11], s{40+kb} offen offset:{64*ks}')
    for b in range(2):
        for p in range(4):
            L += [f's_add_u32 m0, {s(sMV)}, {b*4096 + p*1024}', f's_add_u32 s42, s{40+b}, {(p//2)*32768}',
                  f'buffer_load_dwordx4 {v(VD1 if p & 1 else VD0)}, s[12:15], s42 offen lds']
    L += ['s_waitcnt vmcnt(0)']
    for db in range(8):
        for tt in range(2):
            L.append(f'ds_read_b64_tr_b16 {a(aV+8*db+2*tt,2)}, {v(VA+db)} offset:{tt*4096}')
    L += [f's_sub_u32 {s(sT)}, {s(sCLT)}, {s(sIT)}', 's_waitcnt lgkmcnt(0)']
    for q in range(4):
        S = S0 + 16*q
        L += qkg(q, 2) + ['s_nop 7']
        for e in range(8):
            L += [f'v_add_u32 {v(t)}, {16*(e//4) + e%4}, {v(MK)}', f'v_cmp_gt_u32 vcc, {s(sT)}, {v(t)}', 's_nop 1',
                  f'v_cndmask_b32 {v(S+e)}, {v(MK+1)}, {v(S+e)}, vcc']
        L += [f'v_max3_f32 {v(t)}, {v(S)}, {v(S+1)}, {v(S+2)}', f'v_max3_f32 {v(t)}, {v(t)}, {v(S+3)}, {v(S+4)}',
              f'v_max3_f32 {v(t)}, {v(t)}, {v(S+5)}, {v(S+6)}', f'v_max3_f32 {v(t)}, {v(t)}, {v(S+7)}, {v(M+q)}',
              f'v_mov_b32 {v(t+1)}, {v(t)}', 's_nop 1', f'v_permlane16_swap_b32 {v(t)}, {v(t+1)}', f'v_max_f32 {v(t)}, {v(t)}, {v(t+1)}',
              f'v_mov_b32 {v(t+1)}, {v(t)}', 's_nop 1', f'v_permlane32_swap_b32 {v(t)}, {v(t+1)}', f'v_max_f32 {v(t)}, {v(t)}, {v(t+1)}',
              f'v_sub_f32 {v(t+1)}, {v(M+q)}, {v(t)}', f'v_exp_f32 {v(t+1)}, {v(t+1)}', f'v_mov_b32 {v(M+q)}, {v(t)}']
        L += [f'v_sub_f32 {v(S+e)}, {v(S+e)}, {v(t)}' for e in range(8)]
        L += [f'v_exp_f32 {v(S+e)}, {v(S+e)}' for e in range(8)]
        L += [f'v_mul_f32 {v(LS+q)}, {v(LS+q)}, {v(t+1)}']
        L += [f'v_mul_f32 {v(O0+32*q+i)}, {v(O0+32*q+i)}, {v(t+1)}' for i in range(32)]
        L += [i_cvt(q, q, i) for i in range(4)]
        for i in range(4):
            L += [f'v_lshlrev_b32 {v(t)}, 16, {v(P0+8*q+i)}', f'v_and_b32 {v(t+1)}, 0xffff0000, {v(P0+8*q+i)}',
                  f'v_add_f32 {v(LS+q)}, {v(LS+q)}, {v(t)}', f'v_add_f32 {v(LS+q)}, {v(LS+q)}, {v(t+1)}']
        L += [pv(q, db, 0) for db in range(8)]
    L += [f's_add_u32 {s(sIT)}, {s(sIT)}, 32', f's_cmp_lt_u32 {s(sIT)}, {s(sCLT)}', 's_cbranch_scc1 L_slow_loop', 's_nop 7']
    for q in range(4):
        o = O0 + 32*q
        L += [f'v_mov_b32 {v(t)}, {v(LS+q)}', f'v_mov_b32 {v(t+1)}, {v(LS+q)}', 's_nop 1',
              f'v_permlane16_swap_b32 {v(t)}, {v(t+1)}', f'v_add_f32 {v(t)}, {v(t)}, {v(t+1)}',
              f'v_mov_b32 {v(t+1)}, {v(t)}', 's_nop 1', f'v_permlane32_swap_b32 {v(t)}, {v(t+1)}', f'v_add_f32 {v(t)}, {v(t)}, {v(t+1)}',
              f'v_rcp_f32 {v(t)}, {v(t)}', 's_nop 0']
        L += [f'v_mul_f32 {v(o+i)}, {v(o+i)}, {v(t)}' for i in range(32)]
        for u in range(4):
            L += [f'v_cvt_pk_bf16_f32 {v(o+8*u+i)}, {v(o+8*u+2*i)}, {v(o+8*u+2*i+1)}' for i in range(4)]
        for u in range(4):
            L += [f'v_permlane16_swap_b32 {v(o+8*u+i)}, {v(o+8*u+2+i)}' for i in range(2)]
        for u in range(4):
            L.append(f'buffer_store_dwordx4 {v(o+8*u,4)}, {v(OV)}, s[16:19], {qoff(q)} offen offset:{64*u}')
    return L + ['s_endpgm']

DOC = '''; Paged-KV attention, one workgroup per CU: 256 query rows against one KV head, 4 waves x 64 rows, 64-key tiles.
;  * S^T = K.Q^T and O^T += V^T.P^T with v_mfma_f32_16x16x32_bf16 (P stays in registers, V via ds_read_b64_tr_b16),
;    row sums with one v_smfmac_f32_16x16x64_bf16 per 16 rows and tile.  Q is scaled once by log2(e)/sqrt(D).
;  * Softmax guard: the fast path uses 0 as stand-in for the row maximum.  Every row sum is checked at run time; if one
;    leaves [2^-40, 2^40] (or is not a number) the wave recomputes its rows in L_slow with the true running maximum.
;    L_slow also serves context lengths below 193.  context_lens <= 0 (all keys masked) gives the uniform average.
;    stores overlap the remaining blocks.  16-row blocks are dealt to waves so that the blocks loaded or stored at
'''
NFIN = 0
def finish():
    global NFIN
    NFIN += 1
    L = [f'v_cmp_lt_u32 vcc, 0x28000000, {v(T0+4)}' if not OPT.get('abl') else 's_mov_b64 vcc, 0',
         f's_cmp_lg_u32 {s(sFORCE)}, 0', 's_cbranch_scc1 L_slow', 's_nop 3', 's_cbranch_vccnz L_slow']
    if OPT.get('twice'):
        L += ['s_cmp_eq_u32 s77, 0', f's_cbranch_scc1 L_fin{NFIN}', 's_sub_u32 s77, s77, 1', 's_waitcnt vmcnt(0) lgkmcnt(0)', 's_barrier',
              'v_mbcnt_lo_u32_b32 v0, -1, 0', 'v_mbcnt_hi_u32_b32 v0, -1, v0', f's_lshl_b32 {s(sT)}, {s(sW)}, 6', f'v_add_u32 v0, {s(sT)}, v0', 's_branch L_again', f'L_fin{NFIN}:']
    if OPT['stamp']:
        L += [f's_memtime s[40:41]', 's_waitcnt vmcnt(0)', 's_memtime s[42:43]', f's_memrealtime s[44:45]', 's_waitcnt lgkmcnt(0)']
        st = lambda i: sST + 2*i if i < 6 else 40 + 2*(i - 6)
        if OPT.get('fixed'):
            L += [f's_mov_b32 {s(sT+4)}, {OPT["fixed"]}']
            if OPT.get('xcc'):
                L += [f's_getreg_b32 {s(sT+5)}, hwreg(HW_REG_XCC_ID, 0, 4)', f's_sub_u32 {s(sT+5)}, {s(sT+5)}, s2', f's_and_b32 {s(sT+5)}, {s(sT+5)}, 7']
                if OPT['xcc'] == 2: L += [f's_sub_u32 {s(sT+5)}, 7, {s(sT+5)}']
                L += [f's_mul_i32 {s(sT+5)}, {s(sT+5)}, 500', f's_add_u32 {s(sT+4)}, {s(sT+4)}, {s(sT+5)}']
            if OPT.get('phase'):
                L += [f's_sub_u32 {s(sT+5)}, {s(st(OPT["phase"]))}, {s(st(OPT.get("phase0", 0)))}']
                if OPT.get('neg'): L += [f's_sub_u32 {s(sT+5)}, {OPT["neg"]}, {s(sT+5)}']
                L += [f's_lshr_b32 {s(sT+5)}, {s(sT+5)}, {OPT.get("sh", 3)}', f's_add_u32 {s(sT+4)}, {s(sT+4)}, {s(sT+5)}']
            return L + [f'L_spin{NFIN}:', f's_memrealtime {s(sT,2)}', 's_waitcnt lgkmcnt(0)', f's_sub_u32 {s(sT)}, {s(sT)}, s100',
                        f's_cmp_lt_u32 {s(sT)}, {s(sT+4)}', f's_cbranch_scc1 L_spin{NFIN}', 's_endpgm']
        L += ['s_load_dwordx2 s[24:25], s[0:1], 56', 's_waitcnt lgkmcnt(0)', 's_mov_b32 s26, 0x100000', 's_mov_b32 s27, 0x20000']
        L += [f'v_mov_b32 v{i}, {s(st(i))}' for i in range(8)]
        L += ['v_mov_b32 v8, s42', 'v_mov_b32 v9, s44', 'v_mov_b32 v10, s100', 'v_mov_b32 v11, 0',
              f's_lshl_b32 {s(sT)}, s2, 2', f's_add_u32 {s(sT)}, {s(sT)}, {s(sW)}', f's_lshl_b32 {s(sT)}, {s(sT)}, 6',
              'v_mov_b32 v12, 0', 's_mov_b64 exec, 1',
              f'buffer_store_dwordx4 v[0:3], v12, s[24:27], {s(sT)} offen',
              f'buffer_store_dwordx4 v[4:7], v12, s[24:27], {s(sT)} offen offset:16',
              f'buffer_store_dwordx4 v[8:11], v12, s[24:27], {s(sT)} offen offset:32']
    return L + ['s_endpgm']

def sizes(L):
    import subprocess, re, tempfile, os
    d = tempfile.mkdtemp()
    open(d + '/a.s', 'w').write('.amdgcn_target "amdgcn-amd-amdhsa--gfx950"\n.text\n' + '\n'.join(l for l in L if not l.startswith('.')) + '\n')
    subprocess.check_call(['clang', '-x', 'assembler', '-target', 'amdgcn-amd-amdhsa', '-mcpu=gfx950', '-c', d + '/a.s', '-o', d + '/a.o'])
    out = subprocess.check_output(['llvm-objdump', '-d', '--mcpu=gfx950', d + '/a.o']).decode()
    sz = [4 * len(m.group(1).split()) for m in re.finditer(r'// [0-9A-F]+: ([0-9A-F ]+)', out)]
    it = iter(sz)
    return [next(it) if Ins(l).states else 0 for l in L]

def add_walk(L):
    sz = sizes(L); ins = parse(L)
    regions = [(L.index('L_walk:') + 1, L.index('L_b1:') - 1), (L.index('L_tail:'), L.index('L_pfend:') - 8)]
    if OPT['walk'] == 2: regions = [(L.index('L_walk:') + 1, L.index('L_pfend:') - 8)]
    pads = []
    for lo, hi in regions:
        acc = OPT['wsp'] - 64 if lo == regions[0][0] else OPT['wsp']; best = None
        for i in range(lo, hi):
            acc += sz[i]
            if acc >= OPT['wsp'] - max(64, OPT['wsp'] // 4) and ins[i].states and ins[i].cls != 'br' and not L[i].startswith(('s_cmp', 's_waitcnt')):
                cost = 0 if ins[i].cls == 'mfma' and ins[i+1].cls == 'mfma' else 2 if ins[i+1].cls == 'mfma' else 3
                if best is None or cost <= best[0]: best = (cost, i, acc)
            if acc >= OPT['wsp'] and best:
                pads.append(best[1]); acc -= best[2]; best = None
    n = len(pads); cut = [n * w // 4 for w in range(5)]
    out = []
    for i, l in enumerate(L):
        if l == 'L_walk:':
            out += ['s_mov_b64 vcc, -1']
            for w in range(3): out += [f's_cmp_eq_u32 {s(sW)}, {w}', f's_cbranch_scc1 L_pad{cut[w]}']
            out += [f's_branch L_pad{cut[3]}', 'L_ret:', 's_mov_b64 vcc, 0']
            continue
        out.append(l)
        if i in pads:
            k = pads.index(i)
            out += [f'L_pad{k}:', f's_cbranch_vccnz {"L_ret" if k + 1 in cut else f"L_pad{k+1}"}']
    print('pads', n)
    return out

def main():
    pro, pro2, pend0 = prologue()
    loop, pend = loop_code()
    assert [x[0] for x in pend0] == [x[0] for x in pend], (pend0, pend)
    L = [f'{NAME}:'] + pro + loop
    L += ['L_tail:'] + stamp(5) + [f's_cmp_gt_u32 {s(sNKB)}, 1', 's_cbranch_scc1 L_tail234']
    L += tail(1, pend) + finish()
    for w in range(1, NCOPY): L += loop_copy(w, pend)
    L += ['L_pfend:']
    L += ['L_tail234:', f's_cmp_eq_u32 {s(sNKB)}, 3', 's_cbranch_scc1 L_tail3', f's_cmp_eq_u32 {s(sNKB)}, 4', 's_cbranch_scc1 L_tail4']
    L += tail(2, pend) + finish() + ['L_tail3:'] + tail(3, pend) + finish() + ['L_tail4:'] + tail(4, pend) + finish()
    L += pro2 + slow() + ['L_end:', 's_endpgm']
    L, nn = fix_hazards(L, verbose=OPT.get('verbose', 0))
    if OPT['walk']: L = add_walk(L)
    sz = sizes(L)
    assert sum(sz[L.index('L_pc:'):]) > (65536 if NCOPY > 2 else 32768) + 64 if OPT['cpf'] else True
    print('bytes up to the last Q0 load:', sum(sz[:max(i for i, l in enumerate(L) if l.endswith('ld Q0')) + 1]), ' executed code:', sum(sz[:L.index('L_pfend:')]))
    print('nop states inserted:', nn, ' leftovers:', sorted(LEFT3))
    hdr = open('standalone__paged_block_table_kv_pagedattention__prompt.s.ref').read().split('; Override')[0]
    txt = hdr + DOC + '; Generated by gen/gen2.py (own generator script).\n'
    txt += '; @launch grid=(256,1,1) block=(256,1,1) lds=163840\n'
    txt += f'.amdgcn_target "amdgcn-amd-amdhsa--gfx950"\n.text\n.globl {NAME}\n.p2align 8\n.type {NAME},@function\n'
    for l in L: txt += (l if l.endswith(':') or l.startswith(('.', ';')) else '    ' + l) + '\n'
    txt += f'''.section .rodata,"a"
.p2align 6
.amdhsa_kernel {NAME}
  .amdhsa_next_free_vgpr 504
  .amdhsa_next_free_sgpr 102
  .amdhsa_accum_offset 256
  .amdhsa_group_segment_fixed_size 0
  .amdhsa_kernarg_size 64
  .amdhsa_user_sgpr_count 2
  .amdhsa_user_sgpr_kernarg_segment_ptr 1
  .amdhsa_system_sgpr_workgroup_id_x 1
.end_amdhsa_kernel
'''
    open(sys.argv[1], 'w').write(txt)
    if OPT.get('show'):
        for g in range(NG): print(g, PAT[g])
main()
```

```python
import sys
from asmcheck import parse, fix_hazards, Ins

NAME = 'standalone__paged_block_table_kv_pagedattention__prompt_kernel'
FL = {0: '', 1: ' nt', 2: ' sc1', 3: ' sc0 sc1', 4: ' sc1 nt', 5: ' sc0 sc1 nt', 6: ' sc0', 7: ' sc0 nt'}
OPT = dict(po=31, cpf=1, qf=0, kf=2, of=2, delta=9, stamp=0, lat=8, forceslow=0, tord=1, epri=12, ep=2, ssp=4, ssp0=0, tv=3, edl=0, ttu=2, walk=0, wsp=224, pkd=6, touch=0, snake=1, stag=1, rot=6, urot=0, hmap=0, t0o=1, wcls=0)
for a_ in sys.argv[2:]:
    k_, v_ = a_.split('='); OPT[k_] = int(v_, 0)

S0, P0, KA, VA, BT, DK, DV, IDX, OV, MK, T0, O0 = 0, 64, 96, 100, 108, 112, 113, 114, 115, 116, 120, 128
QD, QA = P0 + 24, P0 + 28
KA0, VA0 = O0, S0 + 52
EW, ER, EG = T0 + 5, T0 + 6, T0 + 7
aQ, aK, aV, aL, aONE, aX = 0, 64, 128, 192, 208, 212
sW, sCL, sN, sIT, sLN = 3, 36, 37, 38, 39
SETS = (56, 60)
sMK, sMV, sC, sC2, sNKB, sE, sFORCE, sCLT = 64, 65, 66, 67, 68, 69, 70, 71
sNP = 75
sE2 = 76
sQ0 = 77
sY = 35
sQ1 = 72
sSL = 96
sT = 78
sST = 84
KBYTES = 132 * 65536
LAT = OPT['lat']
NEG = 0xf149f2ca
INF = 10 ** 6
WSH, QSH = (12, 14) if OPT['rot'] >= 4 else (14, 12)
MINCL = 193

def v(b, n=1): return f'v{b}' if n == 1 else f'v[{b}:{b+n-1}]'
def a(b, n=1): return f'a{b}' if n == 1 else f'a[{b}:{b+n-1}]'
def s(b, n=1): return f's{b}' if n == 1 else f's[{b}:{b+n-1}]'
def VR(b, n=1): return {('v', i) for i in range(b, b + n)}
def AR(b, n=1): return {('a', i) for i in range(b, b + n)}

MF = 'v_mfma_f32_16x16x32_bf16'
def kord(f):
    return f // 4, (3 - f % 4 if OPT['snake'] and (f // 4) % 2 else f % 4)
def qk(q, f, sb=None, kbase=aK, mask=False):
    kb, ks = kord(f)
    D = v(S0 + 16*(q if sb is None else sb) + 4*kb, 4)
    C = D if f % 4 else (v(MK, 4) if mask else '0')
    return f'{MF} {D}, {a(kbase+16*kb+4*ks,4)}, {a(aQ+16*q+4*ks,4)}, {C}'
def vfrag(db, ks, vbase):
    if vbase == 'ov': return aX + 16 + 2*db
    return aV + (2*db+ks)*4 if vbase is None else vbase + 4*db
def pv(q, db, ks, pb=None, vbase=None, first=False):
    D = v(O0 + 32*q + 4*db, 4)
    return f'{MF} {D}, {a(vfrag(db, ks, vbase),4)}, {v(P0+8*(q if pb is None else pb)+4*ks,4)}, {"0" if first and ks == 0 else D}'
def sm(q, pb=None):
    return f'v_smfmac_f32_16x16x64_bf16 {a(aL+4*q,4)}, {a(aONE,4)}, {v(P0+8*(q if pb is None else pb),8)}, {v(IDX)}'
def qkg(q, nkb=4, sb=None, kbase=aK, mask=False):
    return [qk(q, f, sb, kbase, mask and f // 4 == nkb-1) for f in range(4 * nkb)]
def pvg(q, pb=None, first=False): return [pv(q, db, ks, pb, None, first) for db in range(8) for ks in range(2)] + [sm(q, pb)]

def i_exp(sb, n): return f'v_exp_f32 {v(S0+16*sb+n)}, {v(S0+16*sb+n)}'
def i_cvt(sb, pb, i): return f'v_cvt_pk_bf16_f32 {v(P0+8*pb+i)}, {v(S0+16*sb+2*i)}, {v(S0+16*sb+2*i+1)}'
def i_kread(kb, ks, slot, tag, kbase=aK, addr=KA):
    return f'ds_read_b128 {a(kbase+16*kb+4*ks,4)}, {v(addr+ks)} offset:{slot*16384+kb*1024}'
def i_vread(db, ks, t, slot, tag, vbase=None, addr=VA):
    return f'ds_read_b64_tr_b16 {a(vfrag(db, ks, vbase)+2*t,2)}, {v(addr+db)} offset:{slot*16384+(2*ks+t)*1024}'
def i_dma(isv, i, soff, tag):
    return f'buffer_load_dwordx4 {v(DV if isv else DK)}, {s(12 if isv else 8,4)}, {s(soff+i)} offen offset:{i*1024}{FL[OPT["kf"]]} lds'
def i_m0(isv, slot): return f's_add_u32 m0, {s(sMV if isv else sMK)}, {slot*16384}'
def qoff(q): return s(sQ0) if q == 0 and OPT['rot'] else '0' if q == 0 else s(sQ1 + q - 1)
def stamp(i): return [f's_memtime {s(sST+2*i,2)}'] if OPT['stamp'] and not (OPT.get('wb') and 1 <= i <= 4) else []

class Op:
    def __init__(self, key, cls, rel, dl, text, deps=(), fifo=None, pri=None):
        self.key, self.cls, self.rel, self.dl, self.text, self.deps, self.fifo = key, cls, rel, dl, text, list(deps), fifo
        self.pri = dl if pri is None else pri
        self.gap = None
class Gap:
    def __init__(self): self.sc, self.mem, self.valu, self.post = [], [], [], []; self.block = None

def schedule(ngaps, ops, gaps, overflow=False):
    byk = {o.key: o for o in ops}
    todo = list(ops)
    def ready(o, g):
        if o.rel > g: return False
        for d in o.deps:
            p = byk.get(d)
            if p is not None and (p.gap is None or p.gap >= g): return False
        if o.fifo is not None:
            p = byk[o.fifo]
            if p.gap is None or (o.cls in 'DRTW' and p.cls not in 'RT' and p.gap >= g): return False
            if o.cls == 'D' and p.cls == 'R' and p.gap + LAT > g: return False
            if o.cls == 'D' and p.cls == 'D' and p.gap + OPT['ssp'] > g: return False
        return True
    def put(o, g):
        o.gap = g; todo.remove(o)
        (gaps[g].mem if o.cls in 'DRTW' else gaps[g].valu).append(o)
    for g in range(ngaps):
        if gaps[g].block != 'all':
            cand = sorted((o for o in todo if ready(o, g)), key=lambda o: o.pri)
            if gaps[g].block == 'half': cand = [o for o in cand if o.cls == 'H'][:1]
            if cand:
                top = cand[0]
                halves = [o for o in cand if o.cls in 'RTH']
                full = [o for o in cand if o.cls in 'EDW']
                if top.cls in 'RTH' and len(halves) == 1 and full and top.pri - g > 6 and top.fifo is None: top = full[0]
                put(top, g)
                if top.cls in 'RTH' and gaps[g].block != 'half':
                    c2 = sorted((o for o in todo if o.cls in 'RTH' and ready(o, g) and not (o.cls == 'R' and top.cls == 'R')), key=lambda o: o.pri)
                    if c2:
                        pick = c2[0]
                        busy = g > 0 and len(gaps[g-1].mem) > 1
                        if top.cls in 'RT' and pick.cls in 'RT' and (pick.pri - g > 8 or (busy and pick.pri - g > OPT['ttu'])):
                            h = [o for o in c2 if o.cls == 'H']
                            if h: pick = h[0]
                            elif busy and pick.pri - g > OPT['ttu']: pick = None
                        if pick: put(pick, g)
        late = [o for o in todo if o.dl <= g]
        if late:
            if not overflow: raise RuntimeError(f'deadline miss at gap {g}: {[o.key for o in late]}')
            def force(o):
                if o.gap is not None: return
                for d in o.deps + ([o.fifo] if o.fifo else []):
                    if d in byk: force(byk[d])
                assert o.rel <= g, (o.key, o.rel, g)
                o.gap = g; todo.remove(o)
                if o.cls in 'RT' and o.fifo is None and gaps[g].block != 'all': gaps[g].mem.append(o)
                else: gaps[g].post.append(o.text)
            for o in sorted(late, key=lambda o: (o.fifo is not None, {'R': 0, 'T': 0, 'D': 0, 'W': 0, 'E': 1, 'H': 2}[o.cls], o.dl)): force(o)
    return todo

def emit(mf, gaps):
    out = []
    for m, g in zip(mf, gaps):
        out.append(m)
        sc = list(g.sc)
        if any(o.text.startswith('buffer_load') for o in g.mem) and not sc: sc = ['s_nop 0']
        out += sc + [o.text for o in g.mem] + [o.text for o in g.valu] + g.post
    return out

def add_lgkm_waits(lines, pre_ds=()):
    q = [(set(r), -age) for r, age in pre_ds]
    out = []; gap = -1; lastm = None; nvis = None
    for x in parse(lines):
        if x.cls == 'mfma':
            needed = [i for i, (r, g) in enumerate(q) if r & x.r]
            if needed:
                k = max(needed)
                if lastm is not None and k < nvis:
                    while k + 1 < nvis and q[k + 1][1] <= gap - LAT: k += 1
                    n = min(15, nvis - 1 - k)
                    if out[lastm:lastm+1] == ['s_nop 0']: out[lastm] = f's_waitcnt lgkmcnt({n})'
                    else: out.insert(lastm, f's_waitcnt lgkmcnt({n})')
                    k = nvis - 1 - n
                else:
                    n = min(15, len(q) - 1 - k)
                    out.append(f's_waitcnt lgkmcnt({n})')
                    k = len(q) - 1 - n
                q = q[k + 1:]
            gap += 1
            out.append(x.text); lastm = len(out); nvis = len(q)
        else:
            if x.cls == 'vmem':
                needed = [i for i, (r, g) in enumerate(q) if r & x.r]
                if needed:
                    n = min(15, len(q) - 1 - max(needed)); drop = len(q) - n
                    out.append(f's_waitcnt lgkmcnt({n})'); q = q[drop:]
                    if nvis is not None: nvis = max(0, nvis - drop)
            if x.cls == 'ds': q.append((set(x.w), gap))
            if x.cls == 'wait' and x.lgkm is not None:
                drop = max(0, len(q) - x.lgkm); q = q[drop:]
                if nvis is not None: nvis = max(0, nvis - drop)
            out.append(x.text)
    return out, [(r, gap - g) for r, g in q]

class Prog:
    def __init__(self): self.mf = []; self.ops = []; self.pos = {}
    def group(self, name, mf): self.pos[name] = len(self.mf); self.mf += mf
    def done(self):
        self.ins = [Ins(m) for m in self.mf]; self.n = len(self.mf); self.gaps = [Gap() for _ in self.mf]
    def first_read(self, R, lo): return next((i for i in range(lo, self.n) if R & self.ins[i].srcAB), INF)
    def last_read(self, R, hi): return next((i for i in range(min(hi, self.n) - 1, -1, -1) if R & self.ins[i].srcAB), -1)
    def last_write(self, R, hi): return next((i for i in range(min(hi, self.n) - 1, -1, -1) if R & self.ins[i].w), -1)
    def next_write(self, R, lo): return next((i for i in range(lo, self.n) if R & self.ins[i].w), INF)
    def kload(self, key, use, slot, tag, nkb=4, kbase=aK, addr=KA, rel0=0, dlmax=None):
        for f in range(4 * nkb):
            kb, ks = kord(f)
            R = AR(kbase + 16*kb + 4*ks, 4)
            u = self.first_read(R, use) if use < self.n else self.n + f
            rel = min(self.n - 1, max(rel0, self.last_read(R, u) + 1))
            dl = u - LAT if dlmax is None else min(u - LAT, dlmax - (4*nkb - 1 - f))
            self.ops.append(Op((key, f), 'R', rel, max(rel, dl), i_kread(kb, ks, slot, tag, kbase, addr), deps=[(key, f-1)] if f else []))
    def vload(self, key, use, slot, tag, nks=2, vbase=None, addr=VA, rel0=0):
        for db in range(8):
            for ks in range(nks):
                R = AR(vfrag(db, ks, vbase), 4)
                u = self.first_read(R, use)
                rel = max(rel0, self.last_read(R, u) + 1)
                for t in range(2):
                    if vbase == 'ov' and t == 1 and db < 7: continue
                    self.ops.append(Op((key, db, ks, t), 'T', rel, max(rel, u - LAT - (1 - t)), i_vread(db, ks, t, slot, tag, vbase, addr)))
    def softmax(self, key, at, sb, pb, nkb=4, only=None, skip=(), dlcap=None, use=0, lastrel=INF, zero=True):
        end = at + 4*nkb if at >= 0 else 0
        u = self.first_read(VR(P0 + 8*pb, 8), max(end, use))
        prel = min(self.last_read(VR(P0 + 8*pb, 8), u) + 1, u - 1)
        cap = min(u - 3, self.next_write(VR(S0 + 16*sb, 16), end) - 1, self.n - 1 if dlcap is None else dlcap)
        n = 4 * nkb; edl = {}
        for e in range(n):
            if (only is not None and ('e', e) not in only) or ('e', e) in skip: continue
            rel = min(lastrel, at + 4*(e//4) + 3 + 5) if at >= 0 else 0
            edl[e] = min(max(rel, cap - 1 - 2*(n - 1 - e), min(cap - 1, rel + e % 4)), max(rel, cap))
            self.ops.append(Op((key, 'e', e), 'E', rel, edl[e], i_exp(sb, e)))
        for i in range(2 * nkb):
            if (only is not None and ('c', i) not in only) or ('c', i) in skip: continue
            rel = max(prel, min(lastrel, at + 4*(i//2) + 3 + 6) if at >= 0 else 0)
            self.ops.append(Op((key, 'c', i), 'H', rel, max(rel, cap - (2*nkb - 1 - i), min(cap, edl.get(2*i+1, 0) + 1)), i_cvt(sb, pb, i),
                               deps=[(key, 'e', 2*i), (key, 'e', 2*i+1)]))
            assert rel <= u - 1, (key, i, rel, u)
        if only is None and zero:
            for i in range(2 * nkb, 8):
                self.ops.append(Op((key, 'z', i), 'H', prel, max(prel, u - 3), f'v_mov_b32 {v(P0+8*pb+i)}, 0'))

NG = 132
LOOP_MF = qkg(0) + pvg(2) + qkg(1) + pvg(3) + qkg(2) + pvg(0) + qkg(3) + pvg(1)
assert len(LOOP_MF) == NG
BARG = OPT.get('barg', 47)
DMAG = [10, 14, 18, 22, 26, 30, 34, 38]
RLG = [41, 43, 92, 96] if BARG not in (41, 43) else [45, 47, 92, 96]

def steady(DMAG, RLG, sh0, shv=0):
    NT = 6
    ops = []
    gaps = [Gap() for _ in range(NG * (NT + 1))]
    for j in range(NT):
        b = NG * j
        for q in range(4):
            pvs = b + 82 + 33*q; qs = b + 33*q
            for e in range(16):
                g = qs + OPT['delta'] + 2*e + (sh0 if q == 0 else 0) + (shv if (q == 1 and e >= 4) or q == 2 else 0)
                ops.append(Op(('e', j, q, e), 'E', g, g, None))
            for i in range(8):
                ops.append(Op(('c', j, q, i), 'H', pvs - NG + 17, pvs - 3 - (7 - i), None, deps=[('e', j, q, 2*i), ('e', j, q, 2*i+1)]))
        for f in range(16):
            for t in range(2):
                ops.append(Op(('v', j, f//2, f%2, t), 'T', max(b + 50 + f, b + BARG + 1), b + 82 + f - LAT - (1 - t), None))
            ops.append(Op(('k', j, f//4, f%4), 'R', b + 100 + f, min(b + NG - 2 - (15 - f), b + NG + f - LAT), None,
                          deps=[('k', j, (f-1)//4, (f-1)%4)] if f else []))
        for i in range(4): ops.append(Op(('rl', j, i), 'E', b + RLG[i], b + RLG[i], None))
        for i in range(8): ops.append(Op(('d', j, i), 'D', b + DMAG[i], b + DMAG[i], None))
        gaps[b + BARG].block = 'all'
        gaps[b + NG - 1].block = 'half'
    schedule(NG * (NT + 1), ops, gaps)
    def pattern(j):
        return [[(o.key[0], o.key[1] - j) + o.key[2:] for o in gaps[NG*j + g].mem + gaps[NG*j + g].valu] for g in range(NG)]
    assert pattern(3) == pattern(4), 'no steady state'
    return pattern(3)
NCOPY = {0: 1, 1: 2, 2: 2, 4: 4}[OPT['stag']]
VARS = []
for ph in (0, 2, 1, 3)[:NCOPY]:
    dg = [g + ph for g in DMAG]; rg = RLG if ph < 3 else [43, 45, 92, 96]
    shv = OPT.get('shv', 0) and ph == 2
    if shv: rg = [41, 43, 93, 97]
    VARS.append((steady(dg, rg, ph & 1, shv), dg, rg))
PAT = VARS[0][0]
assert all({k for g in V[0] for k in g if k[1] == -1} == {k for g in PAT for k in g if k[1] == -1} for V in VARS)
LEFT = {k for g in PAT for k in g if k[1] == -1}
assert all(k[0] in 'ec' and k[2] == 3 for k in LEFT), LEFT
LEFT3 = {(k[0], k[3]) for k in LEFT}
HEADWAIT = 's_waitcnt lgkmcnt(4)'

class Txt:
    def __init__(self, t): self.text = t

def body(sl, w=0):
    PAT, DMAG, RLG = VARS[w]
    def text(k):
        if k[0] == 'e': return i_exp(k[2], k[3])
        if k[0] == 'c': return i_cvt(k[2], k[2], k[3])
        if k[0] == 'v': return i_vread(k[2], k[3], k[4], sl, '+0')
        if k[0] == 'k': return i_kread(*kord(4*k[2] + k[3]), (sl + 1) % 4, '+1')
        if k[0] == 'rl': return f'v_readlane_b32 {s(SETS[sl%2] + k[2])}, {v(BT+k[2])}, {s(sLN)}'
        if k[0] == 'd': return i_dma(1, k[2], SETS[sl % 2], '+2') if k[2] < 4 else i_dma(0, k[2] - 4, SETS[(sl + 1) % 2], '+3')
    gaps = [Gap() for _ in range(NG)]
    for g in range(NG):
        for k in PAT[g]: (gaps[g].mem if k[0] in 'vkd' else gaps[g].valu).append(Txt(text(k)))
    gaps[DMAG[0] - 2].sc.append(i_m0(1, (sl + 2) % 4))
    gaps[DMAG[4] - 2].sc.append(i_m0(0, (sl + 3) % 4))
    gaps[RLG[-1] + 2].sc.append(f's_add_u32 {s(sLN)}, {s(sLN)}, 1')
    gaps[BARG - OPT.get('vmo', 1)].sc.append('s_waitcnt vmcnt(16)')
    gaps[BARG].sc.append('s_barrier')
    if sl == 0: gaps[NG - 3].sc.append(f's_sub_u32 {s(sIT)}, {s(sIT)}, 1')
    gaps[NG - 2].sc.append(HEADWAIT)
    lines = emit(LOOP_MF, gaps)
    ab = OPT.get('abl', 0)
    if ab & 1: lines = [l for l in lines if not l.startswith('buffer_load')]
    if ab & 2: lines = [l for l in lines if not l.startswith(('s_barrier', 's_waitcnt vmcnt'))]
    if ab & 32: lines = [l for l in lines if not l.startswith('s_barrier')]
    return lines

def dispatch(w):
    x = 'bcde'[w]
    return [f's_cmp_eq_u32 {s(sE)}, 2', f's_cbranch_scc1 L_{x}3', f's_cmp_eq_u32 {s(sE)}, 1', f's_cbranch_scc1 L_{x}2',
            f's_cmp_eq_u32 {s(sE)}, 3', f's_cbranch_scc1 L_{x}0', f's_cmp_eq_u32 {s(sNP)}, 4', 's_cbranch_scc1 L_tail']
def wave_select():
    if NCOPY == 1: return []
    if NCOPY == 2:
        return [f's_cmp_eq_u32 {s(sE2)}, 6', 's_cbranch_scc1 L_c3', f's_cmp_gt_u32 {s(sE2)}, 3', 's_cbranch_scc1 L_w1']
    return [x for w in (1, 2, 3) for x in (f's_cmp_eq_u32 {s(sW)}, {w}', f's_cbranch_scc1 L_w{w}')]
def loop_copy(w, pend):
    x = 'bcde'[w]
    out = [f'L_w{w}:'] + dispatch(w) + ['.p2align 6']
    for sl in (1, 2, 3, 0):
        l, pend2 = add_lgkm_waits(body(sl, w), pend)
        assert [x_[0] for x_ in pend2] == [x_[0] for x_ in pend]
        out += [f'L_{x}{sl}:'] + l
    return out + [f's_cbranch_scc0 L_{x}1', 's_branch L_tail']

def loop_code():
    _, pend = add_lgkm_waits(body(1))
    out = ['s_branch L_b1', 'L_padA:', 's_branch L_ret'] if OPT['touch'] else []
    out += ['.p2align 6']
    for sl in (1, 2, 3, 0):
        l, pend2 = add_lgkm_waits(body(sl), pend)
        assert [x[0] for x in pend2] == [x[0] for x in pend]
        out += [f'L_b{sl}:']
        if OPT.get('its'):
            for k in range(3):
                out += [f's_cmp_eq_u32 {s(sLN)}, {OPT["its"] + k * OPT.get("itd", 1)}', f's_cbranch_scc0 L_sk{sl}{k}', f's_mem{"real" if OPT.get("rt") else ""}time {s(sST+2+2*k,2)}', f'L_sk{sl}{k}:']
        out += l
        if OPT['touch'] and sl == 2: out += ['L_padB:', 's_cbranch_vccnz L_ret']
    return out + ['s_cbranch_scc0 L_b1'], pend

def EP(q): return OPT.get(f'ep{q}', OPT['ep'])
def epi_list(q, first):
    t = T0 + 2 * (q & 1)
    o = O0 + 32*q
    L = [('H', f'v_accvgpr_read_b32 {v(t)}, {a(aL+4*q)}', -1),
         ('H', f'v_accvgpr_read_b32 {v(t+1)}, {a(aL+4*q+1)}', -1),
         ('H', f'v_add_f32 {v(t)}, {v(t)}, {v(t+1)}', -1),
         ('E', f'v_rcp_f32 {v(t+1)}, {v(t)}', -1),
         ('H', f'v_subrev_u32 {v(t)}, 0x2b800000, {v(t)}', -1),
         ('H', f'v_mov_b32 {v(T0+4)}, {v(t)}' if first else f'v_max_u32 {v(T0+4)}, {v(T0+4)}, {v(t)}', -1)]
    def muls(u): return [('M', (o + 8*u + i, t + 1), u) for i in range(8)]
    def cvts(u): return [('H', f'v_cvt_pk_bf16_f32 {v(o+8*u+i)}, {v(o+8*u+2*i)}, {v(o+8*u+2*i+1)}', u) for i in range(4)]
    def swaps(u): return [('E', f'v_permlane16_swap_b32 {v(o+8*u+i)}, {v(o+8*u+2+i)}', u) for i in range(2)]
    def store(u):
        if OPT['urot']: return [('D', f'buffer_store_dwordx4 {v(o+8*u,4)}, {v(BT+u)}, s[16:19], {qoff(q)} offen{FL[OPT.get(f"of{q}", OPT["of"])]}', u)]
        return [('D', f'buffer_store_dwordx4 {v(o+8*u,4)}, {v(OV)}, s[16:19], {qoff(q)} offen offset:{64*u}{FL[OPT.get(f"of{q}", OPT["of"])]}', u)]
    if EP(q) == 2:
        def writes(u): return [('W' if OPT['wcls'] else 'T', f'ds_write_b64 {v(EW)}, {v(o+8*u+2*i,2)} offset:{64*u+32*i}', u) for i in range(2)]
        def reads(hb): return [('R', f'ds_read_b128 {v(o+16*hb+8*j+4,4)}, {v(ER)} offset:{3200*j+128*hb}', 2*hb+1) for j in range(2)]
        def stores(hb): return [('D', f'buffer_store_dwordx4 {v(o+16*hb+8*j+4,4)}, {v(EG)}, s[16:19], {qoff(q)} offen offset:{2048*j+128*hb}{FL[OPT.get(f"of{q}", OPT["of"])]}', 2*hb+1) for j in range(2)]
        w = lambda u: muls(u) + cvts(u) + writes(u)
        return L + w(0) + w(1) + reads(0) + muls(2) + cvts(2) + stores(0)[:1] + writes(2) + muls(3) + stores(0)[1:] + cvts(3) + writes(3) + reads(1) + stores(1)
    if EP(q):
        def writes(u): return [('T', f'ds_write_b64 {v(EW)}, {v(o+8*u+2*i,2)} offset:{64*u+32*i}', u) for i in range(2)]
        for u in range(4): L += muls(u) + cvts(u) + writes(u)
        L += [('R', f'ds_read_b128 {v(o+8*p+4,4)}, {v(ER)} offset:{1088*p}', 3) for p in range(4)]
        L += [('D', f'buffer_store_dwordx4 {v(o+8*p+4,4)}, {v(EG)}, s[16:19], {qoff(q)} offen offset:{1024*p}{FL[OPT.get(f"of{q}", OPT["of"])]}', 3) for p in range(4)]
        return L
    h = lambda l, a_, b_: l[a_:b_]
    L += muls(0) + cvts(0) + h(muls(1), 0, 2) + swaps(0) + store(0) + h(muls(1), 2, 8) + cvts(1) + h(muls(2), 0, 2) + swaps(1) + store(1) \
       + h(muls(2), 2, 8) + cvts(2) + h(muls(3), 0, 2) + swaps(2) + store(2) + h(muls(3), 2, 8) + cvts(3) + [('H', 's_nop 1', 3)] + swaps(3) + store(3)
    return L

def final(q, items):
    return [sm(q, pb) for pb, vb, nk in items] + [pv(q, db, ks, pb, vb) for db in range(8) for pb, vb, nk in items for ks in range(nk)]

def tail_merged():
    P = Prog(); G = P.group
    k3 = lambda q, sb: qkg(q, 1, sb=sb, kbase=aX, mask=True)
    fin = lambda q, pb: final(q, [(q, None, 2), (pb, 'ov', 1)])
    order = {0: 'q0 p2 p3 r0 r1 q1 f0 q2 r2 f1 q3 r3 f2 f3', 1: 'q0 p2 p3 r0 r1 q1 f0 r2 q2 f1 r3 q3 f2 f3',
             3: 'q0 p2 p3 r0 r1 q1 f0 r2 q2 f1 r3 f2 q3 x3 f3', 5: 'q0 p2 p3 r0 r1 f0 q1 r2 q2 f1 r3 q3 f2 f3',
             6: 'q0 p2 p3 r0 r1 f0 q1 r2 q2 f1 r3 f2 q3 x3 f3', 7: 'q0 p2 r0 p3 r1 f0 q1 r2 q2 f1 r3 q3 f2 f3',
             8: 'q0 p2 r0 p3 f0 r1 q1 r2 q2 f1 r3 q3 f2 f3', 9: 'q0 p2 r0 p3 r1 f0 q1 r2 q2 f1 r3 f2 q3 x3 f3',
             10: 'q0 p2 r0 p3 r1 f0 q1 q2 r2 f1 r3 f2 q3 x3 f3'}[OPT['tord']].split()
    for nm in order:
        q = int(nm[1])
        G(nm, {'q': lambda: qkg(q), 'p': lambda: pvg(q), 'r': lambda: k3(q, (q + 2) % 4), 'x': lambda: final(q, [((q + 2) % 4, 'ov', 1)]),
               'f': lambda: final(q, [(q, None, 2)]) if f'x{q}' in order else fin(q, (q + 2) % 4)}[nm[0]]())
    P.done(); p = P.pos
    bar2 = p['p3'] + OPT.get('b2', 8)
    P.softmax('left', -1, 3, 3, only=LEFT3)
    for q in range(4):
        P.softmax(f's{q}', p[f'q{q}'], q, q, use=p[f'f{q}'])
        P.softmax(f't{q}', p[f'r{q}'], (q + 2) % 4, (q + 2) % 4, 1, use=p.get(f'x{q}', p[f'f{q}']))
    P.kload('k3', p['r0'], 2, 'T3', 1, kbase=aX, rel0=2); P.vload('v2', p['f0'], 1, 'T2', rel0=2)
    P.vload('v3', p['f0'], 2, 'T3', 1, 'ov', rel0=bar2 + 1)
    g = P.gaps
    g[0].sc.append('s_waitcnt vmcnt(8)'); g[1].sc.append('s_barrier'); g[1].block = 'all'
    g[bar2 - 1].sc.append('s_waitcnt vmcnt(4)'); g[bar2].sc.append('s_barrier'); g[bar2].block = 'all'
    return P

def tail_y():
    P = Prog(); G = P.group
    G('q0', qkg(0)); G('p2', pvg(2)); G('p3', pvg(3)); G('q1', qkg(1)); G('f0', final(0, [(0, None, 2)]))
    G('q2', qkg(2)); G('f1', final(1, [(1, None, 2)])); G('r3', qkg(3, 1, sb=0, kbase=aX, mask=True)); G('q3', qkg(3))
    if OPT['tord'] == 2: G('x3', final(3, [(0, 'ov', 1)])); G('f2', final(2, [(2, None, 2)])); G('f3', final(3, [(3, None, 2)]))
    else: G('f2', final(2, [(2, None, 2)])); G('f3', final(3, [(3, None, 2), (0, 'ov', 1)]))
    P.done(); p = P.pos
    P.softmax('left', -1, 3, 3, only=LEFT3)
    for q in range(4): P.softmax(f's{q}', p[f'q{q}'], q, q, use=p[f'f{q}'])
    P.softmax('t3', p['r3'], 0, 0, 1)
    P.vload('v2', p['f0'], 1, 'T2', rel0=2)
    g = P.gaps
    g[0].sc.append('s_waitcnt vmcnt(8)'); g[1].sc.append('s_barrier'); g[1].block = 'all'
    return P

def tail_x():
    P = Prog(); G = P.group
    G('A1', qkg(0, sb=0)); G('A2', pvg(2)); G('A3', qkg(1, sb=1)); G('A4', pvg(3)); G('A5', qkg(0, sb=2))
    if OPT['tord'] < 2: G('A6', qkg(1, sb=3))
    G('A7', pvg(0, pb=0)); G('A8', pvg(1, pb=1)); G('A10', final(0, [(2, None, 2)]))
    if OPT['tord'] == 2: G('A6', qkg(1, sb=3))
    G('B1', qkg(2, sb=2)); G('A11', final(1, [(3, None, 2)])); G('B2', qkg(3, sb=3)); G('B3', qkg(2, sb=0))
    G('r3', qkg(3, 1, sb=1, kbase=aX, mask=True)); G('B4', pvg(2, pb=2)); G('B5', pvg(3, pb=3))
    if OPT['tord']:
        G('B8', final(2, [(0, None, 2)])); G('B6', qkg(3, sb=1)); G('x3', final(3, [(3, 'ov', 1)])); G('B9', final(3, [(1, None, 2)]))
    else:
        G('B6', qkg(3, sb=1)); G('B8', final(2, [(0, None, 2)])); G('B9', final(3, [(1, None, 2), (3, 'ov', 1)]))
    P.done(); p = P.pos
    bar2 = p['A5'] + 6
    P.softmax('left', -1, 3, 3, only=LEFT3)
    P.softmax('s10', p['A1'], 0, 0); P.softmax('s11', p['A3'], 1, 1); P.softmax('s20', p['A5'], 2, 2); P.softmax('s21', p['A6'], 3, 3)
    P.softmax('s12', p['B1'], 2, 2); P.softmax('s13', p['B2'], 3, 3); P.softmax('s22', p['B3'], 0, 0); P.softmax('s23', p['B6'], 1, 1)
    P.softmax('t3', p['r3'], 1, 3, 1, use=p['B8'])
    P.kload('k2', p['A5'], 2, 'T2', rel0=2); P.vload('v1', p['A7'], 1, 'T1', rel0=2); P.vload('v2', p['A10'], 2, 'T2', rel0=bar2 + 1)
    P.kload('k1b', p['B1'], 1, 'T1'); P.kload('k2b', p['B3'], 2, 'T2'); P.vload('v1b', p['B4'], 1, 'T1'); P.vload('v2b', p['B8'], 2, 'T2')
    g = P.gaps
    g[0].sc.append('s_waitcnt vmcnt(8)'); g[1].sc.append('s_barrier'); g[1].block = 'all'
    g[bar2 - 1].sc.append('s_waitcnt vmcnt(4)'); g[bar2].sc.append('s_barrier'); g[bar2].block = 'all'
    if OPT.get('otlb') == 2:
        P.ops.append(Op(('ot', 0), 'D', bar2 + 2, bar2 + 2, f'buffer_load_dword {v(BT)}, {v(OV)}, s[16:19], 0 offen sc1'))
    return P

def tail_pairs(nkb):
    nks = 1 if nkb <= 2 else 2
    small = nkb <= 2
    vx = aX if small else None
    P = Prog()
    G = P.group
    G('A1', qkg(0, sb=0)); G('A2', pvg(2)); G('A3', qkg(1, sb=1)); G('A4', pvg(3))
    G('A5', qkg(0, sb=2)); G('A6', qkg(1, sb=3)); G('A7', pvg(0, pb=0))
    if not small: G('A8', pvg(1, pb=1))
    G('A9a', qkg(0, nkb, sb=0, mask=True)); G('A9b', qkg(1, nkb, sb=1, mask=True))
    if small:
        G('A8', pvg(1, pb=1))
        G('A10', final(0, [(2, None, 2), (0, vx, 1)])); G('B1', qkg(2, sb=2)); G('A11', final(1, [(3, None, 2), (1, vx, 1)]))
        G('B2', qkg(3, sb=3)); G('B3', qkg(2, sb=0)); G('B4', pvg(2, pb=2))
        G('B7a', qkg(2, nkb, sb=2, kbase=aQ, mask=True)); G('B7b', qkg(3, nkb, sb=3, kbase=aQ, mask=True)); G('B5', pvg(3, pb=3))
        if OPT['tord']:
            G('B8', final(2, [(0, None, 2), (2, vx, 1)])); G('B6', qkg(3, sb=1))
            G('B9a', final(3, [(3, vx, 1)])); G('B9', final(3, [(1, None, 2)]))
        else:
            G('B6', qkg(3, sb=1))
            G('B8', final(2, [(0, None, 2), (2, vx, 1)])); G('B9', final(3, [(1, None, 2), (3, vx, 1)]))
    else:
        G('A10p', pvg(0, pb=2)); G('A11p', pvg(1, pb=3)); G('B1', qkg(2, sb=2))
        G('A10', final(0, [(0, None, 2)])); G('A11', final(1, [(1, None, 2)]))
        G('B2', qkg(3, sb=3)); G('B3', qkg(2, sb=0)); G('B4', pvg(2, pb=2)); G('B5', pvg(3, pb=3)); G('B6', qkg(3, sb=1))
        G('B8p', pvg(2, pb=0)); G('B7a', qkg(2, nkb, sb=2, mask=True)); G('B9p', pvg(3, pb=1)); G('B7b', qkg(3, nkb, sb=3, mask=True))
        G('B8', final(2, [(2, None, 2)])); G('B9', final(3, [(3, None, 2)]))
    P.done(); p = P.pos
    bar2 = p['A6'] + 10
    P.softmax('left', -1, 3, 3, only=LEFT3)
    P.softmax('s10', p['A1'], 0, 0); P.softmax('s11', p['A3'], 1, 1); P.softmax('s20', p['A5'], 2, 2); P.softmax('s21', p['A6'], 3, 3)
    P.softmax('s30', p['A9a'], 0, 0, nkb); P.softmax('s31', p['A9b'], 1, 1, nkb, use=p['A10'])
    P.softmax('s12', p['B1'], 2, 2); P.softmax('s13', p['B2'], 3, 3); P.softmax('s22', p['B3'], 0, 0); P.softmax('s23', p['B6'], 1, 1)
    P.softmax('s32', p['B7a'], 2, 2, nkb); P.softmax('s33', p['B7b'], 3, 3, nkb, use=p['B8'])
    P.kload('k2', p['A5'], 2, 'T2', rel0=2); P.vload('v1', p['A7'], 1, 'T1', rel0=2)
    P.kload('k3', p['A9a'], 3, 'T3', nkb, rel0=bar2 + 1)
    P.kload('k1b', p['B1'], 1, 'T1'); P.kload('k2b', p['B3'], 2, 'T2'); P.vload('v1b', p['B4'], 1, 'T1')
    if small:
        P.vload('v2', p['A10'], 2, 'T2', rel0=bar2 + 1); P.vload('v3', p['A10'], 3, 'T3', 1, vx, rel0=bar2 + 1)
        P.kload('k3b', p['B7a'], 3, 'T3', nkb, kbase=aQ); P.vload('v2b', p['B8'], 2, 'T2')
    else:
        P.vload('v2', p['A10p'], 2, 'T2', rel0=bar2 + 1); P.vload('v3', p['A10'], 3, 'T3')
        P.kload('k3b', p['B7a'], 3, 'T3', nkb); P.vload('v2b', p['B8p'], 2, 'T2'); P.vload('v3b', p['B8'], 3, 'T3')
    for i in range(4):
        P.ops.append(Op(('d', i), 'D', 10 + 4*i, 11 + 4*i, i_dma(1, i, SETS[1], 'T3')))
    g = P.gaps
    g[0].sc.append('s_waitcnt vmcnt(8)'); g[1].sc.append('s_barrier'); g[1].block = 'all'
    g[8].sc.append(i_m0(1, 3))
    g[bar2 - 1].sc.append('s_waitcnt vmcnt(0)'); g[bar2].sc.append('s_barrier'); g[bar2].block = 'all'
    return P

def tail(nkb, pend):
    P = {3: tail_merged, 4: tail_x, 5: tail_y}[OPT['tv']]() if nkb == 1 and OPT['tv'] >= 3 else tail_pairs(nkb)
    p = P.pos
    prev = None
    if OPT['urot']:
        for i, x in enumerate([f'v_or_b32 {v(BT)}, {s(sY)}, {v(OV)}'] + [f'v_xor_b32 {v(BT+u)}, {64*u}, {v(BT)}' for u in (1, 2, 3)]):
            o = Op(('su', i), 'H', 24, INF, x, fifo=prev, pri=60 + i); prev = o.key; P.ops.append(o)
    if any(EP(q) for q in range(4)):
        t = T0
        setup = [f'v_mbcnt_lo_u32_b32 {v(t)}, -1, 0', f'v_mbcnt_hi_u32_b32 {v(t)}, -1, {v(t)}',
                 f'v_and_b32 {v(t+1)}, 15, {v(t)}', f'v_lshrrev_b32 {v(t+2)}, 4, {v(t)}',
                 f'v_mul_u32_u24 {v(EW)}, 272, {v(t+1)}', f'v_lshl_add_u32 {v(EW)}, {v(t+2)}, 3, {v(EW)}',
                 f'v_mul_u32_u24 {v(ER)}, 272, {v(t+2)}', f'v_lshl_add_u32 {v(ER)}, {v(t+1)}, 4, {v(ER)}',
                 f'v_add_u32 {v(EW)}, {s(sT+3)}, {v(EW)}', f'v_add_u32 {v(ER)}, {s(sT+3)}, {v(ER)}',
                 f'v_lshlrev_b32 {v(EG)}, 4, {v(t)}', f'v_add_u32 {v(EG)}, {s(sT+4)}, {v(EG)}']
        if max(EP(q) for q in range(4)) == 2:
            setup = setup[:4] + [f'v_mul_u32_u24 {v(EW)}, 400, {v(t+1)}', f'v_lshl_add_u32 {v(EW)}, {v(t+2)}, 3, {v(EW)}',
                     f'v_lshrrev_b32 {v(t+1)}, 3, {v(t)}', f'v_and_b32 {v(t+2)}, 7, {v(t)}',
                     f'v_mul_u32_u24 {v(ER)}, 400, {v(t+1)}', f'v_lshl_add_u32 {v(ER)}, {v(t+2)}, 4, {v(ER)}',
                     f'v_add_u32 {v(EW)}, {s(sT+3)}, {v(EW)}', f'v_add_u32 {v(ER)}, {s(sT+3)}, {v(ER)}',
                     f'v_lshlrev_b32 {v(EG)}, 8, {v(t+1)}', f'v_lshl_add_u32 {v(EG)}, {v(t+2)}, 4, {v(EG)}', f'v_add_u32 {v(EG)}, {s(sT+4)}, {v(EG)}']
        for i, x in enumerate(setup):
            o = Op(('su', i), 'H', 24, INF, x, fifo=prev, pri=100 + i); prev = o.key; P.ops.append(o)
    laststore = None
    for q in range(4):
        lrel = P.last_write(AR(aL + 4*q, 4), INF) + 5
        nst = 0
        for i, (c, t, u) in enumerate(epi_list(q, q == 0)):
            rel = lrel if u < 0 else max(lrel, P.last_write(VR(O0 + 32*q + 8*u, 8), INF) + 5)
            fin = P.last_write(VR(O0 + 32*q, 32), INF) + 5
            edl = OPT.get(f'edl{q}', OPT.get('edl', INF))
            nst += c == 'D'
            free = c == 'D' and not EP(q) and OPT['ssp0'] > 0
            dl = INF if edl >= INF else fin + edl + (LAT + OPT['ssp'] * (nst - 1) if c == 'D' and EP(q) == 1 else LAT if c == 'D' and EP(q) == 2 and nst > 2 else 0)
            if free: dl = INF
            o = Op(('ep', q, i), {'M': 'H'}.get(c, c), rel, dl if dl < P.n - 1 else INF,
                   f'v_mul_f32 {v(t[0])}, {v(t[1])}, {v(t[0])}' if c == 'M' else t,
                   fifo=laststore if free else prev, deps=[prev] if free else (), pri=-INF if free else rel + OPT['epri'] + i // 2)
            o.raw = (c, t); P.ops.append(o)
            if free: laststore = o.key
            else: prev = o.key
            if c != 'D': lastnd = o.key
        if EP(q): prev = lastnd
    g = P.gaps
    todo = schedule(P.n, P.ops, g, overflow=True)
    if OPT.get('ts'):
        names = {1: ('A5', 'A10', 'B2'), 2: ('B4', 'B8', 'B9'), 3: ('A2', 'A7', 'A11')}[OPT['ts']] if 'A5' in p else {1: ('p3', 'f0', 'f1'), 2: ('q3', 'f2', 'f3')}[OPT['ts']]
        for k, nm in enumerate(names): g[p[nm]].sc += stamp(1 + k)
        if nkb == 1: print('stamp mfma idx', [p[nm] for nm in names], p)
    if OPT['pkd']:
        import re
        for gp in g:
            if sum(x.startswith('v_mul_f32') for x in gp.post) < OPT['pkd']: continue
            out = []; i = 0
            while i < len(gp.post):
                m = re.match(r'v_mul_f32 v(\d+), v(\d+),', gp.post[i])
                if m and int(m.group(1)) % 2 == 0 and i + 1 < len(gp.post) and gp.post[i+1].startswith(f'v_mul_f32 v{int(m.group(1))+1},'):
                    out.append(f'v_pk_mul_f32 {v(int(m.group(1)),2)}, {v(int(m.group(1)),2)}, {v(int(m.group(2))-1,2)} op_sel:[0,1] op_sel_hi:[1,1]'); i += 2
                else: out.append(gp.post[i]); i += 1
            gp.post = out
    lines = emit(P.mf, g)
    assert all(o.key[0] == 'ep' for o in todo), [o.key for o in todo]
    i = 0
    while i < len(todo):
        c, t = todo[i].raw
        if c == 'M' and i + 1 < len(todo) and todo[i+1].raw[0] == 'M' and t[0] % 2 == 0 and todo[i+1].raw[1][0] == t[0] + 1:
            lines.append(f'v_pk_mul_f32 {v(t[0],2)}, {v(t[0],2)}, {v(t[1]-1,2)} op_sel:[0,1] op_sel_hi:[1,1]'); i += 2
        else:
            lines.append(todo[i].text); i += 1
    lines, _ = add_lgkm_waits(lines, pend)
    return lines

def scale_q(q):
    out = []
    for h in range(0, 16, 4):
        for i in range(4):
            x = S0 + 16*q + h + i; t = T0 + 2*i
            out += [f'v_lshlrev_b32 {v(t)}, 16, {v(x)}', f'v_and_b32 {v(t+1)}, 0xffff0000, {v(x)}']
        out += [f'v_pk_mul_f32 {v(T0+2*i,2)}, {v(T0+2*i,2)}, {s(sC,2)}' for i in range(4)]
        out += [f'v_cvt_pk_bf16_f32 {v(S0+16*q+h+i)}, {v(T0+2*i)}, {v(T0+2*i+1)}' for i in range(4)]
        out += [f'v_accvgpr_write_b32 {a(aQ+16*q+h+i)}, {v(S0+16*q+h+i)}' for i in range(4)]
    return out
def qread(q): return [f'ds_read_b128 {v(S0+16*q+4*ks,4)}, {v(QA+ks)} offset:{(q&1)*0x4000}' for ks in range(4)] + ['s_waitcnt lgkmcnt(0)']
def qload(q):
    return [f's_add_u32 m0, {s(sMK)}, {0x20000 + (q&1)*0x4000}', 's_nop 0'] + \
           [f'buffer_load_dwordx4 {v(QD+p)}, s[4:7], {qoff(q)} offen offset:{1024*p}{FL[OPT["qf"]]} lds ; ld Q{q}' for p in range(4)]
def dma4(isv, tile):
    return [f's_add_u32 m0, {s(sMV if isv else sMK)}, {s(sSL+tile)}', 's_nop 0'] + [i_dma(isv, i, 40 + 4*tile, tile) for i in range(4)]
def btprep(tile):
    out = []
    for i in range(4):
        r = 40 + 4*tile + i
        out.append(f's_min_u32 {s(r)}, {s(r)}, 131')
        out.append(f's_lshl_b32 {s(r)}, {s(r)}, 16')
        if i < 3: out.append(f's_or_b32 {s(r)}, {s(r)}, {(3-i)*1024}')
    return out

def resolve_waitvm(lines):
    out = []; vm = []
    for l in lines:
        if l.startswith('WAITVM'):
            tags = l.split(None, 1)[1].split('|')
            last = max(i for i, t in enumerate(vm) if t in tags)
            wb = {1: ('ld Q0', 'ld Q1'), 2: ('ld Q2', 'ld Q3'), 3: ('dma K 0', 'dma V 0'), 4: ('ld BT', 'ld BT')}.get(OPT.get('wb'), ())
            st_ = lambda i: [f's_memtime {s(sST+2*i,2)}']
            if tags[0] in wb: out += st_(1 + 2*wb.index(tags[0]))
            out.append(f's_waitcnt vmcnt({len(vm) - 1 - last}) ; {tags}')
            if tags[0] in wb: out += st_(2 + 2*wb.index(tags[0]))
        else:
            if l.startswith(('buffer_', 'global_')): vm.append(l.split(';')[1].strip() if ';' in l else '')
            out.append(l)
    return out

def prologue():
    t = T0
    L = ([f's_mov_b32 s83, {OPT["twice"]}', 'L_again:'] if OPT.get('twice') else []) + ['s_cmp_ge_u32 s2, 256', 's_cbranch_scc1 L_end',
         's_load_dwordx8 s[24:31], s[0:1], 0', 's_load_dwordx4 s[32:35], s[0:1], 32']
    L += [f's_lshr_b32 {s(sT+1)}, s2, 3']
    if OPT['cpf']:
        L += ['s_getpc_b64 s[8:9]', 'L_pc:', f's_lshl_b32 s10, {s(sT+1)}, 10', 'v_lshl_add_u32 v2, v0, 2, s10', 'v_mov_b32 v3, 0',
              'v_lshl_add_u64 v[2:3], v[2:3], 0, s[8:9]', f'global_load_dword {v(T0+7)}, v[2:3], off']
    L += stamp(0) + (['s_memrealtime s[100:101]'] if OPT['stamp'] else [])
    L += [f'v_lshrrev_b32 {v(t)}, 6, v0',
          f'v_and_b32 {v(t+2)}, 15, v0',
          f'v_readfirstlane_b32 {s(sW)}, {v(t)}',
          f'v_bfe_u32 {v(t+3)}, v0, 4, 2',
          f's_and_b32 {s(sT)}, s2, 7'] + ([f's_lshl_b32 {s(sT)}, {s(sT)}, 5', f's_add_u32 {s(sT)}, {s(sT)}, {s(sT+1)}'] if not OPT['hmap'] else
          [f's_lshl_b32 {s(sT)}, {s(sT)}, 4', f's_and_b32 {s(sT+2)}, {s(sT+1)}, 15', f's_add_u32 {s(sT)}, {s(sT)}, {s(sT+2)}', f's_and_b32 {s(sT+2)}, s2, 128', f's_add_u32 {s(sT)}, {s(sT)}, {s(sT+2)}']) + [ f's_lshl_b32 {s(sT+1)}, {s(sT)}, 16',
          f'v_lshl_add_u32 {v(t+4)}, {v(t)}, {WSH-8}, {v(t+3)}', f'v_xor_b32 {v(t+5)}, {v(t+2)}, {v(t+3)}',
          f'v_lshl_add_u32 {v(QD)}, {v(t+4)}, 4, {v(t+5)}', f'v_lshlrev_b32 {v(QD)}, 4, {v(QD)}',
          f's_lshl_b32 {s(sMK)}, {s(sW)}, 12'] + \
         {0: [], 1: [f's_mov_b32 {s(sQ0)}, {s(sMK)}'],
          2: [f's_add_u32 {s(sQ0)}, {s(sT)}, {s(sW)}', f's_and_b32 {s(sQ0)}, {s(sQ0)}, 3', f's_lshl_b32 {s(sQ0)}, {s(sQ0)}, 12'],
          3: [f's_and_b32 {s(sQ0)}, {s(sT)}, 3', f's_lshl_b32 {s(sQ0)}, {s(sQ0)}, 12'],
          4: [f's_and_b32 {s(sQ0)}, {s(sT)}, 3', f's_lshl_b32 {s(sQ0)}, {s(sQ0)}, 14'],
          5: [f's_mov_b32 {s(sQ0)}, 0'],
          6: [f's_add_u32 {s(sQ0)}, {s(sT)}, {s(sW)}', f's_and_b32 {s(sQ0)}, {s(sQ0)}, 3', f's_lshl_b32 {s(sQ0)}, {s(sQ0)}, 14']}[OPT['rot']] + [
          f'v_xor_b32 {v(QD+1)}, 64, {v(QD)}', f'v_xor_b32 {v(QD+2)}, 0x80, {v(QD)}',
          f'v_xor_b32 {v(QD+3)}, 64, {v(QD+2)}', 's_mov_b32 s6, 0x10000', 's_mov_b32 s7, 0x20000', qload(0)[0],
          's_waitcnt lgkmcnt(0)',
          f's_add_u32 s4, s24, {s(sT+1)}', 's_addc_u32 s5, s25, 0',
          f's_load_dword {s(sCL)}, s[32:33], 0', 's_load_dwordx16 s[40:55], s[30:31], 0']
    L += qload(0)[2:]
    if OPT['cpf'] and NCOPY > 2:
        L += ['s_mov_b64 s[8:9], 0x8000', 'v_lshl_add_u64 v[2:3], v[2:3], 0, s[8:9]', f'global_load_dword {v(T0+7)}, v[2:3], off']
    L += [f'v_and_b32 {v(t+1)}, 63, v0', f'v_lshlrev_b32 {v(t+6)}, 4, {v(t+1)}',
          's_mov_b32 s20, s30', 's_mov_b32 s21, s31', 's_movk_i32 s22, 0x200', 's_mov_b32 s23, 0x20000',
          f'buffer_load_dwordx4 {v(BT,4)}, {v(t+6)}, s[20:23], 0 offen ; ld BT',
          f's_lshr_b32 {s(sT)}, {s(sT)}, 4', f's_lshl_b32 {s(sT)}, {s(sT)}, 8',
          f's_add_u32 s8, s26, {s(sT)}', 's_addc_u32 s9, s27, 0', 's_sub_u32 s8, s8, 3072', 's_subb_u32 s9, s9, 0',
          f's_sub_u32 s10, {KBYTES+3072}, {s(sT)}', 's_mov_b32 s11, 0x20000',
          f'v_lshl_add_u32 {v(t+4)}, {v(t)}, 2, {v(t+3)}',
          f'v_xor_b32 {v(t+6)}, {v(t+2)}, {v(t+4)}', f'v_lshlrev_b32 {v(t+6)}, 4, {v(t+6)}',
          f'v_lshl_add_u32 {v(DK)}, {v(t+4)}, 12, {v(t+6)}',
          f'v_and_b32 {v(t+6)}, 7, {v(t+4)}', f'v_lshlrev_b32 {v(t+6)}, 1, {v(t+6)}',
          f'v_xor_b32 {v(t+6)}, {v(t+2)}, {v(t+6)}', f'v_lshlrev_b32 {v(t+6)}, 4, {v(t+6)}',
          f'v_lshl_add_u32 {v(DV)}, {v(t+4)}, 12, {v(t+6)}',
          ] + ([x for q in range(1, 4) for x in (f's_add_u32 {s(sQ1+q-1)}, {s(sQ0)}, {q << QSH}', f's_and_b32 {s(sQ1+q-1)}, {s(sQ1+q-1)}, {3 << QSH}')] if OPT['rot'] else
               [f's_movk_i32 {s(sQ1)}, 0x1000', f's_movk_i32 {s(sQ1+1)}, 0x2000', f's_movk_i32 {s(sQ1+2)}, 0x3000']) + [
          f's_add_u32 s12, s28, {s(sT)}', 's_addc_u32 s13, s29, 0', 's_sub_u32 s12, s12, 3072', 's_subb_u32 s13, s13, 0',
          's_mov_b32 s14, s10', 's_mov_b32 s15, 0x20000',
          f's_add_u32 s16, s34, {s(sT+1)}', 's_addc_u32 s17, s35, 0', 's_mov_b32 s18, 0x10000', 's_mov_b32 s19, 0x20000',
          f's_add_u32 {s(sMV)}, {s(sMK)}, 0x10000', f's_mov_b32 {s(sC)}, 0x3e0293ee',
          's_waitcnt lgkmcnt(0)'] + stamp(1)
    L += [f's_cmp_lt_i32 {s(sCL)}, 1', f's_cselect_b32 {s(sC)}, 0, {s(sC)}', f's_cselect_b32 {s(sCL)}, 0x800, {s(sCL)}',
          f's_min_u32 {s(sCLT)}, {s(sCL)}, 0x800', f's_max_u32 {s(sCL)}, {s(sCLT)}, {MINCL}',
          f's_add_u32 {s(sN)}, {s(sCL)}, 63', f's_lshr_b32 {s(sN)}, {s(sN)}, 6',
          f's_mov_b32 {s(sNP)}, {s(sN)}']
    if OPT['tv'] in (3, 5):
        L += [f's_sub_u32 {s(sNP)}, {s(sCL)}, 1', f's_and_b32 {s(sNP)}, {s(sNP)}, 63', f's_cmp_lt_u32 {s(sNP)}, 16', f's_addc_u32 {s(sNP)}, {s(sN)}, 0']
    L += [f's_sub_u32 {s(sE)}, 0, {s(sNP)}', f's_and_b32 {s(sE)}, {s(sE)}, 3', f's_lshl_b32 {s(sSL)}, {s(sE)}, 14']
    L += btprep(0) + dma4(0, 0) + qload(1)
    if OPT.get('otlb') == 1:
        L += [f'buffer_load_dword {v(O0+8)}, {v(QD)}, s[16:19], 0 offen sc1 ; ld O']
    L += [f's_mov_b32 {s(sC2)}, {s(sC)}',
          f's_cmp_lt_u32 {s(sCLT)}, {4096 if OPT["forceslow"] else MINCL}', f's_cselect_b32 {s(sFORCE)}, 1, 0',
          f's_add_u32 {s(sIT)}, {s(sNP)}, {s(sE)}', f's_lshr_b32 {s(sIT)}, {s(sIT)}, 2', f's_sub_u32 {s(sIT)}, {s(sIT)}, 2']
    for i in range(1, 4):
        L += [f's_add_u32 {s(sSL+i)}, {s(sSL)}, {i*0x4000}', f's_and_b32 {s(sSL+i)}, {s(sSL+i)}, 0xc000']
    L += [f's_sub_u32 {s(sT)}, {s(sN)}, 1', f's_lshl_b32 {s(sT)}, {s(sT)}, 6', f's_sub_u32 {s(sT)}, {s(sCL)}, {s(sT)}',
          f's_add_u32 {s(sNKB)}, {s(sT)}, 15', f's_lshr_b32 {s(sNKB)}, {s(sNKB)}, 4',
          f's_sub_u32 {s(sT)}, {s(sT)}, 1', f's_and_b32 {s(sT)}, {s(sT)}, 15',
          f's_and_b32 {s(sT+1)}, {s(sE)}, 1', f's_sub_u32 {s(sT+1)}, 4, {s(sT+1)}', f's_sub_u32 {s(sT+2)}, 7, {s(sT+1)}',
          f's_mov_b32 {s(sLN)}, 5', f's_bfe_u32 {s(sE2)}, {s(sW)}, {0x10000 + max(OPT["stag"], 1) - 1:#x}', f's_lshl2_add_u32 {s(sE2)}, {s(sE2)}, {s(sE)}',
          f's_lshl_b32 {s(sT+3)}, {s(sW)}, 13', f's_add_u32 {s(sT+3)}, {s(sT+3)}, 0x20000', f's_lshl_b32 {s(sT+4)}, {s(sW)}, {WSH}']
    L += [f'v_lshrrev_b32 {v(t+4)}, 2, {v(t+2)}', f'v_lshlrev_b32 {v(t+4)}, 4, {v(t+4)}',
          f'v_and_b32 {v(t+6)}, 3, {v(t+2)}', f'v_add_u32 {v(t+4)}, {v(t+4)}, {v(t+6)}', f'v_lshlrev_b32 {v(t+4)}, 8, {v(t+4)}',
          f'v_lshlrev_b32 {v(t+6)}, 12, {v(t)}', f'v_lshl_add_u32 {v(t+6)}, {v(t+2)}, 8, {v(t+6)}', f'v_add_u32 {v(t+6)}, 0x20000, {v(t+6)}']
    for ks in range(4):
        L += [f'v_xor_b32 {v(MK)}, {4*ks}, {v(t+5)}', f'v_lshl_add_u32 {v(KA+ks)}, {v(MK)}, 4, {v(t+4)}',
              f'v_lshl_add_u32 {v(QA+ks)}, {v(MK)}, 4, {v(t+6)}', f'v_add_u32 {v(KA0+ks)}, {s(sSL)}, {v(KA+ks)}']
    L += [f'v_bfe_u32 {v(t+5)}, {v(t+1)}, 2, 2',
          f'v_lshl_add_u32 {v(t+4)}, {v(t+3)}, 4, {v(t+5)}', f'v_lshlrev_b32 {v(t+4)}, 8, {v(t+4)}',
          f'v_and_b32 {v(MK)}, 3, {v(t+1)}', f'v_lshl_add_u32 {v(t+4)}, {v(MK)}, 3, {v(t+4)}', f'v_add_u32 {v(t+4)}, 0x10000, {v(t+4)}',
          f'v_lshl_add_u32 {v(t+5)}, {v(t+3)}, 2, {v(t+5)}', f'v_and_b32 {v(t+5)}, 7, {v(t+5)}']
    if OPT['urot']:
        L += {1: [f's_lshl_b32 {s(sY)}, {s(sW)}, 1'], 2: [f's_bfe_u32 {s(sY)}, s2, 0x20003', f's_lshl_b32 {s(sY)}, {s(sY)}, 1'],
              3: [f's_bfe_u32 {s(sY)}, s2, 0x20005', f's_xor_b32 {s(sY)}, {s(sY)}, {s(sW)}', f's_lshl_b32 {s(sY)}, {s(sY)}, 1']}[OPT['urot']]
        L += [f'v_xor_b32 {v(t+5)}, {s(sY)}, {v(t+5)}', f's_lshl_b32 {s(sY)}, {s(sY)}, 5']
    for db in range(8):
        L += [f'v_xor_b32 {v(VA+db)}, {db}, {v(t+5)}', f'v_lshl_add_u32 {v(VA+db)}, {v(VA+db)}, 5, {v(t+4)}',
              f'v_add_u32 {v(VA0+db)}, {s(sSL)}, {v(VA+db)}']
    L += [f'v_lshlrev_b32 {v(t+4)}, {WSH}, {v(t)}', f'v_lshl_add_u32 {v(t+4)}, {v(t+2)}, 8, {v(t+4)}',
          f'v_and_b32 {v(t+5)}, 1, {v(t+3)}', f'v_lshl_add_u32 {v(t+4)}, {v(t+5)}, 5, {v(t+4)}',
          f'v_lshrrev_b32 {v(t+5)}, 1, {v(t+3)}', f'v_lshl_add_u32 {v(OV)}, {v(t+5)}, 4, {v(t+4)}',
          f'v_and_b32 {v(t+4)}, 1, {v(t+1)}', f'v_mov_b32 {v(t+5)}, 0xaaaaaaaa',
          f'v_mul_lo_u32 {v(t+4)}, {v(t+4)}, {v(t+5)}', f'v_or_b32 {v(IDX)}, 0x44444444, {v(t+4)}', f'v_mov_b32 {v(t+5)}, 0x3f803f80']
    L += [f'v_accvgpr_write_b32 {a(aONE+i)}, {v(t+5)}' for i in range(4)]
    L += [f'v_lshlrev_b32 {v(t+4)}, 2, {v(t+3)}', f'v_mov_b32 {v(t+5)}, {NEG:#x}']
    for r in range(4):
        L += [f'v_add_u32 {v(t+6)}, {r}, {v(t+4)}', f'v_cmp_lt_u32 vcc, {s(sT)}, {v(t+6)}', 's_nop 1',
              f'v_cndmask_b32 {v(MK+r)}, 0, {v(t+5)}, vcc']
    L += btprep(1) + btprep(2) + btprep(3)
    L += [f'v_mov_b32 {v(O0+i)}, 0' for i in range(64, 128)]
    L += [f'v_accvgpr_write_b32 {a(aL+i)}, 0' for i in range(16)]
    groups = {'q2': qload(2), 'q3': qload(3), 'v0': dma4(1, 0), 'k1': dma4(0, 1), 'v1': dma4(1, 1), 'k2': dma4(0, 2), 'v2': dma4(1, 2), 'k3': dma4(0, 3)}
    plan = {0: dict(A=['q2'], B=['v0'], C=['q3'], D=['k1', 'v1'], E=['k2'], F=['v2', 'k3']),
            1: dict(A=['q2'], B=['v0'], C=['q3'], D=['k1'], E2=['v1', 'k2'], G=['v2', 'k3']),
            2: dict(A=['q2', 'v0'], C=['q3', 'k1'], D=['v1'], E2=['k2'], G=['v2', 'k3']),
            3: dict(A0=['v0'], A=['q2'], C=['q3', 'k1'], D=['v1', 'k2'], G=['v2', 'k3']),
            4: dict(A=['q2'], B=['v0'], C=['q3', 'k1'], D=['v1'], E2=['k2'], G=['v2', 'k3']),
            5: dict(A=['q2'], B=['v0'], C=['q3', 'k1'], D2=['v1', 'k2'], G=['v2', 'k3']),
            6: dict(A=['q2'], B=['v0', 'k1'], C=['q3'], D2=['v1', 'k2'], G=['v2', 'k3']),
            7: dict(A=['q2'], B=['v0'], C=['q3', 'k1'], D2=['v1', 'k2'], E2=['v2', 'k3']),
            8: dict(A=['q2'], B=['v0', 'k1'], C=['q3'], P=['v1', 'k2'], S=['v2', 'k3']),
            9: dict(A=['q2', 'v0'], B=['k1'], C=['q3'], P=['v1', 'k2'], S=['v2', 'k3']),
            10: dict(A0=['v0'], A=['q2'], B=['k1'], C=['q3'], P=['v1', 'k2'], S=['v2', 'k3']),
            11: dict(A=['q2'], B=['v0', 'k1'], C=['q3'], D2=['v1', 'k2'], S=['v2', 'k3']),
            12: dict(A=['q2'], B=['v0', 'k1'], C3=['q3'], P=['v1', 'k2'], S=['v2', 'k3']),
            13: dict(A=['q2'], B=['v0'], B2=['k1'], C3=['q3'], P=['v1', 'k2'], S=['v2', 'k3']),
            14: dict(A=['v0'], B=['q2'], C=['k1'], C3=['q3'], P=['v1', 'k2'], S=['v2', 'k3']),
            15: dict(A=['q2'], B2=['v0'], C2=['k1'], C3=['q3'], P=['v1', 'k2'], S=['v2', 'k3']),
            16: dict(A2=['q2'], B2=['v0'], C2=['k1'], C3=['q3'], P=['v1', 'k2'], S=['v2', 'k3']),
            17: dict(A=['q2'], B=['v0'], C=['k1'], C2=['q3'], P=['v1', 'k2'], S=['v2', 'k3']),
            18: dict(A=['q2'], B=['v0'], B2=['k1'], C2=['q3'], P=['v1', 'k2'], S=['v2', 'k3']),
            19: dict(A=['v0'], B=['q2'], C=['k1'], C3=['q3'], P=['v1'], S=['k2', 'v2'], K=['k3']),
            20: dict(A=['v0'], B=['q2'], C=['k1'], C3=['q3'], S=['v1', 'k2'], K=['v2', 'k3']),
            21: dict(A=['v0'], B=['q2'], C=['k1'], C2=['q3'], S=['v1', 'k2'], K=['v2', 'k3']),
            22: dict(A=['v0'], A2=['q2'], B2=['k1'], C2=['q3'], S=['v1', 'k2'], K=['v2', 'k3']),
            23: dict(A0=['v0'], A=['q2'], B2=['k1'], C2=['q3'], S=['v1', 'k2'], K=['v2', 'k3']),
            24: dict(A=['v0'], B=['q2'], C=['q3'], C3=['k1'], S=['v1', 'k2'], K=['v2', 'k3']),
            25: dict(A=['v0'], B=['q2'], C=['k1'], C3=['q3'], P=['v1', 'k2'], S=['v2'], K=['k3']),
            26: dict(A=['v0'], B=['q2'], C=['k1'], C3=['q3'], D=['v1'], P=['k2'], S=['v2'], K=['k3']),
            27: dict(A=['v0'], B=['q2'], C=['k1', 'v1'], C3=['q3'], P=['k2'], S=['v2'], K=['k3']),
            28: dict(A=['v0', 'k1'], B=['q2'], C2=['q3'], P=['v1', 'k2'], S=['v2'], K=['k3']),
            30: dict(A=['v0'], B=['q2'], C=['k1'], C2=['q3'], P=['v1'], S=['k2', 'v2'], K=['k3']),
            31: dict(A=['v0'], B=['q2'], C=['k1'], C3=['q3'], P=['v1'], S=['k2'], K=['v2', 'k3']),
            32: dict(A=['q2'], B=['v0'], C=['k1'], C3=['q3'], P=['v1'], S=['k2'], K=['v2', 'k3']),
            33: dict(A=['v0'], A2=['q2'], C=['q3'], C2=['k1'], P=['v1'], S=['k2'], K=['v2', 'k3']),
            29: dict(A=['v0'], A2=['k1'], B=['q2'], C2=['q3'], D=['v1'], P=['k2'], S=['v2'], K=['k3'])}[OPT['po']]
    at = lambda p_: [x for g_ in plan.get(p_, []) for x in groups[g_]]
    X = OPT['tv'] >= 4
    btv = lambda i: [f'v_min_u32 {v(BT+i)}, 131, {v(BT+i)}', f'v_lshlrev_b32 {v(BT+i)}, 16, {v(BT+i)}'] + ([f'v_or_b32 {v(BT+i)}, {(3-i)*1024}, {v(BT+i)}'] if i < 3 else [])
    touch = []
    if OPT['touch']:
        touch = ['s_mov_b64 vcc, -1', f's_cmp_eq_u32 {s(sW)}, 0', 's_cbranch_scc1 L_padB', f's_cmp_eq_u32 {s(sW)}, 1', 's_cbranch_scc1 L_padA',
                 'L_ret:', 's_mov_b64 vcc, 0']
    L += at('A0') + (touch if OPT['touch'] == 1 else []) + (['L_walk:'] if OPT['walk'] else []) + ['WAITVM ld Q0'] + stamp(2)
    if X:
        L += ['WAITVM ld BT'] + btv(0) + [f's_sub_u32 {s(sT+5)}, {s(sN)}, 1', f'v_readlane_b32 {s(sT)}, {v(BT)}, {s(sT+5)}'] + qread(0)
        L += [f's_add_u32 m0, {s(sMV)}, {s(sSL+3)}', f's_sub_u32 {s(sT+5)}, {s(sT)}, 1024',
              f'buffer_load_dwordx4 {v(DV)}, s[12:15], {s(sT)} offen lds ; dmx V',
              f'buffer_load_dwordx4 {v(DK)}, s[8:11], {s(sT+5)} offen offset:1024 lds ; dmx K']
    else: L += qread(0)
    L += at('A') + scale_q(0) + at('A2') + ['WAITVM ld BT']
    for i in range(1 if X else 0, 4): L += btv(i)
    L += ['s_nop 0'] + [f'v_readlane_b32 {s(SETS[k]+i)}, {v(BT+i)}, {s(sT+1+k)}' for k in range(2) for i in range(4)]
    L += (touch if OPT['touch'] == 2 else []) + ['WAITVM dma K 0', 's_barrier']
    L += [i_kread(*kord(f), 0, '0', addr=KA0) for f in range(16)] + at('B')
    def tile0(x):
        P = Prog(); G = P.group
        r = lambda q, sb: qkg(q, 1, sb=sb, kbase=aX, mask=True)
        xv = lambda q: [pv(q, db, 0, 2, 'ov', first=q < 2) for db in range(8)] + [sm(q, 2)]
        G('q0', qkg(0))
        if x: G('r0', r(0, 2)); G('r1', r(1, 3))
        G('q1', qkg(1))
        if x: G('x0', xv(0)); G('x1', xv(1)); G('r2', r(2, 3))
        G('q2', qkg(2))
        if x: G('x2', xv(2))
        for nm in {0: ('p0', 'p1', 'q3'), 1: ('p0', 'q3', 'p1'), 2: ('q3', 'p0', 'p1')}[OPT['t0o']]:
            G(nm, qkg(3) if nm == 'q3' else pvg(int(nm[1]), first=not x))
        P.done(); p = P.pos
        w1, w2 = p['r0' if x else 'q1'], p['r2' if x else 'q2']
        P.softmax('s0', p['q0'], 0, 0, dlcap=w1 + 4); P.softmax('s1', p['q1'], 1, 1, dlcap=w2 + (-1 if x else 4))
        P.softmax('s2', p['q2'], 2, 2, dlcap=p['q3'] - 1 if OPT['t0o'] == 0 else P.n - 1, use=P.n); P.softmax('s3', p['q3'], 3, 3, skip=LEFT3, lastrel=P.n - 1)
        if x:
            P.softmax('t0', p['r0'], 2, 2, 1); P.softmax('t1', p['r1'], 3, 2, 1, use=p['x1'], zero=False)
            P.softmax('t2', p['r2'], 3, 2, 1, zero=False)
        P.vload('v', p['p0'], 0, '0', addr=VA0, rel0=w2)
        P.kload('k', P.n, 0, '1', addr=T0, rel0=p['q3'], dlmax=P.n - 1)
        g = P.gaps
        for pt, gi in (('P', p['p0'] + 1), ('K', p['q3'] + 1)):
            step = 2 if pt == 'K' and len(plan.get('K', [])) > 1 and OPT['t0o'] == 0 else 4
            for y in at(pt):
                if y.startswith('s_add'): g[gi - 1].sc.append(y)
                elif y.startswith('buffer'):
                    P.ops.append(Op(('d', gi), 'D', gi, gi, y)); gi += step
        assert not schedule(P.n, P.ops, g, overflow=True)
        sc3 = []; ext = at('S')
        for i, y in enumerate(scale_q(3)):
            sc3.append(y)
            if i % 10 == 4 and ext:
                if ext[0].startswith('s_add'): sc3 += ext[:2]; ext = ext[2:]
                sc3.append(ext.pop(0))
        assert not ext
        xr = []
        if x:
            XA = S0 + 36
            xr = [f's_add_u32 {s(sT)}, {s(sSL+3)}, 0x10000'] + [f'v_add_u32 {v(XA+ks)}, {s(sT)}, {v(KA+ks)}' for ks in range(4)] + \
                 [f'v_add_u32 {v(XA+4+db)}, {s(sSL+3)}, {v(VA+db)}' for db in range(8)] + ['WAITVM dmx K', 's_barrier'] + \
                 [f'ds_read_b128 {a(aX+4*ks,4)}, {v(XA+ks)} offset:1024 ; rx K {ks}' for ks in range(4)] + \
                 [f'ds_read_b64_tr_b16 {a(aX+16+2*db,2)}, {v(XA+4+min(db,7))} offset:0 ; rx V {min(db,7)}' for db in range(9)]
        g[w1 - 1].post += at('B2') + xr + ['WAITVM ld Q1'] + qread(1) + at('C') + scale_q(1) + at('C2') + ['s_nop 0']
        g[w2 - 1].post += at('C3') + ['WAITVM ld Q2'] + qread(2) + at('D') + scale_q(2) + ['WAITVM dma V 0|dma K 1', 's_barrier']
        g[p['q3'] - 1].post += (['s_barrier'] if x else []) + at('D2') + ['WAITVM ld Q3'] + stamp(3) + qread(3) + sc3 + \
                               [f'v_add_u32 {v(T0+ks)}, {s(sSL+1)}, {v(KA+ks)}' for ks in range(4)]
        g[P.n - 1].post += [HEADWAIT]
        full, pend = add_lgkm_waits(resolve_waitvm(L + ['L_split:'] + emit(P.mf, g)))
        k = full.index('L_split:')
        return full[:k], full[k+1:] + stamp(4) + wave_select() + dispatch(0), pend
    assert OPT['po'] >= 8
    head, tn, pend = tile0(False)
    if not X: return head + tn, [], pend
    head2, tx, pend2 = tile0(True)
    assert head == head2 and [z[0] for z in pend] == [z[0] for z in pend2]
    return head + [f's_cmp_lg_u32 {s(sNKB)}, 1', 's_cbranch_scc1 L_tile0n'] + tx, ['L_tile0n:'] + tn + ['s_branch L_b1'], pend

def slow():
    t = T0
    L = ['L_slow:', 's_waitcnt vmcnt(0) lgkmcnt(0)']
    M, LS, KV, VD0, VD1 = KA, BT, DK, DV, IDX
    L += [f'v_mbcnt_lo_u32_b32 {v(t+1)}, -1, 0', f'v_mbcnt_hi_u32_b32 {v(t+1)}, -1, {v(t+1)}',
          f'v_and_b32 {v(t+2)}, 15, {v(t+1)}', f'v_lshrrev_b32 {v(t+3)}, 4, {v(t+1)}']
    L += [f's_lshl_b32 {s(sT)}, {s(sW)}, {WSH}', f'v_lshlrev_b32 {v(t+4)}, 8, {v(t+2)}', f'v_lshl_add_u32 {v(t+4)}, {v(t+3)}, 4, {v(t+4)}',
          f'v_add_u32 {v(t+4)}, {s(sT)}, {v(t+4)}']
    L += [f'buffer_load_dwordx4 {v(S0+16*q+4*ks,4)}, {v(t+4)}, s[4:7], {qoff(q)} offen offset:{64*ks}' for q in range(2) for ks in range(4)]
    L += [f'v_lshlrev_b32 {v(t+4)}, 12, {v(t+2)}', f'v_lshl_add_u32 {v(KV)}, {v(t+3)}, 4, {v(t+4)}', f'v_add_u32 {v(KV)}, 3072, {v(KV)}',
          f'v_lshlrev_b32 {v(t+4)}, 1, {v(t+3)}', f'v_xor_b32 {v(t+4)}, {v(t+2)}, {v(t+4)}',
          f'v_lshlrev_b32 {v(t+4)}, 4, {v(t+4)}', f'v_lshl_add_u32 {v(VD0)}, {v(t+3)}, 12, {v(t+4)}', f'v_add_u32 {v(VD0)}, 3072, {v(VD0)}',
          f'v_xor_b32 {v(t+4)}, 0x80, {v(t+4)}', f'v_lshl_add_u32 {v(VD1)}, {v(t+3)}, 12, {v(t+4)}', f'v_add_u32 {v(VD1)}, {3072 + 16384}, {v(VD1)}',
          f's_lshl_b32 {s(sMV)}, {s(sW)}, 13', f's_add_u32 {s(sMV)}, {s(sMV)}, 0x20000',
          f'v_bfe_u32 {v(t+5)}, {v(t+1)}, 2, 2', f'v_lshl_add_u32 {v(t+5)}, {v(t+3)}, 2, {v(t+5)}',
          f'v_lshlrev_b32 {v(t+4)}, 8, {v(t+5)}', f'v_and_b32 {v(t+6)}, 3, {v(t+1)}',
          f'v_lshl_add_u32 {v(t+4)}, {v(t+6)}, 3, {v(t+4)}', f'v_add_u32 {v(t+4)}, {s(sMV)}, {v(t+4)}', f'v_and_b32 {v(t+5)}, 7, {v(t+5)}']
    for db in range(8):
        L += [f'v_xor_b32 {v(VA+db)}, {db}, {v(t+5)}', f'v_lshl_add_u32 {v(VA+db)}, {v(VA+db)}, 5, {v(t+4)}']
    L += [f'v_lshlrev_b32 {v(MK)}, 2, {v(t+3)}', f'v_mov_b32 {v(MK+1)}, {NEG:#x}']
    L += [f'v_mov_b32 {v(O0+i)}, 0' for i in range(128)]
    L += [f'v_mov_b32 {v(M+q)}, 0xff7fffff' for q in range(4)] + [f'v_mov_b32 {v(LS+q)}, 0' for q in range(4)]
    L += ['s_waitcnt vmcnt(0)'] + scale_q(0) + scale_q(1)
    L += [f's_mov_b32 {s(sIT)}, 0', 'L_slow_loop:',
          f's_lshr_b32 {s(sT)}, {s(sIT)}, 2',
          f's_load_dwordx2 s[40:41], s[30:31], {s(sT)}', 's_waitcnt lgkmcnt(0)',
          's_min_u32 s40, s40, 131', 's_min_u32 s41, s41, 131', 's_lshl_b32 s40, s40, 16', 's_lshl_b32 s41, s41, 16']
    for kb in range(2):
        for ks in range(4):
            L.append(f'buffer_load_dwordx4 {a(aK+16*kb+4*ks,4)}, {v(KV)}, s[8:11], s{40+kb} offen offset:{64*ks}')
    for b in range(2):
        for p in range(4):
            L += [f's_add_u32 m0, {s(sMV)}, {b*4096 + p*1024}', f's_add_u32 s42, s{40+b}, {(p//2)*32768}',
                  f'buffer_load_dwordx4 {v(VD1 if p & 1 else VD0)}, s[12:15], s42 offen lds']
    L += ['s_waitcnt vmcnt(0)']
    for db in range(8):
        for tt in range(2):
            L.append(f'ds_read_b64_tr_b16 {a(aV+8*db+2*tt,2)}, {v(VA+db)} offset:{tt*4096}')
    L += [f's_sub_u32 {s(sT)}, {s(sCLT)}, {s(sIT)}', 's_waitcnt lgkmcnt(0)']
    for q in range(4):
        S = S0 + 16*q
        L += qkg(q, 2) + ['s_nop 7']
        for e in range(8):
            L += [f'v_add_u32 {v(t)}, {16*(e//4) + e%4}, {v(MK)}', f'v_cmp_gt_u32 vcc, {s(sT)}, {v(t)}', 's_nop 1',
                  f'v_cndmask_b32 {v(S+e)}, {v(MK+1)}, {v(S+e)}, vcc']
        L += [f'v_max3_f32 {v(t)}, {v(S)}, {v(S+1)}, {v(S+2)}', f'v_max3_f32 {v(t)}, {v(t)}, {v(S+3)}, {v(S+4)}',
              f'v_max3_f32 {v(t)}, {v(t)}, {v(S+5)}, {v(S+6)}', f'v_max3_f32 {v(t)}, {v(t)}, {v(S+7)}, {v(M+q)}',
              f'v_mov_b32 {v(t+1)}, {v(t)}', 's_nop 1', f'v_permlane16_swap_b32 {v(t)}, {v(t+1)}', f'v_max_f32 {v(t)}, {v(t)}, {v(t+1)}',
              f'v_mov_b32 {v(t+1)}, {v(t)}', 's_nop 1', f'v_permlane32_swap_b32 {v(t)}, {v(t+1)}', f'v_max_f32 {v(t)}, {v(t)}, {v(t+1)}',
              f'v_sub_f32 {v(t+1)}, {v(M+q)}, {v(t)}', f'v_exp_f32 {v(t+1)}, {v(t+1)}', f'v_mov_b32 {v(M+q)}, {v(t)}']
        L += [f'v_sub_f32 {v(S+e)}, {v(S+e)}, {v(t)}' for e in range(8)]
        L += [f'v_exp_f32 {v(S+e)}, {v(S+e)}' for e in range(8)]
        L += [f'v_mul_f32 {v(LS+q)}, {v(LS+q)}, {v(t+1)}']
        L += [f'v_mul_f32 {v(O0+32*q+i)}, {v(O0+32*q+i)}, {v(t+1)}' for i in range(32)]
        L += [i_cvt(q, q, i) for i in range(4)]
        for i in range(4):
            L += [f'v_lshlrev_b32 {v(t)}, 16, {v(P0+8*q+i)}', f'v_and_b32 {v(t+1)}, 0xffff0000, {v(P0+8*q+i)}',
                  f'v_add_f32 {v(LS+q)}, {v(LS+q)}, {v(t)}', f'v_add_f32 {v(LS+q)}, {v(LS+q)}, {v(t+1)}']
        L += [pv(q, db, 0) for db in range(8)]
    L += [f's_add_u32 {s(sIT)}, {s(sIT)}, 32', f's_cmp_lt_u32 {s(sIT)}, {s(sCLT)}', 's_cbranch_scc1 L_slow_loop', 's_nop 7']
    for q in range(4):
        o = O0 + 32*q
        L += [f'v_mov_b32 {v(t)}, {v(LS+q)}', f'v_mov_b32 {v(t+1)}, {v(LS+q)}', 's_nop 1',
              f'v_permlane16_swap_b32 {v(t)}, {v(t+1)}', f'v_add_f32 {v(t)}, {v(t)}, {v(t+1)}',
              f'v_mov_b32 {v(t+1)}, {v(t)}', 's_nop 1', f'v_permlane32_swap_b32 {v(t)}, {v(t+1)}', f'v_add_f32 {v(t)}, {v(t)}, {v(t+1)}',
              f'v_rcp_f32 {v(t)}, {v(t)}', 's_nop 0']
        L += [f'v_mul_f32 {v(o+i)}, {v(o+i)}, {v(t)}' for i in range(32)]
        for u in range(4):
            L += [f'v_cvt_pk_bf16_f32 {v(o+8*u+i)}, {v(o+8*u+2*i)}, {v(o+8*u+2*i+1)}' for i in range(4)]
        for u in range(4):
            L += [f'v_permlane16_swap_b32 {v(o+8*u+i)}, {v(o+8*u+2+i)}' for i in range(2)]
        for u in range(4):
            L.append(f'buffer_store_dwordx4 {v(o+8*u,4)}, {v(OV)}, s[16:19], {qoff(q)} offen offset:{64*u}')
    return L + ['s_endpgm']

DOC = '''; Paged-KV attention, one workgroup per CU: 256 query rows against one KV head, 4 waves x 64 rows, 64-key tiles.
;  * S^T = K.Q^T and O^T += V^T.P^T with v_mfma_f32_16x16x32_bf16 (P stays in registers, V via ds_read_b64_tr_b16),
;    row sums with one v_smfmac_f32_16x16x64_bf16 per 16 rows and tile.  Q is scaled once by log2(e)/sqrt(D).
;  * Softmax guard: the fast path uses 0 as stand-in for the row maximum.  Every row sum is checked at run time; if one
;    leaves [2^-40, 2^40] (or is not a number) the wave recomputes its rows in L_slow with the true running maximum.
;    L_slow also serves context lengths below 193.  context_lens <= 0 (all keys masked) gives the uniform average.
;    stores overlap the remaining blocks.  16-row blocks are dealt to waves so that the blocks loaded or stored at
'''
NFIN = 0
def finish():
    global NFIN
    NFIN += 1
    L = [f'v_cmp_lt_u32 vcc, 0x28000000, {v(T0+4)}' if not OPT.get('abl') else 's_mov_b64 vcc, 0',
         f's_cmp_lg_u32 {s(sFORCE)}, 0', 's_cbranch_scc1 L_slow', 's_nop 3', 's_cbranch_vccnz L_slow']
    if OPT.get('twice'):
        L += ['s_cmp_eq_u32 s83, 0', f's_cbranch_scc1 L_fin{NFIN}', 's_sub_u32 s83, s83, 1', 's_waitcnt vmcnt(0) lgkmcnt(0)', 's_barrier',
              'v_mbcnt_lo_u32_b32 v0, -1, 0', 'v_mbcnt_hi_u32_b32 v0, -1, v0', f's_lshl_b32 {s(sT)}, {s(sW)}, 6', f'v_add_u32 v0, {s(sT)}, v0', 's_branch L_again', f'L_fin{NFIN}:']
    if OPT['stamp']:
        L += [f's_memtime s[40:41]', 's_waitcnt vmcnt(0)', 's_memtime s[42:43]', f's_memrealtime s[44:45]', 's_waitcnt lgkmcnt(0)']
        st = lambda i: sST + 2*i if i < 6 else 40 + 2*(i - 6)
        if OPT.get('fixed'):
            L += [f's_mov_b32 {s(sT+4)}, {OPT["fixed"]}']
            if OPT.get('xcc'):
                L += [f's_getreg_b32 {s(sT+5)}, hwreg(HW_REG_XCC_ID, 0, 4)', f's_sub_u32 {s(sT+5)}, {s(sT+5)}, s2', f's_and_b32 {s(sT+5)}, {s(sT+5)}, 7']
                if OPT['xcc'] == 2: L += [f's_sub_u32 {s(sT+5)}, 7, {s(sT+5)}']
                L += [f's_mul_i32 {s(sT+5)}, {s(sT+5)}, 500', f's_add_u32 {s(sT+4)}, {s(sT+4)}, {s(sT+5)}']
            if OPT.get('phase'):
                L += [f's_sub_u32 {s(sT+5)}, {s(st(OPT["phase"]))}, {s(st(OPT.get("phase0", 0)))}']
                if OPT.get('neg'): L += [f's_sub_u32 {s(sT+5)}, {OPT["neg"]}, {s(sT+5)}']
                L += [f's_lshr_b32 {s(sT+5)}, {s(sT+5)}, {OPT.get("sh", 3)}', f's_add_u32 {s(sT+4)}, {s(sT+4)}, {s(sT+5)}']
            return L + [f'L_spin{NFIN}:', f's_memrealtime {s(sT,2)}', 's_waitcnt lgkmcnt(0)', f's_sub_u32 {s(sT)}, {s(sT)}, s100',
                        f's_cmp_lt_u32 {s(sT)}, {s(sT+4)}', f's_cbranch_scc1 L_spin{NFIN}', 's_endpgm']
        L += ['s_load_dwordx2 s[24:25], s[0:1], 56', 's_waitcnt lgkmcnt(0)', 's_mov_b32 s26, 0x100000', 's_mov_b32 s27, 0x20000']
        L += [f'v_mov_b32 v{i}, {s(st(i))}' for i in range(8)]
        L += ['v_mov_b32 v8, s42', 'v_mov_b32 v9, s44', 'v_mov_b32 v10, s100', 'v_mov_b32 v11, 0',
              f's_lshl_b32 {s(sT)}, s2, 2', f's_add_u32 {s(sT)}, {s(sT)}, {s(sW)}', f's_lshl_b32 {s(sT)}, {s(sT)}, 6',
              'v_mov_b32 v12, 0', 's_mov_b64 exec, 1',
              f'buffer_store_dwordx4 v[0:3], v12, s[24:27], {s(sT)} offen',
              f'buffer_store_dwordx4 v[4:7], v12, s[24:27], {s(sT)} offen offset:16',
              f'buffer_store_dwordx4 v[8:11], v12, s[24:27], {s(sT)} offen offset:32']
    return L + ['s_endpgm']

def sizes(L):
    import subprocess, re, tempfile, os
    d = tempfile.mkdtemp()
    open(d + '/a.s', 'w').write('.amdgcn_target "amdgcn-amd-amdhsa--gfx950"\n.text\n' + '\n'.join(l for l in L if not l.startswith('.')) + '\n')
    subprocess.check_call(['clang', '-x', 'assembler', '-target', 'amdgcn-amd-amdhsa', '-mcpu=gfx950', '-c', d + '/a.s', '-o', d + '/a.o'])
    out = subprocess.check_output(['llvm-objdump', '-d', '--mcpu=gfx950', d + '/a.o']).decode()
    sz = [4 * len(m.group(1).split()) for m in re.finditer(r'// [0-9A-F]+: ([0-9A-F ]+)', out)]
    it = iter(sz)
    return [next(it) if Ins(l).states else 0 for l in L]

def add_walk(L):
    sz = sizes(L); ins = parse(L)
    regions = [(L.index('L_walk:') + 1, L.index('L_b1:') - 1), (L.index('L_tail:'), L.index('L_pfend:') - 8)]
    if OPT['walk'] == 2: regions = [(L.index('L_walk:') + 1, L.index('L_pfend:') - 8)]
    pads = []
    for lo, hi in regions:
        acc = OPT['wsp'] - 64 if lo == regions[0][0] else OPT['wsp']; best = None
        for i in range(lo, hi):
            acc += sz[i]
            if acc >= OPT['wsp'] - max(64, OPT['wsp'] // 4) and ins[i].states and ins[i].cls != 'br' and not L[i].startswith(('s_cmp', 's_waitcnt')):
                cost = 0 if ins[i].cls == 'mfma' and ins[i+1].cls == 'mfma' else 2 if ins[i+1].cls == 'mfma' else 3
                if best is None or cost <= best[0]: best = (cost, i, acc)
            if acc >= OPT['wsp'] and best:
                pads.append(best[1]); acc -= best[2]; best = None
    n = len(pads); cut = [n * w // 4 for w in range(5)]
    out = []
    for i, l in enumerate(L):
        if l == 'L_walk:':
            out += ['s_mov_b64 vcc, -1']
            for w in range(3): out += [f's_cmp_eq_u32 {s(sW)}, {w}', f's_cbranch_scc1 L_pad{cut[w]}']
            out += [f's_branch L_pad{cut[3]}', 'L_ret:', 's_mov_b64 vcc, 0']
            continue
        out.append(l)
        if i in pads:
            k = pads.index(i)
            out += [f'L_pad{k}:', f's_cbranch_vccnz {"L_ret" if k + 1 in cut else f"L_pad{k+1}"}']
    print('pads', n)
    return out

def main():
    pro, pro2, pend0 = prologue()
    loop, pend = loop_code()
    assert [x[0] for x in pend0] == [x[0] for x in pend], (pend0, pend)
    L = [f'{NAME}:'] + pro + loop
    L += ['L_tail:'] + stamp(5) + [f's_cmp_gt_u32 {s(sNKB)}, 1', 's_cbranch_scc1 L_tail234']
    L += tail(1, pend) + finish()
    for w in range(1, NCOPY): L += loop_copy(w, pend)
    L += ['L_pfend:']
    L += ['L_tail234:', f's_cmp_eq_u32 {s(sNKB)}, 3', 's_cbranch_scc1 L_tail3', f's_cmp_eq_u32 {s(sNKB)}, 4', 's_cbranch_scc1 L_tail4']
    L += tail(2, pend) + finish() + ['L_tail3:'] + tail(3, pend) + finish() + ['L_tail4:'] + tail(4, pend) + finish()
    L += pro2 + slow() + ['L_end:', 's_endpgm']
    L, nn = fix_hazards(L, verbose=OPT.get('verbose', 0))
    if OPT['walk']: L = add_walk(L)
    sz = sizes(L)
    assert sum(sz[L.index('L_pc:'):]) > (65536 if NCOPY > 2 else 32768) + 64 if OPT['cpf'] else True
    print('bytes up to the last Q0 load:', sum(sz[:max(i for i, l in enumerate(L) if l.endswith('ld Q0')) + 1]), ' executed code:', sum(sz[:L.index('L_pfend:')]))
    print('nop states inserted:', nn, ' leftovers:', sorted(LEFT3))
    hdr = open('standalone__paged_block_table_kv_pagedattention__prompt.s.ref').read().split('; Override')[0]
    txt = hdr + DOC + '; Generated by gen/gen2.py (own generator script).\n'
    txt += '; @launch grid=(256,1,1) block=(256,1,1) lds=163840\n'
    txt += f'.amdgcn_target "amdgcn-amd-amdhsa--gfx950"\n.text\n.globl {NAME}\n.p2align 8\n.type {NAME},@function\n'
    for l in L: txt += (l if l.endswith(':') or l.startswith(('.', ';')) else '    ' + l) + '\n'
    txt += f'''.section .rodata,"a"
.p2align 6
.amdhsa_kernel {NAME}
  .amdhsa_next_free_vgpr 504
  .amdhsa_next_free_sgpr 102
  .amdhsa_accum_offset 256
  .amdhsa_group_segment_fixed_size 0
  .amdhsa_kernarg_size 64
  .amdhsa_user_sgpr_count 2
  .amdhsa_user_sgpr_kernarg_segment_ptr 1
  .amdhsa_system_sgpr_workgroup_id_x 1
.end_amdhsa_kernel
'''
    open(sys.argv[1], 'w').write(txt)
    if OPT.get('show'):
        for g in range(NG): print(g, PAT[g])
main()
```

```python
import sys
from asmcheck import parse, fix_hazards, Ins

NAME = 'standalone__paged_block_table_kv_pagedattention__prompt_kernel'
FL = {0: '', 1: ' nt', 2: ' sc1', 3: ' sc0 sc1', 4: ' sc1 nt', 5: ' sc0 sc1 nt', 6: ' sc0', 7: ' sc0 nt'}
OPT = dict(po=31, cpf=1, qf=0, kf=2, of=2, delta=9, stamp=0, lat=8, forceslow=0, tord=1, epri=12, ep=2, ssp=4, ssp0=0, tv=3, edl=0, ttu=2, walk=0, wsp=224, pkd=6, touch=0, snake=1, stag=1, rot=6, urot=0, hmap=0, t0o=1, wcls=0, late=0, nok=2)
for a_ in sys.argv[2:]:
    k_, v_ = a_.split('='); OPT[k_] = int(v_, 0)

S0, P0, KA, VA, BT, DK, DV, IDX, OV, MK, T0, O0 = 0, 64, 96, 100, 108, 112, 113, 114, 115, 116, 120, 128
QD, QA = P0 + 24, P0 + 28
KA0, VA0 = O0, S0 + 52
EW, ER, EG = T0 + 5, T0 + 6, T0 + 7
aQ, aK, aV, aL, aONE, aX = 0, 64, 128, 192, 208, 212
sW, sCL, sN, sIT, sLN = 3, 36, 37, 38, 39
SETS = (56, 60)
sMK, sMV, sC, sC2, sNKB, sE, sFORCE, sCLT = 64, 65, 66, 67, 68, 69, 70, 71
sNP = 75
sE2 = 76
sQ0 = 77
sY = 35
sLAST = 33
sQ1 = 72
sSL = 96
sT = 78
sST = 84
KBYTES = 132 * 65536
LAT = OPT['lat']
NEG = 0xf149f2ca
INF = 10 ** 6
WSH, QSH = (12, 14) if OPT['rot'] >= 4 else (14, 12)
MINCL = 193

def v(b, n=1): return f'v{b}' if n == 1 else f'v[{b}:{b+n-1}]'
def a(b, n=1): return f'a{b}' if n == 1 else f'a[{b}:{b+n-1}]'
def s(b, n=1): return f's{b}' if n == 1 else f's[{b}:{b+n-1}]'
def VR(b, n=1): return {('v', i) for i in range(b, b + n)}
def AR(b, n=1): return {('a', i) for i in range(b, b + n)}

MF = 'v_mfma_f32_16x16x32_bf16'
def kord(f):
    return f // 4, (3 - f % 4 if OPT['snake'] and (f // 4) % 2 else f % 4)
def qk(q, f, sb=None, kbase=aK, mask=False):
    kb, ks = kord(f)
    D = v(S0 + 16*(q if sb is None else sb) + 4*kb, 4)
    C = D if f % 4 else (v(MK, 4) if mask else '0')
    return f'{MF} {D}, {a(kbase+16*kb+4*ks,4)}, {a(aQ+16*q+4*ks,4)}, {C}'
def vfrag(db, ks, vbase):
    if vbase == 'ov': return aX + 16 + 2*db
    return aV + (2*db+ks)*4 if vbase is None else vbase + 4*db
def pv(q, db, ks, pb=None, vbase=None, first=False):
    D = v(O0 + 32*q + 4*db, 4)
    return f'{MF} {D}, {a(vfrag(db, ks, vbase),4)}, {v(P0+8*(q if pb is None else pb)+4*ks,4)}, {"0" if first and ks == 0 else D}'
def sm(q, pb=None):
    return f'v_smfmac_f32_16x16x64_bf16 {a(aL+4*q,4)}, {a(aONE,4)}, {v(P0+8*(q if pb is None else pb),8)}, {v(IDX)}'
def qkg(q, nkb=4, sb=None, kbase=aK, mask=False):
    return [qk(q, f, sb, kbase, mask and f // 4 == nkb-1) for f in range(4 * nkb)]
def pvg(q, pb=None, first=False): return [pv(q, db, ks, pb, None, first) for db in range(8) for ks in range(2)] + [sm(q, pb)]

def i_exp(sb, n): return f'v_exp_f32 {v(S0+16*sb+n)}, {v(S0+16*sb+n)}'
def i_cvt(sb, pb, i): return f'v_cvt_pk_bf16_f32 {v(P0+8*pb+i)}, {v(S0+16*sb+2*i)}, {v(S0+16*sb+2*i+1)}'
def i_kread(kb, ks, slot, tag, kbase=aK, addr=KA):
    return f'ds_read_b128 {a(kbase+16*kb+4*ks,4)}, {v(addr+ks)} offset:{slot*16384+kb*1024}'
def i_vread(db, ks, t, slot, tag, vbase=None, addr=VA):
    return f'ds_read_b64_tr_b16 {a(vfrag(db, ks, vbase)+2*t,2)}, {v(addr+db)} offset:{slot*16384+(2*ks+t)*1024}'
def i_dma(isv, i, soff, tag):
    return f'buffer_load_dwordx4 {v(DV if isv else DK)}, {s(12 if isv else 8,4)}, {s(soff+i)} offen offset:{i*1024}{FL[OPT["kf"]]} lds'
def i_m0(isv, slot): return f's_add_u32 m0, {s(sMV if isv else sMK)}, {slot*16384}'
def qoff(q): return s(sQ0) if q == 0 and OPT['rot'] else '0' if q == 0 else s(sQ1 + q - 1)
def stamp(i): return [f's_memtime {s(sST+2*i,2)}'] if OPT['stamp'] and not (OPT.get('wb') and 1 <= i <= 4) else []

class Op:
    def __init__(self, key, cls, rel, dl, text, deps=(), fifo=None, pri=None):
        self.key, self.cls, self.rel, self.dl, self.text, self.deps, self.fifo = key, cls, rel, dl, text, list(deps), fifo
        self.pri = dl if pri is None else pri
        self.gap = None
class Gap:
    def __init__(self): self.sc, self.mem, self.valu, self.post = [], [], [], []; self.block = None

def schedule(ngaps, ops, gaps, overflow=False):
    byk = {o.key: o for o in ops}
    todo = list(ops)
    def ready(o, g):
        if o.rel > g: return False
        for d in o.deps:
            p = byk.get(d)
            if p is not None and (p.gap is None or p.gap >= g): return False
        if o.fifo is not None:
            p = byk[o.fifo]
            if p.gap is None or (o.cls in 'DRTW' and p.cls not in 'RT' and p.gap >= g): return False
            if o.cls == 'D' and p.cls == 'R' and p.gap + LAT > g: return False
            if o.cls == 'D' and p.cls == 'D' and p.gap + OPT['ssp'] > g: return False
        return True
    def put(o, g):
        o.gap = g; todo.remove(o)
        (gaps[g].mem if o.cls in 'DRTW' else gaps[g].valu).append(o)
    for g in range(ngaps):
        if gaps[g].block != 'all':
            cand = sorted((o for o in todo if ready(o, g)), key=lambda o: o.pri)
            if gaps[g].block == 'half': cand = [o for o in cand if o.cls == 'H'][:1]
            if cand:
                top = cand[0]
                halves = [o for o in cand if o.cls in 'RTH']
                full = [o for o in cand if o.cls in 'EDW']
                if top.cls in 'RTH' and len(halves) == 1 and full and top.pri - g > 6 and top.fifo is None: top = full[0]
                put(top, g)
                if top.cls in 'RTH' and gaps[g].block != 'half':
                    c2 = sorted((o for o in todo if o.cls in 'RTH' and ready(o, g) and not (o.cls == 'R' and top.cls == 'R')), key=lambda o: o.pri)
                    if c2:
                        pick = c2[0]
                        busy = g > 0 and len(gaps[g-1].mem) > 1
                        if top.cls in 'RT' and pick.cls in 'RT' and (pick.pri - g > 8 or (busy and pick.pri - g > OPT['ttu'])):
                            h = [o for o in c2 if o.cls == 'H']
                            if h: pick = h[0]
                            elif busy and pick.pri - g > OPT['ttu']: pick = None
                        if pick: put(pick, g)
        late = [o for o in todo if o.dl <= g]
        if late:
            if not overflow: raise RuntimeError(f'deadline miss at gap {g}: {[o.key for o in late]}')
            def force(o):
                if o.gap is not None: return
                for d in o.deps + ([o.fifo] if o.fifo else []):
                    if d in byk: force(byk[d])
                assert o.rel <= g, (o.key, o.rel, g)
                o.gap = g; todo.remove(o)
                if o.cls in 'RT' and o.fifo is None and gaps[g].block != 'all': gaps[g].mem.append(o)
                else: gaps[g].post.append(o.text)
            for o in sorted(late, key=lambda o: (o.fifo is not None, {'R': 0, 'T': 0, 'D': 0, 'W': 0, 'E': 1, 'H': 2}[o.cls], o.dl)): force(o)
    return todo

def emit(mf, gaps):
    out = []
    for m, g in zip(mf, gaps):
        out.append(m)
        sc = list(g.sc)
        if any(o.text.startswith('buffer_load') for o in g.mem) and not sc: sc = ['s_nop 0']
        out += sc + [o.text for o in g.mem] + [o.text for o in g.valu] + g.post
    return out

def add_lgkm_waits(lines, pre_ds=()):
    q = [(set(r), -age) for r, age in pre_ds]
    out = []; gap = -1; lastm = None; nvis = None
    for x in parse(lines):
        if x.cls == 'mfma':
            needed = [i for i, (r, g) in enumerate(q) if r & x.r]
            if needed:
                k = max(needed)
                if lastm is not None and k < nvis:
                    while k + 1 < nvis and q[k + 1][1] <= gap - LAT: k += 1
                    n = min(15, nvis - 1 - k)
                    if out[lastm:lastm+1] == ['s_nop 0']: out[lastm] = f's_waitcnt lgkmcnt({n})'
                    else: out.insert(lastm, f's_waitcnt lgkmcnt({n})')
                    k = nvis - 1 - n
                else:
                    n = min(15, len(q) - 1 - k)
                    out.append(f's_waitcnt lgkmcnt({n})')
                    k = len(q) - 1 - n
                q = q[k + 1:]
            gap += 1
            out.append(x.text); lastm = len(out); nvis = len(q)
        else:
            if x.cls == 'vmem':
                needed = [i for i, (r, g) in enumerate(q) if r & x.r]
                if needed:
                    n = min(15, len(q) - 1 - max(needed)); drop = len(q) - n
                    out.append(f's_waitcnt lgkmcnt({n})'); q = q[drop:]
                    if nvis is not None: nvis = max(0, nvis - drop)
            if x.cls == 'ds': q.append((set(x.w), gap))
            if x.cls == 'wait' and x.lgkm is not None:
                drop = max(0, len(q) - x.lgkm); q = q[drop:]
                if nvis is not None: nvis = max(0, nvis - drop)
            out.append(x.text)
    return out, [(r, gap - g) for r, g in q]

class Prog:
    def __init__(self): self.mf = []; self.ops = []; self.pos = {}
    def group(self, name, mf): self.pos[name] = len(self.mf); self.mf += mf
    def done(self):
        self.ins = [Ins(m) for m in self.mf]; self.n = len(self.mf); self.gaps = [Gap() for _ in self.mf]
    def first_read(self, R, lo): return next((i for i in range(lo, self.n) if R & self.ins[i].srcAB), INF)
    def last_read(self, R, hi): return next((i for i in range(min(hi, self.n) - 1, -1, -1) if R & self.ins[i].srcAB), -1)
    def last_write(self, R, hi): return next((i for i in range(min(hi, self.n) - 1, -1, -1) if R & self.ins[i].w), -1)
    def next_write(self, R, lo): return next((i for i in range(lo, self.n) if R & self.ins[i].w), INF)
    def kload(self, key, use, slot, tag, nkb=4, kbase=aK, addr=KA, rel0=0, dlmax=None):
        for f in range(4 * nkb):
            kb, ks = kord(f)
            R = AR(kbase + 16*kb + 4*ks, 4)
            u = self.first_read(R, use) if use < self.n else self.n + f
            rel = min(self.n - 1, max(rel0, self.last_read(R, u) + 1))
            dl = u - LAT if dlmax is None else min(u - LAT, dlmax - (4*nkb - 1 - f))
            self.ops.append(Op((key, f), 'R', rel, max(rel, dl), i_kread(kb, ks, slot, tag, kbase, addr), deps=[(key, f-1)] if f else []))
    def vload(self, key, use, slot, tag, nks=2, vbase=None, addr=VA, rel0=0):
        for db in range(8):
            for ks in range(nks):
                R = AR(vfrag(db, ks, vbase), 4)
                u = self.first_read(R, use)
                rel = max(rel0, self.last_read(R, u) + 1)
                for t in range(2):
                    if vbase == 'ov' and t == 1 and db < 7: continue
                    self.ops.append(Op((key, db, ks, t), 'T', rel, max(rel, u - LAT - (1 - t)), i_vread(db, ks, t, slot, tag, vbase, addr)))
    def softmax(self, key, at, sb, pb, nkb=4, only=None, skip=(), dlcap=None, use=0, lastrel=INF, zero=True):
        end = at + 4*nkb if at >= 0 else 0
        u = self.first_read(VR(P0 + 8*pb, 8), max(end, use))
        prel = min(self.last_read(VR(P0 + 8*pb, 8), u) + 1, u - 1)
        cap = min(u - 3, self.next_write(VR(S0 + 16*sb, 16), end) - 1, self.n - 1 if dlcap is None else dlcap)
        n = 4 * nkb; edl = {}
        for e in range(n):
            if (only is not None and ('e', e) not in only) or ('e', e) in skip: continue
            rel = min(lastrel, at + 4*(e//4) + 3 + 5) if at >= 0 else 0
            edl[e] = min(max(rel, cap - 1 - 2*(n - 1 - e), min(cap - 1, rel + e % 4)), max(rel, cap))
            self.ops.append(Op((key, 'e', e), 'E', rel, edl[e], i_exp(sb, e)))
        for i in range(2 * nkb):
            if (only is not None and ('c', i) not in only) or ('c', i) in skip: continue
            rel = max(prel, min(lastrel, at + 4*(i//2) + 3 + 6) if at >= 0 else 0)
            self.ops.append(Op((key, 'c', i), 'H', rel, max(rel, cap - (2*nkb - 1 - i), min(cap, edl.get(2*i+1, 0) + 1)), i_cvt(sb, pb, i),
                               deps=[(key, 'e', 2*i), (key, 'e', 2*i+1)]))
            assert rel <= u - 1, (key, i, rel, u)
        if only is None and zero:
            for i in range(2 * nkb, 8):
                self.ops.append(Op((key, 'z', i), 'H', prel, max(prel, u - 3), f'v_mov_b32 {v(P0+8*pb+i)}, 0'))

NG = 132
LOOP_MF = qkg(0) + pvg(2) + qkg(1) + pvg(3) + qkg(2) + pvg(0) + qkg(3) + pvg(1)
assert len(LOOP_MF) == NG
BARG = OPT.get('barg', 47)
DMAG = [10, 14, 18, 22, 26, 30, 34, 38]
RLG = [41, 43, 92, 96] if BARG not in (41, 43) else [45, 47, 92, 96]

def steady(DMAG, RLG, sh0, shv=0):
    NT = 6
    ops = []
    gaps = [Gap() for _ in range(NG * (NT + 1))]
    for j in range(NT):
        b = NG * j
        for q in range(4):
            pvs = b + 82 + 33*q; qs = b + 33*q
            for e in range(16):
                g = qs + OPT['delta'] + 2*e + (sh0 if q == 0 else 0) + (shv if (q == 1 and e >= 4) or q == 2 else 0)
                ops.append(Op(('e', j, q, e), 'E', g, g, None))
            for i in range(8):
                ops.append(Op(('c', j, q, i), 'H', pvs - NG + 17, pvs - 3 - (7 - i), None, deps=[('e', j, q, 2*i), ('e', j, q, 2*i+1)]))
        for f in range(16):
            for t in range(2):
                ops.append(Op(('v', j, f//2, f%2, t), 'T', max(b + 50 + f, b + BARG + 1), b + 82 + f - LAT - (1 - t), None))
            ops.append(Op(('k', j, f//4, f%4), 'R', b + 100 + f, min(b + NG - 2 - (15 - f), b + NG + f - LAT), None,
                          deps=[('k', j, (f-1)//4, (f-1)%4)] if f else []))
        for i in range(4): ops.append(Op(('rl', j, i), 'E', b + RLG[i], b + RLG[i], None))
        for i in range(8): ops.append(Op(('d', j, i), 'D', b + DMAG[i], b + DMAG[i], None))
        gaps[b + BARG].block = 'all'
        gaps[b + NG - 1].block = 'half'
    schedule(NG * (NT + 1), ops, gaps)
    def pattern(j):
        return [[(o.key[0], o.key[1] - j) + o.key[2:] for o in gaps[NG*j + g].mem + gaps[NG*j + g].valu] for g in range(NG)]
    assert pattern(3) == pattern(4), 'no steady state'
    return pattern(3)
NCOPY = {0: 1, 1: 2, 2: 2, 4: 4}[OPT['stag']]
VARS = []
for ph in (0, 2, 1, 3)[:NCOPY]:
    dg = [g + ph for g in DMAG]; rg = RLG if ph < 3 else [43, 45, 92, 96]
    shv = OPT.get('shv', 0) and ph == 2
    if shv: rg = [41, 43, 93, 97]
    VARS.append((steady(dg, rg, ph & 1, shv), dg, rg))
PAT = VARS[0][0]
assert all({k for g in V[0] for k in g if k[1] == -1} == {k for g in PAT for k in g if k[1] == -1} for V in VARS)
LEFT = {k for g in PAT for k in g if k[1] == -1}
assert all(k[0] in 'ec' and k[2] == 3 for k in LEFT), LEFT
LEFT3 = {(k[0], k[3]) for k in LEFT}
HEADWAIT = 's_waitcnt lgkmcnt(4)'

class Txt:
    def __init__(self, t): self.text = t

def body(sl, w=0):
    PAT, DMAG, RLG = VARS[w]
    def text(k):
        if k[0] == 'e': return i_exp(k[2], k[3])
        if k[0] == 'c': return i_cvt(k[2], k[2], k[3])
        if k[0] == 'v': return i_vread(k[2], k[3], k[4], sl, '+0')
        if k[0] == 'k': return i_kread(*kord(4*k[2] + k[3]), (sl + 1) % 4, '+1')
        if k[0] == 'rl': return f'v_readlane_b32 {s(SETS[sl%2] + k[2])}, {v(BT+k[2])}, {s(sLN)}'
        if k[0] == 'd': return i_dma(1, k[2], SETS[sl % 2], '+2') if k[2] < 4 else i_dma(0, k[2] - 4, SETS[(sl + 1) % 2], '+3')
    gaps = [Gap() for _ in range(NG)]
    for g in range(NG):
        for k in PAT[g]: (gaps[g].mem if k[0] in 'vkd' else gaps[g].valu).append(Txt(text(k)))
    gaps[DMAG[0] - 2].sc.append(i_m0(1, (sl + 2) % 4))
    gaps[DMAG[4] - 2].sc.append(i_m0(0, (sl + 3) % 4))
    gaps[RLG[-1] + 2].sc.append(f's_add_u32 {s(sLN)}, {s(sLN)}, 1')
    gaps[BARG - OPT.get('vmo', 1)].sc.append('s_waitcnt vmcnt(16)')
    gaps[BARG].sc.append('s_barrier')
    if sl == 0: gaps[NG - 3].sc.append(f's_sub_u32 {s(sIT)}, {s(sIT)}, 1')
    if sl == 0 and OPT['nok'] and OPT['tv'] in (3, 5):
        gaps[2].sc.append(f's_cmp_eq_u32 {s(sIT)}, {s(sLAST)}'); gaps[3].sc.append('s_cselect_b32 s10, 0, s10')
    if OPT['nok'] == 2 and OPT['tv'] == 3 and sl in (0, 3):
        g0 = DMAG[0 if sl == 0 else 4]
        gaps[g0 + 1].sc.append(f's_cmp_eq_u32 {s(sIT)}, {s(sLAST)}'); gaps[g0 + 2].sc.append(f's_cselect_b32 s{14 if sl == 0 else 10}, 0, s{14 if sl == 0 else 10}')
    gaps[NG - 2].sc.append(HEADWAIT)
    lines = emit(LOOP_MF, gaps)
    ab = OPT.get('abl', 0)
    if ab & 1: lines = [l for l in lines if not l.startswith('buffer_load')]
    if ab & 2: lines = [l for l in lines if not l.startswith(('s_barrier', 's_waitcnt vmcnt'))]
    if ab & 32: lines = [l for l in lines if not l.startswith('s_barrier')]
    return lines

EXPC = 1 if OPT['tv'] in (3, 5) else 2
def dispatch(w):
    x = 'bcde'[w]
    out = []
    for c in sorted((1, 2, 3), key=lambda c: c != EXPC): out += [f's_cmp_eq_u32 {s(sE)}, {c}', f's_cbranch_scc1 L_{x}{(c + 1) % 4}']
    return out + [f's_cmp_eq_u32 {s(sNP)}, 4', 's_cbranch_scc1 L_tail']
def wave_select():
    if NCOPY == 1: return []
    if NCOPY == 2:
        return [f's_cmp_eq_u32 {s(sE2)}, {4 + EXPC}', f's_cbranch_scc1 L_c{EXPC + 1}', f's_cmp_gt_u32 {s(sE2)}, 3', 's_cbranch_scc1 L_w1']
    return [x for w in (1, 2, 3) for x in (f's_cmp_eq_u32 {s(sW)}, {w}', f's_cbranch_scc1 L_w{w}')]
def loop_copy(w, pend):
    x = 'bcde'[w]
    out = [f'L_w{w}:'] + dispatch(w) + ['.p2align 6']
    for sl in (1, 2, 3, 0):
        l, pend2 = add_lgkm_waits(body(sl, w), pend)
        assert [x_[0] for x_ in pend2] == [x_[0] for x_ in pend]
        out += [f'L_{x}{sl}:'] + l
    return out + [f's_cbranch_scc0 L_{x}1', 's_branch L_tail']

def loop_code():
    _, pend = add_lgkm_waits(body(1))
    out = ['s_branch L_b1', 'L_padA:', 's_branch L_ret'] if OPT['touch'] else []
    out += ['.p2align 6']
    for sl in (1, 2, 3, 0):
        l, pend2 = add_lgkm_waits(body(sl), pend)
        assert [x[0] for x in pend2] == [x[0] for x in pend]
        out += [f'L_b{sl}:']
        if OPT.get('its'):
            for k in range(3):
                out += [f's_cmp_eq_u32 {s(sLN)}, {OPT["its"] + k * OPT.get("itd", 1)}', f's_cbranch_scc0 L_sk{sl}{k}', f's_mem{"real" if OPT.get("rt") else ""}time {s(sST+2+2*k,2)}', f'L_sk{sl}{k}:']
        out += l
        if OPT['touch'] and sl == 2: out += ['L_padB:', 's_cbranch_vccnz L_ret']
    return out + ['s_cbranch_scc0 L_b1'], pend

def EP(q): return OPT.get(f'ep{q}', OPT['ep'])
def epi_list(q, first):
    t = T0 + 2 * (q & 1)
    o = O0 + 32*q
    L = [('H', f'v_accvgpr_read_b32 {v(t)}, {a(aL+4*q)}', -1),
         ('H', f'v_accvgpr_read_b32 {v(t+1)}, {a(aL+4*q+1)}', -1),
         ('H', f'v_add_f32 {v(t)}, {v(t)}, {v(t+1)}', -1),
         ('E', f'v_rcp_f32 {v(t+1)}, {v(t)}', -1),
         ('H', f'v_subrev_u32 {v(t)}, 0x2b800000, {v(t)}', -1),
         ('H', f'v_mov_b32 {v(T0+4)}, {v(t)}' if first else f'v_max_u32 {v(T0+4)}, {v(T0+4)}, {v(t)}', -1)]
    def muls(u): return [('M', (o + 8*u + i, t + 1), u) for i in range(8)]
    def cvts(u): return [('H', f'v_cvt_pk_bf16_f32 {v(o+8*u+i)}, {v(o+8*u+2*i)}, {v(o+8*u+2*i+1)}', u) for i in range(4)]
    def swaps(u): return [('E', f'v_permlane16_swap_b32 {v(o+8*u+i)}, {v(o+8*u+2+i)}', u) for i in range(2)]
    def store(u):
        if OPT['urot']: return [('D', f'buffer_store_dwordx4 {v(o+8*u,4)}, {v(BT+u)}, s[16:19], {qoff(q)} offen{FL[OPT.get(f"of{q}", OPT["of"])]}', u)]
        return [('D', f'buffer_store_dwordx4 {v(o+8*u,4)}, {v(OV)}, s[16:19], {qoff(q)} offen offset:{64*u}{FL[OPT.get(f"of{q}", OPT["of"])]}', u)]
    if EP(q) == 2:
        def writes(u): return [('W' if OPT['wcls'] else 'T', f'ds_write_b64 {v(EW)}, {v(o+8*u+2*i,2)} offset:{64*u+32*i}', u) for i in range(2)]
        def reads(hb): return [('R', f'ds_read_b128 {v(o+16*hb+8*j+4,4)}, {v(ER)} offset:{3200*j+128*hb}', 2*hb+1) for j in range(2)]
        def stores(hb): return [('D', f'buffer_store_dwordx4 {v(o+16*hb+8*j+4,4)}, {v(EG)}, s[16:19], {qoff(q)} offen offset:{2048*j+128*hb}{FL[OPT.get(f"of{q}", OPT["of"])]}', 2*hb+1) for j in range(2)]
        w = lambda u: muls(u) + cvts(u) + writes(u)
        return L + w(0) + w(1) + reads(0) + muls(2) + cvts(2) + stores(0)[:1] + writes(2) + muls(3) + stores(0)[1:] + cvts(3) + writes(3) + reads(1) + stores(1)
    if EP(q):
        def writes(u): return [('T', f'ds_write_b64 {v(EW)}, {v(o+8*u+2*i,2)} offset:{64*u+32*i}', u) for i in range(2)]
        for u in range(4): L += muls(u) + cvts(u) + writes(u)
        L += [('R', f'ds_read_b128 {v(o+8*p+4,4)}, {v(ER)} offset:{1088*p}', 3) for p in range(4)]
        L += [('D', f'buffer_store_dwordx4 {v(o+8*p+4,4)}, {v(EG)}, s[16:19], {qoff(q)} offen offset:{1024*p}{FL[OPT.get(f"of{q}", OPT["of"])]}', 3) for p in range(4)]
        return L
    h = lambda l, a_, b_: l[a_:b_]
    L += muls(0) + cvts(0) + h(muls(1), 0, 2) + swaps(0) + store(0) + h(muls(1), 2, 8) + cvts(1) + h(muls(2), 0, 2) + swaps(1) + store(1) \
       + h(muls(2), 2, 8) + cvts(2) + h(muls(3), 0, 2) + swaps(2) + store(2) + h(muls(3), 2, 8) + cvts(3) + [('H', 's_nop 1', 3)] + swaps(3) + store(3)
    return L

def final(q, items):
    return [sm(q, pb) for pb, vb, nk in items] + [pv(q, db, ks, pb, vb) for db in range(8) for pb, vb, nk in items for ks in range(nk)]

def tail_merged():
    P = Prog(); G = P.group
    k3 = lambda q, sb: qkg(q, 1, sb=sb, kbase=aX, mask=True)
    fin = lambda q, pb: final(q, [(q, None, 2), (pb, 'ov', 1)])
    order = {0: 'q0 p2 p3 r0 r1 q1 f0 q2 r2 f1 q3 r3 f2 f3', 1: 'q0 p2 p3 r0 r1 q1 f0 r2 q2 f1 r3 q3 f2 f3',
             3: 'q0 p2 p3 r0 r1 q1 f0 r2 q2 f1 r3 f2 q3 x3 f3', 5: 'q0 p2 p3 r0 r1 f0 q1 r2 q2 f1 r3 q3 f2 f3',
             6: 'q0 p2 p3 r0 r1 f0 q1 r2 q2 f1 r3 f2 q3 x3 f3', 7: 'q0 p2 r0 p3 r1 f0 q1 r2 q2 f1 r3 q3 f2 f3',
             8: 'q0 p2 r0 p3 f0 r1 q1 r2 q2 f1 r3 q3 f2 f3', 9: 'q0 p2 r0 p3 r1 f0 q1 r2 q2 f1 r3 f2 q3 x3 f3',
             10: 'q0 p2 r0 p3 r1 f0 q1 q2 r2 f1 r3 f2 q3 x3 f3'}[OPT['tord']].split()
    for nm in order:
        q = int(nm[1])
        G(nm, {'q': lambda: qkg(q), 'p': lambda: pvg(q), 'r': lambda: k3(q, (q + 2) % 4), 'x': lambda: final(q, [((q + 2) % 4, 'ov', 1)]),
               'f': lambda: final(q, [(q, None, 2)]) if f'x{q}' in order else fin(q, (q + 2) % 4)}[nm[0]]())
    P.done(); p = P.pos
    bar2 = p['p3'] + OPT.get('b2', 8)
    P.softmax('left', -1, 3, 3, only=LEFT3)
    for q in range(4):
        P.softmax(f's{q}', p[f'q{q}'], q, q, use=p[f'f{q}'])
        P.softmax(f't{q}', p[f'r{q}'], (q + 2) % 4, (q + 2) % 4, 1, use=p.get(f'x{q}', p[f'f{q}']))
    P.kload('k3', p['r0'], 2, 'T3', 1, kbase=aX, rel0=2); P.vload('v2', p['f0'], 1, 'T2', rel0=2)
    P.vload('v3', p['f0'], 2, 'T3', 1, 'ov', rel0=bar2 + 1)
    g = P.gaps
    g[0].sc.append('s_waitcnt vmcnt(8)'); g[1].sc.append('s_barrier'); g[1].block = 'all'
    g[bar2 - 1].sc.append('s_waitcnt vmcnt(4)'); g[bar2].sc.append('s_barrier'); g[bar2].block = 'all'
    return P

def tail_y():
    P = Prog(); G = P.group
    G('q0', qkg(0)); G('p2', pvg(2)); G('p3', pvg(3)); G('q1', qkg(1)); G('f0', final(0, [(0, None, 2)]))
    G('q2', qkg(2)); G('f1', final(1, [(1, None, 2)])); G('r3', qkg(3, 1, sb=0, kbase=aX, mask=True)); G('q3', qkg(3))
    if OPT['tord'] == 2: G('x3', final(3, [(0, 'ov', 1)])); G('f2', final(2, [(2, None, 2)])); G('f3', final(3, [(3, None, 2)]))
    else: G('f2', final(2, [(2, None, 2)])); G('f3', final(3, [(3, None, 2), (0, 'ov', 1)]))
    P.done(); p = P.pos
    P.softmax('left', -1, 3, 3, only=LEFT3)
    for q in range(4): P.softmax(f's{q}', p[f'q{q}'], q, q, use=p[f'f{q}'])
    P.softmax('t3', p['r3'], 0, 0, 1)
    P.vload('v2', p['f0'], 1, 'T2', rel0=2)
    g = P.gaps
    g[0].sc.append('s_waitcnt vmcnt(8)'); g[1].sc.append('s_barrier'); g[1].block = 'all'
    return P

def tail_x():
    P = Prog(); G = P.group
    G('A1', qkg(0, sb=0)); G('A2', pvg(2)); G('A3', qkg(1, sb=1)); G('A4', pvg(3)); G('A5', qkg(0, sb=2))
    if OPT['tord'] < 2: G('A6', qkg(1, sb=3))
    G('A7', pvg(0, pb=0)); G('A8', pvg(1, pb=1)); G('A10', final(0, [(2, None, 2)]))
    if OPT['tord'] == 2: G('A6', qkg(1, sb=3))
    G('B1', qkg(2, sb=2)); G('A11', final(1, [(3, None, 2)])); G('B2', qkg(3, sb=3)); G('B3', qkg(2, sb=0))
    G('r3', qkg(3, 1, sb=1, kbase=aX, mask=True)); G('B4', pvg(2, pb=2)); G('B5', pvg(3, pb=3))
    if OPT['tord']:
        G('B8', final(2, [(0, None, 2)])); G('B6', qkg(3, sb=1)); G('x3', final(3, [(3, 'ov', 1)])); G('B9', final(3, [(1, None, 2)]))
    else:
        G('B6', qkg(3, sb=1)); G('B8', final(2, [(0, None, 2)])); G('B9', final(3, [(1, None, 2), (3, 'ov', 1)]))
    P.done(); p = P.pos
    bar2 = p['A5'] + 6
    P.softmax('left', -1, 3, 3, only=LEFT3)
    P.softmax('s10', p['A1'], 0, 0); P.softmax('s11', p['A3'], 1, 1); P.softmax('s20', p['A5'], 2, 2); P.softmax('s21', p['A6'], 3, 3)
    P.softmax('s12', p['B1'], 2, 2); P.softmax('s13', p['B2'], 3, 3); P.softmax('s22', p['B3'], 0, 0); P.softmax('s23', p['B6'], 1, 1)
    P.softmax('t3', p['r3'], 1, 3, 1, use=p['B8'])
    P.kload('k2', p['A5'], 2, 'T2', rel0=2); P.vload('v1', p['A7'], 1, 'T1', rel0=2); P.vload('v2', p['A10'], 2, 'T2', rel0=bar2 + 1)
    P.kload('k1b', p['B1'], 1, 'T1'); P.kload('k2b', p['B3'], 2, 'T2'); P.vload('v1b', p['B4'], 1, 'T1'); P.vload('v2b', p['B8'], 2, 'T2')
    g = P.gaps
    g[0].sc.append('s_waitcnt vmcnt(8)'); g[1].sc.append('s_barrier'); g[1].block = 'all'
    g[bar2 - 1].sc.append('s_waitcnt vmcnt(4)'); g[bar2].sc.append('s_barrier'); g[bar2].block = 'all'
    if OPT.get('otlb') == 2:
        P.ops.append(Op(('ot', 0), 'D', bar2 + 2, bar2 + 2, f'buffer_load_dword {v(BT)}, {v(OV)}, s[16:19], 0 offen sc1'))
    return P

def tail_pairs(nkb):
    nks = 1 if nkb <= 2 else 2
    small = nkb <= 2
    vx = aX if small else None
    P = Prog()
    G = P.group
    G('A1', qkg(0, sb=0)); G('A2', pvg(2)); G('A3', qkg(1, sb=1)); G('A4', pvg(3))
    G('A5', qkg(0, sb=2)); G('A6', qkg(1, sb=3)); G('A7', pvg(0, pb=0))
    if not small: G('A8', pvg(1, pb=1))
    G('A9a', qkg(0, nkb, sb=0, mask=True)); G('A9b', qkg(1, nkb, sb=1, mask=True))
    if small:
        G('A8', pvg(1, pb=1))
        G('A10', final(0, [(2, None, 2), (0, vx, 1)])); G('B1', qkg(2, sb=2)); G('A11', final(1, [(3, None, 2), (1, vx, 1)]))
        G('B2', qkg(3, sb=3)); G('B3', qkg(2, sb=0)); G('B4', pvg(2, pb=2))
        G('B7a', qkg(2, nkb, sb=2, kbase=aQ, mask=True)); G('B7b', qkg(3, nkb, sb=3, kbase=aQ, mask=True)); G('B5', pvg(3, pb=3))
        if OPT['tord']:
            G('B8', final(2, [(0, None, 2), (2, vx, 1)])); G('B6', qkg(3, sb=1))
            G('B9a', final(3, [(3, vx, 1)])); G('B9', final(3, [(1, None, 2)]))
        else:
            G('B6', qkg(3, sb=1))
            G('B8', final(2, [(0, None, 2), (2, vx, 1)])); G('B9', final(3, [(1, None, 2), (3, vx, 1)]))
    else:
        G('A10p', pvg(0, pb=2)); G('A11p', pvg(1, pb=3)); G('B1', qkg(2, sb=2))
        G('A10', final(0, [(0, None, 2)])); G('A11', final(1, [(1, None, 2)]))
        G('B2', qkg(3, sb=3)); G('B3', qkg(2, sb=0)); G('B4', pvg(2, pb=2)); G('B5', pvg(3, pb=3)); G('B6', qkg(3, sb=1))
        G('B8p', pvg(2, pb=0)); G('B7a', qkg(2, nkb, sb=2, mask=True)); G('B9p', pvg(3, pb=1)); G('B7b', qkg(3, nkb, sb=3, mask=True))
        G('B8', final(2, [(2, None, 2)])); G('B9', final(3, [(3, None, 2)]))
    P.done(); p = P.pos
    bar2 = p['A6'] + 10
    P.softmax('left', -1, 3, 3, only=LEFT3)
    P.softmax('s10', p['A1'], 0, 0); P.softmax('s11', p['A3'], 1, 1); P.softmax('s20', p['A5'], 2, 2); P.softmax('s21', p['A6'], 3, 3)
    P.softmax('s30', p['A9a'], 0, 0, nkb); P.softmax('s31', p['A9b'], 1, 1, nkb, use=p['A10'])
    P.softmax('s12', p['B1'], 2, 2); P.softmax('s13', p['B2'], 3, 3); P.softmax('s22', p['B3'], 0, 0); P.softmax('s23', p['B6'], 1, 1)
    P.softmax('s32', p['B7a'], 2, 2, nkb); P.softmax('s33', p['B7b'], 3, 3, nkb, use=p['B8'])
    P.kload('k2', p['A5'], 2, 'T2', rel0=2); P.vload('v1', p['A7'], 1, 'T1', rel0=2)
    P.kload('k3', p['A9a'], 3, 'T3', nkb, rel0=bar2 + 1)
    P.kload('k1b', p['B1'], 1, 'T1'); P.kload('k2b', p['B3'], 2, 'T2'); P.vload('v1b', p['B4'], 1, 'T1')
    if small:
        P.vload('v2', p['A10'], 2, 'T2', rel0=bar2 + 1); P.vload('v3', p['A10'], 3, 'T3', 1, vx, rel0=bar2 + 1)
        P.kload('k3b', p['B7a'], 3, 'T3', nkb, kbase=aQ); P.vload('v2b', p['B8'], 2, 'T2')
    else:
        P.vload('v2', p['A10p'], 2, 'T2', rel0=bar2 + 1); P.vload('v3', p['A10'], 3, 'T3')
        P.kload('k3b', p['B7a'], 3, 'T3', nkb); P.vload('v2b', p['B8p'], 2, 'T2'); P.vload('v3b', p['B8'], 3, 'T3')
    for i in range(4):
        P.ops.append(Op(('d', i), 'D', 10 + 4*i, 11 + 4*i, i_dma(1, i, SETS[1], 'T3')))
    g = P.gaps
    g[0].sc.append('s_waitcnt vmcnt(8)'); g[1].sc.append('s_barrier'); g[1].block = 'all'
    g[8].sc.append(i_m0(1, 3))
    g[bar2 - 1].sc.append('s_waitcnt vmcnt(0)'); g[bar2].sc.append('s_barrier'); g[bar2].block = 'all'
    return P

def tail(nkb, pend):
    P = {3: tail_merged, 4: tail_x, 5: tail_y}[OPT['tv']]() if nkb == 1 and OPT['tv'] >= 3 else tail_pairs(nkb)
    p = P.pos
    prev = None
    if OPT['urot']:
        for i, x in enumerate([f'v_or_b32 {v(BT)}, {s(sY)}, {v(OV)}'] + [f'v_xor_b32 {v(BT+u)}, {64*u}, {v(BT)}' for u in (1, 2, 3)]):
            o = Op(('su', i), 'H', 24, INF, x, fifo=prev, pri=60 + i); prev = o.key; P.ops.append(o)
    if any(EP(q) for q in range(4)):
        t = T0
        setup = [f'v_mbcnt_lo_u32_b32 {v(t)}, -1, 0', f'v_mbcnt_hi_u32_b32 {v(t)}, -1, {v(t)}',
                 f'v_and_b32 {v(t+1)}, 15, {v(t)}', f'v_lshrrev_b32 {v(t+2)}, 4, {v(t)}',
                 f'v_mul_u32_u24 {v(EW)}, 272, {v(t+1)}', f'v_lshl_add_u32 {v(EW)}, {v(t+2)}, 3, {v(EW)}',
                 f'v_mul_u32_u24 {v(ER)}, 272, {v(t+2)}', f'v_lshl_add_u32 {v(ER)}, {v(t+1)}, 4, {v(ER)}',
                 f'v_add_u32 {v(EW)}, {s(sT+3)}, {v(EW)}', f'v_add_u32 {v(ER)}, {s(sT+3)}, {v(ER)}',
                 f'v_lshlrev_b32 {v(EG)}, 4, {v(t)}', f'v_add_u32 {v(EG)}, {s(sT+4)}, {v(EG)}']
        if max(EP(q) for q in range(4)) == 2:
            setup = setup[:4] + [f'v_mul_u32_u24 {v(EW)}, 400, {v(t+1)}', f'v_lshl_add_u32 {v(EW)}, {v(t+2)}, 3, {v(EW)}',
                     f'v_lshrrev_b32 {v(t+1)}, 3, {v(t)}', f'v_and_b32 {v(t+2)}, 7, {v(t)}',
                     f'v_mul_u32_u24 {v(ER)}, 400, {v(t+1)}', f'v_lshl_add_u32 {v(ER)}, {v(t+2)}, 4, {v(ER)}',
                     f'v_add_u32 {v(EW)}, {s(sT+3)}, {v(EW)}', f'v_add_u32 {v(ER)}, {s(sT+3)}, {v(ER)}',
                     f'v_lshlrev_b32 {v(EG)}, 8, {v(t+1)}', f'v_lshl_add_u32 {v(EG)}, {v(t+2)}, 4, {v(EG)}', f'v_add_u32 {v(EG)}, {s(sT+4)}, {v(EG)}']
        for i, x in enumerate(setup):
            o = Op(('su', i), 'H', 24, INF, x, fifo=prev, pri=100 + i); prev = o.key; P.ops.append(o)
    laststore = None
    for q in range(4):
        lrel = P.last_write(AR(aL + 4*q, 4), INF) + 5
        nst = 0
        for i, (c, t, u) in enumerate(epi_list(q, q == 0)):
            rel = lrel if u < 0 else max(lrel, P.last_write(VR(O0 + 32*q + 8*u, 8), INF) + 5)
            fin = P.last_write(VR(O0 + 32*q, 32), INF) + 5
            edl = OPT.get(f'edl{q}', OPT.get('edl', INF))
            nst += c == 'D'
            free = c == 'D' and not EP(q) and OPT['ssp0'] > 0
            dl = INF if edl >= INF else fin + edl + (LAT + OPT['ssp'] * (nst - 1) if c == 'D' and EP(q) == 1 else LAT if c == 'D' and EP(q) == 2 and nst > 2 else 0)
            if free: dl = INF
            o = Op(('ep', q, i), {'M': 'H'}.get(c, c), rel, dl if dl < P.n - 1 else INF,
                   f'v_mul_f32 {v(t[0])}, {v(t[1])}, {v(t[0])}' if c == 'M' else t,
                   fifo=laststore if free else prev, deps=[prev] if free else (), pri=-INF if free else rel + OPT['epri'] + i // 2)
            o.raw = (c, t); P.ops.append(o)
            if free: laststore = o.key
            else: prev = o.key
            if c != 'D': lastnd = o.key
        if EP(q): prev = lastnd
    g = P.gaps
    todo = schedule(P.n, P.ops, g, overflow=True)
    if OPT.get('ts'):
        names = {1: ('A5', 'A10', 'B2'), 2: ('B4', 'B8', 'B9'), 3: ('A2', 'A7', 'A11')}[OPT['ts']] if 'A5' in p else {1: ('p3', 'f0', 'f1'), 2: ('q3', 'f2', 'f3')}[OPT['ts']]
        for k, nm in enumerate(names): g[p[nm]].sc += stamp(1 + k)
        if nkb == 1: print('stamp mfma idx', [p[nm] for nm in names], p)
    if OPT['pkd']:
        import re
        for gp in g:
            if sum(x.startswith('v_mul_f32') for x in gp.post) < OPT['pkd']: continue
            out = []; i = 0
            while i < len(gp.post):
                m = re.match(r'v_mul_f32 v(\d+), v(\d+),', gp.post[i])
                if m and int(m.group(1)) % 2 == 0 and i + 1 < len(gp.post) and gp.post[i+1].startswith(f'v_mul_f32 v{int(m.group(1))+1},'):
                    out.append(f'v_pk_mul_f32 {v(int(m.group(1)),2)}, {v(int(m.group(1)),2)}, {v(int(m.group(2))-1,2)} op_sel:[0,1] op_sel_hi:[1,1]'); i += 2
                else: out.append(gp.post[i]); i += 1
            gp.post = out
    lines = emit(P.mf, g)
    assert all(o.key[0] == 'ep' for o in todo), [o.key for o in todo]
    i = 0
    while i < len(todo):
        c, t = todo[i].raw
        if c == 'M' and i + 1 < len(todo) and todo[i+1].raw[0] == 'M' and t[0] % 2 == 0 and todo[i+1].raw[1][0] == t[0] + 1:
            lines.append(f'v_pk_mul_f32 {v(t[0],2)}, {v(t[0],2)}, {v(t[1]-1,2)} op_sel:[0,1] op_sel_hi:[1,1]'); i += 2
        else:
            lines.append(todo[i].text); i += 1
    lines, _ = add_lgkm_waits(lines, pend)
    return lines

def scale_q(q):
    out = []
    for h in range(0, 16, 4):
        for i in range(4):
            x = S0 + 16*q + h + i; t = T0 + 2*i
            out += [f'v_lshlrev_b32 {v(t)}, 16, {v(x)}', f'v_and_b32 {v(t+1)}, 0xffff0000, {v(x)}']
        out += [f'v_pk_mul_f32 {v(T0+2*i,2)}, {v(T0+2*i,2)}, {s(sC,2)}' for i in range(4)]
        out += [f'v_cvt_pk_bf16_f32 {v(S0+16*q+h+i)}, {v(T0+2*i)}, {v(T0+2*i+1)}' for i in range(4)]
        out += [f'v_accvgpr_write_b32 {a(aQ+16*q+h+i)}, {v(S0+16*q+h+i)}' for i in range(4)]
    return out
def qread(q): return [f'ds_read_b128 {v(S0+16*q+4*ks,4)}, {v(QA+ks)} offset:{(q&1)*0x4000}' for ks in range(4)] + ['s_waitcnt lgkmcnt(0)']
def qload(q):
    return [f's_add_u32 m0, {s(sMK)}, {0x20000 + (q&1)*0x4000}', 's_nop 0'] + \
           [f'buffer_load_dwordx4 {v(QD+p)}, s[4:7], {qoff(q)} offen offset:{1024*p}{FL[OPT["qf"]]} lds ; ld Q{q}' for p in range(4)]
def dma4(isv, tile):
    return [f's_add_u32 m0, {s(sMV if isv else sMK)}, {s(sSL+tile)}', 's_nop 0'] + [i_dma(isv, i, 40 + 4*tile, tile) for i in range(4)]
def btprep(tile):
    out = []
    for i in range(4):
        r = 40 + 4*tile + i
        out.append(f's_min_u32 {s(r)}, {s(r)}, 131')
        out.append(f's_lshl_b32 {s(r)}, {s(r)}, 16')
        if i < 3: out.append(f's_or_b32 {s(r)}, {s(r)}, {(3-i)*1024}')
    return out

def resolve_waitvm(lines):
    out = []; vm = []
    for l in lines:
        if l.startswith('WAITVM'):
            tags = l.split(None, 1)[1].split('|')
            last = max(i for i, t in enumerate(vm) if t in tags)
            wb = {1: ('ld Q0', 'ld Q1'), 2: ('ld Q2', 'ld Q3'), 3: ('dma K 0', 'dma V 0'), 4: ('ld BT', 'ld BT')}.get(OPT.get('wb'), ())
            st_ = lambda i: [f's_memtime {s(sST+2*i,2)}']
            if tags[0] in wb: out += st_(1 + 2*wb.index(tags[0]))
            out.append(f's_waitcnt vmcnt({len(vm) - 1 - last}) ; {tags}')
            if tags[0] in wb: out += st_(2 + 2*wb.index(tags[0]))
        else:
            if l.startswith(('buffer_', 'global_')): vm.append(l.split(';')[1].strip() if ';' in l else '')
            out.append(l)
    return out

def prologue():
    t = T0
    L = ([f's_mov_b32 s83, {OPT["twice"]}', 'L_again:'] if OPT.get('twice') else []) + ['s_cmp_ge_u32 s2, 256', 's_cbranch_scc1 L_end',
         's_load_dwordx8 s[24:31], s[0:1], 0', 's_load_dwordx4 s[32:35], s[0:1], 32']
    L += [f's_lshr_b32 {s(sT+1)}, s2, 3']
    if OPT['cpf']:
        L += ['s_getpc_b64 s[8:9]', 'L_pc:', f's_lshl_b32 s10, {s(sT+1)}, 10', 'v_lshl_add_u32 v2, v0, 2, s10', 'v_mov_b32 v3, 0',
              'v_lshl_add_u64 v[2:3], v[2:3], 0, s[8:9]', f'global_load_dword {v(T0+7)}, v[2:3], off']
    L += stamp(0) + (['s_memrealtime s[100:101]'] if OPT['stamp'] else [])
    L += [f'v_lshrrev_b32 {v(t)}, 6, v0',
          f'v_and_b32 {v(t+2)}, 15, v0',
          f'v_readfirstlane_b32 {s(sW)}, {v(t)}',
          f'v_bfe_u32 {v(t+3)}, v0, 4, 2',
          f's_and_b32 {s(sT)}, s2, 7'] + ([f's_lshl_b32 {s(sT)}, {s(sT)}, 5', f's_add_u32 {s(sT)}, {s(sT)}, {s(sT+1)}'] if not OPT['hmap'] else
          [f's_lshl_b32 {s(sT)}, {s(sT)}, 4', f's_and_b32 {s(sT+2)}, {s(sT+1)}, 15', f's_add_u32 {s(sT)}, {s(sT)}, {s(sT+2)}', f's_and_b32 {s(sT+2)}, s2, 128', f's_add_u32 {s(sT)}, {s(sT)}, {s(sT+2)}']) + [ f's_lshl_b32 {s(sT+1)}, {s(sT)}, 16',
          f'v_lshl_add_u32 {v(t+4)}, {v(t)}, {WSH-8}, {v(t+3)}', f'v_xor_b32 {v(t+5)}, {v(t+2)}, {v(t+3)}',
          f'v_lshl_add_u32 {v(QD)}, {v(t+4)}, 4, {v(t+5)}', f'v_lshlrev_b32 {v(QD)}, 4, {v(QD)}',
          f's_lshl_b32 {s(sMK)}, {s(sW)}, 12'] + \
         {0: [], 1: [f's_mov_b32 {s(sQ0)}, {s(sMK)}'],
          2: [f's_add_u32 {s(sQ0)}, {s(sT)}, {s(sW)}', f's_and_b32 {s(sQ0)}, {s(sQ0)}, 3', f's_lshl_b32 {s(sQ0)}, {s(sQ0)}, 12'],
          3: [f's_and_b32 {s(sQ0)}, {s(sT)}, 3', f's_lshl_b32 {s(sQ0)}, {s(sQ0)}, 12'],
          4: [f's_and_b32 {s(sQ0)}, {s(sT)}, 3', f's_lshl_b32 {s(sQ0)}, {s(sQ0)}, 14'],
          5: [f's_mov_b32 {s(sQ0)}, 0'],
          6: [f's_add_u32 {s(sQ0)}, {s(sT)}, {s(sW)}', f's_and_b32 {s(sQ0)}, {s(sQ0)}, 3', f's_lshl_b32 {s(sQ0)}, {s(sQ0)}, 14']}[OPT['rot']] + [
          f'v_xor_b32 {v(QD+1)}, 64, {v(QD)}', f'v_xor_b32 {v(QD+2)}, 0x80, {v(QD)}',
          f'v_xor_b32 {v(QD+3)}, 64, {v(QD+2)}', 's_mov_b32 s6, 0x10000', 's_mov_b32 s7, 0x20000', qload(0)[0],
          's_waitcnt lgkmcnt(0)',
          f's_add_u32 s4, s24, {s(sT+1)}', 's_addc_u32 s5, s25, 0',
          f's_load_dword {s(sCL)}, s[32:33], 0', 's_load_dwordx16 s[40:55], s[30:31], 0']
    L += qload(0)[2:]
    if OPT['cpf'] and NCOPY > 2:
        L += ['s_mov_b64 s[8:9], 0x8000', 'v_lshl_add_u64 v[2:3], v[2:3], 0, s[8:9]', f'global_load_dword {v(T0+7)}, v[2:3], off']
    L += [f'v_and_b32 {v(t+1)}, 63, v0', f'v_lshlrev_b32 {v(t+6)}, 4, {v(t+1)}',
          's_mov_b32 s20, s30', 's_mov_b32 s21, s31', 's_movk_i32 s22, 0x200', 's_mov_b32 s23, 0x20000',
          f'buffer_load_dwordx4 {v(BT,4)}, {v(t+6)}, s[20:23], 0 offen ; ld BT',
          f's_lshr_b32 {s(sT)}, {s(sT)}, 4', f's_lshl_b32 {s(sT)}, {s(sT)}, 8',
          f's_add_u32 s8, s26, {s(sT)}', 's_addc_u32 s9, s27, 0', 's_sub_u32 s8, s8, 3072', 's_subb_u32 s9, s9, 0',
          f's_sub_u32 s10, {KBYTES+3072}, {s(sT)}', 's_mov_b32 s11, 0x20000',
          f'v_lshl_add_u32 {v(t+4)}, {v(t)}, 2, {v(t+3)}',
          f'v_xor_b32 {v(t+6)}, {v(t+2)}, {v(t+4)}', f'v_lshlrev_b32 {v(t+6)}, 4, {v(t+6)}',
          f'v_lshl_add_u32 {v(DK)}, {v(t+4)}, 12, {v(t+6)}',
          f'v_and_b32 {v(t+6)}, 7, {v(t+4)}', f'v_lshlrev_b32 {v(t+6)}, 1, {v(t+6)}',
          f'v_xor_b32 {v(t+6)}, {v(t+2)}, {v(t+6)}', f'v_lshlrev_b32 {v(t+6)}, 4, {v(t+6)}',
          f'v_lshl_add_u32 {v(DV)}, {v(t+4)}, 12, {v(t+6)}',
          ] + ([x for q in range(1, 4) for x in (f's_add_u32 {s(sQ1+q-1)}, {s(sQ0)}, {q << QSH}', f's_and_b32 {s(sQ1+q-1)}, {s(sQ1+q-1)}, {3 << QSH}')] if OPT['rot'] else
               [f's_movk_i32 {s(sQ1)}, 0x1000', f's_movk_i32 {s(sQ1+1)}, 0x2000', f's_movk_i32 {s(sQ1+2)}, 0x3000']) + [
          f's_add_u32 s12, s28, {s(sT)}', 's_addc_u32 s13, s29, 0', 's_sub_u32 s12, s12, 3072', 's_subb_u32 s13, s13, 0',
          's_mov_b32 s14, s10', 's_mov_b32 s15, 0x20000',
          f's_add_u32 s16, s34, {s(sT+1)}', 's_addc_u32 s17, s35, 0', 's_mov_b32 s18, 0x10000', 's_mov_b32 s19, 0x20000',
          f's_add_u32 {s(sMV)}, {s(sMK)}, 0x10000', f's_mov_b32 {s(sC)}, 0x3e0293ee',
          's_waitcnt lgkmcnt(0)'] + stamp(1)
    L += [f's_cmp_lt_i32 {s(sCL)}, 1', f's_cselect_b32 {s(sC)}, 0, {s(sC)}', f's_cselect_b32 {s(sCL)}, 0x800, {s(sCL)}',
          f's_min_u32 {s(sCLT)}, {s(sCL)}, 0x800', f's_max_u32 {s(sCL)}, {s(sCLT)}, {MINCL}',
          f's_add_u32 {s(sN)}, {s(sCL)}, 63', f's_lshr_b32 {s(sN)}, {s(sN)}, 6',
          f's_mov_b32 {s(sNP)}, {s(sN)}']
    if OPT['tv'] in (3, 5):
        L += [f's_sub_u32 {s(sNP)}, {s(sCL)}, 1', f's_and_b32 {s(sNP)}, {s(sNP)}, 63', f's_cmp_lt_u32 {s(sNP)}, 16', f's_addc_u32 {s(sNP)}, {s(sN)}, 0']
    L += [f's_sub_u32 {s(sE)}, 0, {s(sNP)}', f's_and_b32 {s(sE)}, {s(sE)}, 3', f's_lshl_b32 {s(sSL)}, {s(sE)}, 14']
    L += btprep(0) + dma4(0, 0) + qload(1)
    if OPT.get('otlb') == 1:
        L += [f'buffer_load_dword {v(O0+8)}, {v(QD)}, s[16:19], 0 offen sc1 ; ld O']
    L += [f's_mov_b32 {s(sC2)}, {s(sC)}',
          f's_cmp_lt_u32 {s(sCLT)}, {4096 if OPT["forceslow"] else MINCL}', f's_cselect_b32 {s(sFORCE)}, 1, 0',
          f's_add_u32 {s(sIT)}, {s(sNP)}, {s(sE)}', f's_lshr_b32 {s(sIT)}, {s(sIT)}, 2', f's_sub_u32 {s(sIT)}, {s(sIT)}, 2']
    for i in range(1, 4):
        L += [f's_add_u32 {s(sSL+i)}, {s(sSL)}, {i*0x4000}', f's_and_b32 {s(sSL+i)}, {s(sSL+i)}, 0xc000']
    L += [f's_sub_u32 {s(sT)}, {s(sN)}, 1', f's_lshl_b32 {s(sT)}, {s(sT)}, 6', f's_sub_u32 {s(sT)}, {s(sCL)}, {s(sT)}',
          f's_add_u32 {s(sNKB)}, {s(sT)}, 15', f's_lshr_b32 {s(sNKB)}, {s(sNKB)}, 4',
          f's_sub_u32 {s(sT)}, {s(sT)}, 1', f's_and_b32 {s(sT)}, {s(sT)}, 15',
          f's_and_b32 {s(sT+1)}, {s(sE)}, 1', f's_sub_u32 {s(sT+1)}, 4, {s(sT+1)}', f's_sub_u32 {s(sT+2)}, 7, {s(sT+1)}',
          f's_mov_b32 {s(sLN)}, 5', f's_sub_u32 {s(sLAST)}, {s(sN)}, {s(sNP)}', f's_not_b32 {s(sLAST)}, {s(sLAST)}', 's_mov_b32 s32, s10',
          f's_lshl_b32 {s(sT+3)}, {s(sW)}, 13', f's_add_u32 {s(sT+3)}, {s(sT+3)}, 0x20000', f's_lshl_b32 {s(sT+4)}, {s(sW)}, {WSH}']
    L += [f'v_lshrrev_b32 {v(t+4)}, 2, {v(t+2)}', f'v_lshlrev_b32 {v(t+4)}, 4, {v(t+4)}',
          f'v_and_b32 {v(t+6)}, 3, {v(t+2)}', f'v_add_u32 {v(t+4)}, {v(t+4)}, {v(t+6)}', f'v_lshlrev_b32 {v(t+4)}, 8, {v(t+4)}',
          f'v_lshlrev_b32 {v(t+6)}, 12, {v(t)}', f'v_lshl_add_u32 {v(t+6)}, {v(t+2)}, 8, {v(t+6)}', f'v_add_u32 {v(t+6)}, 0x20000, {v(t+6)}']
    for ks in range(4):
        L += [f'v_xor_b32 {v(MK)}, {4*ks}, {v(t+5)}', f'v_lshl_add_u32 {v(KA+ks)}, {v(MK)}, 4, {v(t+4)}',
              f'v_lshl_add_u32 {v(QA+ks)}, {v(MK)}, 4, {v(t+6)}', f'v_add_u32 {v(KA0+ks)}, {s(sSL)}, {v(KA+ks)}']
    L += btprep(1)
    LT = []
    if OPT['late'] in (1, 3):
        LT += [f'v_mbcnt_lo_u32_b32 {v(t+1)}, -1, 0', f'v_mbcnt_hi_u32_b32 {v(t+1)}, -1, {v(t+1)}', f'v_mov_b32 {v(t)}, {s(sW)}',
               f'v_and_b32 {v(t+2)}, 15, {v(t+1)}', f'v_lshrrev_b32 {v(t+3)}, 4, {v(t+1)}']
    LT += [f'v_bfe_u32 {v(t+5)}, {v(t+1)}, 2, 2',
          f'v_lshl_add_u32 {v(t+4)}, {v(t+3)}, 4, {v(t+5)}', f'v_lshlrev_b32 {v(t+4)}, 8, {v(t+4)}',
          f'v_and_b32 {v(MK)}, 3, {v(t+1)}', f'v_lshl_add_u32 {v(t+4)}, {v(MK)}, 3, {v(t+4)}', f'v_add_u32 {v(t+4)}, 0x10000, {v(t+4)}',
          f'v_lshl_add_u32 {v(t+5)}, {v(t+3)}, 2, {v(t+5)}', f'v_and_b32 {v(t+5)}, 7, {v(t+5)}']
    if OPT['urot']:
        LT += {1: [f's_lshl_b32 {s(sY)}, {s(sW)}, 1'], 2: [f's_bfe_u32 {s(sY)}, s2, 0x20003', f's_lshl_b32 {s(sY)}, {s(sY)}, 1'],
              3: [f's_bfe_u32 {s(sY)}, s2, 0x20005', f's_xor_b32 {s(sY)}, {s(sY)}, {s(sW)}', f's_lshl_b32 {s(sY)}, {s(sY)}, 1']}[OPT['urot']]
        LT += [f'v_xor_b32 {v(t+5)}, {s(sY)}, {v(t+5)}', f's_lshl_b32 {s(sY)}, {s(sY)}, 5']
    for db in range(8):
        LT += [f'v_xor_b32 {v(VA+db)}, {db}, {v(t+5)}', f'v_lshl_add_u32 {v(VA+db)}, {v(VA+db)}, 5, {v(t+4)}',
              f'v_add_u32 {v(VA0+db)}, {s(sSL)}, {v(VA+db)}']
    LT += [f'v_lshlrev_b32 {v(t+4)}, {WSH}, {v(t)}', f'v_lshl_add_u32 {v(t+4)}, {v(t+2)}, 8, {v(t+4)}',
          f'v_and_b32 {v(t+5)}, 1, {v(t+3)}', f'v_lshl_add_u32 {v(t+4)}, {v(t+5)}, 5, {v(t+4)}',
          f'v_lshrrev_b32 {v(t+5)}, 1, {v(t+3)}', f'v_lshl_add_u32 {v(OV)}, {v(t+5)}, 4, {v(t+4)}',
          f'v_and_b32 {v(t+4)}, 1, {v(t+1)}', f'v_mov_b32 {v(t+5)}, 0xaaaaaaaa',
          f'v_mul_lo_u32 {v(t+4)}, {v(t+4)}, {v(t+5)}', f'v_or_b32 {v(IDX)}, 0x44444444, {v(t+4)}', f'v_mov_b32 {v(t+5)}, 0x3f803f80']
    LT += [f'v_accvgpr_write_b32 {a(aONE+i)}, {v(t+5)}' for i in range(4)]
    LT += [f'v_lshlrev_b32 {v(t+4)}, 2, {v(t+3)}', f'v_mov_b32 {v(t+5)}, {NEG:#x}']
    for r in range(4):
        LT += [f'v_add_u32 {v(t+6)}, {r}, {v(t+4)}', f'v_cmp_lt_u32 vcc, {s(sT)}, {v(t+6)}', 's_nop 1',
              f'v_cndmask_b32 {v(MK+r)}, 0, {v(t+5)}, vcc']
    if OPT['late'] >= 4: L += LT; LT = []
    if OPT['late'] == 5: L += [f'v_mov_b32 {v(O0+i)}, 0' for i in range(64, 96)]
    LT += [f'v_mov_b32 {v(O0+i)}, 0' for i in range(96 if OPT['late'] == 5 else 64, 128)]
    LT += [f'v_accvgpr_write_b32 {a(aL+i)}, 0' for i in range(16)]
    LT += btprep(2) + btprep(3)
    if not OPT['late']: L += LT; LT = []
    groups = {'q2': qload(2), 'q3': qload(3), 'v0': dma4(1, 0), 'k1': dma4(0, 1), 'v1': dma4(1, 1), 'k2': dma4(0, 2), 'v2': dma4(1, 2), 'k3': dma4(0, 3)}
    plan = {0: dict(A=['q2'], B=['v0'], C=['q3'], D=['k1', 'v1'], E=['k2'], F=['v2', 'k3']),
            1: dict(A=['q2'], B=['v0'], C=['q3'], D=['k1'], E2=['v1', 'k2'], G=['v2', 'k3']),
            2: dict(A=['q2', 'v0'], C=['q3', 'k1'], D=['v1'], E2=['k2'], G=['v2', 'k3']),
            3: dict(A0=['v0'], A=['q2'], C=['q3', 'k1'], D=['v1', 'k2'], G=['v2', 'k3']),
            4: dict(A=['q2'], B=['v0'], C=['q3', 'k1'], D=['v1'], E2=['k2'], G=['v2', 'k3']),
            5: dict(A=['q2'], B=['v0'], C=['q3', 'k1'], D2=['v1', 'k2'], G=['v2', 'k3']),
            6: dict(A=['q2'], B=['v0', 'k1'], C=['q3'], D2=['v1', 'k2'], G=['v2', 'k3']),
            7: dict(A=['q2'], B=['v0'], C=['q3', 'k1'], D2=['v1', 'k2'], E2=['v2', 'k3']),
            8: dict(A=['q2'], B=['v0', 'k1'], C=['q3'], P=['v1', 'k2'], S=['v2', 'k3']),
            9: dict(A=['q2', 'v0'], B=['k1'], C=['q3'], P=['v1', 'k2'], S=['v2', 'k3']),
            10: dict(A0=['v0'], A=['q2'], B=['k1'], C=['q3'], P=['v1', 'k2'], S=['v2', 'k3']),
            11: dict(A=['q2'], B=['v0', 'k1'], C=['q3'], D2=['v1', 'k2'], S=['v2', 'k3']),
            12: dict(A=['q2'], B=['v0', 'k1'], C3=['q3'], P=['v1', 'k2'], S=['v2', 'k3']),
            13: dict(A=['q2'], B=['v0'], B2=['k1'], C3=['q3'], P=['v1', 'k2'], S=['v2', 'k3']),
            14: dict(A=['v0'], B=['q2'], C=['k1'], C3=['q3'], P=['v1', 'k2'], S=['v2', 'k3']),
            15: dict(A=['q2'], B2=['v0'], C2=['k1'], C3=['q3'], P=['v1', 'k2'], S=['v2', 'k3']),
            16: dict(A2=['q2'], B2=['v0'], C2=['k1'], C3=['q3'], P=['v1', 'k2'], S=['v2', 'k3']),
            17: dict(A=['q2'], B=['v0'], C=['k1'], C2=['q3'], P=['v1', 'k2'], S=['v2', 'k3']),
            18: dict(A=['q2'], B=['v0'], B2=['k1'], C2=['q3'], P=['v1', 'k2'], S=['v2', 'k3']),
            19: dict(A=['v0'], B=['q2'], C=['k1'], C3=['q3'], P=['v1'], S=['k2', 'v2'], K=['k3']),
            20: dict(A=['v0'], B=['q2'], C=['k1'], C3=['q3'], S=['v1', 'k2'], K=['v2', 'k3']),
            21: dict(A=['v0'], B=['q2'], C=['k1'], C2=['q3'], S=['v1', 'k2'], K=['v2', 'k3']),
            22: dict(A=['v0'], A2=['q2'], B2=['k1'], C2=['q3'], S=['v1', 'k2'], K=['v2', 'k3']),
            23: dict(A0=['v0'], A=['q2'], B2=['k1'], C2=['q3'], S=['v1', 'k2'], K=['v2', 'k3']),
            24: dict(A=['v0'], B=['q2'], C=['q3'], C3=['k1'], S=['v1', 'k2'], K=['v2', 'k3']),
            25: dict(A=['v0'], B=['q2'], C=['k1'], C3=['q3'], P=['v1', 'k2'], S=['v2'], K=['k3']),
            26: dict(A=['v0'], B=['q2'], C=['k1'], C3=['q3'], D=['v1'], P=['k2'], S=['v2'], K=['k3']),
            27: dict(A=['v0'], B=['q2'], C=['k1', 'v1'], C3=['q3'], P=['k2'], S=['v2'], K=['k3']),
            28: dict(A=['v0', 'k1'], B=['q2'], C2=['q3'], P=['v1', 'k2'], S=['v2'], K=['k3']),
            30: dict(A=['v0'], B=['q2'], C=['k1'], C2=['q3'], P=['v1'], S=['k2', 'v2'], K=['k3']),
            31: dict(A=['v0'], B=['q2'], C=['k1'], C3=['q3'], P=['v1'], S=['k2'], K=['v2', 'k3']),
            32: dict(A=['q2'], B=['v0'], C=['k1'], C3=['q3'], P=['v1'], S=['k2'], K=['v2', 'k3']),
            33: dict(A=['v0'], A2=['q2'], C=['q3'], C2=['k1'], P=['v1'], S=['k2'], K=['v2', 'k3']),
            29: dict(A=['v0'], A2=['k1'], B=['q2'], C2=['q3'], D=['v1'], P=['k2'], S=['v2'], K=['k3'])}[OPT['po']]
    at = lambda p_: [x for g_ in plan.get(p_, []) for x in groups[g_]]
    X = OPT['tv'] >= 4
    btv = lambda i: [f'v_min_u32 {v(BT+i)}, 131, {v(BT+i)}', f'v_lshlrev_b32 {v(BT+i)}, 16, {v(BT+i)}'] + ([f'v_or_b32 {v(BT+i)}, {(3-i)*1024}, {v(BT+i)}'] if i < 3 else [])
    touch = []
    if OPT['touch']:
        touch = ['s_mov_b64 vcc, -1', f's_cmp_eq_u32 {s(sW)}, 0', 's_cbranch_scc1 L_padB', f's_cmp_eq_u32 {s(sW)}, 1', 's_cbranch_scc1 L_padA',
                 'L_ret:', 's_mov_b64 vcc, 0']
    L += at('A0') + (touch if OPT['touch'] == 1 else []) + (['L_walk:'] if OPT['walk'] else []) + ['WAITVM ld Q0'] + stamp(2)
    if X:
        L += ['WAITVM ld BT'] + btv(0) + [f's_sub_u32 {s(sT+5)}, {s(sN)}, 1', f'v_readlane_b32 {s(sT)}, {v(BT)}, {s(sT+5)}'] + qread(0)
        L += [f's_add_u32 m0, {s(sMV)}, {s(sSL+3)}', f's_sub_u32 {s(sT+5)}, {s(sT)}, 1024',
              f'buffer_load_dwordx4 {v(DV)}, s[12:15], {s(sT)} offen lds ; dmx V',
              f'buffer_load_dwordx4 {v(DK)}, s[8:11], {s(sT+5)} offen offset:1024 lds ; dmx K']
    else: L += qread(0)
    L += at('A') + scale_q(0) + at('A2')
    LB = ['WAITVM ld BT'] + [y for i in range(1 if X else 0, 4) for y in btv(i)] + ['s_nop 0'] + \
         [f'v_readlane_b32 {s(SETS[k]+i)}, {v(BT+i)}, {s(sT+1+k)}' for k in range(2) for i in range(4)]
    if OPT['late']: LT += LB
    else: L += LB
    L += (touch if OPT['touch'] == 2 else []) + ['WAITVM dma K 0', 's_barrier']
    L += [i_kread(*kord(f), 0, '0', addr=KA0) for f in range(16)] + at('B')
    def tile0(x):
        P = Prog(); G = P.group
        r = lambda q, sb: qkg(q, 1, sb=sb, kbase=aX, mask=True)
        xv = lambda q: [pv(q, db, 0, 2, 'ov', first=q < 2) for db in range(8)] + [sm(q, 2)]
        G('q0', qkg(0))
        if x: G('r0', r(0, 2)); G('r1', r(1, 3))
        G('q1', qkg(1))
        if x: G('x0', xv(0)); G('x1', xv(1)); G('r2', r(2, 3))
        G('q2', qkg(2))
        if x: G('x2', xv(2))
        for nm in {0: ('p0', 'p1', 'q3'), 1: ('p0', 'q3', 'p1'), 2: ('q3', 'p0', 'p1')}[OPT['t0o']]:
            G(nm, qkg(3) if nm == 'q3' else pvg(int(nm[1]), first=not x))
        P.done(); p = P.pos
        w1, w2 = p['r0' if x else 'q1'], p['r2' if x else 'q2']
        P.softmax('s0', p['q0'], 0, 0, dlcap=w1 + 4); P.softmax('s1', p['q1'], 1, 1, dlcap=w2 + (-1 if x else 4))
        P.softmax('s2', p['q2'], 2, 2, dlcap=p['q3'] - 1 if OPT['t0o'] == 0 else P.n - 1, use=P.n); P.softmax('s3', p['q3'], 3, 3, skip=LEFT3, lastrel=P.n - 1)
        if x:
            P.softmax('t0', p['r0'], 2, 2, 1); P.softmax('t1', p['r1'], 3, 2, 1, use=p['x1'], zero=False)
            P.softmax('t2', p['r2'], 3, 2, 1, zero=False)
        P.vload('v', p['p0'], 0, '0', addr=VA0, rel0=w2)
        P.kload('k', P.n, 0, '1', addr=T0, rel0=p['q3'], dlmax=P.n - 1)
        g = P.gaps
        for pt, gi in (('P', p['p0'] + 1), ('K', p['q3'] + 1)):
            step = 2 if pt == 'K' and len(plan.get('K', [])) > 1 and OPT['t0o'] == 0 else 4
            for y in at(pt):
                if y.startswith('s_add'): g[gi - 1].sc.append(y)
                elif y.startswith('buffer'):
                    P.ops.append(Op(('d', gi), 'D', gi, gi, y)); gi += step
        assert not schedule(P.n, P.ops, g, overflow=True)
        sc3 = []; ext = at('S')
        for i, y in enumerate(scale_q(3)):
            sc3.append(y)
            if i % 10 == 4 and ext:
                if ext[0].startswith('s_add'): sc3 += ext[:2]; ext = ext[2:]
                sc3.append(ext.pop(0))
        assert not ext
        xr = []
        if x:
            XA = S0 + 36
            xr = [f's_add_u32 {s(sT)}, {s(sSL+3)}, 0x10000'] + [f'v_add_u32 {v(XA+ks)}, {s(sT)}, {v(KA+ks)}' for ks in range(4)] + \
                 [f'v_add_u32 {v(XA+4+db)}, {s(sSL+3)}, {v(VA+db)}' for db in range(8)] + ['WAITVM dmx K', 's_barrier'] + \
                 [f'ds_read_b128 {a(aX+4*ks,4)}, {v(XA+ks)} offset:1024 ; rx K {ks}' for ks in range(4)] + \
                 [f'ds_read_b64_tr_b16 {a(aX+16+2*db,2)}, {v(XA+4+min(db,7))} offset:0 ; rx V {min(db,7)}' for db in range(9)]
        g[w1 - 1].post += at('B2') + (LT if OPT['late'] == 3 else LT[:len(LT)//2] if OPT['late'] == 2 else []) + xr + ['WAITVM ld Q1'] + qread(1) + at('C') + scale_q(1) + at('C2') + ['s_nop 0']
        g[w2 - 1].post += at('C3') + (LT if OPT['late'] in (1, 4, 5) else LT[len(LT)//2:] if OPT['late'] == 2 else []) + ['WAITVM ld Q2'] + qread(2) + at('D') + scale_q(2) + ['WAITVM dma V 0|dma K 1', 's_barrier']
        g[p['q3'] - 1].post += (['s_barrier'] if x else []) + at('D2') + ['WAITVM ld Q3'] + stamp(3) + qread(3) + sc3 + \
                               [f'v_add_u32 {v(T0+ks)}, {s(sSL+1)}, {v(KA+ks)}' for ks in range(4)]
        g[P.n - 1].post += [HEADWAIT]
        full, pend = add_lgkm_waits(resolve_waitvm(L + ['L_split:'] + emit(P.mf, g)))
        k = full.index('L_split:')
        return full[:k], full[k+1:] + stamp(4) + wave_select() + dispatch(0), pend
    assert OPT['po'] >= 8
    head, tn, pend = tile0(False)
    if not X: return head + tn, [], pend
    head2, tx, pend2 = tile0(True)
    assert head == head2 and [z[0] for z in pend] == [z[0] for z in pend2]
    return head + [f's_cmp_lg_u32 {s(sNKB)}, 1', 's_cbranch_scc1 L_tile0n'] + tx, ['L_tile0n:'] + tn + ['s_branch L_b1'], pend

def slow():
    t = T0
    L = ['L_slow:', 's_waitcnt vmcnt(0) lgkmcnt(0)', 's_mov_b32 s10, s32', 's_mov_b32 s14, s32']
    M, LS, KV, VD0, VD1 = KA, BT, DK, DV, IDX
    L += [f'v_mbcnt_lo_u32_b32 {v(t+1)}, -1, 0', f'v_mbcnt_hi_u32_b32 {v(t+1)}, -1, {v(t+1)}',
          f'v_and_b32 {v(t+2)}, 15, {v(t+1)}', f'v_lshrrev_b32 {v(t+3)}, 4, {v(t+1)}']
    L += [f's_lshl_b32 {s(sT)}, {s(sW)}, {WSH}', f'v_lshlrev_b32 {v(t+4)}, 8, {v(t+2)}', f'v_lshl_add_u32 {v(t+4)}, {v(t+3)}, 4, {v(t+4)}',
          f'v_add_u32 {v(t+4)}, {s(sT)}, {v(t+4)}']
    L += [f'buffer_load_dwordx4 {v(S0+16*q+4*ks,4)}, {v(t+4)}, s[4:7], {qoff(q)} offen offset:{64*ks}' for q in range(2) for ks in range(4)]
    L += [f'v_lshlrev_b32 {v(t+4)}, 12, {v(t+2)}', f'v_lshl_add_u32 {v(KV)}, {v(t+3)}, 4, {v(t+4)}', f'v_add_u32 {v(KV)}, 3072, {v(KV)}',
          f'v_lshlrev_b32 {v(t+4)}, 1, {v(t+3)}', f'v_xor_b32 {v(t+4)}, {v(t+2)}, {v(t+4)}',
          f'v_lshlrev_b32 {v(t+4)}, 4, {v(t+4)}', f'v_lshl_add_u32 {v(VD0)}, {v(t+3)}, 12, {v(t+4)}', f'v_add_u32 {v(VD0)}, 3072, {v(VD0)}',
          f'v_xor_b32 {v(t+4)}, 0x80, {v(t+4)}', f'v_lshl_add_u32 {v(VD1)}, {v(t+3)}, 12, {v(t+4)}', f'v_add_u32 {v(VD1)}, {3072 + 16384}, {v(VD1)}',
          f's_lshl_b32 {s(sMV)}, {s(sW)}, 13', f's_add_u32 {s(sMV)}, {s(sMV)}, 0x20000',
          f'v_bfe_u32 {v(t+5)}, {v(t+1)}, 2, 2', f'v_lshl_add_u32 {v(t+5)}, {v(t+3)}, 2, {v(t+5)}',
          f'v_lshlrev_b32 {v(t+4)}, 8, {v(t+5)}', f'v_and_b32 {v(t+6)}, 3, {v(t+1)}',
          f'v_lshl_add_u32 {v(t+4)}, {v(t+6)}, 3, {v(t+4)}', f'v_add_u32 {v(t+4)}, {s(sMV)}, {v(t+4)}', f'v_and_b32 {v(t+5)}, 7, {v(t+5)}']
    for db in range(8):
        L += [f'v_xor_b32 {v(VA+db)}, {db}, {v(t+5)}', f'v_lshl_add_u32 {v(VA+db)}, {v(VA+db)}, 5, {v(t+4)}']
    L += [f'v_lshlrev_b32 {v(MK)}, 2, {v(t+3)}', f'v_mov_b32 {v(MK+1)}, {NEG:#x}']
    L += [f'v_mov_b32 {v(O0+i)}, 0' for i in range(128)]
    L += [f'v_mov_b32 {v(M+q)}, 0xff7fffff' for q in range(4)] + [f'v_mov_b32 {v(LS+q)}, 0' for q in range(4)]
    L += ['s_waitcnt vmcnt(0)'] + scale_q(0) + scale_q(1)
    L += [f's_mov_b32 {s(sIT)}, 0', 'L_slow_loop:',
          f's_lshr_b32 {s(sT)}, {s(sIT)}, 2',
          f's_load_dwordx2 s[40:41], s[30:31], {s(sT)}', 's_waitcnt lgkmcnt(0)',
          's_min_u32 s40, s40, 131', 's_min_u32 s41, s41, 131', 's_lshl_b32 s40, s40, 16', 's_lshl_b32 s41, s41, 16']
    for kb in range(2):
        for ks in range(4):
            L.append(f'buffer_load_dwordx4 {a(aK+16*kb+4*ks,4)}, {v(KV)}, s[8:11], s{40+kb} offen offset:{64*ks}')
    for b in range(2):
        for p in range(4):
            L += [f's_add_u32 m0, {s(sMV)}, {b*4096 + p*1024}', f's_add_u32 s42, s{40+b}, {(p//2)*32768}',
                  f'buffer_load_dwordx4 {v(VD1 if p & 1 else VD0)}, s[12:15], s42 offen lds']
    L += ['s_waitcnt vmcnt(0)']
    for db in range(8):
        for tt in range(2):
            L.append(f'ds_read_b64_tr_b16 {a(aV+8*db+2*tt,2)}, {v(VA+db)} offset:{tt*4096}')
    L += [f's_sub_u32 {s(sT)}, {s(sCLT)}, {s(sIT)}', 's_waitcnt lgkmcnt(0)']
    for q in range(4):
        S = S0 + 16*q
        L += qkg(q, 2) + ['s_nop 7']
        for e in range(8):
            L += [f'v_add_u32 {v(t)}, {16*(e//4) + e%4}, {v(MK)}', f'v_cmp_gt_u32 vcc, {s(sT)}, {v(t)}', 's_nop 1',
                  f'v_cndmask_b32 {v(S+e)}, {v(MK+1)}, {v(S+e)}, vcc']
        L += [f'v_max3_f32 {v(t)}, {v(S)}, {v(S+1)}, {v(S+2)}', f'v_max3_f32 {v(t)}, {v(t)}, {v(S+3)}, {v(S+4)}',
              f'v_max3_f32 {v(t)}, {v(t)}, {v(S+5)}, {v(S+6)}', f'v_max3_f32 {v(t)}, {v(t)}, {v(S+7)}, {v(M+q)}',
              f'v_mov_b32 {v(t+1)}, {v(t)}', 's_nop 1', f'v_permlane16_swap_b32 {v(t)}, {v(t+1)}', f'v_max_f32 {v(t)}, {v(t)}, {v(t+1)}',
              f'v_mov_b32 {v(t+1)}, {v(t)}', 's_nop 1', f'v_permlane32_swap_b32 {v(t)}, {v(t+1)}', f'v_max_f32 {v(t)}, {v(t)}, {v(t+1)}',
              f'v_sub_f32 {v(t+1)}, {v(M+q)}, {v(t)}', f'v_exp_f32 {v(t+1)}, {v(t+1)}', f'v_mov_b32 {v(M+q)}, {v(t)}']
        L += [f'v_sub_f32 {v(S+e)}, {v(S+e)}, {v(t)}' for e in range(8)]
        L += [f'v_exp_f32 {v(S+e)}, {v(S+e)}' for e in range(8)]
        L += [f'v_mul_f32 {v(LS+q)}, {v(LS+q)}, {v(t+1)}']
        L += [f'v_mul_f32 {v(O0+32*q+i)}, {v(O0+32*q+i)}, {v(t+1)}' for i in range(32)]
        L += [i_cvt(q, q, i) for i in range(4)]
        for i in range(4):
            L += [f'v_lshlrev_b32 {v(t)}, 16, {v(P0+8*q+i)}', f'v_and_b32 {v(t+1)}, 0xffff0000, {v(P0+8*q+i)}',
                  f'v_add_f32 {v(LS+q)}, {v(LS+q)}, {v(t)}', f'v_add_f32 {v(LS+q)}, {v(LS+q)}, {v(t+1)}']
        L += [pv(q, db, 0) for db in range(8)]
    L += [f's_add_u32 {s(sIT)}, {s(sIT)}, 32', f's_cmp_lt_u32 {s(sIT)}, {s(sCLT)}', 's_cbranch_scc1 L_slow_loop', 's_nop 7']
    for q in range(4):
        o = O0 + 32*q
        L += [f'v_mov_b32 {v(t)}, {v(LS+q)}', f'v_mov_b32 {v(t+1)}, {v(LS+q)}', 's_nop 1',
              f'v_permlane16_swap_b32 {v(t)}, {v(t+1)}', f'v_add_f32 {v(t)}, {v(t)}, {v(t+1)}',
              f'v_mov_b32 {v(t+1)}, {v(t)}', 's_nop 1', f'v_permlane32_swap_b32 {v(t)}, {v(t+1)}', f'v_add_f32 {v(t)}, {v(t)}, {v(t+1)}',
              f'v_rcp_f32 {v(t)}, {v(t)}', 's_nop 0']
        L += [f'v_mul_f32 {v(o+i)}, {v(o+i)}, {v(t)}' for i in range(32)]
        for u in range(4):
            L += [f'v_cvt_pk_bf16_f32 {v(o+8*u+i)}, {v(o+8*u+2*i)}, {v(o+8*u+2*i+1)}' for i in range(4)]
        for u in range(4):
            L += [f'v_permlane16_swap_b32 {v(o+8*u+i)}, {v(o+8*u+2+i)}' for i in range(2)]
        for u in range(4):
            L.append(f'buffer_store_dwordx4 {v(o+8*u,4)}, {v(OV)}, s[16:19], {qoff(q)} offen offset:{64*u}')
    return L + ['s_endpgm']

DOC = '''; Paged-KV attention, one workgroup per CU: 256 query rows against one KV head, 4 waves x 64 rows, 64-key tiles.
;  * S^T = K.Q^T and O^T += V^T.P^T with v_mfma_f32_16x16x32_bf16 (P stays in registers, V via ds_read_b64_tr_b16),
;    row sums with one v_smfmac_f32_16x16x64_bf16 per 16 rows and tile.  Q is scaled once by log2(e)/sqrt(D).
;  * Softmax guard: the fast path uses 0 as stand-in for the row maximum.  Every row sum is checked at run time; if one
;    leaves [2^-40, 2^40] (or is not a number) the wave recomputes its rows in L_slow with the true running maximum.
;    L_slow also serves context lengths below 193.  context_lens <= 0 (all keys masked) gives the uniform average.
;    stores overlap the remaining blocks.  16-row blocks are dealt to waves so that the blocks loaded or stored at
'''
NFIN = 0
def finish():
    global NFIN
    NFIN += 1
    L = [f'v_cmp_lt_u32 vcc, 0x28000000, {v(T0+4)}' if not OPT.get('abl') else 's_mov_b64 vcc, 0',
         f's_cmp_lg_u32 {s(sFORCE)}, 0', 's_cbranch_scc1 L_slow', 's_nop 3', 's_cbranch_vccnz L_slow']
    if OPT.get('twice'):
        L += ['s_cmp_eq_u32 s83, 0', f's_cbranch_scc1 L_fin{NFIN}', 's_sub_u32 s83, s83, 1', 's_waitcnt vmcnt(0) lgkmcnt(0)', 's_barrier',
              'v_mbcnt_lo_u32_b32 v0, -1, 0', 'v_mbcnt_hi_u32_b32 v0, -1, v0', f's_lshl_b32 {s(sT)}, {s(sW)}, 6', f'v_add_u32 v0, {s(sT)}, v0', 's_branch L_again', f'L_fin{NFIN}:']
    if OPT['stamp']:
        L += [f's_memtime s[40:41]', 's_waitcnt vmcnt(0)', 's_memtime s[42:43]', f's_memrealtime s[44:45]', 's_waitcnt lgkmcnt(0)']
        st = lambda i: sST + 2*i if i < 6 else 40 + 2*(i - 6)
        if OPT.get('fixed'):
            L += [f's_mov_b32 {s(sT+4)}, {OPT["fixed"]}']
            if OPT.get('xcc'):
                L += [f's_getreg_b32 {s(sT+5)}, hwreg(HW_REG_XCC_ID, 0, 4)', f's_sub_u32 {s(sT+5)}, {s(sT+5)}, s2', f's_and_b32 {s(sT+5)}, {s(sT+5)}, 7']
                if OPT['xcc'] == 2: L += [f's_sub_u32 {s(sT+5)}, 7, {s(sT+5)}']
                L += [f's_mul_i32 {s(sT+5)}, {s(sT+5)}, 500', f's_add_u32 {s(sT+4)}, {s(sT+4)}, {s(sT+5)}']
            if OPT.get('phase'):
                L += [f's_sub_u32 {s(sT+5)}, {s(st(OPT["phase"]))}, {s(st(OPT.get("phase0", 0)))}']
                if OPT.get('neg'): L += [f's_sub_u32 {s(sT+5)}, {OPT["neg"]}, {s(sT+5)}']
                L += [f's_lshr_b32 {s(sT+5)}, {s(sT+5)}, {OPT.get("sh", 3)}', f's_add_u32 {s(sT+4)}, {s(sT+4)}, {s(sT+5)}']
            return L + [f'L_spin{NFIN}:', f's_memrealtime {s(sT,2)}', 's_waitcnt lgkmcnt(0)', f's_sub_u32 {s(sT)}, {s(sT)}, s100',
                        f's_cmp_lt_u32 {s(sT)}, {s(sT+4)}', f's_cbranch_scc1 L_spin{NFIN}', 's_endpgm']
        L += ['s_load_dwordx2 s[24:25], s[0:1], 56', 's_waitcnt lgkmcnt(0)', 's_mov_b32 s26, 0x100000', 's_mov_b32 s27, 0x20000']
        L += [f'v_mov_b32 v{i}, {s(st(i))}' for i in range(8)]
        L += ['v_mov_b32 v8, s42', 'v_mov_b32 v9, s44', 'v_mov_b32 v10, s100', 'v_mov_b32 v11, 0',
              f's_lshl_b32 {s(sT)}, s2, 2', f's_add_u32 {s(sT)}, {s(sT)}, {s(sW)}', f's_lshl_b32 {s(sT)}, {s(sT)}, 6',
              'v_mov_b32 v12, 0', 's_mov_b64 exec, 1',
              f'buffer_store_dwordx4 v[0:3], v12, s[24:27], {s(sT)} offen',
              f'buffer_store_dwordx4 v[4:7], v12, s[24:27], {s(sT)} offen offset:16',
              f'buffer_store_dwordx4 v[8:11], v12, s[24:27], {s(sT)} offen offset:32']
    return L + ['s_endpgm']

def sizes(L):
    import subprocess, re, tempfile, os
    d = tempfile.mkdtemp()
    open(d + '/a.s', 'w').write('.amdgcn_target "amdgcn-amd-amdhsa--gfx950"\n.text\n' + '\n'.join(l for l in L if not l.startswith('.')) + '\n')
    subprocess.check_call(['clang', '-x', 'assembler', '-target', 'amdgcn-amd-amdhsa', '-mcpu=gfx950', '-c', d + '/a.s', '-o', d + '/a.o'])
    out = subprocess.check_output(['llvm-objdump', '-d', '--mcpu=gfx950', d + '/a.o']).decode()
    sz = [4 * len(m.group(1).split()) for m in re.finditer(r'// [0-9A-F]+: ([0-9A-F ]+)', out)]
    it = iter(sz)
    return [next(it) if Ins(l).states else 0 for l in L]

def add_walk(L):
    sz = sizes(L); ins = parse(L)
    regions = [(L.index('L_walk:') + 1, L.index('L_b1:') - 1), (L.index('L_tail:'), L.index('L_pfend:') - 8)]
    if OPT['walk'] == 2: regions = [(L.index('L_walk:') + 1, L.index('L_pfend:') - 8)]
    pads = []
    for lo, hi in regions:
        acc = OPT['wsp'] - 64 if lo == regions[0][0] else OPT['wsp']; best = None
        for i in range(lo, hi):
            acc += sz[i]
            if acc >= OPT['wsp'] - max(64, OPT['wsp'] // 4) and ins[i].states and ins[i].cls != 'br' and not L[i].startswith(('s_cmp', 's_waitcnt')):
                cost = 0 if ins[i].cls == 'mfma' and ins[i+1].cls == 'mfma' else 2 if ins[i+1].cls == 'mfma' else 3
                if best is None or cost <= best[0]: best = (cost, i, acc)
            if acc >= OPT['wsp'] and best:
                pads.append(best[1]); acc -= best[2]; best = None
    n = len(pads); cut = [n * w // 4 for w in range(5)]
    out = []
    for i, l in enumerate(L):
        if l == 'L_walk:':
            out += ['s_mov_b64 vcc, -1']
            for w in range(3): out += [f's_cmp_eq_u32 {s(sW)}, {w}', f's_cbranch_scc1 L_pad{cut[w]}']
            out += [f's_branch L_pad{cut[3]}', 'L_ret:', 's_mov_b64 vcc, 0']
            continue
        out.append(l)
        if i in pads:
            k = pads.index(i)
            out += [f'L_pad{k}:', f's_cbranch_vccnz {"L_ret" if k + 1 in cut else f"L_pad{k+1}"}']
    print('pads', n)
    return out

def main():
    pro, pro2, pend0 = prologue()
    loop, pend = loop_code()
    assert [x[0] for x in pend0] == [x[0] for x in pend], (pend0, pend)
    L = [f'{NAME}:'] + pro + loop
    L += ['L_tail:'] + stamp(5) + [f's_cmp_gt_u32 {s(sNKB)}, 1', 's_cbranch_scc1 L_tail234']
    L += tail(1, pend) + finish()
    for w in range(1, NCOPY): L += loop_copy(w, pend)
    L += ['L_pfend:']
    L += ['L_tail234:', f's_cmp_eq_u32 {s(sNKB)}, 3', 's_cbranch_scc1 L_tail3', f's_cmp_eq_u32 {s(sNKB)}, 4', 's_cbranch_scc1 L_tail4']
    L += tail(2, pend) + finish() + ['L_tail3:'] + tail(3, pend) + finish() + ['L_tail4:'] + tail(4, pend) + finish()
    L += pro2 + slow() + ['L_end:', 's_endpgm']
    L, nn = fix_hazards(L, verbose=OPT.get('verbose', 0))
    if OPT['walk']: L = add_walk(L)
    sz = sizes(L)
    assert sum(sz[L.index('L_pc:'):]) > (65536 if NCOPY > 2 else 32768) + 64 if OPT['cpf'] else True
    print('bytes up to the last Q0 load:', sum(sz[:max(i for i, l in enumerate(L) if l.endswith('ld Q0')) + 1]), ' executed code:', sum(sz[:L.index('L_pfend:')]))
    print('nop states inserted:', nn, ' leftovers:', sorted(LEFT3))
    hdr = open('standalone__paged_block_table_kv_pagedattention__prompt.s.ref').read().split('; Override')[0]
    txt = hdr + DOC + '; Generated by gen/gen2.py (own generator script).\n'
    txt += '; @launch grid=(256,1,1) block=(256,1,1) lds=163840\n'
    txt += f'.amdgcn_target "amdgcn-amd-amdhsa--gfx950"\n.text\n.globl {NAME}\n.p2align 8\n.type {NAME},@function\n'
    for l in L: txt += (l if l.endswith(':') or l.startswith(('.', ';')) else '    ' + l) + '\n'
    txt += f'''.section .rodata,"a"
.p2align 6
.amdhsa_kernel {NAME}
  .amdhsa_next_free_vgpr 504
  .amdhsa_next_free_sgpr 102
  .amdhsa_accum_offset 256
  .amdhsa_group_segment_fixed_size 0
  .amdhsa_kernarg_size 64
  .amdhsa_user_sgpr_count 2
  .amdhsa_user_sgpr_kernarg_segment_ptr 1
  .amdhsa_system_sgpr_workgroup_id_x 1
.end_amdhsa_kernel
'''
    open(sys.argv[1], 'w').write(txt)
    if OPT.get('show'):
        for g in range(NG): print(g, PAT[g])
main()
```

```python
import sys
from asmcheck import parse, fix_hazards, Ins

NAME = 'standalone__paged_block_table_kv_pagedattention__prompt_kernel'
FL = {0: '', 1: ' nt', 2: ' sc1', 3: ' sc0 sc1', 4: ' sc1 nt', 5: ' sc0 sc1 nt', 6: ' sc0', 7: ' sc0 nt'}
OPT = dict(po=31, cpf=1, qf=0, kf=2, of=2, delta=9, stamp=0, lat=8, forceslow=0, tord=1, epri=12, ep=2, ssp=4, ssp0=0, tv=3, edl=0, ttu=2, walk=0, wsp=224, pkd=6, touch=0, snake=1, stag=0, rot=6, urot=0, hmap=0, t0o=1, wcls=0, late=0, nok=2, pr=1, barg=40, dg=2)
for a_ in sys.argv[2:]:
    k_, v_ = a_.split('='); OPT[k_] = int(v_, 0)

S0, P0, KA, VA, BT, DK, DV, IDX, OV, MK, T0, O0 = 0, 64, 96, 100, 108, 112, 113, 114, 115, 116, 120, 128
QD, QA = P0 + 24, P0 + 28
KA0, VA0 = O0, S0 + 52
EW, ER, EG = T0 + 5, T0 + 6, T0 + 7
aQ, aK, aV, aL, aONE, aX = 0, 64, 128, 192, 208, 212
sW, sCL, sN, sIT, sLN = 3, 36, 37, 38, 39
SETS = (56, 60)
sMK, sMV, sC, sC2, sNKB, sE, sFORCE, sCLT = 64, 65, 66, 67, 68, 69, 70, 71
sNP = 75
sE2 = 76
sQ0 = 77
sY = 35
sLAST = 33
sQ1 = 72
sSL = 96
sT = 78
sST = 84
KBYTES = 132 * 65536
LAT = OPT['lat']
NEG = 0xf149f2ca
INF = 10 ** 6
WSH, QSH = (12, 14) if OPT['rot'] >= 4 else (14, 12)
MINCL = 193

def v(b, n=1): return f'v{b}' if n == 1 else f'v[{b}:{b+n-1}]'
def a(b, n=1): return f'a{b}' if n == 1 else f'a[{b}:{b+n-1}]'
def s(b, n=1): return f's{b}' if n == 1 else f's[{b}:{b+n-1}]'
def VR(b, n=1): return {('v', i) for i in range(b, b + n)}
def AR(b, n=1): return {('a', i) for i in range(b, b + n)}

MF = 'v_mfma_f32_16x16x32_bf16'
def kord(f):
    return f // 4, (3 - f % 4 if OPT['snake'] and (f // 4) % 2 else f % 4)
def krd(f): return (f // 4, f % 4) if OPT['pr'] else kord(f)
def qk(q, f, sb=None, kbase=aK, mask=False):
    kb, ks = kord(f)
    D = v(S0 + 16*(q if sb is None else sb) + 4*kb, 4)
    C = D if f % 4 else (v(MK, 4) if mask else '0')
    return f'{MF} {D}, {a(kbase+16*kb+4*ks,4)}, {a(aQ+16*q+4*ks,4)}, {C}'
def vfrag(db, ks, vbase):
    if vbase == 'ov': return aX + 16 + 2*db
    return aV + (2*db+ks)*4 if vbase is None else vbase + 4*db
def pv(q, db, ks, pb=None, vbase=None, first=False):
    D = v(O0 + 32*q + 4*db, 4)
    return f'{MF} {D}, {a(vfrag(db, ks, vbase),4)}, {v(P0+8*(q if pb is None else pb)+4*ks,4)}, {"0" if first and ks == 0 else D}'
def sm(q, pb=None):
    return f'v_smfmac_f32_16x16x64_bf16 {a(aL+4*q,4)}, {a(aONE,4)}, {v(P0+8*(q if pb is None else pb),8)}, {v(IDX)}'
def qkg(q, nkb=4, sb=None, kbase=aK, mask=False):
    return [qk(q, f, sb, kbase, mask and f // 4 == nkb-1) for f in range(4 * nkb)]
def pvg(q, pb=None, first=False): return [pv(q, db, ks, pb, None, first) for db in range(8) for ks in range(2)] + [sm(q, pb)]

def i_exp(sb, n): return f'v_exp_f32 {v(S0+16*sb+n)}, {v(S0+16*sb+n)}'
def i_cvt(sb, pb, i): return f'v_cvt_pk_bf16_f32 {v(P0+8*pb+i)}, {v(S0+16*sb+2*i)}, {v(S0+16*sb+2*i+1)}'
def i_kread(kb, ks, slot, tag, kbase=aK, addr=KA):
    return f'ds_read_b128 {a(kbase+16*kb+4*ks,4)}, {v(addr+ks)} offset:{slot*16384+kb*1024}'
def i_vread(db, ks, t, slot, tag, vbase=None, addr=VA):
    return f'ds_read_b64_tr_b16 {a(vfrag(db, ks, vbase)+2*t,2)}, {v(addr+db)} offset:{slot*16384+(2*ks+t)*1024}'
NOK = OPT['nok'] and OPT['tv'] == 3
def i_dma(isv, i, soff, tag, srd=None):
    return f'buffer_load_dwordx4 {v(DV if isv else DK)}, {s(srd or (12 if isv else 8),4)}, {s(soff+i)} offen offset:{i*1024}{FL[OPT["kf"]]} lds'
def i_m0(isv, slot): return f's_add_u32 m0, {s(sMV if isv else sMK)}, {slot*16384}'
def qoff(q): return s(sQ0) if q == 0 and OPT['rot'] else '0' if q == 0 else s(sQ1 + q - 1)
def stamp(i): return [f's_memtime {s(sST+2*i,2)}'] if OPT['stamp'] and not (OPT.get('wb') and 1 <= i <= 4) else []

class Op:
    def __init__(self, key, cls, rel, dl, text, deps=(), fifo=None, pri=None):
        self.key, self.cls, self.rel, self.dl, self.text, self.deps, self.fifo = key, cls, rel, dl, text, list(deps), fifo
        self.pri = dl if pri is None else pri
        self.gap = None
class Gap:
    def __init__(self): self.sc, self.mem, self.valu, self.post = [], [], [], []; self.block = None

def schedule(ngaps, ops, gaps, overflow=False):
    byk = {o.key: o for o in ops}
    todo = list(ops)
    def ready(o, g):
        if o.rel > g: return False
        for d in o.deps:
            p = byk.get(d)
            if p is not None and (p.gap is None or p.gap >= g): return False
        if o.fifo is not None:
            p = byk[o.fifo]
            if p.gap is None or (o.cls in 'DRTW' and p.cls not in 'RT' and p.gap >= g): return False
            if o.cls == 'D' and p.cls == 'R' and p.gap + LAT > g: return False
            if o.cls == 'D' and p.cls == 'D' and p.gap + OPT['ssp'] > g: return False
        return True
    def put(o, g):
        o.gap = g; todo.remove(o)
        (gaps[g].mem if o.cls in 'DRTW' else gaps[g].valu).append(o)
    for g in range(ngaps):
        if gaps[g].block != 'all':
            cand = sorted((o for o in todo if ready(o, g)), key=lambda o: o.pri)
            if gaps[g].block == 'half': cand = [o for o in cand if o.cls == 'H'][:1]
            if cand:
                top = cand[0]
                halves = [o for o in cand if o.cls in 'RTH']
                full = [o for o in cand if o.cls in 'EDW']
                if top.cls in 'RTH' and len(halves) == 1 and full and top.pri - g > 6 and top.fifo is None: top = full[0]
                put(top, g)
                if top.cls in 'RTH' and gaps[g].block != 'half':
                    c2 = sorted((o for o in todo if o.cls in 'RTH' and ready(o, g) and not (o.cls == 'R' and top.cls == 'R')), key=lambda o: o.pri)
                    if c2:
                        pick = c2[0]
                        busy = g > 0 and len(gaps[g-1].mem) > 1
                        if top.cls in 'RT' and pick.cls in 'RT' and (pick.pri - g > 8 or (busy and pick.pri - g > OPT['ttu'])):
                            h = [o for o in c2 if o.cls == 'H']
                            if h: pick = h[0]
                            elif busy and pick.pri - g > OPT['ttu']: pick = None
                        if pick: put(pick, g)
        late = [o for o in todo if o.dl <= g]
        if late:
            if not overflow: raise RuntimeError(f'deadline miss at gap {g}: {[o.key for o in late]}')
            def force(o):
                if o.gap is not None: return
                for d in o.deps + ([o.fifo] if o.fifo else []):
                    if d in byk: force(byk[d])
                assert o.rel <= g, (o.key, o.rel, g)
                o.gap = g; todo.remove(o)
                if o.cls in 'RT' and o.fifo is None and gaps[g].block != 'all': gaps[g].mem.append(o)
                else: gaps[g].post.append(o.text)
            for o in sorted(late, key=lambda o: (o.fifo is not None, {'R': 0, 'T': 0, 'D': 0, 'W': 0, 'E': 1, 'H': 2}[o.cls], o.dl)): force(o)
    return todo

def emit(mf, gaps):
    out = []
    for m, g in zip(mf, gaps):
        out.append(m)
        sc = list(g.sc)
        if any(o.text.startswith('buffer_load') for o in g.mem) and not sc: sc = ['s_nop 0']
        out += sc + [o.text for o in g.mem] + [o.text for o in g.valu] + g.post
    return out

def add_lgkm_waits(lines, pre_ds=()):
    q = [(set(r), -age) for r, age in pre_ds]
    out = []; gap = -1; lastm = None; nvis = None
    for x in parse(lines):
        if x.cls == 'mfma':
            needed = [i for i, (r, g) in enumerate(q) if r & x.r]
            if needed:
                k = max(needed)
                if lastm is not None and k < nvis:
                    while k + 1 < nvis and q[k + 1][1] <= gap - LAT: k += 1
                    n = min(15, nvis - 1 - k)
                    if out[lastm:lastm+1] == ['s_nop 0']: out[lastm] = f's_waitcnt lgkmcnt({n})'
                    else: out.insert(lastm, f's_waitcnt lgkmcnt({n})')
                    k = nvis - 1 - n
                else:
                    n = min(15, len(q) - 1 - k)
                    out.append(f's_waitcnt lgkmcnt({n})')
                    k = len(q) - 1 - n
                q = q[k + 1:]
            gap += 1
            out.append(x.text); lastm = len(out); nvis = len(q)
        else:
            if x.cls == 'vmem':
                needed = [i for i, (r, g) in enumerate(q) if r & x.r]
                if needed:
                    n = min(15, len(q) - 1 - max(needed)); drop = len(q) - n
                    out.append(f's_waitcnt lgkmcnt({n})'); q = q[drop:]
                    if nvis is not None: nvis = max(0, nvis - drop)
            if x.cls == 'ds': q.append((set(x.w), gap))
            if x.cls == 'wait' and x.lgkm is not None:
                drop = max(0, len(q) - x.lgkm); q = q[drop:]
                if nvis is not None: nvis = max(0, nvis - drop)
            out.append(x.text)
    return out, [(r, gap - g) for r, g in q]

class Prog:
    def __init__(self): self.mf = []; self.ops = []; self.pos = {}
    def group(self, name, mf): self.pos[name] = len(self.mf); self.mf += mf
    def done(self):
        self.ins = [Ins(m) for m in self.mf]; self.n = len(self.mf); self.gaps = [Gap() for _ in self.mf]
    def first_read(self, R, lo): return next((i for i in range(lo, self.n) if R & self.ins[i].srcAB), INF)
    def last_read(self, R, hi): return next((i for i in range(min(hi, self.n) - 1, -1, -1) if R & self.ins[i].srcAB), -1)
    def last_write(self, R, hi): return next((i for i in range(min(hi, self.n) - 1, -1, -1) if R & self.ins[i].w), -1)
    def next_write(self, R, lo): return next((i for i in range(lo, self.n) if R & self.ins[i].w), INF)
    def kload(self, key, use, slot, tag, nkb=4, kbase=aK, addr=KA, rel0=0, dlmax=None):
        for f in range(4 * nkb):
            kb, ks = kord(f) if use < self.n else krd(f)
            R = AR(kbase + 16*kb + 4*ks, 4)
            u = self.first_read(R, use) if use < self.n else self.n + f
            rel = min(self.n - 1, max(rel0, self.last_read(R, u) + 1))
            dl = u - LAT if dlmax is None else min(u - LAT, dlmax - (4*nkb - 1 - f))
            self.ops.append(Op((key, f), 'R', rel, max(rel, dl), i_kread(kb, ks, slot, tag, kbase, addr), deps=[(key, f-1)] if f else []))
    def vload(self, key, use, slot, tag, nks=2, vbase=None, addr=VA, rel0=0):
        for db in range(8):
            for ks in range(nks):
                R = AR(vfrag(db, ks, vbase), 4)
                u = self.first_read(R, use)
                rel = max(rel0, self.last_read(R, u) + 1)
                for t in range(2):
                    if vbase == 'ov' and t == 1 and db < 7: continue
                    self.ops.append(Op((key, db, ks, t), 'T', rel, max(rel, u - LAT - (1 - t)), i_vread(db, ks, t, slot, tag, vbase, addr)))
    def softmax(self, key, at, sb, pb, nkb=4, only=None, skip=(), dlcap=None, use=0, lastrel=INF, zero=True):
        end = at + 4*nkb if at >= 0 else 0
        u = self.first_read(VR(P0 + 8*pb, 8), max(end, use))
        prel = min(self.last_read(VR(P0 + 8*pb, 8), u) + 1, u - 1)
        cap = min(u - 3, self.next_write(VR(S0 + 16*sb, 16), end) - 1, self.n - 1 if dlcap is None else dlcap)
        n = 4 * nkb; edl = {}
        for e in range(n):
            if (only is not None and ('e', e) not in only) or ('e', e) in skip: continue
            rel = min(lastrel, at + 4*(e//4) + 3 + 5) if at >= 0 else 0
            edl[e] = min(max(rel, cap - 1 - 2*(n - 1 - e), min(cap - 1, rel + e % 4)), max(rel, cap))
            self.ops.append(Op((key, 'e', e), 'E', rel, edl[e], i_exp(sb, e)))
        for i in range(2 * nkb):
            if (only is not None and ('c', i) not in only) or ('c', i) in skip: continue
            rel = max(prel, min(lastrel, at + 4*(i//2) + 3 + 6) if at >= 0 else 0)
            self.ops.append(Op((key, 'c', i), 'H', rel, max(rel, cap - (2*nkb - 1 - i), min(cap, edl.get(2*i+1, 0) + 1)), i_cvt(sb, pb, i),
                               deps=[(key, 'e', 2*i), (key, 'e', 2*i+1)]))
            assert rel <= u - 1, (key, i, rel, u)
        if only is None and zero:
            for i in range(2 * nkb, 8):
                self.ops.append(Op((key, 'z', i), 'H', prel, max(prel, u - 3), f'v_mov_b32 {v(P0+8*pb+i)}, 0'))

NG = 132
PR = OPT['pr']
def qk2(a_, b_):
    out = []
    for kb in range(4):
        for q, kss in (((a_, b_)[kb & 1], (0, 1, 2, 3)), ((b_, a_)[kb & 1], (3, 2, 1, 0))):
            D = v(S0 + 16*q + 4*kb, 4)
            out += [f'{MF} {D}, {a(aK+16*kb+4*ks,4)}, {a(aQ+16*q+4*ks,4)}, {D if i else "0"}' for i, ks in enumerate(kss)]
    return out
def pv2(a_, b_):
    out = []
    for db in range(8):
        x, y = (a_, b_) if db % 2 == 0 else (b_, a_)
        out += [pv(x, db, 0), pv(x, db, 1), pv(y, db, 1), pv(y, db, 0)]
    return out[:16] + [sm(a_)] + out[16:] + [sm(b_)]
LOOP_MF = qk2(0, 1) + pv2(2, 3) + qk2(2, 3) + pv2(0, 1) if PR else qkg(0) + pvg(2) + qkg(1) + pvg(3) + qkg(2) + pvg(0) + qkg(3) + pvg(1)
assert len(LOOP_MF) == NG
BARG = OPT.get('barg', 34 if PR else 47)
DMAG = {0: [1, 5, 9, 14, 18, 22, 26, 30], 1: [5, 9, 14, 18, 22, 26, 30, 34], 2: [3, 7, 12, 16, 20, 24, 28, 32], 3: [12, 16, 20, 24, 28, 32, 36, 40], 4: [14, 18, 22, 26, 30, 34, 38, 42], 5: [1, 5, 9, 16, 20, 24, 28, 32]}[OPT.get('dg', 0)] if PR else [10, 14, 18, 22, 26, 30, 34, 38]
RLG = {0: [88, 111, 125, 129], 1: [88, 111, 123, 127], 2: [45, 78, 88, 111], 3: [36, 45, 88, 111]}[OPT.get('rg', 0)] if PR else [41, 43, 92, 96] if BARG not in (41, 43) else [45, 47, 92, 96]
if PR: OPT['delta'] = 13

def steady(DMAG, RLG, sh0, shv=0):
    NT = 6
    ops = []
    gaps = [Gap() for _ in range(NG * (NT + 1))]
    for j in range(NT):
        b = NG * j
        for q in range(4):
            pvs = b + (98 + 66*(q // 2) if PR else 82 + 33*q); qs = b + 33*q
            for e in range(16):
                g = qs + OPT['delta'] + 2*e + (sh0 if q == 0 else 0) + (shv if (q == 1 and e >= 4) or q == 2 else 0)
                ops.append(Op(('e', j, q, e), 'E', g, g, None))
            for i in range(8):
                ops.append(Op(('c', j, q, i), 'H', pvs - NG + (34 if PR else 17), pvs - 3 - (7 - i) - (8 if PR and q % 2 == 0 else 0), None, deps=[('e', j, q, 2*i), ('e', j, q, 2*i+1)]))
        for f in range(16):
            for t in range(2):
                if PR: ops.append(Op(('v', j, f//2, f%2, t), 'T', b + max(37 + 4*(f//2), BARG + 2 + OPT.get('vp', 3)*f + t), b + 98 + 4*(f//2) - LAT - (1 - t), None))
                else: ops.append(Op(('v', j, f//2, f%2, t), 'T', max(b + 50 + f, b + BARG + 1), b + 82 + f - LAT - (1 - t), None))
            ops.append(Op(('k', j, f//4, f%4), 'R', b + (max(74 + 8*(f//4), 90 + 2*f) if PR else 100 + f), min(b + NG - 2 - (15 - f), b + NG + f - LAT), None,
                          deps=[('k', j, (f-1)//4, (f-1)%4)] if f else []))
        for i in range(4): ops.append(Op(('rl', j, i), 'E', b + RLG[i], b + RLG[i], None))
        for i in range(8): ops.append(Op(('d', j, i), 'D', b + DMAG[i], b + DMAG[i], None))
        gaps[b + BARG].block = 'all'
        gaps[b + NG - 1].block = 'half'
    schedule(NG * (NT + 1), ops, gaps)
    def pattern(j):
        return [[(o.key[0], o.key[1] - j) + o.key[2:] for o in gaps[NG*j + g].mem + gaps[NG*j + g].valu] for g in range(NG)]
    assert pattern(3) == pattern(4), 'no steady state'
    return pattern(3)
NCOPY = {0: 1, 1: 2, 2: 2, 4: 4}[OPT['stag']]
VARS = []
for ph in (0, 2, 1, 3)[:NCOPY]:
    dg = [g + ph for g in DMAG]; rg = RLG if ph < 3 else [43, 45, 92, 96]
    shv = OPT.get('shv', 0) and ph == 2
    if shv: rg = [41, 43, 93, 97]
    VARS.append((steady(dg, rg, ph & 1, shv), dg, rg))
PAT = VARS[0][0]
assert all({k for g in V[0] for k in g if k[1] == -1} == {k for g in PAT for k in g if k[1] == -1} for V in VARS)
LEFT = {k for g in PAT for k in g if k[1] == -1}
assert all(k[0] in 'ec' and k[2] == 3 for k in LEFT), LEFT
LEFT3 = {(k[0], k[3]) for k in LEFT}
HEADWAIT = 's_waitcnt lgkmcnt(4)'

class Txt:
    def __init__(self, t): self.text = t

def body(sl, w=0):
    PAT, DMAG, RLG = VARS[w]
    def text(k):
        if k[0] == 'e': return i_exp(k[2], k[3])
        if k[0] == 'c': return i_cvt(k[2], k[2], k[3])
        if k[0] == 'v': return i_vread(k[2], k[3], k[4], sl, '+0')
        if k[0] == 'k': return i_kread(*krd(4*k[2] + k[3]), (sl + 1) % 4, '+1')
        if k[0] == 'rl': return f'v_readlane_b32 {s(SETS[sl%2] + k[2])}, {v(BT+k[2])}, {s(sLN)}'
        if k[0] == 'd':
            if k[2] < 4: return i_dma(1, k[2], SETS[sl % 2], '+2', 24 if NOK and sl == 0 and k[2] > 0 else None)
            return i_dma(0, k[2] - 4, SETS[(sl + 1) % 2], '+3', 20 if NOK and (sl == 0 or (sl == 3 and k[2] > 4)) else None)
    gaps = [Gap() for _ in range(NG)]
    for g in range(NG):
        for k in PAT[g]: (gaps[g].mem if k[0] in 'vkd' else gaps[g].valu).append(Txt(text(k)))
    gaps[max(0, DMAG[0] - 2)].sc.append(i_m0(1, (sl + 2) % 4))
    gaps[DMAG[4] - 2].sc.append(i_m0(0, (sl + 3) % 4))
    gaps[(60 if RLG[0] > 60 else 34) if PR else RLG[-1] + 2].sc.append(f's_add_u32 {s(sLN)}, {s(sLN)}, 1')
    gaps[BARG - OPT.get('vmo', 1)].sc.append('s_waitcnt vmcnt(16)')
    gaps[BARG].sc.append('s_barrier')
    if sl == 0: gaps[NG - 3].sc.append(f's_sub_u32 {s(sIT)}, {s(sIT)}, 1')
    if NOK and sl == 2:
        gaps[100].sc.append(f's_cmp_eq_u32 {s(sIT)}, {s(sLAST)}'); gaps[101].sc.append('s_cselect_b32 s22, 0, s22'); gaps[102].sc.append('s_cselect_b32 s26, 0, s26')
    gaps[NG - 2].sc.append(HEADWAIT)
    lines = emit(LOOP_MF, gaps)
    ab = OPT.get('abl', 0)
    if ab & 1: lines = [l for l in lines if not l.startswith('buffer_load')]
    if ab & 2: lines = [l for l in lines if not l.startswith(('s_barrier', 's_waitcnt vmcnt'))]
    if ab & 32: lines = [l for l in lines if not l.startswith('s_barrier')]
    return lines

EXPC = 1 if OPT['tv'] in (3, 5) else 2
def dispatch(w):
    x = 'bcde'[w]
    out = []
    for c in sorted((1, 2, 3), key=lambda c: c != EXPC): out += [f's_cmp_eq_u32 {s(sE)}, {c}', f's_cbranch_scc1 L_{x}{(c + 1) % 4}']
    return out + [f's_cmp_eq_u32 {s(sNP)}, 4', 's_cbranch_scc1 L_tail']
def wave_select():
    if NCOPY == 1: return []
    if NCOPY == 2:
        return [f's_cmp_eq_u32 {s(sE2)}, {4 + EXPC}', f's_cbranch_scc1 L_c{EXPC + 1}', f's_cmp_gt_u32 {s(sE2)}, 3', 's_cbranch_scc1 L_w1']
    return [x for w in (1, 2, 3) for x in (f's_cmp_eq_u32 {s(sW)}, {w}', f's_cbranch_scc1 L_w{w}')]
def loop_copy(w, pend):
    x = 'bcde'[w]
    out = [f'L_w{w}:'] + dispatch(w) + ['.p2align 6']
    for sl in (1, 2, 3, 0):
        l, pend2 = add_lgkm_waits(body(sl, w), pend)
        assert suffix(pend2, pend)
        out += [f'L_{x}{sl}:'] + l
    return out + [f's_cbranch_scc0 L_{x}1', 's_branch L_tail']

def suffix(a_, b_): return not a_ or [x[0] for x in a_] == [x[0] for x in b_][-len(a_):]
def loop_code(pend0):
    _, pend = add_lgkm_waits(body(1))
    assert suffix(pend, pend0)
    pend = [(r, min([g] + [g2 for r2, g2 in pend if r2 == r])) for r, g in pend0]
    out = ['s_branch L_b1', 'L_padA:', 's_branch L_ret'] if OPT['touch'] else []
    out += ['.p2align 6']
    for sl in (1, 2, 3, 0):
        l, pend2 = add_lgkm_waits(body(sl), pend)
        assert suffix(pend2, pend)
        out += [f'L_b{sl}:']
        if OPT.get('its'):
            for k in range(3):
                out += [f's_cmp_eq_u32 {s(sLN)}, {OPT["its"] + k * OPT.get("itd", 1)}', f's_cbranch_scc0 L_sk{sl}{k}', f's_mem{"real" if OPT.get("rt") else ""}time {s(sST+2+2*k,2)}', f'L_sk{sl}{k}:']
        out += l
        if OPT['touch'] and sl == 2: out += ['L_padB:', 's_cbranch_vccnz L_ret']
    return out + ['s_cbranch_scc0 L_b1'], pend

def EP(q): return OPT.get(f'ep{q}', OPT['ep'])
def epi_list(q, first):
    t = T0 + 2 * (q & 1)
    o = O0 + 32*q
    L = [('H', f'v_accvgpr_read_b32 {v(t)}, {a(aL+4*q)}', -1),
         ('H', f'v_accvgpr_read_b32 {v(t+1)}, {a(aL+4*q+1)}', -1),
         ('H', f'v_add_f32 {v(t)}, {v(t)}, {v(t+1)}', -1),
         ('E', f'v_rcp_f32 {v(t+1)}, {v(t)}', -1),
         ('H', f'v_subrev_u32 {v(t)}, 0x2b800000, {v(t)}', -1),
         ('H', f'v_mov_b32 {v(T0+4)}, {v(t)}' if first else f'v_max_u32 {v(T0+4)}, {v(T0+4)}, {v(t)}', -1)]
    def muls(u): return [('M', (o + 8*u + i, t + 1), u) for i in range(8)]
    def cvts(u): return [('H', f'v_cvt_pk_bf16_f32 {v(o+8*u+i)}, {v(o+8*u+2*i)}, {v(o+8*u+2*i+1)}', u) for i in range(4)]
    def swaps(u): return [('E', f'v_permlane16_swap_b32 {v(o+8*u+i)}, {v(o+8*u+2+i)}', u) for i in range(2)]
    def store(u):
        if OPT['urot']: return [('D', f'buffer_store_dwordx4 {v(o+8*u,4)}, {v(BT+u)}, s[16:19], {qoff(q)} offen{FL[OPT.get(f"of{q}", OPT["of"])]}', u)]
        return [('D', f'buffer_store_dwordx4 {v(o+8*u,4)}, {v(OV)}, s[16:19], {qoff(q)} offen offset:{64*u}{FL[OPT.get(f"of{q}", OPT["of"])]}', u)]
    if EP(q) == 2:
        def writes(u): return [('W' if OPT['wcls'] else 'T', f'ds_write_b64 {v(EW)}, {v(o+8*u+2*i,2)} offset:{64*u+32*i}', u) for i in range(2)]
        def reads(hb): return [('R', f'ds_read_b128 {v(o+16*hb+8*j+4,4)}, {v(ER)} offset:{3200*j+128*hb}', 2*hb+1) for j in range(2)]
        def stores(hb): return [('D', f'buffer_store_dwordx4 {v(o+16*hb+8*j+4,4)}, {v(EG)}, s[16:19], {qoff(q)} offen offset:{2048*j+128*hb}{FL[OPT.get(f"of{q}", OPT["of"])]}', 2*hb+1) for j in range(2)]
        w = lambda u: muls(u) + cvts(u) + writes(u)
        return L + w(0) + w(1) + reads(0) + muls(2) + cvts(2) + stores(0)[:1] + writes(2) + muls(3) + stores(0)[1:] + cvts(3) + writes(3) + reads(1) + stores(1)
    if EP(q):
        def writes(u): return [('T', f'ds_write_b64 {v(EW)}, {v(o+8*u+2*i,2)} offset:{64*u+32*i}', u) for i in range(2)]
        for u in range(4): L += muls(u) + cvts(u) + writes(u)
        L += [('R', f'ds_read_b128 {v(o+8*p+4,4)}, {v(ER)} offset:{1088*p}', 3) for p in range(4)]
        L += [('D', f'buffer_store_dwordx4 {v(o+8*p+4,4)}, {v(EG)}, s[16:19], {qoff(q)} offen offset:{1024*p}{FL[OPT.get(f"of{q}", OPT["of"])]}', 3) for p in range(4)]
        return L
    h = lambda l, a_, b_: l[a_:b_]
    L += muls(0) + cvts(0) + h(muls(1), 0, 2) + swaps(0) + store(0) + h(muls(1), 2, 8) + cvts(1) + h(muls(2), 0, 2) + swaps(1) + store(1) \
       + h(muls(2), 2, 8) + cvts(2) + h(muls(3), 0, 2) + swaps(2) + store(2) + h(muls(3), 2, 8) + cvts(3) + [('H', 's_nop 1', 3)] + swaps(3) + store(3)
    return L

def final(q, items):
    return [sm(q, pb) for pb, vb, nk in items] + [pv(q, db, ks, pb, vb) for db in range(8) for pb, vb, nk in items for ks in range(nk)]

def tail_merged():
    P = Prog(); G = P.group
    k3 = lambda q, sb: qkg(q, 1, sb=sb, kbase=aX, mask=True)
    fin = lambda q, pb: final(q, [(q, None, 2), (pb, 'ov', 1)])
    order = {0: 'q0 p2 p3 r0 r1 q1 f0 q2 r2 f1 q3 r3 f2 f3', 1: 'q0 p2 p3 r0 r1 q1 f0 r2 q2 f1 r3 q3 f2 f3',
             3: 'q0 p2 p3 r0 r1 q1 f0 r2 q2 f1 r3 f2 q3 x3 f3', 5: 'q0 p2 p3 r0 r1 f0 q1 r2 q2 f1 r3 q3 f2 f3',
             6: 'q0 p2 p3 r0 r1 f0 q1 r2 q2 f1 r3 f2 q3 x3 f3', 7: 'q0 p2 r0 p3 r1 f0 q1 r2 q2 f1 r3 q3 f2 f3',
             8: 'q0 p2 r0 p3 f0 r1 q1 r2 q2 f1 r3 q3 f2 f3', 9: 'q0 p2 r0 p3 r1 f0 q1 r2 q2 f1 r3 f2 q3 x3 f3',
             10: 'q0 p2 r0 p3 r1 f0 q1 q2 r2 f1 r3 f2 q3 x3 f3'}[OPT['tord']].split()
    for nm in order:
        q = int(nm[1])
        G(nm, {'q': lambda: qkg(q), 'p': lambda: pvg(q), 'r': lambda: k3(q, (q + 2) % 4), 'x': lambda: final(q, [((q + 2) % 4, 'ov', 1)]),
               'f': lambda: final(q, [(q, None, 2)]) if f'x{q}' in order else fin(q, (q + 2) % 4)}[nm[0]]())
    P.done(); p = P.pos
    bar2 = p['p3'] + OPT.get('b2', 8)
    P.softmax('left', -1, 3, 3, only=LEFT3)
    for q in range(4):
        P.softmax(f's{q}', p[f'q{q}'], q, q, use=p[f'f{q}'])
        P.softmax(f't{q}', p[f'r{q}'], (q + 2) % 4, (q + 2) % 4, 1, use=p.get(f'x{q}', p[f'f{q}']))
    P.kload('k3', p['r0'], 2, 'T3', 1, kbase=aX, rel0=2); P.vload('v2', p['f0'], 1, 'T2', rel0=2)
    P.vload('v3', p['f0'], 2, 'T3', 1, 'ov', rel0=bar2 + 1)
    g = P.gaps
    g[0].sc.append('s_waitcnt vmcnt(8)'); g[1].sc.append('s_barrier'); g[1].block = 'all'
    g[bar2 - 1].sc.append('s_waitcnt vmcnt(4)'); g[bar2].sc.append('s_barrier'); g[bar2].block = 'all'
    return P

def tail_y():
    P = Prog(); G = P.group
    G('q0', qkg(0)); G('p2', pvg(2)); G('p3', pvg(3)); G('q1', qkg(1)); G('f0', final(0, [(0, None, 2)]))
    G('q2', qkg(2)); G('f1', final(1, [(1, None, 2)])); G('r3', qkg(3, 1, sb=0, kbase=aX, mask=True)); G('q3', qkg(3))
    if OPT['tord'] == 2: G('x3', final(3, [(0, 'ov', 1)])); G('f2', final(2, [(2, None, 2)])); G('f3', final(3, [(3, None, 2)]))
    else: G('f2', final(2, [(2, None, 2)])); G('f3', final(3, [(3, None, 2), (0, 'ov', 1)]))
    P.done(); p = P.pos
    P.softmax('left', -1, 3, 3, only=LEFT3)
    for q in range(4): P.softmax(f's{q}', p[f'q{q}'], q, q, use=p[f'f{q}'])
    P.softmax('t3', p['r3'], 0, 0, 1)
    P.vload('v2', p['f0'], 1, 'T2', rel0=2)
    g = P.gaps
    g[0].sc.append('s_waitcnt vmcnt(8)'); g[1].sc.append('s_barrier'); g[1].block = 'all'
    return P

def tail_x():
    P = Prog(); G = P.group
    G('A1', qkg(0, sb=0)); G('A2', pvg(2)); G('A3', qkg(1, sb=1)); G('A4', pvg(3)); G('A5', qkg(0, sb=2))
    if OPT['tord'] < 2: G('A6', qkg(1, sb=3))
    G('A7', pvg(0, pb=0)); G('A8', pvg(1, pb=1)); G('A10', final(0, [(2, None, 2)]))
    if OPT['tord'] == 2: G('A6', qkg(1, sb=3))
    G('B1', qkg(2, sb=2)); G('A11', final(1, [(3, None, 2)])); G('B2', qkg(3, sb=3)); G('B3', qkg(2, sb=0))
    G('r3', qkg(3, 1, sb=1, kbase=aX, mask=True)); G('B4', pvg(2, pb=2)); G('B5', pvg(3, pb=3))
    if OPT['tord']:
        G('B8', final(2, [(0, None, 2)])); G('B6', qkg(3, sb=1)); G('x3', final(3, [(3, 'ov', 1)])); G('B9', final(3, [(1, None, 2)]))
    else:
        G('B6', qkg(3, sb=1)); G('B8', final(2, [(0, None, 2)])); G('B9', final(3, [(1, None, 2), (3, 'ov', 1)]))
    P.done(); p = P.pos
    bar2 = p['A5'] + 6
    P.softmax('left', -1, 3, 3, only=LEFT3)
    P.softmax('s10', p['A1'], 0, 0); P.softmax('s11', p['A3'], 1, 1); P.softmax('s20', p['A5'], 2, 2); P.softmax('s21', p['A6'], 3, 3)
    P.softmax('s12', p['B1'], 2, 2); P.softmax('s13', p['B2'], 3, 3); P.softmax('s22', p['B3'], 0, 0); P.softmax('s23', p['B6'], 1, 1)
    P.softmax('t3', p['r3'], 1, 3, 1, use=p['B8'])
    P.kload('k2', p['A5'], 2, 'T2', rel0=2); P.vload('v1', p['A7'], 1, 'T1', rel0=2); P.vload('v2', p['A10'], 2, 'T2', rel0=bar2 + 1)
    P.kload('k1b', p['B1'], 1, 'T1'); P.kload('k2b', p['B3'], 2, 'T2'); P.vload('v1b', p['B4'], 1, 'T1'); P.vload('v2b', p['B8'], 2, 'T2')
    g = P.gaps
    g[0].sc.append('s_waitcnt vmcnt(8)'); g[1].sc.append('s_barrier'); g[1].block = 'all'
    g[bar2 - 1].sc.append('s_waitcnt vmcnt(4)'); g[bar2].sc.append('s_barrier'); g[bar2].block = 'all'
    if OPT.get('otlb') == 2:
        P.ops.append(Op(('ot', 0), 'D', bar2 + 2, bar2 + 2, f'buffer_load_dword {v(BT)}, {v(OV)}, s[16:19], 0 offen sc1'))
    return P

def tail_pairs(nkb):
    nks = 1 if nkb <= 2 else 2
    small = nkb <= 2
    vx = aX if small else None
    P = Prog()
    G = P.group
    G('A1', qkg(0, sb=0)); G('A2', pvg(2)); G('A3', qkg(1, sb=1)); G('A4', pvg(3))
    G('A5', qkg(0, sb=2)); G('A6', qkg(1, sb=3)); G('A7', pvg(0, pb=0))
    if not small: G('A8', pvg(1, pb=1))
    G('A9a', qkg(0, nkb, sb=0, mask=True)); G('A9b', qkg(1, nkb, sb=1, mask=True))
    if small:
        G('A8', pvg(1, pb=1))
        G('A10', final(0, [(2, None, 2), (0, vx, 1)])); G('B1', qkg(2, sb=2)); G('A11', final(1, [(3, None, 2), (1, vx, 1)]))
        G('B2', qkg(3, sb=3)); G('B3', qkg(2, sb=0)); G('B4', pvg(2, pb=2))
        G('B7a', qkg(2, nkb, sb=2, kbase=aQ, mask=True)); G('B7b', qkg(3, nkb, sb=3, kbase=aQ, mask=True)); G('B5', pvg(3, pb=3))
        if OPT['tord']:
            G('B8', final(2, [(0, None, 2), (2, vx, 1)])); G('B6', qkg(3, sb=1))
            G('B9a', final(3, [(3, vx, 1)])); G('B9', final(3, [(1, None, 2)]))
        else:
            G('B6', qkg(3, sb=1))
            G('B8', final(2, [(0, None, 2), (2, vx, 1)])); G('B9', final(3, [(1, None, 2), (3, vx, 1)]))
    else:
        G('A10p', pvg(0, pb=2)); G('A11p', pvg(1, pb=3)); G('B1', qkg(2, sb=2))
        G('A10', final(0, [(0, None, 2)])); G('A11', final(1, [(1, None, 2)]))
        G('B2', qkg(3, sb=3)); G('B3', qkg(2, sb=0)); G('B4', pvg(2, pb=2)); G('B5', pvg(3, pb=3)); G('B6', qkg(3, sb=1))
        G('B8p', pvg(2, pb=0)); G('B7a', qkg(2, nkb, sb=2, mask=True)); G('B9p', pvg(3, pb=1)); G('B7b', qkg(3, nkb, sb=3, mask=True))
        G('B8', final(2, [(2, None, 2)])); G('B9', final(3, [(3, None, 2)]))
    P.done(); p = P.pos
    bar2 = p['A6'] + 10
    P.softmax('left', -1, 3, 3, only=LEFT3)
    P.softmax('s10', p['A1'], 0, 0); P.softmax('s11', p['A3'], 1, 1); P.softmax('s20', p['A5'], 2, 2); P.softmax('s21', p['A6'], 3, 3)
    P.softmax('s30', p['A9a'], 0, 0, nkb); P.softmax('s31', p['A9b'], 1, 1, nkb, use=p['A10'])
    P.softmax('s12', p['B1'], 2, 2); P.softmax('s13', p['B2'], 3, 3); P.softmax('s22', p['B3'], 0, 0); P.softmax('s23', p['B6'], 1, 1)
    P.softmax('s32', p['B7a'], 2, 2, nkb); P.softmax('s33', p['B7b'], 3, 3, nkb, use=p['B8'])
    P.kload('k2', p['A5'], 2, 'T2', rel0=2); P.vload('v1', p['A7'], 1, 'T1', rel0=2)
    P.kload('k3', p['A9a'], 3, 'T3', nkb, rel0=bar2 + 1)
    P.kload('k1b', p['B1'], 1, 'T1'); P.kload('k2b', p['B3'], 2, 'T2'); P.vload('v1b', p['B4'], 1, 'T1')
    if small:
        P.vload('v2', p['A10'], 2, 'T2', rel0=bar2 + 1); P.vload('v3', p['A10'], 3, 'T3', 1, vx, rel0=bar2 + 1)
        P.kload('k3b', p['B7a'], 3, 'T3', nkb, kbase=aQ); P.vload('v2b', p['B8'], 2, 'T2')
    else:
        P.vload('v2', p['A10p'], 2, 'T2', rel0=bar2 + 1); P.vload('v3', p['A10'], 3, 'T3')
        P.kload('k3b', p['B7a'], 3, 'T3', nkb); P.vload('v2b', p['B8p'], 2, 'T2'); P.vload('v3b', p['B8'], 3, 'T3')
    for i in range(4):
        P.ops.append(Op(('d', i), 'D', 10 + 4*i, 11 + 4*i, i_dma(1, i, SETS[1], 'T3')))
    g = P.gaps
    g[0].sc.append('s_waitcnt vmcnt(8)'); g[1].sc.append('s_barrier'); g[1].block = 'all'
    g[8].sc.append(i_m0(1, 3))
    g[bar2 - 1].sc.append('s_waitcnt vmcnt(0)'); g[bar2].sc.append('s_barrier'); g[bar2].block = 'all'
    return P

def tail(nkb, pend):
    P = {3: tail_merged, 4: tail_x, 5: tail_y}[OPT['tv']]() if nkb == 1 and OPT['tv'] >= 3 else tail_pairs(nkb)
    p = P.pos
    prev = None
    if OPT['urot']:
        for i, x in enumerate([f'v_or_b32 {v(BT)}, {s(sY)}, {v(OV)}'] + [f'v_xor_b32 {v(BT+u)}, {64*u}, {v(BT)}' for u in (1, 2, 3)]):
            o = Op(('su', i), 'H', 24, INF, x, fifo=prev, pri=60 + i); prev = o.key; P.ops.append(o)
    if any(EP(q) for q in range(4)):
        t = T0
        setup = [f'v_mbcnt_lo_u32_b32 {v(t)}, -1, 0', f'v_mbcnt_hi_u32_b32 {v(t)}, -1, {v(t)}',
                 f'v_and_b32 {v(t+1)}, 15, {v(t)}', f'v_lshrrev_b32 {v(t+2)}, 4, {v(t)}',
                 f'v_mul_u32_u24 {v(EW)}, 272, {v(t+1)}', f'v_lshl_add_u32 {v(EW)}, {v(t+2)}, 3, {v(EW)}',
                 f'v_mul_u32_u24 {v(ER)}, 272, {v(t+2)}', f'v_lshl_add_u32 {v(ER)}, {v(t+1)}, 4, {v(ER)}',
                 f'v_add_u32 {v(EW)}, {s(sT+3)}, {v(EW)}', f'v_add_u32 {v(ER)}, {s(sT+3)}, {v(ER)}',
                 f'v_lshlrev_b32 {v(EG)}, 4, {v(t)}', f'v_add_u32 {v(EG)}, {s(sT+4)}, {v(EG)}']
        if max(EP(q) for q in range(4)) == 2:
            setup = setup[:4] + [f'v_mul_u32_u24 {v(EW)}, 400, {v(t+1)}', f'v_lshl_add_u32 {v(EW)}, {v(t+2)}, 3, {v(EW)}',
                     f'v_lshrrev_b32 {v(t+1)}, 3, {v(t)}', f'v_and_b32 {v(t+2)}, 7, {v(t)}',
                     f'v_mul_u32_u24 {v(ER)}, 400, {v(t+1)}', f'v_lshl_add_u32 {v(ER)}, {v(t+2)}, 4, {v(ER)}',
                     f'v_add_u32 {v(EW)}, {s(sT+3)}, {v(EW)}', f'v_add_u32 {v(ER)}, {s(sT+3)}, {v(ER)}',
                     f'v_lshlrev_b32 {v(EG)}, 8, {v(t+1)}', f'v_lshl_add_u32 {v(EG)}, {v(t+2)}, 4, {v(EG)}', f'v_add_u32 {v(EG)}, {s(sT+4)}, {v(EG)}']
        for i, x in enumerate(setup):
            o = Op(('su', i), 'H', 24, INF, x, fifo=prev, pri=100 + i); prev = o.key; P.ops.append(o)
    laststore = None
    for q in range(4):
        lrel = P.last_write(AR(aL + 4*q, 4), INF) + 5
        nst = 0
        for i, (c, t, u) in enumerate(epi_list(q, q == 0)):
            rel = lrel if u < 0 else max(lrel, P.last_write(VR(O0 + 32*q + 8*u, 8), INF) + 5)
            fin = P.last_write(VR(O0 + 32*q, 32), INF) + 5
            edl = OPT.get(f'edl{q}', OPT.get('edl', INF))
            nst += c == 'D'
            free = c == 'D' and not EP(q) and OPT['ssp0'] > 0
            dl = INF if edl >= INF else fin + edl + (LAT + OPT['ssp'] * (nst - 1) if c == 'D' and EP(q) == 1 else LAT if c == 'D' and EP(q) == 2 and nst > 2 else 0)
            if free: dl = INF
            o = Op(('ep', q, i), {'M': 'H'}.get(c, c), rel, dl if dl < P.n - 1 else INF,
                   f'v_mul_f32 {v(t[0])}, {v(t[1])}, {v(t[0])}' if c == 'M' else t,
                   fifo=laststore if free else prev, deps=[prev] if free else (), pri=-INF if free else rel + OPT['epri'] + i // 2)
            o.raw = (c, t); P.ops.append(o)
            if free: laststore = o.key
            else: prev = o.key
            if c != 'D': lastnd = o.key
        if EP(q): prev = lastnd
    g = P.gaps
    todo = schedule(P.n, P.ops, g, overflow=True)
    if OPT.get('ts'):
        names = {1: ('A5', 'A10', 'B2'), 2: ('B4', 'B8', 'B9'), 3: ('A2', 'A7', 'A11')}[OPT['ts']] if 'A5' in p else {1: ('p3', 'f0', 'f1'), 2: ('q3', 'f2', 'f3')}[OPT['ts']]
        for k, nm in enumerate(names): g[p[nm]].sc += stamp(1 + k)
        if nkb == 1: print('stamp mfma idx', [p[nm] for nm in names], p)
    if OPT['pkd']:
        import re
        for gp in g:
            if sum(x.startswith('v_mul_f32') for x in gp.post) < OPT['pkd']: continue
            out = []; i = 0
            while i < len(gp.post):
                m = re.match(r'v_mul_f32 v(\d+), v(\d+),', gp.post[i])
                if m and int(m.group(1)) % 2 == 0 and i + 1 < len(gp.post) and gp.post[i+1].startswith(f'v_mul_f32 v{int(m.group(1))+1},'):
                    out.append(f'v_pk_mul_f32 {v(int(m.group(1)),2)}, {v(int(m.group(1)),2)}, {v(int(m.group(2))-1,2)} op_sel:[0,1] op_sel_hi:[1,1]'); i += 2
                else: out.append(gp.post[i]); i += 1
            gp.post = out
    lines = emit(P.mf, g)
    assert all(o.key[0] == 'ep' for o in todo), [o.key for o in todo]
    i = 0
    while i < len(todo):
        c, t = todo[i].raw
        if c == 'M' and i + 1 < len(todo) and todo[i+1].raw[0] == 'M' and t[0] % 2 == 0 and todo[i+1].raw[1][0] == t[0] + 1:
            lines.append(f'v_pk_mul_f32 {v(t[0],2)}, {v(t[0],2)}, {v(t[1]-1,2)} op_sel:[0,1] op_sel_hi:[1,1]'); i += 2
        else:
            lines.append(todo[i].text); i += 1
    lines, _ = add_lgkm_waits(lines, pend)
    return lines

def scale_q(q):
    out = []
    for h in range(0, 16, 4):
        for i in range(4):
            x = S0 + 16*q + h + i; t = T0 + 2*i
            out += [f'v_lshlrev_b32 {v(t)}, 16, {v(x)}', f'v_and_b32 {v(t+1)}, 0xffff0000, {v(x)}']
        out += [f'v_pk_mul_f32 {v(T0+2*i,2)}, {v(T0+2*i,2)}, {s(sC,2)}' for i in range(4)]
        out += [f'v_cvt_pk_bf16_f32 {v(S0+16*q+h+i)}, {v(T0+2*i)}, {v(T0+2*i+1)}' for i in range(4)]
        out += [f'v_accvgpr_write_b32 {a(aQ+16*q+h+i)}, {v(S0+16*q+h+i)}' for i in range(4)]
    return out
def qread(q): return [f'ds_read_b128 {v(S0+16*q+4*ks,4)}, {v(QA+ks)} offset:{(q&1)*0x4000}' for ks in range(4)] + ['s_waitcnt lgkmcnt(0)']
def qload(q):
    return [f's_add_u32 m0, {s(sMK)}, {0x20000 + (q&1)*0x4000}', 's_nop 0'] + \
           [f'buffer_load_dwordx4 {v(QD+p)}, s[4:7], {qoff(q)} offen offset:{1024*p}{FL[OPT["qf"]]} lds ; ld Q{q}' for p in range(4)]
def dma4(isv, tile):
    return [f's_add_u32 m0, {s(sMV if isv else sMK)}, {s(sSL+tile)}', 's_nop 0'] + [i_dma(isv, i, 40 + 4*tile, tile) for i in range(4)]
def btprep(tile):
    out = []
    for i in range(4):
        r = 40 + 4*tile + i
        out.append(f's_min_u32 {s(r)}, {s(r)}, 131')
        out.append(f's_lshl_b32 {s(r)}, {s(r)}, 16')
        if i < 3: out.append(f's_or_b32 {s(r)}, {s(r)}, {(3-i)*1024}')
    return out

def resolve_waitvm(lines):
    out = []; vm = []
    for l in lines:
        if l.startswith('WAITVM'):
            tags = l.split(None, 1)[1].split('|')
            last = max(i for i, t in enumerate(vm) if t in tags)
            wb = {1: ('ld Q0', 'ld Q1'), 2: ('ld Q2', 'ld Q3'), 3: ('dma K 0', 'dma V 0'), 4: ('ld BT', 'ld BT')}.get(OPT.get('wb'), ())
            st_ = lambda i: [f's_memtime {s(sST+2*i,2)}']
            if tags[0] in wb: out += st_(1 + 2*wb.index(tags[0]))
            out.append(f's_waitcnt vmcnt({len(vm) - 1 - last}) ; {tags}')
            if tags[0] in wb: out += st_(2 + 2*wb.index(tags[0]))
        else:
            if l.startswith(('buffer_', 'global_')): vm.append(l.split(';')[1].strip() if ';' in l else '')
            out.append(l)
    return out

def prologue():
    t = T0
    L = ([f's_mov_b32 s83, {OPT["twice"]}', 'L_again:'] if OPT.get('twice') else []) + ['s_cmp_ge_u32 s2, 256', 's_cbranch_scc1 L_end',
         's_load_dwordx8 s[24:31], s[0:1], 0', 's_load_dwordx4 s[32:35], s[0:1], 32']
    L += [f's_lshr_b32 {s(sT+1)}, s2, 3']
    if OPT['cpf']:
        L += ['s_getpc_b64 s[8:9]', 'L_pc:', f's_lshl_b32 s10, {s(sT+1)}, 10', 'v_lshl_add_u32 v2, v0, 2, s10', 'v_mov_b32 v3, 0',
              'v_lshl_add_u64 v[2:3], v[2:3], 0, s[8:9]', f'global_load_dword {v(T0+7)}, v[2:3], off']
    L += stamp(0) + (['s_memrealtime s[100:101]'] if OPT['stamp'] else [])
    L += [f'v_lshrrev_b32 {v(t)}, 6, v0',
          f'v_and_b32 {v(t+2)}, 15, v0',
          f'v_readfirstlane_b32 {s(sW)}, {v(t)}',
          f'v_bfe_u32 {v(t+3)}, v0, 4, 2',
          f's_and_b32 {s(sT)}, s2, 7'] + ([f's_lshl_b32 {s(sT)}, {s(sT)}, 5', f's_add_u32 {s(sT)}, {s(sT)}, {s(sT+1)}'] if not OPT['hmap'] else
          [f's_lshl_b32 {s(sT)}, {s(sT)}, 4', f's_and_b32 {s(sT+2)}, {s(sT+1)}, 15', f's_add_u32 {s(sT)}, {s(sT)}, {s(sT+2)}', f's_and_b32 {s(sT+2)}, s2, 128', f's_add_u32 {s(sT)}, {s(sT)}, {s(sT+2)}']) + [ f's_lshl_b32 {s(sT+1)}, {s(sT)}, 16',
          f'v_lshl_add_u32 {v(t+4)}, {v(t)}, {WSH-8}, {v(t+3)}', f'v_xor_b32 {v(t+5)}, {v(t+2)}, {v(t+3)}',
          f'v_lshl_add_u32 {v(QD)}, {v(t+4)}, 4, {v(t+5)}', f'v_lshlrev_b32 {v(QD)}, 4, {v(QD)}',
          f's_lshl_b32 {s(sMK)}, {s(sW)}, 12'] + \
         {0: [], 1: [f's_mov_b32 {s(sQ0)}, {s(sMK)}'],
          2: [f's_add_u32 {s(sQ0)}, {s(sT)}, {s(sW)}', f's_and_b32 {s(sQ0)}, {s(sQ0)}, 3', f's_lshl_b32 {s(sQ0)}, {s(sQ0)}, 12'],
          3: [f's_and_b32 {s(sQ0)}, {s(sT)}, 3', f's_lshl_b32 {s(sQ0)}, {s(sQ0)}, 12'],
          4: [f's_and_b32 {s(sQ0)}, {s(sT)}, 3', f's_lshl_b32 {s(sQ0)}, {s(sQ0)}, 14'],
          5: [f's_mov_b32 {s(sQ0)}, 0'],
          6: [f's_add_u32 {s(sQ0)}, {s(sT)}, {s(sW)}', f's_and_b32 {s(sQ0)}, {s(sQ0)}, 3', f's_lshl_b32 {s(sQ0)}, {s(sQ0)}, 14']}[OPT['rot']] + [
          f'v_xor_b32 {v(QD+1)}, 64, {v(QD)}', f'v_xor_b32 {v(QD+2)}, 0x80, {v(QD)}',
          f'v_xor_b32 {v(QD+3)}, 64, {v(QD+2)}', 's_mov_b32 s6, 0x10000', 's_mov_b32 s7, 0x20000', qload(0)[0],
          's_waitcnt lgkmcnt(0)',
          f's_add_u32 s4, s24, {s(sT+1)}', 's_addc_u32 s5, s25, 0',
          f's_load_dword {s(sCL)}, s[32:33], 0', 's_load_dwordx16 s[40:55], s[30:31], 0']
    L += qload(0)[2:]
    if OPT['cpf'] and NCOPY > 2:
        L += ['s_mov_b64 s[8:9], 0x8000', 'v_lshl_add_u64 v[2:3], v[2:3], 0, s[8:9]', f'global_load_dword {v(T0+7)}, v[2:3], off']
    L += [f'v_and_b32 {v(t+1)}, 63, v0', f'v_lshlrev_b32 {v(t+6)}, 4, {v(t+1)}',
          's_mov_b32 s20, s30', 's_mov_b32 s21, s31', 's_movk_i32 s22, 0x200', 's_mov_b32 s23, 0x20000',
          f'buffer_load_dwordx4 {v(BT,4)}, {v(t+6)}, s[20:23], 0 offen ; ld BT',
          f's_lshr_b32 {s(sT)}, {s(sT)}, 4', f's_lshl_b32 {s(sT)}, {s(sT)}, 8',
          f's_add_u32 s8, s26, {s(sT)}', 's_addc_u32 s9, s27, 0', 's_sub_u32 s8, s8, 3072', 's_subb_u32 s9, s9, 0',
          f's_sub_u32 s10, {KBYTES+3072}, {s(sT)}', 's_mov_b32 s11, 0x20000',
          f'v_lshl_add_u32 {v(t+4)}, {v(t)}, 2, {v(t+3)}',
          f'v_xor_b32 {v(t+6)}, {v(t+2)}, {v(t+4)}', f'v_lshlrev_b32 {v(t+6)}, 4, {v(t+6)}',
          f'v_lshl_add_u32 {v(DK)}, {v(t+4)}, 12, {v(t+6)}',
          f'v_and_b32 {v(t+6)}, 7, {v(t+4)}', f'v_lshlrev_b32 {v(t+6)}, 1, {v(t+6)}',
          f'v_xor_b32 {v(t+6)}, {v(t+2)}, {v(t+6)}', f'v_lshlrev_b32 {v(t+6)}, 4, {v(t+6)}',
          f'v_lshl_add_u32 {v(DV)}, {v(t+4)}, 12, {v(t+6)}',
          ] + ([x for q in range(1, 4) for x in (f's_add_u32 {s(sQ1+q-1)}, {s(sQ0)}, {q << QSH}', f's_and_b32 {s(sQ1+q-1)}, {s(sQ1+q-1)}, {3 << QSH}')] if OPT['rot'] else
               [f's_movk_i32 {s(sQ1)}, 0x1000', f's_movk_i32 {s(sQ1+1)}, 0x2000', f's_movk_i32 {s(sQ1+2)}, 0x3000']) + [
          f's_add_u32 s12, s28, {s(sT)}', 's_addc_u32 s13, s29, 0', 's_sub_u32 s12, s12, 3072', 's_subb_u32 s13, s13, 0',
          's_mov_b32 s14, s10', 's_mov_b32 s15, 0x20000',
          f's_add_u32 s16, s34, {s(sT+1)}', 's_addc_u32 s17, s35, 0', 's_mov_b32 s18, 0x10000', 's_mov_b32 s19, 0x20000',
          f's_add_u32 {s(sMV)}, {s(sMK)}, 0x10000', f's_mov_b32 {s(sC)}, 0x3e0293ee',
          's_waitcnt lgkmcnt(0)'] + stamp(1)
    L += [f's_cmp_lt_i32 {s(sCL)}, 1', f's_cselect_b32 {s(sC)}, 0, {s(sC)}', f's_cselect_b32 {s(sCL)}, 0x800, {s(sCL)}',
          f's_min_u32 {s(sCLT)}, {s(sCL)}, 0x800', f's_max_u32 {s(sCL)}, {s(sCLT)}, {MINCL}',
          f's_add_u32 {s(sN)}, {s(sCL)}, 63', f's_lshr_b32 {s(sN)}, {s(sN)}, 6',
          f's_mov_b32 {s(sNP)}, {s(sN)}']
    if OPT['tv'] in (3, 5):
        L += [f's_sub_u32 {s(sNP)}, {s(sCL)}, 1', f's_and_b32 {s(sNP)}, {s(sNP)}, 63', f's_cmp_lt_u32 {s(sNP)}, 16', f's_addc_u32 {s(sNP)}, {s(sN)}, 0']
    L += [f's_sub_u32 {s(sE)}, 0, {s(sNP)}', f's_and_b32 {s(sE)}, {s(sE)}, 3', f's_lshl_b32 {s(sSL)}, {s(sE)}, 14']
    L += btprep(0) + dma4(0, 0) + qload(1)
    if OPT.get('otlb') == 1:
        L += [f'buffer_load_dword {v(O0+8)}, {v(QD)}, s[16:19], 0 offen sc1 ; ld O']
    L += [f's_mov_b32 {s(sC2)}, {s(sC)}',
          f's_cmp_lt_u32 {s(sCLT)}, {4096 if OPT["forceslow"] else MINCL}', f's_cselect_b32 {s(sFORCE)}, 1, 0',
          f's_add_u32 {s(sIT)}, {s(sNP)}, {s(sE)}', f's_lshr_b32 {s(sIT)}, {s(sIT)}, 2', f's_sub_u32 {s(sIT)}, {s(sIT)}, 2']
    for i in range(1, 4):
        L += [f's_add_u32 {s(sSL+i)}, {s(sSL)}, {i*0x4000}', f's_and_b32 {s(sSL+i)}, {s(sSL+i)}, 0xc000']
    L += [f's_sub_u32 {s(sT)}, {s(sN)}, 1', f's_lshl_b32 {s(sT)}, {s(sT)}, 6', f's_sub_u32 {s(sT)}, {s(sCL)}, {s(sT)}',
          f's_add_u32 {s(sNKB)}, {s(sT)}, 15', f's_lshr_b32 {s(sNKB)}, {s(sNKB)}, 4',
          f's_sub_u32 {s(sT)}, {s(sT)}, 1', f's_and_b32 {s(sT)}, {s(sT)}, 15',
          f's_and_b32 {s(sT+1)}, {s(sE)}, 1', f's_sub_u32 {s(sT+1)}, 4, {s(sT+1)}', f's_sub_u32 {s(sT+2)}, 7, {s(sT+1)}',
          f's_mov_b32 {s(sLN)}, {4 if PR else 5}', f's_sub_u32 {s(sLAST)}, {s(sN)}, {s(sNP)}', f's_not_b32 {s(sLAST)}, {s(sLAST)}', 's_mov_b64 s[24:25], s[12:13]', 's_mov_b32 s26, s14', 's_mov_b32 s27, 0x20000',
          ] + ([f's_bfe_u32 {s(sE2)}, {s(sW)}, {0x10000 + max(OPT["stag"], 1) - 1:#x}', f's_lshl2_add_u32 {s(sE2)}, {s(sE2)}, {s(sE)}'] if OPT['stag'] else []) + [
          f's_lshl_b32 {s(sT+3)}, {s(sW)}, 13', f's_add_u32 {s(sT+3)}, {s(sT+3)}, 0x20000', f's_lshl_b32 {s(sT+4)}, {s(sW)}, {WSH}']
    L += [f'v_lshrrev_b32 {v(t+4)}, 2, {v(t+2)}', f'v_lshlrev_b32 {v(t+4)}, 4, {v(t+4)}',
          f'v_and_b32 {v(t+6)}, 3, {v(t+2)}', f'v_add_u32 {v(t+4)}, {v(t+4)}, {v(t+6)}', f'v_lshlrev_b32 {v(t+4)}, 8, {v(t+4)}',
          f'v_lshlrev_b32 {v(t+6)}, 12, {v(t)}', f'v_lshl_add_u32 {v(t+6)}, {v(t+2)}, 8, {v(t+6)}', f'v_add_u32 {v(t+6)}, 0x20000, {v(t+6)}']
    for ks in range(4):
        L += [f'v_xor_b32 {v(MK)}, {4*ks}, {v(t+5)}', f'v_lshl_add_u32 {v(KA+ks)}, {v(MK)}, 4, {v(t+4)}',
              f'v_lshl_add_u32 {v(QA+ks)}, {v(MK)}, 4, {v(t+6)}', f'v_add_u32 {v(KA0+ks)}, {s(sSL)}, {v(KA+ks)}']
    L += btprep(1)
    LT = []
    if OPT['late'] in (1, 3):
        LT += [f'v_mbcnt_lo_u32_b32 {v(t+1)}, -1, 0', f'v_mbcnt_hi_u32_b32 {v(t+1)}, -1, {v(t+1)}', f'v_mov_b32 {v(t)}, {s(sW)}',
               f'v_and_b32 {v(t+2)}, 15, {v(t+1)}', f'v_lshrrev_b32 {v(t+3)}, 4, {v(t+1)}']
    LT += [f'v_bfe_u32 {v(t+5)}, {v(t+1)}, 2, 2',
          f'v_lshl_add_u32 {v(t+4)}, {v(t+3)}, 4, {v(t+5)}', f'v_lshlrev_b32 {v(t+4)}, 8, {v(t+4)}',
          f'v_and_b32 {v(MK)}, 3, {v(t+1)}', f'v_lshl_add_u32 {v(t+4)}, {v(MK)}, 3, {v(t+4)}', f'v_add_u32 {v(t+4)}, 0x10000, {v(t+4)}',
          f'v_lshl_add_u32 {v(t+5)}, {v(t+3)}, 2, {v(t+5)}', f'v_and_b32 {v(t+5)}, 7, {v(t+5)}']
    if OPT['urot']:
        LT += {1: [f's_lshl_b32 {s(sY)}, {s(sW)}, 1'], 2: [f's_bfe_u32 {s(sY)}, s2, 0x20003', f's_lshl_b32 {s(sY)}, {s(sY)}, 1'],
              3: [f's_bfe_u32 {s(sY)}, s2, 0x20005', f's_xor_b32 {s(sY)}, {s(sY)}, {s(sW)}', f's_lshl_b32 {s(sY)}, {s(sY)}, 1']}[OPT['urot']]
        LT += [f'v_xor_b32 {v(t+5)}, {s(sY)}, {v(t+5)}', f's_lshl_b32 {s(sY)}, {s(sY)}, 5']
    for db in range(8):
        LT += [f'v_xor_b32 {v(VA+db)}, {db}, {v(t+5)}', f'v_lshl_add_u32 {v(VA+db)}, {v(VA+db)}, 5, {v(t+4)}',
              f'v_add_u32 {v(VA0+db)}, {s(sSL)}, {v(VA+db)}']
    LT += [f'v_lshlrev_b32 {v(t+4)}, {WSH}, {v(t)}', f'v_lshl_add_u32 {v(t+4)}, {v(t+2)}, 8, {v(t+4)}',
          f'v_and_b32 {v(t+5)}, 1, {v(t+3)}', f'v_lshl_add_u32 {v(t+4)}, {v(t+5)}, 5, {v(t+4)}',
          f'v_lshrrev_b32 {v(t+5)}, 1, {v(t+3)}', f'v_lshl_add_u32 {v(OV)}, {v(t+5)}, 4, {v(t+4)}',
          f'v_and_b32 {v(t+4)}, 1, {v(t+1)}', f'v_mov_b32 {v(t+5)}, 0xaaaaaaaa',
          f'v_mul_lo_u32 {v(t+4)}, {v(t+4)}, {v(t+5)}', f'v_or_b32 {v(IDX)}, 0x44444444, {v(t+4)}', f'v_mov_b32 {v(t+5)}, 0x3f803f80']
    LT += [f'v_accvgpr_write_b32 {a(aONE+i)}, {v(t+5)}' for i in range(4)]
    LT += [f'v_lshlrev_b32 {v(t+4)}, 2, {v(t+3)}', f'v_mov_b32 {v(t+5)}, {NEG:#x}']
    for r in range(4):
        LT += [f'v_add_u32 {v(t+6)}, {r}, {v(t+4)}', f'v_cmp_lt_u32 vcc, {s(sT)}, {v(t+6)}', 's_nop 1',
              f'v_cndmask_b32 {v(MK+r)}, 0, {v(t+5)}, vcc']
    if OPT['late'] >= 4: L += LT; LT = []
    if OPT['late'] == 5: L += [f'v_mov_b32 {v(O0+i)}, 0' for i in range(64, 96)]
    LT += [f'v_mov_b32 {v(O0+i)}, 0' for i in range(96 if OPT['late'] == 5 else 64, 128)]
    LT += [f'v_accvgpr_write_b32 {a(aL+i)}, 0' for i in range(16)]
    LT += btprep(2) + btprep(3)
    if not OPT['late']: L += LT; LT = []
    groups = {'q2': qload(2), 'q3': qload(3), 'v0': dma4(1, 0), 'k1': dma4(0, 1), 'v1': dma4(1, 1), 'k2': dma4(0, 2), 'v2': dma4(1, 2), 'k3': dma4(0, 3)}
    plan = {0: dict(A=['q2'], B=['v0'], C=['q3'], D=['k1', 'v1'], E=['k2'], F=['v2', 'k3']),
            1: dict(A=['q2'], B=['v0'], C=['q3'], D=['k1'], E2=['v1', 'k2'], G=['v2', 'k3']),
            2: dict(A=['q2', 'v0'], C=['q3', 'k1'], D=['v1'], E2=['k2'], G=['v2', 'k3']),
            3: dict(A0=['v0'], A=['q2'], C=['q3', 'k1'], D=['v1', 'k2'], G=['v2', 'k3']),
            4: dict(A=['q2'], B=['v0'], C=['q3', 'k1'], D=['v1'], E2=['k2'], G=['v2', 'k3']),
            5: dict(A=['q2'], B=['v0'], C=['q3', 'k1'], D2=['v1', 'k2'], G=['v2', 'k3']),
            6: dict(A=['q2'], B=['v0', 'k1'], C=['q3'], D2=['v1', 'k2'], G=['v2', 'k3']),
            7: dict(A=['q2'], B=['v0'], C=['q3', 'k1'], D2=['v1', 'k2'], E2=['v2', 'k3']),
            8: dict(A=['q2'], B=['v0', 'k1'], C=['q3'], P=['v1', 'k2'], S=['v2', 'k3']),
            9: dict(A=['q2', 'v0'], B=['k1'], C=['q3'], P=['v1', 'k2'], S=['v2', 'k3']),
            10: dict(A0=['v0'], A=['q2'], B=['k1'], C=['q3'], P=['v1', 'k2'], S=['v2', 'k3']),
            11: dict(A=['q2'], B=['v0', 'k1'], C=['q3'], D2=['v1', 'k2'], S=['v2', 'k3']),
            12: dict(A=['q2'], B=['v0', 'k1'], C3=['q3'], P=['v1', 'k2'], S=['v2', 'k3']),
            13: dict(A=['q2'], B=['v0'], B2=['k1'], C3=['q3'], P=['v1', 'k2'], S=['v2', 'k3']),
            14: dict(A=['v0'], B=['q2'], C=['k1'], C3=['q3'], P=['v1', 'k2'], S=['v2', 'k3']),
            15: dict(A=['q2'], B2=['v0'], C2=['k1'], C3=['q3'], P=['v1', 'k2'], S=['v2', 'k3']),
            16: dict(A2=['q2'], B2=['v0'], C2=['k1'], C3=['q3'], P=['v1', 'k2'], S=['v2', 'k3']),
            17: dict(A=['q2'], B=['v0'], C=['k1'], C2=['q3'], P=['v1', 'k2'], S=['v2', 'k3']),
            18: dict(A=['q2'], B=['v0'], B2=['k1'], C2=['q3'], P=['v1', 'k2'], S=['v2', 'k3']),
            19: dict(A=['v0'], B=['q2'], C=['k1'], C3=['q3'], P=['v1'], S=['k2', 'v2'], K=['k3']),
            20: dict(A=['v0'], B=['q2'], C=['k1'], C3=['q3'], S=['v1', 'k2'], K=['v2', 'k3']),
            21: dict(A=['v0'], B=['q2'], C=['k1'], C2=['q3'], S=['v1', 'k2'], K=['v2', 'k3']),
            22: dict(A=['v0'], A2=['q2'], B2=['k1'], C2=['q3'], S=['v1', 'k2'], K=['v2', 'k3']),
            23: dict(A0=['v0'], A=['q2'], B2=['k1'], C2=['q3'], S=['v1', 'k2'], K=['v2', 'k3']),
            24: dict(A=['v0'], B=['q2'], C=['q3'], C3=['k1'], S=['v1', 'k2'], K=['v2', 'k3']),
            25: dict(A=['v0'], B=['q2'], C=['k1'], C3=['q3'], P=['v1', 'k2'], S=['v2'], K=['k3']),
            26: dict(A=['v0'], B=['q2'], C=['k1'], C3=['q3'], D=['v1'], P=['k2'], S=['v2'], K=['k3']),
            27: dict(A=['v0'], B=['q2'], C=['k1', 'v1'], C3=['q3'], P=['k2'], S=['v2'], K=['k3']),
            28: dict(A=['v0', 'k1'], B=['q2'], C2=['q3'], P=['v1', 'k2'], S=['v2'], K=['k3']),
            30: dict(A=['v0'], B=['q2'], C=['k1'], C2=['q3'], P=['v1'], S=['k2', 'v2'], K=['k3']),
            31: dict(A=['v0'], B=['q2'], C=['k1'], C3=['q3'], P=['v1'], S=['k2'], K=['v2', 'k3']),
            32: dict(A=['q2'], B=['v0'], C=['k1'], C3=['q3'], P=['v1'], S=['k2'], K=['v2', 'k3']),
            33: dict(A=['v0'], A2=['q2'], C=['q3'], C2=['k1'], P=['v1'], S=['k2'], K=['v2', 'k3']),
            29: dict(A=['v0'], A2=['k1'], B=['q2'], C2=['q3'], D=['v1'], P=['k2'], S=['v2'], K=['k3'])}[OPT['po']]
    at = lambda p_: [x for g_ in plan.get(p_, []) for x in groups[g_]]
    X = OPT['tv'] >= 4
    btv = lambda i: [f'v_min_u32 {v(BT+i)}, 131, {v(BT+i)}', f'v_lshlrev_b32 {v(BT+i)}, 16, {v(BT+i)}'] + ([f'v_or_b32 {v(BT+i)}, {(3-i)*1024}, {v(BT+i)}'] if i < 3 else [])
    touch = []
    if OPT['touch']:
        touch = ['s_mov_b64 vcc, -1', f's_cmp_eq_u32 {s(sW)}, 0', 's_cbranch_scc1 L_padB', f's_cmp_eq_u32 {s(sW)}, 1', 's_cbranch_scc1 L_padA',
                 'L_ret:', 's_mov_b64 vcc, 0']
    L += at('A0') + (touch if OPT['touch'] == 1 else []) + (['L_walk:'] if OPT['walk'] else []) + ['WAITVM ld Q0'] + stamp(2)
    if X:
        L += ['WAITVM ld BT'] + btv(0) + [f's_sub_u32 {s(sT+5)}, {s(sN)}, 1', f'v_readlane_b32 {s(sT)}, {v(BT)}, {s(sT+5)}'] + qread(0)
        L += [f's_add_u32 m0, {s(sMV)}, {s(sSL+3)}', f's_sub_u32 {s(sT+5)}, {s(sT)}, 1024',
              f'buffer_load_dwordx4 {v(DV)}, s[12:15], {s(sT)} offen lds ; dmx V',
              f'buffer_load_dwordx4 {v(DK)}, s[8:11], {s(sT+5)} offen offset:1024 lds ; dmx K']
    else: L += qread(0)
    L += at('A') + scale_q(0) + at('A2')
    LB = ['WAITVM ld BT', 's_mov_b64 s[20:21], s[8:9]', 's_mov_b32 s22, s10'] + [y for i in range(1 if X else 0, 4) for y in btv(i)] + ['s_nop 0'] + \
         [f'v_readlane_b32 {s(SETS[k]+i)}, {v(BT+i)}, {s(sT+1+k)}' for k in range(2) for i in range(4)]
    if OPT['late']: LT += LB
    else: L += LB
    L += (touch if OPT['touch'] == 2 else []) + ['WAITVM dma K 0', 's_barrier']
    L += [i_kread(*kord(f), 0, '0', addr=KA0) for f in range(16)] + at('B')
    def tile0(x):
        P = Prog(); G = P.group
        r = lambda q, sb: qkg(q, 1, sb=sb, kbase=aX, mask=True)
        xv = lambda q: [pv(q, db, 0, 2, 'ov', first=q < 2) for db in range(8)] + [sm(q, 2)]
        G('q0', qkg(0))
        if x: G('r0', r(0, 2)); G('r1', r(1, 3))
        G('q1', qkg(1))
        if x: G('x0', xv(0)); G('x1', xv(1)); G('r2', r(2, 3))
        G('q2', qkg(2))
        if x: G('x2', xv(2))
        for nm in {0: ('p0', 'p1', 'q3'), 1: ('p0', 'q3', 'p1'), 2: ('q3', 'p0', 'p1')}[OPT['t0o']]:
            G(nm, qkg(3) if nm == 'q3' else pvg(int(nm[1]), first=not x))
        P.done(); p = P.pos
        w1, w2 = p['r0' if x else 'q1'], p['r2' if x else 'q2']
        P.softmax('s0', p['q0'], 0, 0, dlcap=w1 + 4); P.softmax('s1', p['q1'], 1, 1, dlcap=w2 + (-1 if x else 4))
        P.softmax('s2', p['q2'], 2, 2, dlcap=p['q3'] - 1 if OPT['t0o'] == 0 else P.n - 1, use=P.n); P.softmax('s3', p['q3'], 3, 3, skip=LEFT3, lastrel=P.n - 1)
        if x:
            P.softmax('t0', p['r0'], 2, 2, 1); P.softmax('t1', p['r1'], 3, 2, 1, use=p['x1'], zero=False)
            P.softmax('t2', p['r2'], 3, 2, 1, zero=False)
        P.vload('v', p['p0'], 0, '0', addr=VA0, rel0=w2)
        P.kload('k', P.n, 0, '1', addr=T0, rel0=p['q3'], dlmax=P.n - 1)
        g = P.gaps
        for pt, gi in (('P', p['p0'] + 1), ('K', p['q3'] + 1)):
            step = 2 if pt == 'K' and len(plan.get('K', [])) > 1 and OPT['t0o'] == 0 else 4
            for y in at(pt):
                if y.startswith('s_add'): g[gi - 1].sc.append(y)
                elif y.startswith('buffer'):
                    P.ops.append(Op(('d', gi), 'D', gi, gi, y)); gi += step
        assert not schedule(P.n, P.ops, g, overflow=True)
        sc3 = []; ext = at('S')
        for i, y in enumerate(scale_q(3)):
            sc3.append(y)
            if i % 10 == 4 and ext:
                if ext[0].startswith('s_add'): sc3 += ext[:2]; ext = ext[2:]
                sc3.append(ext.pop(0))
        assert not ext
        xr = []
        if x:
            XA = S0 + 36
            xr = [f's_add_u32 {s(sT)}, {s(sSL+3)}, 0x10000'] + [f'v_add_u32 {v(XA+ks)}, {s(sT)}, {v(KA+ks)}' for ks in range(4)] + \
                 [f'v_add_u32 {v(XA+4+db)}, {s(sSL+3)}, {v(VA+db)}' for db in range(8)] + ['WAITVM dmx K', 's_barrier'] + \
                 [f'ds_read_b128 {a(aX+4*ks,4)}, {v(XA+ks)} offset:1024 ; rx K {ks}' for ks in range(4)] + \
                 [f'ds_read_b64_tr_b16 {a(aX+16+2*db,2)}, {v(XA+4+min(db,7))} offset:0 ; rx V {min(db,7)}' for db in range(9)]
        g[w1 - 1].post += at('B2') + (LT if OPT['late'] == 3 else LT[:len(LT)//2] if OPT['late'] == 2 else []) + xr + ['WAITVM ld Q1'] + qread(1) + at('C') + scale_q(1) + at('C2') + ['s_nop 0']
        g[w2 - 1].post += at('C3') + (LT if OPT['late'] in (1, 4, 5) else LT[len(LT)//2:] if OPT['late'] == 2 else []) + ['WAITVM ld Q2'] + qread(2) + at('D') + scale_q(2) + ['WAITVM dma V 0|dma K 1', 's_barrier']
        g[p['q3'] - 1].post += (['s_barrier'] if x else []) + at('D2') + ['WAITVM ld Q3'] + stamp(3) + qread(3) + sc3 + \
                               [f'v_add_u32 {v(T0+ks)}, {s(sSL+1)}, {v(KA+ks)}' for ks in range(4)]
        g[P.n - 1].post += [HEADWAIT]
        full, pend = add_lgkm_waits(resolve_waitvm(L + ['L_split:'] + emit(P.mf, g)))
        k = full.index('L_split:')
        return full[:k], full[k+1:] + stamp(4) + wave_select() + dispatch(0), pend
    assert OPT['po'] >= 8
    head, tn, pend = tile0(False)
    if not X: return head + tn, [], pend
    head2, tx, pend2 = tile0(True)
    assert head == head2 and [z[0] for z in pend] == [z[0] for z in pend2]
    return head + [f's_cmp_lg_u32 {s(sNKB)}, 1', 's_cbranch_scc1 L_tile0n'] + tx, ['L_tile0n:'] + tn + ['s_branch L_b1'], pend

def slow():
    t = T0
    L = ['L_slow:', 's_waitcnt vmcnt(0) lgkmcnt(0)']
    M, LS, KV, VD0, VD1 = KA, BT, DK, DV, IDX
    L += [f'v_mbcnt_lo_u32_b32 {v(t+1)}, -1, 0', f'v_mbcnt_hi_u32_b32 {v(t+1)}, -1, {v(t+1)}',
          f'v_and_b32 {v(t+2)}, 15, {v(t+1)}', f'v_lshrrev_b32 {v(t+3)}, 4, {v(t+1)}']
    L += [f's_lshl_b32 {s(sT)}, {s(sW)}, {WSH}', f'v_lshlrev_b32 {v(t+4)}, 8, {v(t+2)}', f'v_lshl_add_u32 {v(t+4)}, {v(t+3)}, 4, {v(t+4)}',
          f'v_add_u32 {v(t+4)}, {s(sT)}, {v(t+4)}']
    L += [f'buffer_load_dwordx4 {v(S0+16*q+4*ks,4)}, {v(t+4)}, s[4:7], {qoff(q)} offen offset:{64*ks}' for q in range(2) for ks in range(4)]
    L += [f'v_lshlrev_b32 {v(t+4)}, 12, {v(t+2)}', f'v_lshl_add_u32 {v(KV)}, {v(t+3)}, 4, {v(t+4)}', f'v_add_u32 {v(KV)}, 3072, {v(KV)}',
          f'v_lshlrev_b32 {v(t+4)}, 1, {v(t+3)}', f'v_xor_b32 {v(t+4)}, {v(t+2)}, {v(t+4)}',
          f'v_lshlrev_b32 {v(t+4)}, 4, {v(t+4)}', f'v_lshl_add_u32 {v(VD0)}, {v(t+3)}, 12, {v(t+4)}', f'v_add_u32 {v(VD0)}, 3072, {v(VD0)}',
          f'v_xor_b32 {v(t+4)}, 0x80, {v(t+4)}', f'v_lshl_add_u32 {v(VD1)}, {v(t+3)}, 12, {v(t+4)}', f'v_add_u32 {v(VD1)}, {3072 + 16384}, {v(VD1)}',
          f's_lshl_b32 {s(sMV)}, {s(sW)}, 13', f's_add_u32 {s(sMV)}, {s(sMV)}, 0x20000',
          f'v_bfe_u32 {v(t+5)}, {v(t+1)}, 2, 2', f'v_lshl_add_u32 {v(t+5)}, {v(t+3)}, 2, {v(t+5)}',
          f'v_lshlrev_b32 {v(t+4)}, 8, {v(t+5)}', f'v_and_b32 {v(t+6)}, 3, {v(t+1)}',
          f'v_lshl_add_u32 {v(t+4)}, {v(t+6)}, 3, {v(t+4)}', f'v_add_u32 {v(t+4)}, {s(sMV)}, {v(t+4)}', f'v_and_b32 {v(t+5)}, 7, {v(t+5)}']
    for db in range(8):
        L += [f'v_xor_b32 {v(VA+db)}, {db}, {v(t+5)}', f'v_lshl_add_u32 {v(VA+db)}, {v(VA+db)}, 5, {v(t+4)}']
    L += [f'v_lshlrev_b32 {v(MK)}, 2, {v(t+3)}', f'v_mov_b32 {v(MK+1)}, {NEG:#x}']
    L += [f'v_mov_b32 {v(O0+i)}, 0' for i in range(128)]
    L += [f'v_mov_b32 {v(M+q)}, 0xff7fffff' for q in range(4)] + [f'v_mov_b32 {v(LS+q)}, 0' for q in range(4)]
    L += ['s_waitcnt vmcnt(0)'] + scale_q(0) + scale_q(1)
    L += [f's_mov_b32 {s(sIT)}, 0', 'L_slow_loop:',
          f's_lshr_b32 {s(sT)}, {s(sIT)}, 2',
          f's_load_dwordx2 s[40:41], s[30:31], {s(sT)}', 's_waitcnt lgkmcnt(0)',
          's_min_u32 s40, s40, 131', 's_min_u32 s41, s41, 131', 's_lshl_b32 s40, s40, 16', 's_lshl_b32 s41, s41, 16']
    for kb in range(2):
        for ks in range(4):
            L.append(f'buffer_load_dwordx4 {a(aK+16*kb+4*ks,4)}, {v(KV)}, s[8:11], s{40+kb} offen offset:{64*ks}')
    for b in range(2):
        for p in range(4):
            L += [f's_add_u32 m0, {s(sMV)}, {b*4096 + p*1024}', f's_add_u32 s42, s{40+b}, {(p//2)*32768}',
                  f'buffer_load_dwordx4 {v(VD1 if p & 1 else VD0)}, s[12:15], s42 offen lds']
    L += ['s_waitcnt vmcnt(0)']
    for db in range(8):
        for tt in range(2):
            L.append(f'ds_read_b64_tr_b16 {a(aV+8*db+2*tt,2)}, {v(VA+db)} offset:{tt*4096}')
    L += [f's_sub_u32 {s(sT)}, {s(sCLT)}, {s(sIT)}', 's_waitcnt lgkmcnt(0)']
    for q in range(4):
        S = S0 + 16*q
        L += qkg(q, 2) + ['s_nop 7']
        for e in range(8):
            L += [f'v_add_u32 {v(t)}, {16*(e//4) + e%4}, {v(MK)}', f'v_cmp_gt_u32 vcc, {s(sT)}, {v(t)}', 's_nop 1',
                  f'v_cndmask_b32 {v(S+e)}, {v(MK+1)}, {v(S+e)}, vcc']
        L += [f'v_max3_f32 {v(t)}, {v(S)}, {v(S+1)}, {v(S+2)}', f'v_max3_f32 {v(t)}, {v(t)}, {v(S+3)}, {v(S+4)}',
              f'v_max3_f32 {v(t)}, {v(t)}, {v(S+5)}, {v(S+6)}', f'v_max3_f32 {v(t)}, {v(t)}, {v(S+7)}, {v(M+q)}',
              f'v_mov_b32 {v(t+1)}, {v(t)}', 's_nop 1', f'v_permlane16_swap_b32 {v(t)}, {v(t+1)}', f'v_max_f32 {v(t)}, {v(t)}, {v(t+1)}',
              f'v_mov_b32 {v(t+1)}, {v(t)}', 's_nop 1', f'v_permlane32_swap_b32 {v(t)}, {v(t+1)}', f'v_max_f32 {v(t)}, {v(t)}, {v(t+1)}',
              f'v_sub_f32 {v(t+1)}, {v(M+q)}, {v(t)}', f'v_exp_f32 {v(t+1)}, {v(t+1)}', f'v_mov_b32 {v(M+q)}, {v(t)}']
        L += [f'v_sub_f32 {v(S+e)}, {v(S+e)}, {v(t)}' for e in range(8)]
        L += [f'v_exp_f32 {v(S+e)}, {v(S+e)}' for e in range(8)]
        L += [f'v_mul_f32 {v(LS+q)}, {v(LS+q)}, {v(t+1)}']
        L += [f'v_mul_f32 {v(O0+32*q+i)}, {v(O0+32*q+i)}, {v(t+1)}' for i in range(32)]
        L += [i_cvt(q, q, i) for i in range(4)]
        for i in range(4):
            L += [f'v_lshlrev_b32 {v(t)}, 16, {v(P0+8*q+i)}', f'v_and_b32 {v(t+1)}, 0xffff0000, {v(P0+8*q+i)}',
                  f'v_add_f32 {v(LS+q)}, {v(LS+q)}, {v(t)}', f'v_add_f32 {v(LS+q)}, {v(LS+q)}, {v(t+1)}']
        L += [pv(q, db, 0) for db in range(8)]
    L += [f's_add_u32 {s(sIT)}, {s(sIT)}, 32', f's_cmp_lt_u32 {s(sIT)}, {s(sCLT)}', 's_cbranch_scc1 L_slow_loop', 's_nop 7']
    for q in range(4):
        o = O0 + 32*q
        L += [f'v_mov_b32 {v(t)}, {v(LS+q)}', f'v_mov_b32 {v(t+1)}, {v(LS+q)}', 's_nop 1',
              f'v_permlane16_swap_b32 {v(t)}, {v(t+1)}', f'v_add_f32 {v(t)}, {v(t)}, {v(t+1)}',
              f'v_mov_b32 {v(t+1)}, {v(t)}', 's_nop 1', f'v_permlane32_swap_b32 {v(t)}, {v(t+1)}', f'v_add_f32 {v(t)}, {v(t)}, {v(t+1)}',
              f'v_rcp_f32 {v(t)}, {v(t)}', 's_nop 0']
        L += [f'v_mul_f32 {v(o+i)}, {v(o+i)}, {v(t)}' for i in range(32)]
        for u in range(4):
            L += [f'v_cvt_pk_bf16_f32 {v(o+8*u+i)}, {v(o+8*u+2*i)}, {v(o+8*u+2*i+1)}' for i in range(4)]
        for u in range(4):
            L += [f'v_permlane16_swap_b32 {v(o+8*u+i)}, {v(o+8*u+2+i)}' for i in range(2)]
        for u in range(4):
            L.append(f'buffer_store_dwordx4 {v(o+8*u,4)}, {v(OV)}, s[16:19], {qoff(q)} offen offset:{64*u}')
    return L + ['s_endpgm']

DOC = '''; Paged-KV attention, one workgroup per CU: 256 query rows against one KV head, 4 waves x 64 rows, 64-key tiles.
;  * S^T = K.Q^T and O^T += V^T.P^T with v_mfma_f32_16x16x32_bf16 (P stays in registers, V via ds_read_b64_tr_b16),
;    row sums with one v_smfmac_f32_16x16x64_bf16 per 16 rows and tile.  Q is scaled once by log2(e)/sqrt(D).
;  * Softmax guard: the fast path uses 0 as stand-in for the row maximum.  Every row sum is checked at run time; if one
;    leaves [2^-40, 2^40] (or is not a number) the wave recomputes its rows in L_slow with the true running maximum.
;    L_slow also serves context lengths below 193.  context_lens <= 0 (all keys masked) gives the uniform average.
;    accumulator or an operand); the last tiles finish one 16-row block after the other so that the stores overlap
'''
NFIN = 0
def finish():
    global NFIN
    NFIN += 1
    L = [f'v_cmp_lt_u32 vcc, 0x28000000, {v(T0+4)}' if not OPT.get('abl') else 's_mov_b64 vcc, 0',
         f's_cmp_lg_u32 {s(sFORCE)}, 0', 's_cbranch_scc1 L_slow', 's_nop 3', 's_cbranch_vccnz L_slow']
    if OPT.get('twice'):
        L += ['s_cmp_eq_u32 s83, 0', f's_cbranch_scc1 L_fin{NFIN}', 's_sub_u32 s83, s83, 1', 's_waitcnt vmcnt(0) lgkmcnt(0)', 's_barrier',
              'v_mbcnt_lo_u32_b32 v0, -1, 0', 'v_mbcnt_hi_u32_b32 v0, -1, v0', f's_lshl_b32 {s(sT)}, {s(sW)}, 6', f'v_add_u32 v0, {s(sT)}, v0', 's_branch L_again', f'L_fin{NFIN}:']
    if OPT['stamp']:
        L += [f's_memtime s[40:41]', 's_waitcnt vmcnt(0)', 's_memtime s[42:43]', f's_memrealtime s[44:45]', 's_waitcnt lgkmcnt(0)']
        st = lambda i: sST + 2*i if i < 6 else 40 + 2*(i - 6)
        if OPT.get('fixed'):
            L += [f's_mov_b32 {s(sT+4)}, {OPT["fixed"]}']
            if OPT.get('xcc'):
                L += [f's_getreg_b32 {s(sT+5)}, hwreg(HW_REG_XCC_ID, 0, 4)', f's_sub_u32 {s(sT+5)}, {s(sT+5)}, s2', f's_and_b32 {s(sT+5)}, {s(sT+5)}, 7']
                if OPT['xcc'] == 2: L += [f's_sub_u32 {s(sT+5)}, 7, {s(sT+5)}']
                L += [f's_mul_i32 {s(sT+5)}, {s(sT+5)}, 500', f's_add_u32 {s(sT+4)}, {s(sT+4)}, {s(sT+5)}']
            if OPT.get('rtamp'):
                L += [f's_sub_u32 {s(sT+5)}, s44, s100', f's_sub_u32 {s(sT+5)}, {s(sT+5)}, 3000', f's_mul_i32 {s(sT+5)}, {s(sT+5)}, {OPT["rtamp"]}',
                      f's_add_u32 {s(sT+4)}, {s(sT+4)}, {s(sT+5)}']
            if OPT.get('phase'):
                L += [f's_sub_u32 {s(sT+5)}, {s(st(OPT["phase"]))}, {s(st(OPT.get("phase0", 0)))}']
                if OPT.get('neg'): L += [f's_sub_u32 {s(sT+5)}, {OPT["neg"]}, {s(sT+5)}']
                L += [f's_lshr_b32 {s(sT+5)}, {s(sT+5)}, {OPT.get("sh", 3)}', f's_add_u32 {s(sT+4)}, {s(sT+4)}, {s(sT+5)}']
            return L + [f'L_spin{NFIN}:', f's_memrealtime {s(sT,2)}', 's_waitcnt lgkmcnt(0)', f's_sub_u32 {s(sT)}, {s(sT)}, s100',
                        f's_cmp_lt_u32 {s(sT)}, {s(sT+4)}', f's_cbranch_scc1 L_spin{NFIN}', 's_endpgm']
        L += ['s_load_dwordx2 s[24:25], s[0:1], 56', 's_waitcnt lgkmcnt(0)', 's_mov_b32 s26, 0x100000', 's_mov_b32 s27, 0x20000']
        L += [f'v_mov_b32 v{i}, {s(st(i))}' for i in range(8)]
        L += ['v_mov_b32 v8, s42', 'v_mov_b32 v9, s44', 'v_mov_b32 v10, s100', 'v_mov_b32 v11, 0',
              f's_lshl_b32 {s(sT)}, s2, 2', f's_add_u32 {s(sT)}, {s(sT)}, {s(sW)}', f's_lshl_b32 {s(sT)}, {s(sT)}, 6',
              'v_mov_b32 v12, 0', 's_mov_b64 exec, 1',
              f'buffer_store_dwordx4 v[0:3], v12, s[24:27], {s(sT)} offen',
              f'buffer_store_dwordx4 v[4:7], v12, s[24:27], {s(sT)} offen offset:16',
              f'buffer_store_dwordx4 v[8:11], v12, s[24:27], {s(sT)} offen offset:32']
    return L + ['s_endpgm']

def sizes(L):
    import subprocess, re, tempfile, os
    d = tempfile.mkdtemp()
    open(d + '/a.s', 'w').write('.amdgcn_target "amdgcn-amd-amdhsa--gfx950"\n.text\n' + '\n'.join(l for l in L if not l.startswith('.')) + '\n')
    subprocess.check_call(['clang', '-x', 'assembler', '-target', 'amdgcn-amd-amdhsa', '-mcpu=gfx950', '-c', d + '/a.s', '-o', d + '/a.o'])
    out = subprocess.check_output(['llvm-objdump', '-d', '--mcpu=gfx950', d + '/a.o']).decode()
    sz = [4 * len(m.group(1).split()) for m in re.finditer(r'// [0-9A-F]+: ([0-9A-F ]+)', out)]
    it = iter(sz)
    return [next(it) if Ins(l).states else 0 for l in L]

def add_walk(L):
    sz = sizes(L); ins = parse(L)
    regions = [(L.index('L_walk:') + 1, L.index('L_b1:') - 1), (L.index('L_tail:'), L.index('L_pfend:') - 8)]
    if OPT['walk'] == 2: regions = [(L.index('L_walk:') + 1, L.index('L_pfend:') - 8)]
    pads = []
    for lo, hi in regions:
        acc = OPT['wsp'] - 64 if lo == regions[0][0] else OPT['wsp']; best = None
        for i in range(lo, hi):
            acc += sz[i]
            if acc >= OPT['wsp'] - max(64, OPT['wsp'] // 4) and ins[i].states and ins[i].cls != 'br' and not L[i].startswith(('s_cmp', 's_waitcnt')):
                cost = 0 if ins[i].cls == 'mfma' and ins[i+1].cls == 'mfma' else 2 if ins[i+1].cls == 'mfma' else 3
                if best is None or cost <= best[0]: best = (cost, i, acc)
            if acc >= OPT['wsp'] and best:
                pads.append(best[1]); acc -= best[2]; best = None
    n = len(pads); cut = [n * w // 4 for w in range(5)]
    out = []
    for i, l in enumerate(L):
        if l == 'L_walk:':
            out += ['s_mov_b64 vcc, -1']
            for w in range(3): out += [f's_cmp_eq_u32 {s(sW)}, {w}', f's_cbranch_scc1 L_pad{cut[w]}']
            out += [f's_branch L_pad{cut[3]}', 'L_ret:', 's_mov_b64 vcc, 0']
            continue
        out.append(l)
        if i in pads:
            k = pads.index(i)
            out += [f'L_pad{k}:', f's_cbranch_vccnz {"L_ret" if k + 1 in cut else f"L_pad{k+1}"}']
    print('pads', n)
    return out

def main():
    pro, pro2, pend0 = prologue()
    loop, pend = loop_code(pend0)
    assert [x[0] for x in pend0] == [x[0] for x in pend], (pend0, pend)
    L = [f'{NAME}:'] + pro + loop
    L += ['L_tail:'] + stamp(5) + [f's_cmp_gt_u32 {s(sNKB)}, 1', 's_cbranch_scc1 L_tail234']
    L += tail(1, pend) + finish()
    for w in range(1, NCOPY): L += loop_copy(w, pend)
    L += ['L_pfend:']
    L += ['L_tail234:', f's_cmp_eq_u32 {s(sNKB)}, 3', 's_cbranch_scc1 L_tail3', f's_cmp_eq_u32 {s(sNKB)}, 4', 's_cbranch_scc1 L_tail4']
    L += tail(2, pend) + finish() + ['L_tail3:'] + tail(3, pend) + finish() + ['L_tail4:'] + tail(4, pend) + finish()
    L += pro2 + slow() + ['L_end:', 's_endpgm']
    L, nn = fix_hazards(L, verbose=OPT.get('verbose', 0))
    if OPT['walk']: L = add_walk(L)
    sz = sizes(L)
    assert sum(sz[L.index('L_pc:'):]) > (65536 if NCOPY > 2 else 32768) + 64 if OPT['cpf'] else True
    print('bytes up to the last Q0 load:', sum(sz[:max(i for i, l in enumerate(L) if l.endswith('ld Q0')) + 1]), ' executed code:', sum(sz[:L.index('L_pfend:')]))
    print('nop states inserted:', nn, ' leftovers:', sorted(LEFT3))
    hdr = open('standalone__paged_block_table_kv_pagedattention__prompt.s.ref').read().split('; Override')[0]
    txt = hdr + DOC + '; Generated by gen/gen2.py (own generator script).\n'
    txt += '; @launch grid=(256,1,1) block=(256,1,1) lds=163840\n'
    txt += f'.amdgcn_target "amdgcn-amd-amdhsa--gfx950"\n.text\n.globl {NAME}\n.p2align 8\n.type {NAME},@function\n'
    for l in L: txt += (l if l.endswith(':') or l.startswith(('.', ';')) else '    ' + l) + '\n'
    txt += f'''.section .rodata,"a"
.p2align 6
.amdhsa_kernel {NAME}
  .amdhsa_next_free_vgpr 504
  .amdhsa_next_free_sgpr 102
  .amdhsa_accum_offset 256
  .amdhsa_group_segment_fixed_size 0
  .amdhsa_kernarg_size 64
  .amdhsa_user_sgpr_count 2
  .amdhsa_user_sgpr_kernarg_segment_ptr 1
  .amdhsa_system_sgpr_workgroup_id_x 1
.end_amdhsa_kernel
'''
    open(sys.argv[1], 'w').write(txt)
    if OPT.get('show'):
        for g in range(NG): print(g, PAT[g])
main()
```
